```python
import torch

def _softmax(x, axis=-1):
    return torch.softmax(x, dim=axis)
def _gelu(x):
    return torch.nn.functional.gelu(x, approximate="tanh")
def _silu(x):
    return torch.nn.functional.silu(x)
def _sigmoid(x):
    return torch.sigmoid(x)
def _layernorm(x, axis=-1, eps=1e-5):
    m = x.mean(dim=axis, keepdim=True)
    v = x.var(dim=axis, keepdim=True, unbiased=False)
    return (x - m) / torch.sqrt(v + eps)
def _scatter_add(tgt, idx, src, axis=0):
    return tgt.clone().index_add_(axis, idx, src)
def _segment_sum(src, seg, n):
    out = torch.zeros((n,) + src.shape[1:], dtype=src.dtype)
    return out.index_add_(0, seg, src)
def _pad(x, pw):
    flat = tuple(v for pair in reversed(pw) for v in pair)
    return torch.nn.functional.pad(x, flat)

kernel_name = 'sequential_preLN__mha_block_cached__glu_gated_reglu__decode'

def setup_inputs():

    _w = (lambda a: (lambda t: t.to(torch.bfloat16) if t.is_floating_point() else t)(torch.as_tensor(a)))
    def _A_setup():
        B, Sq, D = 8, 1, 512
        H, Sk, Dh = 32, 4096, 128
        return {
            "x": _w((lambda *s: torch.randn(*s, dtype=torch.bfloat16) * 0.05)(B, Sq, D)),
            "k_cache": _w((lambda *s: torch.randn(*s, dtype=torch.bfloat16) * 1.6)(B, H, Sk, Dh)),
            "v_cache": _w((lambda *s: torch.randn(*s, dtype=torch.bfloat16) * 0.8)(B, H, Sk, Dh)),
            "wq": _w((lambda *s: torch.randn(*s, dtype=torch.bfloat16) * 1.6)(D, H * Dh) * (D ** -0.5)),
            "wo": _w((lambda *s: torch.randn(*s, dtype=torch.bfloat16) * 0.8)(H * Dh, D) * ((H * Dh) ** -0.5)),
        }
    _A_in = _A_setup()

    def _B_setup():
        B, S, D, F = 8, 1, 512, 1792
        return {
            "x": _w((lambda *s: torch.randn(*s, dtype=torch.bfloat16) * 0.05)(B, S, D)),
            "W_gate": _w((lambda *s: torch.randn(*s, dtype=torch.bfloat16) * 0.4)(D, F) * (2.0 / D) ** 0.5),
            "W_up": _w((lambda *s: torch.randn(*s, dtype=torch.bfloat16) * 0.4)(D, F) * (2.0 / D) ** 0.5),
            "W_down": _w((lambda *s: torch.randn(*s, dtype=torch.bfloat16) * 0.4)(F, D) * (1.0 / F) ** 0.5),
        }
    _B_in = _B_setup()

    return {
        "A_x": _A_in["x"],
        "A_k_cache": _A_in["k_cache"],
        "A_v_cache": _A_in["v_cache"],
        "A_wq": _A_in["wq"],
        "A_wo": _A_in["wo"],
        "B_x": _B_in["x"],
        "B_W_gate": _B_in["W_gate"],
        "B_W_up": _B_in["W_up"],
        "B_W_down": _B_in["W_down"],
    }

def reference(A_x, A_k_cache, A_v_cache, A_wq, A_wo, B_x, B_W_gate, B_W_up, B_W_down):
    def _A_ref(x, k_cache, v_cache, wq, wo):
        B, Sq, D = x.shape
        H, Dh = 32, 128
        q = (lambda x, *d: x.permute(*d))((x @ wq).reshape(B, Sq, H, Dh), 0, 2, 1, 3)
        scores = torch.einsum("bhqd,bhkd->bhqk", q, k_cache) * (Dh ** -0.5)
        p = _softmax(scores, axis=-1)
        o = torch.einsum("bhqk,bhkd->bhqd", p, v_cache)
        return (lambda x, *d: x.permute(*d))(o, 0, 2, 1, 3).reshape(B, Sq, H * Dh) @ wo

    def _B_ref(x, W_gate, W_up, W_down):
        gate = torch.einsum("bsd,df->bsf", x, W_gate)
        up = torch.einsum("bsd,df->bsf", x, W_up)
        gate = gate * (lambda x, dt: x.to(dt))(gate > 0, gate.dtype)
        h = gate * up
        return torch.einsum("bsf,fd->bsd", h, W_down)

    x = A_x
    h = x + _A_ref(_layernorm(x, axis=-1), A_k_cache, A_v_cache, A_wq, A_wo)
    h2 = h + _B_ref(_layernorm(h, axis=-1), B_W_gate, B_W_up, B_W_down)
    return h2
```

```python
import re

def _expand(tok):
    tok = tok.strip()
    neg = tok.lstrip('-').strip()
    m = re.fullmatch(r'abs\((.*)\)', neg)
    if m: neg = m.group(1)
    neg = neg.strip('|')
    m = re.fullmatch(r'([vas])(\d+)', neg)
    if m: return [m.group(1) + m.group(2)]
    m = re.fullmatch(r'([vas])\[(\d+):(\d+)\]', neg)
    if m: return [m.group(1) + str(i) for i in range(int(m.group(2)), int(m.group(3)) + 1)]
    if neg == 'vcc': return ['vcc']
    if neg == 'exec': return ['exec']
    if neg == 'm0': return ['m0']
    return []

TRANS = ('v_exp_f32', 'v_log_f32', 'v_rcp_f32', 'v_rsq_f32', 'v_sqrt_f32', 'v_sin_f32', 'v_cos_f32')

class Ins:
    def __init__(self, text):
        self.text = text
        body = text.split(';')[0].strip()
        self.label = body.endswith(':')
        self.directive = body.startswith('.')
        self.op = ''; self.wr = set(); self.rd = set(); self.srcc = set(); self.ab = set(); self.data = set()
        self.kind = 'none'; self.dpp = False; self.states = 0
        if self.label or self.directive or not body: return
        parts = body.split(None, 1)
        op = parts[0]; self.op = op
        rest = parts[1] if len(parts) > 1 else ''
        raw = [t.strip() for t in re.split(r',(?![^\[]*\])', rest)] if rest else []
        ops = []
        for i, t in enumerate(raw):
            ops.append(t.split()[0] if t else t)
        regs = [_expand(t) for t in ops]
        self.states = 1
        if op == 's_nop': self.states = int(ops[0], 0) + 1; self.kind = 'salu'; return
        self.dpp = ('row_' in rest) or ('quad_perm' in rest) or op.endswith('_dpp')
        flat = lambda l: set(x for y in l for x in y)
        if op.startswith('v_mfma'):
            self.kind = 'mfma'; self.wr = set(regs[0]); self.ab = set(regs[1]) | set(regs[2]); self.srcc = set(regs[3]); self.rd = self.ab | self.srcc
        elif op.startswith('v_'):
            self.kind = 'valu'
            if op.startswith('v_permlane'):
                self.wr = flat(regs[:2]); self.rd = flat(regs[:2])
            elif op.startswith(('v_add_co', 'v_sub_co', 'v_addc_co')):
                self.wr = flat(regs[:2]); self.rd = flat(regs[2:])
            else:
                self.wr = set(regs[0]); self.rd = flat(regs[1:])
                if op.startswith(('v_fmac', 'v_dot2c', 'v_writelane')): self.rd |= self.wr
                if op.startswith('v_dot2c'): self.srcc = set(regs[0]); self.ab = flat(regs[1:3])
                if op.startswith('v_dot2_'): self.srcc = set(regs[3]); self.ab = flat(regs[1:3])
                if op.startswith('v_cndmask') and len(regs) == 3: self.rd.add('vcc')
        elif op.startswith(('buffer_', 'global_')):
            self.kind = 'vmem'
            lds = (' lds' in rest) or ('_lds_' in op)
            if 'load' in op and not lds:
                self.wr = set(regs[0]); self.rd = flat(regs[1:])
            elif 'atomic' in op and ' sc0' in rest:
                self.wr = set(regs[0]); self.rd = flat(regs)
            else:
                self.rd = flat(regs)
                if 'store' in op and ('x4' in op or 'x3' in op):
                    self.data = set(regs[0]) if op.startswith('buffer_') else set(regs[1])
            if lds: self.rd.add('m0'); self.kind = 'vmem'; self.lds = True
        elif op.startswith('ds_'):
            self.kind = 'ds'
            if 'read' in op or 'bpermute' in op or 'swizzle' in op:
                self.wr = set(regs[0]); self.rd = flat(regs[1:])
            else: self.rd = flat(regs)
        elif op.startswith('s_'):
            self.kind = 'salu'
            if op.startswith(('s_cmp', 's_waitcnt', 's_branch', 's_cbranch', 's_barrier', 's_endpgm', 's_sleep', 's_setprio', 's_bitcmp')):
                self.rd = flat(regs)
            else:
                self.wr = set(regs[0]) if regs else set(); self.rd = flat(regs[1:])
        else:
            raise ValueError(text)

def need(p, c):
    n = 0
    vw = set(r for r in p.wr if r[0] in 'va' and r != 'vcc')
    sw = set(r for r in p.wr if r[0] == 's' or r == 'vcc')
    if p.kind == 'valu':
        isdot = p.op.startswith('v_dot2')
        if c.kind == 'valu' and c.dpp and vw & c.rd: n = max(n, 2)
        if c.kind == 'valu' and c.op.startswith('v_permlane') and vw & c.rd: n = max(n, 2)
        if c.kind == 'mfma' and vw & c.rd: n = max(n, 3 if isdot else 2)
        if c.kind == 'valu' and c.op.startswith(('v_readlane', 'v_readfirstlane')) and vw & c.rd: n = max(n, 1)
        if p.op.split('_e')[0] in TRANS or p.op in TRANS:
            if c.kind in ('valu', 'mfma') and vw & c.rd: n = max(n, 1)
        if isdot and (vw & (c.rd | c.wr)):
            same = c.op == p.op
            if same and not (vw & c.ab): pass
            elif c.kind in ('valu', 'mfma', 'vmem', 'ds'): n = max(n, 3)
        if sw:
            if c.kind == 'valu' and sw & c.rd:
                n = max(n, 4 if c.op.startswith(('v_readlane', 'v_writelane')) else 2)
            if c.kind == 'vmem' and sw & c.rd: n = max(n, 5)
            if c.kind == 'salu' and sw & c.rd: n = max(n, 1)
    if p.kind == 'mfma':
        if c.kind == 'mfma':
            if vw & c.ab: n = max(n, 8)
            if vw & c.srcc and vw != c.srcc: n = max(n, 6)
        elif c.kind in ('valu', 'vmem', 'ds') and vw & (c.rd | c.wr): n = max(n, 8)
        if c.kind == 'valu' and p.srcc & c.wr: n = max(n, 3)
    if p.kind == 'vmem' and p.data and c.kind in ('valu', 'ds', 'vmem', 'mfma') and p.data & c.wr: n = max(n, 2)
    if p.kind == 'salu' and 'm0' in p.wr and (getattr(c, 'lds', False) or c.op.startswith('v_writelane')): n = max(n, 1)
    return n

class Asm:
    def __init__(self): self.lines = []
    def __call__(self, s):
        for l in s.split('\n'):
            l = l.strip()
            if l: self.lines.append(l)
    def finish(self):
        out = []
        for l in self.lines:
            c = Ins(l)
            if c.kind != 'none':
                dist = 0; deficit = 0
                for p in reversed(out):
                    if p.kind == 'none': continue
                    deficit = max(deficit, need(p, c) - dist)
                    dist += p.states
                    if dist >= 10: break
                if deficit > 0: out.append(Ins(f's_nop {deficit-1}'))
            out.append(c)
        return '\n'.join(('' if (i.label or i.directive or i.text.startswith(';')) else '    ') + i.text for i in out) + '\n'
```

```python
import sys, struct
sys.path.insert(0, __file__.rsplit('/', 1)[0])
from asmlib import Asm

NAME = "sequential_preLN__mha_block_cached__glu_gated_reglu__decode_kernel"
HEADER = open(__file__.rsplit('/', 1)[0] + '/header.txt').read()

def f32(x): return "0x%08x" % struct.unpack('<I', struct.pack('<f', x))[0]

WS_P, WS_H, WS_G, WS_ST, WS_SIZE = 0, 0x80000, 0x82000, 0x100000, 0x140000
L_QP, L_OP, L_ML, L_ST, L_TX, L_WA, L_WB, L_WD, L_SIZE = 0, 2048, 4096, 4160, 4608, 8192, 24576, 8192, 65536
RING = 128
NB = 32
SPIN = 200000

def gen(D=5, pol="nt", wpol="", stamps=False, early=(3, 8, 13), npre=16, sleep=1):
    a = Asm()
    vm = []
    def vwait(tag):
        n = len(vm) - 1 - vm.index(tag)
        a(f"s_waitcnt vmcnt({min(n, 63)})")
    def stamp(k):
        if stamps:
            a("s_memrealtime s[94:95]"); a("s_waitcnt lgkmcnt(0)"); a(f"v_writelane_b32 v73, s94, {k}")
    def allred(op, v, t):
        for n in (8, 4, 2, 1): a(f"{op}_dpp {v}, {v}, {v} row_ror:{n} row_mask:0xf bank_mask:0xf")
        for sw in ("v_permlane16_swap_b32", "v_permlane32_swap_b32"):
            a(f"v_mov_b32 {t}, {v}"); a(f"{sw} {v}, {t}"); a(f"{op} {v}, {v}, {t}")
    def bf16r(v, src=None):
        src = src or v
        a(f"v_cvt_pk_bf16_f32 {v}, {src}, {src}"); a(f"v_and_b32 {v}, 0xffff0000, {v}")
    def srd(d, lo, hi, size, add=None):
        if add is None:
            a(f"s_mov_b32 s{d}, s{lo}"); a(f"s_mov_b32 s{d+1}, s{hi}")
        else:
            a(f"s_add_u32 s{d}, s{lo}, {add}"); a(f"s_addc_u32 s{d+1}, s{hi}, 0")
        a(f"s_mov_b32 s{d+2}, {size}"); a(f"s_mov_b32 s{d+3}, 0x20000")
    def ring(j): j %= NB; return f"v[{RING+4*j}:{RING+4*j+3}]"
    def sload(j, nxt):
        s, b = ("s[12:15]", "s55") if nxt else ("s[8:11]", "s54")
        a(f"buffer_load_dwordx4 {ring(j)}, v{2+(j>>2)}, {s}, {b} offen offset:{(j&3)*1024} {pol}")
    def masks(t, src, lane):
        for r in range(4):
            a(f"v_and_b32_dpp v{18+4*(t&1)+r}, {src}, v{14+r} row_newbcast:{lane} row_mask:0xf bank_mask:0xf")
    def mop(t): return f"v[{18+4*(t&1)}:{21+4*(t&1)}]"
    def bitrev(t): return ((t & 1) << 3) | ((t & 2) << 1) | ((t & 4) >> 1) | ((t & 8) >> 3)
    def poll(label, loads, regs, pre=None):
        a(f"s_mov_b32 s88, {SPIN}")
        a(f"{label}:")
        for l in loads: a(l)
        if pre: pre()
        a("s_waitcnt vmcnt(0)")
        r = list(regs)
        a(f"v_max3_u32 v48, v{r[0]}, v{r[1]}, v{r[2]}"); r = r[3:]
        while len(r) >= 2:
            a(f"v_max3_u32 v48, v48, v{r[0]}, v{r[1]}"); r = r[2:]
        if r: a(f"v_max_u32 v48, v48, v{r[0]}")
        a("v_cmp_eq_u32 vcc, -1, v48")
        a(f"s_cbranch_vccz {label}_ok")
        if sleep: a(f"s_sleep {sleep}")
        a("s_sub_u32 s88, s88, 1")
        a(f"s_cbranch_scc0 {label}")
        a(f"{label}_ok:")

    a(f"{NAME}:")
    a("s_cmp_ge_u32 s2, 256"); a("s_cbranch_scc1 L_end")
    a("s_load_dwordx16 s[64:79], s[0:1], 0")
    a("s_load_dwordx8 s[80:87], s[0:1], 64")
    a("v_lshrrev_b32 v1, 6, v0")
    a("v_readfirstlane_b32 s3, v1")
    a("v_and_b32 v1, 63, v0")
    a("s_lshr_b32 s4, s2, 5"); a("s_and_b32 s5, s2, 31")
    a("v_lshrrev_b32 v74, 4, v1"); a("v_and_b32 v75, 15, v1")
    if stamps: a("v_mov_b32 v73, 0")
    a("v_lshlrev_b32 v48, 4, v1")
    a("s_lshl_b32 s58, s3, 12"); a("v_add_u32 v2, s58, v48")
    for k in range(1, 8): a(f"v_add_u32 v{2+k}, {k*16384}, v2")
    a("s_lshl_b32 s58, s3, 8"); a("v_lshlrev_b32 v49, 3, v75"); a("v_lshl_add_u32 v49, v74, 1, v49"); a("v_add_u32 v49, s58, v49")
    a("v_and_b32 v50, 3, v1"); a("v_lshlrev_b32 v50, 3, v50"); a("v_lshrrev_b32 v51, 1, v74"); a("v_lshl_add_u32 v50, v51, 2, v50")
    a("s_lshl_b32 s58, s5, 5"); a("v_add_u32 v50, s58, v50")
    a("s_lshl_b32 s58, s3, 20"); a("v_lshlrev_b32 v58, 13, v74"); a("v_lshl_add_u32 v58, v75, 4, v58"); a("v_add_u32 v58, s58, v58")
    a("s_lshl_b32 s58, s3, 8"); a("v_lshlrev_b32 v59, 10, v74"); a("v_lshl_add_u32 v59, v75, 4, v59"); a("v_add_u32 v59, s58, v59")
    a("s_lshl_b32 s57, s4, 10")
    a("s_lshl_b32 s58, s5, 8")
    a("s_lshl_b32 s59, s2, 20")
    a("s_sub_u32 s92, 0x400000, s58")
    a("s_waitcnt lgkmcnt(0)")
    stamp(0)
    srd(28, 64, 65, 8192)
    a("buffer_load_dwordx4 v[52:55], v48, s[28:31], s57 offen"); vm.append("x")
    a("buffer_load_ushort v56, v49, s[28:31], s57 offen"); vm.append("xc0")
    a("buffer_load_ushort v57, v49, s[28:31], s57 offen offset:128"); vm.append("xc1")
    srd(20, 70, 71, "s92", "s58")
    srd(8, 66, 67, 0x100000, "s59")
    a("s_mov_b32 s54, 0")
    def wqload(t):
        a(f"s_mov_b32 s58, {t*32768}")
        a(f"buffer_load_dwordx4 a[{4*t}:{4*t+3}], v58, s[20:23], s58 offen {wpol}"); vm.append(f"wq{t}")
    kiss = 0
    def kload(nxt=False):
        nonlocal kiss
        sload(kiss % NB, kiss >= NB); vm.append(f"k{kiss}"); kiss += 1
    for t in range(32):
        wqload(t)
        if t % 2 == 1 and kiss < npre: kload()
        if t == 7:
            a("s_add_u32 s16, s68, s59"); a("s_addc_u32 s17, s69, 0")
            a("s_mov_b32 s12, s8"); a("s_mov_b32 s13, s9"); a("s_mov_b32 s14, 0x100000"); a("s_mov_b32 s15, 0x20000")
            a("s_lshl_b32 s58, s5, 17"); srd(24, 72, 73, 0x20000, "s58")
            srd(32, 86, 87, WS_SIZE); srd(36, 82, 83, 8192)
            srd(40, 76, 77, 512*3584); srd(44, 78, 79, 512*3584); srd(48, 80, 81, 1792*1024)
            a("buffer_load_dword v71, v50, s[28:31], s57 offen"); vm.append("xr")
            a("s_and_b32 s58, s2, 7"); a("s_lshr_b32 s92, s2, 3")
            a("s_mul_i32 s89, s58, 28"); a("s_add_u32 s89, s89, s92")
            a("s_lshl_b32 s58, s58, 2"); a("s_add_u32 s58, s58, s92"); a("s_sub_u32 s58, s58, 28")
            a("s_cmp_lt_u32 s2, 224"); a("s_cselect_b32 s89, s89, s58")
            a("v_lshrrev_b32 v68, 1, v75"); a("v_lshlrev_b32 v68, 11, v68")
            a("v_and_b32 v60, 1, v75"); a("v_lshl_add_u32 v60, v60, 1, v74"); a("v_lshl_add_u32 v68, v60, 4, v68")
            a("s_lshl_b32 s58, s4, 16"); a("s_lshl_b32 s92, s3, 14"); a("s_add_u32 s58, s58, s92")
            a("s_lshl_b32 s92, s5, 6"); a("s_add_u32 s58, s58, s92"); a("v_add_u32 v68, s58, v68")
            a("v_bfe_u32 v69, v1, 1, 1"); a("v_lshlrev_b32 v69, 7, v69")
            a("v_and_b32 v60, 1, v1"); a("v_lshl_add_u32 v69, v60, 3, v69"); a("v_lshl_add_u32 v69, v51, 2, v69")
            a("s_lshl_b32 s58, s5, 8"); a("s_lshl_b32 s92, s4, 4"); a("s_add_u32 s58, s58, s92"); a(f"s_add_u32 s58, s58, {WS_H}")
            a("v_add_u32 v69, s58, v69")
            a("v_lshlrev_b32 v70, 4, v75"); a("v_lshl_add_u32 v70, v74, 3, v70")
            a("s_lshl_b32 s58, s89, 7"); a(f"s_add_u32 s58, s58, {WS_G}"); a("v_add_u32 v70, s58, v70")
            for r in range(4): a(f"v_mov_b32 v{60+r}, -1")
            a("s_mov_b32 exec_hi, 0")
            a("buffer_store_dwordx4 v[60:63], v68, s[32:35], 0 offen sc1"); vm.append("clrP")
            a("s_cmp_eq_u32 s3, 0"); a("s_cbranch_scc0 L_noclrH")
            a("s_mov_b32 exec_lo, 15"); a("s_mov_b32 exec_hi, 15")
            a("buffer_store_dword v60, v69, s[32:35], 0 offen sc1")
            a("L_noclrH:")
            a("s_cmp_eq_u32 s3, 3"); a("s_cbranch_scc0 L_noclrG")
            a("s_cmp_lt_u32 s2, 224"); a("s_cbranch_scc0 L_noclrG")
            a("s_mov_b64 exec, 0x00ff00ff")
            a("buffer_store_dwordx2 v[60:61], v70, s[32:35], 0 offen sc1")
            a("L_noclrG:")
            a("s_mov_b64 exec, -1")
    while kiss < npre + D: kload()
    stamp(1)
    a("s_mov_b32 s60, 0xcccccccc"); a("s_mov_b32 s61, 0xcccccccc"); a("s_mov_b32 s62, 0xaaaaaaaa"); a("s_mov_b32 s63, 0xaaaaaaaa")
    a(f"s_mov_b32 s90, {f32(128 ** -0.5)}"); a(f"s_mov_b32 s91, {f32(1.4426950408889634)}")
    a("s_lshr_b32 s58, s2, 3"); a("s_and_b32 s58, s58, 3"); a("s_add_u32 s58, s58, 1")
    a("s_cmp_eq_u32 s3, 0"); a("s_cselect_b32 s57, s58, 99")
    a("v_and_b32 v60, 1, v75"); a("v_lshlrev_b32 v60, 4, v60"); a("v_mov_b32 v61, 0xffff"); a("v_lshlrev_b32 v60, v60, v61")
    a("v_lshrrev_b32 v61, 1, v75")
    for r in range(4):
        a(f"v_cmp_eq_u32 vcc, {r}, v61"); a(f"v_cndmask_b32 v{14+r}, 0, v60, vcc")
    vwait("x")
    for k in range(4):
        a(f"v_lshlrev_b32 v{76+2*k}, 16, v{52+k}"); a(f"v_and_b32 v{77+2*k}, 0xffff0000, v{52+k}")
    a("v_add_f32 v84, v76, v77")
    for k in range(2, 8): a(f"v_add_f32 v84, v84, v{76+k}")
    allred("v_add_f32", "v84", "v85")
    a(f"v_mul_f32 v84, {f32(1/512)}, v84")
    for k in range(8): a(f"v_sub_f32 v{76+k}, v{76+k}, v84")
    a("v_mul_f32 v86, v76, v76")
    for k in range(1, 8): a(f"v_fmac_f32 v86, v{76+k}, v{76+k}")
    allred("v_add_f32", "v86", "v85")
    a(f"v_mul_f32 v86, {f32(1/512)}, v86")
    bf16r("v84"); bf16r("v86")
    a(f"v_add_f32 v86, {f32(1e-5)}, v86"); bf16r("v86")
    a("v_sqrt_f32 v86, v86"); bf16r("v86"); a("v_rcp_f32 v86, v86")
    vwait("xc1")
    for k in range(2):
        a(f"v_lshlrev_b32 v{56+k}, 16, v{56+k}"); a(f"v_sub_f32 v{56+k}, v{56+k}, v84"); bf16r(f"v{56+k}")
        a(f"v_mul_f32 v{56+k}, v{56+k}, v86"); a(f"v_cvt_pk_bf16_f32 v{66+k}, v{56+k}, v{56+k}")
    stamp(2)
    masks(0, "v66", 0)
    for t in range(32):
        vwait(f"wq{t}")
        a(f"v_mfma_f32_16x16x32_bf16 v[28:31], {mop(t)}, a[{4*t}:{4*t+3}], {'0' if t == 0 else 'v[28:31]'}")
        if t < 31: masks(t + 1, "v66" if t + 1 < 16 else "v67", (t + 1) & 15)
    a("v_lshlrev_b32 v27, 5, v75"); a("v_lshl_add_u32 v26, v74, 4, v27"); a("s_lshl_b32 s58, s3, 9"); a("v_add_u32 v26, s58, v26")
    a("s_mov_b32 exec_hi, 0")
    a(f"ds_write_b128 v26, v[28:31] offset:{L_QP}")
    a("s_mov_b64 exec, -1")
    a("s_waitcnt lgkmcnt(0)"); a("s_barrier")
    for w in range(4):
        for hh in range(2): a(f"ds_read_b128 v[{76+8*w+4*hh}:{79+8*w+4*hh}], v27 offset:{L_QP+512*w+16*hh}")
    a("s_waitcnt lgkmcnt(0)")
    for k in range(8):
        a(f"v_add_f32 v{76+k}, v{76+k}, v{84+k}"); a(f"v_add_f32 v{92+k}, v{92+k}, v{100+k}")
    for k in range(8): a(f"v_add_f32 v{76+k}, v{76+k}, v{92+k}")
    for k in range(4): a(f"v_cvt_pk_bf16_f32 v{10+k}, v{76+2*k}, v{77+2*k}")
    a("v_mov_b32 v64, 0xff800000"); a("v_mov_b32 v65, 0")
    stamp(3)

    def kconsume(i):
        t = i & 15
        x = f"v{48 + (t & 1)}" if True else None
        base = RING + 4 * i
        a(f"v_dot2_f32_bf16 {x}, v{base}, v10, 0")
        for r in range(1, 4): a(f"v_dot2_f32_bf16 {x}, v{base+r}, v{10+r}, {x}")
        if t & 1:
            d = f"v{50 + ((t >> 1) & 1)}"
            a(f"v_add_f32_dpp {d}, v48, v48 row_ror:8 row_mask:0xf bank_mask:0x3")
            a(f"v_add_f32_dpp {d}, v49, v49 row_ror:8 row_mask:0xf bank_mask:0xc")
        if t & 3 == 3:
            d = f"v{52 + ((t >> 2) & 1)}"
            a(f"v_add_f32_dpp {d}, v50, v50 row_half_mirror row_mask:0xf bank_mask:0x5")
            a(f"v_add_f32_dpp {d}, v51, v51 row_half_mirror row_mask:0xf bank_mask:0xa")
        if t & 7 == 7:
            d = f"v{54 + ((t >> 3) & 1)}"
            a("v_add_f32_dpp v52, v52, v52 quad_perm:[2,3,0,1] row_mask:0xf bank_mask:0xf")
            a("v_add_f32_dpp v53, v53, v53 quad_perm:[2,3,0,1] row_mask:0xf bank_mask:0xf")
            a(f"v_cndmask_b32 {d}, v52, v53, s[60:61]")
        if t == 15:
            s = f"v{46 + (i >> 4)}"
            a("v_add_f32_dpp v54, v54, v54 quad_perm:[1,0,3,2] row_mask:0xf bank_mask:0xf")
            a("v_add_f32_dpp v55, v55, v55 quad_perm:[1,0,3,2] row_mask:0xf bank_mask:0xf")
            a(f"v_cndmask_b32 {s}, v54, v55, s[62:63]")
            bf16r(s); a(f"v_mul_f32 {s}, s90, {s}"); bf16r(s)
            a(f"v_max_f32 v64, v64, {s}")
    a(f"s_mov_b32 s55, {NB*4096}")
    left = NB + D - kiss
    sched = list(early) + list(range(NB - (left - len(early)), NB))
    assert len(set(sched)) == left, (sched, left)
    for i in range(NB):
        vwait(f"k{i}")
        if i in sched:
            assert kiss - NB < i or kiss < NB
            kload()
        a(f"s_mov_b32 s58, {i*4096}")
        a(f"buffer_load_dwordx4 a[{4*i}:{4*i+3}], v59, s[24:27], s58 offen {wpol}"); vm.append(f"wo{i}")
        kconsume(i)
    stamp(4)
    a("s_mov_b32 s56, 1")
    a(".p2align 3")
    a("L_kloop:")
    a("s_mov_b32 s54, s55"); a(f"s_add_u32 s55, s55, {NB*4096}")
    a("s_cmp_eq_u32 s56, 7")
    a("s_cselect_b32 s12, s16, s12"); a("s_cselect_b32 s13, s17, s13"); a("s_cselect_b32 s55, 0, s55")
    a("s_cmp_eq_u32 s56, s57"); a("s_cbranch_scc0 L_nosig")
    a("v_mov_b32 v60, 0"); a("v_mov_b32 v61, 1"); a("s_mov_b64 exec, 1")
    a("global_atomic_add v60, v61, s[84:85] sc1")
    a("s_mov_b64 exec, -1")
    a("L_nosig:")
    for k in range(14): a(f"v_mov_b32 v{32+k}, v{34+k}")
    for i in range(NB):
        a(f"s_waitcnt vmcnt({D-1})")
        sload((i + D) % NB, i + D >= NB)
        kconsume(i)
    a("s_add_u32 s56, s56, 1"); a("s_cmp_lt_u32 s56, 8"); a("s_cbranch_scc1 L_kloop")
    stamp(5)
    allred("v_max_f32", "v64", "v48")
    a("v_mul_f32 v64, s91, v64"); a("v_sub_f32 v64, 0, v64")
    a("s_mov_b32 s8, s12"); a("s_mov_b32 s9, s13"); a("s_mov_b32 s56, 0")
    for r in range(4): a(f"v_mov_b32 v{28+r}, 0")
    a(".p2align 3")
    a("L_vloop:")
    a("s_mov_b32 s54, s55"); a(f"s_add_u32 s55, s55, {NB*4096}")
    for k in range(2):
        a(f"v_fma_f32 v{56+k}, v{32+k}, s91, v64"); a(f"v_exp_f32 v{56+k}, v{56+k}")
        a(f"v_add_f32 v65, v65, v{56+k}"); a(f"v_cvt_pk_bf16_f32 v{66+k}, v{56+k}, v{56+k}")
    for k in range(14): a(f"v_mov_b32 v{32+k}, v{34+k}")
    masks(0, "v66", 0)
    a("s_cmp_eq_u32 s56, 4"); a("s_cbranch_scc0 L_nochk")
    a("v_mov_b32 v60, 0")
    a("global_load_dword v72, v60, s[84:85] sc1")
    a("L_nochk:")
    a("s_cmp_eq_u32 s56, 7"); a("s_cbranch_scc0 L_nolast")
    allred("v_add_f32", "v65", "v48")
    a("s_lshl_b32 s58, s3, 3"); a("v_mov_b32 v48, s58"); a("s_mov_b64 exec, 1")
    a(f"ds_write_b64 v48, v[64:65] offset:{L_ML}")
    a("s_mov_b64 exec, -1")
    a("v_readfirstlane_b32 s58, v72"); a("s_cmp_ge_u32 s58, 256"); a("s_cbranch_scc1 L_nolast")
    a(f"s_mov_b32 s88, {SPIN}"); a("v_mov_b32 v60, 0")
    a("L_cnt:")
    a("s_sleep 8"); a("global_load_dword v72, v60, s[84:85] sc1"); a("s_waitcnt vmcnt(0)")
    a("v_readfirstlane_b32 s58, v72"); a("s_cmp_ge_u32 s58, 256"); a("s_cbranch_scc1 L_nolast")
    a("s_sub_u32 s88, s88, 1"); a("s_cbranch_scc0 L_cnt")
    a("L_nolast:")
    for i in range(NB):
        a(f"s_waitcnt vmcnt({D-1})")
        sload((i + D) % NB, i + D >= NB)
        a(f"v_mfma_f32_16x16x32_bf16 v[28:31], {mop(i)}, {ring(i)}, v[28:31]")
        if i < NB - 1: masks(i + 1, f"v{66 + ((i + 1) >> 4)}", bitrev((i + 1) & 15))
    a("s_add_u32 s56, s56, 1"); a("s_cmp_lt_u32 s56, 8"); a("s_cbranch_scc1 L_vloop")
    stamp(6)
    a("v_lshlrev_b32 v27, 4, v75"); a("v_lshl_add_u32 v27, v74, 2, v27")
    a("v_mov_b32 v48, 0")
    a("s_mov_b32 exec_hi, 0")
    a(f"ds_write_b128 v26, v[28:31] offset:{L_OP}")
    a("s_mov_b64 exec, -1")
    a("s_waitcnt lgkmcnt(0)"); a("s_barrier")
    a(f"ds_read_b128 v[76:79], v48 offset:{L_ML}"); a(f"ds_read_b128 v[80:83], v48 offset:{L_ML+16}")
    for w in range(4): a(f"ds_read2st64_b32 v[{84+2*w}:{85+2*w}], v27 offset0:{L_OP//256+2*w} offset1:{L_OP//256+2*w+1}")
    a("s_waitcnt lgkmcnt(4)")
    a("v_min_f32 v48, v76, v78"); a("v_min3_f32 v48, v48, v80, v82")
    for w in range(4): a(f"v_sub_f32 v{76+2*w}, v48, v{76+2*w}")
    for w in range(4): a(f"v_exp_f32 v{76+2*w}, v{76+2*w}")
    a("v_mul_f32 v49, v76, v77")
    for w in range(1, 4): a(f"v_fmac_f32 v49, v{76+2*w}, v{77+2*w}")
    a("v_rcp_f32 v49, v49")
    a("s_waitcnt lgkmcnt(0)")
    for k in range(2):
        a(f"v_mul_f32 v{56+k}, v76, v{84+k}")
        for w in range(1, 4): a(f"v_fmac_f32 v{56+k}, v{76+2*w}, v{84+2*w+k}")
    for k in range(2):
        a(f"v_mul_f32 v{56+k}, v{56+k}, v49"); a(f"v_cvt_pk_bf16_f32 v{66+k}, v{56+k}, v{56+k}")
    masks(0, "v66", 0)
    for t in range(32):
        if t < 31: masks(t + 1, "v66" if t + 1 < 16 else "v67", (t + 1) & 15)
        a(f"v_mfma_f32_16x16x32_bf16 v[28:31], {mop(t)}, a[{4*t}:{4*t+3}], {'0' if t == 0 else 'v[28:31]'}")
    a("s_mov_b32 s58, -2")
    a("s_mov_b32 exec_hi, 0")
    for r in range(4): a(f"v_min_u32 v{28+r}, s58, v{28+r}")
    a("buffer_store_dwordx4 v[28:31], v68, s[32:35], 0 offen sc1")
    a("s_mov_b64 exec, -1")
    stamp(7)
    a("v_lshrrev_b32 v60, 2, v75"); a("v_lshl_add_u32 v60, v74, 4, v60")
    a("v_and_b32 v61, 3, v1")
    a("s_cmp_lt_u32 s2, 224"); a("s_cbranch_scc0 L_dmaD")
    a("s_movk_i32 s58, 3584"); a("v_mul_u32_u24 v62, s58, v1"); a("s_lshl_b32 s58, s89, 4"); a("v_add_u32 v62, s58, v62")
    a("s_cmp_eq_u32 s3, 3"); a("s_cbranch_scc1 L_dmaW3")
    a(f"s_mul_i32 s58, s3, {2*229376}"); a("s_lshl_b32 s59, s3, 11"); a(f"s_add_u32 s59, s59, {L_WA}")
    for m in range(2):
        for u in range(2):
            a(f"s_add_u32 m0, s59, {m*8192+u*1024}"); a(f"s_add_u32 s92, s58, {u*229376}")
            a(f"buffer_load_dwordx4 v62, s[{40+4*m}:{43+4*m}], s92 offen {wpol} lds")
    a("s_branch L_dmaX")
    a("L_dmaW3:")
    for u in (6, 7, 0, 1, 2, 3, 4, 5):
        for m in range(2):
            a(f"s_mov_b32 m0, {L_WB+m*8192+u*1024}"); a(f"s_mov_b32 s92, {u*229376}")
            a(f"buffer_load_dwordx4 v62, s[{40+4*m}:{43+4*m}], s92 offen {wpol} lds")
    a("s_branch L_dmaX")
    a("L_dmaD:")
    a("v_lshrrev_b32 v62, 1, v1"); a("v_lshlrev_b32 v62, 10, v62"); a("v_and_b32 v63, 1, v1"); a("v_lshl_add_u32 v62, v63, 4, v62")
    a("s_lshl_b32 s58, s89, 5"); a("v_add_u32 v62, s58, v62")
    a(f"s_mul_i32 s58, s3, {448*1024}"); a(f"s_mul_i32 s59, s3, {448*32}"); a(f"s_add_u32 s59, s59, {L_WD}")
    for j in range(14):
        a(f"s_add_u32 m0, s59, {j*1024}"); a(f"s_add_u32 s92, s58, {j*32768}")
        a(f"buffer_load_dwordx4 v62, s[48:51], s92 offen {wpol} lds")
    a("L_dmaX:")
    a("v_lshlrev_b32 v62, 4, v1")
    a("s_cmp_eq_u32 s3, 0"); a("s_cbranch_scc1 L_s2")
    a("s_waitcnt vmcnt(0)"); a("s_branch L_s2done")
    a("L_s2:")
    a("s_lshl_b32 s59, s2, 11")
    a("v_lshlrev_b32 v50, 16, v71"); a("v_and_b32 v51, 0xffff0000, v71")
    poll("L_pP", [f"buffer_load_dwordx4 v[{76+4*u}:{79+4*u}], v62, s[32:35], s59 offen offset:{u*1024} sc1" for u in range(2)], range(76, 84))
    stamp(8)
    for r in range(4): a(f"v_add_f32 v{76+r}, v{76+r}, v{80+r}")
    a("v_permlane32_swap_b32 v76, v78"); a("v_permlane32_swap_b32 v77, v79")
    a("v_add_f32 v76, v76, v78"); a("v_add_f32 v77, v77, v79")
    for n in (4, 8):
        for r in range(2): a(f"v_add_f32_dpp v{76+r}, v{76+r}, v{76+r} row_ror:{n} row_mask:0xf bank_mask:0xf")
    a("v_mov_b32 v78, v76"); a("v_mov_b32 v79, v77")
    a("v_permlane16_swap_b32 v76, v78"); a("v_permlane16_swap_b32 v77, v79")
    a("v_add_f32 v76, v76, v78"); a("v_add_f32 v77, v77, v79")
    a("v_cvt_pk_bf16_f32 v76, v76, v77")
    a("v_and_b32 v77, 0xffff0000, v76"); a("v_lshlrev_b32 v76, 16, v76")
    a("v_add_f32 v76, v76, v50"); a("v_add_f32 v77, v77, v51")
    a("v_cvt_pk_bf16_f32 v76, v76, v77")
    a("s_mov_b32 exec_lo, 15"); a("s_mov_b32 exec_hi, 15")
    a("v_min_u32 v76, -2, v76")
    a("buffer_store_dword v76, v69, s[32:35], 0 offen sc1")
    a("s_mov_b64 exec, -1")
    stamp(9)
    a("L_s2done:")
    a("v_and_b32 v27, 7, v75"); a("v_lshlrev_b32 v63, 4, v27"); a("v_lshl_add_u32 v63, v74, 7, v63")
    a("s_lshl_b32 s58, s3, 9"); a("v_add_u32 v26, s58, v63")
    a("s_cmp_lt_u32 s2, 224"); a("s_cbranch_scc0 L_s4")
    a("v_lshlrev_b32 v60, 4, v60"); a("v_lshrrev_b32 v49, 1, v61"); a("v_lshl_add_u32 v60, v49, 13, v60")
    a("v_and_b32 v49, 1, v61"); a("v_lshl_add_u32 v60, v49, 3, v60")
    a("s_lshl_b32 s58, s3, 11"); a(f"s_add_u32 s58, s58, {L_WA}"); a("s_cmp_eq_u32 s3, 3"); a(f"s_cselect_b32 s58, {L_WB+3*2048}, s58")
    a("v_add_u32 v61, s58, v60")
    def trread(dst, addr, off): a(f"ds_read_b64_tr_b16 v[{dst}:{dst+1}], {addr} offset:{off}")
    for u in range(2):
        for hf in range(2):
            for sec in range(2): trread(128 + 8*u + 4*hf + 2*sec, "v61", (64*u + 8*hf + 4*sec) * 16)
    a("v_mov_b32 v100, 0x3f803f80")
    a("s_cmp_eq_u32 s3, 3"); a("s_cbranch_scc0 L_nocs")
    a(f"v_add_u32 v61, {L_WB}, v60")
    for u in range(6):
        for hf in range(2):
            for sec in range(2): trread(144 + 8*u + 4*hf + 2*sec, "v61", (64*u + 8*hf + 4*sec) * 16)
            if u == 2 and hf == 1: a("s_waitcnt lgkmcnt(4)")
    for r in range(1, 4): a(f"v_mov_b32 v{100+r}, v100")
    a("s_waitcnt lgkmcnt(0)")
    for k in range(16):
        a(f"v_mfma_f32_16x16x32_bf16 v[104:107], v[{128+4*k}:{131+4*k}], v[100:103], {'0' if k == 0 else 'v[104:107]'}")
    for r in range(4): a(f"v_mov_b32 v{108+r}, 0")
    for r in range(4): a(f"v_permlane32_swap_b32 v{104+r}, v{108+r}")
    a("L_nocs:")
    a("s_lshl_b32 s59, s3, 11"); a(f"s_add_u32 s59, s59, {WS_H}")
    a("v_lshrrev_b32 v49, 1, v74"); a("v_lshlrev_b32 v49, 2, v49"); a("v_lshl_add_u32 v49, v27, 3, v49")
    a("s_lshl_b32 s58, s3, 6"); a("v_add_u32 v49, s58, v49")
    a("s_waitcnt lgkmcnt(0)")
    poll("L_pH", [f"buffer_load_dwordx4 v[{76+4*u}:{79+4*u}], v62, s[32:35], s59 offen offset:{u*1024} sc1" for u in range(2)], range(76, 84))
    stamp(10)
    for u in range(2):
        for hf in range(2):
            a(f"v_mfma_f32_16x16x32_bf16 v[{84+4*hf}:{87+4*hf}], v[{128+8*u+4*hf}:{131+8*u+4*hf}], v[{76+4*u}:{79+4*u}], {'0' if u == 0 else 'v[%d:%d]' % (84+4*hf, 87+4*hf)}")
    for k in range(8): a(f"v_dot2_f32_bf16 v92, v{76+k}, v100, {'0' if k == 0 else 'v92'}")
    for k in range(8): a(f"v_dot2_f32_bf16 v93, v{76+k}, v{76+k}, {'0' if k == 0 else 'v93'}")
    for r in range(4): a(f"v_add_f32_dpp v{84+r}, v{88+r}, v{84+r} row_ror:8 row_mask:0xf bank_mask:0xf")
    a("s_mov_b32 exec_lo, 0x00ff00ff"); a("s_mov_b32 exec_hi, 0x00ff00ff")
    a(f"ds_write_b128 v26, v[84:87] offset:{L_TX}")
    a("s_mov_b64 exec, -1")
    for r in range(2): a(f"v_add_f32_dpp v{92+r}, v{92+r}, v{92+r} row_ror:8 row_mask:0xf bank_mask:0xf")
    a("v_permlane32_swap_b32 v92, v93"); a("v_add_f32 v92, v92, v93")
    a("v_mov_b32 v93, v92"); a("v_permlane16_swap_b32 v92, v93"); a("v_add_f32 v92, v92, v93")
    a(f"ds_write_b32 v49, v92 offset:{L_ST}")
    a("v_lshlrev_b32 v49, 3, v27")
    a("s_waitcnt lgkmcnt(0)"); a("s_barrier")
    a("s_cmp_eq_u32 s3, 3"); a("s_cbranch_scc0 L_fin")
    for w in range(4): a(f"ds_read_b64 v[{76+2*w}:{77+2*w}], v49 offset:{L_ST+64*w}")
    for w in range(4): a(f"ds_read_b128 v[{128+4*w}:{131+4*w}], v63 offset:{L_TX+512*w}")
    for w in range(4): a(f"ds_read_b128 v[{144+4*w}:{147+4*w}], v63 offset:{L_TX+512*w+256}")
    a("s_waitcnt lgkmcnt(8)")
    for k in range(2):
        a(f"v_add_f32 v{76+k}, v{76+k}, v{78+k}"); a(f"v_add_f32 v{80+k}, v{80+k}, v{82+k}")
    for k in range(2): a(f"v_add_f32 v{76+k}, v{76+k}, v{80+k}")
    a(f"v_mul_f32 v76, {f32(1/512)}, v76"); a(f"v_mul_f32 v77, {f32(1/512)}, v77")
    a("v_fma_f32 v77, -v76, v76, v77"); a("v_max_f32 v77, 0, v77")
    bf16r("v77"); bf16r("v76")
    a(f"v_add_f32 v77, {f32(1e-5)}, v77"); bf16r("v77")
    a("v_sqrt_f32 v77, v77"); bf16r("v77"); a("v_rcp_f32 v77, v77")
    a("s_waitcnt lgkmcnt(0)")
    for base, cs in ((128, 104), (144, 108)):
        for r in range(4):
            a(f"v_add_f32 v{base+r}, v{base+r}, v{base+4+r}"); a(f"v_add_f32 v{base+8+r}, v{base+8+r}, v{base+12+r}")
        for r in range(4): a(f"v_add_f32 v{base+r}, v{base+r}, v{base+8+r}")
        for r in range(4): a(f"v_fma_f32 v{base+r}, -v76, v{cs+r}, v{base+r}")
        for r in range(4): a(f"v_mul_f32 v{base+r}, v{base+r}, v77")
        for r in range(2): a(f"v_cvt_pk_bf16_f32 v{base+4+r}, v{base+2*r}, v{base+2*r+1}")
        for r in range(2):
            a(f"v_lshlrev_b32 v{base+2*r}, 16, v{base+4+r}"); a(f"v_and_b32 v{base+2*r+1}, 0xffff0000, v{base+4+r}")
    for r in range(4): a(f"v_max_f32 v{128+r}, 0, v{128+r}")
    for r in range(4): a(f"v_mul_f32 v{128+r}, v{128+r}, v{144+r}")
    for r in range(2): a(f"v_cvt_pk_bf16_f32 v{132+r}, v{128+2*r}, v{129+2*r}")
    a("s_mov_b64 exec, 0x00ff00ff")
    for r in range(2): a(f"v_min_u32 v{132+r}, -2, v{132+r}")
    a("buffer_store_dwordx2 v[132:133], v70, s[32:35], 0 offen sc1")
    a("s_mov_b64 exec, -1")
    stamp(11)
    a("s_branch L_fin")
    a("L_s4:")
    a("v_lshlrev_b32 v60, 5, v60"); a("v_lshl_add_u32 v60, v61, 3, v60")
    a(f"s_mul_i32 s58, s3, {448*32}"); a(f"s_add_u32 s58, s58, {L_WD}"); a("v_add_u32 v60, s58, v60")
    for u in range(7):
        for hf in range(2):
            for sec in range(2): trread(128 + 8*u + 4*hf + 2*sec, "v60", (64*u + 8*hf + 4*sec) * 32)
        if u in (2, 5): a("s_waitcnt lgkmcnt(4)")
    a("v_lshrrev_b32 v49, 1, v74"); a("v_lshlrev_b32 v49, 7, v49"); a("v_lshl_add_u32 v49, v27, 4, v49")
    a("v_and_b32 v50, 1, v74"); a("v_lshl_add_u32 v49, v50, 3, v49")
    a("s_lshl_b32 s58, s89, 8"); a(f"s_add_u32 s58, s58, {WS_H}"); a("v_add_u32 v49, s58, v49")
    a("v_lshlrev_b32 v50, 10, v27"); a("v_lshl_add_u32 v50, v74, 3, v50"); a("s_lshl_b32 s58, s89, 5"); a("v_add_u32 v50, s58, v50")
    a(f"s_mul_i32 s59, s3, {7*1024}"); a(f"s_add_u32 s59, s59, {WS_G}"); a("s_add_u32 s92, s59, 4096")
    a("s_waitcnt lgkmcnt(0)")
    loads = [f"buffer_load_dwordx4 v[{76+4*u}:{79+4*u}], v62, s[32:35], {'s59' if u < 4 else 's92'} offen offset:{(u&3)*1024} sc1" for u in range(7)]
    loads.append("buffer_load_dwordx2 v[104:105], v49, s[32:35], 0 offen sc1")
    poll("L_pG", loads, range(76, 106))
    stamp(10)
    for u in range(7):
        for hf in range(2):
            a(f"v_mfma_f32_16x16x32_bf16 v[{108+4*hf}:{111+4*hf}], v[{128+8*u+4*hf}:{131+8*u+4*hf}], v[{76+4*u}:{79+4*u}], {'0' if u == 0 else 'v[%d:%d]' % (108+4*hf, 111+4*hf)}")
    for r in range(4): a(f"v_add_f32_dpp v{108+r}, v{112+r}, v{108+r} row_ror:8 row_mask:0xf bank_mask:0xf")
    a("s_mov_b32 exec_lo, 0x00ff00ff"); a("s_mov_b32 exec_hi, 0x00ff00ff")
    a(f"ds_write_b128 v26, v[108:111] offset:{L_TX}")
    a("s_waitcnt lgkmcnt(0)"); a("s_barrier")
    a("s_cmp_eq_u32 s3, 3"); a("s_cbranch_scc0 L_fin")
    for w in range(4): a(f"ds_read_b128 v[{128+4*w}:{131+4*w}], v63 offset:{L_TX+512*w}")
    for r in range(2):
        a(f"v_lshlrev_b32 v{76+2*r}, 16, v{104+r}"); a(f"v_and_b32 v{77+2*r}, 0xffff0000, v{104+r}")
    a("s_waitcnt lgkmcnt(0)")
    for r in range(4):
        a(f"v_add_f32 v{128+r}, v{128+r}, v{132+r}"); a(f"v_add_f32 v{136+r}, v{136+r}, v{140+r}")
    for r in range(4): a(f"v_add_f32 v{128+r}, v{128+r}, v{136+r}")
    for r in range(2): a(f"v_cvt_pk_bf16_f32 v{132+r}, v{128+2*r}, v{129+2*r}")
    for r in range(2):
        a(f"v_lshlrev_b32 v{128+2*r}, 16, v{132+r}"); a(f"v_and_b32 v{129+2*r}, 0xffff0000, v{132+r}")
    for r in range(4): a(f"v_add_f32 v{128+r}, v{128+r}, v{76+r}")
    for r in range(2): a(f"v_cvt_pk_bf16_f32 v{132+r}, v{128+2*r}, v{129+2*r}")
    a("buffer_store_dwordx2 v[132:133], v50, s[36:39], 0 offen")
    stamp(11)
    a("L_fin:")
    if stamps:
        a("s_mov_b64 exec, -1")
        stamp(12)
        a("s_getreg_b32 s92, hwreg(HW_REG_XCC_ID)"); a("v_writelane_b32 v73, s92, 15")
        a("s_lshl_b32 s58, s2, 2"); a("s_add_u32 s58, s58, s3"); a("s_lshl_b32 s58, s58, 6"); a(f"s_add_u32 s58, s58, {WS_ST}")
        a("v_lshlrev_b32 v48, 2, v1"); a("s_mov_b64 exec, 0xffff")
        a("buffer_store_dword v73, v48, s[32:35], s58 offen")
    a("L_end:")
    a("s_endpgm")
    body = a.finish()
    head = HEADER + f"; @launch grid=(256,1,1) block=(256,1,1) lds={L_SIZE}\n" + '.amdgcn_target "amdgcn-amd-amdhsa--gfx950"\n.text\n' + \
        f".globl {NAME}\n.p2align 8\n.type {NAME},@function\n"
    tail = f""".section .rodata,"a"
.p2align 6
.amdhsa_kernel {NAME}
  .amdhsa_next_free_vgpr 384
  .amdhsa_next_free_sgpr 96
  .amdhsa_accum_offset 256
  .amdhsa_group_segment_fixed_size 0
  .amdhsa_kernarg_size 96
  .amdhsa_user_sgpr_count 2
  .amdhsa_user_sgpr_kernarg_segment_ptr 1
  .amdhsa_system_sgpr_workgroup_id_x 1
.end_amdhsa_kernel
"""
    return head + body + tail

if __name__ == "__main__":
    kw = eval("dict(%s)" % (sys.argv[2] if len(sys.argv) > 2 else ""))
    open(sys.argv[1], "w").write(gen(**kw))
```

```python
import sys, struct
sys.path.insert(0, __file__.rsplit('/', 1)[0])
from asmlib import Asm

NAME = "sequential_preLN__mha_block_cached__glu_gated_reglu__decode_kernel"
HEADER = open(__file__.rsplit('/', 1)[0] + '/header.txt').read()

def f32(x): return "0x%08x" % struct.unpack('<I', struct.pack('<f', x))[0]

WS_P, WS_H, WS_G, WS_ST, WS_SIZE = 0, 0x80000, 0x82000, 0x100000, 0x140000
L_QP, L_OP, L_ML, L_ST, L_TX, L_SP, L_WA, L_WD, L_SIZE = 0, 2048, 4096, 4160, 4608, 7168, 8192, 8192, 65536
RING = 128
NB = 32
SPIN = 200000

def gen(D=5, pol="nt", wpol="nt", stamps=False, early=(2, 7, 12, 17), n1=5, kq=2, nbar=2, sleep=1, fpol="nt", hmap=0, D2=16, nl2=1):
    a = Asm()
    vm = []
    def vwait(tag):
        n = len(vm) - 1 - vm.index(tag)
        a(f"s_waitcnt vmcnt({min(n, 63)})")
    def stamp(k):
        if stamps:
            a("s_memrealtime s[94:95]"); a("s_waitcnt lgkmcnt(0)"); a(f"v_writelane_b32 v73, s94, {k}")
    def allred(op, v, t):
        for n in (8, 4, 2, 1): a(f"{op}_dpp {v}, {v}, {v} row_ror:{n} row_mask:0xf bank_mask:0xf")
        for sw in ("v_permlane16_swap_b32", "v_permlane32_swap_b32"):
            a(f"v_mov_b32 {t}, {v}"); a(f"{sw} {v}, {t}"); a(f"{op} {v}, {v}, {t}")
    def bf16r(v, src=None):
        src = src or v
        a(f"v_cvt_pk_bf16_f32 {v}, {src}, {src}"); a(f"v_and_b32 {v}, 0xffff0000, {v}")
    def srd(d, lo, hi, size, add=None):
        if add is None:
            a(f"s_mov_b32 s{d}, s{lo}"); a(f"s_mov_b32 s{d+1}, s{hi}")
        else:
            a(f"s_add_u32 s{d}, s{lo}, {add}"); a(f"s_addc_u32 s{d+1}, s{hi}, 0")
        a(f"s_mov_b32 s{d+2}, {size}"); a(f"s_mov_b32 s{d+3}, 0x20000")
    def ring(j): j %= NB; return f"v[{RING+4*j}:{RING+4*j+3}]"
    def sload(j, nxt):
        s, b = ("s[12:15]", "s55") if nxt else ("s[8:11]", "s54")
        a(f"buffer_load_dwordx4 {ring(j)}, v{2+(j>>2)}, {s}, {b} offen offset:{(j&3)*1024} {pol}")
    def masks(t, src, lane):
        for r in range(4):
            a(f"v_and_b32_dpp v{18+4*(t&1)+r}, {src}, v{14+r} row_newbcast:{lane} row_mask:0xf bank_mask:0xf")
    def mop(t): return f"v[{18+4*(t&1)}:{21+4*(t&1)}]"
    def bitrev(t): return ((t & 1) << 3) | ((t & 2) << 1) | ((t & 4) >> 1) | ((t & 8) >> 3)
    def poll(label, loads, regs, pre=None):
        a(f"s_mov_b32 s88, {SPIN}")
        a(f"{label}:")
        for l in loads: a(l)
        if pre: pre()
        a("s_waitcnt vmcnt(0)")
        r = list(regs)
        a(f"v_max3_u32 v48, v{r[0]}, v{r[1]}, v{r[2]}"); r = r[3:]
        while len(r) >= 2:
            a(f"v_max3_u32 v48, v48, v{r[0]}, v{r[1]}"); r = r[2:]
        if r: a(f"v_max_u32 v48, v48, v{r[0]}")
        a("v_cmp_eq_u32 vcc, -1, v48")
        a(f"s_cbranch_vccz {label}_ok")
        if sleep: a(f"s_sleep {sleep}")
        a("s_sub_u32 s88, s88, 1")
        a(f"s_cbranch_scc0 {label}")
        a(f"{label}_ok:")

    def dma_setup():
        a("s_cmp_lt_u32 s2, 224"); a("s_cbranch_scc0 L_dmaD")
        a("s_movk_i32 s58, 3584"); a("v_mul_u32_u24 v62, s58, v1"); a("s_lshl_b32 s58, s89, 4"); a("v_add_u32 v62, s58, v62")
        a(f"s_mul_i32 s96, s3, {2*229376}"); a("s_mov_b32 s97, s96")
        a("s_lshl_b32 s98, s3, 11"); a(f"s_add_u32 s98, s98, {L_WA}"); a("s_add_u32 s99, s98, 8192")
        a("s_mov_b32 s100, 229376"); a("s_mov_b32 s101, 1024"); a("s_mov_b32 s93, 2")
        a("s_branch L_dmaX")
        a("L_dmaD:")
        a("v_lshrrev_b32 v62, 1, v1"); a("v_lshlrev_b32 v62, 10, v62"); a("v_and_b32 v63, 1, v1"); a("v_lshl_add_u32 v62, v63, 4, v62")
        a("s_lshl_b32 s58, s89, 5"); a("v_add_u32 v62, s58, v62")
        for d in (40, 44):
            a(f"s_mov_b32 s{d}, s80"); a(f"s_mov_b32 s{d+1}, s81"); a(f"s_mov_b32 s{d+2}, {1792*1024}")
        a(f"s_mul_i32 s96, s3, {448*1024}"); a("s_add_u32 s97, s96, 32768")
        a(f"s_mul_i32 s98, s3, {448*32}"); a(f"s_add_u32 s98, s98, {L_WD}"); a("s_add_u32 s99, s98, 1024")
        a("s_mov_b32 s100, 65536"); a("s_mov_b32 s101, 2048"); a("s_mov_b32 s93, 7")
        a("L_dmaX:")
    def dma_pair():
        a("s_cmp_eq_u32 s93, 0")
        a("s_cselect_b32 s42, 0, s42"); a("s_cselect_b32 s46, 0, s46")
        a(f"s_cselect_b32 s98, {L_SP}, s98"); a(f"s_cselect_b32 s99, {L_SP}, s99"); a("s_cselect_b32 s101, 0, s101")
        a("s_cselect_b32 s93, 1, s93")
        a("s_mov_b32 m0, s98"); a("s_sub_u32 s93, s93, 1")
        a(f"buffer_load_dwordx4 v62, s[40:43], s96 offen {fpol} lds")
        a("s_mov_b32 m0, s99"); a("s_add_u32 s96, s96, s100")
        a(f"buffer_load_dwordx4 v62, s[44:47], s97 offen {fpol} lds")
        a("s_add_u32 s97, s97, s100"); a("s_add_u32 s98, s98, s101"); a("s_add_u32 s99, s99, s101")
    a(f"{NAME}:")
    a("s_cmp_ge_u32 s2, 256"); a("s_cbranch_scc1 L_end")
    a("s_load_dwordx16 s[64:79], s[0:1], 0")
    a("s_load_dwordx8 s[80:87], s[0:1], 64")
    a("v_lshrrev_b32 v1, 6, v0")
    a("v_readfirstlane_b32 s3, v1")
    a("v_and_b32 v1, 63, v0")
    if hmap == 0:
        a("s_lshr_b32 s4, s2, 5"); a("s_and_b32 s5, s2, 31"); a("s_mov_b32 s6, s2")
    else:
        a("s_lshr_b32 s4, s2, 5"); a("s_and_b32 s5, s2, 7"); a("s_lshl_b32 s5, s5, 2"); a("s_bfe_u32 s6, s2, 0x20003"); a("s_add_u32 s5, s5, s6")
        a("s_lshl_b32 s6, s4, 5"); a("s_add_u32 s6, s6, s5")
    a("v_lshrrev_b32 v74, 4, v1"); a("v_and_b32 v75, 15, v1")
    if stamps: a("v_mov_b32 v73, 0")
    a("v_lshlrev_b32 v48, 4, v1")
    a("s_lshl_b32 s58, s3, 12"); a("v_add_u32 v2, s58, v48")
    for k in range(1, 8): a(f"v_add_u32 v{2+k}, {k*16384}, v2")
    a("s_lshl_b32 s58, s3, 8"); a("v_lshlrev_b32 v49, 3, v75"); a("v_lshl_add_u32 v49, v74, 1, v49"); a("v_add_u32 v49, s58, v49")
    a("v_and_b32 v50, 3, v1"); a("v_lshlrev_b32 v50, 3, v50"); a("v_lshrrev_b32 v51, 1, v74"); a("v_lshl_add_u32 v50, v51, 2, v50")
    a("s_lshl_b32 s58, s5, 5"); a("v_add_u32 v50, s58, v50")
    a("s_lshl_b32 s58, s3, 20"); a("v_lshlrev_b32 v58, 13, v74"); a("v_lshl_add_u32 v58, v75, 4, v58"); a("v_add_u32 v58, s58, v58")
    a("s_lshl_b32 s58, s3, 8"); a("v_lshlrev_b32 v59, 10, v74"); a("v_lshl_add_u32 v59, v75, 4, v59"); a("v_add_u32 v59, s58, v59")
    a("s_lshl_b32 s57, s4, 10")
    a("s_lshl_b32 s58, s5, 8")
    a("s_lshl_b32 s59, s6, 20")
    a("s_sub_u32 s92, 0x400000, s58")
    a("s_waitcnt lgkmcnt(0)")
    stamp(0)
    srd(28, 64, 65, 8192)
    a("buffer_load_dwordx4 v[52:55], v48, s[28:31], s57 offen"); vm.append("x")
    a("buffer_load_ushort v56, v49, s[28:31], s57 offen"); vm.append("xc0")
    a("buffer_load_ushort v57, v49, s[28:31], s57 offen offset:128"); vm.append("xc1")
    srd(20, 70, 71, "s92", "s58")
    srd(8, 66, 67, 0x100000, "s59")
    a("s_mov_b32 s54, 0")
    def wqload(t):
        a(f"s_mov_b32 s58, {t*32768}")
        a(f"buffer_load_dwordx4 a[{4*t}:{4*t+3}], v58, s[20:23], s58 offen {wpol}"); vm.append(f"wq{t}")
    kiss = 0
    def kload(nxt=False):
        nonlocal kiss
        sload(kiss % NB, kiss >= NB); vm.append(f"k{kiss}"); kiss += 1
    wiss = 0
    for j in range(n1):
        kload(); wqload(wiss); wqload(wiss + 1); wiss += 2
    a("s_add_u32 s16, s68, s59"); a("s_addc_u32 s17, s69, 0")
    a("s_mov_b32 s12, s8"); a("s_mov_b32 s13, s9"); a("s_mov_b32 s14, 0x100000"); a("s_mov_b32 s15, 0x20000")
    a("s_lshl_b32 s58, s5, 17"); srd(24, 72, 73, 0x20000, "s58")
    srd(32, 86, 87, WS_SIZE); srd(36, 82, 83, 8192)
    srd(40, 76, 77, 512*3584); srd(44, 78, 79, 512*3584)
    a("buffer_load_dword v71, v50, s[28:31], s57 offen"); vm.append("xr")
    a("s_and_b32 s58, s2, 7"); a("s_lshr_b32 s92, s2, 3")
    a("s_mul_i32 s89, s58, 28"); a("s_add_u32 s89, s89, s92")
    a("s_lshl_b32 s58, s58, 2"); a("s_add_u32 s58, s58, s92"); a("s_sub_u32 s58, s58, 28")
    a("s_cmp_lt_u32 s2, 224"); a("s_cselect_b32 s89, s89, s58")
    a("v_lshrrev_b32 v68, 1, v75"); a("v_lshlrev_b32 v68, 11, v68")
    a("v_and_b32 v60, 1, v75"); a("v_lshl_add_u32 v60, v60, 1, v74"); a("v_lshl_add_u32 v68, v60, 4, v68")
    a("s_lshl_b32 s58, s4, 16"); a("s_lshl_b32 s92, s3, 14"); a("s_add_u32 s58, s58, s92")
    a("s_lshl_b32 s92, s5, 6"); a("s_add_u32 s58, s58, s92"); a("v_add_u32 v68, s58, v68")
    a("v_bfe_u32 v69, v1, 1, 1"); a("v_lshlrev_b32 v69, 7, v69")
    a("v_and_b32 v60, 1, v1"); a("v_lshl_add_u32 v69, v60, 3, v69"); a("v_lshl_add_u32 v69, v51, 2, v69")
    a("s_lshl_b32 s58, s5, 8"); a("s_lshl_b32 s92, s4, 4"); a("s_add_u32 s58, s58, s92"); a(f"s_add_u32 s58, s58, {WS_H}")
    a("v_add_u32 v69, s58, v69")
    a("v_lshlrev_b32 v70, 4, v75"); a("v_lshl_add_u32 v70, v74, 3, v70")
    a("s_lshl_b32 s58, s89, 7"); a(f"s_add_u32 s58, s58, {WS_G}"); a("v_add_u32 v70, s58, v70")
    for r in range(4): a(f"v_mov_b32 v{60+r}, -1")
    a("s_mov_b32 exec_hi, 0")
    a("buffer_store_dwordx4 v[60:63], v68, s[32:35], 0 offen sc1"); vm.append("clrP")
    a("s_cmp_eq_u32 s3, 0"); a("s_cbranch_scc0 L_noclrH")
    a("s_mov_b32 exec_lo, 15"); a("s_mov_b32 exec_hi, 15")
    a("buffer_store_dword v60, v69, s[32:35], 0 offen sc1")
    a("L_noclrH:")
    a("s_cmp_eq_u32 s3, 3"); a("s_cbranch_scc0 L_noclrG")
    a("s_cmp_lt_u32 s2, 224"); a("s_cbranch_scc0 L_noclrG")
    a("s_mov_b64 exec, 0x00ff00ff")
    a("buffer_store_dwordx2 v[60:61], v70, s[32:35], 0 offen sc1")
    a("L_noclrG:")
    a("s_mov_b64 exec, -1")
    stamp(1)
    a("s_mov_b32 s60, 0xcccccccc"); a("s_mov_b32 s61, 0xcccccccc"); a("s_mov_b32 s62, 0xaaaaaaaa"); a("s_mov_b32 s63, 0xaaaaaaaa")
    a(f"s_mov_b32 s90, {f32(128 ** -0.5)}"); a(f"s_mov_b32 s91, {f32(1.4426950408889634)}")
    a("s_lshr_b32 s58, s2, 3"); a("s_and_b32 s58, s58, 3"); a("s_add_u32 s58, s58, 2")
    a("s_cmp_eq_u32 s3, 0"); a("s_cselect_b32 s57, s58, 99")
    a("v_and_b32 v60, 1, v75"); a("v_lshlrev_b32 v60, 4, v60"); a("v_mov_b32 v61, 0xffff"); a("v_lshlrev_b32 v60, v60, v61")
    a("v_lshrrev_b32 v61, 1, v75")
    for r in range(4):
        a(f"v_cmp_eq_u32 vcc, {r}, v61"); a(f"v_cndmask_b32 v{14+r}, 0, v60, vcc")
    vwait("x")
    for k in range(4):
        a(f"v_lshlrev_b32 v{76+2*k}, 16, v{52+k}"); a(f"v_and_b32 v{77+2*k}, 0xffff0000, v{52+k}")
    a("v_add_f32 v84, v76, v77")
    for k in range(2, 8): a(f"v_add_f32 v84, v84, v{76+k}")
    allred("v_add_f32", "v84", "v85")
    a(f"v_mul_f32 v84, {f32(1/512)}, v84")
    for k in range(8): a(f"v_sub_f32 v{76+k}, v{76+k}, v84")
    a("v_mul_f32 v86, v76, v76")
    for k in range(1, 8): a(f"v_fmac_f32 v86, v{76+k}, v{76+k}")
    allred("v_add_f32", "v86", "v85")
    a(f"v_mul_f32 v86, {f32(1/512)}, v86")
    bf16r("v84"); bf16r("v86")
    a(f"v_add_f32 v86, {f32(1e-5)}, v86"); bf16r("v86")
    a("v_sqrt_f32 v86, v86"); bf16r("v86"); a("v_rcp_f32 v86, v86")
    vwait("xc1")
    for k in range(2):
        a(f"v_lshlrev_b32 v{56+k}, 16, v{56+k}"); a(f"v_sub_f32 v{56+k}, v{56+k}, v84"); bf16r(f"v{56+k}")
        a(f"v_mul_f32 v{56+k}, v{56+k}, v86"); a(f"v_cvt_pk_bf16_f32 v{66+k}, v{56+k}, v{56+k}")
    stamp(2)
    masks(0, "v66", 0)
    for t in range(32):
        vwait(f"wq{t}")
        a(f"v_mfma_f32_16x16x32_bf16 v[28:31], {mop(t)}, a[{4*t}:{4*t+3}], {'0' if t == 0 else 'v[28:31]'}")
        if wiss < 32: wqload(wiss); wiss += 1
        if t % kq == kq - 1: kload()
        if t < 31: masks(t + 1, "v66" if t + 1 < 16 else "v67", (t + 1) & 15)
    for j in range(nbar): kload()
    a("v_lshlrev_b32 v27, 5, v75"); a("v_lshl_add_u32 v26, v74, 4, v27"); a("s_lshl_b32 s58, s3, 9"); a("v_add_u32 v26, s58, v26")
    a("s_mov_b32 exec_hi, 0")
    a(f"ds_write_b128 v26, v[28:31] offset:{L_QP}")
    a("s_mov_b64 exec, -1")
    a("s_waitcnt lgkmcnt(0)"); a("s_barrier")
    for w in range(4):
        for hh in range(2): a(f"ds_read_b128 v[{76+8*w+4*hh}:{79+8*w+4*hh}], v27 offset:{L_QP+512*w+16*hh}")
    a("s_waitcnt lgkmcnt(0)")
    for k in range(8):
        a(f"v_add_f32 v{76+k}, v{76+k}, v{84+k}"); a(f"v_add_f32 v{92+k}, v{92+k}, v{100+k}")
    for k in range(8): a(f"v_add_f32 v{76+k}, v{76+k}, v{92+k}")
    for k in range(4): a(f"v_cvt_pk_bf16_f32 v{10+k}, v{76+2*k}, v{77+2*k}")
    a("v_mov_b32 v64, 0xff800000"); a("v_mov_b32 v65, 0")
    stamp(3)

    def kconsume(i):
        t = i & 15
        x = f"v{48 + (t & 1)}" if True else None
        base = RING + 4 * i
        a(f"v_dot2_f32_bf16 {x}, v{base}, v10, 0")
        for r in range(1, 4): a(f"v_dot2_f32_bf16 {x}, v{base+r}, v{10+r}, {x}")
        if t & 1:
            d = f"v{50 + ((t >> 1) & 1)}"
            a(f"v_add_f32_dpp {d}, v48, v48 row_ror:8 row_mask:0xf bank_mask:0x3")
            a(f"v_add_f32_dpp {d}, v49, v49 row_ror:8 row_mask:0xf bank_mask:0xc")
        if t & 3 == 3:
            d = f"v{52 + ((t >> 2) & 1)}"
            a(f"v_add_f32_dpp {d}, v50, v50 row_half_mirror row_mask:0xf bank_mask:0x5")
            a(f"v_add_f32_dpp {d}, v51, v51 row_half_mirror row_mask:0xf bank_mask:0xa")
        if t & 7 == 7:
            d = f"v{54 + ((t >> 3) & 1)}"
            a("v_add_f32_dpp v52, v52, v52 quad_perm:[2,3,0,1] row_mask:0xf bank_mask:0xf")
            a("v_add_f32_dpp v53, v53, v53 quad_perm:[2,3,0,1] row_mask:0xf bank_mask:0xf")
            a(f"v_cndmask_b32 {d}, v52, v53, s[60:61]")
        if t == 15:
            s = f"v{46 + (i >> 4)}"
            a("v_add_f32_dpp v54, v54, v54 quad_perm:[1,0,3,2] row_mask:0xf bank_mask:0xf")
            a("v_add_f32_dpp v55, v55, v55 quad_perm:[1,0,3,2] row_mask:0xf bank_mask:0xf")
            a(f"v_cndmask_b32 {s}, v54, v55, s[62:63]")
            bf16r(s); a(f"v_mul_f32 {s}, s90, {s}"); bf16r(s)
            a(f"v_max_f32 v64, v64, {s}")
    a(f"s_mov_b32 s55, {NB*4096}")
    left = NB + D - kiss
    sched = list(early) + list(range(NB - (left - len(early)), NB))
    assert len(set(sched)) == left, (sched, left)
    for i in range(NB):
        vwait(f"k{i}")
        if i in sched:
            assert kiss - NB < i or kiss < NB
            kload()
        kconsume(i)
    stamp(4)
    a("s_mov_b32 s54, s55"); a(f"s_add_u32 s55, s55, {NB*4096}")
    for k in range(2): a(f"v_mov_b32 v{44+k}, v{46+k}")
    for i in range(NB):
        vwait(f"k{NB+i}")
        sload((i + D) % NB, i + D >= NB); vm.append(f"k{kiss}"); kiss += 1
        a(f"s_mov_b32 s58, {i*4096}")
        a(f"buffer_load_dwordx4 a[{4*i}:{4*i+3}], v59, s[24:27], s58 offen {wpol}"); vm.append(f"wo{i}")
        kconsume(i)
    a("s_mov_b32 s56, 2")
    a(".p2align 3")
    a("L_kloop:")
    a("s_mov_b32 s54, s55"); a(f"s_add_u32 s55, s55, {NB*4096}")
    a("s_cmp_eq_u32 s56, 7")
    a("s_cselect_b32 s12, s16, s12"); a("s_cselect_b32 s13, s17, s13"); a("s_cselect_b32 s55, 0, s55")
    a("s_cmp_eq_u32 s56, s57"); a("s_cbranch_scc0 L_nosig")
    a("v_mov_b32 v60, 0"); a("v_mov_b32 v61, 1"); a("s_mov_b64 exec, 1")
    a("global_atomic_add v60, v61, s[84:85] sc1")
    a("s_mov_b64 exec, -1")
    a("L_nosig:")
    for k in range(14): a(f"v_mov_b32 v{32+k}, v{34+k}")
    for i in range(NB):
        a(f"s_waitcnt vmcnt({D-1})")
        sload((i + D) % NB, i + D >= NB)
        kconsume(i)
    a("s_add_u32 s56, s56, 1"); a("s_cmp_lt_u32 s56, 8"); a("s_cbranch_scc1 L_kloop")
    stamp(5)
    allred("v_max_f32", "v64", "v48")
    a("v_mul_f32 v64, s91, v64"); a("v_sub_f32 v64, 0, v64")
    a("s_mov_b32 s8, s12"); a("s_mov_b32 s9, s13"); a("s_mov_b32 s56, 0")
    for r in range(4): a(f"v_mov_b32 v{28+r}, 0")
    dma_setup()
    def vlap(name, DD, last, lim):
        a(".p2align 3")
        a(f"{name}:")
        a("s_mov_b32 s54, s55"); a(f"s_add_u32 s55, s55, {NB*4096}")
        for k in range(2):
            a(f"v_fma_f32 v{56+k}, v{32+k}, s91, v64"); a(f"v_exp_f32 v{56+k}, v{56+k}")
            a(f"v_add_f32 v65, v65, v{56+k}"); a(f"v_cvt_pk_bf16_f32 v{66+k}, v{56+k}, v{56+k}")
        for k in range(14): a(f"v_mov_b32 v{32+k}, v{34+k}")
        masks(0, "v66", 0)
        if not last:
            dma_pair()
            a("s_cmp_eq_u32 s56, 3"); a("s_cbranch_scc0 L_nochk")
            a("v_mov_b32 v60, 0")
            a("global_load_dword v72, v60, s[84:85] sc1")
            a("L_nochk:")
        else:
            if nl2 > 1: dma_pair()
            a("s_cmp_eq_u32 s56, 7"); a("s_cbranch_scc0 L_nolast")
            allred("v_add_f32", "v65", "v48")
            a("s_lshl_b32 s58, s3, 3"); a("v_mov_b32 v48, s58"); a("s_mov_b64 exec, 1")
            a(f"ds_write_b64 v48, v[64:65] offset:{L_ML}")
            a("s_mov_b64 exec, -1")
            a("v_readfirstlane_b32 s58, v72"); a("s_cmp_ge_u32 s58, 256"); a("s_cbranch_scc1 L_nolast")
            a(f"s_mov_b32 s88, {SPIN}"); a("v_mov_b32 v60, 0")
            a("L_cnt:")
            a("s_sleep 8"); a("global_load_dword v72, v60, s[84:85] sc1"); a("s_waitcnt vmcnt(0)")
            a("v_readfirstlane_b32 s58, v72"); a("s_cmp_ge_u32 s58, 256"); a("s_cbranch_scc1 L_nolast")
            a("s_sub_u32 s88, s88, 1"); a("s_cbranch_scc0 L_cnt")
            a("L_nolast:")
        pair = 2 if (not last or nl2 > 1) else 0
        for i in range(NB):
            a(f"s_waitcnt vmcnt({DD - 1 + (pair if i < DD else 0)})")
            sload((i + DD) % NB, i + DD >= NB)
            a(f"v_mfma_f32_16x16x32_bf16 v[28:31], {mop(i)}, {ring(i)}, v[28:31]")
            if i < NB - 1: masks(i + 1, f"v{66 + ((i + 1) >> 4)}", bitrev((i + 1) & 15))
        a("s_add_u32 s56, s56, 1"); a(f"s_cmp_lt_u32 s56, {lim}"); a(f"s_cbranch_scc1 {name}")
    vlap("L_vloopA", D, False, 8 - nl2)
    for j in range(D, D2): sload(j, True)
    vlap("L_vloopB", D2, True, 8)
    stamp(6)
    a("v_lshlrev_b32 v27, 4, v75"); a("v_lshl_add_u32 v27, v74, 2, v27")
    a("v_mov_b32 v48, 0")
    a("s_mov_b32 exec_hi, 0")
    a(f"ds_write_b128 v26, v[28:31] offset:{L_OP}")
    a("s_mov_b64 exec, -1")
    a("s_waitcnt lgkmcnt(0)"); a("s_barrier")
    a(f"ds_read_b128 v[76:79], v48 offset:{L_ML}"); a(f"ds_read_b128 v[80:83], v48 offset:{L_ML+16}")
    for w in range(4): a(f"ds_read2st64_b32 v[{84+2*w}:{85+2*w}], v27 offset0:{L_OP//256+2*w} offset1:{L_OP//256+2*w+1}")
    a("s_waitcnt lgkmcnt(4)")
    a("v_min_f32 v48, v76, v78"); a("v_min3_f32 v48, v48, v80, v82")
    for w in range(4): a(f"v_sub_f32 v{76+2*w}, v48, v{76+2*w}")
    for w in range(4): a(f"v_exp_f32 v{76+2*w}, v{76+2*w}")
    a("v_mul_f32 v49, v76, v77")
    for w in range(1, 4): a(f"v_fmac_f32 v49, v{76+2*w}, v{77+2*w}")
    a("v_rcp_f32 v49, v49")
    a("s_waitcnt lgkmcnt(0)")
    for k in range(2):
        a(f"v_mul_f32 v{56+k}, v76, v{84+k}")
        for w in range(1, 4): a(f"v_fmac_f32 v{56+k}, v{76+2*w}, v{84+2*w+k}")
    for k in range(2):
        a(f"v_mul_f32 v{56+k}, v{56+k}, v49"); a(f"v_cvt_pk_bf16_f32 v{66+k}, v{56+k}, v{56+k}")
    masks(0, "v66", 0)
    for t in range(32):
        if t < 31: masks(t + 1, "v66" if t + 1 < 16 else "v67", (t + 1) & 15)
        a(f"v_mfma_f32_16x16x32_bf16 v[28:31], {mop(t)}, a[{4*t}:{4*t+3}], {'0' if t == 0 else 'v[28:31]'}")
    a("s_mov_b32 s58, -2")
    a("s_mov_b32 exec_hi, 0")
    for r in range(4): a(f"v_min_u32 v{28+r}, s58, v{28+r}")
    a("buffer_store_dwordx4 v[28:31], v68, s[32:35], 0 offen sc1")
    a("s_mov_b64 exec, -1")
    stamp(7)
    a("v_lshrrev_b32 v60, 2, v75"); a("v_lshl_add_u32 v60, v74, 4, v60")
    a("v_and_b32 v61, 3, v1")
    a("v_lshlrev_b32 v62, 4, v1")
    a("s_cmp_eq_u32 s3, 0"); a("s_cbranch_scc0 L_s2done")
    a("s_lshl_b32 s59, s6, 11")
    a("v_lshlrev_b32 v50, 16, v71"); a("v_and_b32 v51, 0xffff0000, v71")
    poll("L_pP", [f"buffer_load_dwordx4 v[{76+4*u}:{79+4*u}], v62, s[32:35], s59 offen offset:{u*1024} sc1" for u in range(2)], range(76, 84))
    stamp(8)
    for r in range(4): a(f"v_add_f32 v{76+r}, v{76+r}, v{80+r}")
    a("v_permlane32_swap_b32 v76, v78"); a("v_permlane32_swap_b32 v77, v79")
    a("v_add_f32 v76, v76, v78"); a("v_add_f32 v77, v77, v79")
    for n in (4, 8):
        for r in range(2): a(f"v_add_f32_dpp v{76+r}, v{76+r}, v{76+r} row_ror:{n} row_mask:0xf bank_mask:0xf")
    a("v_mov_b32 v78, v76"); a("v_mov_b32 v79, v77")
    a("v_permlane16_swap_b32 v76, v78"); a("v_permlane16_swap_b32 v77, v79")
    a("v_add_f32 v76, v76, v78"); a("v_add_f32 v77, v77, v79")
    a("v_cvt_pk_bf16_f32 v76, v76, v77")
    a("v_and_b32 v77, 0xffff0000, v76"); a("v_lshlrev_b32 v76, 16, v76")
    a("v_add_f32 v76, v76, v50"); a("v_add_f32 v77, v77, v51")
    a("v_cvt_pk_bf16_f32 v76, v76, v77")
    a("s_mov_b32 exec_lo, 15"); a("s_mov_b32 exec_hi, 15")
    a("v_min_u32 v76, -2, v76")
    a("buffer_store_dword v76, v69, s[32:35], 0 offen sc1")
    a("s_mov_b64 exec, -1")
    stamp(9)
    a("L_s2done:")
    a("v_and_b32 v27, 7, v75"); a("v_lshlrev_b32 v63, 4, v27"); a("v_lshl_add_u32 v63, v74, 7, v63")
    a("s_lshl_b32 s58, s3, 9"); a("v_add_u32 v26, s58, v63")
    a("s_cmp_lt_u32 s2, 224"); a("s_cbranch_scc0 L_s4")
    a("v_lshlrev_b32 v60, 4, v60"); a("v_lshrrev_b32 v49, 1, v61"); a("v_lshl_add_u32 v60, v49, 13, v60")
    a("v_and_b32 v49, 1, v61"); a("v_lshl_add_u32 v60, v49, 3, v60")
    a("s_lshl_b32 s58, s3, 11"); a(f"s_add_u32 s58, s58, {L_WA}")
    a("v_add_u32 v61, s58, v60")
    def trread(dst, addr, off): a(f"ds_read_b64_tr_b16 v[{dst}:{dst+1}], {addr} offset:{off}")
    for u in range(2):
        for hf in range(2):
            for sec in range(2): trread(128 + 8*u + 4*hf + 2*sec, "v61", (64*u + 8*hf + 4*sec) * 16)
    a("v_mov_b32 v100, 0x3f803f80")
    a("s_cmp_eq_u32 s3, 3"); a("s_cbranch_scc0 L_nocs")
    a(f"v_add_u32 v61, {L_WA}, v60")
    for u in range(6):
        for hf in range(2):
            for sec in range(2): trread(144 + 8*u + 4*hf + 2*sec, "v61", (64*u + 8*hf + 4*sec) * 16)
            if u == 2 and hf == 1: a("s_waitcnt lgkmcnt(4)")
    for r in range(1, 4): a(f"v_mov_b32 v{100+r}, v100")
    a("s_waitcnt lgkmcnt(0)")
    for k in range(16):
        a(f"v_mfma_f32_16x16x32_bf16 v[104:107], v[{128+4*k}:{131+4*k}], v[100:103], {'0' if k == 0 else 'v[104:107]'}")
    for r in range(4): a(f"v_mov_b32 v{108+r}, 0")
    for r in range(4): a(f"v_permlane32_swap_b32 v{104+r}, v{108+r}")
    a("L_nocs:")
    a("s_lshl_b32 s59, s3, 11"); a(f"s_add_u32 s59, s59, {WS_H}")
    a("v_lshrrev_b32 v49, 1, v74"); a("v_lshlrev_b32 v49, 2, v49"); a("v_lshl_add_u32 v49, v27, 3, v49")
    a("s_lshl_b32 s58, s3, 6"); a("v_add_u32 v49, s58, v49")
    a("s_waitcnt lgkmcnt(0)")
    poll("L_pH", [f"buffer_load_dwordx4 v[{76+4*u}:{79+4*u}], v62, s[32:35], s59 offen offset:{u*1024} sc1" for u in range(2)], range(76, 84))
    stamp(10)
    for u in range(2):
        for hf in range(2):
            a(f"v_mfma_f32_16x16x32_bf16 v[{84+4*hf}:{87+4*hf}], v[{128+8*u+4*hf}:{131+8*u+4*hf}], v[{76+4*u}:{79+4*u}], {'0' if u == 0 else 'v[%d:%d]' % (84+4*hf, 87+4*hf)}")
    for k in range(8): a(f"v_dot2_f32_bf16 v92, v{76+k}, v100, {'0' if k == 0 else 'v92'}")
    for k in range(8): a(f"v_dot2_f32_bf16 v93, v{76+k}, v{76+k}, {'0' if k == 0 else 'v93'}")
    for r in range(4): a(f"v_add_f32_dpp v{84+r}, v{88+r}, v{84+r} row_ror:8 row_mask:0xf bank_mask:0xf")
    a("s_mov_b32 exec_lo, 0x00ff00ff"); a("s_mov_b32 exec_hi, 0x00ff00ff")
    a(f"ds_write_b128 v26, v[84:87] offset:{L_TX}")
    a("s_mov_b64 exec, -1")
    for r in range(2): a(f"v_add_f32_dpp v{92+r}, v{92+r}, v{92+r} row_ror:8 row_mask:0xf bank_mask:0xf")
    a("v_permlane32_swap_b32 v92, v93"); a("v_add_f32 v92, v92, v93")
    a("v_mov_b32 v93, v92"); a("v_permlane16_swap_b32 v92, v93"); a("v_add_f32 v92, v92, v93")
    a(f"ds_write_b32 v49, v92 offset:{L_ST}")
    a("v_lshlrev_b32 v49, 3, v27")
    a("s_waitcnt lgkmcnt(0)"); a("s_barrier")
    a("s_cmp_eq_u32 s3, 3"); a("s_cbranch_scc0 L_fin")
    for w in range(4): a(f"ds_read_b64 v[{76+2*w}:{77+2*w}], v49 offset:{L_ST+64*w}")
    for w in range(4): a(f"ds_read_b128 v[{128+4*w}:{131+4*w}], v63 offset:{L_TX+512*w}")
    for w in range(4): a(f"ds_read_b128 v[{144+4*w}:{147+4*w}], v63 offset:{L_TX+512*w+256}")
    a("s_waitcnt lgkmcnt(8)")
    for k in range(2):
        a(f"v_add_f32 v{76+k}, v{76+k}, v{78+k}"); a(f"v_add_f32 v{80+k}, v{80+k}, v{82+k}")
    for k in range(2): a(f"v_add_f32 v{76+k}, v{76+k}, v{80+k}")
    a(f"v_mul_f32 v76, {f32(1/512)}, v76"); a(f"v_mul_f32 v77, {f32(1/512)}, v77")
    a("v_fma_f32 v77, -v76, v76, v77"); a("v_max_f32 v77, 0, v77")
    bf16r("v77"); bf16r("v76")
    a(f"v_add_f32 v77, {f32(1e-5)}, v77"); bf16r("v77")
    a("v_sqrt_f32 v77, v77"); bf16r("v77"); a("v_rcp_f32 v77, v77")
    a("s_waitcnt lgkmcnt(0)")
    for base, cs in ((128, 104), (144, 108)):
        for r in range(4):
            a(f"v_add_f32 v{base+r}, v{base+r}, v{base+4+r}"); a(f"v_add_f32 v{base+8+r}, v{base+8+r}, v{base+12+r}")
        for r in range(4): a(f"v_add_f32 v{base+r}, v{base+r}, v{base+8+r}")
        for r in range(4): a(f"v_fma_f32 v{base+r}, -v76, v{cs+r}, v{base+r}")
        for r in range(4): a(f"v_mul_f32 v{base+r}, v{base+r}, v77")
        for r in range(2): a(f"v_cvt_pk_bf16_f32 v{base+4+r}, v{base+2*r}, v{base+2*r+1}")
        for r in range(2):
            a(f"v_lshlrev_b32 v{base+2*r}, 16, v{base+4+r}"); a(f"v_and_b32 v{base+2*r+1}, 0xffff0000, v{base+4+r}")
    for r in range(4): a(f"v_max_f32 v{128+r}, 0, v{128+r}")
    for r in range(4): a(f"v_mul_f32 v{128+r}, v{128+r}, v{144+r}")
    for r in range(2): a(f"v_cvt_pk_bf16_f32 v{132+r}, v{128+2*r}, v{129+2*r}")
    a("s_mov_b64 exec, 0x00ff00ff")
    for r in range(2): a(f"v_min_u32 v{132+r}, -2, v{132+r}")
    a("buffer_store_dwordx2 v[132:133], v70, s[32:35], 0 offen sc1")
    a("s_mov_b64 exec, -1")
    stamp(11)
    a("s_branch L_fin")
    a("L_s4:")
    a("v_lshlrev_b32 v60, 5, v60"); a("v_lshl_add_u32 v60, v61, 3, v60")
    a(f"s_mul_i32 s58, s3, {448*32}"); a(f"s_add_u32 s58, s58, {L_WD}"); a("v_add_u32 v60, s58, v60")
    for u in range(7):
        for hf in range(2):
            for sec in range(2): trread(128 + 8*u + 4*hf + 2*sec, "v60", (64*u + 8*hf + 4*sec) * 32)
        if u in (2, 5): a("s_waitcnt lgkmcnt(4)")
    a("v_lshrrev_b32 v49, 1, v74"); a("v_lshlrev_b32 v49, 7, v49"); a("v_lshl_add_u32 v49, v27, 4, v49")
    a("v_and_b32 v50, 1, v74"); a("v_lshl_add_u32 v49, v50, 3, v49")
    a("s_lshl_b32 s58, s89, 8"); a(f"s_add_u32 s58, s58, {WS_H}"); a("v_add_u32 v49, s58, v49")
    a("v_lshlrev_b32 v50, 10, v27"); a("v_lshl_add_u32 v50, v74, 3, v50"); a("s_lshl_b32 s58, s89, 5"); a("v_add_u32 v50, s58, v50")
    a(f"s_mul_i32 s59, s3, {7*1024}"); a(f"s_add_u32 s59, s59, {WS_G}"); a("s_add_u32 s92, s59, 4096")
    a("s_waitcnt lgkmcnt(0)")
    loads = [f"buffer_load_dwordx4 v[{76+4*u}:{79+4*u}], v62, s[32:35], {'s59' if u < 4 else 's92'} offen offset:{(u&3)*1024} sc1" for u in range(7)]
    loads.append("buffer_load_dwordx2 v[104:105], v49, s[32:35], 0 offen sc1")
    poll("L_pG", loads, range(76, 106))
    stamp(10)
    for u in range(7):
        for hf in range(2):
            a(f"v_mfma_f32_16x16x32_bf16 v[{108+4*hf}:{111+4*hf}], v[{128+8*u+4*hf}:{131+8*u+4*hf}], v[{76+4*u}:{79+4*u}], {'0' if u == 0 else 'v[%d:%d]' % (108+4*hf, 111+4*hf)}")
    for r in range(4): a(f"v_add_f32_dpp v{108+r}, v{112+r}, v{108+r} row_ror:8 row_mask:0xf bank_mask:0xf")
    a("s_mov_b32 exec_lo, 0x00ff00ff"); a("s_mov_b32 exec_hi, 0x00ff00ff")
    a(f"ds_write_b128 v26, v[108:111] offset:{L_TX}")
    a("s_waitcnt lgkmcnt(0)"); a("s_barrier")
    a("s_cmp_eq_u32 s3, 3"); a("s_cbranch_scc0 L_fin")
    for w in range(4): a(f"ds_read_b128 v[{128+4*w}:{131+4*w}], v63 offset:{L_TX+512*w}")
    for r in range(2):
        a(f"v_lshlrev_b32 v{76+2*r}, 16, v{104+r}"); a(f"v_and_b32 v{77+2*r}, 0xffff0000, v{104+r}")
    a("s_waitcnt lgkmcnt(0)")
    for r in range(4):
        a(f"v_add_f32 v{128+r}, v{128+r}, v{132+r}"); a(f"v_add_f32 v{136+r}, v{136+r}, v{140+r}")
    for r in range(4): a(f"v_add_f32 v{128+r}, v{128+r}, v{136+r}")
    for r in range(2): a(f"v_cvt_pk_bf16_f32 v{132+r}, v{128+2*r}, v{129+2*r}")
    for r in range(2):
        a(f"v_lshlrev_b32 v{128+2*r}, 16, v{132+r}"); a(f"v_and_b32 v{129+2*r}, 0xffff0000, v{132+r}")
    for r in range(4): a(f"v_add_f32 v{128+r}, v{128+r}, v{76+r}")
    for r in range(2): a(f"v_cvt_pk_bf16_f32 v{132+r}, v{128+2*r}, v{129+2*r}")
    a("buffer_store_dwordx2 v[132:133], v50, s[36:39], 0 offen")
    stamp(11)
    a("L_fin:")
    if stamps:
        a("s_mov_b64 exec, -1")
        stamp(12)
        a("s_getreg_b32 s92, hwreg(HW_REG_XCC_ID)"); a("v_writelane_b32 v73, s92, 15")
        a("s_lshl_b32 s58, s2, 2"); a("s_add_u32 s58, s58, s3"); a("s_lshl_b32 s58, s58, 6"); a(f"s_add_u32 s58, s58, {WS_ST}")
        a("v_lshlrev_b32 v48, 2, v1"); a("s_mov_b64 exec, 0xffff")
        a("buffer_store_dword v73, v48, s[32:35], s58 offen")
    a("L_end:")
    a("s_endpgm")
    body = a.finish()
    head = HEADER + f"; @launch grid=(256,1,1) block=(256,1,1) lds={L_SIZE}\n" + '.amdgcn_target "amdgcn-amd-amdhsa--gfx950"\n.text\n' + \
        f".globl {NAME}\n.p2align 8\n.type {NAME},@function\n"
    tail = f""".section .rodata,"a"
.p2align 6
.amdhsa_kernel {NAME}
  .amdhsa_next_free_vgpr 384
  .amdhsa_next_free_sgpr 102
  .amdhsa_accum_offset 256
  .amdhsa_group_segment_fixed_size 0
  .amdhsa_kernarg_size 96
  .amdhsa_user_sgpr_count 2
  .amdhsa_user_sgpr_kernarg_segment_ptr 1
  .amdhsa_system_sgpr_workgroup_id_x 1
.end_amdhsa_kernel
"""
    return head + body + tail

if __name__ == "__main__":
    kw = eval("dict(%s)" % (sys.argv[2] if len(sys.argv) > 2 else ""))
    open(sys.argv[1], "w").write(gen(**kw))
```

```python
import sys, struct
sys.path.insert(0, __file__.rsplit('/', 1)[0])
from asmlib import Asm

NAME = "sequential_preLN__mha_block_cached__glu_gated_reglu__decode_kernel"
HEADER = open(__file__.rsplit('/', 1)[0] + '/header.txt').read()

def f32(x): return "0x%08x" % struct.unpack('<I', struct.pack('<f', x))[0]

WS_P, WS_H, WS_G, WS_ST, WS_SIZE = 0, 0x80000, 0x82000, 0x100000, 0x140000
L_QP, L_OP, L_ML, L_ST, L_TX, L_SP, L_WA, L_WD, L_SIZE = 0, 2048, 4096, 4160, 4608, 7168, 8192, 8192, 65536
RING = 128
NB = 32
SPIN = 200000

def gen(D=5, pol="nt", wpol="nt", stamps=False, early=(2, 7, 12, 17), n1=5, kq=2, nbar=2, sleep=1, fpol="nt", hmap=0, D2=16, nl2=1, vpol=None):
    a = Asm()
    vm = []
    def vwait(tag):
        n = len(vm) - 1 - vm.index(tag)
        a(f"s_waitcnt vmcnt({min(n, 63)})")
    def stamp(k):
        if stamps:
            a("s_memrealtime s[94:95]"); a("s_waitcnt lgkmcnt(0)"); a(f"v_writelane_b32 v73, s94, {k}")
    def allred(op, v, t):
        for n in (8, 4, 2, 1): a(f"{op}_dpp {v}, {v}, {v} row_ror:{n} row_mask:0xf bank_mask:0xf")
        for sw in ("v_permlane16_swap_b32", "v_permlane32_swap_b32"):
            a(f"v_mov_b32 {t}, {v}"); a(f"{sw} {v}, {t}"); a(f"{op} {v}, {v}, {t}")
    def bf16r(v, src=None):
        src = src or v
        a(f"v_cvt_pk_bf16_f32 {v}, {src}, {src}"); a(f"v_and_b32 {v}, 0xffff0000, {v}")
    def srd(d, lo, hi, size, add=None):
        if add is None:
            a(f"s_mov_b32 s{d}, s{lo}"); a(f"s_mov_b32 s{d+1}, s{hi}")
        else:
            a(f"s_add_u32 s{d}, s{lo}, {add}"); a(f"s_addc_u32 s{d+1}, s{hi}, 0")
        a(f"s_mov_b32 s{d+2}, {size}"); a(f"s_mov_b32 s{d+3}, 0x20000")
    def ring(j): j %= NB; return f"v[{RING+4*j}:{RING+4*j+3}]"
    cur = {"pol": pol}
    def sload(j, nxt):
        s, b = ("s[12:15]", "s55") if nxt else ("s[8:11]", "s54")
        a(f"buffer_load_dwordx4 {ring(j)}, v{2+(j>>2)}, {s}, {b} offen offset:{(j&3)*1024} {cur['pol']}")
    def masks(t, src, lane):
        for r in range(4):
            a(f"v_and_b32_dpp v{18+4*(t&1)+r}, {src}, v{14+r} row_newbcast:{lane} row_mask:0xf bank_mask:0xf")
    def mop(t): return f"v[{18+4*(t&1)}:{21+4*(t&1)}]"
    def bitrev(t): return ((t & 1) << 3) | ((t & 2) << 1) | ((t & 4) >> 1) | ((t & 8) >> 3)
    def poll(label, loads, regs, pre=None):
        a(f"s_mov_b32 s88, {SPIN}")
        a(f"{label}:")
        for l in loads: a(l)
        if pre: pre()
        a("s_waitcnt vmcnt(0)")
        r = list(regs)
        a(f"v_max3_u32 v48, v{r[0]}, v{r[1]}, v{r[2]}"); r = r[3:]
        while len(r) >= 2:
            a(f"v_max3_u32 v48, v48, v{r[0]}, v{r[1]}"); r = r[2:]
        if r: a(f"v_max_u32 v48, v48, v{r[0]}")
        a("v_cmp_eq_u32 vcc, -1, v48")
        a(f"s_cbranch_vccz {label}_ok")
        if sleep: a(f"s_sleep {sleep}")
        a("s_sub_u32 s88, s88, 1")
        a(f"s_cbranch_scc0 {label}")
        a(f"{label}_ok:")

    def dma_setup():
        a("s_cmp_lt_u32 s2, 224"); a("s_cbranch_scc0 L_dmaD")
        a("s_movk_i32 s58, 3584"); a("v_mul_u32_u24 v62, s58, v1"); a("s_lshl_b32 s58, s89, 4"); a("v_add_u32 v62, s58, v62")
        a(f"s_mul_i32 s96, s3, {2*229376}"); a("s_mov_b32 s97, s96")
        a("s_lshl_b32 s98, s3, 11"); a(f"s_add_u32 s98, s98, {L_WA}"); a("s_add_u32 s99, s98, 8192")
        a("s_mov_b32 s100, 229376"); a("s_mov_b32 s101, 1024"); a("s_mov_b32 s93, 2")
        a("s_branch L_dmaX")
        a("L_dmaD:")
        a("v_lshrrev_b32 v62, 1, v1"); a("v_lshlrev_b32 v62, 10, v62"); a("v_and_b32 v63, 1, v1"); a("v_lshl_add_u32 v62, v63, 4, v62")
        a("s_lshl_b32 s58, s89, 5"); a("v_add_u32 v62, s58, v62")
        for d in (40, 44):
            a(f"s_mov_b32 s{d}, s80"); a(f"s_mov_b32 s{d+1}, s81"); a(f"s_mov_b32 s{d+2}, {1792*1024}")
        a(f"s_mul_i32 s96, s3, {448*1024}"); a("s_add_u32 s97, s96, 32768")
        a(f"s_mul_i32 s98, s3, {448*32}"); a(f"s_add_u32 s98, s98, {L_WD}"); a("s_add_u32 s99, s98, 1024")
        a("s_mov_b32 s100, 65536"); a("s_mov_b32 s101, 2048"); a("s_mov_b32 s93, 7")
        a("L_dmaX:")
    def dma_pair():
        a("s_cmp_eq_u32 s93, 0")
        a("s_cselect_b32 s42, 0, s42"); a("s_cselect_b32 s46, 0, s46")
        a(f"s_cselect_b32 s98, {L_SP}, s98"); a(f"s_cselect_b32 s99, {L_SP}, s99"); a("s_cselect_b32 s101, 0, s101")
        a("s_cselect_b32 s93, 1, s93")
        a("s_mov_b32 m0, s98"); a("s_sub_u32 s93, s93, 1")
        a(f"buffer_load_dwordx4 v62, s[40:43], s96 offen {fpol} lds")
        a("s_mov_b32 m0, s99"); a("s_add_u32 s96, s96, s100")
        a(f"buffer_load_dwordx4 v62, s[44:47], s97 offen {fpol} lds")
        a("s_add_u32 s97, s97, s100"); a("s_add_u32 s98, s98, s101"); a("s_add_u32 s99, s99, s101")
    a(f"{NAME}:")
    a("s_cmp_ge_u32 s2, 256"); a("s_cbranch_scc1 L_end")
    a("s_load_dwordx16 s[64:79], s[0:1], 0")
    a("s_load_dwordx8 s[80:87], s[0:1], 64")
    a("v_lshrrev_b32 v1, 6, v0")
    a("v_readfirstlane_b32 s3, v1")
    a("v_and_b32 v1, 63, v0")
    if hmap == 0:
        a("s_lshr_b32 s4, s2, 5"); a("s_and_b32 s5, s2, 31"); a("s_mov_b32 s6, s2")
    else:
        a("s_lshr_b32 s4, s2, 5"); a("s_and_b32 s5, s2, 7"); a("s_lshl_b32 s5, s5, 2"); a("s_bfe_u32 s6, s2, 0x20003"); a("s_add_u32 s5, s5, s6")
        a("s_lshl_b32 s6, s4, 5"); a("s_add_u32 s6, s6, s5")
    a("v_lshrrev_b32 v74, 4, v1"); a("v_and_b32 v75, 15, v1")
    if stamps: a("v_mov_b32 v73, 0")
    a("v_lshlrev_b32 v48, 4, v1")
    a("s_lshl_b32 s58, s3, 12"); a("v_add_u32 v2, s58, v48")
    for k in range(1, 8): a(f"v_add_u32 v{2+k}, {k*16384}, v2")
    a("s_lshl_b32 s58, s3, 8"); a("v_lshlrev_b32 v49, 3, v75"); a("v_lshl_add_u32 v49, v74, 1, v49"); a("v_add_u32 v49, s58, v49")
    a("v_and_b32 v50, 3, v1"); a("v_lshlrev_b32 v50, 3, v50"); a("v_lshrrev_b32 v51, 1, v74"); a("v_lshl_add_u32 v50, v51, 2, v50")
    a("s_lshl_b32 s58, s5, 5"); a("v_add_u32 v50, s58, v50")
    a("s_lshl_b32 s58, s3, 20"); a("v_lshlrev_b32 v58, 13, v74"); a("v_lshl_add_u32 v58, v75, 4, v58"); a("v_add_u32 v58, s58, v58")
    a("s_lshl_b32 s58, s3, 8"); a("v_lshlrev_b32 v59, 10, v74"); a("v_lshl_add_u32 v59, v75, 4, v59"); a("v_add_u32 v59, s58, v59")
    a("s_lshl_b32 s57, s4, 10")
    a("s_lshl_b32 s58, s5, 8")
    a("s_lshl_b32 s59, s6, 20")
    a("s_sub_u32 s92, 0x400000, s58")
    a("s_waitcnt lgkmcnt(0)")
    stamp(0)
    srd(28, 64, 65, 8192)
    a("buffer_load_dwordx4 v[52:55], v48, s[28:31], s57 offen"); vm.append("x")
    a("buffer_load_ushort v56, v49, s[28:31], s57 offen"); vm.append("xc0")
    a("buffer_load_ushort v57, v49, s[28:31], s57 offen offset:128"); vm.append("xc1")
    srd(20, 70, 71, "s92", "s58")
    srd(8, 66, 67, 0x100000, "s59")
    a("s_mov_b32 s54, 0")
    def wqload(t):
        a(f"s_mov_b32 s58, {t*32768}")
        a(f"buffer_load_dwordx4 a[{4*t}:{4*t+3}], v58, s[20:23], s58 offen {wpol}"); vm.append(f"wq{t}")
    kiss = 0
    def kload(nxt=False):
        nonlocal kiss
        sload(kiss % NB, kiss >= NB); vm.append(f"k{kiss}"); kiss += 1
    wiss = 0
    for j in range(n1):
        kload(); wqload(wiss); wqload(wiss + 1); wiss += 2
    a("s_add_u32 s16, s68, s59"); a("s_addc_u32 s17, s69, 0")
    a("s_mov_b32 s12, s8"); a("s_mov_b32 s13, s9"); a("s_mov_b32 s14, 0x100000"); a("s_mov_b32 s15, 0x20000")
    a("s_lshl_b32 s58, s5, 17"); srd(24, 72, 73, 0x20000, "s58")
    srd(32, 86, 87, WS_SIZE); srd(36, 82, 83, 8192)
    srd(40, 76, 77, 512*3584); srd(44, 78, 79, 512*3584)
    a("buffer_load_dword v71, v50, s[28:31], s57 offen"); vm.append("xr")
    a("s_and_b32 s58, s2, 7"); a("s_lshr_b32 s92, s2, 3")
    a("s_mul_i32 s89, s58, 28"); a("s_add_u32 s89, s89, s92")
    a("s_lshl_b32 s58, s58, 2"); a("s_add_u32 s58, s58, s92"); a("s_sub_u32 s58, s58, 28")
    a("s_cmp_lt_u32 s2, 224"); a("s_cselect_b32 s89, s89, s58")
    a("v_lshrrev_b32 v68, 1, v75"); a("v_lshlrev_b32 v68, 11, v68")
    a("v_and_b32 v60, 1, v75"); a("v_lshl_add_u32 v60, v60, 1, v74"); a("v_lshl_add_u32 v68, v60, 4, v68")
    a("s_lshl_b32 s58, s4, 16"); a("s_lshl_b32 s92, s3, 14"); a("s_add_u32 s58, s58, s92")
    a("s_lshl_b32 s92, s5, 6"); a("s_add_u32 s58, s58, s92"); a("v_add_u32 v68, s58, v68")
    a("v_bfe_u32 v69, v1, 1, 1"); a("v_lshlrev_b32 v69, 7, v69")
    a("v_and_b32 v60, 1, v1"); a("v_lshl_add_u32 v69, v60, 3, v69"); a("v_lshl_add_u32 v69, v51, 2, v69")
    a("s_lshl_b32 s58, s5, 8"); a("s_lshl_b32 s92, s4, 4"); a("s_add_u32 s58, s58, s92"); a(f"s_add_u32 s58, s58, {WS_H}")
    a("v_add_u32 v69, s58, v69")
    a("v_lshlrev_b32 v70, 4, v75"); a("v_lshl_add_u32 v70, v74, 3, v70")
    a("s_lshl_b32 s58, s89, 7"); a(f"s_add_u32 s58, s58, {WS_G}"); a("v_add_u32 v70, s58, v70")
    for r in range(4): a(f"v_mov_b32 v{60+r}, -1")
    a("s_mov_b32 exec_hi, 0")
    a("buffer_store_dwordx4 v[60:63], v68, s[32:35], 0 offen sc1"); vm.append("clrP")
    a("s_cmp_eq_u32 s3, 0"); a("s_cbranch_scc0 L_noclrH")
    a("s_mov_b32 exec_lo, 15"); a("s_mov_b32 exec_hi, 15")
    a("buffer_store_dword v60, v69, s[32:35], 0 offen sc1")
    a("L_noclrH:")
    a("s_cmp_eq_u32 s3, 3"); a("s_cbranch_scc0 L_noclrG")
    a("s_cmp_lt_u32 s2, 224"); a("s_cbranch_scc0 L_noclrG")
    a("s_mov_b64 exec, 0x00ff00ff")
    a("buffer_store_dwordx2 v[60:61], v70, s[32:35], 0 offen sc1")
    a("L_noclrG:")
    a("s_mov_b64 exec, -1")
    stamp(1)
    a("s_mov_b32 s60, 0xcccccccc"); a("s_mov_b32 s61, 0xcccccccc"); a("s_mov_b32 s62, 0xaaaaaaaa"); a("s_mov_b32 s63, 0xaaaaaaaa")
    a(f"s_mov_b32 s90, {f32(128 ** -0.5)}"); a(f"s_mov_b32 s91, {f32(1.4426950408889634)}")
    a("s_lshr_b32 s58, s2, 3"); a("s_and_b32 s58, s58, 3"); a("s_add_u32 s58, s58, 2")
    a("s_cmp_eq_u32 s3, 0"); a("s_cselect_b32 s57, s58, 99")
    a("v_and_b32 v60, 1, v75"); a("v_lshlrev_b32 v60, 4, v60"); a("v_mov_b32 v61, 0xffff"); a("v_lshlrev_b32 v60, v60, v61")
    a("v_lshrrev_b32 v61, 1, v75")
    for r in range(4):
        a(f"v_cmp_eq_u32 vcc, {r}, v61"); a(f"v_cndmask_b32 v{14+r}, 0, v60, vcc")
    vwait("x")
    for k in range(4):
        a(f"v_lshlrev_b32 v{76+2*k}, 16, v{52+k}"); a(f"v_and_b32 v{77+2*k}, 0xffff0000, v{52+k}")
    a("v_add_f32 v84, v76, v77")
    for k in range(2, 8): a(f"v_add_f32 v84, v84, v{76+k}")
    allred("v_add_f32", "v84", "v85")
    a(f"v_mul_f32 v84, {f32(1/512)}, v84")
    for k in range(8): a(f"v_sub_f32 v{76+k}, v{76+k}, v84")
    a("v_mul_f32 v86, v76, v76")
    for k in range(1, 8): a(f"v_fmac_f32 v86, v{76+k}, v{76+k}")
    allred("v_add_f32", "v86", "v85")
    a(f"v_mul_f32 v86, {f32(1/512)}, v86")
    bf16r("v84"); bf16r("v86")
    a(f"v_add_f32 v86, {f32(1e-5)}, v86"); bf16r("v86")
    a("v_sqrt_f32 v86, v86"); bf16r("v86"); a("v_rcp_f32 v86, v86")
    vwait("xc1")
    for k in range(2):
        a(f"v_lshlrev_b32 v{56+k}, 16, v{56+k}"); a(f"v_sub_f32 v{56+k}, v{56+k}, v84"); bf16r(f"v{56+k}")
        a(f"v_mul_f32 v{56+k}, v{56+k}, v86"); a(f"v_cvt_pk_bf16_f32 v{66+k}, v{56+k}, v{56+k}")
    stamp(2)
    masks(0, "v66", 0)
    for t in range(32):
        vwait(f"wq{t}")
        a(f"v_mfma_f32_16x16x32_bf16 v[28:31], {mop(t)}, a[{4*t}:{4*t+3}], {'0' if t == 0 else 'v[28:31]'}")
        if wiss < 32: wqload(wiss); wiss += 1
        if t % kq == kq - 1: kload()
        if t < 31: masks(t + 1, "v66" if t + 1 < 16 else "v67", (t + 1) & 15)
    for j in range(nbar): kload()
    a("v_lshlrev_b32 v27, 5, v75"); a("v_lshl_add_u32 v26, v74, 4, v27"); a("s_lshl_b32 s58, s3, 9"); a("v_add_u32 v26, s58, v26")
    a("s_mov_b32 exec_hi, 0")
    a(f"ds_write_b128 v26, v[28:31] offset:{L_QP}")
    a("s_mov_b64 exec, -1")
    a("s_waitcnt lgkmcnt(0)"); a("s_barrier")
    for w in range(4):
        for hh in range(2): a(f"ds_read_b128 v[{76+8*w+4*hh}:{79+8*w+4*hh}], v27 offset:{L_QP+512*w+16*hh}")
    a("s_waitcnt lgkmcnt(0)")
    for k in range(8):
        a(f"v_add_f32 v{76+k}, v{76+k}, v{84+k}"); a(f"v_add_f32 v{92+k}, v{92+k}, v{100+k}")
    for k in range(8): a(f"v_add_f32 v{76+k}, v{76+k}, v{92+k}")
    for k in range(4): a(f"v_cvt_pk_bf16_f32 v{10+k}, v{76+2*k}, v{77+2*k}")
    a("v_mov_b32 v64, 0xff800000"); a("v_mov_b32 v65, 0")
    stamp(3)

    def kconsume(i):
        t = i & 15
        x = f"v{48 + (t & 1)}" if True else None
        base = RING + 4 * i
        a(f"v_dot2_f32_bf16 {x}, v{base}, v10, 0")
        for r in range(1, 4): a(f"v_dot2_f32_bf16 {x}, v{base+r}, v{10+r}, {x}")
        if t & 1:
            d = f"v{50 + ((t >> 1) & 1)}"
            a(f"v_add_f32_dpp {d}, v48, v48 row_ror:8 row_mask:0xf bank_mask:0x3")
            a(f"v_add_f32_dpp {d}, v49, v49 row_ror:8 row_mask:0xf bank_mask:0xc")
        if t & 3 == 3:
            d = f"v{52 + ((t >> 2) & 1)}"
            a(f"v_add_f32_dpp {d}, v50, v50 row_half_mirror row_mask:0xf bank_mask:0x5")
            a(f"v_add_f32_dpp {d}, v51, v51 row_half_mirror row_mask:0xf bank_mask:0xa")
        if t & 7 == 7:
            d = f"v{54 + ((t >> 3) & 1)}"
            a("v_add_f32_dpp v52, v52, v52 quad_perm:[2,3,0,1] row_mask:0xf bank_mask:0xf")
            a("v_add_f32_dpp v53, v53, v53 quad_perm:[2,3,0,1] row_mask:0xf bank_mask:0xf")
            a(f"v_cndmask_b32 {d}, v52, v53, s[60:61]")
        if t == 15:
            s = f"v{46 + (i >> 4)}"
            a("v_add_f32_dpp v54, v54, v54 quad_perm:[1,0,3,2] row_mask:0xf bank_mask:0xf")
            a("v_add_f32_dpp v55, v55, v55 quad_perm:[1,0,3,2] row_mask:0xf bank_mask:0xf")
            a(f"v_cndmask_b32 {s}, v54, v55, s[62:63]")
            bf16r(s); a(f"v_mul_f32 {s}, s90, {s}"); bf16r(s)
            a(f"v_max_f32 v64, v64, {s}")
    a(f"s_mov_b32 s55, {NB*4096}")
    left = NB + D - kiss
    early = list(early)
    while early and early[-1] >= NB - (left - len(early)): early.pop()
    sched = early + list(range(NB - (left - len(early)), NB))
    assert len(set(sched)) == left, (sched, left)
    for i in range(NB):
        vwait(f"k{i}")
        if i in sched:
            assert kiss - NB < i or kiss < NB
            kload()
        kconsume(i)
    stamp(4)
    a("s_mov_b32 s54, s55"); a(f"s_add_u32 s55, s55, {NB*4096}")
    for k in range(2): a(f"v_mov_b32 v{44+k}, v{46+k}")
    for i in range(NB):
        vwait(f"k{NB+i}")
        sload((i + D) % NB, i + D >= NB); vm.append(f"k{kiss}"); kiss += 1
        a(f"s_mov_b32 s58, {i*4096}")
        a(f"buffer_load_dwordx4 a[{4*i}:{4*i+3}], v59, s[24:27], s58 offen {wpol}"); vm.append(f"wo{i}")
        kconsume(i)
    a("s_mov_b32 s56, 2")
    a(".p2align 3")
    a("L_kloop:")
    a("s_mov_b32 s54, s55"); a(f"s_add_u32 s55, s55, {NB*4096}")
    a("s_cmp_eq_u32 s56, 7")
    a("s_cselect_b32 s12, s16, s12"); a("s_cselect_b32 s13, s17, s13"); a("s_cselect_b32 s55, 0, s55")
    a("s_cmp_eq_u32 s56, s57"); a("s_cbranch_scc0 L_nosig")
    a("v_mov_b32 v60, 0"); a("v_mov_b32 v61, 1"); a("s_mov_b64 exec, 1")
    a("global_atomic_add v60, v61, s[84:85] sc1")
    a("s_mov_b64 exec, -1")
    a("L_nosig:")
    for k in range(14): a(f"v_mov_b32 v{32+k}, v{34+k}")
    for i in range(NB):
        a(f"s_waitcnt vmcnt({D-1})")
        sload((i + D) % NB, i + D >= NB)
        kconsume(i)
    a("s_add_u32 s56, s56, 1"); a("s_cmp_lt_u32 s56, 8"); a("s_cbranch_scc1 L_kloop")
    stamp(5)
    allred("v_max_f32", "v64", "v48")
    a("v_mul_f32 v64, s91, v64"); a("v_sub_f32 v64, 0, v64")
    a("s_mov_b32 s8, s12"); a("s_mov_b32 s9, s13"); a("s_mov_b32 s56, 0")
    for r in range(4): a(f"v_mov_b32 v{28+r}, 0")
    dma_setup()
    if vpol is not None: cur["pol"] = vpol
    def vlap(name, DD, last, lim):
        a(".p2align 3")
        a(f"{name}:")
        a("s_mov_b32 s54, s55"); a(f"s_add_u32 s55, s55, {NB*4096}")
        for k in range(2):
            a(f"v_fma_f32 v{56+k}, v{32+k}, s91, v64"); a(f"v_exp_f32 v{56+k}, v{56+k}")
            a(f"v_add_f32 v65, v65, v{56+k}"); a(f"v_cvt_pk_bf16_f32 v{66+k}, v{56+k}, v{56+k}")
        for k in range(14): a(f"v_mov_b32 v{32+k}, v{34+k}")
        masks(0, "v66", 0)
        if not last:
            dma_pair()
            a("s_cmp_eq_u32 s56, 3"); a("s_cbranch_scc0 L_nochk")
            a("v_mov_b32 v60, 0")
            a("global_load_dword v72, v60, s[84:85] sc1")
            a("L_nochk:")
        else:
            if nl2 > 1: dma_pair()
            a("s_cmp_eq_u32 s56, 7"); a("s_cbranch_scc0 L_nolast")
            allred("v_add_f32", "v65", "v48")
            a("s_lshl_b32 s58, s3, 3"); a("v_mov_b32 v48, s58"); a("s_mov_b64 exec, 1")
            a(f"ds_write_b64 v48, v[64:65] offset:{L_ML}")
            a("s_mov_b64 exec, -1")
            a("v_readfirstlane_b32 s58, v72"); a("s_cmp_ge_u32 s58, 256"); a("s_cbranch_scc1 L_nolast")
            a(f"s_mov_b32 s88, {SPIN}"); a("v_mov_b32 v60, 0")
            a("L_cnt:")
            a("s_sleep 8"); a("global_load_dword v72, v60, s[84:85] sc1"); a("s_waitcnt vmcnt(0)")
            a("v_readfirstlane_b32 s58, v72"); a("s_cmp_ge_u32 s58, 256"); a("s_cbranch_scc1 L_nolast")
            a("s_sub_u32 s88, s88, 1"); a("s_cbranch_scc0 L_cnt")
            a("L_nolast:")
        pair = 2 if (not last or nl2 > 1) else 0
        for i in range(NB):
            a(f"s_waitcnt vmcnt({DD - 1 + (pair if i < DD else 0)})")
            sload((i + DD) % NB, i + DD >= NB)
            a(f"v_mfma_f32_16x16x32_bf16 v[28:31], {mop(i)}, {ring(i)}, v[28:31]")
            if i < NB - 1: masks(i + 1, f"v{66 + ((i + 1) >> 4)}", bitrev((i + 1) & 15))
        a("s_add_u32 s56, s56, 1"); a(f"s_cmp_lt_u32 s56, {lim}"); a(f"s_cbranch_scc1 {name}")
    vlap("L_vloopA", D, False, 8 - nl2)
    for j in range(D, D2): sload(j, True)
    vlap("L_vloopB", D2, True, 8)
    stamp(6)
    a("v_lshlrev_b32 v27, 4, v75"); a("v_lshl_add_u32 v27, v74, 2, v27")
    a("v_mov_b32 v48, 0")
    a("s_mov_b32 exec_hi, 0")
    a(f"ds_write_b128 v26, v[28:31] offset:{L_OP}")
    a("s_mov_b64 exec, -1")
    a("s_waitcnt lgkmcnt(0)"); a("s_barrier")
    a(f"ds_read_b128 v[76:79], v48 offset:{L_ML}"); a(f"ds_read_b128 v[80:83], v48 offset:{L_ML+16}")
    for w in range(4): a(f"ds_read2st64_b32 v[{84+2*w}:{85+2*w}], v27 offset0:{L_OP//256+2*w} offset1:{L_OP//256+2*w+1}")
    a("s_waitcnt lgkmcnt(4)")
    a("v_min_f32 v48, v76, v78"); a("v_min3_f32 v48, v48, v80, v82")
    for w in range(4): a(f"v_sub_f32 v{76+2*w}, v48, v{76+2*w}")
    for w in range(4): a(f"v_exp_f32 v{76+2*w}, v{76+2*w}")
    a("v_mul_f32 v49, v76, v77")
    for w in range(1, 4): a(f"v_fmac_f32 v49, v{76+2*w}, v{77+2*w}")
    a("v_rcp_f32 v49, v49")
    a("s_waitcnt lgkmcnt(0)")
    for k in range(2):
        a(f"v_mul_f32 v{56+k}, v76, v{84+k}")
        for w in range(1, 4): a(f"v_fmac_f32 v{56+k}, v{76+2*w}, v{84+2*w+k}")
    for k in range(2):
        a(f"v_mul_f32 v{56+k}, v{56+k}, v49"); a(f"v_cvt_pk_bf16_f32 v{66+k}, v{56+k}, v{56+k}")
    masks(0, "v66", 0)
    for t in range(32):
        if t < 31: masks(t + 1, "v66" if t + 1 < 16 else "v67", (t + 1) & 15)
        a(f"v_mfma_f32_16x16x32_bf16 v[28:31], {mop(t)}, a[{4*t}:{4*t+3}], {'0' if t == 0 else 'v[28:31]'}")
    a("s_mov_b32 s58, -2")
    a("s_mov_b32 exec_hi, 0")
    for r in range(4): a(f"v_min_u32 v{28+r}, s58, v{28+r}")
    a("buffer_store_dwordx4 v[28:31], v68, s[32:35], 0 offen sc1")
    a("s_mov_b64 exec, -1")
    stamp(7)
    a("v_lshrrev_b32 v60, 2, v75"); a("v_lshl_add_u32 v60, v74, 4, v60")
    a("v_and_b32 v61, 3, v1")
    a("v_lshlrev_b32 v62, 4, v1")
    a("s_cmp_eq_u32 s3, 0"); a("s_cbranch_scc0 L_s2done")
    a("s_lshl_b32 s59, s6, 11")
    a("v_lshlrev_b32 v50, 16, v71"); a("v_and_b32 v51, 0xffff0000, v71")
    poll("L_pP", [f"buffer_load_dwordx4 v[{76+4*u}:{79+4*u}], v62, s[32:35], s59 offen offset:{u*1024} sc1" for u in range(2)], range(76, 84))
    stamp(8)
    for r in range(4): a(f"v_add_f32 v{76+r}, v{76+r}, v{80+r}")
    a("v_permlane32_swap_b32 v76, v78"); a("v_permlane32_swap_b32 v77, v79")
    a("v_add_f32 v76, v76, v78"); a("v_add_f32 v77, v77, v79")
    for n in (4, 8):
        for r in range(2): a(f"v_add_f32_dpp v{76+r}, v{76+r}, v{76+r} row_ror:{n} row_mask:0xf bank_mask:0xf")
    a("v_mov_b32 v78, v76"); a("v_mov_b32 v79, v77")
    a("v_permlane16_swap_b32 v76, v78"); a("v_permlane16_swap_b32 v77, v79")
    a("v_add_f32 v76, v76, v78"); a("v_add_f32 v77, v77, v79")
    a("v_cvt_pk_bf16_f32 v76, v76, v77")
    a("v_and_b32 v77, 0xffff0000, v76"); a("v_lshlrev_b32 v76, 16, v76")
    a("v_add_f32 v76, v76, v50"); a("v_add_f32 v77, v77, v51")
    a("v_cvt_pk_bf16_f32 v76, v76, v77")
    a("s_mov_b32 exec_lo, 15"); a("s_mov_b32 exec_hi, 15")
    a("v_min_u32 v76, -2, v76")
    a("buffer_store_dword v76, v69, s[32:35], 0 offen sc1")
    a("s_mov_b64 exec, -1")
    stamp(9)
    a("L_s2done:")
    a("v_and_b32 v27, 7, v75"); a("v_lshlrev_b32 v63, 4, v27"); a("v_lshl_add_u32 v63, v74, 7, v63")
    a("s_lshl_b32 s58, s3, 9"); a("v_add_u32 v26, s58, v63")
    a("s_cmp_lt_u32 s2, 224"); a("s_cbranch_scc0 L_s4")
    a("v_lshlrev_b32 v60, 4, v60"); a("v_lshrrev_b32 v49, 1, v61"); a("v_lshl_add_u32 v60, v49, 13, v60")
    a("v_and_b32 v49, 1, v61"); a("v_lshl_add_u32 v60, v49, 3, v60")
    a("s_lshl_b32 s58, s3, 11"); a(f"s_add_u32 s58, s58, {L_WA}")
    a("v_add_u32 v61, s58, v60")
    def trread(dst, addr, off): a(f"ds_read_b64_tr_b16 v[{dst}:{dst+1}], {addr} offset:{off}")
    for u in range(2):
        for hf in range(2):
            for sec in range(2): trread(128 + 8*u + 4*hf + 2*sec, "v61", (64*u + 8*hf + 4*sec) * 16)
    a("v_mov_b32 v100, 0x3f803f80")
    a("s_cmp_eq_u32 s3, 3"); a("s_cbranch_scc0 L_nocs")
    a(f"v_add_u32 v61, {L_WA}, v60")
    for u in range(6):
        for hf in range(2):
            for sec in range(2): trread(144 + 8*u + 4*hf + 2*sec, "v61", (64*u + 8*hf + 4*sec) * 16)
            if u == 2 and hf == 1: a("s_waitcnt lgkmcnt(4)")
    for r in range(1, 4): a(f"v_mov_b32 v{100+r}, v100")
    a("s_waitcnt lgkmcnt(0)")
    for k in range(16):
        a(f"v_mfma_f32_16x16x32_bf16 v[104:107], v[{128+4*k}:{131+4*k}], v[100:103], {'0' if k == 0 else 'v[104:107]'}")
    for r in range(4): a(f"v_mov_b32 v{108+r}, 0")
    for r in range(4): a(f"v_permlane32_swap_b32 v{104+r}, v{108+r}")
    a("L_nocs:")
    a("s_lshl_b32 s59, s3, 11"); a(f"s_add_u32 s59, s59, {WS_H}")
    a("v_lshrrev_b32 v49, 1, v74"); a("v_lshlrev_b32 v49, 2, v49"); a("v_lshl_add_u32 v49, v27, 3, v49")
    a("s_lshl_b32 s58, s3, 6"); a("v_add_u32 v49, s58, v49")
    a("s_waitcnt lgkmcnt(0)")
    poll("L_pH", [f"buffer_load_dwordx4 v[{76+4*u}:{79+4*u}], v62, s[32:35], s59 offen offset:{u*1024} sc1" for u in range(2)], range(76, 84))
    stamp(10)
    for u in range(2):
        for hf in range(2):
            a(f"v_mfma_f32_16x16x32_bf16 v[{84+4*hf}:{87+4*hf}], v[{128+8*u+4*hf}:{131+8*u+4*hf}], v[{76+4*u}:{79+4*u}], {'0' if u == 0 else 'v[%d:%d]' % (84+4*hf, 87+4*hf)}")
    for k in range(8): a(f"v_dot2_f32_bf16 v92, v{76+k}, v100, {'0' if k == 0 else 'v92'}")
    for k in range(8): a(f"v_dot2_f32_bf16 v93, v{76+k}, v{76+k}, {'0' if k == 0 else 'v93'}")
    for r in range(4): a(f"v_add_f32_dpp v{84+r}, v{88+r}, v{84+r} row_ror:8 row_mask:0xf bank_mask:0xf")
    a("s_mov_b32 exec_lo, 0x00ff00ff"); a("s_mov_b32 exec_hi, 0x00ff00ff")
    a(f"ds_write_b128 v26, v[84:87] offset:{L_TX}")
    a("s_mov_b64 exec, -1")
    for r in range(2): a(f"v_add_f32_dpp v{92+r}, v{92+r}, v{92+r} row_ror:8 row_mask:0xf bank_mask:0xf")
    a("v_permlane32_swap_b32 v92, v93"); a("v_add_f32 v92, v92, v93")
    a("v_mov_b32 v93, v92"); a("v_permlane16_swap_b32 v92, v93"); a("v_add_f32 v92, v92, v93")
    a(f"ds_write_b32 v49, v92 offset:{L_ST}")
    a("v_lshlrev_b32 v49, 3, v27")
    a("s_waitcnt lgkmcnt(0)"); a("s_barrier")
    a("s_cmp_eq_u32 s3, 3"); a("s_cbranch_scc0 L_fin")
    for w in range(4): a(f"ds_read_b64 v[{76+2*w}:{77+2*w}], v49 offset:{L_ST+64*w}")
    for w in range(4): a(f"ds_read_b128 v[{128+4*w}:{131+4*w}], v63 offset:{L_TX+512*w}")
    for w in range(4): a(f"ds_read_b128 v[{144+4*w}:{147+4*w}], v63 offset:{L_TX+512*w+256}")
    a("s_waitcnt lgkmcnt(8)")
    for k in range(2):
        a(f"v_add_f32 v{76+k}, v{76+k}, v{78+k}"); a(f"v_add_f32 v{80+k}, v{80+k}, v{82+k}")
    for k in range(2): a(f"v_add_f32 v{76+k}, v{76+k}, v{80+k}")
    a(f"v_mul_f32 v76, {f32(1/512)}, v76"); a(f"v_mul_f32 v77, {f32(1/512)}, v77")
    a("v_fma_f32 v77, -v76, v76, v77"); a("v_max_f32 v77, 0, v77")
    bf16r("v77"); bf16r("v76")
    a(f"v_add_f32 v77, {f32(1e-5)}, v77"); bf16r("v77")
    a("v_sqrt_f32 v77, v77"); bf16r("v77"); a("v_rcp_f32 v77, v77")
    a("s_waitcnt lgkmcnt(0)")
    for base, cs in ((128, 104), (144, 108)):
        for r in range(4):
            a(f"v_add_f32 v{base+r}, v{base+r}, v{base+4+r}"); a(f"v_add_f32 v{base+8+r}, v{base+8+r}, v{base+12+r}")
        for r in range(4): a(f"v_add_f32 v{base+r}, v{base+r}, v{base+8+r}")
        for r in range(4): a(f"v_fma_f32 v{base+r}, -v76, v{cs+r}, v{base+r}")
        for r in range(4): a(f"v_mul_f32 v{base+r}, v{base+r}, v77")
        for r in range(2): a(f"v_cvt_pk_bf16_f32 v{base+4+r}, v{base+2*r}, v{base+2*r+1}")
        for r in range(2):
            a(f"v_lshlrev_b32 v{base+2*r}, 16, v{base+4+r}"); a(f"v_and_b32 v{base+2*r+1}, 0xffff0000, v{base+4+r}")
    for r in range(4): a(f"v_max_f32 v{128+r}, 0, v{128+r}")
    for r in range(4): a(f"v_mul_f32 v{128+r}, v{128+r}, v{144+r}")
    for r in range(2): a(f"v_cvt_pk_bf16_f32 v{132+r}, v{128+2*r}, v{129+2*r}")
    a("s_mov_b64 exec, 0x00ff00ff")
    for r in range(2): a(f"v_min_u32 v{132+r}, -2, v{132+r}")
    a("buffer_store_dwordx2 v[132:133], v70, s[32:35], 0 offen sc1")
    a("s_mov_b64 exec, -1")
    stamp(11)
    a("s_branch L_fin")
    a("L_s4:")
    a("v_lshlrev_b32 v60, 5, v60"); a("v_lshl_add_u32 v60, v61, 3, v60")
    a(f"s_mul_i32 s58, s3, {448*32}"); a(f"s_add_u32 s58, s58, {L_WD}"); a("v_add_u32 v60, s58, v60")
    for u in range(7):
        for hf in range(2):
            for sec in range(2): trread(128 + 8*u + 4*hf + 2*sec, "v60", (64*u + 8*hf + 4*sec) * 32)
        if u in (2, 5): a("s_waitcnt lgkmcnt(4)")
    a("v_lshrrev_b32 v49, 1, v74"); a("v_lshlrev_b32 v49, 7, v49"); a("v_lshl_add_u32 v49, v27, 4, v49")
    a("v_and_b32 v50, 1, v74"); a("v_lshl_add_u32 v49, v50, 3, v49")
    a("s_lshl_b32 s58, s89, 8"); a(f"s_add_u32 s58, s58, {WS_H}"); a("v_add_u32 v49, s58, v49")
    a("v_lshlrev_b32 v50, 10, v27"); a("v_lshl_add_u32 v50, v74, 3, v50"); a("s_lshl_b32 s58, s89, 5"); a("v_add_u32 v50, s58, v50")
    a(f"s_mul_i32 s59, s3, {7*1024}"); a(f"s_add_u32 s59, s59, {WS_G}"); a("s_add_u32 s92, s59, 4096")
    a("s_waitcnt lgkmcnt(0)")
    loads = [f"buffer_load_dwordx4 v[{76+4*u}:{79+4*u}], v62, s[32:35], {'s59' if u < 4 else 's92'} offen offset:{(u&3)*1024} sc1" for u in range(7)]
    loads.append("buffer_load_dwordx2 v[104:105], v49, s[32:35], 0 offen sc1")
    poll("L_pG", loads, range(76, 106))
    stamp(10)
    for u in range(7):
        for hf in range(2):
            a(f"v_mfma_f32_16x16x32_bf16 v[{108+4*hf}:{111+4*hf}], v[{128+8*u+4*hf}:{131+8*u+4*hf}], v[{76+4*u}:{79+4*u}], {'0' if u == 0 else 'v[%d:%d]' % (108+4*hf, 111+4*hf)}")
    for r in range(4): a(f"v_add_f32_dpp v{108+r}, v{112+r}, v{108+r} row_ror:8 row_mask:0xf bank_mask:0xf")
    a("s_mov_b32 exec_lo, 0x00ff00ff"); a("s_mov_b32 exec_hi, 0x00ff00ff")
    a(f"ds_write_b128 v26, v[108:111] offset:{L_TX}")
    a("s_waitcnt lgkmcnt(0)"); a("s_barrier")
    a("s_cmp_eq_u32 s3, 3"); a("s_cbranch_scc0 L_fin")
    for w in range(4): a(f"ds_read_b128 v[{128+4*w}:{131+4*w}], v63 offset:{L_TX+512*w}")
    for r in range(2):
        a(f"v_lshlrev_b32 v{76+2*r}, 16, v{104+r}"); a(f"v_and_b32 v{77+2*r}, 0xffff0000, v{104+r}")
    a("s_waitcnt lgkmcnt(0)")
    for r in range(4):
        a(f"v_add_f32 v{128+r}, v{128+r}, v{132+r}"); a(f"v_add_f32 v{136+r}, v{136+r}, v{140+r}")
    for r in range(4): a(f"v_add_f32 v{128+r}, v{128+r}, v{136+r}")
    for r in range(2): a(f"v_cvt_pk_bf16_f32 v{132+r}, v{128+2*r}, v{129+2*r}")
    for r in range(2):
        a(f"v_lshlrev_b32 v{128+2*r}, 16, v{132+r}"); a(f"v_and_b32 v{129+2*r}, 0xffff0000, v{132+r}")
    for r in range(4): a(f"v_add_f32 v{128+r}, v{128+r}, v{76+r}")
    for r in range(2): a(f"v_cvt_pk_bf16_f32 v{132+r}, v{128+2*r}, v{129+2*r}")
    a("buffer_store_dwordx2 v[132:133], v50, s[36:39], 0 offen")
    stamp(11)
    a("L_fin:")
    if stamps:
        a("s_mov_b64 exec, -1")
        stamp(12)
        a("s_getreg_b32 s92, hwreg(HW_REG_XCC_ID)"); a("v_writelane_b32 v73, s92, 15")
        a("s_lshl_b32 s58, s2, 2"); a("s_add_u32 s58, s58, s3"); a("s_lshl_b32 s58, s58, 6"); a(f"s_add_u32 s58, s58, {WS_ST}")
        a("v_lshlrev_b32 v48, 2, v1"); a("s_mov_b64 exec, 0xffff")
        a("buffer_store_dword v73, v48, s[32:35], s58 offen")
    a("L_end:")
    a("s_endpgm")
    body = a.finish()
    head = HEADER + f"; @launch grid=(256,1,1) block=(256,1,1) lds={L_SIZE}\n" + '.amdgcn_target "amdgcn-amd-amdhsa--gfx950"\n.text\n' + \
        f".globl {NAME}\n.p2align 8\n.type {NAME},@function\n"
    tail = f""".section .rodata,"a"
.p2align 6
.amdhsa_kernel {NAME}
  .amdhsa_next_free_vgpr 384
  .amdhsa_next_free_sgpr 102
  .amdhsa_accum_offset 256
  .amdhsa_group_segment_fixed_size 0
  .amdhsa_kernarg_size 96
  .amdhsa_user_sgpr_count 2
  .amdhsa_user_sgpr_kernarg_segment_ptr 1
  .amdhsa_system_sgpr_workgroup_id_x 1
.end_amdhsa_kernel
"""
    return head + body + tail

if __name__ == "__main__":
    kw = eval("dict(%s)" % (sys.argv[2] if len(sys.argv) > 2 else ""))
    open(sys.argv[1], "w").write(gen(**kw))
```

```python
import sys, struct
sys.path.insert(0, __file__.rsplit('/', 1)[0])
from asmlib import Asm

NAME = "sequential_preLN__mha_block_cached__glu_gated_reglu__decode_kernel"
HEADER = open(__file__.rsplit('/', 1)[0] + '/header.txt').read()

def f32(x): return "0x%08x" % struct.unpack('<I', struct.pack('<f', x))[0]

WS_P, WS_H, WS_G, WS_ST, WS_SIZE = 0, 0x80000, 0x82000, 0x100000, 0x140000
L_QP, L_OP, L_ML, L_ST, L_TX, L_SP, L_WA, L_WD, L_SIZE = 0, 2048, 4096, 4160, 4608, 7168, 8192, 8192, 73728
RING = 128
NB = 32
SPIN = 200000

def gen(D=5, pol="nt", wpol="", stamps=False, early=(2, 7, 12, 17), n1=5, kq=2, nbar=2, sleep=0, fpol="", hmap=0, D2=16, nl2=1, vpol=None, lead=0, xp=(), sig="q", D1=None, hi=1, hirole=(1, 3)):
    a = Asm()
    vm = []
    def vwait(tag):
        n = len(vm) - 1 - vm.index(tag)
        a(f"s_waitcnt vmcnt({min(n, 63)})")
    def stamp(k):
        if stamps:
            a("s_memrealtime s[94:95]"); a("s_waitcnt lgkmcnt(0)"); a(f"v_writelane_b32 v73, s94, {k}")
    def allred(op, v, t):
        for n in (8, 4, 2, 1): a(f"{op}_dpp {v}, {v}, {v} row_ror:{n} row_mask:0xf bank_mask:0xf")
        for sw in ("v_permlane16_swap_b32", "v_permlane32_swap_b32"):
            a(f"v_mov_b32 {t}, {v}"); a(f"{sw} {v}, {t}"); a(f"{op} {v}, {v}, {t}")
    def bf16r(v, src=None):
        src = src or v
        a(f"v_cvt_pk_bf16_f32 {v}, {src}, {src}"); a(f"v_and_b32 {v}, 0xffff0000, {v}")
    def srd(d, lo, hi, size, add=None):
        if add is None:
            a(f"s_mov_b32 s{d}, s{lo}"); a(f"s_mov_b32 s{d+1}, s{hi}")
        else:
            a(f"s_add_u32 s{d}, s{lo}, {add}"); a(f"s_addc_u32 s{d+1}, s{hi}, 0")
        a(f"s_mov_b32 s{d+2}, {size}"); a(f"s_mov_b32 s{d+3}, 0x20000")
    def ring(j): j %= NB; return f"v[{RING+4*j}:{RING+4*j+3}]"
    cur = {"pol": pol}
    def sload(j, nxt):
        s, b = ("s[12:15]", "s55") if nxt else ("s[8:11]", "s54")
        a(f"buffer_load_dwordx4 {ring(j)}, v{2+(j>>2)}, {s}, {b} offen offset:{(j&3)*1024} {cur['pol']}")
    def masks(t, src, lane):
        for r in range(4):
            a(f"v_and_b32_dpp v{18+4*(t&1)+r}, {src}, v{14+r} row_newbcast:{lane} row_mask:0xf bank_mask:0xf")
    def mop(t): return f"v[{18+4*(t&1)}:{21+4*(t&1)}]"
    def bitrev(t): return ((t & 1) << 3) | ((t & 2) << 1) | ((t & 4) >> 1) | ((t & 8) >> 3)
    def poll(label, loads, regs, pre=None):
        a(f"s_mov_b32 s88, {SPIN}")
        a(f"{label}:")
        for l in loads: a(l)
        if pre: pre()
        a("s_waitcnt vmcnt(0)")
        r = list(regs)
        a(f"v_max3_u32 v48, v{r[0]}, v{r[1]}, v{r[2]}"); r = r[3:]
        while len(r) >= 2:
            a(f"v_max3_u32 v48, v48, v{r[0]}, v{r[1]}"); r = r[2:]
        if r: a(f"v_max_u32 v48, v48, v{r[0]}")
        a("v_cmp_eq_u32 vcc, -1, v48")
        a(f"s_cbranch_vccz {label}_ok")
        if sleep: a(f"s_sleep {sleep}")
        a("s_sub_u32 s88, s88, 1")
        a(f"s_cbranch_scc0 {label}")
        a(f"{label}_ok:")

    def dma_setup():
        a("v_mov_b32 v62, 0"); a("s_mov_b32 s93, 0")
        a("s_mov_b32 s96, 0"); a("s_mov_b32 s97, 0"); a("s_mov_b32 s100, 0")
        a("s_cmp_eq_u32 s7, 1"); a("s_cbranch_scc0 L_dmaD")
        a("v_lshrrev_b32 v62, 2, v1"); a("s_movk_i32 s58, 3584"); a("v_mul_u32_u24 v62, s58, v62")
        a("v_and_b32 v63, 3, v1"); a("v_lshl_add_u32 v62, v63, 4, v62")
        a("s_lshl_b32 s58, s89, 6"); a("v_add_u32 v62, s58, v62")
        a(f"s_mul_i32 s96, s3, {128*3584}"); a("s_mov_b32 s97, s96")
        a("s_lshl_b32 s98, s3, 13"); a(f"s_add_u32 s98, s98, {L_WA}"); a("s_add_u32 s99, s98, 32768")
        a(f"s_mov_b32 s100, {16*3584}"); a("s_mov_b32 s101, 1024"); a("s_mov_b32 s93, 8")
        a("L_dmaD:")
        a("s_cmp_eq_u32 s7, 3"); a("s_cbranch_scc0 L_dmaX")
        a("v_lshrrev_b32 v62, 1, v1"); a("v_lshlrev_b32 v62, 10, v62"); a("v_and_b32 v63, 1, v1"); a("v_lshl_add_u32 v62, v63, 4, v62")
        a("s_lshl_b32 s58, s89, 5"); a("v_add_u32 v62, s58, v62")
        for d in (40, 44):
            a(f"s_mov_b32 s{d}, s80"); a(f"s_mov_b32 s{d+1}, s81"); a(f"s_mov_b32 s{d+2}, {1792*1024}")
        a(f"s_mul_i32 s96, s3, {448*1024}"); a("s_add_u32 s97, s96, 32768")
        a(f"s_mul_i32 s98, s3, {448*32}"); a(f"s_add_u32 s98, s98, {L_WD}"); a("s_add_u32 s99, s98, 1024")
        a("s_mov_b32 s100, 65536"); a("s_mov_b32 s101, 2048"); a("s_mov_b32 s93, 7")
        a("L_dmaX:")
        if "nodma" in xp: a("s_mov_b32 s93, 0")
        if "lindma" in xp: a("v_lshlrev_b32 v62, 4, v1"); a("s_lshl_b32 s58, s89, 10"); a("v_add_u32 v62, s58, v62")
    def lap_steps(DD, pair, consume):
        e = lead if pair else 0
        for j in range(e): sload((DD + j) % NB, DD + j >= NB)
        if pair: dma_pair()
        for i in range(NB):
            n = DD - 1 + max(0, e - i) + (2 if pair and i < DD + e else 0)
            a(f"s_waitcnt vmcnt({n})")
            if i >= e: sload((i + DD) % NB, i + DD >= NB)
            consume(i)
    def dma_pair():
        a("s_cmp_eq_u32 s93, 0")
        a("s_cselect_b32 s42, 0, s42"); a("s_cselect_b32 s46, 0, s46")
        a(f"s_cselect_b32 s98, {L_SP}, s98"); a(f"s_cselect_b32 s99, {L_SP}, s99"); a("s_cselect_b32 s101, 0, s101")
        a("s_cselect_b32 s93, 1, s93")
        a("s_mov_b32 m0, s98"); a("s_sub_u32 s93, s93, 1")
        a(f"buffer_load_dwordx4 v62, s[40:43], s96 offen {fpol} lds" if "regdma" not in xp else f"buffer_load_dwordx4 v[120:123], v62, s[40:43], s96 offen {fpol}")
        a("s_mov_b32 m0, s99"); a("s_add_u32 s96, s96, s100")
        a(f"buffer_load_dwordx4 v62, s[44:47], s97 offen {fpol} lds" if "regdma" not in xp else f"buffer_load_dwordx4 v[124:127], v62, s[44:47], s97 offen {fpol}")
        a("s_add_u32 s97, s97, s100"); a("s_add_u32 s98, s98, s101"); a("s_add_u32 s99, s99, s101")
    a(f"{NAME}:")
    a("s_cmp_ge_u32 s2, 256"); a("s_cbranch_scc1 L_end")
    a("s_load_dwordx16 s[64:79], s[0:1], 0")
    a("s_load_dwordx8 s[80:87], s[0:1], 64")
    a("v_lshrrev_b32 v1, 6, v0")
    a("v_readfirstlane_b32 s3, v1")
    a("v_and_b32 v1, 63, v0")
    if hmap == 0:
        a("s_lshr_b32 s4, s2, 5"); a("s_and_b32 s5, s2, 31"); a("s_mov_b32 s6, s2")
    else:
        a("s_lshr_b32 s4, s2, 5"); a("s_and_b32 s5, s2, 7"); a("s_lshl_b32 s5, s5, 2"); a("s_bfe_u32 s6, s2, 0x20003"); a("s_add_u32 s5, s5, s6")
        a("s_lshl_b32 s6, s4, 5"); a("s_add_u32 s6, s6, s5")
    a("v_lshrrev_b32 v74, 4, v1"); a("v_and_b32 v75, 15, v1")
    if stamps: a("v_mov_b32 v73, 0")
    a("v_lshlrev_b32 v48, 4, v1")
    a("s_lshl_b32 s58, s3, 12"); a("v_add_u32 v2, s58, v48")
    for k in range(1, 8): a(f"v_add_u32 v{2+k}, {k*16384}, v2")
    a("s_lshl_b32 s58, s3, 8"); a("v_lshlrev_b32 v49, 3, v75"); a("v_lshl_add_u32 v49, v74, 1, v49"); a("v_add_u32 v49, s58, v49")
    a("v_lshrrev_b32 v51, 1, v74")
    a("s_lshl_b32 s58, s3, 20"); a("v_lshlrev_b32 v58, 13, v74"); a("v_lshl_add_u32 v58, v75, 4, v58"); a("v_add_u32 v58, s58, v58")
    a("s_lshl_b32 s58, s3, 8"); a("v_lshlrev_b32 v59, 10, v74"); a("v_lshl_add_u32 v59, v75, 4, v59"); a("v_add_u32 v59, s58, v59")
    a("s_lshl_b32 s57, s4, 10")
    a("s_lshl_b32 s58, s5, 8")
    a("s_lshl_b32 s59, s6, 20")
    a("s_sub_u32 s92, 0x400000, s58")
    a("s_waitcnt lgkmcnt(0)")
    stamp(0)
    srd(28, 64, 65, 8192)
    a("buffer_load_dwordx4 v[52:55], v48, s[28:31], s57 offen"); vm.append("x")
    a("buffer_load_ushort v56, v49, s[28:31], s57 offen"); vm.append("xc0")
    a("buffer_load_ushort v57, v49, s[28:31], s57 offen offset:128"); vm.append("xc1")
    srd(20, 70, 71, "s92", "s58")
    srd(8, 66, 67, 0x100000, "s59")
    a("s_mov_b32 s54, 0")
    def wqload(t):
        a(f"s_mov_b32 s58, {t*32768}")
        a(f"buffer_load_dwordx4 a[{4*t}:{4*t+3}], v58, s[20:23], s58 offen {wpol}"); vm.append(f"wq{t}")
    kiss = 0
    def kload(nxt=False):
        nonlocal kiss
        sload(kiss % NB, kiss >= NB); vm.append(f"k{kiss}"); kiss += 1
    wiss = 0
    for j in range(n1):
        kload(); wqload(wiss); wqload(wiss + 1); wiss += 2
    a("s_add_u32 s16, s68, s59"); a("s_addc_u32 s17, s69, 0")
    a("s_mov_b32 s12, s8"); a("s_mov_b32 s13, s9"); a("s_mov_b32 s14, 0x100000"); a("s_mov_b32 s15, 0x20000")
    a("s_lshl_b32 s58, s5, 17"); srd(24, 72, 73, 0x20000, "s58")
    srd(32, 86, 87, WS_SIZE); srd(36, 82, 83, 8192)
    srd(40, 76, 77, 512*3584); srd(44, 78, 79, 512*3584)
    a("s_and_b32 s58, s2, 7"); a("s_lshr_b32 s92, s2, 3")
    a("s_mul_i32 s89, s58, 7"); a("s_add_u32 s89, s89, s92")
    a("s_cmp_lt_u32 s2, 56"); a("s_cselect_b32 s7, 1, 0")
    a("s_lshl_b32 s58, s58, 2"); a("s_add_u32 s58, s58, s92"); a("s_sub_u32 s58, s58, 28")
    a("s_cmp_ge_u32 s2, 224"); a("s_cselect_b32 s89, s58, s89"); a("s_cselect_b32 s7, 3, s7")
    a("s_sub_u32 s58, s2, 64"); a("s_cmp_lt_u32 s58, 64"); a("s_cselect_b32 s89, s58, s89"); a("s_cselect_b32 s7, 2, s7")
    a("v_lshrrev_b32 v68, 2, v75"); a("v_lshlrev_b32 v68, 15, v68"); a("v_lshl_add_u32 v68, v74, 4, v68")
    a("v_and_b32 v60, 3, v75"); a("v_lshl_add_u32 v68, v60, 5, v68")
    a("s_lshl_b32 s58, s3, 17"); a("s_lshr_b32 s92, s4, 1"); a("s_lshl_b32 s92, s92, 13"); a("s_add_u32 s58, s58, s92")
    a("s_lshl_b32 s92, s5, 8"); a("s_add_u32 s58, s58, s92")
    a("s_and_b32 s92, s4, 1"); a("s_lshl_b32 s92, s92, 7"); a("s_add_u32 s58, s58, s92"); a("v_add_u32 v68, s58, v68")
    a("v_lshlrev_b32 v69, 3, v75"); a("v_lshl_add_u32 v69, v51, 2, v69")
    a("v_lshrrev_b32 v50, 3, v75"); a("v_lshlrev_b32 v50, 10, v50"); a("v_and_b32 v60, 7, v75"); a("v_lshl_add_u32 v50, v60, 3, v50")
    a("v_lshl_add_u32 v50, v51, 2, v50")
    a("s_and_b32 s58, s89, 3"); a("s_lshl_b32 s58, s58, 11"); a("s_lshr_b32 s92, s89, 2"); a("s_lshl_b32 s92, s92, 6"); a("s_add_u32 s58, s58, s92")
    a("v_add_u32 v50, s58, v50")
    a("s_lshl_b32 s58, s89, 7"); a(f"s_add_u32 s58, s58, {WS_H}"); a("v_add_u32 v69, s58, v69")
    a("buffer_load_dword v71, v50, s[28:31], 0 offen"); vm.append("xr")
    a("v_lshlrev_b32 v70, 4, v75"); a("v_lshl_add_u32 v70, v74, 3, v70")
    a("s_lshl_b32 s58, s89, 2"); a("s_add_u32 s58, s58, s3"); a("s_lshl_b32 s58, s58, 7"); a(f"s_add_u32 s58, s58, {WS_G}"); a("v_add_u32 v70, s58, v70")
    a("s_cmp_eq_u32 s7, 2"); a("s_cbranch_scc0 L_noclr")
    if "noclr" in xp: a("s_branch L_noclr")
    for r in range(4): a(f"v_mov_b32 v{60+r}, -1")
    a("s_lshl_b32 s58, s89, 13"); a("s_lshl_b32 s92, s3, 11"); a("s_add_u32 s58, s58, s92")
    a("buffer_store_dwordx4 v[60:63], v48, s[32:35], s58 offen sc1")
    a("buffer_store_dwordx4 v[60:63], v48, s[32:35], s58 offen offset:1024 sc1")
    a("s_mov_b64 exec, 0x00ff00ff")
    a("buffer_store_dwordx2 v[60:61], v70, s[32:35], 0 offen sc1")
    a("s_cmp_eq_u32 s3, 0"); a("s_cbranch_scc0 L_noclr")
    a("s_mov_b32 exec_lo, 0xffff"); a("s_mov_b32 exec_hi, 0xffff")
    a("buffer_store_dword v60, v69, s[32:35], 0 offen sc1")
    a("L_noclr:")
    a("s_mov_b64 exec, -1")
    stamp(1)
    a("s_mov_b32 s60, 0xcccccccc"); a("s_mov_b32 s61, 0xcccccccc"); a("s_mov_b32 s62, 0xaaaaaaaa"); a("s_mov_b32 s63, 0xaaaaaaaa")
    a(f"s_mov_b32 s90, {f32(128 ** -0.5)}"); a(f"s_mov_b32 s91, {f32(1.4426950408889634)}")
    a("s_lshr_b32 s58, s2, 3"); a("s_and_b32 s58, s58, 3"); a("s_add_u32 s58, s58, 2")
    a("s_lshl_b32 s92, s3, 2"); a("s_add_u32 s92, s92, s7"); a("s_cmp_eq_u32 s92, 2"); a("s_cselect_b32 s57, s58, 99")
    if "nosig" in xp or sig != "lap": a("s_mov_b32 s57, 99")
    a("v_and_b32 v60, 1, v75"); a("v_lshlrev_b32 v60, 4, v60"); a("v_mov_b32 v61, 0xffff"); a("v_lshlrev_b32 v60, v60, v61")
    a("v_lshrrev_b32 v61, 1, v75")
    for r in range(4):
        a(f"v_cmp_eq_u32 vcc, {r}, v61"); a(f"v_cndmask_b32 v{14+r}, 0, v60, vcc")
    vwait("x")
    for k in range(4):
        a(f"v_lshlrev_b32 v{76+2*k}, 16, v{52+k}"); a(f"v_and_b32 v{77+2*k}, 0xffff0000, v{52+k}")
    a("v_add_f32 v84, v76, v77")
    for k in range(2, 8): a(f"v_add_f32 v84, v84, v{76+k}")
    allred("v_add_f32", "v84", "v85")
    a(f"v_mul_f32 v84, {f32(1/512)}, v84")
    for k in range(8): a(f"v_sub_f32 v{76+k}, v{76+k}, v84")
    a("v_mul_f32 v86, v76, v76")
    for k in range(1, 8): a(f"v_fmac_f32 v86, v{76+k}, v{76+k}")
    allred("v_add_f32", "v86", "v85")
    a(f"v_mul_f32 v86, {f32(1/512)}, v86")
    bf16r("v84"); bf16r("v86")
    a(f"v_add_f32 v86, {f32(1e-5)}, v86"); bf16r("v86")
    a("v_sqrt_f32 v86, v86"); bf16r("v86"); a("v_rcp_f32 v86, v86")
    vwait("xc1")
    for k in range(2):
        a(f"v_lshlrev_b32 v{56+k}, 16, v{56+k}"); a(f"v_sub_f32 v{56+k}, v{56+k}, v84"); bf16r(f"v{56+k}")
        a(f"v_mul_f32 v{56+k}, v{56+k}, v86"); a(f"v_cvt_pk_bf16_f32 v{66+k}, v{56+k}, v{56+k}")
    stamp(2)
    masks(0, "v66", 0)
    for t in range(32):
        vwait(f"wq{t}")
        a(f"v_mfma_f32_16x16x32_bf16 v[28:31], {mop(t)}, a[{4*t}:{4*t+3}], {'0' if t == 0 else 'v[28:31]'}")
        if wiss < 32: wqload(wiss); wiss += 1
        if int((t + 1) / kq) > int(t / kq) and kiss < NB: kload()
        if t < 31: masks(t + 1, "v66" if t + 1 < 16 else "v67", (t + 1) & 15)
    for j in range(nbar):
        if kiss < NB: kload()
    a("v_lshlrev_b32 v27, 5, v75"); a("v_lshl_add_u32 v26, v74, 4, v27"); a("s_lshl_b32 s58, s3, 9"); a("v_add_u32 v26, s58, v26")
    a("s_mov_b32 exec_hi, 0")
    a(f"ds_write_b128 v26, v[28:31] offset:{L_QP}")
    a("s_mov_b64 exec, -1")
    a("s_waitcnt lgkmcnt(0)"); a("s_barrier")
    if sig == "q" and "nosig" not in xp:
        a("s_lshl_b32 s58, s3, 2"); a("s_add_u32 s58, s58, s7"); a("s_cmp_eq_u32 s58, 2"); a("s_cbranch_scc0 L_nosigq")
        a("s_lshl_b32 s58, s89, 2"); a("v_mov_b32 v60, s58"); a("v_mov_b32 v61, -1"); a("s_mov_b64 exec, 1")
        a("global_store_dword v60, v61, s[84:85] sc1")
        a("s_mov_b64 exec, -1")
        a("L_nosigq:")
    for w in range(4):
        for hh in range(2): a(f"ds_read_b128 v[{76+8*w+4*hh}:{79+8*w+4*hh}], v27 offset:{L_QP+512*w+16*hh}")
    a("s_waitcnt lgkmcnt(0)")
    for k in range(8):
        a(f"v_add_f32 v{76+k}, v{76+k}, v{84+k}"); a(f"v_add_f32 v{92+k}, v{92+k}, v{100+k}")
    for k in range(8): a(f"v_add_f32 v{76+k}, v{76+k}, v{92+k}")
    for k in range(4): a(f"v_cvt_pk_bf16_f32 v{10+k}, v{76+2*k}, v{77+2*k}")
    a("v_mov_b32 v64, 0xff800000"); a("v_mov_b32 v65, 0")
    stamp(3)

    def kconsume(i):
        t = i & 15
        x = f"v{48 + (t & 1)}" if True else None
        base = RING + 4 * i
        a(f"v_dot2_f32_bf16 {x}, v{base}, v10, 0")
        for r in range(1, 4): a(f"v_dot2_f32_bf16 {x}, v{base+r}, v{10+r}, {x}")
        if t & 1:
            d = f"v{50 + ((t >> 1) & 1)}"
            a(f"v_add_f32_dpp {d}, v48, v48 row_ror:8 row_mask:0xf bank_mask:0x3")
            a(f"v_add_f32_dpp {d}, v49, v49 row_ror:8 row_mask:0xf bank_mask:0xc")
        if t & 3 == 3:
            d = f"v{52 + ((t >> 2) & 1)}"
            a(f"v_add_f32_dpp {d}, v50, v50 row_half_mirror row_mask:0xf bank_mask:0x5")
            a(f"v_add_f32_dpp {d}, v51, v51 row_half_mirror row_mask:0xf bank_mask:0xa")
        if t & 7 == 7:
            d = f"v{54 + ((t >> 3) & 1)}"
            a("v_add_f32_dpp v52, v52, v52 quad_perm:[2,3,0,1] row_mask:0xf bank_mask:0xf")
            a("v_add_f32_dpp v53, v53, v53 quad_perm:[2,3,0,1] row_mask:0xf bank_mask:0xf")
            a(f"v_cndmask_b32 {d}, v52, v53, s[60:61]")
        if t == 15:
            s = f"v{46 + (i >> 4)}"
            a("v_add_f32_dpp v54, v54, v54 quad_perm:[1,0,3,2] row_mask:0xf bank_mask:0xf")
            a("v_add_f32_dpp v55, v55, v55 quad_perm:[1,0,3,2] row_mask:0xf bank_mask:0xf")
            a(f"v_cndmask_b32 {s}, v54, v55, s[62:63]")
            bf16r(s); a(f"v_mul_f32 {s}, s90, {s}"); bf16r(s)
            a(f"v_max_f32 v64, v64, {s}")
    a(f"s_mov_b32 s55, {NB*4096}")
    left = NB + D - kiss
    early = list(early)
    while early and early[-1] >= NB - (left - len(early)): early.pop()
    sched = early + list(range(NB - (left - len(early)), NB))
    assert len(set(sched)) == left, (sched, left)
    for i in range(NB):
        vwait(f"k{i}")
        if i in sched:
            assert kiss - NB < i
            kload()
        kconsume(i)
    stamp(4)
    a("s_mov_b32 s54, s55"); a(f"s_add_u32 s55, s55, {NB*4096}")
    for k in range(2): a(f"v_mov_b32 v{44+k}, v{46+k}")
    if D1 is None: D1 = D
    def k1load():
        nonlocal kiss
        j = kiss - NB
        sload(j % NB, j >= NB); vm.append(f"k{kiss}"); kiss += 1
    for j in range(D1 - D): k1load()
    for i in range(NB):
        vwait(f"k{NB+i}")
        if kiss < 2 * NB + D: k1load()
        a(f"s_mov_b32 s58, {i*4096}")
        if "nowo" not in xp: a(f"buffer_load_dwordx4 a[{4*i}:{4*i+3}], v59, s[24:27], s58 offen {wpol}"); vm.append(f"wo{i}")
        kconsume(i)
    a("s_mov_b32 s56, 2")
    dma_setup()
    def kloop(sfx, DD):
        a(".p2align 3")
        a(f"L_kloop{sfx}:")
        a("s_mov_b32 s54, s55"); a(f"s_add_u32 s55, s55, {NB*4096}")
        a("s_cmp_eq_u32 s56, 7")
        a("s_cselect_b32 s12, s16, s12"); a("s_cselect_b32 s13, s17, s13"); a("s_cselect_b32 s55, 0, s55")
        a("s_cmp_eq_u32 s56, s57"); a(f"s_cbranch_scc0 L_nosig{sfx}")
        a("s_lshl_b32 s58, s89, 2"); a("v_mov_b32 v60, s58"); a("v_mov_b32 v61, -1"); a("s_mov_b64 exec, 1")
        a("global_store_dword v60, v61, s[84:85] sc1")
        a("s_mov_b64 exec, -1")
        a(f"L_nosig{sfx}:")
        for k in range(14): a(f"v_mov_b32 v{32+k}, v{34+k}")
        lap_steps(DD, "nokdma" not in xp, kconsume)
        a("s_add_u32 s56, s56, 1"); a("s_cmp_lt_u32 s56, 8"); a(f"s_cbranch_scc1 L_kloop{sfx}")
    if hi:
        for r in hirole: a(f"s_cmp_eq_u32 s7, {r}"); a("s_cbranch_scc1 L_khi")
    kloop("A", D)
    if hi:
        a("s_branch L_kdone")
        a("L_khi:")
        for j in range(D, D + hi): sload(j, True)
        kloop("B", D + hi)
        a("L_kdone:")
    stamp(5)
    allred("v_max_f32", "v64", "v48")
    a("v_mul_f32 v64, s91, v64"); a("v_sub_f32 v64, 0, v64")
    a("s_mov_b32 s8, s12"); a("s_mov_b32 s9, s13"); a("s_mov_b32 s56, 0")
    for r in range(4): a(f"v_mov_b32 v{28+r}, 0")
    if vpol is not None: cur["pol"] = vpol
    def vlap(name, DD, last, lim):
        a(".p2align 3")
        a(f"{name}:")
        a("s_mov_b32 s54, s55"); a(f"s_add_u32 s55, s55, {NB*4096}")
        for k in range(2):
            a(f"v_fma_f32 v{56+k}, v{32+k}, s91, v64"); a(f"v_exp_f32 v{56+k}, v{56+k}")
            a(f"v_add_f32 v65, v65, v{56+k}"); a(f"v_cvt_pk_bf16_f32 v{66+k}, v{56+k}, v{56+k}")
        for k in range(14): a(f"v_mov_b32 v{32+k}, v{34+k}")
        masks(0, "v66", 0)
        if not last:
            a("s_cmp_eq_u32 s56, 3"); a("s_cbranch_scc0 L_nochk")
            a("v_lshlrev_b32 v60, 2, v1")
            a("global_load_dword v72, v60, s[84:85] sc1")
            a("L_nochk:")
        else:
            a("s_cmp_eq_u32 s56, 7"); a("s_cbranch_scc0 L_nolast")
            allred("v_add_f32", "v65", "v48")
            a("s_lshl_b32 s58, s3, 3"); a("v_mov_b32 v48, s58"); a("s_mov_b64 exec, 1")
            a(f"ds_write_b64 v48, v[64:65] offset:{L_ML}")
            a("s_mov_b64 exec, -1")
            if "nosig" in xp: a("s_branch L_nolast")
            a("v_cmp_ne_u32 vcc, -1, v72"); a("s_cbranch_vccz L_nolast")
            a(f"s_mov_b32 s88, {SPIN}"); a("v_lshlrev_b32 v60, 2, v1")
            a("L_cnt:")
            a("s_sleep 8"); a("global_load_dword v72, v60, s[84:85] sc1"); a("s_waitcnt vmcnt(0)")
            a("v_cmp_ne_u32 vcc, -1, v72"); a("s_cbranch_vccz L_nolast")
            a("s_sub_u32 s88, s88, 1"); a("s_cbranch_scc0 L_cnt")
            a("L_nolast:")
        def vconsume(i):
            a(f"v_mfma_f32_16x16x32_bf16 v[28:31], {mop(i)}, {ring(i)}, v[28:31]")
            if i < NB - 1: masks(i + 1, f"v{66 + ((i + 1) >> 4)}", bitrev((i + 1) & 15))
        lap_steps(DD, not last, vconsume)
        a("s_add_u32 s56, s56, 1"); a(f"s_cmp_lt_u32 s56, {lim}"); a(f"s_cbranch_scc1 {name}")
    vlap("L_vloopA", D, False, 8 - nl2)
    for j in range(D, D2): sload(j, True)
    vlap("L_vloopB", D2, True, 8)
    stamp(6)
    a("v_lshlrev_b32 v27, 4, v75"); a("v_lshl_add_u32 v27, v74, 2, v27")
    a("v_mov_b32 v48, 0")
    a("s_mov_b32 exec_hi, 0")
    a(f"ds_write_b128 v26, v[28:31] offset:{L_OP}")
    a("s_mov_b64 exec, -1")
    a("s_waitcnt lgkmcnt(0)"); a("s_barrier")
    a(f"ds_read_b128 v[76:79], v48 offset:{L_ML}"); a(f"ds_read_b128 v[80:83], v48 offset:{L_ML+16}")
    for w in range(4): a(f"ds_read2st64_b32 v[{84+2*w}:{85+2*w}], v27 offset0:{L_OP//256+2*w} offset1:{L_OP//256+2*w+1}")
    a("s_waitcnt lgkmcnt(4)")
    a("v_min_f32 v48, v76, v78"); a("v_min3_f32 v48, v48, v80, v82")
    for w in range(4): a(f"v_sub_f32 v{76+2*w}, v48, v{76+2*w}")
    for w in range(4): a(f"v_exp_f32 v{76+2*w}, v{76+2*w}")
    a("v_mul_f32 v49, v76, v77")
    for w in range(1, 4): a(f"v_fmac_f32 v49, v{76+2*w}, v{77+2*w}")
    a("v_rcp_f32 v49, v49")
    a("s_waitcnt lgkmcnt(0)")
    for k in range(2):
        a(f"v_mul_f32 v{56+k}, v76, v{84+k}")
        for w in range(1, 4): a(f"v_fmac_f32 v{56+k}, v{76+2*w}, v{84+2*w+k}")
    for k in range(2):
        a(f"v_mul_f32 v{56+k}, v{56+k}, v49"); a(f"v_cvt_pk_bf16_f32 v{66+k}, v{56+k}, v{56+k}")
    masks(0, "v66", 0)
    for t in range(32):
        if t < 31: masks(t + 1, "v66" if t + 1 < 16 else "v67", (t + 1) & 15)
        a(f"v_mfma_f32_16x16x32_bf16 v[28:31], {mop(t)}, a[{4*t}:{4*t+3}], {'0' if t == 0 else 'v[28:31]'}")
    a("s_mov_b32 s58, -2")
    a("s_mov_b32 exec_hi, 0")
    for r in range(4): a(f"v_min_u32 v{28+r}, s58, v{28+r}")
    a("buffer_store_dwordx4 v[28:31], v68, s[32:35], 0 offen sc1")
    a("s_mov_b64 exec, -1")
    stamp(7)
    if stamps == 1:
        a("s_cmp_eq_u32 s3, 0"); a("s_cbranch_scc1 L_noack"); a("s_waitcnt vmcnt(0)"); stamp(13); a("L_noack:")
    a("v_lshlrev_b32 v62, 4, v1")
    a("v_lshrrev_b32 v60, 2, v75"); a("v_lshl_add_u32 v60, v74, 4, v60")
    a("v_and_b32 v61, 3, v1")
    a("s_cmp_eq_u32 s7, 1"); a("s_cbranch_scc1 L_s3")
    a("s_cmp_eq_u32 s7, 3"); a("s_cbranch_scc1 L_s4")
    a("s_lshl_b32 s58, s3, 2"); a("s_add_u32 s58, s58, s7"); a("s_cmp_eq_u32 s58, 2"); a("s_cbranch_scc0 L_fin")
    a("s_lshl_b32 s59, s89, 13"); a("s_add_u32 s92, s59, 4096")
    a("v_lshlrev_b32 v50, 16, v71"); a("v_and_b32 v51, 0xffff0000, v71")
    poll("L_pP", [f"buffer_load_dwordx4 v[{76+4*u}:{79+4*u}], v62, s[32:35], {'s59' if u < 4 else 's92'} offen offset:{(u&3)*1024} sc1" for u in range(8)], range(76, 108))
    stamp(8)
    if stamps == 1: a(f"s_sub_u32 s94, {SPIN}, s88"); a("v_writelane_b32 v73, s94, 14")
    for st in (16, 8, 4):
        for r in range(st): a(f"v_add_f32 v{76+r}, v{76+r}, v{76+st+r}")
    a("v_permlane32_swap_b32 v76, v78"); a("v_permlane32_swap_b32 v77, v79")
    a("v_add_f32 v76, v76, v78"); a("v_add_f32 v77, v77, v79")
    a("v_mov_b32 v78, v76"); a("v_mov_b32 v79, v77")
    a("v_permlane16_swap_b32 v76, v78"); a("v_permlane16_swap_b32 v77, v79")
    a("v_add_f32 v76, v76, v78"); a("v_add_f32 v77, v77, v79")
    a("v_cvt_pk_bf16_f32 v76, v76, v77")
    a("v_and_b32 v77, 0xffff0000, v76"); a("v_lshlrev_b32 v76, 16, v76")
    a("v_add_f32 v76, v76, v50"); a("v_add_f32 v77, v77, v51")
    a("v_cvt_pk_bf16_f32 v76, v76, v77")
    a("s_mov_b32 exec_lo, 0xffff"); a("s_mov_b32 exec_hi, 0xffff")
    a("v_min_u32 v76, -2, v76")
    a("buffer_store_dword v76, v69, s[32:35], 0 offen sc1")
    stamp(9)
    a("s_branch L_fin")
    def trread(dst, addr, off): a(f"ds_read_b64_tr_b16 v[{dst}:{dst+1}], {addr} offset:{off}")
    a("L_s3:")
    a("v_lshlrev_b32 v60, 6, v60"); a("v_lshrrev_b32 v49, 1, v61"); a("v_lshl_add_u32 v60, v49, 15, v60")
    a("v_and_b32 v49, 1, v61"); a("v_lshl_add_u32 v60, v49, 3, v60")
    a("s_lshl_b32 s58, s3, 4"); a(f"s_add_u32 s58, s58, {L_WA}"); a("v_add_u32 v60, s58, v60")
    for u in range(8):
        for hf in range(2):
            for sec in range(2): trread(128 + 8*u + 4*hf + 2*sec, "v60", (64*u + 8*hf + 4*sec) * 64)
        if u in (2, 4, 6): a("s_waitcnt lgkmcnt(4)")
    for r in range(4): a(f"v_mov_b32 v{112+r}, 0x3f803f80")
    a("v_lshrrev_b32 v62, 1, v74"); a("v_lshlrev_b32 v62, 9, v62"); a("v_bfe_u32 v49, v75, 1, 2"); a("v_lshl_add_u32 v62, v49, 7, v62")
    a("v_and_b32 v49, 1, v75"); a("v_lshl_add_u32 v62, v49, 6, v62"); a("v_and_b32 v49, 1, v74"); a("v_lshl_add_u32 v62, v49, 5, v62")
    a("v_lshrrev_b32 v49, 3, v75"); a("v_lshl_add_u32 v62, v49, 4, v62")
    a(f"s_mov_b32 s59, {WS_H}"); a(f"s_mov_b32 s92, {WS_H+4096}")
    a("s_waitcnt lgkmcnt(0)")
    for k in range(16):
        a(f"v_mfma_f32_16x16x32_bf16 v[108:111], v[{128+4*k}:{131+4*k}], v[112:115], {'0' if k == 0 else 'v[108:111]'}")
    poll("L_pH", [f"buffer_load_dwordx4 v[{76+4*u}:{79+4*u}], v62, s[32:35], {'s59' if u < 4 else 's92'} offen offset:{(u&3)*1024} sc1" for u in range(8)], range(76, 108))
    stamp(10)
    for u in range(8):
        for hf in range(2):
            a(f"v_mfma_f32_16x16x32_bf16 v[{116+4*hf}:{119+4*hf}], v[{128+8*u+4*hf}:{131+8*u+4*hf}], v[{76+4*u}:{79+4*u}], {'0' if u == 0 else 'v[%d:%d]' % (116+4*hf, 119+4*hf)}")
            for k in (2*hf, 2*hf + 1):
                a(f"v_dot2_f32_bf16 v52, v{76+4*u+k}, v112, {'0' if u + k == 0 else 'v52'}")
                a(f"v_dot2_f32_bf16 v53, v{76+4*u+k}, v{76+4*u+k}, {'0' if u + k == 0 else 'v53'}")
    for r in range(2): a(f"v_add_f32_dpp v{52+r}, v{52+r}, v{52+r} row_ror:8 row_mask:0xf bank_mask:0xf")
    a("v_permlane32_swap_b32 v52, v53"); a("v_add_f32 v52, v52, v53")
    a("v_mov_b32 v53, v52"); a("v_permlane16_swap_b32 v52, v53"); a("v_add_f32 v52, v52, v53")
    a(f"v_mul_f32 v52, {f32(1/512)}, v52")
    a("v_mov_b32 v53, v52"); a("v_permlane32_swap_b32 v52, v53")
    for r in range(4): a(f"v_add_f32_dpp v{116+r}, v{120+r}, v{116+r} row_ror:8 row_mask:0xf bank_mask:0xf")
    a("v_fma_f32 v53, -v52, v52, v53"); a("v_max_f32 v53, 0, v53")
    bf16r("v53"); bf16r("v52")
    a(f"v_add_f32 v53, {f32(1e-5)}, v53"); bf16r("v53")
    a("v_sqrt_f32 v53, v53")
    for r in range(4): a(f"v_fma_f32 v{116+r}, -v52, v{108+r}, v{116+r}")
    bf16r("v53"); a("v_rcp_f32 v53, v53")
    for r in range(4): a(f"v_mul_f32 v{116+r}, v{116+r}, v53")
    for r in range(2): a(f"v_cvt_pk_bf16_f32 v{120+r}, v{116+2*r}, v{117+2*r}")
    for r in range(2): a(f"v_permlane32_swap_b32 v{120+r}, v{122+r}")
    for r in range(2):
        a(f"v_lshlrev_b32 v{116+2*r}, 16, v{120+r}"); a(f"v_and_b32 v{117+2*r}, 0xffff0000, v{120+r}")
        a(f"v_lshlrev_b32 v{124+2*r}, 16, v{122+r}"); a(f"v_and_b32 v{125+2*r}, 0xffff0000, v{122+r}")
    for r in range(4): a(f"v_max_f32 v{116+r}, 0, v{116+r}")
    for r in range(4): a(f"v_mul_f32 v{116+r}, v{116+r}, v{124+r}")
    for r in range(2): a(f"v_cvt_pk_bf16_f32 v{120+r}, v{116+2*r}, v{117+2*r}")
    a("s_mov_b64 exec, 0x00ff00ff")
    for r in range(2): a(f"v_min_u32 v{120+r}, -2, v{120+r}")
    a("buffer_store_dwordx2 v[120:121], v70, s[32:35], 0 offen sc1")
    stamp(11)
    a("s_branch L_fin")
    a("L_s4:")
    a("v_and_b32 v27, 7, v75"); a("v_lshlrev_b32 v63, 4, v27"); a("v_lshl_add_u32 v63, v74, 7, v63")
    a("s_lshl_b32 s58, s3, 9"); a("v_add_u32 v26, s58, v63")
    a("v_lshlrev_b32 v60, 5, v60"); a("v_lshl_add_u32 v60, v61, 3, v60")
    a(f"s_mul_i32 s58, s3, {448*32}"); a(f"s_add_u32 s58, s58, {L_WD}"); a("v_add_u32 v60, s58, v60")
    for u in range(7):
        for hf in range(2):
            for sec in range(2): trread(128 + 8*u + 4*hf + 2*sec, "v60", (64*u + 8*hf + 4*sec) * 32)
        if u in (2, 5): a("s_waitcnt lgkmcnt(4)")
    a("v_lshrrev_b32 v49, 1, v27"); a("v_lshlrev_b32 v49, 7, v49"); a("v_and_b32 v50, 1, v27"); a("v_lshl_add_u32 v49, v50, 6, v49")
    a("v_lshl_add_u32 v49, v74, 3, v49")
    a("s_lshr_b32 s58, s89, 1"); a("s_lshl_b32 s58, s58, 9"); a("s_and_b32 s92, s89, 1"); a("s_lshl_b32 s92, s92, 5"); a("s_add_u32 s58, s58, s92")
    a(f"s_add_u32 s58, s58, {WS_H}"); a("v_add_u32 v49, s58, v49")
    a("v_lshlrev_b32 v50, 10, v27"); a("v_lshl_add_u32 v50, v74, 3, v50"); a("s_lshl_b32 s58, s89, 5"); a("v_add_u32 v50, s58, v50")
    a(f"s_mul_i32 s59, s3, {7*1024}"); a(f"s_add_u32 s59, s59, {WS_G}"); a("s_add_u32 s92, s59, 4096")
    a("s_waitcnt lgkmcnt(0)")
    loads = [f"buffer_load_dwordx4 v[{76+4*u}:{79+4*u}], v62, s[32:35], {'s59' if u < 4 else 's92'} offen offset:{(u&3)*1024} sc1" for u in range(7)]
    loads.append("buffer_load_dwordx2 v[104:105], v49, s[32:35], 0 offen sc1")
    poll("L_pG", loads, range(76, 106))
    stamp(10)
    for u in range(7):
        for hf in range(2):
            a(f"v_mfma_f32_16x16x32_bf16 v[{108+4*hf}:{111+4*hf}], v[{128+8*u+4*hf}:{131+8*u+4*hf}], v[{76+4*u}:{79+4*u}], {'0' if u == 0 else 'v[%d:%d]' % (108+4*hf, 111+4*hf)}")
    for r in range(4): a(f"v_add_f32_dpp v{108+r}, v{112+r}, v{108+r} row_ror:8 row_mask:0xf bank_mask:0xf")
    a("s_mov_b32 exec_lo, 0x00ff00ff"); a("s_mov_b32 exec_hi, 0x00ff00ff")
    a(f"ds_write_b128 v26, v[108:111] offset:{L_TX}")
    a("s_waitcnt lgkmcnt(0)"); a("s_barrier")
    a("s_cmp_eq_u32 s3, 3"); a("s_cbranch_scc0 L_fin")
    for w in range(4): a(f"ds_read_b128 v[{128+4*w}:{131+4*w}], v63 offset:{L_TX+512*w}")
    for r in range(2):
        a(f"v_lshlrev_b32 v{76+2*r}, 16, v{104+r}"); a(f"v_and_b32 v{77+2*r}, 0xffff0000, v{104+r}")
    a("s_waitcnt lgkmcnt(0)")
    for r in range(4):
        a(f"v_add_f32 v{128+r}, v{128+r}, v{132+r}"); a(f"v_add_f32 v{136+r}, v{136+r}, v{140+r}")
    for r in range(4): a(f"v_add_f32 v{128+r}, v{128+r}, v{136+r}")
    for r in range(2): a(f"v_cvt_pk_bf16_f32 v{132+r}, v{128+2*r}, v{129+2*r}")
    for r in range(2):
        a(f"v_lshlrev_b32 v{128+2*r}, 16, v{132+r}"); a(f"v_and_b32 v{129+2*r}, 0xffff0000, v{132+r}")
    for r in range(4): a(f"v_add_f32 v{128+r}, v{128+r}, v{76+r}")
    for r in range(2): a(f"v_cvt_pk_bf16_f32 v{132+r}, v{128+2*r}, v{129+2*r}")
    a("buffer_store_dwordx2 v[132:133], v50, s[36:39], 0 offen")
    stamp(11)
    a("L_fin:")
    if stamps:
        a("s_mov_b64 exec, -1")
        stamp(12)
        a("s_getreg_b32 s92, hwreg(HW_REG_XCC_ID)"); a("v_writelane_b32 v73, s92, 15")
        a("s_lshl_b32 s58, s2, 2"); a("s_add_u32 s58, s58, s3"); a("s_lshl_b32 s58, s58, 6"); a(f"s_add_u32 s58, s58, {WS_ST}")
        a("v_lshlrev_b32 v48, 2, v1"); a("s_mov_b64 exec, 0xffff")
        a("buffer_store_dword v73, v48, s[32:35], s58 offen")
    a("L_end:")
    a("s_endpgm")
    body = a.finish()
    head = HEADER + f"; @launch grid=(256,1,1) block=(256,1,1) lds={L_SIZE}\n" + '.amdgcn_target "amdgcn-amd-amdhsa--gfx950"\n.text\n' + \
        f".globl {NAME}\n.p2align 8\n.type {NAME},@function\n"
    tail = f""".section .rodata,"a"
.p2align 6
.amdhsa_kernel {NAME}
  .amdhsa_next_free_vgpr 384
  .amdhsa_next_free_sgpr 102
  .amdhsa_accum_offset 256
  .amdhsa_group_segment_fixed_size 0
  .amdhsa_kernarg_size 96
  .amdhsa_user_sgpr_count 2
  .amdhsa_user_sgpr_kernarg_segment_ptr 1
  .amdhsa_system_sgpr_workgroup_id_x 1
.end_amdhsa_kernel
"""
    return head + body + tail

if __name__ == "__main__":
    kw = eval("dict(%s)" % (sys.argv[2] if len(sys.argv) > 2 else ""))
    open(sys.argv[1], "w").write(gen(**kw))
```

```python
import sys, struct
sys.path.insert(0, __file__.rsplit('/', 1)[0])
from asmlib import Asm

NAME = "sequential_preLN__mha_block_cached__glu_gated_reglu__decode_kernel"
HEADER = open(__file__.rsplit('/', 1)[0] + '/header.txt').read()

def f32(x): return "0x%08x" % struct.unpack('<I', struct.pack('<f', x))[0]

WS_P, WS_H, WS_G, WS_ST, WS_SIZE = 0, 0x80000, 0x82000, 0x100000, 0x140000
L_QP, L_OP, L_ML, L_ST, L_TX, L_SP, L_WA, L_WD, L_SIZE = 0, 2048, 4096, 4160, 4608, 7168, 8192, 8192, 73728
RING = 128
NB = 32
SPIN = 200000

def gen(D=5, pol="nt", wpol="", stamps=False, early=(2, 7, 12, 17), n1=5, kq=2, nbar=2, sleep=0, fpol="", hmap=0, D2=16, nl2=1, vpol=None, lead=0, xp=(), sig="q", D1=None, hi=1, hirole=(1, 3)):
    a = Asm()
    vm = []
    def vwait(tag):
        n = len(vm) - 1 - vm.index(tag)
        a(f"s_waitcnt vmcnt({min(n, 63)})")
    def stamp(k):
        if stamps:
            a("s_memrealtime s[94:95]"); a("s_waitcnt lgkmcnt(0)"); a(f"v_writelane_b32 v73, s94, {k}")
    def allred(op, v, t):
        for n in (8, 4, 2, 1): a(f"{op}_dpp {v}, {v}, {v} row_ror:{n} row_mask:0xf bank_mask:0xf")
        for sw in ("v_permlane16_swap_b32", "v_permlane32_swap_b32"):
            a(f"v_mov_b32 {t}, {v}"); a(f"{sw} {v}, {t}"); a(f"{op} {v}, {v}, {t}")
    def bf16r(v, src=None):
        src = src or v
        a(f"v_cvt_pk_bf16_f32 {v}, {src}, {src}"); a(f"v_and_b32 {v}, 0xffff0000, {v}")
    def srd(d, lo, hi, size, add=None):
        if add is None:
            a(f"s_mov_b32 s{d}, s{lo}"); a(f"s_mov_b32 s{d+1}, s{hi}")
        else:
            a(f"s_add_u32 s{d}, s{lo}, {add}"); a(f"s_addc_u32 s{d+1}, s{hi}, 0")
        a(f"s_mov_b32 s{d+2}, {size}"); a(f"s_mov_b32 s{d+3}, 0x20000")
    def ring(j): j %= NB; return f"v[{RING+4*j}:{RING+4*j+3}]"
    cur = {"pol": pol}
    def sload(j, nxt):
        s, b = ("s[12:15]", "s55") if nxt else ("s[8:11]", "s54")
        a(f"buffer_load_dwordx4 {ring(j)}, v{2+(j>>2)}, {s}, {b} offen offset:{(j&3)*1024} {cur['pol']}")
    def masks(t, src, lane):
        for r in range(4):
            a(f"v_and_b32_dpp v{18+4*(t&1)+r}, {src}, v{14+r} row_newbcast:{lane} row_mask:0xf bank_mask:0xf")
    def mop(t): return f"v[{18+4*(t&1)}:{21+4*(t&1)}]"
    def bitrev(t): return ((t & 1) << 3) | ((t & 2) << 1) | ((t & 4) >> 1) | ((t & 8) >> 3)
    def poll(label, loads, regs, pre=None):
        a(f"s_mov_b32 s88, {SPIN}")
        a(f"{label}:")
        for l in loads: a(l)
        if pre: pre()
        a("s_waitcnt vmcnt(0)")
        r = list(regs)
        a(f"v_max3_u32 v48, v{r[0]}, v{r[1]}, v{r[2]}"); r = r[3:]
        while len(r) >= 2:
            a(f"v_max3_u32 v48, v48, v{r[0]}, v{r[1]}"); r = r[2:]
        if r: a(f"v_max_u32 v48, v48, v{r[0]}")
        a("v_cmp_eq_u32 vcc, -1, v48")
        a(f"s_cbranch_vccz {label}_ok")
        if sleep: a(f"s_sleep {sleep}")
        a("s_sub_u32 s88, s88, 1")
        a(f"s_cbranch_scc0 {label}")
        a(f"{label}_ok:")

    def dma_setup():
        a("v_mov_b32 v62, 0"); a("s_mov_b32 s93, 0")
        a("s_mov_b32 s96, 0"); a("s_mov_b32 s97, 0"); a("s_mov_b32 s100, 0")
        a("s_cmp_eq_u32 s7, 1"); a("s_cbranch_scc0 L_dmaD")
        a("v_lshrrev_b32 v62, 2, v1"); a("s_movk_i32 s58, 3584"); a("v_mul_u32_u24 v62, s58, v62")
        a("v_and_b32 v63, 3, v1"); a("v_lshl_add_u32 v62, v63, 4, v62")
        a("s_lshl_b32 s58, s89, 6"); a("v_add_u32 v62, s58, v62")
        a(f"s_mul_i32 s96, s3, {128*3584}"); a("s_mov_b32 s97, s96")
        a("s_lshl_b32 s98, s3, 13"); a(f"s_add_u32 s98, s98, {L_WA}"); a("s_add_u32 s99, s98, 32768")
        a(f"s_mov_b32 s100, {16*3584}"); a("s_mov_b32 s101, 1024"); a("s_mov_b32 s93, 8")
        a("L_dmaD:")
        a("s_cmp_eq_u32 s7, 3"); a("s_cbranch_scc0 L_dmaX")
        a("v_lshrrev_b32 v62, 1, v1"); a("v_lshlrev_b32 v62, 10, v62"); a("v_and_b32 v63, 1, v1"); a("v_lshl_add_u32 v62, v63, 4, v62")
        a("s_lshl_b32 s58, s89, 5"); a("v_add_u32 v62, s58, v62")
        for d in (40, 44):
            a(f"s_mov_b32 s{d}, s80"); a(f"s_mov_b32 s{d+1}, s81"); a(f"s_mov_b32 s{d+2}, {1792*1024}")
        a(f"s_mul_i32 s96, s3, {448*1024}"); a("s_add_u32 s97, s96, 32768")
        a(f"s_mul_i32 s98, s3, {448*32}"); a(f"s_add_u32 s98, s98, {L_WD}"); a("s_add_u32 s99, s98, 1024")
        a("s_mov_b32 s100, 65536"); a("s_mov_b32 s101, 2048"); a("s_mov_b32 s93, 7")
        a("L_dmaX:")
        if "nodma" in xp: a("s_mov_b32 s93, 0")
        if "lindma" in xp: a("v_lshlrev_b32 v62, 4, v1"); a("s_lshl_b32 s58, s89, 10"); a("v_add_u32 v62, s58, v62")
    def lap_steps(DD, pair, consume):
        e = lead if pair else 0
        for j in range(e): sload((DD + j) % NB, DD + j >= NB)
        if pair: dma_pair()
        for i in range(NB):
            n = DD - 1 + max(0, e - i) + (2 if pair and i < DD + e else 0)
            a(f"s_waitcnt vmcnt({n})")
            if i >= e: sload((i + DD) % NB, i + DD >= NB)
            consume(i)
    def dma_pair():
        a("s_cmp_eq_u32 s93, 0")
        a("s_cselect_b32 s42, 0, s42"); a("s_cselect_b32 s46, 0, s46")
        a(f"s_cselect_b32 s98, {L_SP}, s98"); a(f"s_cselect_b32 s99, {L_SP}, s99"); a("s_cselect_b32 s101, 0, s101")
        a("s_cselect_b32 s93, 1, s93")
        a("s_mov_b32 m0, s98"); a("s_sub_u32 s93, s93, 1")
        a(f"buffer_load_dwordx4 v62, s[40:43], s96 offen {fpol} lds" if "regdma" not in xp else f"buffer_load_dwordx4 v[120:123], v62, s[40:43], s96 offen {fpol}")
        a("s_mov_b32 m0, s99"); a("s_add_u32 s96, s96, s100")
        a(f"buffer_load_dwordx4 v62, s[44:47], s97 offen {fpol} lds" if "regdma" not in xp else f"buffer_load_dwordx4 v[124:127], v62, s[44:47], s97 offen {fpol}")
        a("s_add_u32 s97, s97, s100"); a("s_add_u32 s98, s98, s101"); a("s_add_u32 s99, s99, s101")
    a(f"{NAME}:")
    a("s_cmp_ge_u32 s2, 256"); a("s_cbranch_scc1 L_end")
    a("s_load_dwordx16 s[64:79], s[0:1], 0")
    a("s_load_dwordx8 s[80:87], s[0:1], 64")
    a("v_lshrrev_b32 v1, 6, v0")
    a("v_readfirstlane_b32 s3, v1")
    a("v_and_b32 v1, 63, v0")
    if hmap == 0:
        a("s_lshr_b32 s4, s2, 5"); a("s_and_b32 s5, s2, 31"); a("s_mov_b32 s6, s2")
    else:
        a("s_lshr_b32 s4, s2, 5"); a("s_and_b32 s5, s2, 7"); a("s_lshl_b32 s5, s5, 2"); a("s_bfe_u32 s6, s2, 0x20003"); a("s_add_u32 s5, s5, s6")
        a("s_lshl_b32 s6, s4, 5"); a("s_add_u32 s6, s6, s5")
    a("v_lshrrev_b32 v74, 4, v1"); a("v_and_b32 v75, 15, v1")
    if stamps: a("v_mov_b32 v73, 0")
    a("v_lshlrev_b32 v48, 4, v1")
    a("s_lshl_b32 s58, s3, 12"); a("v_add_u32 v2, s58, v48")
    for k in range(1, 8): a(f"v_add_u32 v{2+k}, {k*16384}, v2")
    a("s_lshl_b32 s58, s3, 8"); a("v_lshlrev_b32 v49, 3, v75"); a("v_lshl_add_u32 v49, v74, 1, v49"); a("v_add_u32 v49, s58, v49")
    a("v_lshrrev_b32 v51, 1, v74")
    a("s_lshl_b32 s58, s3, 20"); a("v_lshlrev_b32 v58, 13, v74"); a("v_lshl_add_u32 v58, v75, 4, v58"); a("v_add_u32 v58, s58, v58")
    a("s_lshl_b32 s58, s3, 8"); a("v_lshlrev_b32 v59, 10, v74"); a("v_lshl_add_u32 v59, v75, 4, v59"); a("v_add_u32 v59, s58, v59")
    a("s_lshl_b32 s57, s4, 10")
    a("s_lshl_b32 s58, s5, 8")
    a("s_lshl_b32 s59, s6, 20")
    a("s_sub_u32 s92, 0x400000, s58")
    a("s_waitcnt lgkmcnt(0)")
    stamp(0)
    srd(28, 64, 65, 8192)
    a("buffer_load_dwordx4 v[52:55], v48, s[28:31], s57 offen"); vm.append("x")
    a("buffer_load_ushort v56, v49, s[28:31], s57 offen"); vm.append("xc0")
    a("buffer_load_ushort v57, v49, s[28:31], s57 offen offset:128"); vm.append("xc1")
    srd(20, 70, 71, "s92", "s58")
    srd(8, 66, 67, 0x100000, "s59")
    a("s_mov_b32 s54, 0")
    def wqload(t):
        a(f"s_mov_b32 s58, {t*32768}")
        a(f"buffer_load_dwordx4 a[{4*t}:{4*t+3}], v58, s[20:23], s58 offen {wpol}"); vm.append(f"wq{t}")
    kiss = 0
    def kload(nxt=False):
        nonlocal kiss
        sload(kiss % NB, kiss >= NB); vm.append(f"k{kiss}"); kiss += 1
    wiss = 0
    for j in range(n1):
        kload(); wqload(wiss); wqload(wiss + 1); wiss += 2
    a("s_add_u32 s16, s68, s59"); a("s_addc_u32 s17, s69, 0")
    a("s_mov_b32 s12, s8"); a("s_mov_b32 s13, s9"); a("s_mov_b32 s14, 0x100000"); a("s_mov_b32 s15, 0x20000")
    a("s_lshl_b32 s58, s5, 17"); srd(24, 72, 73, 0x20000, "s58")
    srd(32, 86, 87, WS_SIZE); srd(36, 82, 83, 8192)
    srd(40, 76, 77, 512*3584); srd(44, 78, 79, 512*3584)
    a("s_and_b32 s58, s2, 7"); a("s_lshr_b32 s92, s2, 3")
    a("s_mul_i32 s89, s58, 7"); a("s_add_u32 s89, s89, s92")
    a("s_cmp_lt_u32 s2, 56"); a("s_cselect_b32 s7, 1, 0")
    a("s_lshl_b32 s58, s58, 2"); a("s_add_u32 s58, s58, s92"); a("s_sub_u32 s58, s58, 28")
    a("s_cmp_ge_u32 s2, 224"); a("s_cselect_b32 s89, s58, s89"); a("s_cselect_b32 s7, 3, s7")
    a("s_sub_u32 s58, s2, 64"); a("s_cmp_lt_u32 s58, 64"); a("s_cselect_b32 s89, s58, s89"); a("s_cselect_b32 s7, 2, s7")
    a("v_lshrrev_b32 v68, 2, v75"); a("v_lshlrev_b32 v68, 15, v68"); a("v_lshl_add_u32 v68, v74, 4, v68")
    a("v_and_b32 v60, 3, v75"); a("v_lshl_add_u32 v68, v60, 5, v68")
    a("s_lshl_b32 s58, s3, 17"); a("s_lshr_b32 s92, s4, 1"); a("s_lshl_b32 s92, s92, 13"); a("s_add_u32 s58, s58, s92")
    a("s_lshl_b32 s92, s5, 8"); a("s_add_u32 s58, s58, s92")
    a("s_and_b32 s92, s4, 1"); a("s_lshl_b32 s92, s92, 7"); a("s_add_u32 s58, s58, s92"); a("v_add_u32 v68, s58, v68")
    a("v_lshlrev_b32 v69, 3, v75"); a("v_lshl_add_u32 v69, v51, 2, v69")
    a("v_lshrrev_b32 v50, 3, v75"); a("v_lshlrev_b32 v50, 10, v50"); a("v_and_b32 v60, 7, v75"); a("v_lshl_add_u32 v50, v60, 3, v50")
    a("v_lshl_add_u32 v50, v51, 2, v50")
    a("s_and_b32 s58, s89, 3"); a("s_lshl_b32 s58, s58, 11"); a("s_lshr_b32 s92, s89, 2"); a("s_lshl_b32 s92, s92, 6"); a("s_add_u32 s58, s58, s92")
    a("v_add_u32 v50, s58, v50")
    a("s_lshl_b32 s58, s89, 7"); a(f"s_add_u32 s58, s58, {WS_H}"); a("v_add_u32 v69, s58, v69")
    a("buffer_load_dword v71, v50, s[28:31], 0 offen"); vm.append("xr")
    a("v_lshlrev_b32 v70, 4, v75"); a("v_lshl_add_u32 v70, v74, 3, v70")
    a("s_lshl_b32 s58, s89, 2"); a("s_add_u32 s58, s58, s3"); a("s_lshl_b32 s58, s58, 7"); a(f"s_add_u32 s58, s58, {WS_G}"); a("v_add_u32 v70, s58, v70")
    a("s_cmp_eq_u32 s7, 2"); a("s_cbranch_scc0 L_noclr")
    if "noclr" in xp: a("s_branch L_noclr")
    for r in range(4): a(f"v_mov_b32 v{60+r}, -1")
    a("s_lshl_b32 s58, s89, 13"); a("s_lshl_b32 s92, s3, 11"); a("s_add_u32 s58, s58, s92")
    a("buffer_store_dwordx4 v[60:63], v48, s[32:35], s58 offen sc1")
    a("buffer_store_dwordx4 v[60:63], v48, s[32:35], s58 offen offset:1024 sc1")
    a("s_mov_b64 exec, 0x00ff00ff")
    a("buffer_store_dwordx2 v[60:61], v70, s[32:35], 0 offen sc1")
    a("s_cmp_eq_u32 s3, 0"); a("s_cbranch_scc0 L_noclr")
    a("s_mov_b32 exec_lo, 0xffff"); a("s_mov_b32 exec_hi, 0xffff")
    a("buffer_store_dword v60, v69, s[32:35], 0 offen sc1")
    a("L_noclr:")
    a("s_mov_b64 exec, -1")
    stamp(1)
    a("s_mov_b32 s60, 0xcccccccc"); a("s_mov_b32 s61, 0xcccccccc"); a("s_mov_b32 s62, 0xaaaaaaaa"); a("s_mov_b32 s63, 0xaaaaaaaa")
    a(f"s_mov_b32 s90, {f32(128 ** -0.5)}"); a(f"s_mov_b32 s91, {f32(1.4426950408889634)}")
    a("s_lshr_b32 s58, s2, 3"); a("s_and_b32 s58, s58, 3"); a("s_add_u32 s58, s58, 2")
    a("s_lshl_b32 s92, s3, 2"); a("s_add_u32 s92, s92, s7"); a("s_cmp_eq_u32 s92, 2"); a("s_cselect_b32 s57, s58, 99")
    if "nosig" in xp or sig != "lap": a("s_mov_b32 s57, 99")
    a("v_and_b32 v60, 1, v75"); a("v_lshlrev_b32 v60, 4, v60"); a("v_mov_b32 v61, 0xffff"); a("v_lshlrev_b32 v60, v60, v61")
    a("v_lshrrev_b32 v61, 1, v75")
    for r in range(4):
        a(f"v_cmp_eq_u32 vcc, {r}, v61"); a(f"v_cndmask_b32 v{14+r}, 0, v60, vcc")
    vwait("x")
    for k in range(4):
        a(f"v_lshlrev_b32 v{76+2*k}, 16, v{52+k}"); a(f"v_and_b32 v{77+2*k}, 0xffff0000, v{52+k}")
    a("v_add_f32 v84, v76, v77")
    for k in range(2, 8): a(f"v_add_f32 v84, v84, v{76+k}")
    allred("v_add_f32", "v84", "v85")
    a(f"v_mul_f32 v84, {f32(1/512)}, v84")
    for k in range(8): a(f"v_sub_f32 v{76+k}, v{76+k}, v84")
    a("v_mul_f32 v86, v76, v76")
    for k in range(1, 8): a(f"v_fmac_f32 v86, v{76+k}, v{76+k}")
    allred("v_add_f32", "v86", "v85")
    a(f"v_mul_f32 v86, {f32(1/512)}, v86")
    bf16r("v84"); bf16r("v86")
    a(f"v_add_f32 v86, {f32(1e-5)}, v86"); bf16r("v86")
    a("v_sqrt_f32 v86, v86"); bf16r("v86"); a("v_rcp_f32 v86, v86")
    vwait("xc1")
    for k in range(2):
        a(f"v_lshlrev_b32 v{56+k}, 16, v{56+k}"); a(f"v_sub_f32 v{56+k}, v{56+k}, v84"); bf16r(f"v{56+k}")
        a(f"v_mul_f32 v{56+k}, v{56+k}, v86"); a(f"v_cvt_pk_bf16_f32 v{66+k}, v{56+k}, v{56+k}")
    stamp(2)
    masks(0, "v66", 0)
    for t in range(32):
        vwait(f"wq{t}")
        a(f"v_mfma_f32_16x16x32_bf16 v[28:31], {mop(t)}, a[{4*t}:{4*t+3}], {'0' if t == 0 else 'v[28:31]'}")
        if wiss < 32: wqload(wiss); wiss += 1
        if int((t + 1) / kq) > int(t / kq) and kiss < NB: kload()
        if t < 31: masks(t + 1, "v66" if t + 1 < 16 else "v67", (t + 1) & 15)
    for j in range(nbar):
        if kiss < NB: kload()
    a("v_lshlrev_b32 v27, 5, v75"); a("v_lshl_add_u32 v26, v74, 4, v27"); a("s_lshl_b32 s58, s3, 9"); a("v_add_u32 v26, s58, v26")
    a("s_mov_b32 exec_hi, 0")
    a(f"ds_write_b128 v26, v[28:31] offset:{L_QP}")
    a("s_mov_b64 exec, -1")
    a("s_waitcnt lgkmcnt(0)"); a("s_barrier")
    if sig == "q" and "nosig" not in xp:
        a("s_lshl_b32 s58, s3, 2"); a("s_add_u32 s58, s58, s7"); a("s_cmp_eq_u32 s58, 2"); a("s_cbranch_scc0 L_nosigq")
        a("s_lshl_b32 s58, s89, 2"); a("v_mov_b32 v60, s58"); a("v_mov_b32 v61, -1"); a("s_mov_b64 exec, 1")
        a("global_store_dword v60, v61, s[84:85] sc1")
        a("s_mov_b64 exec, -1")
        a("L_nosigq:")
    for w in range(4):
        for hh in range(2): a(f"ds_read_b128 v[{76+8*w+4*hh}:{79+8*w+4*hh}], v27 offset:{L_QP+512*w+16*hh}")
    a("s_waitcnt lgkmcnt(0)")
    for k in range(8):
        a(f"v_add_f32 v{76+k}, v{76+k}, v{84+k}"); a(f"v_add_f32 v{92+k}, v{92+k}, v{100+k}")
    for k in range(8): a(f"v_add_f32 v{76+k}, v{76+k}, v{92+k}")
    for k in range(4): a(f"v_cvt_pk_bf16_f32 v{10+k}, v{76+2*k}, v{77+2*k}")
    a("v_mov_b32 v64, 0xff800000"); a("v_mov_b32 v65, 0")
    stamp(3)

    def kconsume(i):
        t = i & 15
        x = f"v{48 + (t & 1)}" if True else None
        base = RING + 4 * i
        a(f"v_dot2_f32_bf16 {x}, v{base}, v10, 0")
        for r in range(1, 4): a(f"v_dot2_f32_bf16 {x}, v{base+r}, v{10+r}, {x}")
        if t & 1:
            d = f"v{50 + ((t >> 1) & 1)}"
            a(f"v_add_f32_dpp {d}, v48, v48 row_ror:8 row_mask:0xf bank_mask:0x3")
            a(f"v_add_f32_dpp {d}, v49, v49 row_ror:8 row_mask:0xf bank_mask:0xc")
        if t & 3 == 3:
            d = f"v{52 + ((t >> 2) & 1)}"
            a(f"v_add_f32_dpp {d}, v50, v50 row_half_mirror row_mask:0xf bank_mask:0x5")
            a(f"v_add_f32_dpp {d}, v51, v51 row_half_mirror row_mask:0xf bank_mask:0xa")
        if t & 7 == 7:
            d = f"v{54 + ((t >> 3) & 1)}"
            a("v_add_f32_dpp v52, v52, v52 quad_perm:[2,3,0,1] row_mask:0xf bank_mask:0xf")
            a("v_add_f32_dpp v53, v53, v53 quad_perm:[2,3,0,1] row_mask:0xf bank_mask:0xf")
            a(f"v_cndmask_b32 {d}, v52, v53, s[60:61]")
        if t == 15:
            s = f"v{46 + (i >> 4)}"
            a("v_add_f32_dpp v54, v54, v54 quad_perm:[1,0,3,2] row_mask:0xf bank_mask:0xf")
            a("v_add_f32_dpp v55, v55, v55 quad_perm:[1,0,3,2] row_mask:0xf bank_mask:0xf")
            a(f"v_cndmask_b32 {s}, v54, v55, s[62:63]")
            bf16r(s); a(f"v_mul_f32 {s}, s90, {s}"); bf16r(s)
            a(f"v_max_f32 v64, v64, {s}")
    a(f"s_mov_b32 s55, {NB*4096}")
    left = NB + D - kiss
    early = list(early)
    while early and early[-1] >= NB - (left - len(early)): early.pop()
    sched = early + list(range(NB - (left - len(early)), NB))
    assert len(set(sched)) == left, (sched, left)
    for i in range(NB):
        vwait(f"k{i}")
        if i in sched:
            assert kiss - NB < i
            kload()
        kconsume(i)
    stamp(4)
    a("s_mov_b32 s54, s55"); a(f"s_add_u32 s55, s55, {NB*4096}")
    for k in range(2): a(f"v_mov_b32 v{44+k}, v{46+k}")
    if D1 is None: D1 = D
    def k1load():
        nonlocal kiss
        j = kiss - NB
        sload(j % NB, j >= NB); vm.append(f"k{kiss}"); kiss += 1
    for j in range(D1 - D): k1load()
    for i in range(NB):
        vwait(f"k{NB+i}")
        if kiss < 2 * NB + D: k1load()
        a(f"s_mov_b32 s58, {i*4096}")
        if "nowo" not in xp: a(f"buffer_load_dwordx4 a[{4*i}:{4*i+3}], v59, s[24:27], s58 offen {wpol}"); vm.append(f"wo{i}")
        kconsume(i)
    a("s_mov_b32 s56, 2")
    dma_setup()
    def kloop(sfx, DD):
        a(".p2align 3")
        a(f"L_kloop{sfx}:")
        a("s_mov_b32 s54, s55"); a(f"s_add_u32 s55, s55, {NB*4096}")
        a("s_cmp_eq_u32 s56, 7")
        a("s_cselect_b32 s12, s16, s12"); a("s_cselect_b32 s13, s17, s13"); a("s_cselect_b32 s55, 0, s55")
        a("s_cmp_eq_u32 s56, s57"); a(f"s_cbranch_scc0 L_nosig{sfx}")
        a("s_lshl_b32 s58, s89, 2"); a("v_mov_b32 v60, s58"); a("v_mov_b32 v61, -1"); a("s_mov_b64 exec, 1")
        a("global_store_dword v60, v61, s[84:85] sc1")
        a("s_mov_b64 exec, -1")
        a(f"L_nosig{sfx}:")
        for k in range(14): a(f"v_mov_b32 v{32+k}, v{34+k}")
        lap_steps(DD, "nokdma" not in xp, kconsume)
        a("s_add_u32 s56, s56, 1"); a("s_cmp_lt_u32 s56, 8"); a(f"s_cbranch_scc1 L_kloop{sfx}")
    if hi:
        for r in hirole: a(f"s_cmp_eq_u32 s7, {r}"); a("s_cbranch_scc1 L_khi")
    kloop("A", D)
    if hi:
        a("s_branch L_kdone")
        a("L_khi:")
        for j in range(D, D + hi): sload(j, True)
        kloop("B", D + hi)
        a("L_kdone:")
    stamp(5)
    allred("v_max_f32", "v64", "v48")
    a("v_mul_f32 v64, s91, v64"); a("v_sub_f32 v64, 0, v64")
    a("s_mov_b32 s8, s12"); a("s_mov_b32 s9, s13"); a("s_mov_b32 s56, 0")
    for r in range(4): a(f"v_mov_b32 v{28+r}, 0")
    if vpol is not None: cur["pol"] = vpol
    def vlap(name, DD, last, lim):
        a(".p2align 3")
        a(f"{name}:")
        a("s_mov_b32 s54, s55"); a(f"s_add_u32 s55, s55, {NB*4096}")
        for k in range(2):
            a(f"v_fma_f32 v{56+k}, v{32+k}, s91, v64"); a(f"v_exp_f32 v{56+k}, v{56+k}")
            a(f"v_add_f32 v65, v65, v{56+k}"); a(f"v_cvt_pk_bf16_f32 v{66+k}, v{56+k}, v{56+k}")
        for k in range(14): a(f"v_mov_b32 v{32+k}, v{34+k}")
        masks(0, "v66", 0)
        if not last:
            a("s_cmp_eq_u32 s56, 3"); a("s_cbranch_scc0 L_nochk")
            a("v_lshlrev_b32 v60, 2, v1")
            a("global_load_dword v72, v60, s[84:85] sc1")
            a("L_nochk:")
        else:
            a("s_cmp_eq_u32 s56, 7"); a("s_cbranch_scc0 L_nolast")
            allred("v_add_f32", "v65", "v48")
            a("s_lshl_b32 s58, s3, 3"); a("v_mov_b32 v48, s58"); a("s_mov_b64 exec, 1")
            a(f"ds_write_b64 v48, v[64:65] offset:{L_ML}")
            a("s_mov_b64 exec, -1")
            if "nosig" in xp: a("s_branch L_nolast")
            a("v_cmp_ne_u32 vcc, -1, v72"); a("s_cbranch_vccz L_nolast")
            a(f"s_mov_b32 s88, {SPIN}"); a("v_lshlrev_b32 v60, 2, v1")
            a("L_cnt:")
            a("s_sleep 8"); a("global_load_dword v72, v60, s[84:85] sc1"); a("s_waitcnt vmcnt(0)")
            a("v_cmp_ne_u32 vcc, -1, v72"); a("s_cbranch_vccz L_nolast")
            a("s_sub_u32 s88, s88, 1"); a("s_cbranch_scc0 L_cnt")
            a("L_nolast:")
        def vconsume(i):
            a(f"v_mfma_f32_16x16x32_bf16 v[28:31], {mop(i)}, {ring(i)}, v[28:31]")
            if i < NB - 1: masks(i + 1, f"v{66 + ((i + 1) >> 4)}", bitrev((i + 1) & 15))
        lap_steps(DD, not last, vconsume)
        a("s_add_u32 s56, s56, 1"); a(f"s_cmp_lt_u32 s56, {lim}"); a(f"s_cbranch_scc1 {name}")
    vlap("L_vloopA", D, False, 8 - nl2)
    for j in range(D, D2): sload(j, True)
    vlap("L_vloopB", D2, True, 8)
    if "dup" in xp:
        a("s_lshl_b32 s59, s6, 20"); a("s_add_u32 s8, s66, s59"); a("s_addc_u32 s9, s67, 0"); a("s_mov_b32 s12, s8"); a("s_mov_b32 s13, s9")
        a("s_mov_b32 s55, 0"); a("s_mov_b32 s56, 0")
        for j in range(D): sload(j, True)
        a("L_dup:")
        a("s_mov_b32 s54, s55"); a(f"s_add_u32 s55, s55, {NB*4096}")
        lap_steps(D, False, lambda i: None)
        a("s_add_u32 s56, s56, 1"); a("s_cmp_lt_u32 s56, 8"); a("s_cbranch_scc1 L_dup")
    stamp(6)
    a("v_lshlrev_b32 v27, 4, v75"); a("v_lshl_add_u32 v27, v74, 2, v27")
    a("v_mov_b32 v48, 0")
    a("s_mov_b32 exec_hi, 0")
    a(f"ds_write_b128 v26, v[28:31] offset:{L_OP}")
    a("s_mov_b64 exec, -1")
    a("s_waitcnt lgkmcnt(0)"); a("s_barrier")
    a(f"ds_read_b128 v[76:79], v48 offset:{L_ML}"); a(f"ds_read_b128 v[80:83], v48 offset:{L_ML+16}")
    for w in range(4): a(f"ds_read2st64_b32 v[{84+2*w}:{85+2*w}], v27 offset0:{L_OP//256+2*w} offset1:{L_OP//256+2*w+1}")
    a("s_waitcnt lgkmcnt(4)")
    a("v_min_f32 v48, v76, v78"); a("v_min3_f32 v48, v48, v80, v82")
    for w in range(4): a(f"v_sub_f32 v{76+2*w}, v48, v{76+2*w}")
    for w in range(4): a(f"v_exp_f32 v{76+2*w}, v{76+2*w}")
    a("v_mul_f32 v49, v76, v77")
    for w in range(1, 4): a(f"v_fmac_f32 v49, v{76+2*w}, v{77+2*w}")
    a("v_rcp_f32 v49, v49")
    a("s_waitcnt lgkmcnt(0)")
    for k in range(2):
        a(f"v_mul_f32 v{56+k}, v76, v{84+k}")
        for w in range(1, 4): a(f"v_fmac_f32 v{56+k}, v{76+2*w}, v{84+2*w+k}")
    for k in range(2):
        a(f"v_mul_f32 v{56+k}, v{56+k}, v49"); a(f"v_cvt_pk_bf16_f32 v{66+k}, v{56+k}, v{56+k}")
    masks(0, "v66", 0)
    for t in range(32):
        if t < 31: masks(t + 1, "v66" if t + 1 < 16 else "v67", (t + 1) & 15)
        a(f"v_mfma_f32_16x16x32_bf16 v[28:31], {mop(t)}, a[{4*t}:{4*t+3}], {'0' if t == 0 else 'v[28:31]'}")
    a("s_mov_b32 s58, -2")
    a("s_mov_b32 exec_hi, 0")
    for r in range(4): a(f"v_min_u32 v{28+r}, s58, v{28+r}")
    a("buffer_store_dwordx4 v[28:31], v68, s[32:35], 0 offen sc1")
    a("s_mov_b64 exec, -1")
    stamp(7)
    if stamps == 1:
        a("s_cmp_eq_u32 s3, 0"); a("s_cbranch_scc1 L_noack"); a("s_waitcnt vmcnt(0)"); stamp(13); a("L_noack:")
    a("v_lshlrev_b32 v62, 4, v1")
    a("v_lshrrev_b32 v60, 2, v75"); a("v_lshl_add_u32 v60, v74, 4, v60")
    a("v_and_b32 v61, 3, v1")
    a("s_cmp_eq_u32 s7, 1"); a("s_cbranch_scc1 L_s3")
    a("s_cmp_eq_u32 s7, 3"); a("s_cbranch_scc1 L_s4")
    a("s_lshl_b32 s58, s3, 2"); a("s_add_u32 s58, s58, s7"); a("s_cmp_eq_u32 s58, 2"); a("s_cbranch_scc0 L_fin")
    a("s_lshl_b32 s59, s89, 13"); a("s_add_u32 s92, s59, 4096")
    a("v_lshlrev_b32 v50, 16, v71"); a("v_and_b32 v51, 0xffff0000, v71")
    poll("L_pP", [f"buffer_load_dwordx4 v[{76+4*u}:{79+4*u}], v62, s[32:35], {'s59' if u < 4 else 's92'} offen offset:{(u&3)*1024} sc1" for u in range(8)], range(76, 108))
    stamp(8)
    if stamps == 1: a(f"s_sub_u32 s94, {SPIN}, s88"); a("v_writelane_b32 v73, s94, 14")
    for st in (16, 8, 4):
        for r in range(st): a(f"v_add_f32 v{76+r}, v{76+r}, v{76+st+r}")
    a("v_permlane32_swap_b32 v76, v78"); a("v_permlane32_swap_b32 v77, v79")
    a("v_add_f32 v76, v76, v78"); a("v_add_f32 v77, v77, v79")
    a("v_mov_b32 v78, v76"); a("v_mov_b32 v79, v77")
    a("v_permlane16_swap_b32 v76, v78"); a("v_permlane16_swap_b32 v77, v79")
    a("v_add_f32 v76, v76, v78"); a("v_add_f32 v77, v77, v79")
    a("v_cvt_pk_bf16_f32 v76, v76, v77")
    a("v_and_b32 v77, 0xffff0000, v76"); a("v_lshlrev_b32 v76, 16, v76")
    a("v_add_f32 v76, v76, v50"); a("v_add_f32 v77, v77, v51")
    a("v_cvt_pk_bf16_f32 v76, v76, v77")
    a("s_mov_b32 exec_lo, 0xffff"); a("s_mov_b32 exec_hi, 0xffff")
    a("v_min_u32 v76, -2, v76")
    a("buffer_store_dword v76, v69, s[32:35], 0 offen sc1")
    stamp(9)
    a("s_branch L_fin")
    def trread(dst, addr, off): a(f"ds_read_b64_tr_b16 v[{dst}:{dst+1}], {addr} offset:{off}")
    a("L_s3:")
    a("v_lshlrev_b32 v60, 6, v60"); a("v_lshrrev_b32 v49, 1, v61"); a("v_lshl_add_u32 v60, v49, 15, v60")
    a("v_and_b32 v49, 1, v61"); a("v_lshl_add_u32 v60, v49, 3, v60")
    a("s_lshl_b32 s58, s3, 4"); a(f"s_add_u32 s58, s58, {L_WA}"); a("v_add_u32 v60, s58, v60")
    for u in range(8):
        for hf in range(2):
            for sec in range(2): trread(128 + 8*u + 4*hf + 2*sec, "v60", (64*u + 8*hf + 4*sec) * 64)
        if u in (2, 4, 6): a("s_waitcnt lgkmcnt(4)")
    for r in range(4): a(f"v_mov_b32 v{112+r}, 0x3f803f80")
    a("v_lshrrev_b32 v62, 1, v74"); a("v_lshlrev_b32 v62, 9, v62"); a("v_bfe_u32 v49, v75, 1, 2"); a("v_lshl_add_u32 v62, v49, 7, v62")
    a("v_and_b32 v49, 1, v75"); a("v_lshl_add_u32 v62, v49, 6, v62"); a("v_and_b32 v49, 1, v74"); a("v_lshl_add_u32 v62, v49, 5, v62")
    a("v_lshrrev_b32 v49, 3, v75"); a("v_lshl_add_u32 v62, v49, 4, v62")
    a(f"s_mov_b32 s59, {WS_H}"); a(f"s_mov_b32 s92, {WS_H+4096}")
    a("s_waitcnt lgkmcnt(0)")
    for k in range(16):
        a(f"v_mfma_f32_16x16x32_bf16 v[108:111], v[{128+4*k}:{131+4*k}], v[112:115], {'0' if k == 0 else 'v[108:111]'}")
    poll("L_pH", [f"buffer_load_dwordx4 v[{76+4*u}:{79+4*u}], v62, s[32:35], {'s59' if u < 4 else 's92'} offen offset:{(u&3)*1024} sc1" for u in range(8)], range(76, 108))
    stamp(10)
    for u in range(8):
        for hf in range(2):
            a(f"v_mfma_f32_16x16x32_bf16 v[{116+4*hf}:{119+4*hf}], v[{128+8*u+4*hf}:{131+8*u+4*hf}], v[{76+4*u}:{79+4*u}], {'0' if u == 0 else 'v[%d:%d]' % (116+4*hf, 119+4*hf)}")
            for k in (2*hf, 2*hf + 1):
                a(f"v_dot2_f32_bf16 v52, v{76+4*u+k}, v112, {'0' if u + k == 0 else 'v52'}")
                a(f"v_dot2_f32_bf16 v53, v{76+4*u+k}, v{76+4*u+k}, {'0' if u + k == 0 else 'v53'}")
    for r in range(2): a(f"v_add_f32_dpp v{52+r}, v{52+r}, v{52+r} row_ror:8 row_mask:0xf bank_mask:0xf")
    a("v_permlane32_swap_b32 v52, v53"); a("v_add_f32 v52, v52, v53")
    a("v_mov_b32 v53, v52"); a("v_permlane16_swap_b32 v52, v53"); a("v_add_f32 v52, v52, v53")
    a(f"v_mul_f32 v52, {f32(1/512)}, v52")
    a("v_mov_b32 v53, v52"); a("v_permlane32_swap_b32 v52, v53")
    for r in range(4): a(f"v_add_f32_dpp v{116+r}, v{120+r}, v{116+r} row_ror:8 row_mask:0xf bank_mask:0xf")
    a("v_fma_f32 v53, -v52, v52, v53"); a("v_max_f32 v53, 0, v53")
    bf16r("v53"); bf16r("v52")
    a(f"v_add_f32 v53, {f32(1e-5)}, v53"); bf16r("v53")
    a("v_sqrt_f32 v53, v53")
    for r in range(4): a(f"v_fma_f32 v{116+r}, -v52, v{108+r}, v{116+r}")
    bf16r("v53"); a("v_rcp_f32 v53, v53")
    for r in range(4): a(f"v_mul_f32 v{116+r}, v{116+r}, v53")
    for r in range(2): a(f"v_cvt_pk_bf16_f32 v{120+r}, v{116+2*r}, v{117+2*r}")
    for r in range(2): a(f"v_permlane32_swap_b32 v{120+r}, v{122+r}")
    for r in range(2):
        a(f"v_lshlrev_b32 v{116+2*r}, 16, v{120+r}"); a(f"v_and_b32 v{117+2*r}, 0xffff0000, v{120+r}")
        a(f"v_lshlrev_b32 v{124+2*r}, 16, v{122+r}"); a(f"v_and_b32 v{125+2*r}, 0xffff0000, v{122+r}")
    for r in range(4): a(f"v_max_f32 v{116+r}, 0, v{116+r}")
    for r in range(4): a(f"v_mul_f32 v{116+r}, v{116+r}, v{124+r}")
    for r in range(2): a(f"v_cvt_pk_bf16_f32 v{120+r}, v{116+2*r}, v{117+2*r}")
    a("s_mov_b64 exec, 0x00ff00ff")
    for r in range(2): a(f"v_min_u32 v{120+r}, -2, v{120+r}")
    a("buffer_store_dwordx2 v[120:121], v70, s[32:35], 0 offen sc1")
    stamp(11)
    a("s_branch L_fin")
    a("L_s4:")
    a("v_and_b32 v27, 7, v75"); a("v_lshlrev_b32 v63, 4, v27"); a("v_lshl_add_u32 v63, v74, 7, v63")
    a("s_lshl_b32 s58, s3, 9"); a("v_add_u32 v26, s58, v63")
    a("v_lshlrev_b32 v60, 5, v60"); a("v_lshl_add_u32 v60, v61, 3, v60")
    a(f"s_mul_i32 s58, s3, {448*32}"); a(f"s_add_u32 s58, s58, {L_WD}"); a("v_add_u32 v60, s58, v60")
    for u in range(7):
        for hf in range(2):
            for sec in range(2): trread(128 + 8*u + 4*hf + 2*sec, "v60", (64*u + 8*hf + 4*sec) * 32)
        if u in (2, 5): a("s_waitcnt lgkmcnt(4)")
    a("v_lshrrev_b32 v49, 1, v27"); a("v_lshlrev_b32 v49, 7, v49"); a("v_and_b32 v50, 1, v27"); a("v_lshl_add_u32 v49, v50, 6, v49")
    a("v_lshl_add_u32 v49, v74, 3, v49")
    a("s_lshr_b32 s58, s89, 1"); a("s_lshl_b32 s58, s58, 9"); a("s_and_b32 s92, s89, 1"); a("s_lshl_b32 s92, s92, 5"); a("s_add_u32 s58, s58, s92")
    a(f"s_add_u32 s58, s58, {WS_H}"); a("v_add_u32 v49, s58, v49")
    a("v_lshlrev_b32 v50, 10, v27"); a("v_lshl_add_u32 v50, v74, 3, v50"); a("s_lshl_b32 s58, s89, 5"); a("v_add_u32 v50, s58, v50")
    a(f"s_mul_i32 s59, s3, {7*1024}"); a(f"s_add_u32 s59, s59, {WS_G}"); a("s_add_u32 s92, s59, 4096")
    a("s_waitcnt lgkmcnt(0)")
    loads = [f"buffer_load_dwordx4 v[{76+4*u}:{79+4*u}], v62, s[32:35], {'s59' if u < 4 else 's92'} offen offset:{(u&3)*1024} sc1" for u in range(7)]
    loads.append("buffer_load_dwordx2 v[104:105], v49, s[32:35], 0 offen sc1")
    poll("L_pG", loads, range(76, 106))
    stamp(10)
    for u in range(7):
        for hf in range(2):
            a(f"v_mfma_f32_16x16x32_bf16 v[{108+4*hf}:{111+4*hf}], v[{128+8*u+4*hf}:{131+8*u+4*hf}], v[{76+4*u}:{79+4*u}], {'0' if u == 0 else 'v[%d:%d]' % (108+4*hf, 111+4*hf)}")
    for r in range(4): a(f"v_add_f32_dpp v{108+r}, v{112+r}, v{108+r} row_ror:8 row_mask:0xf bank_mask:0xf")
    a("s_mov_b32 exec_lo, 0x00ff00ff"); a("s_mov_b32 exec_hi, 0x00ff00ff")
    a(f"ds_write_b128 v26, v[108:111] offset:{L_TX}")
    a("s_waitcnt lgkmcnt(0)"); a("s_barrier")
    a("s_cmp_eq_u32 s3, 3"); a("s_cbranch_scc0 L_fin")
    for w in range(4): a(f"ds_read_b128 v[{128+4*w}:{131+4*w}], v63 offset:{L_TX+512*w}")
    for r in range(2):
        a(f"v_lshlrev_b32 v{76+2*r}, 16, v{104+r}"); a(f"v_and_b32 v{77+2*r}, 0xffff0000, v{104+r}")
    a("s_waitcnt lgkmcnt(0)")
    for r in range(4):
        a(f"v_add_f32 v{128+r}, v{128+r}, v{132+r}"); a(f"v_add_f32 v{136+r}, v{136+r}, v{140+r}")
    for r in range(4): a(f"v_add_f32 v{128+r}, v{128+r}, v{136+r}")
    for r in range(2): a(f"v_cvt_pk_bf16_f32 v{132+r}, v{128+2*r}, v{129+2*r}")
    for r in range(2):
        a(f"v_lshlrev_b32 v{128+2*r}, 16, v{132+r}"); a(f"v_and_b32 v{129+2*r}, 0xffff0000, v{132+r}")
    for r in range(4): a(f"v_add_f32 v{128+r}, v{128+r}, v{76+r}")
    for r in range(2): a(f"v_cvt_pk_bf16_f32 v{132+r}, v{128+2*r}, v{129+2*r}")
    a("buffer_store_dwordx2 v[132:133], v50, s[36:39], 0 offen")
    stamp(11)
    a("L_fin:")
    if stamps:
        a("s_mov_b64 exec, -1")
        stamp(12)
        a("s_getreg_b32 s92, hwreg(HW_REG_XCC_ID)"); a("v_writelane_b32 v73, s92, 15")
        a("s_lshl_b32 s58, s2, 2"); a("s_add_u32 s58, s58, s3"); a("s_lshl_b32 s58, s58, 6"); a(f"s_add_u32 s58, s58, {WS_ST}")
        a("v_lshlrev_b32 v48, 2, v1"); a("s_mov_b64 exec, 0xffff")
        a("buffer_store_dword v73, v48, s[32:35], s58 offen")
    a("L_end:")
    a("s_endpgm")
    body = a.finish()
    head = HEADER + f"; @launch grid=(256,1,1) block=(256,1,1) lds={L_SIZE}\n" + '.amdgcn_target "amdgcn-amd-amdhsa--gfx950"\n.text\n' + \
        f".globl {NAME}\n.p2align 8\n.type {NAME},@function\n"
    tail = f""".section .rodata,"a"
.p2align 6
.amdhsa_kernel {NAME}
  .amdhsa_next_free_vgpr 384
  .amdhsa_next_free_sgpr 102
  .amdhsa_accum_offset 256
  .amdhsa_group_segment_fixed_size 0
  .amdhsa_kernarg_size 96
  .amdhsa_user_sgpr_count 2
  .amdhsa_user_sgpr_kernarg_segment_ptr 1
  .amdhsa_system_sgpr_workgroup_id_x 1
.end_amdhsa_kernel
"""
    return head + body + tail

if __name__ == "__main__":
    kw = eval("dict(%s)" % (sys.argv[2] if len(sys.argv) > 2 else ""))
    open(sys.argv[1], "w").write(gen(**kw))
```

```python
import sys, struct
sys.path.insert(0, __file__.rsplit('/', 1)[0])
from asmlib import Asm

NAME = "sequential_preLN__mha_block_cached__glu_gated_reglu__decode_kernel"
HEADER = open(__file__.rsplit('/', 1)[0] + '/header.txt').read()

def f32(x): return "0x%08x" % struct.unpack('<I', struct.pack('<f', x))[0]

WS_P, WS_H, WS_G, WS_R, WS_ST, WS_SIZE = 0, 0x80000, 0x82000, 0x8a000, 0x100000, 0x140000
L_QP, L_OP, L_ML, L_ST, L_TX, L_SP, L_WA, L_WD, L_SIZE = 0, 2048, 4096, 4160, 4608, 7168, 24576, 24576, 106496
L_T2 = 8192
L_CS = 16384
L_DUMP = 90112
RING = 128
NB = 32
SPIN = 200000

def gen(D=5, pol="nt", wpol="", stamps=False, early=(2, 7, 12, 17), n1=5, kq=2, nbar=2, sleep=0, fpol="", hmap=0, D2=16, nl2=1, vpol=None, lead=0, xp=(), sig="q", D1=None, hi=1, hirole=(1, 3), dma="loop", nA=3, nB=3, hil=(5, 4), stag=4, pipe=1, dlast=0, rmap=0, adapt=2, thr=4, head=(0, 0), ref0=128, c0=1300, tau=220, org=1, cred=0, hrep=0, hdel=0, gdel=0):
    a = Asm()
    vm = []
    def vwait(tag):
        n = len(vm) - 1 - vm.index(tag)
        a(f"s_waitcnt vmcnt({min(n, 63)})")
    def stamp(k):
        if stamps:
            a("s_memrealtime s[94:95]"); a("s_waitcnt lgkmcnt(0)"); a(f"v_writelane_b32 v73, s94, {k}")
    def allred(op, v, t):
        for n in (8, 4, 2, 1): a(f"{op}_dpp {v}, {v}, {v} row_ror:{n} row_mask:0xf bank_mask:0xf")
        for sw in ("v_permlane16_swap_b32", "v_permlane32_swap_b32"):
            a(f"v_mov_b32 {t}, {v}"); a(f"{sw} {v}, {t}"); a(f"{op} {v}, {v}, {t}")
    def bf16r(v, src=None):
        src = src or v
        a(f"v_cvt_pk_bf16_f32 {v}, {src}, {src}"); a(f"v_and_b32 {v}, 0xffff0000, {v}")
    def srd(d, lo, hi, size, add=None):
        if add is None:
            a(f"s_mov_b32 s{d}, s{lo}"); a(f"s_mov_b32 s{d+1}, s{hi}")
        else:
            a(f"s_add_u32 s{d}, s{lo}, {add}"); a(f"s_addc_u32 s{d+1}, s{hi}, 0")
        a(f"s_mov_b32 s{d+2}, {size}"); a(f"s_mov_b32 s{d+3}, 0x20000")
    def ring(j): j %= NB; return f"v[{RING+4*j}:{RING+4*j+3}]"
    cur = {"pol": pol}
    def sload(j, nxt):
        s, b = ("s[12:15]", "s55") if nxt else ("s[8:11]", "s54")
        a(f"buffer_load_dwordx4 {ring(j)}, v{2+(j>>2)}, {s}, {b} offen offset:{(j&3)*1024} {cur['pol']}")
    def masks(t, src, lane):
        for r in range(4):
            a(f"v_and_b32_dpp v{18+4*(t&1)+r}, {src}, v{14+r} row_newbcast:{lane} row_mask:0xf bank_mask:0xf")
    def mop(t): return f"v[{18+4*(t&1)}:{21+4*(t&1)}]"
    def bitrev(t): return ((t & 1) << 3) | ((t & 2) << 1) | ((t & 4) >> 1) | ((t & 8) >> 3)
    def poll(label, loads, regs, pre=None):
        a(f"s_mov_b32 s88, {SPIN}")
        a(f"{label}:")
        for l in loads: a(l)
        if pre: pre()
        a("s_waitcnt vmcnt(0)")
        r = list(regs)
        a(f"v_max3_u32 v48, v{r[0]}, v{r[1]}, v{r[2]}"); r = r[3:]
        while len(r) >= 2:
            a(f"v_max3_u32 v48, v48, v{r[0]}, v{r[1]}"); r = r[2:]
        if r: a(f"v_max_u32 v48, v48, v{r[0]}")
        a("v_cmp_eq_u32 vcc, -1, v48")
        a(f"s_cbranch_vccz {label}_ok")
        if sleep: a(f"s_sleep {sleep}")
        a("s_sub_u32 s88, s88, 1")
        a(f"s_cbranch_scc0 {label}")
        a(f"{label}_ok:")

    def check(regs, ok):
        r = list(regs)
        a(f"v_max3_u32 v48, v{r[0]}, v{r[1]}, v{r[2]}"); r = r[3:]
        while len(r) >= 2:
            a(f"v_max3_u32 v48, v48, v{r[0]}, v{r[1]}"); r = r[2:]
        if r: a(f"v_max_u32 v48, v48, v{r[0]}")
        a("v_cmp_eq_u32 vcc, -1, v48")
        a(f"s_cbranch_vccz {ok}")
    def poll2(label, loads, nreg, bases, use):
        if not pipe:
            poll(label, loads(bases[0]), range(bases[0], bases[0] + nreg)); use(bases[0]); return
        n = len(loads(bases[0]))
        a(f"s_mov_b32 s88, {SPIN}")
        for l in loads(bases[0]): a(l)
        if stag: a(f"s_sleep {stag}")
        a(f"{label}:")
        for l in loads(bases[1]): a(l)
        a(f"s_waitcnt vmcnt({n})")
        check(range(bases[0], bases[0] + nreg), f"{label}_A")
        for l in loads(bases[0]): a(l)
        a(f"s_waitcnt vmcnt({n})")
        check(range(bases[1], bases[1] + nreg), f"{label}_B")
        a("s_sub_u32 s88, s88, 1")
        a(f"s_cbranch_scc0 {label}")
        a(f"{label}_B:")
        use(bases[1])
        a(f"s_branch {label}_done")
        a(f"{label}_A:")
        use(bases[0])
        a(f"{label}_done:")
    def dma_setup():
        a("v_mov_b32 v62, 0"); a("s_mov_b32 s93, 0")
        a("s_mov_b32 s96, 0"); a("s_mov_b32 s97, 0"); a("s_mov_b32 s100, 0")
        a("s_cmp_eq_u32 s7, 1"); a("s_cbranch_scc0 L_dmaD")
        a("v_lshrrev_b32 v62, 2, v1"); a("s_movk_i32 s58, 3584"); a("v_mul_u32_u24 v62, s58, v62")
        a("v_and_b32 v63, 3, v1"); a("v_lshl_add_u32 v62, v63, 4, v62")
        a("s_lshl_b32 s58, s89, 6"); a("v_add_u32 v62, s58, v62")
        a(f"s_mul_i32 s96, s3, {128*3584}"); a("s_mov_b32 s97, s96")
        a("s_lshl_b32 s98, s3, 13"); a(f"s_add_u32 s98, s98, {L_WA}"); a("s_add_u32 s99, s98, 32768")
        a(f"s_mov_b32 s100, {16*3584}"); a("s_mov_b32 s101, 1024"); a("s_mov_b32 s93, 8")
        a("L_dmaD:")
        a("s_cmp_eq_u32 s7, 3"); a("s_cbranch_scc0 L_dmaX")
        a("v_lshrrev_b32 v62, 1, v1"); a("v_lshlrev_b32 v62, 10, v62"); a("v_and_b32 v63, 1, v1"); a("v_lshl_add_u32 v62, v63, 4, v62")
        a("s_lshl_b32 s58, s89, 5"); a("v_add_u32 v62, s58, v62")
        for d in (40, 44):
            a(f"s_mov_b32 s{d}, s80"); a(f"s_mov_b32 s{d+1}, s81"); a(f"s_mov_b32 s{d+2}, {1792*1024}")
        a(f"s_mul_i32 s96, s3, {448*1024}"); a("s_add_u32 s97, s96, 32768")
        a(f"s_mul_i32 s98, s3, {448*32}"); a(f"s_add_u32 s98, s98, {L_WD}"); a("s_add_u32 s99, s98, 1024")
        a("s_mov_b32 s100, 65536"); a("s_mov_b32 s101, 2048"); a("s_mov_b32 s93, 7")
        a("L_dmaX:")
        if "nodma" in xp: a("s_mov_b32 s93, 0")
        if "lindma" in xp: a("v_lshlrev_b32 v62, 4, v1"); a("s_lshl_b32 s58, s89, 10"); a("v_add_u32 v62, s58, v62")
    def dma_one(k):
        if k % 2 == 0:
            a("s_cmp_eq_u32 s93, 0")
            a("s_cselect_b32 s42, 0, s42"); a("s_cselect_b32 s46, 0, s46")
            a(f"s_cselect_b32 s98, {L_SP}, s98"); a(f"s_cselect_b32 s99, {L_SP}, s99"); a("s_cselect_b32 s101, 0, s101")
            a("s_cselect_b32 s93, 1, s93")
            a("s_mov_b32 m0, s98"); a("s_sub_u32 s93, s93, 1")
            a(f"buffer_load_dwordx4 v62, s[40:43], s96 offen {fpol} lds")
            a("s_add_u32 s96, s96, s100"); a("s_add_u32 s98, s98, s101")
        else:
            a("s_mov_b32 m0, s99"); a("s_nop 0")
            a(f"buffer_load_dwordx4 v62, s[44:47], s97 offen {fpol} lds")
            a("s_add_u32 s97, s97, s100"); a("s_add_u32 s99, s99, s101")
    def lap_steps(DD, pair, consume, final=False):
        e = lead if pair else 0
        for j in range(e): sload((DD + j) % NB, DD + j >= NB)
        if pair: dma_pair()
        for i in range(NB):
            n = DD - 1 + max(0, e - i) + (2 if pair and i < DD + e else 0)
            a(f"s_waitcnt vmcnt({n})")
            if final and i + DD >= NB and i + DD - NB < dlast: dma_one(i + DD - NB)
            elif i >= e: sload((i + DD) % NB, i + DD >= NB)
            consume(i)
    def dma_pair():
        a("s_cmp_eq_u32 s93, 0")
        a("s_cselect_b32 s42, 0, s42"); a("s_cselect_b32 s46, 0, s46")
        a(f"s_cselect_b32 s98, {L_SP}, s98"); a(f"s_cselect_b32 s99, {L_SP}, s99"); a("s_cselect_b32 s101, 0, s101")
        a("s_cselect_b32 s93, 1, s93")
        a("s_mov_b32 m0, s98"); a("s_sub_u32 s93, s93, 1")
        a(f"buffer_load_dwordx4 v62, s[40:43], s96 offen {fpol} lds" if "regdma" not in xp else f"buffer_load_dwordx4 v[120:123], v62, s[40:43], s96 offen {fpol}")
        a("s_mov_b32 m0, s99"); a("s_add_u32 s96, s96, s100")
        a(f"buffer_load_dwordx4 v62, s[44:47], s97 offen {fpol} lds" if "regdma" not in xp else f"buffer_load_dwordx4 v[124:127], v62, s[44:47], s97 offen {fpol}")
        a("s_add_u32 s97, s97, s100"); a("s_add_u32 s98, s98, s101"); a("s_add_u32 s99, s99, s101")
    a(f"{NAME}:")
    a("s_cmp_ge_u32 s2, 256"); a("s_cbranch_scc1 L_end")
    a("s_load_dwordx16 s[64:79], s[0:1], 0")
    a("s_load_dwordx8 s[80:87], s[0:1], 64")
    a("v_lshrrev_b32 v1, 6, v0")
    a("v_readfirstlane_b32 s3, v1")
    a("v_and_b32 v1, 63, v0")
    if hmap == 0:
        a("s_lshr_b32 s4, s2, 5"); a("s_and_b32 s5, s2, 31"); a("s_mov_b32 s6, s2")
    else:
        a("s_lshr_b32 s4, s2, 5"); a("s_and_b32 s5, s2, 7"); a("s_lshl_b32 s5, s5, 2"); a("s_bfe_u32 s6, s2, 0x20003"); a("s_add_u32 s5, s5, s6")
        a("s_lshl_b32 s6, s4, 5"); a("s_add_u32 s6, s6, s5")
    a("v_lshrrev_b32 v74, 4, v1"); a("v_and_b32 v75, 15, v1")
    if stamps: a("v_mov_b32 v73, 0")
    a("v_lshlrev_b32 v48, 4, v1")
    a("s_lshl_b32 s58, s3, 12"); a("v_add_u32 v2, s58, v48")
    for k in range(1, 8): a(f"v_add_u32 v{2+k}, {k*16384}, v2")
    a("s_lshl_b32 s58, s3, 8"); a("v_lshlrev_b32 v49, 3, v75"); a("v_lshl_add_u32 v49, v74, 1, v49"); a("v_add_u32 v49, s58, v49")
    a("v_lshrrev_b32 v51, 1, v74")
    a("s_lshl_b32 s58, s3, 20"); a("v_lshlrev_b32 v58, 13, v74"); a("v_lshl_add_u32 v58, v75, 4, v58"); a("v_add_u32 v58, s58, v58")
    a("s_lshl_b32 s58, s3, 8"); a("v_lshlrev_b32 v59, 10, v74"); a("v_lshl_add_u32 v59, v75, 4, v59"); a("v_add_u32 v59, s58, v59")
    a("s_lshl_b32 s57, s4, 10")
    a("s_lshl_b32 s58, s5, 8")
    a("s_lshl_b32 s59, s6, 20")
    a("s_sub_u32 s92, 0x400000, s58")
    a("s_waitcnt lgkmcnt(0)")
    stamp(0)
    srd(28, 64, 65, 8192)
    a("buffer_load_dwordx4 v[52:55], v48, s[28:31], s57 offen"); vm.append("x")
    a("buffer_load_ushort v56, v49, s[28:31], s57 offen"); vm.append("xc0")
    a("buffer_load_ushort v57, v49, s[28:31], s57 offen offset:128"); vm.append("xc1")
    srd(20, 70, 71, "s92", "s58")
    srd(8, 66, 67, 0x100000, "s59")
    a("s_mov_b32 s54, 0")
    def wqload(t):
        a(f"s_mov_b32 s58, {t*32768}")
        a(f"buffer_load_dwordx4 a[{4*t}:{4*t+3}], v58, s[20:23], s58 offen {wpol}"); vm.append(f"wq{t}")
    kiss = 0
    def kload(nxt=False):
        nonlocal kiss
        sload(kiss % NB, kiss >= NB); vm.append(f"k{kiss}"); kiss += 1
    wiss = 0
    for j in range(n1):
        kload(); wqload(wiss); wqload(wiss + 1); wiss += 2
    a("s_add_u32 s16, s68, s59"); a("s_addc_u32 s17, s69, 0")
    a("s_mov_b32 s12, s8"); a("s_mov_b32 s13, s9"); a("s_mov_b32 s14, 0x100000"); a("s_mov_b32 s15, 0x20000")
    a("s_lshl_b32 s58, s5, 17"); srd(24, 72, 73, 0x20000, "s58")
    srd(32, 86, 87, WS_SIZE); srd(36, 82, 83, 8192)
    srd(40, 76, 77, 512*3584); srd(44, 78, 79, 512*3584)
    if rmap == 0:
        a("s_and_b32 s58, s2, 7"); a("s_lshr_b32 s92, s2, 3")
        a("s_mul_i32 s89, s58, 7"); a("s_add_u32 s89, s89, s92")
        a("s_cmp_lt_u32 s2, 56"); a("s_cselect_b32 s7, 1, 0")
        a("s_lshl_b32 s58, s58, 2"); a("s_add_u32 s58, s58, s92"); a("s_sub_u32 s58, s58, 28")
        a("s_cmp_ge_u32 s2, 224"); a("s_cselect_b32 s89, s58, s89"); a("s_cselect_b32 s7, 3, s7")
        a("s_sub_u32 s58, s2, 64"); a("s_cmp_lt_u32 s58, 64"); a("s_cselect_b32 s89, s58, s89"); a("s_cselect_b32 s7, 2, s7")
    else:
        a("s_and_b32 s58, s2, 7"); a("s_lshr_b32 s92, s2, 3")
        a("s_lshl_b32 s89, s92, 1"); a("s_and_b32 s7, s2, 1"); a("s_add_u32 s89, s89, s7")
        a("s_lshr_b32 s7, s58, 1")
        a("s_cmp_eq_u32 s7, 2"); a("s_cselect_b32 s7, 2, 0")
        a("s_cmp_lt_u32 s58, 2"); a("s_cselect_b32 s7, 1, s7")
        a("s_cmp_ge_u32 s2, 224"); a("s_cselect_b32 s93, 1, 0"); a("s_cmp_eq_u32 s7, 1"); a("s_cselect_b32 s93, s93, 0"); a("s_sub_u32 s7, s7, s93")
        a("s_cmp_eq_u32 s58, 2"); a("s_cselect_b32 s7, 3, s7"); a("s_cselect_b32 s89, s92, s89")
    a("v_lshrrev_b32 v68, 2, v75"); a("v_lshlrev_b32 v68, 15, v68"); a("v_lshl_add_u32 v68, v74, 4, v68")
    a("v_and_b32 v60, 3, v75"); a("v_lshl_add_u32 v68, v60, 5, v68")
    a("s_lshl_b32 s58, s3, 17"); a("s_lshr_b32 s92, s4, 1"); a("s_lshl_b32 s92, s92, 13"); a("s_add_u32 s58, s58, s92")
    a("s_lshl_b32 s92, s5, 8"); a("s_add_u32 s58, s58, s92")
    a("s_and_b32 s92, s4, 1"); a("s_lshl_b32 s92, s92, 7"); a("s_add_u32 s58, s58, s92"); a("v_add_u32 v68, s58, v68")
    a("v_lshlrev_b32 v69, 3, v75"); a("v_lshl_add_u32 v69, v51, 2, v69")
    a("v_lshrrev_b32 v50, 3, v75"); a("v_lshlrev_b32 v50, 10, v50"); a("v_and_b32 v60, 7, v75"); a("v_lshl_add_u32 v50, v60, 3, v50")
    a("v_lshl_add_u32 v50, v51, 2, v50")
    a("s_and_b32 s58, s89, 3"); a("s_lshl_b32 s58, s58, 11"); a("s_lshr_b32 s92, s89, 2"); a("s_lshl_b32 s92, s92, 6"); a("s_add_u32 s58, s58, s92")
    a("v_add_u32 v50, s58, v50")
    a("s_lshl_b32 s58, s89, 7"); a(f"s_add_u32 s58, s58, {WS_H}"); a("v_add_u32 v69, s58, v69")
    a("buffer_load_dword v71, v50, s[28:31], 0 offen"); vm.append("xr")
    a("v_lshlrev_b32 v70, 4, v75"); a("v_lshl_add_u32 v70, v74, 3, v70")
    a("s_lshl_b32 s58, s89, 2"); a("s_add_u32 s58, s58, s3"); a("s_lshl_b32 s58, s58, 7"); a(f"s_add_u32 s58, s58, {WS_G}"); a("v_add_u32 v70, s58, v70")
    a("s_cmp_eq_u32 s7, 2"); a("s_cbranch_scc0 L_noclr")
    if "noclr" in xp: a("s_branch L_noclr")
    for r in range(4): a(f"v_mov_b32 v{60+r}, -1")
    a("s_lshl_b32 s58, s89, 13"); a("s_lshl_b32 s92, s3, 11"); a("s_add_u32 s58, s58, s92")
    a("buffer_store_dwordx4 v[60:63], v48, s[32:35], s58 offen sc1")
    a("buffer_store_dwordx4 v[60:63], v48, s[32:35], s58 offen offset:1024 sc1")
    a("s_mov_b64 exec, 0x00ff00ff")
    a("buffer_store_dwordx2 v[60:61], v70, s[32:35], 0 offen sc1")
    if adapt == 1:
        a("s_cmp_lt_u32 s89, 8"); a("s_cbranch_scc0 L_noclrR")
        a("s_lshl_b32 s58, s89, 8"); a(f"s_add_u32 s58, s58, {WS_R}"); a("s_mov_b64 exec, 0xff")
        a("buffer_store_dwordx4 v[60:63], v48, s[32:35], s58 offen sc1")
        a("L_noclrR:")
    a("s_cmp_eq_u32 s3, 0"); a("s_cbranch_scc0 L_noclr")
    a("s_mov_b32 exec_lo, 0xffff"); a("s_mov_b32 exec_hi, 0xffff")
    a("buffer_store_dword v60, v69, s[32:35], 0 offen sc1")
    a("L_noclr:")
    a("s_mov_b64 exec, -1")
    for j in range(nA): kload()
    stamp(1)
    a("s_mov_b32 s60, 0xcccccccc"); a("s_mov_b32 s61, 0xcccccccc"); a("s_mov_b32 s62, 0xaaaaaaaa"); a("s_mov_b32 s63, 0xaaaaaaaa")
    a(f"s_mov_b32 s90, {f32(128 ** -0.5)}"); a(f"s_mov_b32 s91, {f32(1.4426950408889634)}")
    a("s_lshr_b32 s58, s2, 3"); a("s_and_b32 s58, s58, 3"); a("s_add_u32 s58, s58, 2")
    a("s_lshl_b32 s92, s3, 2"); a("s_add_u32 s92, s92, s7"); a("s_cmp_eq_u32 s92, 2"); a("s_cselect_b32 s57, s58, 99")
    if "nosig" in xp or sig != "lap": a("s_mov_b32 s57, 99")
    a("v_and_b32 v60, 1, v75"); a("v_lshlrev_b32 v60, 4, v60"); a("v_mov_b32 v61, 0xffff"); a("v_lshlrev_b32 v60, v60, v61")
    a("v_lshrrev_b32 v61, 1, v75")
    for r in range(4):
        a(f"v_cmp_eq_u32 vcc, {r}, v61"); a(f"v_cndmask_b32 v{14+r}, 0, v60, vcc")
    vwait("x")
    for j in range(nB): kload()
    for k in range(4):
        a(f"v_lshlrev_b32 v{76+2*k}, 16, v{52+k}"); a(f"v_and_b32 v{77+2*k}, 0xffff0000, v{52+k}")
    a("v_add_f32 v84, v76, v77")
    for k in range(2, 8): a(f"v_add_f32 v84, v84, v{76+k}")
    allred("v_add_f32", "v84", "v85")
    a(f"v_mul_f32 v84, {f32(1/512)}, v84")
    for k in range(8): a(f"v_sub_f32 v{76+k}, v{76+k}, v84")
    a("v_mul_f32 v86, v76, v76")
    for k in range(1, 8): a(f"v_fmac_f32 v86, v{76+k}, v{76+k}")
    allred("v_add_f32", "v86", "v85")
    a(f"v_mul_f32 v86, {f32(1/512)}, v86")
    bf16r("v84"); bf16r("v86")
    a(f"v_add_f32 v86, {f32(1e-5)}, v86"); bf16r("v86")
    a("v_sqrt_f32 v86, v86"); bf16r("v86"); a("v_rcp_f32 v86, v86")
    vwait("xc1")
    for k in range(2):
        a(f"v_lshlrev_b32 v{56+k}, 16, v{56+k}"); a(f"v_sub_f32 v{56+k}, v{56+k}, v84"); bf16r(f"v{56+k}")
        a(f"v_mul_f32 v{56+k}, v{56+k}, v86"); a(f"v_cvt_pk_bf16_f32 v{66+k}, v{56+k}, v{56+k}")
    stamp(2)
    masks(0, "v66", 0)
    for t in range(32):
        vwait(f"wq{t}")
        a(f"v_mfma_f32_16x16x32_bf16 v[28:31], {mop(t)}, a[{4*t}:{4*t+3}], {'0' if t == 0 else 'v[28:31]'}")
        if wiss < 32: wqload(wiss); wiss += 1
        if int((t + 1) / kq) > int(t / kq) and kiss < NB: kload()
        if t < 31: masks(t + 1, "v66" if t + 1 < 16 else "v67", (t + 1) & 15)
    for j in range(nbar):
        if kiss < NB: kload()
    a("v_lshlrev_b32 v27, 5, v75"); a("v_lshl_add_u32 v26, v74, 4, v27"); a("s_lshl_b32 s58, s3, 9"); a("v_add_u32 v26, s58, v26")
    a("s_mov_b32 exec_hi, 0")
    a(f"ds_write_b128 v26, v[28:31] offset:{L_QP}")
    a("s_mov_b64 exec, -1")
    a("s_waitcnt lgkmcnt(0)"); a("s_barrier")
    if sig == "q" and "nosig" not in xp:
        a("s_lshl_b32 s58, s3, 2"); a("s_add_u32 s58, s58, s7"); a("s_cmp_eq_u32 s58, 2"); a("s_cbranch_scc0 L_nosigq")
        a("s_lshl_b32 s58, s89, 2"); a("v_mov_b32 v60, s58"); a("s_or_b32 s58, s18, 1"); a("v_mov_b32 v61, s58"); a("s_mov_b64 exec, 1")
        a("global_store_dword v60, v61, s[84:85] sc1")
        a("s_mov_b64 exec, -1")
        a("L_nosigq:")
    for w in range(4):
        for hh in range(2): a(f"ds_read_b128 v[{76+8*w+4*hh}:{79+8*w+4*hh}], v27 offset:{L_QP+512*w+16*hh}")
    a("s_waitcnt lgkmcnt(0)")
    for k in range(8):
        a(f"v_add_f32 v{76+k}, v{76+k}, v{84+k}"); a(f"v_add_f32 v{92+k}, v{92+k}, v{100+k}")
    for k in range(8): a(f"v_add_f32 v{76+k}, v{76+k}, v{92+k}")
    for k in range(4): a(f"v_cvt_pk_bf16_f32 v{10+k}, v{76+2*k}, v{77+2*k}")
    a("v_mov_b32 v64, 0xff800000"); a("v_mov_b32 v65, 0")
    stamp(3)

    def kconsume(i):
        t = i & 15
        x = f"v{48 + (t & 1)}" if True else None
        base = RING + 4 * i
        a(f"v_dot2_f32_bf16 {x}, v{base}, v10, 0")
        for r in range(1, 4): a(f"v_dot2_f32_bf16 {x}, v{base+r}, v{10+r}, {x}")
        if t & 1:
            d = f"v{50 + ((t >> 1) & 1)}"
            a(f"v_add_f32_dpp {d}, v48, v48 row_ror:8 row_mask:0xf bank_mask:0x3")
            a(f"v_add_f32_dpp {d}, v49, v49 row_ror:8 row_mask:0xf bank_mask:0xc")
        if t & 3 == 3:
            d = f"v{52 + ((t >> 2) & 1)}"
            a(f"v_add_f32_dpp {d}, v50, v50 row_half_mirror row_mask:0xf bank_mask:0x5")
            a(f"v_add_f32_dpp {d}, v51, v51 row_half_mirror row_mask:0xf bank_mask:0xa")
        if t & 7 == 7:
            d = f"v{54 + ((t >> 3) & 1)}"
            a("v_add_f32_dpp v52, v52, v52 quad_perm:[2,3,0,1] row_mask:0xf bank_mask:0xf")
            a("v_add_f32_dpp v53, v53, v53 quad_perm:[2,3,0,1] row_mask:0xf bank_mask:0xf")
            a(f"v_cndmask_b32 {d}, v52, v53, s[60:61]")
        if t == 15:
            s = f"v{46 + (i >> 4)}"
            a("v_add_f32_dpp v54, v54, v54 quad_perm:[1,0,3,2] row_mask:0xf bank_mask:0xf")
            a("v_add_f32_dpp v55, v55, v55 quad_perm:[1,0,3,2] row_mask:0xf bank_mask:0xf")
            a(f"v_cndmask_b32 {s}, v54, v55, s[62:63]")
            bf16r(s); a(f"v_mul_f32 {s}, s90, {s}"); bf16r(s)
            a(f"v_max_f32 v64, v64, {s}")
    a(f"s_mov_b32 s55, {NB*4096}")
    left = NB + D - kiss
    early = list(early)
    while early and early[-1] >= NB - (left - len(early)): early.pop()
    sched = early + list(range(NB - (left - len(early)), NB))
    assert len(set(sched)) == left, (sched, left)
    for i in range(NB):
        vwait(f"k{i}")
        if i in sched:
            assert kiss - NB < i
            kload()
        kconsume(i)
    stamp(4)
    a("s_mov_b32 s54, s55"); a(f"s_add_u32 s55, s55, {NB*4096}")
    for k in range(2): a(f"v_mov_b32 v{44+k}, v{46+k}")
    if D1 is None: D1 = D
    def k1load():
        nonlocal kiss
        j = kiss - NB
        sload(j % NB, j >= NB); vm.append(f"k{kiss}"); kiss += 1
    for j in range(D1 - D): k1load()
    for i in range(NB):
        vwait(f"k{NB+i}")
        if kiss < 2 * NB + D: k1load()
        if adapt and i == 20:
            a("v_lshlrev_b32 v60, 2, v1"); a("global_load_dword v72, v60, s[84:85] sc1"); vm.append("fl")
        a(f"s_mov_b32 s58, {i*4096}")
        if "nowo" not in xp: a(f"buffer_load_dwordx4 a[{4*i}:{4*i+3}], v59, s[24:27], s58 offen {wpol}"); vm.append(f"wo{i}")
        kconsume(i)
    a("s_mov_b32 s56, 2")
    if dma == "loop": dma_setup()
    def kloop(sfx, DD, lim):
        a(".p2align 3")
        a(f"L_kloop{sfx}:")
        a("s_mov_b32 s54, s55"); a(f"s_add_u32 s55, s55, {NB*4096}")
        a("s_cmp_eq_u32 s56, 7")
        a("s_cselect_b32 s12, s16, s12"); a("s_cselect_b32 s13, s17, s13"); a("s_cselect_b32 s55, 0, s55")
        a("s_cmp_eq_u32 s56, s57"); a(f"s_cbranch_scc0 L_nosig{sfx}")
        a("s_lshl_b32 s58, s89, 2"); a("v_mov_b32 v60, s58"); a("s_or_b32 s58, s18, 1"); a("v_mov_b32 v61, s58"); a("s_mov_b64 exec, 1")
        a("global_store_dword v60, v61, s[84:85] sc1")
        a("s_mov_b64 exec, -1")
        a(f"L_nosig{sfx}:")
        for k in range(14): a(f"v_mov_b32 v{32+k}, v{34+k}")
        lap_steps(DD, dma == "loop", kconsume)
        a("s_add_u32 s56, s56, 1"); a(f"s_cmp_lt_u32 s56, {lim}"); a(f"s_cbranch_scc1 L_kloop{sfx}")
    def decide(label, br="scc1"):
        if adapt == 1:
            a("v_cmp_le_i32 vcc, s49, v27"); a("s_bcnt1_i32_b64 s58, vcc")
            a("s_sub_u32 s49, s52, s48")
            a("s_cmp_ge_u32 s58, s50")
        else:
            a("s_waitcnt lgkmcnt(0)")
            a("s_sub_u32 s58, s52, s49"); a(f"s_add_u32 s49, s49, {tau}")
            if cred:
                a("s_add_u32 s48, s48, 1"); a(f"s_min_u32 s48, s48, {cred[0]}")
                a(f"s_cmp_ge_u32 s48, {cred[1]}"); a("s_cselect_b32 s58, s58, 0")
                a("s_cmp_gt_i32 s58, 0"); a(f"s_cselect_b32 s57, {cred[1]}, 0"); a("s_sub_u32 s48, s48, s57")
            a("s_cmp_gt_i32 s58, 0")
        a(f"s_cbranch_{br} {label}")
    def segment(tag, mode, k, consume):
        DD = D + (hi if mode else 0); i0 = 16 * k
        if mode:
            a("s_cmp_eq_u32 s51, 1"); a(f"s_cbranch_scc1 {tag}_in")
            for j in range(D, DD): sload((i0 + j) % NB, i0 + j >= NB)
            a(f"{tag}_in:")
        if adapt == 1:
            a("s_cmp_eq_u32 s53, 0"); a(f"s_cbranch_scc1 {tag}_np")
            for r in range(4): a(f"v_mov_b32 v{60+r}, s52")
            a("s_mov_b64 exec, 0xff")
            a("buffer_store_dwordx4 v[60:63], v59, s[32:35], s53 offen sc1")
            a(f"{tag}_np:")
            a("s_mov_b64 exec, 0xff")
            a("buffer_load_dword v27, v58, s[32:35], 0 offen sc1")
            a("s_mov_b64 exec, -1")
            a("s_add_u32 s52, s52, 1")
        pr = 2 if dma == "loop" and k == 0 else 0
        if pr: dma_pair()
        for i in range(i0, i0 + 16):
            a(f"s_waitcnt vmcnt({DD - 1 + ((1 if adapt == 1 else 0) + pr if i - i0 < DD else 0)})")
            skip = (not mode) and i - i0 < hi
            if skip: a("s_cmp_eq_u32 s51, 1"); a(f"s_cbranch_scc1 {tag}_s{i}")
            sload((i + DD) % NB, i + DD >= NB)
            if skip: a(f"{tag}_s{i}:")
            if i - i0 == hi: a(f"s_mov_b32 s51, {mode}")
            if adapt == 2 and i - i0 == 15: a("s_memrealtime s[52:53]")
            consume(i)
    def adaptive_lap(name, head_code, consume, lim):
        a(".p2align 3")
        a(f"{name}:")
        head_code()
        decide(f"{name}_h0")
        segment(f"{name}_l0", 0, 0, consume)
        decide(f"{name}_h1")
        a(f"{name}_l1:")
        segment(f"{name}_l1", 0, 1, consume)
        a("s_add_u32 s56, s56, 1"); a(f"s_cmp_lt_u32 s56, {lim}"); a(f"s_cbranch_scc1 {name}")
        a(f"s_branch {name}_end")
        a(f"{name}_h0:")
        segment(f"{name}_h0", 1, 0, consume)
        decide(f"{name}_l1", "scc0")
        a(f"{name}_h1:")
        segment(f"{name}_h1", 1, 1, consume)
        a("s_add_u32 s56, s56, 1"); a(f"s_cmp_lt_u32 s56, {lim}"); a(f"s_cbranch_scc1 {name}")
        a(f"{name}_end:")
    if adapt:
        vwait("fl")
        a("v_cmp_eq_u32 vcc, 0, v72"); a("s_cmp_eq_u64 vcc, 0"); a(f"s_cselect_b32 s50, {thr}, 99")
        a("s_cmp_eq_u32 s7, 1"); a(f"s_cselect_b32 s48, {head[0]}, 0"); a("s_cmp_eq_u32 s7, 3"); a(f"s_cselect_b32 s48, {head[1]}, s48")
        if adapt == 1:
            a("s_mov_b32 s49, 0"); a("s_mov_b32 s51, 0"); a("s_mov_b32 s52, 4")
            a(f"s_sub_u32 s58, s2, {ref0}"); a("s_lshl_b32 s53, s58, 8"); a(f"s_add_u32 s53, s53, {WS_R}")
            a("s_lshl_b32 s92, s3, 3"); a("s_add_u32 s58, s58, s92"); a(f"s_cmp_ge_u32 s2, {ref0}"); a("s_cselect_b32 s58, s58, 99")
            a("s_cmp_lt_u32 s58, 8"); a("s_cselect_b32 s53, s53, 0")
            a("v_mov_b32 v27, -1"); a("v_lshlrev_b32 v59, 4, v1"); a("v_lshlrev_b32 v58, 8, v1"); a(f"v_add_u32 v58, {WS_R}, v58")
        else:
            a("s_memrealtime s[52:53]"); a("s_mov_b32 s51, 0")
            a(f"s_add_u32 s49, s18, {c0}"); a("s_sub_u32 s49, s49, s48")
            if org:
                a("v_subrev_u32 v72, s18, v72")
                allred("v_add_u32", "v72", "v48")
                a("v_readfirstlane_b32 s58, v72"); a("s_ashr_i32 s58, s58, 6")
                a("s_cmp_lg_u32 s50, 99"); a("s_cselect_b32 s58, s58, 0"); a("s_add_u32 s49, s49, s58")
        if cred: a(f"s_mov_b32 s48, {cred[0]}")
        def khead():
            lapstamp(16)
            a("s_mov_b32 s54, s55"); a(f"s_add_u32 s55, s55, {NB*4096}")
            a("s_cmp_eq_u32 s56, 7")
            a("s_cselect_b32 s12, s16, s12"); a("s_cselect_b32 s13, s17, s13"); a("s_cselect_b32 s55, 0, s55")
            for k in range(14): a(f"v_mov_b32 v{32+k}, v{34+k}")
        adaptive_lap("L_ka", khead, kconsume, 8)
    else:
        if hi:
            for r in hirole: a(f"s_cmp_eq_u32 s7, {r}"); a("s_cbranch_scc1 L_khi")
        kloop("A", D, 8)
        if hi:
            a("s_branch L_kdone")
            a("L_khi:")
            for j in range(D, D + hi): sload(j, True)
            a("s_cmp_eq_u32 s7, 1"); a(f"s_cselect_b32 s53, {hil[0]}, {hil[1]}")
            kloop("B", D + hi, "s53")
            a("s_cmp_lt_u32 s56, 8"); a("s_cbranch_scc1 L_kloopA")
            a("L_kdone:")
    stamp(5)
    allred("v_max_f32", "v64", "v48")
    a("v_mul_f32 v64, s91, v64"); a("v_sub_f32 v64, 0, v64")
    a("s_mov_b32 s8, s12"); a("s_mov_b32 s9, s13"); a("s_mov_b32 s56, 0")
    for r in range(4): a(f"v_mov_b32 v{28+r}, 0")
    if vpol is not None: cur["pol"] = vpol
    def vlap(name, DD, last, lim):
        a(".p2align 3")
        a(f"{name}:")
        a("s_mov_b32 s54, s55"); a(f"s_add_u32 s55, s55, {NB*4096}")
        for k in range(2):
            a(f"v_fma_f32 v{56+k}, v{32+k}, s91, v64"); a(f"v_exp_f32 v{56+k}, v{56+k}")
            a(f"v_add_f32 v65, v65, v{56+k}"); a(f"v_cvt_pk_bf16_f32 v{66+k}, v{56+k}, v{56+k}")
        for k in range(14): a(f"v_mov_b32 v{32+k}, v{34+k}")
        masks(0, "v66", 0)
        if not last:
            a("s_cmp_eq_u32 s56, 3"); a("s_cbranch_scc0 L_nochk")
            a("v_lshlrev_b32 v60, 2, v1")
            a("global_load_dword v72, v60, s[84:85] sc1")
            a("L_nochk:")
        else:
            a("s_cmp_eq_u32 s56, 7"); a("s_cbranch_scc0 L_nolast")
            allred("v_add_f32", "v65", "v48")
            a("s_lshl_b32 s58, s3, 3"); a("v_mov_b32 v48, s58"); a("s_mov_b64 exec, 1")
            a(f"ds_write_b64 v48, v[64:65] offset:{L_ML}")
            a("s_mov_b64 exec, -1")
            if "nosig" in xp: a("s_branch L_nolast")
            a("v_cmp_eq_u32 vcc, 0, v72"); a("s_cbranch_vccz L_nolast")
            a(f"s_mov_b32 s88, {SPIN}"); a("v_lshlrev_b32 v60, 2, v1")
            a("L_cnt:")
            a("s_sleep 8"); a("global_load_dword v72, v60, s[84:85] sc1"); a("s_waitcnt vmcnt(0)")
            a("v_cmp_eq_u32 vcc, 0, v72"); a("s_cbranch_vccz L_nolast")
            a("s_sub_u32 s88, s88, 1"); a("s_cbranch_scc0 L_cnt")
            a("L_nolast:")
        def vconsume(i):
            a(f"v_mfma_f32_16x16x32_bf16 v[28:31], {mop(i)}, {ring(i)}, v[28:31]")
            if i < NB - 1: masks(i + 1, f"v{66 + ((i + 1) >> 4)}", bitrev((i + 1) & 15))
        lap_steps(DD, dma == "loop" and not last, vconsume, last)
        a("s_add_u32 s56, s56, 1"); a(f"s_cmp_lt_u32 s56, {lim}"); a(f"s_cbranch_scc1 {name}")
    if adapt:
        def vhead():
            lapstamp(24)
            a("s_mov_b32 s54, s55"); a(f"s_add_u32 s55, s55, {NB*4096}")
            for k in range(2):
                a(f"v_fma_f32 v{56+k}, v{32+k}, s91, v64"); a(f"v_exp_f32 v{56+k}, v{56+k}")
                a(f"v_add_f32 v65, v65, v{56+k}"); a(f"v_cvt_pk_bf16_f32 v{66+k}, v{56+k}, v{56+k}")
            for k in range(14): a(f"v_mov_b32 v{32+k}, v{34+k}")
            masks(0, "v66", 0)
            a("s_cmp_eq_u32 s56, 7"); a("s_cbranch_scc0 L_nolast")
            allred("v_add_f32", "v65", "v48")
            a("s_lshl_b32 s58, s3, 3"); a("v_mov_b32 v48, s58"); a("s_mov_b64 exec, 1")
            a(f"ds_write_b64 v48, v[64:65] offset:{L_ML}")
            a("s_mov_b64 exec, -1")
            a("s_cmp_lg_u32 s50, 99"); a("s_cbranch_scc1 L_nolast")
            a(f"s_mov_b32 s88, {SPIN}"); a("v_lshlrev_b32 v60, 2, v1")
            a("L_cnt:")
            a("global_load_dword v72, v60, s[84:85] sc1"); a("s_waitcnt vmcnt(0)")
            a("v_cmp_eq_u32 vcc, 0, v72"); a("s_cbranch_vccz L_nolast")
            a("s_sleep 8"); a("s_sub_u32 s88, s88, 1"); a("s_cbranch_scc0 L_cnt")
            a("L_nolast:")
        def vconsume(i):
            a(f"v_mfma_f32_16x16x32_bf16 v[28:31], {mop(i)}, {ring(i)}, v[28:31]")
            if i < NB - 1: masks(i + 1, f"v{66 + ((i + 1) >> 4)}", bitrev((i + 1) & 15))
        adaptive_lap("L_va", vhead, vconsume, 8)
    else:
        vlap("L_vloopA", D, False, 8 - nl2)
        for j in range(D, D2): sload(j, True)
        if dlast: assert nl2 == 1 and dlast % 2 == 0 and dlast <= D2; dma_setup()
        vlap("L_vloopB", D2, True, 8)
    if "dup" in xp:
        a("s_lshl_b32 s59, s6, 20"); a("s_add_u32 s8, s66, s59"); a("s_addc_u32 s9, s67, 0"); a("s_mov_b32 s12, s8"); a("s_mov_b32 s13, s9")
        a("s_mov_b32 s55, 0"); a("s_mov_b32 s56, 0")
        for j in range(D): sload(j, True)
        a("L_dup:")
        a("s_mov_b32 s54, s55"); a(f"s_add_u32 s55, s55, {NB*4096}")
        lap_steps(D, False, lambda i: None)
        a("s_add_u32 s56, s56, 1"); a("s_cmp_lt_u32 s56, 8"); a("s_cbranch_scc1 L_dup")
    stamp(6)
    a("v_lshlrev_b32 v27, 4, v75"); a("v_lshl_add_u32 v27, v74, 2, v27")
    a("v_mov_b32 v48, 0")
    a("s_mov_b32 exec_hi, 0")
    a(f"ds_write_b128 v26, v[28:31] offset:{L_OP}")
    a("s_mov_b64 exec, -1")
    a("s_waitcnt lgkmcnt(0)"); a("s_barrier")
    a(f"ds_read_b128 v[76:79], v48 offset:{L_ML}"); a(f"ds_read_b128 v[80:83], v48 offset:{L_ML+16}")
    for w in range(4): a(f"ds_read2st64_b32 v[{84+2*w}:{85+2*w}], v27 offset0:{L_OP//256+2*w} offset1:{L_OP//256+2*w+1}")
    a("s_waitcnt lgkmcnt(4)")
    a("v_min_f32 v48, v76, v78"); a("v_min3_f32 v48, v48, v80, v82")
    for w in range(4): a(f"v_sub_f32 v{76+2*w}, v48, v{76+2*w}")
    for w in range(4): a(f"v_exp_f32 v{76+2*w}, v{76+2*w}")
    a("v_mul_f32 v49, v76, v77")
    for w in range(1, 4): a(f"v_fmac_f32 v49, v{76+2*w}, v{77+2*w}")
    a("v_rcp_f32 v49, v49")
    a("s_waitcnt lgkmcnt(0)")
    for k in range(2):
        a(f"v_mul_f32 v{56+k}, v76, v{84+k}")
        for w in range(1, 4): a(f"v_fmac_f32 v{56+k}, v{76+2*w}, v{84+2*w+k}")
    for k in range(2):
        a(f"v_mul_f32 v{56+k}, v{56+k}, v49"); a(f"v_cvt_pk_bf16_f32 v{66+k}, v{56+k}, v{56+k}")
    masks(0, "v66", 0)
    for t in range(32):
        if t < 31: masks(t + 1, "v66" if t + 1 < 16 else "v67", (t + 1) & 15)
        a(f"v_mfma_f32_16x16x32_bf16 v[28:31], {mop(t)}, a[{4*t}:{4*t+3}], {'0' if t == 0 else 'v[28:31]'}")
    a("s_mov_b32 s58, -2")
    a("s_mov_b32 exec_hi, 0")
    for r in range(4): a(f"v_min_u32 v{28+r}, s58, v{28+r}")
    a("buffer_store_dwordx4 v[28:31], v68, s[32:35], 0 offen sc1")
    a("s_mov_b64 exec, -1")
    stamp(7)
    if dma == "late":
        a("s_and_b32 s58, s7, 1"); a("s_cbranch_scc0 L_nodma")
        if not dlast: dma_setup()
        else: a("s_cmp_eq_u32 s93, 0"); a("s_cbranch_scc1 L_dmaw")
        a("L_dmaloop:")
        a("s_mov_b32 m0, s98"); a("s_sub_u32 s93, s93, 1")
        a(f"buffer_load_dwordx4 v62, s[40:43], s96 offen {fpol} lds")
        a("s_mov_b32 m0, s99"); a("s_add_u32 s96, s96, s100")
        a(f"buffer_load_dwordx4 v62, s[44:47], s97 offen {fpol} lds")
        a("s_add_u32 s97, s97, s100"); a("s_add_u32 s98, s98, s101"); a("s_add_u32 s99, s99, s101")
        a("s_cmp_lg_u32 s93, 0"); a("s_cbranch_scc1 L_dmaloop")
        a("L_dmaw:")
        a("s_waitcnt vmcnt(0)"); a("s_barrier")
        stamp(13)
        a("L_nodma:")
    a("v_lshlrev_b32 v62, 4, v1")
    a("v_lshrrev_b32 v60, 2, v75"); a("v_lshl_add_u32 v60, v74, 4, v60")
    a("v_and_b32 v61, 3, v1")
    a("s_cmp_eq_u32 s7, 1"); a("s_cbranch_scc1 L_s3")
    a("s_cmp_eq_u32 s7, 3"); a("s_cbranch_scc1 L_s4")
    a("s_lshl_b32 s58, s3, 2"); a("s_add_u32 s58, s58, s7"); a("s_cmp_eq_u32 s58, 2"); a("s_cbranch_scc0 L_fin")
    a("s_lshl_b32 s59, s89, 13"); a("s_add_u32 s92, s59, 4096")
    a("v_lshlrev_b32 v50, 16, v71"); a("v_and_b32 v51, 0xffff0000, v71")
    def ld8(b): return [f"buffer_load_dwordx4 v[{b+4*u}:{b+3+4*u}], v62, s[32:35], {'s59' if u < 4 else 's92'} offen offset:{(u&3)*1024} sc1" for u in range(8)]
    def useP(b):
        for r in range(16): a(f"v_add_f32 v{108+r}, v{b+r}, v{b+16+r}")
    poll2("L_pP", ld8, 32, (76, 128), useP)
    stamp(8)
    for st in (8, 4):
        for r in range(st): a(f"v_add_f32 v{108+r}, v{108+r}, v{108+st+r}")
    a("v_permlane32_swap_b32 v108, v110"); a("v_permlane32_swap_b32 v109, v111")
    a("v_add_f32 v108, v108, v110"); a("v_add_f32 v109, v109, v111")
    a("v_mov_b32 v110, v108"); a("v_mov_b32 v111, v109")
    a("v_permlane16_swap_b32 v108, v110"); a("v_permlane16_swap_b32 v109, v111")
    a("v_add_f32 v108, v108, v110"); a("v_add_f32 v109, v109, v111")
    a("v_cvt_pk_bf16_f32 v108, v108, v109")
    a("v_and_b32 v109, 0xffff0000, v108"); a("v_lshlrev_b32 v108, 16, v108")
    a("v_add_f32 v108, v108, v50"); a("v_add_f32 v109, v109, v51")
    a("v_cvt_pk_bf16_f32 v108, v108, v109")
    a("s_mov_b32 exec_lo, 0xffff"); a("s_mov_b32 exec_hi, 0xffff")
    a("v_min_u32 v108, -2, v108")
    a("buffer_store_dword v108, v69, s[32:35], 0 offen sc1")
    stamp(9)
    if stamps == 1: a("s_waitcnt vmcnt(0)"); stamp(13)
    a("s_branch L_fin")
    def trread(dst, addr, off): a(f"ds_read_b64_tr_b16 v[{dst}:{dst+1}], {addr} offset:{off}")
    a("L_s3:")
    a("v_lshlrev_b32 v60, 6, v60"); a("v_lshrrev_b32 v49, 1, v61"); a("v_lshl_add_u32 v60, v49, 15, v60")
    a("v_and_b32 v49, 1, v61"); a("v_lshl_add_u32 v60, v49, 3, v60")
    a("s_lshl_b32 s58, s3, 13"); a(f"s_add_u32 s58, s58, {L_WA}"); a("v_add_u32 v60, s58, v60")
    for t in range(4):
        for u in range(2):
            for hf in range(2):
                for sec in range(2): trread(128 + 16*t + 8*u + 4*hf + 2*sec, "v60", (64*u + 8*hf + 4*sec) * 64 + 16*t)
        if t: a("s_waitcnt lgkmcnt(6)")
    for r in range(4): a(f"v_mov_b32 v{112+r}, 0x3f803f80")
    a("v_lshrrev_b32 v62, 1, v74"); a("v_lshlrev_b32 v62, 9, v62"); a("v_bfe_u32 v49, v75, 1, 2"); a("v_lshl_add_u32 v62, v49, 7, v62")
    a("v_and_b32 v49, 1, v75"); a("v_lshl_add_u32 v62, v49, 6, v62"); a("v_and_b32 v49, 1, v74"); a("v_lshl_add_u32 v62, v49, 5, v62")
    a("v_lshrrev_b32 v49, 3, v75"); a("v_lshl_add_u32 v62, v49, 4, v62")
    a("v_and_b32 v27, 7, v75"); a("v_lshlrev_b32 v63, 4, v27"); a("v_lshl_add_u32 v63, v74, 7, v63")
    a("s_lshl_b32 s58, s3, 9"); a("v_add_u32 v26, s58, v63"); a("s_lshl_b32 s58, s3, 11"); a("v_add_u32 v63, s58, v63")
    a("v_lshrrev_b32 v49, 3, v75"); a(f"s_mov_b32 s58, {L_DUMP-L_T2}"); a("v_mad_u32_u24 v26, v49, s58, v26")
    a("v_lshrrev_b32 v49, 1, v74"); a("v_lshlrev_b32 v49, 2, v49"); a("v_lshlrev_b32 v61, 5, v27"); a("v_add_u32 v49, v49, v61")
    a("s_lshl_b32 s58, s3, 3"); a("v_add_u32 v49, s58, v49")
    a("s_lshl_b32 s59, s3, 11"); a(f"s_add_u32 s59, s59, {WS_H}")
    a("s_waitcnt lgkmcnt(0)")
    for k in range(4):
        for t in range(4):
            a(f"v_mfma_f32_16x16x32_bf16 v[{224+4*t}:{227+4*t}], v[{128+16*t+4*k}:{131+16*t+4*k}], v[112:115], {'0' if k == 0 else 'v[%d:%d]' % (224+4*t, 227+4*t)}")
    for t in range(4): a(f"ds_write_b128 v26, v[{224+4*t}:{227+4*t}] offset:{L_CS+2048*t}")
    def ldH(b): return [f"buffer_load_dwordx4 v[{b+4*u}:{b+3+4*u}], v62, s[32:35], s59 offen offset:{u*1024} sc1" for u in range(2)]
    def useH(b):
        n = 0
        for u in range(2):
            for t in range(4):
                for hf in range(2):
                    d = 192 + 8*t + 4*hf
                    a(f"v_mfma_f32_16x16x32_bf16 v[{d}:{d+3}], v[{128+16*t+8*u+4*hf}:{131+16*t+8*u+4*hf}], v[{b+4*u}:{b+3+4*u}], {'0' if u == 0 else 'v[%d:%d]' % (d, d+3)}")
                    if n < 8:
                        a(f"v_dot2_f32_bf16 v52, v{b+n}, v112, {'0' if n == 0 else 'v52'}")
                        a(f"v_dot2_f32_bf16 v53, v{b+n}, v{b+n}, {'0' if n == 0 else 'v53'}")
                    if n == 9:
                        for r in range(2): a(f"v_add_f32_dpp v{52+r}, v{52+r}, v{52+r} row_ror:8 row_mask:0xf bank_mask:0xf")
                    if n == 11: a("v_permlane32_swap_b32 v52, v53"); a("v_add_f32 v52, v52, v53"); a("v_mov_b32 v53, v52")
                    if n == 13: a("v_permlane16_swap_b32 v52, v53"); a("v_add_f32 v52, v52, v53"); a(f"ds_write_b32 v49, v52 offset:{L_ST}")
                    n += 1
    if hdel: a(f"s_sleep {hdel}")
    poll2("L_pH", ldH, 8, (76, 84), useH)
    stamp(10)
    for t in range(4):
        for r in range(4): a(f"v_add_f32_dpp v{192+8*t+r}, v{196+8*t+r}, v{192+8*t+r} row_ror:8 row_mask:0xf bank_mask:0xf")
        a(f"ds_write_b128 v26, v[{192+8*t}:{195+8*t}] offset:{L_T2+2048*t}")
    a("s_waitcnt lgkmcnt(0)"); a("s_barrier")
    for k in range(2): a(f"ds_read_b128 v[{92+4*k}:{95+4*k}], v61 offset:{L_ST+16*k}")
    for w in range(4): a(f"ds_read_b128 v[{224+4*w}:{227+4*w}], v63 offset:{L_CS+512*w}")
    for w in range(4): a(f"ds_read_b128 v[{116+4*w}:{119+4*w}], v63 offset:{L_T2+512*w}")
    a("s_waitcnt lgkmcnt(8)")
    for k in range(2): a(f"v_add_f32 v{92+k}, v{92+k}, v{94+k}"); a(f"v_add_f32 v{96+k}, v{96+k}, v{98+k}")
    a("v_add_f32 v52, v92, v96"); a("v_add_f32 v53, v93, v97")
    a(f"v_mul_f32 v52, {f32(1/512)}, v52"); a(f"v_mul_f32 v53, {f32(1/512)}, v53")
    a("v_fma_f32 v53, -v52, v52, v53"); a("v_max_f32 v53, 0, v53")
    bf16r("v53"); bf16r("v52")
    a(f"v_add_f32 v53, {f32(1e-5)}, v53"); bf16r("v53")
    a("v_sqrt_f32 v53, v53")
    a("s_waitcnt lgkmcnt(4)")
    for r in range(4): a(f"v_add_f32 v{224+r}, v{224+r}, v{228+r}"); a(f"v_add_f32 v{232+r}, v{232+r}, v{236+r}")
    for r in range(4): a(f"v_add_f32 v{108+r}, v{224+r}, v{232+r}")
    a("s_waitcnt lgkmcnt(0)")
    for r in range(4): a(f"v_add_f32 v{116+r}, v{116+r}, v{120+r}"); a(f"v_add_f32 v{124+r}, v{124+r}, v{128+r}")
    for r in range(4): a(f"v_add_f32 v{116+r}, v{116+r}, v{124+r}")
    for r in range(4): a(f"v_fma_f32 v{116+r}, -v52, v{108+r}, v{116+r}")
    bf16r("v53"); a("v_rcp_f32 v53, v53")
    for r in range(4): a(f"v_mul_f32 v{116+r}, v{116+r}, v53")
    for r in range(2): a(f"v_cvt_pk_bf16_f32 v{120+r}, v{116+2*r}, v{117+2*r}")
    for r in range(2): a(f"v_permlane32_swap_b32 v{120+r}, v{122+r}")
    for r in range(2):
        a(f"v_lshlrev_b32 v{116+2*r}, 16, v{120+r}"); a(f"v_and_b32 v{117+2*r}, 0xffff0000, v{120+r}")
        a(f"v_lshlrev_b32 v{124+2*r}, 16, v{122+r}"); a(f"v_and_b32 v{125+2*r}, 0xffff0000, v{122+r}")
    for r in range(4): a(f"v_max_f32 v{116+r}, 0, v{116+r}")
    for r in range(4): a(f"v_mul_f32 v{116+r}, v{116+r}, v{124+r}")
    for r in range(2): a(f"v_cvt_pk_bf16_f32 v{120+r}, v{116+2*r}, v{117+2*r}")
    a("s_mov_b64 exec, 0x00ff00ff")
    for r in range(2): a(f"v_min_u32 v{120+r}, -2, v{120+r}")
    a("buffer_store_dwordx2 v[120:121], v70, s[32:35], 0 offen sc1")
    stamp(11)
    if stamps == 1: a("s_waitcnt vmcnt(0)"); stamp(14)
    a("s_branch L_fin")
    a("L_s4:")
    a("v_and_b32 v27, 7, v75"); a("v_lshlrev_b32 v63, 4, v27"); a("v_lshl_add_u32 v63, v74, 7, v63")
    a("s_lshl_b32 s58, s3, 9"); a("v_add_u32 v26, s58, v63")
    a("v_lshlrev_b32 v60, 5, v60"); a("v_lshl_add_u32 v60, v61, 3, v60")
    a(f"s_mul_i32 s58, s3, {448*32}"); a(f"s_add_u32 s58, s58, {L_WD}"); a("v_add_u32 v60, s58, v60")
    for u in range(7):
        for hf in range(2):
            for sec in range(2): trread(128 + 8*u + 4*hf + 2*sec, "v60", (64*u + 8*hf + 4*sec) * 32)
        if u in (2, 5): a("s_waitcnt lgkmcnt(4)")
    a("v_lshrrev_b32 v49, 1, v27"); a("v_lshlrev_b32 v49, 7, v49"); a("v_and_b32 v50, 1, v27"); a("v_lshl_add_u32 v49, v50, 6, v49")
    a("v_lshl_add_u32 v49, v74, 3, v49")
    a("s_lshr_b32 s58, s89, 1"); a("s_lshl_b32 s58, s58, 9"); a("s_and_b32 s92, s89, 1"); a("s_lshl_b32 s92, s92, 5"); a("s_add_u32 s58, s58, s92")
    a(f"s_add_u32 s58, s58, {WS_H}"); a("v_add_u32 v49, s58, v49")
    a("v_lshlrev_b32 v50, 10, v27"); a("v_lshl_add_u32 v50, v74, 3, v50"); a("s_lshl_b32 s58, s89, 5"); a("v_add_u32 v50, s58, v50")
    a(f"s_mul_i32 s59, s3, {7*1024}"); a(f"s_add_u32 s59, s59, {WS_G}"); a("s_add_u32 s92, s59, 4096")
    a("s_waitcnt lgkmcnt(0)")
    def ldG(b): return ld8(b)[:7] + [f"buffer_load_dwordx2 v[{b+28}:{b+29}], v49, s[32:35], 0 offen sc1"]
    def useG(b):
        for u in range(7):
            for hf in range(2):
                a(f"v_mfma_f32_16x16x32_bf16 v[{108+4*hf}:{111+4*hf}], v[{128+8*u+4*hf}:{131+8*u+4*hf}], v[{b+4*u}:{b+3+4*u}], {'0' if u == 0 else 'v[%d:%d]' % (108+4*hf, 111+4*hf)}")
        for r in range(2):
            a(f"v_lshlrev_b32 v{116+2*r}, 16, v{b+28+r}"); a(f"v_and_b32 v{117+2*r}, 0xffff0000, v{b+28+r}")
    if gdel: a(f"s_sleep {gdel}")
    poll2("L_pG", ldG, 30, (76, 192), useG)
    stamp(10)
    for r in range(4): a(f"v_add_f32_dpp v{108+r}, v{112+r}, v{108+r} row_ror:8 row_mask:0xf bank_mask:0xf")
    a("s_mov_b32 exec_lo, 0x00ff00ff"); a("s_mov_b32 exec_hi, 0x00ff00ff")
    a(f"ds_write_b128 v26, v[108:111] offset:{L_TX}")
    a("s_waitcnt lgkmcnt(0)"); a("s_barrier")
    a("s_cmp_eq_u32 s3, 3"); a("s_cbranch_scc0 L_fin")
    for w in range(4): a(f"ds_read_b128 v[{128+4*w}:{131+4*w}], v63 offset:{L_TX+512*w}")
    a("s_waitcnt lgkmcnt(0)")
    for r in range(4):
        a(f"v_add_f32 v{128+r}, v{128+r}, v{132+r}"); a(f"v_add_f32 v{136+r}, v{136+r}, v{140+r}")
    for r in range(4): a(f"v_add_f32 v{128+r}, v{128+r}, v{136+r}")
    for r in range(2): a(f"v_cvt_pk_bf16_f32 v{132+r}, v{128+2*r}, v{129+2*r}")
    for r in range(2):
        a(f"v_lshlrev_b32 v{128+2*r}, 16, v{132+r}"); a(f"v_and_b32 v{129+2*r}, 0xffff0000, v{132+r}")
    for r in range(4): a(f"v_add_f32 v{128+r}, v{128+r}, v{116+r}")
    for r in range(2): a(f"v_cvt_pk_bf16_f32 v{132+r}, v{128+2*r}, v{129+2*r}")
    a("buffer_store_dwordx2 v[132:133], v50, s[36:39], 0 offen")
    stamp(11)
    a("L_fin:")
    if stamps:
        a("s_mov_b64 exec, -1")
        stamp(12)
        a("s_getreg_b32 s92, hwreg(HW_REG_XCC_ID)"); a("v_writelane_b32 v73, s92, 15")
        a("s_lshl_b32 s58, s2, 2"); a("s_add_u32 s58, s58, s3"); a("s_lshl_b32 s58, s58, 6"); a(f"s_add_u32 s58, s58, {WS_ST}")
        a("v_lshlrev_b32 v48, 2, v1"); a("s_mov_b64 exec, 0xffff")
        a("buffer_store_dword v73, v48, s[32:35], s58 offen")
    a("L_end:")
    a("s_endpgm")
    body = a.finish()
    head = HEADER + f"; @launch grid=(256,1,1) block=(256,1,1) lds={L_SIZE}\n" + '.amdgcn_target "amdgcn-amd-amdhsa--gfx950"\n.text\n' + \
        f".globl {NAME}\n.p2align 8\n.type {NAME},@function\n"
    tail = f""".section .rodata,"a"
.p2align 6
.amdhsa_kernel {NAME}
  .amdhsa_next_free_vgpr 384
  .amdhsa_next_free_sgpr 102
  .amdhsa_accum_offset 256
  .amdhsa_group_segment_fixed_size 0
  .amdhsa_kernarg_size 96
  .amdhsa_user_sgpr_count 2
  .amdhsa_user_sgpr_kernarg_segment_ptr 1
  .amdhsa_system_sgpr_workgroup_id_x 1
.end_amdhsa_kernel
"""
    return head + body + tail

if __name__ == "__main__":
    kw = eval("dict(%s)" % (sys.argv[2] if len(sys.argv) > 2 else ""))
    open(sys.argv[1], "w").write(gen(**kw))
```

```python
import sys, struct
sys.path.insert(0, __file__.rsplit('/', 1)[0])
from asmlib import Asm

NAME = "sequential_preLN__mha_block_cached__glu_gated_reglu__decode_kernel"
HEADER = open(__file__.rsplit('/', 1)[0] + '/header.txt').read()

def f32(x): return "0x%08x" % struct.unpack('<I', struct.pack('<f', x))[0]

WS_P, WS_H, WS_G, WS_R, WS_ST, WS_SIZE = 0, 0x80000, 0x82000, 0x8a000, 0x100000, 0x140000
L_QP, L_OP, L_ML, L_ST, L_TX, L_SP, L_WA, L_WD, L_SIZE = 0, 2048, 4096, 4160, 4608, 7168, 24576, 24576, 106496
L_T2 = 8192
L_CS = 16384
L_DUMP = 90112
RING = 128
NB = 32
SPIN = 200000

def gen(D=5, pol="nt", wpol="", stamps=False, early=(2, 7, 12, 17), n1=5, kq=2, nbar=2, sleep=0, fpol="", hmap=0, D2=16, nl2=1, vpol=None, lead=0, xp=(), sig="q", D1=None, hi=1, hirole=(1, 3), dma="loop", nA=3, nB=3, hil=(5, 4), stag=4, pipe=1, dlast=0, rmap=0, adapt=2, thr=4, head=(0, 0), ref0=128, c0=1300, tau=220, org=1, cred=0, hrep=0, hdel=0, gdel=0):
    a = Asm()
    vm = []
    def vwait(tag):
        n = len(vm) - 1 - vm.index(tag)
        a(f"s_waitcnt vmcnt({min(n, 63)})")
    def stamp(k):
        if stamps:
            a("s_memrealtime s[94:95]"); a("s_waitcnt lgkmcnt(0)"); a(f"v_writelane_b32 v73, s94, {k}")
    def allred(op, v, t):
        for n in (8, 4, 2, 1): a(f"{op}_dpp {v}, {v}, {v} row_ror:{n} row_mask:0xf bank_mask:0xf")
        for sw in ("v_permlane16_swap_b32", "v_permlane32_swap_b32"):
            a(f"v_mov_b32 {t}, {v}"); a(f"{sw} {v}, {t}"); a(f"{op} {v}, {v}, {t}")
    def bf16r(v, src=None):
        src = src or v
        a(f"v_cvt_pk_bf16_f32 {v}, {src}, {src}"); a(f"v_and_b32 {v}, 0xffff0000, {v}")
    def srd(d, lo, hi, size, add=None):
        if add is None:
            a(f"s_mov_b32 s{d}, s{lo}"); a(f"s_mov_b32 s{d+1}, s{hi}")
        else:
            a(f"s_add_u32 s{d}, s{lo}, {add}"); a(f"s_addc_u32 s{d+1}, s{hi}, 0")
        a(f"s_mov_b32 s{d+2}, {size}"); a(f"s_mov_b32 s{d+3}, 0x20000")
    def ring(j): j %= NB; return f"v[{RING+4*j}:{RING+4*j+3}]"
    cur = {"pol": pol}
    def sload(j, nxt):
        s, b = ("s[12:15]", "s55") if nxt else ("s[8:11]", "s54")
        a(f"buffer_load_dwordx4 {ring(j)}, v{2+(j>>2)}, {s}, {b} offen offset:{(j&3)*1024} {cur['pol']}")
    def masks(t, src, lane):
        for r in range(4):
            a(f"v_and_b32_dpp v{18+4*(t&1)+r}, {src}, v{14+r} row_newbcast:{lane} row_mask:0xf bank_mask:0xf")
    def mop(t): return f"v[{18+4*(t&1)}:{21+4*(t&1)}]"
    def bitrev(t): return ((t & 1) << 3) | ((t & 2) << 1) | ((t & 4) >> 1) | ((t & 8) >> 3)
    def poll(label, loads, regs, pre=None):
        a(f"s_mov_b32 s88, {SPIN}")
        a(f"{label}:")
        for l in loads: a(l)
        if pre: pre()
        a("s_waitcnt vmcnt(0)")
        r = list(regs)
        a(f"v_max3_u32 v48, v{r[0]}, v{r[1]}, v{r[2]}"); r = r[3:]
        while len(r) >= 2:
            a(f"v_max3_u32 v48, v48, v{r[0]}, v{r[1]}"); r = r[2:]
        if r: a(f"v_max_u32 v48, v48, v{r[0]}")
        a("v_cmp_eq_u32 vcc, -1, v48")
        a(f"s_cbranch_vccz {label}_ok")
        if sleep: a(f"s_sleep {sleep}")
        a("s_sub_u32 s88, s88, 1")
        a(f"s_cbranch_scc0 {label}")
        a(f"{label}_ok:")

    def check(regs, ok):
        r = list(regs)
        a(f"v_max3_u32 v48, v{r[0]}, v{r[1]}, v{r[2]}"); r = r[3:]
        while len(r) >= 2:
            a(f"v_max3_u32 v48, v48, v{r[0]}, v{r[1]}"); r = r[2:]
        if r: a(f"v_max_u32 v48, v48, v{r[0]}")
        a("v_cmp_eq_u32 vcc, -1, v48")
        a(f"s_cbranch_vccz {ok}")
    def poll2(label, loads, nreg, bases, use):
        if not pipe:
            poll(label, loads(bases[0]), range(bases[0], bases[0] + nreg)); use(bases[0]); return
        n = len(loads(bases[0]))
        a(f"s_mov_b32 s88, {SPIN}")
        for l in loads(bases[0]): a(l)
        if stag: a(f"s_sleep {stag}")
        a(f"{label}:")
        for l in loads(bases[1]): a(l)
        a(f"s_waitcnt vmcnt({n})")
        check(range(bases[0], bases[0] + nreg), f"{label}_A")
        for l in loads(bases[0]): a(l)
        a(f"s_waitcnt vmcnt({n})")
        check(range(bases[1], bases[1] + nreg), f"{label}_B")
        a("s_sub_u32 s88, s88, 1")
        a(f"s_cbranch_scc0 {label}")
        a(f"{label}_B:")
        use(bases[1])
        a(f"s_branch {label}_done")
        a(f"{label}_A:")
        use(bases[0])
        a(f"{label}_done:")
    def dma_setup():
        a("v_mov_b32 v62, 0"); a("s_mov_b32 s93, 0")
        a("s_mov_b32 s96, 0"); a("s_mov_b32 s97, 0"); a("s_mov_b32 s100, 0")
        a("s_cmp_eq_u32 s7, 1"); a("s_cbranch_scc0 L_dmaD")
        a("v_lshrrev_b32 v62, 2, v1"); a("s_movk_i32 s58, 3584"); a("v_mul_u32_u24 v62, s58, v62")
        a("v_and_b32 v63, 3, v1"); a("v_lshl_add_u32 v62, v63, 4, v62")
        a("s_lshl_b32 s58, s89, 6"); a("v_add_u32 v62, s58, v62")
        a(f"s_mul_i32 s96, s3, {128*3584}"); a("s_mov_b32 s97, s96")
        a("s_lshl_b32 s98, s3, 13"); a(f"s_add_u32 s98, s98, {L_WA}"); a("s_add_u32 s99, s98, 32768")
        a(f"s_mov_b32 s100, {16*3584}"); a("s_mov_b32 s101, 1024"); a("s_mov_b32 s93, 8")
        a("L_dmaD:")
        a("s_cmp_eq_u32 s7, 3"); a("s_cbranch_scc0 L_dmaX")
        a("v_lshrrev_b32 v62, 1, v1"); a("v_lshlrev_b32 v62, 10, v62"); a("v_and_b32 v63, 1, v1"); a("v_lshl_add_u32 v62, v63, 4, v62")
        a("s_lshl_b32 s58, s89, 5"); a("v_add_u32 v62, s58, v62")
        for d in (40, 44):
            a(f"s_mov_b32 s{d}, s80"); a(f"s_mov_b32 s{d+1}, s81"); a(f"s_mov_b32 s{d+2}, {1792*1024}")
        a(f"s_mul_i32 s96, s3, {448*1024}"); a("s_add_u32 s97, s96, 32768")
        a(f"s_mul_i32 s98, s3, {448*32}"); a(f"s_add_u32 s98, s98, {L_WD}"); a("s_add_u32 s99, s98, 1024")
        a("s_mov_b32 s100, 65536"); a("s_mov_b32 s101, 2048"); a("s_mov_b32 s93, 7")
        a("L_dmaX:")
        if "nodma" in xp: a("s_mov_b32 s93, 0")
        if "lindma" in xp: a("v_lshlrev_b32 v62, 4, v1"); a("s_lshl_b32 s58, s89, 10"); a("v_add_u32 v62, s58, v62")
    def dma_one(k):
        if k % 2 == 0:
            a("s_cmp_eq_u32 s93, 0")
            a("s_cselect_b32 s42, 0, s42"); a("s_cselect_b32 s46, 0, s46")
            a(f"s_cselect_b32 s98, {L_SP}, s98"); a(f"s_cselect_b32 s99, {L_SP}, s99"); a("s_cselect_b32 s101, 0, s101")
            a("s_cselect_b32 s93, 1, s93")
            a("s_mov_b32 m0, s98"); a("s_sub_u32 s93, s93, 1")
            a(f"buffer_load_dwordx4 v62, s[40:43], s96 offen {fpol} lds")
            a("s_add_u32 s96, s96, s100"); a("s_add_u32 s98, s98, s101")
        else:
            a("s_mov_b32 m0, s99"); a("s_nop 0")
            a(f"buffer_load_dwordx4 v62, s[44:47], s97 offen {fpol} lds")
            a("s_add_u32 s97, s97, s100"); a("s_add_u32 s99, s99, s101")
    def lap_steps(DD, pair, consume, final=False):
        e = lead if pair else 0
        for j in range(e): sload((DD + j) % NB, DD + j >= NB)
        if pair: dma_pair()
        for i in range(NB):
            n = DD - 1 + max(0, e - i) + (2 if pair and i < DD + e else 0)
            a(f"s_waitcnt vmcnt({n})")
            if final and i + DD >= NB and i + DD - NB < dlast: dma_one(i + DD - NB)
            elif i >= e: sload((i + DD) % NB, i + DD >= NB)
            consume(i)
    def dma_pair():
        a("s_cmp_eq_u32 s93, 0")
        a("s_cselect_b32 s42, 0, s42"); a("s_cselect_b32 s46, 0, s46")
        a(f"s_cselect_b32 s98, {L_SP}, s98"); a(f"s_cselect_b32 s99, {L_SP}, s99"); a("s_cselect_b32 s101, 0, s101")
        a("s_cselect_b32 s93, 1, s93")
        a("s_mov_b32 m0, s98"); a("s_sub_u32 s93, s93, 1")
        a(f"buffer_load_dwordx4 v62, s[40:43], s96 offen {fpol} lds" if "regdma" not in xp else f"buffer_load_dwordx4 v[120:123], v62, s[40:43], s96 offen {fpol}")
        a("s_mov_b32 m0, s99"); a("s_add_u32 s96, s96, s100")
        a(f"buffer_load_dwordx4 v62, s[44:47], s97 offen {fpol} lds" if "regdma" not in xp else f"buffer_load_dwordx4 v[124:127], v62, s[44:47], s97 offen {fpol}")
        a("s_add_u32 s97, s97, s100"); a("s_add_u32 s98, s98, s101"); a("s_add_u32 s99, s99, s101")
    a(f"{NAME}:")
    a("s_cmp_ge_u32 s2, 256"); a("s_cbranch_scc1 L_end")
    a("s_load_dwordx16 s[64:79], s[0:1], 0")
    a("s_load_dwordx8 s[80:87], s[0:1], 64")
    a("v_lshrrev_b32 v1, 6, v0")
    a("v_readfirstlane_b32 s3, v1")
    a("v_and_b32 v1, 63, v0")
    if hmap == 0:
        a("s_lshr_b32 s4, s2, 5"); a("s_and_b32 s5, s2, 31"); a("s_mov_b32 s6, s2")
    else:
        a("s_lshr_b32 s4, s2, 5"); a("s_and_b32 s5, s2, 7"); a("s_lshl_b32 s5, s5, 2"); a("s_bfe_u32 s6, s2, 0x20003"); a("s_add_u32 s5, s5, s6")
        a("s_lshl_b32 s6, s4, 5"); a("s_add_u32 s6, s6, s5")
    a("v_lshrrev_b32 v74, 4, v1"); a("v_and_b32 v75, 15, v1")
    if stamps: a("v_mov_b32 v73, 0")
    a("v_lshlrev_b32 v48, 4, v1")
    a("s_lshl_b32 s58, s3, 12"); a("v_add_u32 v2, s58, v48")
    for k in range(1, 8): a(f"v_add_u32 v{2+k}, {k*16384}, v2")
    a("s_lshl_b32 s58, s3, 8"); a("v_lshlrev_b32 v49, 3, v75"); a("v_lshl_add_u32 v49, v74, 1, v49"); a("v_add_u32 v49, s58, v49")
    a("v_lshrrev_b32 v51, 1, v74")
    a("s_lshl_b32 s58, s3, 20"); a("v_lshlrev_b32 v58, 13, v74"); a("v_lshl_add_u32 v58, v75, 4, v58"); a("v_add_u32 v58, s58, v58")
    a("s_lshl_b32 s58, s3, 8"); a("v_lshlrev_b32 v59, 10, v74"); a("v_lshl_add_u32 v59, v75, 4, v59"); a("v_add_u32 v59, s58, v59")
    a("s_lshl_b32 s57, s4, 10")
    a("s_lshl_b32 s58, s5, 8")
    a("s_lshl_b32 s59, s6, 20")
    a("s_sub_u32 s92, 0x400000, s58")
    a("s_waitcnt lgkmcnt(0)")
    stamp(0)
    srd(28, 64, 65, 8192)
    a("buffer_load_dwordx4 v[52:55], v48, s[28:31], s57 offen"); vm.append("x")
    a("buffer_load_ushort v56, v49, s[28:31], s57 offen"); vm.append("xc0")
    a("buffer_load_ushort v57, v49, s[28:31], s57 offen offset:128"); vm.append("xc1")
    srd(20, 70, 71, "s92", "s58")
    srd(8, 66, 67, 0x100000, "s59")
    a("s_mov_b32 s54, 0")
    def wqload(t):
        a(f"s_mov_b32 s58, {t*32768}")
        a(f"buffer_load_dwordx4 a[{4*t}:{4*t+3}], v58, s[20:23], s58 offen {wpol}"); vm.append(f"wq{t}")
    kiss = 0
    def kload(nxt=False):
        nonlocal kiss
        sload(kiss % NB, kiss >= NB); vm.append(f"k{kiss}"); kiss += 1
    wiss = 0
    for j in range(n1):
        kload(); wqload(wiss); wqload(wiss + 1); wiss += 2
    a("s_add_u32 s16, s68, s59"); a("s_addc_u32 s17, s69, 0")
    a("s_mov_b32 s12, s8"); a("s_mov_b32 s13, s9"); a("s_mov_b32 s14, 0x100000"); a("s_mov_b32 s15, 0x20000")
    a("s_lshl_b32 s58, s5, 17"); srd(24, 72, 73, 0x20000, "s58")
    srd(32, 86, 87, WS_SIZE); srd(36, 82, 83, 8192)
    srd(40, 76, 77, 512*3584); srd(44, 78, 79, 512*3584)
    if rmap == 0:
        a("s_and_b32 s58, s2, 7"); a("s_lshr_b32 s92, s2, 3")
        a("s_mul_i32 s89, s58, 7"); a("s_add_u32 s89, s89, s92")
        a("s_cmp_lt_u32 s2, 56"); a("s_cselect_b32 s7, 1, 0")
        a("s_lshl_b32 s58, s58, 2"); a("s_add_u32 s58, s58, s92"); a("s_sub_u32 s58, s58, 28")
        a("s_cmp_ge_u32 s2, 224"); a("s_cselect_b32 s89, s58, s89"); a("s_cselect_b32 s7, 3, s7")
        a("s_sub_u32 s58, s2, 64"); a("s_cmp_lt_u32 s58, 64"); a("s_cselect_b32 s89, s58, s89"); a("s_cselect_b32 s7, 2, s7")
    else:
        a("s_and_b32 s58, s2, 7"); a("s_lshr_b32 s92, s2, 3")
        a("s_lshl_b32 s89, s92, 1"); a("s_and_b32 s7, s2, 1"); a("s_add_u32 s89, s89, s7")
        a("s_lshr_b32 s7, s58, 1")
        a("s_cmp_eq_u32 s7, 2"); a("s_cselect_b32 s7, 2, 0")
        a("s_cmp_lt_u32 s58, 2"); a("s_cselect_b32 s7, 1, s7")
        a("s_cmp_ge_u32 s2, 224"); a("s_cselect_b32 s93, 1, 0"); a("s_cmp_eq_u32 s7, 1"); a("s_cselect_b32 s93, s93, 0"); a("s_sub_u32 s7, s7, s93")
        a("s_cmp_eq_u32 s58, 2"); a("s_cselect_b32 s7, 3, s7"); a("s_cselect_b32 s89, s92, s89")
    a("v_lshrrev_b32 v68, 2, v75"); a("v_lshlrev_b32 v68, 15, v68"); a("v_lshl_add_u32 v68, v74, 4, v68")
    a("v_and_b32 v60, 3, v75"); a("v_lshl_add_u32 v68, v60, 5, v68")
    a("s_lshl_b32 s58, s3, 17"); a("s_lshr_b32 s92, s4, 1"); a("s_lshl_b32 s92, s92, 13"); a("s_add_u32 s58, s58, s92")
    a("s_lshl_b32 s92, s5, 8"); a("s_add_u32 s58, s58, s92")
    a("s_and_b32 s92, s4, 1"); a("s_lshl_b32 s92, s92, 7"); a("s_add_u32 s58, s58, s92"); a("v_add_u32 v68, s58, v68")
    a("v_lshlrev_b32 v69, 3, v75"); a("v_lshl_add_u32 v69, v51, 2, v69")
    a("v_lshrrev_b32 v50, 3, v75"); a("v_lshlrev_b32 v50, 10, v50"); a("v_and_b32 v60, 7, v75"); a("v_lshl_add_u32 v50, v60, 3, v50")
    a("v_lshl_add_u32 v50, v51, 2, v50")
    a("s_and_b32 s58, s89, 3"); a("s_lshl_b32 s58, s58, 11"); a("s_lshr_b32 s92, s89, 2"); a("s_lshl_b32 s92, s92, 6"); a("s_add_u32 s58, s58, s92")
    a("v_add_u32 v50, s58, v50")
    a("s_lshl_b32 s58, s89, 7"); a(f"s_add_u32 s58, s58, {WS_H}"); a("v_add_u32 v69, s58, v69")
    a("buffer_load_dword v71, v50, s[28:31], 0 offen"); vm.append("xr")
    a("v_lshlrev_b32 v70, 4, v75"); a("v_lshl_add_u32 v70, v74, 3, v70")
    a("s_lshl_b32 s58, s89, 2"); a("s_add_u32 s58, s58, s3"); a("s_lshl_b32 s58, s58, 7"); a(f"s_add_u32 s58, s58, {WS_G}"); a("v_add_u32 v70, s58, v70")
    a("s_cmp_eq_u32 s7, 2"); a("s_cbranch_scc0 L_noclr")
    if "noclr" in xp: a("s_branch L_noclr")
    for r in range(4): a(f"v_mov_b32 v{60+r}, -1")
    a("s_lshl_b32 s58, s89, 13"); a("s_lshl_b32 s92, s3, 11"); a("s_add_u32 s58, s58, s92")
    a("buffer_store_dwordx4 v[60:63], v48, s[32:35], s58 offen sc1")
    a("buffer_store_dwordx4 v[60:63], v48, s[32:35], s58 offen offset:1024 sc1")
    a("s_mov_b64 exec, 0x00ff00ff")
    a("buffer_store_dwordx2 v[60:61], v70, s[32:35], 0 offen sc1")
    if adapt == 1:
        a("s_cmp_lt_u32 s89, 8"); a("s_cbranch_scc0 L_noclrR")
        a("s_lshl_b32 s58, s89, 8"); a(f"s_add_u32 s58, s58, {WS_R}"); a("s_mov_b64 exec, 0xff")
        a("buffer_store_dwordx4 v[60:63], v48, s[32:35], s58 offen sc1")
        a("L_noclrR:")
    a("s_cmp_eq_u32 s3, 0"); a("s_cbranch_scc0 L_noclr")
    a("s_mov_b32 exec_lo, 0xffff"); a("s_mov_b32 exec_hi, 0xffff")
    a("buffer_store_dword v60, v69, s[32:35], 0 offen sc1")
    a("L_noclr:")
    a("s_mov_b64 exec, -1")
    for j in range(nA): kload()
    stamp(1)
    a("s_mov_b32 s60, 0xcccccccc"); a("s_mov_b32 s61, 0xcccccccc"); a("s_mov_b32 s62, 0xaaaaaaaa"); a("s_mov_b32 s63, 0xaaaaaaaa")
    a(f"s_mov_b32 s90, {f32(128 ** -0.5)}"); a(f"s_mov_b32 s91, {f32(1.4426950408889634)}")
    a("s_lshr_b32 s58, s2, 3"); a("s_and_b32 s58, s58, 3"); a("s_add_u32 s58, s58, 2")
    a("s_lshl_b32 s92, s3, 2"); a("s_add_u32 s92, s92, s7"); a("s_cmp_eq_u32 s92, 2"); a("s_cselect_b32 s57, s58, 99")
    if "nosig" in xp or sig != "lap": a("s_mov_b32 s57, 99")
    a("v_and_b32 v60, 1, v75"); a("v_lshlrev_b32 v60, 4, v60"); a("v_mov_b32 v61, 0xffff"); a("v_lshlrev_b32 v60, v60, v61")
    a("v_lshrrev_b32 v61, 1, v75")
    for r in range(4):
        a(f"v_cmp_eq_u32 vcc, {r}, v61"); a(f"v_cndmask_b32 v{14+r}, 0, v60, vcc")
    vwait("x")
    for j in range(nB): kload()
    for k in range(4):
        a(f"v_lshlrev_b32 v{76+2*k}, 16, v{52+k}"); a(f"v_and_b32 v{77+2*k}, 0xffff0000, v{52+k}")
    a("v_add_f32 v84, v76, v77")
    for k in range(2, 8): a(f"v_add_f32 v84, v84, v{76+k}")
    allred("v_add_f32", "v84", "v85")
    a(f"v_mul_f32 v84, {f32(1/512)}, v84")
    for k in range(8): a(f"v_sub_f32 v{76+k}, v{76+k}, v84")
    a("v_mul_f32 v86, v76, v76")
    for k in range(1, 8): a(f"v_fmac_f32 v86, v{76+k}, v{76+k}")
    allred("v_add_f32", "v86", "v85")
    a(f"v_mul_f32 v86, {f32(1/512)}, v86")
    bf16r("v84"); bf16r("v86")
    a(f"v_add_f32 v86, {f32(1e-5)}, v86"); bf16r("v86")
    a("v_sqrt_f32 v86, v86"); bf16r("v86"); a("v_rcp_f32 v86, v86")
    vwait("xc1")
    for k in range(2):
        a(f"v_lshlrev_b32 v{56+k}, 16, v{56+k}"); a(f"v_sub_f32 v{56+k}, v{56+k}, v84"); bf16r(f"v{56+k}")
        a(f"v_mul_f32 v{56+k}, v{56+k}, v86"); a(f"v_cvt_pk_bf16_f32 v{66+k}, v{56+k}, v{56+k}")
    stamp(2)
    masks(0, "v66", 0)
    for t in range(32):
        vwait(f"wq{t}")
        a(f"v_mfma_f32_16x16x32_bf16 v[28:31], {mop(t)}, a[{4*t}:{4*t+3}], {'0' if t == 0 else 'v[28:31]'}")
        if wiss < 32: wqload(wiss); wiss += 1
        if int((t + 1) / kq) > int(t / kq) and kiss < NB: kload()
        if t < 31: masks(t + 1, "v66" if t + 1 < 16 else "v67", (t + 1) & 15)
    for j in range(nbar):
        if kiss < NB: kload()
    a("v_lshlrev_b32 v27, 5, v75"); a("v_lshl_add_u32 v26, v74, 4, v27"); a("s_lshl_b32 s58, s3, 9"); a("v_add_u32 v26, s58, v26")
    a("s_mov_b32 exec_hi, 0")
    a(f"ds_write_b128 v26, v[28:31] offset:{L_QP}")
    a("s_mov_b64 exec, -1")
    a("s_waitcnt lgkmcnt(0)"); a("s_barrier")
    if sig == "q" and "nosig" not in xp:
        a("s_lshl_b32 s58, s3, 2"); a("s_add_u32 s58, s58, s7"); a("s_cmp_eq_u32 s58, 2"); a("s_cbranch_scc0 L_nosigq")
        a("s_lshl_b32 s58, s89, 2"); a("v_mov_b32 v60, s58"); a("s_or_b32 s58, s18, 1"); a("v_mov_b32 v61, s58"); a("s_mov_b64 exec, 1")
        a("global_store_dword v60, v61, s[84:85] sc1")
        a("s_mov_b64 exec, -1")
        a("L_nosigq:")
    for w in range(4):
        for hh in range(2): a(f"ds_read_b128 v[{76+8*w+4*hh}:{79+8*w+4*hh}], v27 offset:{L_QP+512*w+16*hh}")
    a("s_waitcnt lgkmcnt(0)")
    for k in range(8):
        a(f"v_add_f32 v{76+k}, v{76+k}, v{84+k}"); a(f"v_add_f32 v{92+k}, v{92+k}, v{100+k}")
    for k in range(8): a(f"v_add_f32 v{76+k}, v{76+k}, v{92+k}")
    for k in range(4): a(f"v_cvt_pk_bf16_f32 v{10+k}, v{76+2*k}, v{77+2*k}")
    a("v_mov_b32 v64, 0xff800000"); a("v_mov_b32 v65, 0")
    stamp(3)

    def kconsume(i):
        t = i & 15
        x = f"v{48 + (t & 1)}" if True else None
        base = RING + 4 * i
        a(f"v_dot2_f32_bf16 {x}, v{base}, v10, 0")
        for r in range(1, 4): a(f"v_dot2_f32_bf16 {x}, v{base+r}, v{10+r}, {x}")
        if t & 1:
            d = f"v{50 + ((t >> 1) & 1)}"
            a(f"v_add_f32_dpp {d}, v48, v48 row_ror:8 row_mask:0xf bank_mask:0x3")
            a(f"v_add_f32_dpp {d}, v49, v49 row_ror:8 row_mask:0xf bank_mask:0xc")
        if t & 3 == 3:
            d = f"v{52 + ((t >> 2) & 1)}"
            a(f"v_add_f32_dpp {d}, v50, v50 row_half_mirror row_mask:0xf bank_mask:0x5")
            a(f"v_add_f32_dpp {d}, v51, v51 row_half_mirror row_mask:0xf bank_mask:0xa")
        if t & 7 == 7:
            d = f"v{54 + ((t >> 3) & 1)}"
            a("v_add_f32_dpp v52, v52, v52 quad_perm:[2,3,0,1] row_mask:0xf bank_mask:0xf")
            a("v_add_f32_dpp v53, v53, v53 quad_perm:[2,3,0,1] row_mask:0xf bank_mask:0xf")
            a(f"v_cndmask_b32 {d}, v52, v53, s[60:61]")
        if t == 15:
            s = f"v{46 + (i >> 4)}"
            a("v_add_f32_dpp v54, v54, v54 quad_perm:[1,0,3,2] row_mask:0xf bank_mask:0xf")
            a("v_add_f32_dpp v55, v55, v55 quad_perm:[1,0,3,2] row_mask:0xf bank_mask:0xf")
            a(f"v_cndmask_b32 {s}, v54, v55, s[62:63]")
            bf16r(s); a(f"v_mul_f32 {s}, s90, {s}"); bf16r(s)
            a(f"v_max_f32 v64, v64, {s}")
    a(f"s_mov_b32 s55, {NB*4096}")
    left = NB + D - kiss
    early = list(early)
    while early and early[-1] >= NB - (left - len(early)): early.pop()
    sched = early + list(range(NB - (left - len(early)), NB))
    assert len(set(sched)) == left, (sched, left)
    for i in range(NB):
        vwait(f"k{i}")
        if i in sched:
            assert kiss - NB < i
            kload()
        kconsume(i)
    stamp(4)
    a("s_mov_b32 s54, s55"); a(f"s_add_u32 s55, s55, {NB*4096}")
    for k in range(2): a(f"v_mov_b32 v{44+k}, v{46+k}")
    if D1 is None: D1 = D
    def k1load():
        nonlocal kiss
        j = kiss - NB
        sload(j % NB, j >= NB); vm.append(f"k{kiss}"); kiss += 1
    for j in range(D1 - D): k1load()
    for i in range(NB):
        vwait(f"k{NB+i}")
        if kiss < 2 * NB + D: k1load()
        if adapt and i == 20:
            a("v_lshlrev_b32 v60, 2, v1"); a("global_load_dword v72, v60, s[84:85] sc1"); vm.append("fl")
        a(f"s_mov_b32 s58, {i*4096}")
        if "nowo" not in xp: a(f"buffer_load_dwordx4 a[{4*i}:{4*i+3}], v59, s[24:27], s58 offen {wpol}"); vm.append(f"wo{i}")
        kconsume(i)
    a("s_mov_b32 s56, 2")
    if dma == "loop": dma_setup()
    def kloop(sfx, DD, lim):
        a(".p2align 3")
        a(f"L_kloop{sfx}:")
        a("s_mov_b32 s54, s55"); a(f"s_add_u32 s55, s55, {NB*4096}")
        a("s_cmp_eq_u32 s56, 7")
        a("s_cselect_b32 s12, s16, s12"); a("s_cselect_b32 s13, s17, s13"); a("s_cselect_b32 s55, 0, s55")
        a("s_cmp_eq_u32 s56, s57"); a(f"s_cbranch_scc0 L_nosig{sfx}")
        a("s_lshl_b32 s58, s89, 2"); a("v_mov_b32 v60, s58"); a("s_or_b32 s58, s18, 1"); a("v_mov_b32 v61, s58"); a("s_mov_b64 exec, 1")
        a("global_store_dword v60, v61, s[84:85] sc1")
        a("s_mov_b64 exec, -1")
        a(f"L_nosig{sfx}:")
        for k in range(14): a(f"v_mov_b32 v{32+k}, v{34+k}")
        lap_steps(DD, dma == "loop", kconsume)
        a("s_add_u32 s56, s56, 1"); a(f"s_cmp_lt_u32 s56, {lim}"); a(f"s_cbranch_scc1 L_kloop{sfx}")
    def decide(label, br="scc1"):
        if adapt == 1:
            a("v_cmp_le_i32 vcc, s49, v27"); a("s_bcnt1_i32_b64 s58, vcc")
            a("s_sub_u32 s49, s52, s48")
            a("s_cmp_ge_u32 s58, s50")
        else:
            a("s_waitcnt lgkmcnt(0)")
            a("s_sub_u32 s58, s52, s49"); a(f"s_add_u32 s49, s49, {tau}")
            if cred:
                a("s_add_u32 s48, s48, 1"); a(f"s_min_u32 s48, s48, {cred[0]}")
                a(f"s_cmp_ge_u32 s48, {cred[1]}"); a("s_cselect_b32 s58, s58, 0")
                a("s_cmp_gt_i32 s58, 0"); a(f"s_cselect_b32 s57, {cred[1]}, 0"); a("s_sub_u32 s48, s48, s57")
            a("s_cmp_gt_i32 s58, 0")
        a(f"s_cbranch_{br} {label}")
    def segment(tag, mode, k, consume):
        DD = D + (hi if mode else 0); i0 = 16 * k
        if mode:
            a("s_cmp_eq_u32 s51, 1"); a(f"s_cbranch_scc1 {tag}_in")
            for j in range(D, DD): sload((i0 + j) % NB, i0 + j >= NB)
            a(f"{tag}_in:")
        if adapt == 1:
            a("s_cmp_eq_u32 s53, 0"); a(f"s_cbranch_scc1 {tag}_np")
            for r in range(4): a(f"v_mov_b32 v{60+r}, s52")
            a("s_mov_b64 exec, 0xff")
            a("buffer_store_dwordx4 v[60:63], v59, s[32:35], s53 offen sc1")
            a(f"{tag}_np:")
            a("s_mov_b64 exec, 0xff")
            a("buffer_load_dword v27, v58, s[32:35], 0 offen sc1")
            a("s_mov_b64 exec, -1")
            a("s_add_u32 s52, s52, 1")
        pr = 2 if dma == "loop" and k == 0 else 0
        if pr: dma_pair()
        for i in range(i0, i0 + 16):
            a(f"s_waitcnt vmcnt({DD - 1 + ((1 if adapt == 1 else 0) + pr if i - i0 < DD else 0)})")
            skip = (not mode) and i - i0 < hi
            if skip: a("s_cmp_eq_u32 s51, 1"); a(f"s_cbranch_scc1 {tag}_s{i}")
            sload((i + DD) % NB, i + DD >= NB)
            if skip: a(f"{tag}_s{i}:")
            if i - i0 == hi: a(f"s_mov_b32 s51, {mode}")
            if adapt == 2 and i - i0 == 15: a("s_memrealtime s[52:53]")
            consume(i)
    def adaptive_lap(name, head_code, consume, lim):
        a(".p2align 3")
        a(f"{name}:")
        head_code()
        decide(f"{name}_h0")
        segment(f"{name}_l0", 0, 0, consume)
        decide(f"{name}_h1")
        a(f"{name}_l1:")
        segment(f"{name}_l1", 0, 1, consume)
        a("s_add_u32 s56, s56, 1"); a(f"s_cmp_lt_u32 s56, {lim}"); a(f"s_cbranch_scc1 {name}")
        a(f"s_branch {name}_end")
        a(f"{name}_h0:")
        segment(f"{name}_h0", 1, 0, consume)
        decide(f"{name}_l1", "scc0")
        a(f"{name}_h1:")
        segment(f"{name}_h1", 1, 1, consume)
        a("s_add_u32 s56, s56, 1"); a(f"s_cmp_lt_u32 s56, {lim}"); a(f"s_cbranch_scc1 {name}")
        a(f"{name}_end:")
    if adapt:
        vwait("fl")
        a("v_cmp_eq_u32 vcc, 0, v72"); a("s_cmp_eq_u64 vcc, 0"); a(f"s_cselect_b32 s50, {thr}, 99")
        a("s_cmp_eq_u32 s7, 1"); a(f"s_cselect_b32 s48, {head[0]}, 0"); a("s_cmp_eq_u32 s7, 3"); a(f"s_cselect_b32 s48, {head[1]}, s48")
        if adapt == 1:
            a("s_mov_b32 s49, 0"); a("s_mov_b32 s51, 0"); a("s_mov_b32 s52, 4")
            a(f"s_sub_u32 s58, s2, {ref0}"); a("s_lshl_b32 s53, s58, 8"); a(f"s_add_u32 s53, s53, {WS_R}")
            a("s_lshl_b32 s92, s3, 3"); a("s_add_u32 s58, s58, s92"); a(f"s_cmp_ge_u32 s2, {ref0}"); a("s_cselect_b32 s58, s58, 99")
            a("s_cmp_lt_u32 s58, 8"); a("s_cselect_b32 s53, s53, 0")
            a("v_mov_b32 v27, -1"); a("v_lshlrev_b32 v59, 4, v1"); a("v_lshlrev_b32 v58, 8, v1"); a(f"v_add_u32 v58, {WS_R}, v58")
        else:
            a("s_memrealtime s[52:53]"); a("s_mov_b32 s51, 0")
            a(f"s_add_u32 s49, s18, {c0}"); a("s_sub_u32 s49, s49, s48")
            if org:
                a("v_subrev_u32 v72, s18, v72")
                allred("v_add_u32", "v72", "v48")
                a("v_readfirstlane_b32 s58, v72"); a("s_ashr_i32 s58, s58, 6")
                a("s_cmp_lg_u32 s50, 99"); a("s_cselect_b32 s58, s58, 0"); a("s_add_u32 s49, s49, s58")
        if cred: a(f"s_mov_b32 s48, {cred[0]}")
        def khead():
            lapstamp(16)
            a("s_mov_b32 s54, s55"); a(f"s_add_u32 s55, s55, {NB*4096}")
            a("s_cmp_eq_u32 s56, 7")
            a("s_cselect_b32 s12, s16, s12"); a("s_cselect_b32 s13, s17, s13"); a("s_cselect_b32 s55, 0, s55")
            for k in range(14): a(f"v_mov_b32 v{32+k}, v{34+k}")
        adaptive_lap("L_ka", khead, kconsume, 8)
    else:
        if hi:
            for r in hirole: a(f"s_cmp_eq_u32 s7, {r}"); a("s_cbranch_scc1 L_khi")
        kloop("A", D, 8)
        if hi:
            a("s_branch L_kdone")
            a("L_khi:")
            for j in range(D, D + hi): sload(j, True)
            a("s_cmp_eq_u32 s7, 1"); a(f"s_cselect_b32 s53, {hil[0]}, {hil[1]}")
            kloop("B", D + hi, "s53")
            a("s_cmp_lt_u32 s56, 8"); a("s_cbranch_scc1 L_kloopA")
            a("L_kdone:")
    stamp(5)
    allred("v_max_f32", "v64", "v48")
    a("v_mul_f32 v64, s91, v64"); a("v_sub_f32 v64, 0, v64")
    a("s_mov_b32 s8, s12"); a("s_mov_b32 s9, s13"); a("s_mov_b32 s56, 0")
    for r in range(4): a(f"v_mov_b32 v{28+r}, 0")
    if vpol is not None: cur["pol"] = vpol
    def vlap(name, DD, last, lim):
        a(".p2align 3")
        a(f"{name}:")
        a("s_mov_b32 s54, s55"); a(f"s_add_u32 s55, s55, {NB*4096}")
        for k in range(2):
            a(f"v_fma_f32 v{56+k}, v{32+k}, s91, v64"); a(f"v_exp_f32 v{56+k}, v{56+k}")
            a(f"v_add_f32 v65, v65, v{56+k}"); a(f"v_cvt_pk_bf16_f32 v{66+k}, v{56+k}, v{56+k}")
        for k in range(14): a(f"v_mov_b32 v{32+k}, v{34+k}")
        masks(0, "v66", 0)
        if not last:
            a("s_cmp_eq_u32 s56, 3"); a("s_cbranch_scc0 L_nochk")
            a("v_lshlrev_b32 v60, 2, v1")
            a("global_load_dword v72, v60, s[84:85] sc1")
            a("L_nochk:")
        else:
            a("s_cmp_eq_u32 s56, 7"); a("s_cbranch_scc0 L_nolast")
            allred("v_add_f32", "v65", "v48")
            a("s_lshl_b32 s58, s3, 3"); a("v_mov_b32 v48, s58"); a("s_mov_b64 exec, 1")
            a(f"ds_write_b64 v48, v[64:65] offset:{L_ML}")
            a("s_mov_b64 exec, -1")
            if "nosig" in xp: a("s_branch L_nolast")
            a("v_cmp_eq_u32 vcc, 0, v72"); a("s_cbranch_vccz L_nolast")
            a(f"s_mov_b32 s88, {SPIN}"); a("v_lshlrev_b32 v60, 2, v1")
            a("L_cnt:")
            a("s_sleep 8"); a("global_load_dword v72, v60, s[84:85] sc1"); a("s_waitcnt vmcnt(0)")
            a("v_cmp_eq_u32 vcc, 0, v72"); a("s_cbranch_vccz L_nolast")
            a("s_sub_u32 s88, s88, 1"); a("s_cbranch_scc0 L_cnt")
            a("L_nolast:")
        def vconsume(i):
            a(f"v_mfma_f32_16x16x32_bf16 v[28:31], {mop(i)}, {ring(i)}, v[28:31]")
            if i < NB - 1: masks(i + 1, f"v{66 + ((i + 1) >> 4)}", bitrev((i + 1) & 15))
        lap_steps(DD, dma == "loop" and not last, vconsume, last)
        a("s_add_u32 s56, s56, 1"); a(f"s_cmp_lt_u32 s56, {lim}"); a(f"s_cbranch_scc1 {name}")
    if adapt:
        def vhead():
            lapstamp(24)
            a("s_mov_b32 s54, s55"); a(f"s_add_u32 s55, s55, {NB*4096}")
            for k in range(2):
                a(f"v_fma_f32 v{56+k}, v{32+k}, s91, v64"); a(f"v_exp_f32 v{56+k}, v{56+k}")
                a(f"v_add_f32 v65, v65, v{56+k}"); a(f"v_cvt_pk_bf16_f32 v{66+k}, v{56+k}, v{56+k}")
            for k in range(14): a(f"v_mov_b32 v{32+k}, v{34+k}")
            masks(0, "v66", 0)
            a("s_cmp_eq_u32 s56, 7"); a("s_cbranch_scc0 L_nolast")
            allred("v_add_f32", "v65", "v48")
            a("s_lshl_b32 s58, s3, 3"); a("v_mov_b32 v48, s58"); a("s_mov_b64 exec, 1")
            a(f"ds_write_b64 v48, v[64:65] offset:{L_ML}")
            a("s_mov_b64 exec, -1")
            a("s_cmp_lg_u32 s50, 99"); a("s_cbranch_scc1 L_nolast")
            a(f"s_mov_b32 s88, {SPIN}"); a("v_lshlrev_b32 v60, 2, v1")
            a("L_cnt:")
            a("global_load_dword v72, v60, s[84:85] sc1"); a("s_waitcnt vmcnt(0)")
            a("v_cmp_eq_u32 vcc, 0, v72"); a("s_cbranch_vccz L_nolast")
            a("s_sleep 8"); a("s_sub_u32 s88, s88, 1"); a("s_cbranch_scc0 L_cnt")
            a("L_nolast:")
        def vconsume(i):
            a(f"v_mfma_f32_16x16x32_bf16 v[28:31], {mop(i)}, {ring(i)}, v[28:31]")
            if i < NB - 1: masks(i + 1, f"v{66 + ((i + 1) >> 4)}", bitrev((i + 1) & 15))
        adaptive_lap("L_va", vhead, vconsume, 8)
    else:
        vlap("L_vloopA", D, False, 8 - nl2)
        for j in range(D, D2): sload(j, True)
        if dlast: assert nl2 == 1 and dlast % 2 == 0 and dlast <= D2; dma_setup()
        vlap("L_vloopB", D2, True, 8)
    if "dup" in xp:
        a("s_lshl_b32 s59, s6, 20"); a("s_add_u32 s8, s66, s59"); a("s_addc_u32 s9, s67, 0"); a("s_mov_b32 s12, s8"); a("s_mov_b32 s13, s9")
        a("s_mov_b32 s55, 0"); a("s_mov_b32 s56, 0")
        for j in range(D): sload(j, True)
        a("L_dup:")
        a("s_mov_b32 s54, s55"); a(f"s_add_u32 s55, s55, {NB*4096}")
        lap_steps(D, False, lambda i: None)
        a("s_add_u32 s56, s56, 1"); a("s_cmp_lt_u32 s56, 8"); a("s_cbranch_scc1 L_dup")
    stamp(6)
    a("v_lshlrev_b32 v27, 4, v75"); a("v_lshl_add_u32 v27, v74, 2, v27")
    a("v_mov_b32 v48, 0")
    a("s_mov_b32 exec_hi, 0")
    a(f"ds_write_b128 v26, v[28:31] offset:{L_OP}")
    a("s_mov_b64 exec, -1")
    a("s_waitcnt lgkmcnt(0)"); a("s_barrier")
    a(f"ds_read_b128 v[76:79], v48 offset:{L_ML}"); a(f"ds_read_b128 v[80:83], v48 offset:{L_ML+16}")
    for w in range(4): a(f"ds_read2st64_b32 v[{84+2*w}:{85+2*w}], v27 offset0:{L_OP//256+2*w} offset1:{L_OP//256+2*w+1}")
    a("s_waitcnt lgkmcnt(4)")
    a("v_min_f32 v48, v76, v78"); a("v_min3_f32 v48, v48, v80, v82")
    for w in range(4): a(f"v_sub_f32 v{76+2*w}, v48, v{76+2*w}")
    for w in range(4): a(f"v_exp_f32 v{76+2*w}, v{76+2*w}")
    a("v_mul_f32 v49, v76, v77")
    for w in range(1, 4): a(f"v_fmac_f32 v49, v{76+2*w}, v{77+2*w}")
    a("v_rcp_f32 v49, v49")
    a("s_waitcnt lgkmcnt(0)")
    for k in range(2):
        a(f"v_mul_f32 v{56+k}, v76, v{84+k}")
        for w in range(1, 4): a(f"v_fmac_f32 v{56+k}, v{76+2*w}, v{84+2*w+k}")
    for k in range(2):
        a(f"v_mul_f32 v{56+k}, v{56+k}, v49"); a(f"v_cvt_pk_bf16_f32 v{66+k}, v{56+k}, v{56+k}")
    masks(0, "v66", 0)
    for t in range(32):
        if t < 31: masks(t + 1, "v66" if t + 1 < 16 else "v67", (t + 1) & 15)
        a(f"v_mfma_f32_16x16x32_bf16 v[28:31], {mop(t)}, a[{4*t}:{4*t+3}], {'0' if t == 0 else 'v[28:31]'}")
    a("s_mov_b32 s58, -2")
    a("s_mov_b32 exec_hi, 0")
    for r in range(4): a(f"v_min_u32 v{28+r}, s58, v{28+r}")
    a("buffer_store_dwordx4 v[28:31], v68, s[32:35], 0 offen sc1")
    a("s_mov_b64 exec, -1")
    stamp(7)
    if dma == "late":
        a("s_and_b32 s58, s7, 1"); a("s_cbranch_scc0 L_nodma")
        if not dlast: dma_setup()
        else: a("s_cmp_eq_u32 s93, 0"); a("s_cbranch_scc1 L_dmaw")
        a("L_dmaloop:")
        a("s_mov_b32 m0, s98"); a("s_sub_u32 s93, s93, 1")
        a(f"buffer_load_dwordx4 v62, s[40:43], s96 offen {fpol} lds")
        a("s_mov_b32 m0, s99"); a("s_add_u32 s96, s96, s100")
        a(f"buffer_load_dwordx4 v62, s[44:47], s97 offen {fpol} lds")
        a("s_add_u32 s97, s97, s100"); a("s_add_u32 s98, s98, s101"); a("s_add_u32 s99, s99, s101")
        a("s_cmp_lg_u32 s93, 0"); a("s_cbranch_scc1 L_dmaloop")
        a("L_dmaw:")
        a("s_waitcnt vmcnt(0)"); a("s_barrier")
        stamp(13)
        a("L_nodma:")
    a("v_lshlrev_b32 v62, 4, v1")
    a("v_lshrrev_b32 v60, 2, v75"); a("v_lshl_add_u32 v60, v74, 4, v60")
    a("v_and_b32 v61, 3, v1")
    a("s_cmp_eq_u32 s7, 1"); a("s_cbranch_scc1 L_s3")
    a("s_cmp_eq_u32 s7, 3"); a("s_cbranch_scc1 L_s4")
    a("s_lshl_b32 s58, s3, 2"); a("s_add_u32 s58, s58, s7"); a("s_cmp_eq_u32 s58, 2"); a("s_cbranch_scc0 L_fin")
    a("s_lshl_b32 s59, s89, 13"); a("s_add_u32 s92, s59, 4096")
    a("v_lshlrev_b32 v50, 16, v71"); a("v_and_b32 v51, 0xffff0000, v71")
    def ld8(b): return [f"buffer_load_dwordx4 v[{b+4*u}:{b+3+4*u}], v62, s[32:35], {'s59' if u < 4 else 's92'} offen offset:{(u&3)*1024} sc1" for u in range(8)]
    def useP(b):
        for r in range(16): a(f"v_add_f32 v{108+r}, v{b+r}, v{b+16+r}")
    poll2("L_pP", ld8, 32, (76, 128), useP)
    stamp(8)
    for st in (8, 4):
        for r in range(st): a(f"v_add_f32 v{108+r}, v{108+r}, v{108+st+r}")
    a("v_permlane32_swap_b32 v108, v110"); a("v_permlane32_swap_b32 v109, v111")
    a("v_add_f32 v108, v108, v110"); a("v_add_f32 v109, v109, v111")
    a("v_mov_b32 v110, v108"); a("v_mov_b32 v111, v109")
    a("v_permlane16_swap_b32 v108, v110"); a("v_permlane16_swap_b32 v109, v111")
    a("v_add_f32 v108, v108, v110"); a("v_add_f32 v109, v109, v111")
    a("v_cvt_pk_bf16_f32 v108, v108, v109")
    a("v_and_b32 v109, 0xffff0000, v108"); a("v_lshlrev_b32 v108, 16, v108")
    a("v_add_f32 v108, v108, v50"); a("v_add_f32 v109, v109, v51")
    a("v_cvt_pk_bf16_f32 v108, v108, v109")
    a("s_mov_b32 exec_lo, 0xffff"); a("s_mov_b32 exec_hi, 0xffff")
    a("v_min_u32 v108, -2, v108")
    a("buffer_store_dword v108, v69, s[32:35], 0 offen sc1")
    stamp(9)
    if stamps == 1: a("s_waitcnt vmcnt(0)"); stamp(13)
    a("s_branch L_fin")
    def trread(dst, addr, off): a(f"ds_read_b64_tr_b16 v[{dst}:{dst+1}], {addr} offset:{off}")
    a("L_s3:")
    a("v_lshlrev_b32 v60, 6, v60"); a("v_lshrrev_b32 v49, 1, v61"); a("v_lshl_add_u32 v60, v49, 15, v60")
    a("v_and_b32 v49, 1, v61"); a("v_lshl_add_u32 v60, v49, 3, v60")
    a("s_lshl_b32 s58, s3, 13"); a(f"s_add_u32 s58, s58, {L_WA}"); a("v_add_u32 v60, s58, v60")
    for t in range(4):
        for u in range(2):
            for hf in range(2):
                for sec in range(2): trread(128 + 16*t + 8*u + 4*hf + 2*sec, "v60", (64*u + 8*hf + 4*sec) * 64 + 16*t)
        if t: a("s_waitcnt lgkmcnt(6)")
    for r in range(4): a(f"v_mov_b32 v{112+r}, 0x3f803f80")
    a("v_lshrrev_b32 v62, 1, v74"); a("v_lshlrev_b32 v62, 9, v62"); a("v_bfe_u32 v49, v75, 1, 2"); a("v_lshl_add_u32 v62, v49, 7, v62")
    a("v_and_b32 v49, 1, v75"); a("v_lshl_add_u32 v62, v49, 6, v62"); a("v_and_b32 v49, 1, v74"); a("v_lshl_add_u32 v62, v49, 5, v62")
    a("v_lshrrev_b32 v49, 3, v75"); a("v_lshl_add_u32 v62, v49, 4, v62")
    a("v_and_b32 v27, 7, v75"); a("v_lshlrev_b32 v63, 4, v27"); a("v_lshl_add_u32 v63, v74, 7, v63")
    a("s_lshl_b32 s58, s3, 9"); a("v_add_u32 v26, s58, v63"); a("s_lshl_b32 s58, s3, 11"); a("v_add_u32 v63, s58, v63")
    a("v_lshrrev_b32 v49, 3, v75"); a(f"s_mov_b32 s58, {L_DUMP-L_T2}"); a("v_mad_u32_u24 v26, v49, s58, v26")
    a("v_lshrrev_b32 v49, 1, v74"); a("v_lshlrev_b32 v49, 2, v49"); a("v_lshlrev_b32 v61, 5, v27"); a("v_add_u32 v49, v49, v61")
    a("s_lshl_b32 s58, s3, 3"); a("v_add_u32 v49, s58, v49")
    a("s_lshl_b32 s59, s3, 11"); a(f"s_add_u32 s59, s59, {WS_H}")
    a("s_waitcnt lgkmcnt(0)")
    for k in range(4):
        for t in range(4):
            a(f"v_mfma_f32_16x16x32_bf16 v[{224+4*t}:{227+4*t}], v[{128+16*t+4*k}:{131+16*t+4*k}], v[112:115], {'0' if k == 0 else 'v[%d:%d]' % (224+4*t, 227+4*t)}")
    for t in range(4): a(f"ds_write_b128 v26, v[{224+4*t}:{227+4*t}] offset:{L_CS+2048*t}")
    def ldH(b): return [f"buffer_load_dwordx4 v[{b+4*u}:{b+3+4*u}], v62, s[32:35], s59 offen offset:{u*1024} sc1" for u in range(2)]
    def useH(b):
        n = 0
        for u in range(2):
            for t in range(4):
                for hf in range(2):
                    d = 192 + 8*t + 4*hf
                    a(f"v_mfma_f32_16x16x32_bf16 v[{d}:{d+3}], v[{128+16*t+8*u+4*hf}:{131+16*t+8*u+4*hf}], v[{b+4*u}:{b+3+4*u}], {'0' if u == 0 else 'v[%d:%d]' % (d, d+3)}")
                    if n < 8:
                        a(f"v_dot2_f32_bf16 v52, v{b+n}, v112, {'0' if n == 0 else 'v52'}")
                        a(f"v_dot2_f32_bf16 v53, v{b+n}, v{b+n}, {'0' if n == 0 else 'v53'}")
                    if n == 9:
                        for r in range(2): a(f"v_add_f32_dpp v{52+r}, v{52+r}, v{52+r} row_ror:8 row_mask:0xf bank_mask:0xf")
                    if n == 11: a("v_permlane32_swap_b32 v52, v53"); a("v_add_f32 v52, v52, v53"); a("v_mov_b32 v53, v52")
                    if n == 13: a("v_permlane16_swap_b32 v52, v53"); a("v_add_f32 v52, v52, v53"); a(f"ds_write_b32 v49, v52 offset:{L_ST}")
                    n += 1
    if hdel: a(f"s_sleep {hdel}")
    poll2("L_pH", ldH, 8, (76, 84), useH)
    stamp(10)
    for t in range(4):
        for r in range(4): a(f"v_add_f32_dpp v{192+8*t+r}, v{196+8*t+r}, v{192+8*t+r} row_ror:8 row_mask:0xf bank_mask:0xf")
        a(f"ds_write_b128 v26, v[{192+8*t}:{195+8*t}] offset:{L_T2+2048*t}")
    a("s_waitcnt lgkmcnt(0)"); a("s_barrier")
    for k in range(2): a(f"ds_read_b128 v[{92+4*k}:{95+4*k}], v61 offset:{L_ST+16*k}")
    for w in range(4): a(f"ds_read_b128 v[{224+4*w}:{227+4*w}], v63 offset:{L_CS+512*w}")
    for w in range(4): a(f"ds_read_b128 v[{116+4*w}:{119+4*w}], v63 offset:{L_T2+512*w}")
    a("s_waitcnt lgkmcnt(8)")
    for k in range(2): a(f"v_add_f32 v{92+k}, v{92+k}, v{94+k}"); a(f"v_add_f32 v{96+k}, v{96+k}, v{98+k}")
    a("v_add_f32 v52, v92, v96"); a("v_add_f32 v53, v93, v97")
    a(f"v_mul_f32 v52, {f32(1/512)}, v52"); a(f"v_mul_f32 v53, {f32(1/512)}, v53")
    a("v_fma_f32 v53, -v52, v52, v53"); a("v_max_f32 v53, 0, v53")
    bf16r("v53"); bf16r("v52")
    a(f"v_add_f32 v53, {f32(1e-5)}, v53"); bf16r("v53")
    a("v_sqrt_f32 v53, v53")
    a("s_waitcnt lgkmcnt(4)")
    for r in range(4): a(f"v_add_f32 v{224+r}, v{224+r}, v{228+r}"); a(f"v_add_f32 v{232+r}, v{232+r}, v{236+r}")
    for r in range(4): a(f"v_add_f32 v{108+r}, v{224+r}, v{232+r}")
    a("s_waitcnt lgkmcnt(0)")
    for r in range(4): a(f"v_add_f32 v{116+r}, v{116+r}, v{120+r}"); a(f"v_add_f32 v{124+r}, v{124+r}, v{128+r}")
    for r in range(4): a(f"v_add_f32 v{116+r}, v{116+r}, v{124+r}")
    for r in range(4): a(f"v_fma_f32 v{116+r}, -v52, v{108+r}, v{116+r}")
    bf16r("v53"); a("v_rcp_f32 v53, v53")
    for r in range(4): a(f"v_mul_f32 v{116+r}, v{116+r}, v53")
    for r in range(2): a(f"v_cvt_pk_bf16_f32 v{120+r}, v{116+2*r}, v{117+2*r}")
    for r in range(2): a(f"v_permlane32_swap_b32 v{120+r}, v{122+r}")
    for r in range(2):
        a(f"v_lshlrev_b32 v{116+2*r}, 16, v{120+r}"); a(f"v_and_b32 v{117+2*r}, 0xffff0000, v{120+r}")
        a(f"v_lshlrev_b32 v{124+2*r}, 16, v{122+r}"); a(f"v_and_b32 v{125+2*r}, 0xffff0000, v{122+r}")
    for r in range(4): a(f"v_max_f32 v{116+r}, 0, v{116+r}")
    for r in range(4): a(f"v_mul_f32 v{116+r}, v{116+r}, v{124+r}")
    for r in range(2): a(f"v_cvt_pk_bf16_f32 v{120+r}, v{116+2*r}, v{117+2*r}")
    a("s_mov_b64 exec, 0x00ff00ff")
    for r in range(2): a(f"v_min_u32 v{120+r}, -2, v{120+r}")
    a("buffer_store_dwordx2 v[120:121], v70, s[32:35], 0 offen sc1")
    stamp(11)
    if stamps == 1: a("s_waitcnt vmcnt(0)"); stamp(14)
    a("s_branch L_fin")
    a("L_s4:")
    a("v_and_b32 v27, 7, v75"); a("v_lshlrev_b32 v63, 4, v27"); a("v_lshl_add_u32 v63, v74, 7, v63")
    a("s_lshl_b32 s58, s3, 9"); a("v_add_u32 v26, s58, v63")
    a("v_lshlrev_b32 v60, 5, v60"); a("v_lshl_add_u32 v60, v61, 3, v60")
    a(f"s_mul_i32 s58, s3, {448*32}"); a(f"s_add_u32 s58, s58, {L_WD}"); a("v_add_u32 v60, s58, v60")
    for u in range(7):
        for hf in range(2):
            for sec in range(2): trread(128 + 8*u + 4*hf + 2*sec, "v60", (64*u + 8*hf + 4*sec) * 32)
        if u in (2, 5): a("s_waitcnt lgkmcnt(4)")
    a("v_lshrrev_b32 v49, 1, v27"); a("v_lshlrev_b32 v49, 7, v49"); a("v_and_b32 v50, 1, v27"); a("v_lshl_add_u32 v49, v50, 6, v49")
    a("v_lshl_add_u32 v49, v74, 3, v49")
    a("s_lshr_b32 s58, s89, 1"); a("s_lshl_b32 s58, s58, 9"); a("s_and_b32 s92, s89, 1"); a("s_lshl_b32 s92, s92, 5"); a("s_add_u32 s58, s58, s92")
    a(f"s_add_u32 s58, s58, {WS_H}"); a("v_add_u32 v49, s58, v49")
    a("v_lshlrev_b32 v50, 10, v27"); a("v_lshl_add_u32 v50, v74, 3, v50"); a("s_lshl_b32 s58, s89, 5"); a("v_add_u32 v50, s58, v50")
    a(f"s_mul_i32 s59, s3, {7*1024}"); a(f"s_add_u32 s59, s59, {WS_G}"); a("s_add_u32 s92, s59, 4096")
    a("s_waitcnt lgkmcnt(0)")
    def ldG(b): return ld8(b)[:7] + [f"buffer_load_dwordx2 v[{b+28}:{b+29}], v49, s[32:35], 0 offen sc1"]
    def useG(b):
        for u in range(7):
            for hf in range(2):
                a(f"v_mfma_f32_16x16x32_bf16 v[{108+4*hf}:{111+4*hf}], v[{128+8*u+4*hf}:{131+8*u+4*hf}], v[{b+4*u}:{b+3+4*u}], {'0' if u == 0 else 'v[%d:%d]' % (108+4*hf, 111+4*hf)}")
        for r in range(2):
            a(f"v_lshlrev_b32 v{116+2*r}, 16, v{b+28+r}"); a(f"v_and_b32 v{117+2*r}, 0xffff0000, v{b+28+r}")
    if gdel: a(f"s_sleep {gdel}")
    poll2("L_pG", ldG, 30, (76, 192), useG)
    stamp(10)
    for r in range(4): a(f"v_add_f32_dpp v{108+r}, v{112+r}, v{108+r} row_ror:8 row_mask:0xf bank_mask:0xf")
    a("s_mov_b32 exec_lo, 0x00ff00ff"); a("s_mov_b32 exec_hi, 0x00ff00ff")
    a(f"ds_write_b128 v26, v[108:111] offset:{L_TX}")
    a("s_waitcnt lgkmcnt(0)"); a("s_barrier")
    a("s_cmp_eq_u32 s3, 3"); a("s_cbranch_scc0 L_fin")
    for w in range(4): a(f"ds_read_b128 v[{128+4*w}:{131+4*w}], v63 offset:{L_TX+512*w}")
    a("s_waitcnt lgkmcnt(0)")
    for r in range(4):
        a(f"v_add_f32 v{128+r}, v{128+r}, v{132+r}"); a(f"v_add_f32 v{136+r}, v{136+r}, v{140+r}")
    for r in range(4): a(f"v_add_f32 v{128+r}, v{128+r}, v{136+r}")
    for r in range(2): a(f"v_cvt_pk_bf16_f32 v{132+r}, v{128+2*r}, v{129+2*r}")
    for r in range(2):
        a(f"v_lshlrev_b32 v{128+2*r}, 16, v{132+r}"); a(f"v_and_b32 v{129+2*r}, 0xffff0000, v{132+r}")
    for r in range(4): a(f"v_add_f32 v{128+r}, v{128+r}, v{116+r}")
    for r in range(2): a(f"v_cvt_pk_bf16_f32 v{132+r}, v{128+2*r}, v{129+2*r}")
    a("buffer_store_dwordx2 v[132:133], v50, s[36:39], 0 offen")
    stamp(11)
    a("L_fin:")
    if stamps:
        a("s_mov_b64 exec, -1")
        stamp(12)
        a("s_getreg_b32 s92, hwreg(HW_REG_XCC_ID)"); a("v_writelane_b32 v73, s92, 15")
        a("s_lshl_b32 s58, s2, 2"); a("s_add_u32 s58, s58, s3"); a("s_lshl_b32 s58, s58, 6"); a(f"s_add_u32 s58, s58, {WS_ST}")
        a("v_lshlrev_b32 v48, 2, v1"); a("s_mov_b64 exec, 0xffff")
        a("buffer_store_dword v73, v48, s[32:35], s58 offen")
        if "dbgout" in xp:
            a("s_cmp_eq_u32 s2, 229"); a("s_cbranch_scc0 L_end"); a("s_cmp_eq_u32 s3, 3"); a("s_cbranch_scc0 L_end")
            a("v_subrev_u32 v73, s18, v73"); a("s_mov_b64 exec, 0xffff")
            a("global_store_dword v48, v73, s[84:85] sc1")
    a("L_end:")
    a("s_endpgm")
    body = a.finish()
    head = HEADER + f"; @launch grid=(256,1,1) block=(256,1,1) lds={L_SIZE}\n" + '.amdgcn_target "amdgcn-amd-amdhsa--gfx950"\n.text\n' + \
        f".globl {NAME}\n.p2align 8\n.type {NAME},@function\n"
    tail = f""".section .rodata,"a"
.p2align 6
.amdhsa_kernel {NAME}
  .amdhsa_next_free_vgpr 384
  .amdhsa_next_free_sgpr 102
  .amdhsa_accum_offset 256
  .amdhsa_group_segment_fixed_size 0
  .amdhsa_kernarg_size 96
  .amdhsa_user_sgpr_count 2
  .amdhsa_user_sgpr_kernarg_segment_ptr 1
  .amdhsa_system_sgpr_workgroup_id_x 1
.end_amdhsa_kernel
"""
    return head + body + tail

if __name__ == "__main__":
    kw = eval("dict(%s)" % (sys.argv[2] if len(sys.argv) > 2 else ""))
    open(sys.argv[1], "w").write(gen(**kw))
```

```python
import sys, struct
sys.path.insert(0, __file__.rsplit('/', 1)[0])
from asmlib import Asm

NAME = "sequential_preLN__mha_block_cached__glu_gated_reglu__decode_kernel"
HEADER = open(__file__.rsplit('/', 1)[0] + '/header.txt').read()

def f32(x): return "0x%08x" % struct.unpack('<I', struct.pack('<f', x))[0]

WS_P, WS_H, WS_G, WS_ST, WS_SIZE = 0, 0x80000, 0x82000, 0x100000, 0x140000
L_QP, L_OP, L_ML, L_ST, L_TX, L_T2, L_CS, L_W, L_DUMP, L_SIZE = 0, 2048, 4096, 4160, 4608, 8192, 16384, 24576, 90112, 106496
RING = 128
NB = 32
SPIN = 200000

def gen(D=5, hi=1, pol="nt", wpol="", fpol="", early=(2, 7, 12, 17), n1=5, kq=2, nbar=2, nA=3, nB=3, D1=None,
        stag=4, ctl=1, slack=130, eps=0, head=(300, 350), hiu=(4, 4), cal=3, stamps=0, xp=()):
    a = Asm()
    vm = []
    def C(t): a("; " + t)
    def vwait(tag):
        n = len(vm) - 1 - vm.index(tag)
        a(f"s_waitcnt vmcnt({min(n, 63)})")
    def stamp(k):
        if stamps == 2 and k not in (6, 12): return
        if stamps == 3 and k not in (3, 4, 6, 12): return
        if stamps:
            a("s_memrealtime s[94:95]"); a("s_waitcnt lgkmcnt(0)"); a(f"v_writelane_b32 v73, s94, {k}")
    def lapstamp(off):
        if stamps == 3:
            a("s_memrealtime s[94:95]"); a(f"s_add_u32 m0, s56, {off}"); a("s_waitcnt lgkmcnt(0)"); a("v_writelane_b32 v73, s94, m0")
    def allred(op, v, t):
        for n in (8, 4, 2, 1): a(f"{op}_dpp {v}, {v}, {v} row_ror:{n} row_mask:0xf bank_mask:0xf")
        for sw in ("v_permlane16_swap_b32", "v_permlane32_swap_b32"):
            a(f"v_mov_b32 {t}, {v}"); a(f"{sw} {v}, {t}"); a(f"{op} {v}, {v}, {t}")
    def bf16r(v):
        a(f"v_cvt_pk_bf16_f32 {v}, {v}, {v}"); a(f"v_and_b32 {v}, 0xffff0000, {v}")
    def srd(d, lo, hi_, size, add=None):
        if add is None:
            a(f"s_mov_b32 s{d}, s{lo}"); a(f"s_mov_b32 s{d+1}, s{hi_}")
        else:
            a(f"s_add_u32 s{d}, s{lo}, {add}"); a(f"s_addc_u32 s{d+1}, s{hi_}, 0")
        a(f"s_mov_b32 s{d+2}, {size}"); a(f"s_mov_b32 s{d+3}, 0x20000")
    def ring(j): j %= NB; return f"v[{RING+4*j}:{RING+4*j+3}]"
    def sload(j):
        s, b = ("s[12:15]", "s55") if j >= NB else ("s[8:11]", "s54")
        j %= NB
        a(f"buffer_load_dwordx4 {ring(j)}, v{2+(j>>2)}, {s}, {b} offen offset:{(j&3)*1024} {pol}")
    def masks(t, src, lane):
        for r in range(4):
            a(f"v_and_b32_dpp v{18+4*(t&1)+r}, {src}, v{14+r} row_newbcast:{lane} row_mask:0xf bank_mask:0xf")
    def mop(t): return f"v[{18+4*(t&1)}:{21+4*(t&1)}]"
    def mfma(d, x, y, first): a(f"v_mfma_f32_16x16x32_bf16 v[{d}:{d+3}], {x}, {y}, {'0' if first else 'v[%d:%d]' % (d, d+3)}")
    def bitrev(t): return ((t & 1) << 3) | ((t & 2) << 1) | ((t & 4) >> 1) | ((t & 8) >> 3)
    def check(regs, ok):
        r = list(regs)
        a(f"v_max3_u32 v48, v{r[0]}, v{r[1]}, v{r[2]}"); r = r[3:]
        while len(r) >= 2:
            a(f"v_max3_u32 v48, v48, v{r[0]}, v{r[1]}"); r = r[2:]
        if r: a(f"v_max_u32 v48, v48, v{r[0]}")
        a("v_cmp_eq_u32 vcc, -1, v48")
        a(f"s_cbranch_vccz {ok}")
    def poll2(label, loads, nreg, bases, use):
        n = len(loads(bases[0]))
        a(f"s_mov_b32 s88, {SPIN}")
        for l in loads(bases[0]): a(l)
        if stag: a(f"s_sleep {stag}")
        a(f"{label}:")
        for l in loads(bases[1]): a(l)
        a(f"s_waitcnt vmcnt({n})")
        check(range(bases[0], bases[0] + nreg), f"{label}_A")
        for l in loads(bases[0]): a(l)
        a(f"s_waitcnt vmcnt({n})")
        check(range(bases[1], bases[1] + nreg), f"{label}_B")
        a("s_sub_u32 s88, s88, 1")
        a(f"s_cbranch_scc0 {label}")
        a(f"{label}_B:")
        use(bases[1])
        a(f"s_branch {label}_done")
        a(f"{label}_A:")
        use(bases[0])
        a(f"{label}_done:")
    def trread(dst, addr, off): a(f"ds_read_b64_tr_b16 v[{dst}:{dst+1}], {addr} offset:{off}")

    a(f"{NAME}:")
    a("s_cmp_ge_u32 s2, 256"); a("s_cbranch_scc1 L_end")
    a("s_memrealtime s[18:19]")
    a("s_load_dwordx16 s[64:79], s[0:1], 0")
    a("s_load_dwordx8 s[80:87], s[0:1], 64")
    C("s3 wave, s4 batch row, s5 head; v1 lane, v74 lane>>4 (g), v75 lane&15 (i)")
    a("v_lshrrev_b32 v1, 6, v0")
    a("v_readfirstlane_b32 s3, v1")
    a("v_and_b32 v1, 63, v0")
    a("s_lshr_b32 s4, s2, 5"); a("s_and_b32 s5, s2, 31")
    a("v_lshrrev_b32 v74, 4, v1"); a("v_and_b32 v75, 15, v1")
    a("v_lshlrev_b32 v48, 4, v1")
    a("s_lshl_b32 s58, s3, 12"); a("v_add_u32 v2, s58, v48")
    for k in range(1, 8): a(f"v_add_u32 v{2+k}, {k*16384}, v2")
    a("s_lshl_b32 s58, s3, 8"); a("v_lshlrev_b32 v49, 3, v75"); a("v_lshl_add_u32 v49, v74, 1, v49"); a("v_add_u32 v49, s58, v49")
    a("v_lshrrev_b32 v51, 1, v74")
    C("wq lane offset v58 = (128w+g)*8192 + i*16 ; wo lane offset v59 = g*1024 + w*256 + i*16")
    a("s_lshl_b32 s58, s3, 20"); a("v_lshlrev_b32 v58, 13, v74"); a("v_lshl_add_u32 v58, v75, 4, v58"); a("v_add_u32 v58, s58, v58")
    a("s_lshl_b32 s58, s3, 8"); a("v_lshlrev_b32 v59, 10, v74"); a("v_lshl_add_u32 v59, v75, 4, v59"); a("v_add_u32 v59, s58, v59")
    a("s_lshl_b32 s57, s4, 10"); a("s_lshl_b32 s58, s5, 8"); a("s_lshl_b32 s59, s2, 20")
    a("s_sub_u32 s92, 0x400000, s58")
    a("s_mov_b32 s54, 0")
    a("s_waitcnt lgkmcnt(0)")
    if stamps: a("v_mov_b32 v73, 0"); a("v_writelane_b32 v73, s18, 0")
    kiss = 0
    def kload():
        nonlocal kiss
        sload(kiss - kbase); vm.append(f"k{kiss}"); kiss += 1
    kbase = 0
    srd(8, 66, 67, 0x100000, "s59")
    kload()
    srd(28, 64, 65, 8192)
    a("buffer_load_dwordx4 v[52:55], v48, s[28:31], s57 offen"); vm.append("x")
    a("buffer_load_ushort v56, v49, s[28:31], s57 offen"); vm.append("xc0")
    a("buffer_load_ushort v57, v49, s[28:31], s57 offen offset:128"); vm.append("xc1")
    srd(20, 70, 71, "s92", "s58")
    wiss = 0
    def wqload():
        nonlocal wiss
        a(f"s_mov_b32 s58, {wiss*32768}")
        a(f"buffer_load_dwordx4 a[{4*wiss}:{4*wiss+3}], v58, s[20:23], s58 offen {wpol}"); vm.append(f"wq{wiss}"); wiss += 1
    for j in range(n1):
        if j: kload()
        wqload(); wqload()
    a("s_add_u32 s16, s68, s59"); a("s_addc_u32 s17, s69, 0")
    a("s_mov_b32 s12, s8"); a("s_mov_b32 s13, s9"); a("s_mov_b32 s14, 0x100000"); a("s_mov_b32 s15, 0x20000")
    a("s_lshl_b32 s58, s5, 17"); srd(24, 72, 73, 0x20000, "s58")
    srd(32, 86, 87, WS_SIZE); srd(36, 82, 83, 8192)
    srd(40, 76, 77, 512*3584); srd(44, 78, 79, 512*3584)
    C("role s7 / index s89: 1 gate+up tiles (wg<56), 2 reducer (64<=wg<128), 3 output slice (wg>=224), 0 none")
    a("s_and_b32 s58, s2, 7"); a("s_lshr_b32 s92, s2, 3")
    a("s_mul_i32 s89, s58, 7"); a("s_add_u32 s89, s89, s92")
    a("s_cmp_lt_u32 s2, 56"); a("s_cselect_b32 s7, 1, 0")
    a("s_lshl_b32 s58, s58, 2"); a("s_add_u32 s58, s58, s92"); a("s_sub_u32 s58, s58, 28")
    a("s_cmp_ge_u32 s2, 224"); a("s_cselect_b32 s89, s58, s89"); a("s_cselect_b32 s7, 3, s7")
    a("s_sub_u32 s58, s2, 64"); a("s_cmp_lt_u32 s58, 64"); a("s_cselect_b32 s89, s58, s89"); a("s_cselect_b32 s7, 2, s7")
    a("s_lshl_b32 s6, s3, 2"); a("s_add_u32 s6, s6, s7")
    C("P store offset v68 = ((4w + (i>>2))*4 + (b>>1))*8192 + (2h + (b&1))*128 + (i&3)*32 + g*16")
    a("v_lshrrev_b32 v68, 2, v75"); a("v_lshlrev_b32 v68, 15, v68"); a("v_lshl_add_u32 v68, v74, 4, v68")
    a("v_and_b32 v60, 3, v75"); a("v_lshl_add_u32 v68, v60, 5, v68")
    a("s_lshl_b32 s58, s3, 17"); a("s_lshr_b32 s92, s4, 1"); a("s_lshl_b32 s92, s92, 13"); a("s_add_u32 s58, s58, s92")
    a("s_lshl_b32 s92, s5, 8"); a("s_add_u32 s58, s58, s92")
    a("s_and_b32 s92, s4, 1"); a("s_lshl_b32 s92, s92, 7"); a("s_add_u32 s58, s58, s92"); a("v_add_u32 v68, s58, v68")
    C("H store offset v69 = H + rho*128 + i*8 + (g>>1)*4 ; x offset v50 = (2(rho&3) + (i>>3))*1024 + (rho>>2)*64 + (i&7)*8 + (g>>1)*4")
    a("v_lshlrev_b32 v69, 3, v75"); a("v_lshl_add_u32 v69, v51, 2, v69")
    a("v_lshrrev_b32 v50, 3, v75"); a("v_lshlrev_b32 v50, 10, v50"); a("v_and_b32 v60, 7, v75"); a("v_lshl_add_u32 v50, v60, 3, v50")
    a("v_lshl_add_u32 v50, v51, 2, v50")
    a("s_and_b32 s58, s89, 3"); a("s_lshl_b32 s58, s58, 11"); a("s_lshr_b32 s92, s89, 2"); a("s_lshl_b32 s92, s92, 6"); a("s_add_u32 s58, s58, s92")
    a("v_add_u32 v50, s58, v50")
    a("s_lshl_b32 s58, s89, 7"); a(f"s_add_u32 s58, s58, {WS_H}"); a("v_add_u32 v69, s58, v69")
    a("buffer_load_dword v71, v50, s[28:31], 0 offen"); vm.append("xr")
    C("G store offset v70 = G + (4*s89 + w)*128 + i*16 + g*8")
    a("v_lshlrev_b32 v70, 4, v75"); a("v_lshl_add_u32 v70, v74, 3, v70")
    a("s_lshl_b32 s58, s89, 2"); a("s_add_u32 s58, s58, s3"); a("s_lshl_b32 s58, s58, 7"); a(f"s_add_u32 s58, s58, {WS_G}"); a("v_add_u32 v70, s58, v70")
    C("the reducers mark every hand-off line empty (all ones): own P lines, own H line, four G lines")
    a("s_cmp_eq_u32 s7, 2"); a("s_cbranch_scc0 L_noclr")
    for r in range(4): a(f"v_mov_b32 v{60+r}, -1")
    a("s_lshl_b32 s58, s89, 13"); a("s_lshl_b32 s92, s3, 11"); a("s_add_u32 s58, s58, s92")
    a("buffer_store_dwordx4 v[60:63], v48, s[32:35], s58 offen sc1")
    a("buffer_store_dwordx4 v[60:63], v48, s[32:35], s58 offen offset:1024 sc1")
    a("s_mov_b64 exec, 0x00ff00ff")
    a("buffer_store_dwordx2 v[60:61], v70, s[32:35], 0 offen sc1")
    a("s_cmp_eq_u32 s3, 0"); a("s_cbranch_scc0 L_noclr")
    a("s_mov_b32 exec_lo, 0xffff"); a("s_mov_b32 exec_hi, 0xffff")
    a("buffer_store_dword v60, v69, s[32:35], 0 offen sc1")
    a("L_noclr:")
    a("s_mov_b64 exec, -1")
    for j in range(nA): kload()
    stamp(1)
    a("s_mov_b32 s60, 0xcccccccc"); a("s_mov_b32 s61, 0xcccccccc"); a("s_mov_b32 s62, 0xaaaaaaaa"); a("s_mov_b32 s63, 0xaaaaaaaa")
    a(f"s_mov_b32 s90, {f32(128 ** -0.5)}"); a(f"s_mov_b32 s91, {f32(1.4426950408889634)}")
    C("selector masks v14..17: lane (g,m): m<8 and m>>1==r -> m&1 ? 0xffff0000 : 0xffff")
    a("v_and_b32 v60, 1, v75"); a("v_lshlrev_b32 v60, 4, v60"); a("v_mov_b32 v61, 0xffff"); a("v_lshlrev_b32 v60, v60, v61")
    a("v_lshrrev_b32 v61, 1, v75")
    for r in range(4):
        a(f"v_cmp_eq_u32 vcc, {r}, v61"); a(f"v_cndmask_b32 v{14+r}, 0, v60, vcc")
    C("---- LayerNorm of x[b]")
    vwait("x")
    for j in range(nB): kload()
    for k in range(4):
        a(f"v_lshlrev_b32 v{76+2*k}, 16, v{52+k}"); a(f"v_and_b32 v{77+2*k}, 0xffff0000, v{52+k}")
    a("v_add_f32 v84, v76, v77")
    for k in range(2, 8): a(f"v_add_f32 v84, v84, v{76+k}")
    allred("v_add_f32", "v84", "v85")
    a(f"v_mul_f32 v84, {f32(1/512)}, v84")
    for k in range(8): a(f"v_sub_f32 v{76+k}, v{76+k}, v84")
    a("v_mul_f32 v86, v76, v76")
    for k in range(1, 8): a(f"v_fmac_f32 v86, v{76+k}, v{76+k}")
    allred("v_add_f32", "v86", "v85")
    a(f"v_mul_f32 v86, {f32(1/512)}, v86")
    bf16r("v84"); bf16r("v86")
    a(f"v_add_f32 v86, {f32(1e-5)}, v86"); bf16r("v86")
    a("v_sqrt_f32 v86, v86"); bf16r("v86"); a("v_rcp_f32 v86, v86")
    vwait("xc1")
    for k in range(2):
        a(f"v_lshlrev_b32 v{56+k}, 16, v{56+k}"); a(f"v_sub_f32 v{56+k}, v{56+k}, v84"); bf16r(f"v{56+k}")
        a(f"v_mul_f32 v{56+k}, v{56+k}, v86"); a(f"v_cvt_pk_bf16_f32 v{66+k}, v{56+k}, v{56+k}")
    stamp(2)
    C("---- q = xn @ wq[:, head], 128 rows per wave")
    masks(0, "v66", 0)
    for t in range(32):
        vwait(f"wq{t}")
        mfma(28, mop(t), f"a[{4*t}:{4*t+3}]", t == 0)
        if wiss < 32: wqload()
        if int((t + 1) / kq) > int(t / kq) and kiss < NB: kload()
        if t < 31: masks(t + 1, "v66" if t + 1 < 16 else "v67", (t + 1) & 15)
    for j in range(nbar):
        if kiss < NB: kload()
    a("v_lshlrev_b32 v27, 5, v75"); a("v_lshl_add_u32 v26, v74, 4, v27"); a("s_lshl_b32 s58, s3, 9"); a("v_add_u32 v26, s58, v26")
    a("s_mov_b32 exec_hi, 0")
    a(f"ds_write_b128 v26, v[28:31] offset:{L_QP}")
    a("s_mov_b64 exec, -1")
    a("s_waitcnt lgkmcnt(0)"); a("s_barrier")
    for w in range(4):
        for hh in range(2): a(f"ds_read_b128 v[{76+8*w+4*hh}:{79+8*w+4*hh}], v27 offset:{L_QP+512*w+16*hh}")
    a("s_waitcnt lgkmcnt(0)")
    for k in range(8):
        a(f"v_add_f32 v{76+k}, v{76+k}, v{84+k}"); a(f"v_add_f32 v{92+k}, v{92+k}, v{100+k}")
    for k in range(8): a(f"v_add_f32 v{76+k}, v{76+k}, v{92+k}")
    for k in range(4): a(f"v_cvt_pk_bf16_f32 v{10+k}, v{76+2*k}, v{77+2*k}")
    a("v_mov_b32 v64, 0xff800000"); a("v_mov_b32 v65, 0")
    stamp(3)

    def kconsume(i):
        t = i & 15
        x = f"v{48 + (t & 1)}"
        base = RING + 4 * i
        a(f"v_dot2_f32_bf16 {x}, v{base}, v10, 0")
        for r in range(1, 4): a(f"v_dot2_f32_bf16 {x}, v{base+r}, v{10+r}, {x}")
        if t & 1:
            d = f"v{50 + ((t >> 1) & 1)}"
            a(f"v_add_f32_dpp {d}, v48, v48 row_ror:8 row_mask:0xf bank_mask:0x3")
            a(f"v_add_f32_dpp {d}, v49, v49 row_ror:8 row_mask:0xf bank_mask:0xc")
        if t & 3 == 3:
            d = f"v{52 + ((t >> 2) & 1)}"
            a(f"v_add_f32_dpp {d}, v50, v50 row_half_mirror row_mask:0xf bank_mask:0x5")
            a(f"v_add_f32_dpp {d}, v51, v51 row_half_mirror row_mask:0xf bank_mask:0xa")
        if t & 7 == 7:
            d = f"v{54 + ((t >> 3) & 1)}"
            a("v_add_f32_dpp v52, v52, v52 quad_perm:[2,3,0,1] row_mask:0xf bank_mask:0xf")
            a("v_add_f32_dpp v53, v53, v53 quad_perm:[2,3,0,1] row_mask:0xf bank_mask:0xf")
            a(f"v_cndmask_b32 {d}, v52, v53, s[60:61]")
        if t == 15:
            s = f"v{46 + (i >> 4)}"
            a("v_add_f32_dpp v54, v54, v54 quad_perm:[1,0,3,2] row_mask:0xf bank_mask:0xf")
            a("v_add_f32_dpp v55, v55, v55 quad_perm:[1,0,3,2] row_mask:0xf bank_mask:0xf")
            a(f"v_cndmask_b32 {s}, v54, v55, s[62:63]")
            bf16r(s); a(f"v_mul_f32 {s}, s90, {s}"); bf16r(s)
            a(f"v_max_f32 v64, v64, {s}")
    C("---- lap 0: the keys that arrived while q was formed")
    a(f"s_mov_b32 s55, {NB*4096}")
    left = NB + D - kiss
    early = list(early)
    while early and early[-1] >= NB - (left - len(early)): early.pop()
    sched = early + list(range(NB - (left - len(early)), NB))
    assert len(set(sched)) == left, (sched, left)
    for i in range(NB):
        vwait(f"k{i}")
        if i in sched:
            assert kiss - NB < i
            kload()
        kconsume(i)
    stamp(4)
    C("---- lap 1 also brings in this head's rows of wo")
    a("s_mov_b32 s54, s55"); a(f"s_add_u32 s55, s55, {NB*4096}")
    for k in range(2): a(f"v_mov_b32 v{44+k}, v{46+k}")
    kbase = NB
    for j in range((D1 or D) - D): kload()
    for i in range(NB):
        vwait(f"k{NB+i}")
        if kiss < 2 * NB + D: kload()
        a(f"s_mov_b32 s58, {i*4096}")
        a(f"buffer_load_dwordx4 a[{4*i}:{4*i+3}], v59, s[24:27], s58 offen {wpol}"); vm.append(f"wo{i}")
        kconsume(i)

    def decide(label, br):
        a("s_waitcnt lgkmcnt(0)")
        a("s_sub_u32 s58, s52, s48"); a("s_lshl_b32 s58, s58, 8"); a("s_sub_u32 s58, s58, s49"); a("s_add_u32 s49, s49, s57")
        a("s_sub_u32 s19, s19, 1"); a("s_cmp_ge_i32 s19, 0"); a("s_cselect_b32 s58, 1, s58")
        a("s_cmp_gt_i32 s58, 0")
        a(f"s_cbranch_{br} {label}")
    def segment(tag, mode, k, consume):
        DD = D + (hi if mode else 0); i0 = 16 * k
        if mode:
            a("s_cmp_eq_u32 s51, 1"); a(f"s_cbranch_scc1 {tag}_in")
            for j in range(D, DD): sload(i0 + j)
            a(f"{tag}_in:")
        for i in range(i0, i0 + 16):
            a(f"s_waitcnt vmcnt({DD - 1})")
            skip = (not mode) and i - i0 < hi
            if skip: a("s_cmp_eq_u32 s51, 1"); a(f"s_cbranch_scc1 {tag}_s{i}")
            sload(i + DD)
            if skip: a(f"{tag}_s{i}:")
            if i - i0 == hi: a(f"s_mov_b32 s51, {mode}")
            if i - i0 == 15: a("s_memrealtime s[52:53]")
            consume(i)
    def cal_events(base):
        lo, up = (2, 8) if base == 0 else (8, 16)
        if lo <= cal < up:
            a("s_waitcnt lgkmcnt(0)"); a(f"s_cmp_eq_u32 s56, {cal-base}"); a("s_cselect_b32 s88, s52, s88")
        if lo <= cal + 2 < up:
            a("s_lshl_b32 s58, s6, 4"); a("s_add_u32 s58, s58, s56")
            a(f"s_cmp_eq_u32 s58, {32+cal+2-base}"); a("s_cbranch_scc0 L_norep")
            a("s_waitcnt lgkmcnt(0)")
            a("s_sub_u32 s58, s52, s88"); a("s_min_u32 s58, s58, 0xffff"); a("s_max_u32 s58, s58, 1"); a("s_pack_ll_b32_b16 s58, s52, s58")
            a("v_mov_b32 v61, s58"); a("s_lshl_b32 s58, s89, 2"); a("v_mov_b32 v60, s58"); a("s_mov_b64 exec, 1")
            a("global_store_dword v60, v61, s[84:85] sc1")
            a("s_mov_b64 exec, -1")
            a("L_norep:")
        if lo <= cal + 3 < up:
            a(f"s_cmp_eq_u32 s56, {cal+3-base}"); a("s_cbranch_scc0 L_nold")
            a("v_lshlrev_b32 v60, 2, v1"); a("global_load_dword v72, v60, s[84:85] sc1")
            a("L_nold:")
        if lo <= cal + 4 < up:
            a(f"s_cmp_eq_u32 s56, {cal+4-base}"); a("s_cbranch_scc0 L_nocal")
            a("v_cmp_eq_u32 vcc, 0, v72"); a("s_cbranch_vccnz L_nocal")
            a("s_mov_b32 s50, 0")
            if ctl:
                a("s_waitcnt lgkmcnt(0)")
                a("s_mov_b32 s48, s52")
                a("v_lshrrev_b32 v60, 16, v72"); a("v_subrev_u32 v61, s52, v72"); a("v_bfe_i32 v61, v61, 0, 16")
                allred("v_add_u32", "v60", "v62"); allred("v_add_u32", "v61", "v62")
                a("v_readfirstlane_b32 s57, v60"); a("v_readfirstlane_b32 s49, v61")
                if eps > 0: a(f"s_lshr_b32 s58, s57, {eps}"); a("s_add_u32 s57, s57, s58")
                if eps < 0: a(f"s_lshr_b32 s58, s57, {-eps}"); a("s_sub_u32 s57, s57, s58")
                a("s_add_u32 s49, s49, s57"); a("s_lshl_b32 s49, s49, 2")
                a(f"s_mov_b32 s58, {slack*256}")
                a("s_cmp_eq_u32 s7, 1"); a(f"s_cselect_b32 s58, {(slack-head[0])*256}, s58")
                a("s_cmp_eq_u32 s7, 3"); a(f"s_cselect_b32 s58, {(slack-head[1])*256}, s58")
                a("s_add_u32 s49, s49, s58")
            a("L_nocal:")
    def laploop(name, head_code, consume):
        a(".p2align 3")
        a(f"{name}:")
        head_code()
        decide(f"{name}_h0", "scc1")
        segment(f"{name}_l0", 0, 0, consume)
        decide(f"{name}_h1", "scc1")
        a(f"{name}_l1:")
        segment(f"{name}_l1", 0, 1, consume)
        a("s_add_u32 s56, s56, 1"); a("s_cmp_lt_u32 s56, 8"); a(f"s_cbranch_scc1 {name}")
        a(f"s_branch {name}_end")
        a(f"{name}_h0:")
        segment(f"{name}_h0", 1, 0, consume)
        decide(f"{name}_l1", "scc0")
        a(f"{name}_h1:")
        segment(f"{name}_h1", 1, 1, consume)
        a("s_add_u32 s56, s56, 1"); a("s_cmp_lt_u32 s56, 8"); a(f"s_cbranch_scc1 {name}")
        a(f"{name}_end:")
    C("s48 time base, s49 deadline (1/256 ticks), s50 reports seen, s51 depth in use, s[52:53] clock, s57 pace, s19 fixed deep segments")
    a("s_mov_b32 s56, 2")
    a("s_memrealtime s[52:53]"); a("s_mov_b32 s51, 0"); a("s_mov_b32 s50, 99"); a("s_mov_b32 s57, 0")
    a("s_mov_b32 s48, s18"); a("s_mov_b32 s49, 0x7fffffff"); a("s_mov_b32 s88, 0")
    a("s_cmp_eq_u32 s7, 1"); a(f"s_cselect_b32 s19, {hiu[0]-4}, 0"); a("s_cmp_eq_u32 s7, 3"); a(f"s_cselect_b32 s19, {hiu[1]-4}, s19")
    def khead():
        lapstamp(16)
        a("s_mov_b32 s54, s55"); a(f"s_add_u32 s55, s55, {NB*4096}")
        a("s_cmp_eq_u32 s56, 7")
        a("s_cselect_b32 s12, s16, s12"); a("s_cselect_b32 s13, s17, s13"); a("s_cselect_b32 s55, 0, s55")
        for k in range(14): a(f"v_mov_b32 v{32+k}, v{34+k}")
        cal_events(0)
    laploop("L_k", khead, kconsume)
    stamp(5)
    C("---- maximum of this wave's scores, in log2 units, negated")
    allred("v_max_f32", "v64", "v48")
    a("v_mul_f32 v64, s91, v64"); a("v_sub_f32 v64, 0, v64")
    a("s_mov_b32 s8, s12"); a("s_mov_b32 s9, s13"); a("s_mov_b32 s56, 0")
    for r in range(4): a(f"v_mov_b32 v{28+r}, 0")
    def vhead():
        lapstamp(24)
        a("s_mov_b32 s54, s55"); a(f"s_add_u32 s55, s55, {NB*4096}")
        for k in range(2):
            a(f"v_fma_f32 v{56+k}, v{32+k}, s91, v64"); a(f"v_exp_f32 v{56+k}, v{56+k}")
            a(f"v_add_f32 v65, v65, v{56+k}"); a(f"v_cvt_pk_bf16_f32 v{66+k}, v{56+k}, v{56+k}")
        for k in range(14): a(f"v_mov_b32 v{32+k}, v{34+k}")
        masks(0, "v66", 0)
        cal_events(8)
        a("s_cmp_eq_u32 s56, 7"); a("s_cbranch_scc0 L_nolast")
        allred("v_add_f32", "v65", "v48")
        a("s_lshl_b32 s58, s3, 3"); a("v_mov_b32 v48, s58"); a("s_mov_b64 exec, 1")
        a(f"ds_write_b64 v48, v[64:65] offset:{L_ML}")
        a("s_mov_b64 exec, -1")
        a("s_cmp_lg_u32 s50, 99"); a("s_cbranch_scc1 L_nolast")
        a(f"s_mov_b32 s88, {SPIN}"); a("v_lshlrev_b32 v60, 2, v1")
        a("L_cnt:")
        a("global_load_dword v72, v60, s[84:85] sc1"); a("s_waitcnt vmcnt(0)")
        a("v_cmp_eq_u32 vcc, 0, v72"); a("s_cbranch_vccz L_nolast")
        a("s_sleep 8"); a("s_sub_u32 s88, s88, 1"); a("s_cbranch_scc0 L_cnt")
        a("L_nolast:")
    def vconsume(i):
        mfma(28, mop(i), ring(i), False)
        if i < NB - 1: masks(i + 1, f"v{66 + ((i + 1) >> 4)}", bitrev((i + 1) & 15))
    laploop("L_v", vhead, vconsume)
    stamp(6)
    C("---- combine the four waves, project through wo, publish the partial row")
    a("v_lshlrev_b32 v27, 4, v75"); a("v_lshl_add_u32 v27, v74, 2, v27")
    a("v_mov_b32 v48, 0")
    a("s_mov_b32 exec_hi, 0")
    a(f"ds_write_b128 v26, v[28:31] offset:{L_OP}")
    a("s_mov_b64 exec, -1")
    a("s_waitcnt lgkmcnt(0)"); a("s_barrier")
    a(f"ds_read_b128 v[76:79], v48 offset:{L_ML}"); a(f"ds_read_b128 v[80:83], v48 offset:{L_ML+16}")
    for w in range(4): a(f"ds_read2st64_b32 v[{84+2*w}:{85+2*w}], v27 offset0:{L_OP//256+2*w} offset1:{L_OP//256+2*w+1}")
    a("s_waitcnt lgkmcnt(4)")
    a("v_min_f32 v48, v76, v78"); a("v_min3_f32 v48, v48, v80, v82")
    for w in range(4): a(f"v_sub_f32 v{76+2*w}, v48, v{76+2*w}")
    for w in range(4): a(f"v_exp_f32 v{76+2*w}, v{76+2*w}")
    a("v_mul_f32 v49, v76, v77")
    for w in range(1, 4): a(f"v_fmac_f32 v49, v{76+2*w}, v{77+2*w}")
    a("v_rcp_f32 v49, v49")
    a("s_waitcnt lgkmcnt(0)")
    for k in range(2):
        a(f"v_mul_f32 v{56+k}, v76, v{84+k}")
        for w in range(1, 4): a(f"v_fmac_f32 v{56+k}, v{76+2*w}, v{84+2*w+k}")
    for k in range(2):
        a(f"v_mul_f32 v{56+k}, v{56+k}, v49"); a(f"v_cvt_pk_bf16_f32 v{66+k}, v{56+k}, v{56+k}")
    masks(0, "v66", 0)
    for t in range(32):
        if t < 31: masks(t + 1, "v66" if t + 1 < 16 else "v67", (t + 1) & 15)
        mfma(28, mop(t), f"a[{4*t}:{4*t+3}]", t == 0)
    a("s_mov_b32 exec_hi, 0")
    for r in range(4): a(f"v_min_u32 v{28+r}, -2, v{28+r}")
    a("buffer_store_dwordx4 v[28:31], v68, s[32:35], 0 offen sc1")
    a("s_mov_b64 exec, -1")
    stamp(7)
    a("s_cmp_eq_u32 s6, 2"); a("s_cbranch_scc1 L_s2")
    a("s_and_b32 s58, s7, 1"); a("s_cbranch_scc0 L_fin")
    C("---- this workgroup's FFN weights -> LDS: A via s[40:43], B via s[44:47]; s96/s97 source, s98/s99 LDS, s100/s101 steps")
    a("s_cmp_eq_u32 s7, 1"); a("s_cbranch_scc0 L_dmaD")
    a("v_lshrrev_b32 v62, 2, v1"); a("s_movk_i32 s58, 3584"); a("v_mul_u32_u24 v62, s58, v62")
    a("v_and_b32 v63, 3, v1"); a("v_lshl_add_u32 v62, v63, 4, v62")
    a("s_lshl_b32 s58, s89, 6"); a("v_add_u32 v62, s58, v62")
    a(f"s_mul_i32 s96, s3, {128*3584}"); a("s_mov_b32 s97, s96")
    a("s_lshl_b32 s98, s3, 13"); a(f"s_add_u32 s98, s98, {L_W}"); a("s_add_u32 s99, s98, 32768")
    a(f"s_mov_b32 s100, {16*3584}"); a("s_mov_b32 s101, 1024"); a("s_mov_b32 s93, 8")
    a("s_branch L_dma")
    a("L_dmaD:")
    a("v_lshrrev_b32 v62, 1, v1"); a("v_lshlrev_b32 v62, 10, v62"); a("v_and_b32 v63, 1, v1"); a("v_lshl_add_u32 v62, v63, 4, v62")
    a("s_lshl_b32 s58, s89, 5"); a("v_add_u32 v62, s58, v62")
    for d in (40, 44):
        a(f"s_mov_b32 s{d}, s80"); a(f"s_mov_b32 s{d+1}, s81"); a(f"s_mov_b32 s{d+2}, {1792*1024}")
    a(f"s_mul_i32 s96, s3, {448*1024}"); a("s_add_u32 s97, s96, 32768")
    a(f"s_mul_i32 s98, s3, {448*32}"); a(f"s_add_u32 s98, s98, {L_W}"); a("s_add_u32 s99, s98, 1024")
    a("s_mov_b32 s100, 65536"); a("s_mov_b32 s101, 2048"); a("s_mov_b32 s93, 7")
    a("L_dma:")
    a("s_mov_b32 m0, s98"); a("s_sub_u32 s93, s93, 1")
    a(f"buffer_load_dwordx4 v62, s[40:43], s96 offen {fpol} lds")
    a("s_mov_b32 m0, s99"); a("s_add_u32 s96, s96, s100")
    a(f"buffer_load_dwordx4 v62, s[44:47], s97 offen {fpol} lds")
    a("s_add_u32 s97, s97, s100"); a("s_add_u32 s98, s98, s101"); a("s_add_u32 s99, s99, s101")
    a("s_cmp_lg_u32 s93, 0"); a("s_cbranch_scc1 L_dma")
    C("exchange addresses v63 = g*128 + b*16, v26 = w*512 + v63 ; v60 = 16g + r', v61 = c' for the transposing reads")
    a("v_and_b32 v27, 7, v75"); a("v_lshlrev_b32 v63, 4, v27"); a("v_lshl_add_u32 v63, v74, 7, v63")
    a("s_lshl_b32 s58, s3, 9"); a("v_add_u32 v26, s58, v63")
    a("v_lshrrev_b32 v60, 2, v75"); a("v_lshl_add_u32 v60, v74, 4, v60"); a("v_and_b32 v61, 3, v1")
    a("s_cmp_eq_u32 s7, 3"); a("s_cbranch_scc1 L_s4")

    C("---- gate / up: four tiles of 8+8 columns, 128 rows of h per wave; LayerNorm is applied to the sums")
    a("v_lshlrev_b32 v60, 6, v60"); a("v_lshrrev_b32 v49, 1, v61"); a("v_lshl_add_u32 v60, v49, 15, v60")
    a("v_and_b32 v49, 1, v61"); a("v_lshl_add_u32 v60, v49, 3, v60")
    a("s_lshl_b32 s58, s3, 13"); a(f"s_add_u32 s58, s58, {L_W}"); a("v_add_u32 v60, s58, v60")
    for r in range(4): a(f"v_mov_b32 v{112+r}, 0x3f803f80")
    C("h fragment address v62 = (g>>1)*512 + (b>>1)*128 + (b&1)*64 + (g&1)*32 + half*16")
    a("v_lshrrev_b32 v62, 1, v74"); a("v_lshlrev_b32 v62, 9, v62"); a("v_bfe_u32 v49, v75, 1, 2"); a("v_lshl_add_u32 v62, v49, 7, v62")
    a("v_and_b32 v49, 1, v75"); a("v_lshl_add_u32 v62, v49, 6, v62"); a("v_and_b32 v49, 1, v74"); a("v_lshl_add_u32 v62, v49, 5, v62")
    a("v_lshrrev_b32 v49, 3, v75"); a("v_lshl_add_u32 v62, v49, 4, v62")
    a(f"s_mov_b32 s58, {L_DUMP-L_T2}"); a("v_mad_u32_u24 v26, v49, s58, v26")
    a("s_lshl_b32 s58, s3, 11"); a("v_add_u32 v63, s58, v63")
    a("v_lshrrev_b32 v49, 1, v74"); a("v_lshlrev_b32 v49, 2, v49"); a("v_lshlrev_b32 v61, 5, v27"); a("v_add_u32 v49, v49, v61")
    a("s_lshl_b32 s58, s3, 3"); a("v_add_u32 v49, s58, v49")
    a("s_lshl_b32 s59, s3, 11"); a(f"s_add_u32 s59, s59, {WS_H}")
    a("s_waitcnt vmcnt(0)")
    stamp(13)
    for t in range(4):
        for u in range(2):
            for hf in range(2):
                for sec in range(2): trread(128 + 16*t + 8*u + 4*hf + 2*sec, "v60", (64*u + 8*hf + 4*sec) * 64 + 16*t)
        if t: a("s_waitcnt lgkmcnt(6)")
    a("s_waitcnt lgkmcnt(0)")
    for k in range(4):
        for t in range(4): mfma(224 + 4*t, f"v[{128+16*t+4*k}:{131+16*t+4*k}]", "v[112:115]", k == 0)
    for t in range(4): a(f"ds_write_b128 v26, v[{224+4*t}:{227+4*t}] offset:{L_CS+2048*t}")
    def ldH(b): return [f"buffer_load_dwordx4 v[{b+4*u}:{b+3+4*u}], v62, s[32:35], s59 offen offset:{u*1024} sc1" for u in range(2)]
    def useH(b):
        n = 0
        for u in range(2):
            for t in range(4):
                for hf in range(2):
                    mfma(192 + 8*t + 4*hf, f"v[{128+16*t+8*u+4*hf}:{131+16*t+8*u+4*hf}]", f"v[{b+4*u}:{b+3+4*u}]", u == 0)
                    if n < 8:
                        a(f"v_dot2_f32_bf16 v52, v{b+n}, v112, {'0' if n == 0 else 'v52'}")
                        a(f"v_dot2_f32_bf16 v53, v{b+n}, v{b+n}, {'0' if n == 0 else 'v53'}")
                    if n == 9:
                        for r in range(2): a(f"v_add_f32_dpp v{52+r}, v{52+r}, v{52+r} row_ror:8 row_mask:0xf bank_mask:0xf")
                    if n == 11: a("v_permlane32_swap_b32 v52, v53"); a("v_add_f32 v52, v52, v53"); a("v_mov_b32 v53, v52")
                    if n == 13: a("v_permlane16_swap_b32 v52, v53"); a("v_add_f32 v52, v52, v53"); a(f"ds_write_b32 v49, v52 offset:{L_ST}")
                    n += 1
    poll2("L_pH", ldH, 8, (76, 84), useH)
    stamp(10)
    for t in range(4):
        for r in range(4): a(f"v_add_f32_dpp v{192+8*t+r}, v{196+8*t+r}, v{192+8*t+r} row_ror:8 row_mask:0xf bank_mask:0xf")
        a(f"ds_write_b128 v26, v[{192+8*t}:{195+8*t}] offset:{L_T2+2048*t}")
    a("s_waitcnt lgkmcnt(0)"); a("s_barrier")
    for k in range(2): a(f"ds_read_b128 v[{92+4*k}:{95+4*k}], v61 offset:{L_ST+16*k}")
    for w in range(4): a(f"ds_read_b128 v[{224+4*w}:{227+4*w}], v63 offset:{L_CS+512*w}")
    for w in range(4): a(f"ds_read_b128 v[{116+4*w}:{119+4*w}], v63 offset:{L_T2+512*w}")
    a("s_waitcnt lgkmcnt(8)")
    for k in range(2): a(f"v_add_f32 v{92+k}, v{92+k}, v{94+k}"); a(f"v_add_f32 v{96+k}, v{96+k}, v{98+k}")
    a("v_add_f32 v52, v92, v96"); a("v_add_f32 v53, v93, v97")
    a(f"v_mul_f32 v52, {f32(1/512)}, v52"); a(f"v_mul_f32 v53, {f32(1/512)}, v53")
    a("v_fma_f32 v53, -v52, v52, v53"); a("v_max_f32 v53, 0, v53")
    bf16r("v53"); bf16r("v52")
    a(f"v_add_f32 v53, {f32(1e-5)}, v53"); bf16r("v53")
    a("v_sqrt_f32 v53, v53")
    a("s_waitcnt lgkmcnt(4)")
    for r in range(4): a(f"v_add_f32 v{224+r}, v{224+r}, v{228+r}"); a(f"v_add_f32 v{232+r}, v{232+r}, v{236+r}")
    bf16r("v53"); a("v_rcp_f32 v53, v53")
    for r in range(4): a(f"v_add_f32 v{108+r}, v{224+r}, v{232+r}")
    a("s_waitcnt lgkmcnt(0)")
    for r in range(4): a(f"v_add_f32 v{116+r}, v{116+r}, v{120+r}"); a(f"v_add_f32 v{124+r}, v{124+r}, v{128+r}")
    for r in range(4): a(f"v_add_f32 v{116+r}, v{116+r}, v{124+r}")
    for r in range(4): a(f"v_fma_f32 v{116+r}, -v52, v{108+r}, v{116+r}")
    for r in range(4): a(f"v_mul_f32 v{116+r}, v{116+r}, v53")
    for r in range(2): a(f"v_cvt_pk_bf16_f32 v{120+r}, v{116+2*r}, v{117+2*r}")
    for r in range(2): a(f"v_permlane32_swap_b32 v{120+r}, v{122+r}")
    for r in range(2):
        a(f"v_lshlrev_b32 v{116+2*r}, 16, v{120+r}"); a(f"v_and_b32 v{117+2*r}, 0xffff0000, v{120+r}")
        a(f"v_lshlrev_b32 v{124+2*r}, 16, v{122+r}"); a(f"v_and_b32 v{125+2*r}, 0xffff0000, v{122+r}")
    for r in range(4): a(f"v_max_f32 v{116+r}, 0, v{116+r}")
    for r in range(4): a(f"v_mul_f32 v{116+r}, v{116+r}, v{124+r}")
    for r in range(2): a(f"v_cvt_pk_bf16_f32 v{120+r}, v{116+2*r}, v{117+2*r}")
    a("s_mov_b64 exec, 0x00ff00ff")
    for r in range(2): a(f"v_min_u32 v{120+r}, -2, v{120+r}")
    a("buffer_store_dwordx2 v[120:121], v70, s[32:35], 0 offen sc1")
    stamp(11)
    a("s_branch L_fin")

    C("---- reducer: sum the 32 heads' partials of 2 rows x 32 columns, add x, publish h")
    a("L_s2:")
    a("v_lshlrev_b32 v62, 4, v1")
    a("s_lshl_b32 s59, s89, 13"); a("s_add_u32 s92, s59, 4096")
    a("v_lshlrev_b32 v50, 16, v71"); a("v_and_b32 v51, 0xffff0000, v71")
    def ld8(b): return [f"buffer_load_dwordx4 v[{b+4*u}:{b+3+4*u}], v62, s[32:35], {'s59' if u < 4 else 's92'} offen offset:{(u&3)*1024} sc1" for u in range(8)]
    def useP(b):
        for r in range(16): a(f"v_add_f32 v{108+r}, v{b+r}, v{b+16+r}")
    poll2("L_pP", ld8, 32, (76, 128), useP)
    stamp(8)
    for st in (8, 4):
        for r in range(st): a(f"v_add_f32 v{108+r}, v{108+r}, v{108+st+r}")
    a("v_permlane32_swap_b32 v108, v110"); a("v_permlane32_swap_b32 v109, v111")
    a("v_add_f32 v108, v108, v110"); a("v_add_f32 v109, v109, v111")
    a("v_mov_b32 v110, v108"); a("v_mov_b32 v111, v109")
    a("v_permlane16_swap_b32 v108, v110"); a("v_permlane16_swap_b32 v109, v111")
    a("v_add_f32 v108, v108, v110"); a("v_add_f32 v109, v109, v111")
    a("v_cvt_pk_bf16_f32 v108, v108, v109")
    a("v_and_b32 v109, 0xffff0000, v108"); a("v_lshlrev_b32 v108, 16, v108")
    a("v_add_f32 v108, v108, v50"); a("v_add_f32 v109, v109, v51")
    a("v_cvt_pk_bf16_f32 v108, v108, v109")
    a("s_mov_b32 exec_lo, 0xffff"); a("s_mov_b32 exec_hi, 0xffff")
    a("v_min_u32 v108, -2, v108")
    a("buffer_store_dword v108, v69, s[32:35], 0 offen sc1")
    stamp(9)
    a("s_branch L_fin")

    C("---- 16 output columns, 448 rows of W_down per wave")
    a("L_s4:")
    a("v_lshlrev_b32 v60, 5, v60"); a("v_lshl_add_u32 v60, v61, 3, v60")
    a(f"s_mul_i32 s58, s3, {448*32}"); a(f"s_add_u32 s58, s58, {L_W}"); a("v_add_u32 v60, s58, v60")
    C("h address v49 = H + ((s'>>1)*4 + (b>>1))*128 + (b&1)*64 + (s'&1)*32 + g*8 ; out address v50 = b*1024 + s'*32 + g*8")
    a("v_lshrrev_b32 v49, 1, v27"); a("v_lshlrev_b32 v49, 7, v49"); a("v_and_b32 v50, 1, v27"); a("v_lshl_add_u32 v49, v50, 6, v49")
    a("v_lshl_add_u32 v49, v74, 3, v49")
    a("s_lshr_b32 s58, s89, 1"); a("s_lshl_b32 s58, s58, 9"); a("s_and_b32 s92, s89, 1"); a("s_lshl_b32 s92, s92, 5"); a("s_add_u32 s58, s58, s92")
    a(f"s_add_u32 s58, s58, {WS_H}"); a("v_add_u32 v49, s58, v49")
    a("v_lshlrev_b32 v50, 10, v27"); a("v_lshl_add_u32 v50, v74, 3, v50"); a("s_lshl_b32 s58, s89, 5"); a("v_add_u32 v50, s58, v50")
    a(f"s_mul_i32 s59, s3, {7*1024}"); a(f"s_add_u32 s59, s59, {WS_G}"); a("s_add_u32 s92, s59, 4096")
    a("v_lshlrev_b32 v62, 4, v1")
    a("s_waitcnt vmcnt(0)")
    stamp(13)
    for u in range(7):
        for hf in range(2):
            for sec in range(2): trread(128 + 8*u + 4*hf + 2*sec, "v60", (64*u + 8*hf + 4*sec) * 32)
        if u in (2, 5): a("s_waitcnt lgkmcnt(4)")
    a("s_waitcnt lgkmcnt(0)")
    def ldG(b): return ld8(b)[:7] + [f"buffer_load_dwordx2 v[{b+28}:{b+29}], v49, s[32:35], 0 offen sc1"]
    def useG(b):
        for u in range(7):
            for hf in range(2): mfma(108 + 4*hf, f"v[{128+8*u+4*hf}:{131+8*u+4*hf}]", f"v[{b+4*u}:{b+3+4*u}]", u == 0)
        for r in range(2):
            a(f"v_lshlrev_b32 v{116+2*r}, 16, v{b+28+r}"); a(f"v_and_b32 v{117+2*r}, 0xffff0000, v{b+28+r}")
    poll2("L_pG", ldG, 30, (76, 192), useG)
    stamp(10)
    for r in range(4): a(f"v_add_f32_dpp v{108+r}, v{112+r}, v{108+r} row_ror:8 row_mask:0xf bank_mask:0xf")
    a("s_mov_b32 exec_lo, 0x00ff00ff"); a("s_mov_b32 exec_hi, 0x00ff00ff")
    a(f"ds_write_b128 v26, v[108:111] offset:{L_TX}")
    a("s_waitcnt lgkmcnt(0)"); a("s_barrier")
    a("s_cmp_eq_u32 s3, 3"); a("s_cbranch_scc0 L_fin")
    for w in range(4): a(f"ds_read_b128 v[{128+4*w}:{131+4*w}], v63 offset:{L_TX+512*w}")
    a("s_waitcnt lgkmcnt(0)")
    for r in range(4):
        a(f"v_add_f32 v{128+r}, v{128+r}, v{132+r}"); a(f"v_add_f32 v{136+r}, v{136+r}, v{140+r}")
    for r in range(4): a(f"v_add_f32 v{128+r}, v{128+r}, v{136+r}")
    for r in range(2): a(f"v_cvt_pk_bf16_f32 v{132+r}, v{128+2*r}, v{129+2*r}")
    for r in range(2):
        a(f"v_lshlrev_b32 v{128+2*r}, 16, v{132+r}"); a(f"v_and_b32 v{129+2*r}, 0xffff0000, v{132+r}")
    for r in range(4): a(f"v_add_f32 v{128+r}, v{128+r}, v{116+r}")
    for r in range(2): a(f"v_cvt_pk_bf16_f32 v{132+r}, v{128+2*r}, v{129+2*r}")
    a("buffer_store_dwordx2 v[132:133], v50, s[36:39], 0 offen")
    stamp(11)
    a("L_fin:")
    if stamps:
        a("s_mov_b64 exec, -1")
        stamp(12)
        a("s_getreg_b32 s92, hwreg(HW_REG_XCC_ID)"); a("v_writelane_b32 v73, s92, 15")
        a("s_lshl_b32 s58, s2, 2"); a("s_add_u32 s58, s58, s3"); a("s_lshl_b32 s58, s58, 7"); a(f"s_add_u32 s58, s58, {WS_ST}")
        a("v_lshlrev_b32 v48, 2, v1"); a("s_mov_b32 exec_hi, 0")
        a("buffer_store_dword v73, v48, s[32:35], s58 offen")
        if "dbgout" in xp:
            a("s_cmp_eq_u32 s2, 229"); a("s_cbranch_scc0 L_end"); a("s_cmp_eq_u32 s3, 3"); a("s_cbranch_scc0 L_end")
            a("v_subrev_u32 v73, s18, v73"); a("s_mov_b64 exec, 0xffff")
            a("global_store_dword v48, v73, s[84:85] sc1")
    a("L_end:")
    a("s_endpgm")
    body = a.finish()
    head_ = HEADER + f"; @launch grid=(256,1,1) block=(256,1,1) lds={L_SIZE}\n" + '.amdgcn_target "amdgcn-amd-amdhsa--gfx950"\n.text\n' + \
        f".globl {NAME}\n.p2align 8\n.type {NAME},@function\n"
    tail = f""".section .rodata,"a"
.p2align 6
.amdhsa_kernel {NAME}
  .amdhsa_next_free_vgpr 384
  .amdhsa_next_free_sgpr 102
  .amdhsa_accum_offset 256
  .amdhsa_group_segment_fixed_size 0
  .amdhsa_kernarg_size 96
  .amdhsa_user_sgpr_count 2
  .amdhsa_user_sgpr_kernarg_segment_ptr 1
  .amdhsa_system_sgpr_workgroup_id_x 1
.end_amdhsa_kernel
"""
    return head_ + body + tail

if __name__ == "__main__":
    kw = eval("dict(%s)" % (sys.argv[2] if len(sys.argv) > 2 else ""))
    open(sys.argv[1], "w").write(gen(**kw))
```

```python
import sys, struct
sys.path.insert(0, __file__.rsplit('/', 1)[0])
from asmlib import Asm

NAME = "sequential_preLN__mha_block_cached__glu_gated_reglu__decode_kernel"
HEADER = open(__file__.rsplit('/', 1)[0] + '/header.txt').read()

def f32(x): return "0x%08x" % struct.unpack('<I', struct.pack('<f', x))[0]

WS_P, WS_H, WS_G, WS_ST, WS_SIZE = 0, 0x80000, 0x82000, 0x100000, 0x140000
L_QP, L_OP, L_ML, L_ST, L_TX, L_T2, L_CS, L_W, L_DUMP, L_SIZE = 0, 2048, 4096, 4160, 4608, 8192, 16384, 24576, 90112, 106496
RING = 128
NB = 32
SPIN = 200000

def gen(D=5, hi=1, pol="nt", wpol="", fpol="", early=(2, 7, 12, 17), n1=5, kq=2, nbar=2, nA=3, nB=3, D1=None,
        stag=4, ctl=1, slack=130, eps=0, head=(300, 350), hiu=(4, 4), cal=3, stamps=0, xp=(), probe=None, pwg=130):
    a = Asm()
    vm = []
    def C(t): a("; " + t)
    def vwait(tag):
        n = len(vm) - 1 - vm.index(tag)
        a(f"s_waitcnt vmcnt({min(n, 63)})")
    def stamp(k):
        if probe == k:
            a("s_memrealtime s[94:95]"); a("s_waitcnt lgkmcnt(0)"); a("s_sub_u32 s47, s94, s18") if False else a("s_sub_u32 s101, s94, s18")
        if stamps == 2 and k not in (6, 12): return
        if stamps == 3 and k not in (3, 4, 6, 12): return
        if stamps:
            a("s_memrealtime s[94:95]"); a("s_waitcnt lgkmcnt(0)"); a(f"v_writelane_b32 v73, s94, {k}")
    def lapstamp(off):
        if stamps == 3:
            a("s_memrealtime s[94:95]"); a(f"s_add_u32 m0, s56, {off}"); a("s_waitcnt lgkmcnt(0)"); a("v_writelane_b32 v73, s94, m0")
    def allred(op, v, t):
        for n in (8, 4, 2, 1): a(f"{op}_dpp {v}, {v}, {v} row_ror:{n} row_mask:0xf bank_mask:0xf")
        for sw in ("v_permlane16_swap_b32", "v_permlane32_swap_b32"):
            a(f"v_mov_b32 {t}, {v}"); a(f"{sw} {v}, {t}"); a(f"{op} {v}, {v}, {t}")
    def bf16r(v):
        a(f"v_cvt_pk_bf16_f32 {v}, {v}, {v}"); a(f"v_and_b32 {v}, 0xffff0000, {v}")
    def srd(d, lo, hi_, size, add=None):
        if add is None:
            a(f"s_mov_b32 s{d}, s{lo}"); a(f"s_mov_b32 s{d+1}, s{hi_}")
        else:
            a(f"s_add_u32 s{d}, s{lo}, {add}"); a(f"s_addc_u32 s{d+1}, s{hi_}, 0")
        a(f"s_mov_b32 s{d+2}, {size}"); a(f"s_mov_b32 s{d+3}, 0x20000")
    def ring(j): j %= NB; return f"v[{RING+4*j}:{RING+4*j+3}]"
    def sload(j):
        s, b = ("s[12:15]", "s55") if j >= NB else ("s[8:11]", "s54")
        j %= NB
        a(f"buffer_load_dwordx4 {ring(j)}, v{2+(j>>2)}, {s}, {b} offen offset:{(j&3)*1024} {pol}")
    def masks(t, src, lane):
        for r in range(4):
            a(f"v_and_b32_dpp v{18+4*(t&1)+r}, {src}, v{14+r} row_newbcast:{lane} row_mask:0xf bank_mask:0xf")
    def mop(t): return f"v[{18+4*(t&1)}:{21+4*(t&1)}]"
    def mfma(d, x, y, first): a(f"v_mfma_f32_16x16x32_bf16 v[{d}:{d+3}], {x}, {y}, {'0' if first else 'v[%d:%d]' % (d, d+3)}")
    def bitrev(t): return ((t & 1) << 3) | ((t & 2) << 1) | ((t & 4) >> 1) | ((t & 8) >> 3)
    def check(regs, ok):
        r = list(regs)
        a(f"v_max3_u32 v48, v{r[0]}, v{r[1]}, v{r[2]}"); r = r[3:]
        while len(r) >= 2:
            a(f"v_max3_u32 v48, v48, v{r[0]}, v{r[1]}"); r = r[2:]
        if r: a(f"v_max_u32 v48, v48, v{r[0]}")
        a("v_cmp_eq_u32 vcc, -1, v48")
        a(f"s_cbranch_vccz {ok}")
    def poll2(label, loads, nreg, bases, use):
        n = len(loads(bases[0]))
        a(f"s_mov_b32 s88, {SPIN}")
        for l in loads(bases[0]): a(l)
        if stag: a(f"s_sleep {stag}")
        a(f"{label}:")
        for l in loads(bases[1]): a(l)
        a(f"s_waitcnt vmcnt({n})")
        check(range(bases[0], bases[0] + nreg), f"{label}_A")
        for l in loads(bases[0]): a(l)
        a(f"s_waitcnt vmcnt({n})")
        check(range(bases[1], bases[1] + nreg), f"{label}_B")
        a("s_sub_u32 s88, s88, 1")
        a(f"s_cbranch_scc0 {label}")
        a(f"{label}_B:")
        use(bases[1])
        a(f"s_branch {label}_done")
        a(f"{label}_A:")
        use(bases[0])
        a(f"{label}_done:")
    def trread(dst, addr, off): a(f"ds_read_b64_tr_b16 v[{dst}:{dst+1}], {addr} offset:{off}")

    a(f"{NAME}:")
    a("s_cmp_ge_u32 s2, 256"); a("s_cbranch_scc1 L_end")
    a("s_memrealtime s[18:19]")
    a("s_load_dwordx16 s[64:79], s[0:1], 0")
    a("s_load_dwordx8 s[80:87], s[0:1], 64")
    C("s3 wave, s4 batch row, s5 head; v1 lane, v74 lane>>4 (g), v75 lane&15 (i)")
    a("v_lshrrev_b32 v1, 6, v0")
    a("v_readfirstlane_b32 s3, v1")
    a("v_and_b32 v1, 63, v0")
    a("s_lshr_b32 s4, s2, 5"); a("s_and_b32 s5, s2, 31")
    a("v_lshrrev_b32 v74, 4, v1"); a("v_and_b32 v75, 15, v1")
    a("v_lshlrev_b32 v48, 4, v1")
    a("s_lshl_b32 s58, s3, 12"); a("v_add_u32 v2, s58, v48")
    for k in range(1, 8): a(f"v_add_u32 v{2+k}, {k*16384}, v2")
    a("s_lshl_b32 s58, s3, 8"); a("v_lshlrev_b32 v49, 3, v75"); a("v_lshl_add_u32 v49, v74, 1, v49"); a("v_add_u32 v49, s58, v49")
    a("v_lshrrev_b32 v51, 1, v74")
    C("wq lane offset v58 = (128w+g)*8192 + i*16 ; wo lane offset v59 = g*1024 + w*256 + i*16")
    a("s_lshl_b32 s58, s3, 20"); a("v_lshlrev_b32 v58, 13, v74"); a("v_lshl_add_u32 v58, v75, 4, v58"); a("v_add_u32 v58, s58, v58")
    a("s_lshl_b32 s58, s3, 8"); a("v_lshlrev_b32 v59, 10, v74"); a("v_lshl_add_u32 v59, v75, 4, v59"); a("v_add_u32 v59, s58, v59")
    a("s_lshl_b32 s57, s4, 10"); a("s_lshl_b32 s58, s5, 8"); a("s_lshl_b32 s59, s2, 20")
    a("s_sub_u32 s92, 0x400000, s58")
    a("s_mov_b32 s54, 0")
    a("s_waitcnt lgkmcnt(0)")
    if stamps: a("v_mov_b32 v73, 0"); a("v_writelane_b32 v73, s18, 0")
    kiss = 0
    def kload():
        nonlocal kiss
        sload(kiss - kbase); vm.append(f"k{kiss}"); kiss += 1
    kbase = 0
    srd(8, 66, 67, 0x100000, "s59")
    kload()
    srd(28, 64, 65, 8192)
    a("buffer_load_dwordx4 v[52:55], v48, s[28:31], s57 offen"); vm.append("x")
    a("buffer_load_ushort v56, v49, s[28:31], s57 offen"); vm.append("xc0")
    a("buffer_load_ushort v57, v49, s[28:31], s57 offen offset:128"); vm.append("xc1")
    srd(20, 70, 71, "s92", "s58")
    wiss = 0
    def wqload():
        nonlocal wiss
        a(f"s_mov_b32 s58, {wiss*32768}")
        a(f"buffer_load_dwordx4 a[{4*wiss}:{4*wiss+3}], v58, s[20:23], s58 offen {wpol}"); vm.append(f"wq{wiss}"); wiss += 1
    for j in range(n1):
        if j: kload()
        wqload(); wqload()
    a("s_add_u32 s16, s68, s59"); a("s_addc_u32 s17, s69, 0")
    a("s_mov_b32 s12, s8"); a("s_mov_b32 s13, s9"); a("s_mov_b32 s14, 0x100000"); a("s_mov_b32 s15, 0x20000")
    a("s_lshl_b32 s58, s5, 17"); srd(24, 72, 73, 0x20000, "s58")
    srd(32, 86, 87, WS_SIZE); srd(36, 82, 83, 8192)
    srd(40, 76, 77, 512*3584); srd(44, 78, 79, 512*3584)
    C("role s7 / index s89: 1 gate+up tiles (wg<56), 2 reducer (64<=wg<128), 3 output slice (wg>=224), 0 none")
    a("s_and_b32 s58, s2, 7"); a("s_lshr_b32 s92, s2, 3")
    a("s_mul_i32 s89, s58, 7"); a("s_add_u32 s89, s89, s92")
    a("s_cmp_lt_u32 s2, 56"); a("s_cselect_b32 s7, 1, 0")
    a("s_lshl_b32 s58, s58, 2"); a("s_add_u32 s58, s58, s92"); a("s_sub_u32 s58, s58, 28")
    a("s_cmp_ge_u32 s2, 224"); a("s_cselect_b32 s89, s58, s89"); a("s_cselect_b32 s7, 3, s7")
    a("s_sub_u32 s58, s2, 64"); a("s_cmp_lt_u32 s58, 64"); a("s_cselect_b32 s89, s58, s89"); a("s_cselect_b32 s7, 2, s7")
    a("s_lshl_b32 s6, s3, 2"); a("s_add_u32 s6, s6, s7")
    C("P store offset v68 = ((4w + (i>>2))*4 + (b>>1))*8192 + (2h + (b&1))*128 + (i&3)*32 + g*16")
    a("v_lshrrev_b32 v68, 2, v75"); a("v_lshlrev_b32 v68, 15, v68"); a("v_lshl_add_u32 v68, v74, 4, v68")
    a("v_and_b32 v60, 3, v75"); a("v_lshl_add_u32 v68, v60, 5, v68")
    a("s_lshl_b32 s58, s3, 17"); a("s_lshr_b32 s92, s4, 1"); a("s_lshl_b32 s92, s92, 13"); a("s_add_u32 s58, s58, s92")
    a("s_lshl_b32 s92, s5, 8"); a("s_add_u32 s58, s58, s92")
    a("s_and_b32 s92, s4, 1"); a("s_lshl_b32 s92, s92, 7"); a("s_add_u32 s58, s58, s92"); a("v_add_u32 v68, s58, v68")
    C("H store offset v69 = H + rho*128 + i*8 + (g>>1)*4 ; x offset v50 = (2(rho&3) + (i>>3))*1024 + (rho>>2)*64 + (i&7)*8 + (g>>1)*4")
    a("v_lshlrev_b32 v69, 3, v75"); a("v_lshl_add_u32 v69, v51, 2, v69")
    a("v_lshrrev_b32 v50, 3, v75"); a("v_lshlrev_b32 v50, 10, v50"); a("v_and_b32 v60, 7, v75"); a("v_lshl_add_u32 v50, v60, 3, v50")
    a("v_lshl_add_u32 v50, v51, 2, v50")
    a("s_and_b32 s58, s89, 3"); a("s_lshl_b32 s58, s58, 11"); a("s_lshr_b32 s92, s89, 2"); a("s_lshl_b32 s92, s92, 6"); a("s_add_u32 s58, s58, s92")
    a("v_add_u32 v50, s58, v50")
    a("s_lshl_b32 s58, s89, 7"); a(f"s_add_u32 s58, s58, {WS_H}"); a("v_add_u32 v69, s58, v69")
    a("buffer_load_dword v71, v50, s[28:31], 0 offen"); vm.append("xr")
    C("G store offset v70 = G + (4*s89 + w)*128 + i*16 + g*8")
    a("v_lshlrev_b32 v70, 4, v75"); a("v_lshl_add_u32 v70, v74, 3, v70")
    a("s_lshl_b32 s58, s89, 2"); a("s_add_u32 s58, s58, s3"); a("s_lshl_b32 s58, s58, 7"); a(f"s_add_u32 s58, s58, {WS_G}"); a("v_add_u32 v70, s58, v70")
    C("the reducers mark every hand-off line empty (all ones): own P lines, own H line, four G lines")
    a("s_cmp_eq_u32 s7, 2"); a("s_cbranch_scc0 L_noclr")
    for r in range(4): a(f"v_mov_b32 v{60+r}, -1")
    a("s_lshl_b32 s58, s89, 13"); a("s_lshl_b32 s92, s3, 11"); a("s_add_u32 s58, s58, s92")
    a("buffer_store_dwordx4 v[60:63], v48, s[32:35], s58 offen sc1")
    a("buffer_store_dwordx4 v[60:63], v48, s[32:35], s58 offen offset:1024 sc1")
    a("s_mov_b64 exec, 0x00ff00ff")
    a("buffer_store_dwordx2 v[60:61], v70, s[32:35], 0 offen sc1")
    a("s_cmp_eq_u32 s3, 0"); a("s_cbranch_scc0 L_noclr")
    a("s_mov_b32 exec_lo, 0xffff"); a("s_mov_b32 exec_hi, 0xffff")
    a("buffer_store_dword v60, v69, s[32:35], 0 offen sc1")
    a("L_noclr:")
    a("s_mov_b64 exec, -1")
    for j in range(nA): kload()
    stamp(1)
    a("s_mov_b32 s60, 0xcccccccc"); a("s_mov_b32 s61, 0xcccccccc"); a("s_mov_b32 s62, 0xaaaaaaaa"); a("s_mov_b32 s63, 0xaaaaaaaa")
    a(f"s_mov_b32 s90, {f32(128 ** -0.5)}"); a(f"s_mov_b32 s91, {f32(1.4426950408889634)}")
    C("selector masks v14..17: lane (g,m): m<8 and m>>1==r -> m&1 ? 0xffff0000 : 0xffff")
    a("v_and_b32 v60, 1, v75"); a("v_lshlrev_b32 v60, 4, v60"); a("v_mov_b32 v61, 0xffff"); a("v_lshlrev_b32 v60, v60, v61")
    a("v_lshrrev_b32 v61, 1, v75")
    for r in range(4):
        a(f"v_cmp_eq_u32 vcc, {r}, v61"); a(f"v_cndmask_b32 v{14+r}, 0, v60, vcc")
    C("---- LayerNorm of x[b]")
    vwait("x")
    for j in range(nB): kload()
    for k in range(4):
        a(f"v_lshlrev_b32 v{76+2*k}, 16, v{52+k}"); a(f"v_and_b32 v{77+2*k}, 0xffff0000, v{52+k}")
    a("v_add_f32 v84, v76, v77")
    for k in range(2, 8): a(f"v_add_f32 v84, v84, v{76+k}")
    allred("v_add_f32", "v84", "v85")
    a(f"v_mul_f32 v84, {f32(1/512)}, v84")
    for k in range(8): a(f"v_sub_f32 v{76+k}, v{76+k}, v84")
    a("v_mul_f32 v86, v76, v76")
    for k in range(1, 8): a(f"v_fmac_f32 v86, v{76+k}, v{76+k}")
    allred("v_add_f32", "v86", "v85")
    a(f"v_mul_f32 v86, {f32(1/512)}, v86")
    bf16r("v84"); bf16r("v86")
    a(f"v_add_f32 v86, {f32(1e-5)}, v86"); bf16r("v86")
    a("v_sqrt_f32 v86, v86"); bf16r("v86"); a("v_rcp_f32 v86, v86")
    vwait("xc1")
    for k in range(2):
        a(f"v_lshlrev_b32 v{56+k}, 16, v{56+k}"); a(f"v_sub_f32 v{56+k}, v{56+k}, v84"); bf16r(f"v{56+k}")
        a(f"v_mul_f32 v{56+k}, v{56+k}, v86"); a(f"v_cvt_pk_bf16_f32 v{66+k}, v{56+k}, v{56+k}")
    stamp(2)
    C("---- q = xn @ wq[:, head], 128 rows per wave")
    masks(0, "v66", 0)
    for t in range(32):
        vwait(f"wq{t}")
        mfma(28, mop(t), f"a[{4*t}:{4*t+3}]", t == 0)
        if wiss < 32: wqload()
        if int((t + 1) / kq) > int(t / kq) and kiss < NB: kload()
        if t < 31: masks(t + 1, "v66" if t + 1 < 16 else "v67", (t + 1) & 15)
    for j in range(nbar):
        if kiss < NB: kload()
    a("v_lshlrev_b32 v27, 5, v75"); a("v_lshl_add_u32 v26, v74, 4, v27"); a("s_lshl_b32 s58, s3, 9"); a("v_add_u32 v26, s58, v26")
    a("s_mov_b32 exec_hi, 0")
    a(f"ds_write_b128 v26, v[28:31] offset:{L_QP}")
    a("s_mov_b64 exec, -1")
    a("s_waitcnt lgkmcnt(0)"); a("s_barrier")
    for w in range(4):
        for hh in range(2): a(f"ds_read_b128 v[{76+8*w+4*hh}:{79+8*w+4*hh}], v27 offset:{L_QP+512*w+16*hh}")
    a("s_waitcnt lgkmcnt(0)")
    for k in range(8):
        a(f"v_add_f32 v{76+k}, v{76+k}, v{84+k}"); a(f"v_add_f32 v{92+k}, v{92+k}, v{100+k}")
    for k in range(8): a(f"v_add_f32 v{76+k}, v{76+k}, v{92+k}")
    for k in range(4): a(f"v_cvt_pk_bf16_f32 v{10+k}, v{76+2*k}, v{77+2*k}")
    a("v_mov_b32 v64, 0xff800000"); a("v_mov_b32 v65, 0")
    stamp(3)

    def kconsume(i):
        t = i & 15
        x = f"v{48 + (t & 1)}"
        base = RING + 4 * i
        a(f"v_dot2_f32_bf16 {x}, v{base}, v10, 0")
        for r in range(1, 4): a(f"v_dot2_f32_bf16 {x}, v{base+r}, v{10+r}, {x}")
        if t & 1:
            d = f"v{50 + ((t >> 1) & 1)}"
            a(f"v_add_f32_dpp {d}, v48, v48 row_ror:8 row_mask:0xf bank_mask:0x3")
            a(f"v_add_f32_dpp {d}, v49, v49 row_ror:8 row_mask:0xf bank_mask:0xc")
        if t & 3 == 3:
            d = f"v{52 + ((t >> 2) & 1)}"
            a(f"v_add_f32_dpp {d}, v50, v50 row_half_mirror row_mask:0xf bank_mask:0x5")
            a(f"v_add_f32_dpp {d}, v51, v51 row_half_mirror row_mask:0xf bank_mask:0xa")
        if t & 7 == 7:
            d = f"v{54 + ((t >> 3) & 1)}"
            a("v_add_f32_dpp v52, v52, v52 quad_perm:[2,3,0,1] row_mask:0xf bank_mask:0xf")
            a("v_add_f32_dpp v53, v53, v53 quad_perm:[2,3,0,1] row_mask:0xf bank_mask:0xf")
            a(f"v_cndmask_b32 {d}, v52, v53, s[60:61]")
        if t == 15:
            s = f"v{46 + (i >> 4)}"
            a("v_add_f32_dpp v54, v54, v54 quad_perm:[1,0,3,2] row_mask:0xf bank_mask:0xf")
            a("v_add_f32_dpp v55, v55, v55 quad_perm:[1,0,3,2] row_mask:0xf bank_mask:0xf")
            a(f"v_cndmask_b32 {s}, v54, v55, s[62:63]")
            bf16r(s); a(f"v_mul_f32 {s}, s90, {s}"); bf16r(s)
            a(f"v_max_f32 v64, v64, {s}")
    C("---- lap 0: the keys that arrived while q was formed")
    a(f"s_mov_b32 s55, {NB*4096}")
    left = NB + D - kiss
    early = list(early)
    while early and early[-1] >= NB - (left - len(early)): early.pop()
    sched = early + list(range(NB - (left - len(early)), NB))
    assert len(set(sched)) == left, (sched, left)
    for i in range(NB):
        vwait(f"k{i}")
        if i in sched:
            assert kiss - NB < i
            kload()
        kconsume(i)
    stamp(4)
    C("---- lap 1 also brings in this head's rows of wo")
    a("s_mov_b32 s54, s55"); a(f"s_add_u32 s55, s55, {NB*4096}")
    for k in range(2): a(f"v_mov_b32 v{44+k}, v{46+k}")
    kbase = NB
    for j in range((D1 or D) - D): kload()
    for i in range(NB):
        vwait(f"k{NB+i}")
        if kiss < 2 * NB + D: kload()
        a(f"s_mov_b32 s58, {i*4096}")
        a(f"buffer_load_dwordx4 a[{4*i}:{4*i+3}], v59, s[24:27], s58 offen {wpol}"); vm.append(f"wo{i}")
        kconsume(i)

    def decide(label, br):
        a("s_waitcnt lgkmcnt(0)")
        a("s_sub_u32 s58, s52, s48"); a("s_lshl_b32 s58, s58, 8"); a("s_sub_u32 s58, s58, s49"); a("s_add_u32 s49, s49, s57")
        a("s_sub_u32 s19, s19, 1"); a("s_cmp_ge_i32 s19, 0"); a("s_cselect_b32 s58, 1, s58")
        a("s_cmp_gt_i32 s58, 0")
        a(f"s_cbranch_{br} {label}")
    def segment(tag, mode, k, consume):
        DD = D + (hi if mode else 0); i0 = 16 * k
        if mode:
            a("s_cmp_eq_u32 s51, 1"); a(f"s_cbranch_scc1 {tag}_in")
            for j in range(D, DD): sload(i0 + j)
            a(f"{tag}_in:")
        for i in range(i0, i0 + 16):
            a(f"s_waitcnt vmcnt({DD - 1})")
            skip = (not mode) and i - i0 < hi
            if skip: a("s_cmp_eq_u32 s51, 1"); a(f"s_cbranch_scc1 {tag}_s{i}")
            sload(i + DD)
            if skip: a(f"{tag}_s{i}:")
            if i - i0 == hi: a(f"s_mov_b32 s51, {mode}")
            if i - i0 == 15: a("s_memrealtime s[52:53]")
            consume(i)
    def cal_events(base):
        lo, up = (2, 8) if base == 0 else (8, 16)
        if lo <= cal < up:
            a("s_waitcnt lgkmcnt(0)"); a(f"s_cmp_eq_u32 s56, {cal-base}"); a("s_cselect_b32 s88, s52, s88")
        if lo <= cal + 2 < up:
            a("s_lshl_b32 s58, s6, 4"); a("s_add_u32 s58, s58, s56")
            a(f"s_cmp_eq_u32 s58, {32+cal+2-base}"); a("s_cbranch_scc0 L_norep")
            a("s_waitcnt lgkmcnt(0)")
            a("s_sub_u32 s58, s52, s88"); a("s_min_u32 s58, s58, 0xffff"); a("s_max_u32 s58, s58, 1"); a("s_pack_ll_b32_b16 s58, s52, s58")
            a("v_mov_b32 v61, s58"); a("s_lshl_b32 s58, s89, 2"); a("v_mov_b32 v60, s58"); a("s_mov_b64 exec, 1")
            a("global_store_dword v60, v61, s[84:85] sc1")
            a("s_mov_b64 exec, -1")
            a("L_norep:")
        if lo <= cal + 3 < up:
            a(f"s_cmp_eq_u32 s56, {cal+3-base}"); a("s_cbranch_scc0 L_nold")
            a("v_lshlrev_b32 v60, 2, v1"); a("global_load_dword v72, v60, s[84:85] sc1")
            a("L_nold:")
        if lo <= cal + 4 < up:
            a(f"s_cmp_eq_u32 s56, {cal+4-base}"); a("s_cbranch_scc0 L_nocal")
            a("v_cmp_eq_u32 vcc, 0, v72"); a("s_cbranch_vccnz L_nocal")
            a("s_mov_b32 s50, 0")
            if ctl:
                a("s_waitcnt lgkmcnt(0)")
                a("s_mov_b32 s48, s52")
                a("v_lshrrev_b32 v60, 16, v72"); a("v_subrev_u32 v61, s52, v72"); a("v_bfe_i32 v61, v61, 0, 16")
                allred("v_add_u32", "v60", "v62"); allred("v_add_u32", "v61", "v62")
                a("v_readfirstlane_b32 s57, v60"); a("v_readfirstlane_b32 s49, v61")
                if eps > 0: a(f"s_lshr_b32 s58, s57, {eps}"); a("s_add_u32 s57, s57, s58")
                if eps < 0: a(f"s_lshr_b32 s58, s57, {-eps}"); a("s_sub_u32 s57, s57, s58")
                a("s_add_u32 s49, s49, s57"); a("s_lshl_b32 s49, s49, 2")
                a(f"s_mov_b32 s58, {slack*256}")
                a("s_cmp_eq_u32 s7, 1"); a(f"s_cselect_b32 s58, {(slack-head[0])*256}, s58")
                a("s_cmp_eq_u32 s7, 3"); a(f"s_cselect_b32 s58, {(slack-head[1])*256}, s58")
                a("s_add_u32 s49, s49, s58")
            a("L_nocal:")
    def laploop(name, head_code, consume):
        a(".p2align 3")
        a(f"{name}:")
        head_code()
        decide(f"{name}_h0", "scc1")
        segment(f"{name}_l0", 0, 0, consume)
        decide(f"{name}_h1", "scc1")
        a(f"{name}_l1:")
        segment(f"{name}_l1", 0, 1, consume)
        a("s_add_u32 s56, s56, 1"); a("s_cmp_lt_u32 s56, 8"); a(f"s_cbranch_scc1 {name}")
        a(f"s_branch {name}_end")
        a(f"{name}_h0:")
        segment(f"{name}_h0", 1, 0, consume)
        decide(f"{name}_l1", "scc0")
        a(f"{name}_h1:")
        segment(f"{name}_h1", 1, 1, consume)
        a("s_add_u32 s56, s56, 1"); a("s_cmp_lt_u32 s56, 8"); a(f"s_cbranch_scc1 {name}")
        a(f"{name}_end:")
    C("s48 time base, s49 deadline (1/256 ticks), s50 reports seen, s51 depth in use, s[52:53] clock, s57 pace, s19 fixed deep segments")
    a("s_mov_b32 s56, 2")
    a("s_memrealtime s[52:53]"); a("s_mov_b32 s51, 0"); a("s_mov_b32 s50, 99"); a("s_mov_b32 s57, 0")
    a("s_mov_b32 s48, s18"); a("s_mov_b32 s49, 0x7fffffff"); a("s_mov_b32 s88, 0")
    a("s_cmp_eq_u32 s7, 1"); a(f"s_cselect_b32 s19, {hiu[0]-4}, 0"); a("s_cmp_eq_u32 s7, 3"); a(f"s_cselect_b32 s19, {hiu[1]-4}, s19")
    def khead():
        lapstamp(16)
        a("s_mov_b32 s54, s55"); a(f"s_add_u32 s55, s55, {NB*4096}")
        a("s_cmp_eq_u32 s56, 7")
        a("s_cselect_b32 s12, s16, s12"); a("s_cselect_b32 s13, s17, s13"); a("s_cselect_b32 s55, 0, s55")
        for k in range(14): a(f"v_mov_b32 v{32+k}, v{34+k}")
        cal_events(0)
    laploop("L_k", khead, kconsume)
    stamp(5)
    C("---- maximum of this wave's scores, in log2 units, negated")
    allred("v_max_f32", "v64", "v48")
    a("v_mul_f32 v64, s91, v64"); a("v_sub_f32 v64, 0, v64")
    a("s_mov_b32 s8, s12"); a("s_mov_b32 s9, s13"); a("s_mov_b32 s56, 0")
    for r in range(4): a(f"v_mov_b32 v{28+r}, 0")
    def vhead():
        lapstamp(24)
        a("s_mov_b32 s54, s55"); a(f"s_add_u32 s55, s55, {NB*4096}")
        for k in range(2):
            a(f"v_fma_f32 v{56+k}, v{32+k}, s91, v64"); a(f"v_exp_f32 v{56+k}, v{56+k}")
            a(f"v_add_f32 v65, v65, v{56+k}"); a(f"v_cvt_pk_bf16_f32 v{66+k}, v{56+k}, v{56+k}")
        for k in range(14): a(f"v_mov_b32 v{32+k}, v{34+k}")
        masks(0, "v66", 0)
        cal_events(8)
        a("s_cmp_eq_u32 s56, 7"); a("s_cbranch_scc0 L_nolast")
        allred("v_add_f32", "v65", "v48")
        a("s_lshl_b32 s58, s3, 3"); a("v_mov_b32 v48, s58"); a("s_mov_b64 exec, 1")
        a(f"ds_write_b64 v48, v[64:65] offset:{L_ML}")
        a("s_mov_b64 exec, -1")
        a("s_cmp_lg_u32 s50, 99"); a("s_cbranch_scc1 L_nolast")
        a(f"s_mov_b32 s88, {SPIN}"); a("v_lshlrev_b32 v60, 2, v1")
        a("L_cnt:")
        a("global_load_dword v72, v60, s[84:85] sc1"); a("s_waitcnt vmcnt(0)")
        a("v_cmp_eq_u32 vcc, 0, v72"); a("s_cbranch_vccz L_nolast")
        a("s_sleep 8"); a("s_sub_u32 s88, s88, 1"); a("s_cbranch_scc0 L_cnt")
        a("L_nolast:")
    def vconsume(i):
        mfma(28, mop(i), ring(i), False)
        if i < NB - 1: masks(i + 1, f"v{66 + ((i + 1) >> 4)}", bitrev((i + 1) & 15))
    laploop("L_v", vhead, vconsume)
    stamp(6)
    C("---- combine the four waves, project through wo, publish the partial row")
    a("v_lshlrev_b32 v27, 4, v75"); a("v_lshl_add_u32 v27, v74, 2, v27")
    a("v_mov_b32 v48, 0")
    a("s_mov_b32 exec_hi, 0")
    a(f"ds_write_b128 v26, v[28:31] offset:{L_OP}")
    a("s_mov_b64 exec, -1")
    a("s_waitcnt lgkmcnt(0)"); a("s_barrier")
    a(f"ds_read_b128 v[76:79], v48 offset:{L_ML}"); a(f"ds_read_b128 v[80:83], v48 offset:{L_ML+16}")
    for w in range(4): a(f"ds_read2st64_b32 v[{84+2*w}:{85+2*w}], v27 offset0:{L_OP//256+2*w} offset1:{L_OP//256+2*w+1}")
    a("s_waitcnt lgkmcnt(4)")
    a("v_min_f32 v48, v76, v78"); a("v_min3_f32 v48, v48, v80, v82")
    for w in range(4): a(f"v_sub_f32 v{76+2*w}, v48, v{76+2*w}")
    for w in range(4): a(f"v_exp_f32 v{76+2*w}, v{76+2*w}")
    a("v_mul_f32 v49, v76, v77")
    for w in range(1, 4): a(f"v_fmac_f32 v49, v{76+2*w}, v{77+2*w}")
    a("v_rcp_f32 v49, v49")
    a("s_waitcnt lgkmcnt(0)")
    for k in range(2):
        a(f"v_mul_f32 v{56+k}, v76, v{84+k}")
        for w in range(1, 4): a(f"v_fmac_f32 v{56+k}, v{76+2*w}, v{84+2*w+k}")
    for k in range(2):
        a(f"v_mul_f32 v{56+k}, v{56+k}, v49"); a(f"v_cvt_pk_bf16_f32 v{66+k}, v{56+k}, v{56+k}")
    masks(0, "v66", 0)
    for t in range(32):
        if t < 31: masks(t + 1, "v66" if t + 1 < 16 else "v67", (t + 1) & 15)
        mfma(28, mop(t), f"a[{4*t}:{4*t+3}]", t == 0)
    a("s_mov_b32 exec_hi, 0")
    for r in range(4): a(f"v_min_u32 v{28+r}, -2, v{28+r}")
    a("buffer_store_dwordx4 v[28:31], v68, s[32:35], 0 offen sc1")
    a("s_mov_b64 exec, -1")
    stamp(7)
    a("s_cmp_eq_u32 s6, 2"); a("s_cbranch_scc1 L_s2")
    a("s_and_b32 s58, s7, 1"); a("s_cbranch_scc0 L_fin")
    C("---- this workgroup's FFN weights -> LDS: A via s[40:43], B via s[44:47]; s96/s97 source, s98/s99 LDS, s100/s101 steps")
    a("s_cmp_eq_u32 s7, 1"); a("s_cbranch_scc0 L_dmaD")
    a("v_lshrrev_b32 v62, 2, v1"); a("s_movk_i32 s58, 3584"); a("v_mul_u32_u24 v62, s58, v62")
    a("v_and_b32 v63, 3, v1"); a("v_lshl_add_u32 v62, v63, 4, v62")
    a("s_lshl_b32 s58, s89, 6"); a("v_add_u32 v62, s58, v62")
    a(f"s_mul_i32 s96, s3, {128*3584}"); a("s_mov_b32 s97, s96")
    a("s_lshl_b32 s98, s3, 13"); a(f"s_add_u32 s98, s98, {L_W}"); a("s_add_u32 s99, s98, 32768")
    a(f"s_mov_b32 s100, {16*3584}"); a("s_mov_b32 s101, 1024"); a("s_mov_b32 s93, 8")
    a("s_branch L_dma")
    a("L_dmaD:")
    a("v_lshrrev_b32 v62, 1, v1"); a("v_lshlrev_b32 v62, 10, v62"); a("v_and_b32 v63, 1, v1"); a("v_lshl_add_u32 v62, v63, 4, v62")
    a("s_lshl_b32 s58, s89, 5"); a("v_add_u32 v62, s58, v62")
    for d in (40, 44):
        a(f"s_mov_b32 s{d}, s80"); a(f"s_mov_b32 s{d+1}, s81"); a(f"s_mov_b32 s{d+2}, {1792*1024}")
    a(f"s_mul_i32 s96, s3, {448*1024}"); a("s_add_u32 s97, s96, 32768")
    a(f"s_mul_i32 s98, s3, {448*32}"); a(f"s_add_u32 s98, s98, {L_W}"); a("s_add_u32 s99, s98, 1024")
    a("s_mov_b32 s100, 65536"); a("s_mov_b32 s101, 2048"); a("s_mov_b32 s93, 7")
    a("L_dma:")
    a("s_mov_b32 m0, s98"); a("s_sub_u32 s93, s93, 1")
    a(f"buffer_load_dwordx4 v62, s[40:43], s96 offen {fpol} lds")
    a("s_mov_b32 m0, s99"); a("s_add_u32 s96, s96, s100")
    a(f"buffer_load_dwordx4 v62, s[44:47], s97 offen {fpol} lds")
    a("s_add_u32 s97, s97, s100"); a("s_add_u32 s98, s98, s101"); a("s_add_u32 s99, s99, s101")
    a("s_cmp_lg_u32 s93, 0"); a("s_cbranch_scc1 L_dma")
    C("exchange addresses v63 = g*128 + b*16, v26 = w*512 + v63 ; v60 = 16g + r', v61 = c' for the transposing reads")
    a("v_and_b32 v27, 7, v75"); a("v_lshlrev_b32 v63, 4, v27"); a("v_lshl_add_u32 v63, v74, 7, v63")
    a("s_lshl_b32 s58, s3, 9"); a("v_add_u32 v26, s58, v63")
    a("v_lshrrev_b32 v60, 2, v75"); a("v_lshl_add_u32 v60, v74, 4, v60"); a("v_and_b32 v61, 3, v1")
    a("s_cmp_eq_u32 s7, 3"); a("s_cbranch_scc1 L_s4")

    C("---- gate / up: four tiles of 8+8 columns, 128 rows of h per wave; LayerNorm is applied to the sums")
    a("v_lshlrev_b32 v60, 6, v60"); a("v_lshrrev_b32 v49, 1, v61"); a("v_lshl_add_u32 v60, v49, 15, v60")
    a("v_and_b32 v49, 1, v61"); a("v_lshl_add_u32 v60, v49, 3, v60")
    a("s_lshl_b32 s58, s3, 13"); a(f"s_add_u32 s58, s58, {L_W}"); a("v_add_u32 v60, s58, v60")
    for r in range(4): a(f"v_mov_b32 v{112+r}, 0x3f803f80")
    C("h fragment address v62 = (g>>1)*512 + (b>>1)*128 + (b&1)*64 + (g&1)*32 + half*16")
    a("v_lshrrev_b32 v62, 1, v74"); a("v_lshlrev_b32 v62, 9, v62"); a("v_bfe_u32 v49, v75, 1, 2"); a("v_lshl_add_u32 v62, v49, 7, v62")
    a("v_and_b32 v49, 1, v75"); a("v_lshl_add_u32 v62, v49, 6, v62"); a("v_and_b32 v49, 1, v74"); a("v_lshl_add_u32 v62, v49, 5, v62")
    a("v_lshrrev_b32 v49, 3, v75"); a("v_lshl_add_u32 v62, v49, 4, v62")
    a(f"s_mov_b32 s58, {L_DUMP-L_T2}"); a("v_mad_u32_u24 v26, v49, s58, v26")
    a("s_lshl_b32 s58, s3, 11"); a("v_add_u32 v63, s58, v63")
    a("v_lshrrev_b32 v49, 1, v74"); a("v_lshlrev_b32 v49, 2, v49"); a("v_lshlrev_b32 v61, 5, v27"); a("v_add_u32 v49, v49, v61")
    a("s_lshl_b32 s58, s3, 3"); a("v_add_u32 v49, s58, v49")
    a("s_lshl_b32 s59, s3, 11"); a(f"s_add_u32 s59, s59, {WS_H}")
    a("s_waitcnt vmcnt(0)")
    stamp(13)
    for t in range(4):
        for u in range(2):
            for hf in range(2):
                for sec in range(2): trread(128 + 16*t + 8*u + 4*hf + 2*sec, "v60", (64*u + 8*hf + 4*sec) * 64 + 16*t)
        if t: a("s_waitcnt lgkmcnt(6)")
    a("s_waitcnt lgkmcnt(0)")
    for k in range(4):
        for t in range(4): mfma(224 + 4*t, f"v[{128+16*t+4*k}:{131+16*t+4*k}]", "v[112:115]", k == 0)
    for t in range(4): a(f"ds_write_b128 v26, v[{224+4*t}:{227+4*t}] offset:{L_CS+2048*t}")
    def ldH(b): return [f"buffer_load_dwordx4 v[{b+4*u}:{b+3+4*u}], v62, s[32:35], s59 offen offset:{u*1024} sc1" for u in range(2)]
    def useH(b):
        n = 0
        for u in range(2):
            for t in range(4):
                for hf in range(2):
                    mfma(192 + 8*t + 4*hf, f"v[{128+16*t+8*u+4*hf}:{131+16*t+8*u+4*hf}]", f"v[{b+4*u}:{b+3+4*u}]", u == 0)
                    if n < 8:
                        a(f"v_dot2_f32_bf16 v52, v{b+n}, v112, {'0' if n == 0 else 'v52'}")
                        a(f"v_dot2_f32_bf16 v53, v{b+n}, v{b+n}, {'0' if n == 0 else 'v53'}")
                    if n == 9:
                        for r in range(2): a(f"v_add_f32_dpp v{52+r}, v{52+r}, v{52+r} row_ror:8 row_mask:0xf bank_mask:0xf")
                    if n == 11: a("v_permlane32_swap_b32 v52, v53"); a("v_add_f32 v52, v52, v53"); a("v_mov_b32 v53, v52")
                    if n == 13: a("v_permlane16_swap_b32 v52, v53"); a("v_add_f32 v52, v52, v53"); a(f"ds_write_b32 v49, v52 offset:{L_ST}")
                    n += 1
    poll2("L_pH", ldH, 8, (76, 84), useH)
    stamp(10)
    for t in range(4):
        for r in range(4): a(f"v_add_f32_dpp v{192+8*t+r}, v{196+8*t+r}, v{192+8*t+r} row_ror:8 row_mask:0xf bank_mask:0xf")
        a(f"ds_write_b128 v26, v[{192+8*t}:{195+8*t}] offset:{L_T2+2048*t}")
    a("s_waitcnt lgkmcnt(0)"); a("s_barrier")
    for k in range(2): a(f"ds_read_b128 v[{92+4*k}:{95+4*k}], v61 offset:{L_ST+16*k}")
    for w in range(4): a(f"ds_read_b128 v[{224+4*w}:{227+4*w}], v63 offset:{L_CS+512*w}")
    for w in range(4): a(f"ds_read_b128 v[{116+4*w}:{119+4*w}], v63 offset:{L_T2+512*w}")
    a("s_waitcnt lgkmcnt(8)")
    for k in range(2): a(f"v_add_f32 v{92+k}, v{92+k}, v{94+k}"); a(f"v_add_f32 v{96+k}, v{96+k}, v{98+k}")
    a("v_add_f32 v52, v92, v96"); a("v_add_f32 v53, v93, v97")
    a(f"v_mul_f32 v52, {f32(1/512)}, v52"); a(f"v_mul_f32 v53, {f32(1/512)}, v53")
    a("v_fma_f32 v53, -v52, v52, v53"); a("v_max_f32 v53, 0, v53")
    bf16r("v53"); bf16r("v52")
    a(f"v_add_f32 v53, {f32(1e-5)}, v53"); bf16r("v53")
    a("v_sqrt_f32 v53, v53")
    a("s_waitcnt lgkmcnt(4)")
    for r in range(4): a(f"v_add_f32 v{224+r}, v{224+r}, v{228+r}"); a(f"v_add_f32 v{232+r}, v{232+r}, v{236+r}")
    bf16r("v53"); a("v_rcp_f32 v53, v53")
    for r in range(4): a(f"v_add_f32 v{108+r}, v{224+r}, v{232+r}")
    a("s_waitcnt lgkmcnt(0)")
    for r in range(4): a(f"v_add_f32 v{116+r}, v{116+r}, v{120+r}"); a(f"v_add_f32 v{124+r}, v{124+r}, v{128+r}")
    for r in range(4): a(f"v_add_f32 v{116+r}, v{116+r}, v{124+r}")
    for r in range(4): a(f"v_fma_f32 v{116+r}, -v52, v{108+r}, v{116+r}")
    for r in range(4): a(f"v_mul_f32 v{116+r}, v{116+r}, v53")
    for r in range(2): a(f"v_cvt_pk_bf16_f32 v{120+r}, v{116+2*r}, v{117+2*r}")
    for r in range(2): a(f"v_permlane32_swap_b32 v{120+r}, v{122+r}")
    for r in range(2):
        a(f"v_lshlrev_b32 v{116+2*r}, 16, v{120+r}"); a(f"v_and_b32 v{117+2*r}, 0xffff0000, v{120+r}")
        a(f"v_lshlrev_b32 v{124+2*r}, 16, v{122+r}"); a(f"v_and_b32 v{125+2*r}, 0xffff0000, v{122+r}")
    for r in range(4): a(f"v_max_f32 v{116+r}, 0, v{116+r}")
    for r in range(4): a(f"v_mul_f32 v{116+r}, v{116+r}, v{124+r}")
    for r in range(2): a(f"v_cvt_pk_bf16_f32 v{120+r}, v{116+2*r}, v{117+2*r}")
    a("s_mov_b64 exec, 0x00ff00ff")
    for r in range(2): a(f"v_min_u32 v{120+r}, -2, v{120+r}")
    a("buffer_store_dwordx2 v[120:121], v70, s[32:35], 0 offen sc1")
    stamp(11)
    a("s_branch L_fin")

    C("---- reducer: sum the 32 heads' partials of 2 rows x 32 columns, add x, publish h")
    a("L_s2:")
    a("v_lshlrev_b32 v62, 4, v1")
    a("s_lshl_b32 s59, s89, 13"); a("s_add_u32 s92, s59, 4096")
    a("v_lshlrev_b32 v50, 16, v71"); a("v_and_b32 v51, 0xffff0000, v71")
    def ld8(b): return [f"buffer_load_dwordx4 v[{b+4*u}:{b+3+4*u}], v62, s[32:35], {'s59' if u < 4 else 's92'} offen offset:{(u&3)*1024} sc1" for u in range(8)]
    def useP(b):
        for r in range(16): a(f"v_add_f32 v{108+r}, v{b+r}, v{b+16+r}")
    poll2("L_pP", ld8, 32, (76, 128), useP)
    stamp(8)
    for st in (8, 4):
        for r in range(st): a(f"v_add_f32 v{108+r}, v{108+r}, v{108+st+r}")
    a("v_permlane32_swap_b32 v108, v110"); a("v_permlane32_swap_b32 v109, v111")
    a("v_add_f32 v108, v108, v110"); a("v_add_f32 v109, v109, v111")
    a("v_mov_b32 v110, v108"); a("v_mov_b32 v111, v109")
    a("v_permlane16_swap_b32 v108, v110"); a("v_permlane16_swap_b32 v109, v111")
    a("v_add_f32 v108, v108, v110"); a("v_add_f32 v109, v109, v111")
    a("v_cvt_pk_bf16_f32 v108, v108, v109")
    a("v_and_b32 v109, 0xffff0000, v108"); a("v_lshlrev_b32 v108, 16, v108")
    a("v_add_f32 v108, v108, v50"); a("v_add_f32 v109, v109, v51")
    a("v_cvt_pk_bf16_f32 v108, v108, v109")
    a("s_mov_b32 exec_lo, 0xffff"); a("s_mov_b32 exec_hi, 0xffff")
    a("v_min_u32 v108, -2, v108")
    a("buffer_store_dword v108, v69, s[32:35], 0 offen sc1")
    stamp(9)
    a("s_branch L_fin")

    C("---- 16 output columns, 448 rows of W_down per wave")
    a("L_s4:")
    a("v_lshlrev_b32 v60, 5, v60"); a("v_lshl_add_u32 v60, v61, 3, v60")
    a(f"s_mul_i32 s58, s3, {448*32}"); a(f"s_add_u32 s58, s58, {L_W}"); a("v_add_u32 v60, s58, v60")
    C("h address v49 = H + ((s'>>1)*4 + (b>>1))*128 + (b&1)*64 + (s'&1)*32 + g*8 ; out address v50 = b*1024 + s'*32 + g*8")
    a("v_lshrrev_b32 v49, 1, v27"); a("v_lshlrev_b32 v49, 7, v49"); a("v_and_b32 v50, 1, v27"); a("v_lshl_add_u32 v49, v50, 6, v49")
    a("v_lshl_add_u32 v49, v74, 3, v49")
    a("s_lshr_b32 s58, s89, 1"); a("s_lshl_b32 s58, s58, 9"); a("s_and_b32 s92, s89, 1"); a("s_lshl_b32 s92, s92, 5"); a("s_add_u32 s58, s58, s92")
    a(f"s_add_u32 s58, s58, {WS_H}"); a("v_add_u32 v49, s58, v49")
    a("v_lshlrev_b32 v50, 10, v27"); a("v_lshl_add_u32 v50, v74, 3, v50"); a("s_lshl_b32 s58, s89, 5"); a("v_add_u32 v50, s58, v50")
    a(f"s_mul_i32 s59, s3, {7*1024}"); a(f"s_add_u32 s59, s59, {WS_G}"); a("s_add_u32 s92, s59, 4096")
    a("v_lshlrev_b32 v62, 4, v1")
    a("s_waitcnt vmcnt(0)")
    stamp(13)
    for u in range(7):
        for hf in range(2):
            for sec in range(2): trread(128 + 8*u + 4*hf + 2*sec, "v60", (64*u + 8*hf + 4*sec) * 32)
        if u in (2, 5): a("s_waitcnt lgkmcnt(4)")
    a("s_waitcnt lgkmcnt(0)")
    def ldG(b): return ld8(b)[:7] + [f"buffer_load_dwordx2 v[{b+28}:{b+29}], v49, s[32:35], 0 offen sc1"]
    def useG(b):
        for u in range(7):
            for hf in range(2): mfma(108 + 4*hf, f"v[{128+8*u+4*hf}:{131+8*u+4*hf}]", f"v[{b+4*u}:{b+3+4*u}]", u == 0)
        for r in range(2):
            a(f"v_lshlrev_b32 v{116+2*r}, 16, v{b+28+r}"); a(f"v_and_b32 v{117+2*r}, 0xffff0000, v{b+28+r}")
    poll2("L_pG", ldG, 30, (76, 192), useG)
    stamp(10)
    for r in range(4): a(f"v_add_f32_dpp v{108+r}, v{112+r}, v{108+r} row_ror:8 row_mask:0xf bank_mask:0xf")
    a("s_mov_b32 exec_lo, 0x00ff00ff"); a("s_mov_b32 exec_hi, 0x00ff00ff")
    a(f"ds_write_b128 v26, v[108:111] offset:{L_TX}")
    a("s_waitcnt lgkmcnt(0)"); a("s_barrier")
    a("s_cmp_eq_u32 s3, 3"); a("s_cbranch_scc0 L_fin")
    for w in range(4): a(f"ds_read_b128 v[{128+4*w}:{131+4*w}], v63 offset:{L_TX+512*w}")
    a("s_waitcnt lgkmcnt(0)")
    for r in range(4):
        a(f"v_add_f32 v{128+r}, v{128+r}, v{132+r}"); a(f"v_add_f32 v{136+r}, v{136+r}, v{140+r}")
    for r in range(4): a(f"v_add_f32 v{128+r}, v{128+r}, v{136+r}")
    for r in range(2): a(f"v_cvt_pk_bf16_f32 v{132+r}, v{128+2*r}, v{129+2*r}")
    for r in range(2):
        a(f"v_lshlrev_b32 v{128+2*r}, 16, v{132+r}"); a(f"v_and_b32 v{129+2*r}, 0xffff0000, v{132+r}")
    for r in range(4): a(f"v_add_f32 v{128+r}, v{128+r}, v{116+r}")
    for r in range(2): a(f"v_cvt_pk_bf16_f32 v{132+r}, v{128+2*r}, v{129+2*r}")
    a("buffer_store_dwordx2 v[132:133], v50, s[36:39], 0 offen")
    stamp(11)
    a("L_fin:")
    if probe is not None:
        a(f"s_cmp_eq_u32 s2, {pwg}"); a("s_cbranch_scc0 L_end"); a("s_cmp_eq_u32 s3, 3"); a("s_cbranch_scc0 L_end")
        if probe == 0: a("s_mov_b32 s101, 0")
        a("s_add_u32 s101, s101, 10000")
        a("L_probe:")
        a("s_sleep 4"); a("s_memrealtime s[94:95]"); a("s_waitcnt lgkmcnt(0)"); a("s_sub_u32 s94, s94, s18")
        a("s_cmp_lt_u32 s94, s101"); a("s_cbranch_scc1 L_probe")
    if stamps:
        a("s_mov_b64 exec, -1")
        stamp(12)
        a("s_getreg_b32 s92, hwreg(HW_REG_XCC_ID)"); a("v_writelane_b32 v73, s92, 15")
        a("s_lshl_b32 s58, s2, 2"); a("s_add_u32 s58, s58, s3"); a("s_lshl_b32 s58, s58, 7"); a(f"s_add_u32 s58, s58, {WS_ST}")
        a("v_lshlrev_b32 v48, 2, v1"); a("s_mov_b32 exec_hi, 0")
        a("buffer_store_dword v73, v48, s[32:35], s58 offen")
        if "dbgout" in xp:
            a("s_cmp_eq_u32 s2, 229"); a("s_cbranch_scc0 L_end"); a("s_cmp_eq_u32 s3, 3"); a("s_cbranch_scc0 L_end")
            a("v_subrev_u32 v73, s18, v73"); a("s_mov_b64 exec, 0xffff")
            a("global_store_dword v48, v73, s[84:85] sc1")
    a("L_end:")
    a("s_endpgm")
    body = a.finish()
    head_ = HEADER + f"; @launch grid=(256,1,1) block=(256,1,1) lds={L_SIZE}\n" + '.amdgcn_target "amdgcn-amd-amdhsa--gfx950"\n.text\n' + \
        f".globl {NAME}\n.p2align 8\n.type {NAME},@function\n"
    tail = f""".section .rodata,"a"
.p2align 6
.amdhsa_kernel {NAME}
  .amdhsa_next_free_vgpr 384
  .amdhsa_next_free_sgpr 102
  .amdhsa_accum_offset 256
  .amdhsa_group_segment_fixed_size 0
  .amdhsa_kernarg_size 96
  .amdhsa_user_sgpr_count 2
  .amdhsa_user_sgpr_kernarg_segment_ptr 1
  .amdhsa_system_sgpr_workgroup_id_x 1
.end_amdhsa_kernel
"""
    return head_ + body + tail

if __name__ == "__main__":
    kw = eval("dict(%s)" % (sys.argv[2] if len(sys.argv) > 2 else ""))
    open(sys.argv[1], "w").write(gen(**kw))
```

```python
import sys, struct
sys.path.insert(0, __file__.rsplit('/', 1)[0])
from asmlib import Asm

NAME = "sequential_preLN__mha_block_cached__glu_gated_reglu__decode_kernel"
HEADER = open(__file__.rsplit('/', 1)[0] + '/header.txt').read()

def f32(x): return "0x%08x" % struct.unpack('<I', struct.pack('<f', x))[0]

WS_P, WS_H, WS_G, WS_ST, WS_SIZE = 0, 0x80000, 0x82000, 0x100000, 0x140000
L_QP, L_OP, L_ML, L_ST, L_TX, L_T2, L_CS, L_W, L_DUMP, L_SIZE = 0, 2048, 4096, 4160, 4608, 8192, 16384, 24576, 90112, 106496
RING = 128
NB = 32
SPIN = 200000

def gen(D=5, hi=1, pol="nt", wpol="", fpol="", early=(2, 7, 12, 17), n1=5, kq=2, nbar=2, nA=3, nB=3, D1=None,
        stag=4, ctl=1, slack=130, eps=0, head=(300, 350), hiu=(4, 4), cal=3, stamps=0, xp=(), probe=None, pwg=130, vpol=None):
    a = Asm()
    vm = []
    def C(t): a("; " + t)
    def vwait(tag):
        n = len(vm) - 1 - vm.index(tag)
        a(f"s_waitcnt vmcnt({min(n, 63)})")
    def stamp(k):
        if probe == k:
            a("s_memrealtime s[94:95]"); a("s_waitcnt lgkmcnt(0)"); a("s_sub_u32 s47, s94, s18") if False else a("s_sub_u32 s101, s94, s18")
        if stamps == 2 and k not in (6, 12): return
        if stamps == 3 and k not in (3, 4, 6, 12): return
        if stamps:
            a("s_memrealtime s[94:95]"); a("s_waitcnt lgkmcnt(0)"); a(f"v_writelane_b32 v73, s94, {k}")
    def lapstamp(off):
        if stamps == 3:
            a("s_memrealtime s[94:95]"); a(f"s_add_u32 m0, s56, {off}"); a("s_waitcnt lgkmcnt(0)"); a("v_writelane_b32 v73, s94, m0")
    def allred(op, v, t):
        for n in (8, 4, 2, 1): a(f"{op}_dpp {v}, {v}, {v} row_ror:{n} row_mask:0xf bank_mask:0xf")
        for sw in ("v_permlane16_swap_b32", "v_permlane32_swap_b32"):
            a(f"v_mov_b32 {t}, {v}"); a(f"{sw} {v}, {t}"); a(f"{op} {v}, {v}, {t}")
    def bf16r(v):
        a(f"v_cvt_pk_bf16_f32 {v}, {v}, {v}"); a(f"v_and_b32 {v}, 0xffff0000, {v}")
    def srd(d, lo, hi_, size, add=None):
        if add is None:
            a(f"s_mov_b32 s{d}, s{lo}"); a(f"s_mov_b32 s{d+1}, s{hi_}")
        else:
            a(f"s_add_u32 s{d}, s{lo}, {add}"); a(f"s_addc_u32 s{d+1}, s{hi_}, 0")
        a(f"s_mov_b32 s{d+2}, {size}"); a(f"s_mov_b32 s{d+3}, 0x20000")
    cur = [pol]
    def ring(j): j %= NB; return f"v[{RING+4*j}:{RING+4*j+3}]"
    def sload(j):
        s, b = ("s[12:15]", "s55") if j >= NB else ("s[8:11]", "s54")
        j %= NB
        a(f"buffer_load_dwordx4 {ring(j)}, v{2+(j>>2)}, {s}, {b} offen offset:{(j&3)*1024} {cur[0]}")
    def masks(t, src, lane):
        for r in range(4):
            a(f"v_and_b32_dpp v{18+4*(t&1)+r}, {src}, v{14+r} row_newbcast:{lane} row_mask:0xf bank_mask:0xf")
    def mop(t): return f"v[{18+4*(t&1)}:{21+4*(t&1)}]"
    def mfma(d, x, y, first): a(f"v_mfma_f32_16x16x32_bf16 v[{d}:{d+3}], {x}, {y}, {'0' if first else 'v[%d:%d]' % (d, d+3)}")
    def bitrev(t): return ((t & 1) << 3) | ((t & 2) << 1) | ((t & 4) >> 1) | ((t & 8) >> 3)
    def check(regs, ok):
        r = list(regs)
        a(f"v_max3_u32 v48, v{r[0]}, v{r[1]}, v{r[2]}"); r = r[3:]
        while len(r) >= 2:
            a(f"v_max3_u32 v48, v48, v{r[0]}, v{r[1]}"); r = r[2:]
        if r: a(f"v_max_u32 v48, v48, v{r[0]}")
        a("v_cmp_eq_u32 vcc, -1, v48")
        a(f"s_cbranch_vccz {ok}")
    def poll2(label, loads, nreg, bases, use):
        n = len(loads(bases[0]))
        a(f"s_mov_b32 s88, {SPIN}")
        for l in loads(bases[0]): a(l)
        if stag: a(f"s_sleep {stag}")
        a(f"{label}:")
        for l in loads(bases[1]): a(l)
        a(f"s_waitcnt vmcnt({n})")
        check(range(bases[0], bases[0] + nreg), f"{label}_A")
        for l in loads(bases[0]): a(l)
        a(f"s_waitcnt vmcnt({n})")
        check(range(bases[1], bases[1] + nreg), f"{label}_B")
        a("s_sub_u32 s88, s88, 1")
        a(f"s_cbranch_scc0 {label}")
        a(f"{label}_B:")
        use(bases[1])
        a(f"s_branch {label}_done")
        a(f"{label}_A:")
        use(bases[0])
        a(f"{label}_done:")
    def trread(dst, addr, off): a(f"ds_read_b64_tr_b16 v[{dst}:{dst+1}], {addr} offset:{off}")

    a(f"{NAME}:")
    a("s_cmp_ge_u32 s2, 256"); a("s_cbranch_scc1 L_end")
    a("s_memrealtime s[18:19]")
    a("s_load_dwordx16 s[64:79], s[0:1], 0")
    a("s_load_dwordx8 s[80:87], s[0:1], 64")
    C("s3 wave, s4 batch row, s5 head; v1 lane, v74 lane>>4 (g), v75 lane&15 (i)")
    a("v_lshrrev_b32 v1, 6, v0")
    a("v_readfirstlane_b32 s3, v1")
    a("v_and_b32 v1, 63, v0")
    a("s_lshr_b32 s4, s2, 5"); a("s_and_b32 s5, s2, 31")
    a("v_lshrrev_b32 v74, 4, v1"); a("v_and_b32 v75, 15, v1")
    a("v_lshlrev_b32 v48, 4, v1")
    a("s_lshl_b32 s58, s3, 12"); a("v_add_u32 v2, s58, v48")
    for k in range(1, 8): a(f"v_add_u32 v{2+k}, {k*16384}, v2")
    a("s_lshl_b32 s58, s3, 8"); a("v_lshlrev_b32 v49, 3, v75"); a("v_lshl_add_u32 v49, v74, 1, v49"); a("v_add_u32 v49, s58, v49")
    a("v_lshrrev_b32 v51, 1, v74")
    C("wq lane offset v58 = (128w+g)*8192 + i*16 ; wo lane offset v59 = g*1024 + w*256 + i*16")
    a("s_lshl_b32 s58, s3, 20"); a("v_lshlrev_b32 v58, 13, v74"); a("v_lshl_add_u32 v58, v75, 4, v58"); a("v_add_u32 v58, s58, v58")
    a("s_lshl_b32 s58, s3, 8"); a("v_lshlrev_b32 v59, 10, v74"); a("v_lshl_add_u32 v59, v75, 4, v59"); a("v_add_u32 v59, s58, v59")
    a("s_lshl_b32 s57, s4, 10"); a("s_lshl_b32 s58, s5, 8"); a("s_lshl_b32 s59, s2, 20")
    a("s_sub_u32 s92, 0x400000, s58")
    a("s_mov_b32 s54, 0")
    a("s_waitcnt lgkmcnt(0)")
    if stamps: a("v_mov_b32 v73, 0"); a("v_writelane_b32 v73, s18, 0")
    kiss = 0
    def kload():
        nonlocal kiss
        sload(kiss - kbase); vm.append(f"k{kiss}"); kiss += 1
    kbase = 0
    srd(8, 66, 67, 0x100000, "s59")
    kload()
    srd(28, 64, 65, 8192)
    a("buffer_load_dwordx4 v[52:55], v48, s[28:31], s57 offen"); vm.append("x")
    a("buffer_load_ushort v56, v49, s[28:31], s57 offen"); vm.append("xc0")
    a("buffer_load_ushort v57, v49, s[28:31], s57 offen offset:128"); vm.append("xc1")
    srd(20, 70, 71, "s92", "s58")
    wiss = 0
    def wqload():
        nonlocal wiss
        a(f"s_mov_b32 s58, {wiss*32768}")
        a(f"buffer_load_dwordx4 a[{4*wiss}:{4*wiss+3}], v58, s[20:23], s58 offen {wpol}"); vm.append(f"wq{wiss}"); wiss += 1
    for j in range(n1):
        if j: kload()
        wqload(); wqload()
    a("s_add_u32 s16, s68, s59"); a("s_addc_u32 s17, s69, 0")
    a("s_mov_b32 s12, s8"); a("s_mov_b32 s13, s9"); a("s_mov_b32 s14, 0x100000"); a("s_mov_b32 s15, 0x20000")
    a("s_lshl_b32 s58, s5, 17"); srd(24, 72, 73, 0x20000, "s58")
    srd(32, 86, 87, WS_SIZE); srd(36, 82, 83, 8192)
    srd(40, 76, 77, 512*3584); srd(44, 78, 79, 512*3584)
    C("role s7 / index s89: 1 gate+up tiles (wg<56), 2 reducer (64<=wg<128), 3 output slice (wg>=224), 0 none")
    a("s_and_b32 s58, s2, 7"); a("s_lshr_b32 s92, s2, 3")
    a("s_mul_i32 s89, s58, 7"); a("s_add_u32 s89, s89, s92")
    a("s_cmp_lt_u32 s2, 56"); a("s_cselect_b32 s7, 1, 0")
    a("s_lshl_b32 s58, s58, 2"); a("s_add_u32 s58, s58, s92"); a("s_sub_u32 s58, s58, 28")
    a("s_cmp_ge_u32 s2, 224"); a("s_cselect_b32 s89, s58, s89"); a("s_cselect_b32 s7, 3, s7")
    a("s_sub_u32 s58, s2, 64"); a("s_cmp_lt_u32 s58, 64"); a("s_cselect_b32 s89, s58, s89"); a("s_cselect_b32 s7, 2, s7")
    a("s_lshl_b32 s6, s3, 2"); a("s_add_u32 s6, s6, s7")
    C("P store offset v68 = ((4w + (i>>2))*4 + (b>>1))*8192 + (2h + (b&1))*128 + (i&3)*32 + g*16")
    a("v_lshrrev_b32 v68, 2, v75"); a("v_lshlrev_b32 v68, 15, v68"); a("v_lshl_add_u32 v68, v74, 4, v68")
    a("v_and_b32 v60, 3, v75"); a("v_lshl_add_u32 v68, v60, 5, v68")
    a("s_lshl_b32 s58, s3, 17"); a("s_lshr_b32 s92, s4, 1"); a("s_lshl_b32 s92, s92, 13"); a("s_add_u32 s58, s58, s92")
    a("s_lshl_b32 s92, s5, 8"); a("s_add_u32 s58, s58, s92")
    a("s_and_b32 s92, s4, 1"); a("s_lshl_b32 s92, s92, 7"); a("s_add_u32 s58, s58, s92"); a("v_add_u32 v68, s58, v68")
    C("H store offset v69 = H + rho*128 + i*8 + (g>>1)*4 ; x offset v50 = (2(rho&3) + (i>>3))*1024 + (rho>>2)*64 + (i&7)*8 + (g>>1)*4")
    a("v_lshlrev_b32 v69, 3, v75"); a("v_lshl_add_u32 v69, v51, 2, v69")
    a("v_lshrrev_b32 v50, 3, v75"); a("v_lshlrev_b32 v50, 10, v50"); a("v_and_b32 v60, 7, v75"); a("v_lshl_add_u32 v50, v60, 3, v50")
    a("v_lshl_add_u32 v50, v51, 2, v50")
    a("s_and_b32 s58, s89, 3"); a("s_lshl_b32 s58, s58, 11"); a("s_lshr_b32 s92, s89, 2"); a("s_lshl_b32 s92, s92, 6"); a("s_add_u32 s58, s58, s92")
    a("v_add_u32 v50, s58, v50")
    a("s_lshl_b32 s58, s89, 7"); a(f"s_add_u32 s58, s58, {WS_H}"); a("v_add_u32 v69, s58, v69")
    a("buffer_load_dword v71, v50, s[28:31], 0 offen"); vm.append("xr")
    C("G store offset v70 = G + (4*s89 + w)*128 + i*16 + g*8")
    a("v_lshlrev_b32 v70, 4, v75"); a("v_lshl_add_u32 v70, v74, 3, v70")
    a("s_lshl_b32 s58, s89, 2"); a("s_add_u32 s58, s58, s3"); a("s_lshl_b32 s58, s58, 7"); a(f"s_add_u32 s58, s58, {WS_G}"); a("v_add_u32 v70, s58, v70")
    C("the reducers mark every hand-off line empty (all ones): own P lines, own H line, four G lines")
    a("s_cmp_eq_u32 s7, 2"); a("s_cbranch_scc0 L_noclr")
    for r in range(4): a(f"v_mov_b32 v{60+r}, -1")
    a("s_lshl_b32 s58, s89, 13"); a("s_lshl_b32 s92, s3, 11"); a("s_add_u32 s58, s58, s92")
    a("buffer_store_dwordx4 v[60:63], v48, s[32:35], s58 offen sc1")
    a("buffer_store_dwordx4 v[60:63], v48, s[32:35], s58 offen offset:1024 sc1")
    a("s_mov_b64 exec, 0x00ff00ff")
    a("buffer_store_dwordx2 v[60:61], v70, s[32:35], 0 offen sc1")
    a("s_cmp_eq_u32 s3, 0"); a("s_cbranch_scc0 L_noclr")
    a("s_mov_b32 exec_lo, 0xffff"); a("s_mov_b32 exec_hi, 0xffff")
    a("buffer_store_dword v60, v69, s[32:35], 0 offen sc1")
    a("L_noclr:")
    a("s_mov_b64 exec, -1")
    for j in range(nA): kload()
    stamp(1)
    a("s_mov_b32 s60, 0xcccccccc"); a("s_mov_b32 s61, 0xcccccccc"); a("s_mov_b32 s62, 0xaaaaaaaa"); a("s_mov_b32 s63, 0xaaaaaaaa")
    a(f"s_mov_b32 s90, {f32(128 ** -0.5)}"); a(f"s_mov_b32 s91, {f32(1.4426950408889634)}")
    C("selector masks v14..17: lane (g,m): m<8 and m>>1==r -> m&1 ? 0xffff0000 : 0xffff")
    a("v_and_b32 v60, 1, v75"); a("v_lshlrev_b32 v60, 4, v60"); a("v_mov_b32 v61, 0xffff"); a("v_lshlrev_b32 v60, v60, v61")
    a("v_lshrrev_b32 v61, 1, v75")
    for r in range(4):
        a(f"v_cmp_eq_u32 vcc, {r}, v61"); a(f"v_cndmask_b32 v{14+r}, 0, v60, vcc")
    C("---- LayerNorm of x[b]")
    vwait("x")
    for j in range(nB): kload()
    for k in range(4):
        a(f"v_lshlrev_b32 v{76+2*k}, 16, v{52+k}"); a(f"v_and_b32 v{77+2*k}, 0xffff0000, v{52+k}")
    a("v_add_f32 v84, v76, v77")
    for k in range(2, 8): a(f"v_add_f32 v84, v84, v{76+k}")
    allred("v_add_f32", "v84", "v85")
    a(f"v_mul_f32 v84, {f32(1/512)}, v84")
    for k in range(8): a(f"v_sub_f32 v{76+k}, v{76+k}, v84")
    a("v_mul_f32 v86, v76, v76")
    for k in range(1, 8): a(f"v_fmac_f32 v86, v{76+k}, v{76+k}")
    allred("v_add_f32", "v86", "v85")
    a(f"v_mul_f32 v86, {f32(1/512)}, v86")
    bf16r("v84"); bf16r("v86")
    a(f"v_add_f32 v86, {f32(1e-5)}, v86"); bf16r("v86")
    a("v_sqrt_f32 v86, v86"); bf16r("v86"); a("v_rcp_f32 v86, v86")
    vwait("xc1")
    for k in range(2):
        a(f"v_lshlrev_b32 v{56+k}, 16, v{56+k}"); a(f"v_sub_f32 v{56+k}, v{56+k}, v84"); bf16r(f"v{56+k}")
        a(f"v_mul_f32 v{56+k}, v{56+k}, v86"); a(f"v_cvt_pk_bf16_f32 v{66+k}, v{56+k}, v{56+k}")
    stamp(2)
    C("---- q = xn @ wq[:, head], 128 rows per wave")
    masks(0, "v66", 0)
    for t in range(32):
        vwait(f"wq{t}")
        mfma(28, mop(t), f"a[{4*t}:{4*t+3}]", t == 0)
        if wiss < 32: wqload()
        if int((t + 1) / kq) > int(t / kq) and kiss < NB: kload()
        if t < 31: masks(t + 1, "v66" if t + 1 < 16 else "v67", (t + 1) & 15)
    for j in range(nbar):
        if kiss < NB: kload()
    a("v_lshlrev_b32 v27, 5, v75"); a("v_lshl_add_u32 v26, v74, 4, v27"); a("s_lshl_b32 s58, s3, 9"); a("v_add_u32 v26, s58, v26")
    a("s_mov_b32 exec_hi, 0")
    a(f"ds_write_b128 v26, v[28:31] offset:{L_QP}")
    a("s_mov_b64 exec, -1")
    a("s_waitcnt lgkmcnt(0)"); a("s_barrier")
    for w in range(4):
        for hh in range(2): a(f"ds_read_b128 v[{76+8*w+4*hh}:{79+8*w+4*hh}], v27 offset:{L_QP+512*w+16*hh}")
    a("s_waitcnt lgkmcnt(0)")
    for k in range(8):
        a(f"v_add_f32 v{76+k}, v{76+k}, v{84+k}"); a(f"v_add_f32 v{92+k}, v{92+k}, v{100+k}")
    for k in range(8): a(f"v_add_f32 v{76+k}, v{76+k}, v{92+k}")
    for k in range(4): a(f"v_cvt_pk_bf16_f32 v{10+k}, v{76+2*k}, v{77+2*k}")
    a("v_mov_b32 v64, 0xff800000"); a("v_mov_b32 v65, 0")
    stamp(3)

    def kconsume(i):
        t = i & 15
        x = f"v{48 + (t & 1)}"
        base = RING + 4 * i
        a(f"v_dot2_f32_bf16 {x}, v{base}, v10, 0")
        for r in range(1, 4): a(f"v_dot2_f32_bf16 {x}, v{base+r}, v{10+r}, {x}")
        if t & 1:
            d = f"v{50 + ((t >> 1) & 1)}"
            a(f"v_add_f32_dpp {d}, v48, v48 row_ror:8 row_mask:0xf bank_mask:0x3")
            a(f"v_add_f32_dpp {d}, v49, v49 row_ror:8 row_mask:0xf bank_mask:0xc")
        if t & 3 == 3:
            d = f"v{52 + ((t >> 2) & 1)}"
            a(f"v_add_f32_dpp {d}, v50, v50 row_half_mirror row_mask:0xf bank_mask:0x5")
            a(f"v_add_f32_dpp {d}, v51, v51 row_half_mirror row_mask:0xf bank_mask:0xa")
        if t & 7 == 7:
            d = f"v{54 + ((t >> 3) & 1)}"
            a("v_add_f32_dpp v52, v52, v52 quad_perm:[2,3,0,1] row_mask:0xf bank_mask:0xf")
            a("v_add_f32_dpp v53, v53, v53 quad_perm:[2,3,0,1] row_mask:0xf bank_mask:0xf")
            a(f"v_cndmask_b32 {d}, v52, v53, s[60:61]")
        if t == 15:
            s = f"v{46 + (i >> 4)}"
            a("v_add_f32_dpp v54, v54, v54 quad_perm:[1,0,3,2] row_mask:0xf bank_mask:0xf")
            a("v_add_f32_dpp v55, v55, v55 quad_perm:[1,0,3,2] row_mask:0xf bank_mask:0xf")
            a(f"v_cndmask_b32 {s}, v54, v55, s[62:63]")
            bf16r(s); a(f"v_mul_f32 {s}, s90, {s}"); bf16r(s)
            a(f"v_max_f32 v64, v64, {s}")
    C("---- lap 0: the keys that arrived while q was formed")
    a(f"s_mov_b32 s55, {NB*4096}")
    left = NB + D - kiss
    early = list(early)
    while early and early[-1] >= NB - (left - len(early)): early.pop()
    sched = early + list(range(NB - (left - len(early)), NB))
    assert len(set(sched)) == left, (sched, left)
    for i in range(NB):
        vwait(f"k{i}")
        if i in sched:
            assert kiss - NB < i
            kload()
        kconsume(i)
    stamp(4)
    C("---- lap 1 also brings in this head's rows of wo")
    a("s_mov_b32 s54, s55"); a(f"s_add_u32 s55, s55, {NB*4096}")
    for k in range(2): a(f"v_mov_b32 v{44+k}, v{46+k}")
    kbase = NB
    for j in range((D1 or D) - D): kload()
    for i in range(NB):
        vwait(f"k{NB+i}")
        if kiss < 2 * NB + D: kload()
        a(f"s_mov_b32 s58, {i*4096}")
        a(f"buffer_load_dwordx4 a[{4*i}:{4*i+3}], v59, s[24:27], s58 offen {wpol}"); vm.append(f"wo{i}")
        kconsume(i)

    def decide(label, br):
        a("s_waitcnt lgkmcnt(0)")
        a("s_sub_u32 s58, s52, s48"); a("s_lshl_b32 s58, s58, 8"); a("s_sub_u32 s58, s58, s49"); a("s_add_u32 s49, s49, s57")
        a("s_sub_u32 s19, s19, 1"); a("s_cmp_ge_i32 s19, 0"); a("s_cselect_b32 s58, 1, s58")
        a("s_cmp_gt_i32 s58, 0")
        a(f"s_cbranch_{br} {label}")
    def segment(tag, mode, k, consume):
        DD = D + (hi if mode else 0); i0 = 16 * k
        if mode:
            a("s_cmp_eq_u32 s51, 1"); a(f"s_cbranch_scc1 {tag}_in")
            for j in range(D, DD): sload(i0 + j)
            a(f"{tag}_in:")
        for i in range(i0, i0 + 16):
            a(f"s_waitcnt vmcnt({DD - 1})")
            skip = (not mode) and i - i0 < hi
            if skip: a("s_cmp_eq_u32 s51, 1"); a(f"s_cbranch_scc1 {tag}_s{i}")
            sload(i + DD)
            if skip: a(f"{tag}_s{i}:")
            if i - i0 == hi: a(f"s_mov_b32 s51, {mode}")
            if i - i0 == 15: a("s_memrealtime s[52:53]")
            consume(i)
    def cal_events(base):
        lo, up = (2, 8) if base == 0 else (8, 16)
        if lo <= cal < up:
            a("s_waitcnt lgkmcnt(0)"); a(f"s_cmp_eq_u32 s56, {cal-base}"); a("s_cselect_b32 s88, s52, s88")
        if lo <= cal + 2 < up:
            a("s_lshl_b32 s58, s6, 4"); a("s_add_u32 s58, s58, s56")
            a(f"s_cmp_eq_u32 s58, {32+cal+2-base}"); a("s_cbranch_scc0 L_norep")
            a("s_waitcnt lgkmcnt(0)")
            a("s_sub_u32 s58, s52, s88"); a("s_min_u32 s58, s58, 0xffff"); a("s_max_u32 s58, s58, 1"); a("s_pack_ll_b32_b16 s58, s52, s58")
            a("v_mov_b32 v61, s58"); a("s_lshl_b32 s58, s89, 2"); a("v_mov_b32 v60, s58"); a("s_mov_b64 exec, 1")
            a("global_store_dword v60, v61, s[84:85] sc1")
            a("s_mov_b64 exec, -1")
            a("L_norep:")
        if lo <= cal + 3 < up:
            a(f"s_cmp_eq_u32 s56, {cal+3-base}"); a("s_cbranch_scc0 L_nold")
            a("v_lshlrev_b32 v60, 2, v1"); a("global_load_dword v72, v60, s[84:85] sc1")
            a("L_nold:")
        if lo <= cal + 4 < up:
            a(f"s_cmp_eq_u32 s56, {cal+4-base}"); a("s_cbranch_scc0 L_nocal")
            a("v_cmp_eq_u32 vcc, 0, v72"); a("s_cbranch_vccnz L_nocal")
            a("s_mov_b32 s50, 0")
            if ctl:
                a("s_waitcnt lgkmcnt(0)")
                a("s_mov_b32 s48, s52")
                a("v_lshrrev_b32 v60, 16, v72"); a("v_subrev_u32 v61, s52, v72"); a("v_bfe_i32 v61, v61, 0, 16")
                allred("v_add_u32", "v60", "v62"); allred("v_add_u32", "v61", "v62")
                a("v_readfirstlane_b32 s57, v60"); a("v_readfirstlane_b32 s49, v61")
                if eps > 0: a(f"s_lshr_b32 s58, s57, {eps}"); a("s_add_u32 s57, s57, s58")
                if eps < 0: a(f"s_lshr_b32 s58, s57, {-eps}"); a("s_sub_u32 s57, s57, s58")
                a("s_add_u32 s49, s49, s57"); a("s_lshl_b32 s49, s49, 2")
                a(f"s_mov_b32 s58, {slack*256}")
                a("s_cmp_eq_u32 s7, 1"); a(f"s_cselect_b32 s58, {(slack-head[0])*256}, s58")
                a("s_cmp_eq_u32 s7, 3"); a(f"s_cselect_b32 s58, {(slack-head[1])*256}, s58")
                a("s_add_u32 s49, s49, s58")
            a("L_nocal:")
    def laploop(name, head_code, consume):
        a(".p2align 3")
        a(f"{name}:")
        head_code()
        decide(f"{name}_h0", "scc1")
        segment(f"{name}_l0", 0, 0, consume)
        decide(f"{name}_h1", "scc1")
        a(f"{name}_l1:")
        segment(f"{name}_l1", 0, 1, consume)
        a("s_add_u32 s56, s56, 1"); a("s_cmp_lt_u32 s56, 8"); a(f"s_cbranch_scc1 {name}")
        a(f"s_branch {name}_end")
        a(f"{name}_h0:")
        segment(f"{name}_h0", 1, 0, consume)
        decide(f"{name}_l1", "scc0")
        a(f"{name}_h1:")
        segment(f"{name}_h1", 1, 1, consume)
        a("s_add_u32 s56, s56, 1"); a("s_cmp_lt_u32 s56, 8"); a(f"s_cbranch_scc1 {name}")
        a(f"{name}_end:")
    C("s48 time base, s49 deadline (1/256 ticks), s50 reports seen, s51 depth in use, s[52:53] clock, s57 pace, s19 fixed deep segments")
    a("s_mov_b32 s56, 2")
    a("s_memrealtime s[52:53]"); a("s_mov_b32 s51, 0"); a("s_mov_b32 s50, 99"); a("s_mov_b32 s57, 0")
    a("s_mov_b32 s48, s18"); a("s_mov_b32 s49, 0x7fffffff"); a("s_mov_b32 s88, 0")
    a("s_cmp_eq_u32 s7, 1"); a(f"s_cselect_b32 s19, {hiu[0]-4}, 0"); a("s_cmp_eq_u32 s7, 3"); a(f"s_cselect_b32 s19, {hiu[1]-4}, s19")
    def khead():
        lapstamp(16)
        a("s_mov_b32 s54, s55"); a(f"s_add_u32 s55, s55, {NB*4096}")
        a("s_cmp_eq_u32 s56, 7")
        a("s_cselect_b32 s12, s16, s12"); a("s_cselect_b32 s13, s17, s13"); a("s_cselect_b32 s55, 0, s55")
        for k in range(14): a(f"v_mov_b32 v{32+k}, v{34+k}")
        cal_events(0)
    laploop("L_k", khead, kconsume)
    stamp(5)
    C("---- maximum of this wave's scores, in log2 units, negated")
    allred("v_max_f32", "v64", "v48")
    a("v_mul_f32 v64, s91, v64"); a("v_sub_f32 v64, 0, v64")
    a("s_mov_b32 s8, s12"); a("s_mov_b32 s9, s13"); a("s_mov_b32 s56, 0")
    for r in range(4): a(f"v_mov_b32 v{28+r}, 0")
    def vhead():
        lapstamp(24)
        a("s_mov_b32 s54, s55"); a(f"s_add_u32 s55, s55, {NB*4096}")
        for k in range(2):
            a(f"v_fma_f32 v{56+k}, v{32+k}, s91, v64"); a(f"v_exp_f32 v{56+k}, v{56+k}")
            a(f"v_add_f32 v65, v65, v{56+k}"); a(f"v_cvt_pk_bf16_f32 v{66+k}, v{56+k}, v{56+k}")
        for k in range(14): a(f"v_mov_b32 v{32+k}, v{34+k}")
        masks(0, "v66", 0)
        cal_events(8)
        a("s_cmp_eq_u32 s56, 7"); a("s_cbranch_scc0 L_nolast")
        allred("v_add_f32", "v65", "v48")
        a("s_lshl_b32 s58, s3, 3"); a("v_mov_b32 v48, s58"); a("s_mov_b64 exec, 1")
        a(f"ds_write_b64 v48, v[64:65] offset:{L_ML}")
        a("s_mov_b64 exec, -1")
        a("s_cmp_lg_u32 s50, 99"); a("s_cbranch_scc1 L_nolast")
        a(f"s_mov_b32 s88, {SPIN}"); a("v_lshlrev_b32 v60, 2, v1")
        a("L_cnt:")
        a("global_load_dword v72, v60, s[84:85] sc1"); a("s_waitcnt vmcnt(0)")
        a("v_cmp_eq_u32 vcc, 0, v72"); a("s_cbranch_vccz L_nolast")
        a("s_sleep 8"); a("s_sub_u32 s88, s88, 1"); a("s_cbranch_scc0 L_cnt")
        a("L_nolast:")
    def vconsume(i):
        mfma(28, mop(i), ring(i), False)
        if i < NB - 1: masks(i + 1, f"v{66 + ((i + 1) >> 4)}", bitrev((i + 1) & 15))
    if vpol is not None: cur[0] = vpol
    laploop("L_v", vhead, vconsume)
    stamp(6)
    C("---- combine the four waves, project through wo, publish the partial row")
    a("v_lshlrev_b32 v27, 4, v75"); a("v_lshl_add_u32 v27, v74, 2, v27")
    a("v_mov_b32 v48, 0")
    a("s_mov_b32 exec_hi, 0")
    a(f"ds_write_b128 v26, v[28:31] offset:{L_OP}")
    a("s_mov_b64 exec, -1")
    a("s_waitcnt lgkmcnt(0)"); a("s_barrier")
    a(f"ds_read_b128 v[76:79], v48 offset:{L_ML}"); a(f"ds_read_b128 v[80:83], v48 offset:{L_ML+16}")
    for w in range(4): a(f"ds_read2st64_b32 v[{84+2*w}:{85+2*w}], v27 offset0:{L_OP//256+2*w} offset1:{L_OP//256+2*w+1}")
    a("s_waitcnt lgkmcnt(4)")
    a("v_min_f32 v48, v76, v78"); a("v_min3_f32 v48, v48, v80, v82")
    for w in range(4): a(f"v_sub_f32 v{76+2*w}, v48, v{76+2*w}")
    for w in range(4): a(f"v_exp_f32 v{76+2*w}, v{76+2*w}")
    a("v_mul_f32 v49, v76, v77")
    for w in range(1, 4): a(f"v_fmac_f32 v49, v{76+2*w}, v{77+2*w}")
    a("v_rcp_f32 v49, v49")
    a("s_waitcnt lgkmcnt(0)")
    for k in range(2):
        a(f"v_mul_f32 v{56+k}, v76, v{84+k}")
        for w in range(1, 4): a(f"v_fmac_f32 v{56+k}, v{76+2*w}, v{84+2*w+k}")
    for k in range(2):
        a(f"v_mul_f32 v{56+k}, v{56+k}, v49"); a(f"v_cvt_pk_bf16_f32 v{66+k}, v{56+k}, v{56+k}")
    masks(0, "v66", 0)
    for t in range(32):
        if t < 31: masks(t + 1, "v66" if t + 1 < 16 else "v67", (t + 1) & 15)
        mfma(28, mop(t), f"a[{4*t}:{4*t+3}]", t == 0)
    a("s_mov_b32 exec_hi, 0")
    for r in range(4): a(f"v_min_u32 v{28+r}, -2, v{28+r}")
    a("buffer_store_dwordx4 v[28:31], v68, s[32:35], 0 offen sc1")
    a("s_mov_b64 exec, -1")
    stamp(7)
    a("s_cmp_eq_u32 s6, 2"); a("s_cbranch_scc1 L_s2")
    a("s_and_b32 s58, s7, 1"); a("s_cbranch_scc0 L_fin")
    C("---- this workgroup's FFN weights -> LDS: A via s[40:43], B via s[44:47]; s96/s97 source, s98/s99 LDS, s100/s101 steps")
    a("s_cmp_eq_u32 s7, 1"); a("s_cbranch_scc0 L_dmaD")
    a("v_lshrrev_b32 v62, 2, v1"); a("s_movk_i32 s58, 3584"); a("v_mul_u32_u24 v62, s58, v62")
    a("v_and_b32 v63, 3, v1"); a("v_lshl_add_u32 v62, v63, 4, v62")
    a("s_lshl_b32 s58, s89, 6"); a("v_add_u32 v62, s58, v62")
    a(f"s_mul_i32 s96, s3, {128*3584}"); a("s_mov_b32 s97, s96")
    a("s_lshl_b32 s98, s3, 13"); a(f"s_add_u32 s98, s98, {L_W}"); a("s_add_u32 s99, s98, 32768")
    a(f"s_mov_b32 s100, {16*3584}"); a("s_mov_b32 s101, 1024"); a("s_mov_b32 s93, 8")
    a("s_branch L_dma")
    a("L_dmaD:")
    a("v_lshrrev_b32 v62, 1, v1"); a("v_lshlrev_b32 v62, 10, v62"); a("v_and_b32 v63, 1, v1"); a("v_lshl_add_u32 v62, v63, 4, v62")
    a("s_lshl_b32 s58, s89, 5"); a("v_add_u32 v62, s58, v62")
    for d in (40, 44):
        a(f"s_mov_b32 s{d}, s80"); a(f"s_mov_b32 s{d+1}, s81"); a(f"s_mov_b32 s{d+2}, {1792*1024}")
    a(f"s_mul_i32 s96, s3, {448*1024}"); a("s_add_u32 s97, s96, 32768")
    a(f"s_mul_i32 s98, s3, {448*32}"); a(f"s_add_u32 s98, s98, {L_W}"); a("s_add_u32 s99, s98, 1024")
    a("s_mov_b32 s100, 65536"); a("s_mov_b32 s101, 2048"); a("s_mov_b32 s93, 7")
    a("L_dma:")
    a("s_mov_b32 m0, s98"); a("s_sub_u32 s93, s93, 1")
    a(f"buffer_load_dwordx4 v62, s[40:43], s96 offen {fpol} lds")
    a("s_mov_b32 m0, s99"); a("s_add_u32 s96, s96, s100")
    a(f"buffer_load_dwordx4 v62, s[44:47], s97 offen {fpol} lds")
    a("s_add_u32 s97, s97, s100"); a("s_add_u32 s98, s98, s101"); a("s_add_u32 s99, s99, s101")
    a("s_cmp_lg_u32 s93, 0"); a("s_cbranch_scc1 L_dma")
    C("exchange addresses v63 = g*128 + b*16, v26 = w*512 + v63 ; v60 = 16g + r', v61 = c' for the transposing reads")
    a("v_and_b32 v27, 7, v75"); a("v_lshlrev_b32 v63, 4, v27"); a("v_lshl_add_u32 v63, v74, 7, v63")
    a("s_lshl_b32 s58, s3, 9"); a("v_add_u32 v26, s58, v63")
    a("v_lshrrev_b32 v60, 2, v75"); a("v_lshl_add_u32 v60, v74, 4, v60"); a("v_and_b32 v61, 3, v1")
    a("s_cmp_eq_u32 s7, 3"); a("s_cbranch_scc1 L_s4")

    C("---- gate / up: four tiles of 8+8 columns, 128 rows of h per wave; LayerNorm is applied to the sums")
    a("v_lshlrev_b32 v60, 6, v60"); a("v_lshrrev_b32 v49, 1, v61"); a("v_lshl_add_u32 v60, v49, 15, v60")
    a("v_and_b32 v49, 1, v61"); a("v_lshl_add_u32 v60, v49, 3, v60")
    a("s_lshl_b32 s58, s3, 13"); a(f"s_add_u32 s58, s58, {L_W}"); a("v_add_u32 v60, s58, v60")
    for r in range(4): a(f"v_mov_b32 v{112+r}, 0x3f803f80")
    C("h fragment address v62 = (g>>1)*512 + (b>>1)*128 + (b&1)*64 + (g&1)*32 + half*16")
    a("v_lshrrev_b32 v62, 1, v74"); a("v_lshlrev_b32 v62, 9, v62"); a("v_bfe_u32 v49, v75, 1, 2"); a("v_lshl_add_u32 v62, v49, 7, v62")
    a("v_and_b32 v49, 1, v75"); a("v_lshl_add_u32 v62, v49, 6, v62"); a("v_and_b32 v49, 1, v74"); a("v_lshl_add_u32 v62, v49, 5, v62")
    a("v_lshrrev_b32 v49, 3, v75"); a("v_lshl_add_u32 v62, v49, 4, v62")
    a(f"s_mov_b32 s58, {L_DUMP-L_T2}"); a("v_mad_u32_u24 v26, v49, s58, v26")
    a("s_lshl_b32 s58, s3, 11"); a("v_add_u32 v63, s58, v63")
    a("v_lshrrev_b32 v49, 1, v74"); a("v_lshlrev_b32 v49, 2, v49"); a("v_lshlrev_b32 v61, 5, v27"); a("v_add_u32 v49, v49, v61")
    a("s_lshl_b32 s58, s3, 3"); a("v_add_u32 v49, s58, v49")
    a("s_lshl_b32 s59, s3, 11"); a(f"s_add_u32 s59, s59, {WS_H}")
    a("s_waitcnt vmcnt(0)")
    stamp(13)
    for t in range(4):
        for u in range(2):
            for hf in range(2):
                for sec in range(2): trread(128 + 16*t + 8*u + 4*hf + 2*sec, "v60", (64*u + 8*hf + 4*sec) * 64 + 16*t)
        if t: a("s_waitcnt lgkmcnt(6)")
    a("s_waitcnt lgkmcnt(0)")
    for k in range(4):
        for t in range(4): mfma(224 + 4*t, f"v[{128+16*t+4*k}:{131+16*t+4*k}]", "v[112:115]", k == 0)
    for t in range(4): a(f"ds_write_b128 v26, v[{224+4*t}:{227+4*t}] offset:{L_CS+2048*t}")
    def ldH(b): return [f"buffer_load_dwordx4 v[{b+4*u}:{b+3+4*u}], v62, s[32:35], s59 offen offset:{u*1024} sc1" for u in range(2)]
    def useH(b):
        n = 0
        for u in range(2):
            for t in range(4):
                for hf in range(2):
                    mfma(192 + 8*t + 4*hf, f"v[{128+16*t+8*u+4*hf}:{131+16*t+8*u+4*hf}]", f"v[{b+4*u}:{b+3+4*u}]", u == 0)
                    if n < 8:
                        a(f"v_dot2_f32_bf16 v52, v{b+n}, v112, {'0' if n == 0 else 'v52'}")
                        a(f"v_dot2_f32_bf16 v53, v{b+n}, v{b+n}, {'0' if n == 0 else 'v53'}")
                    if n == 9:
                        for r in range(2): a(f"v_add_f32_dpp v{52+r}, v{52+r}, v{52+r} row_ror:8 row_mask:0xf bank_mask:0xf")
                    if n == 11: a("v_permlane32_swap_b32 v52, v53"); a("v_add_f32 v52, v52, v53"); a("v_mov_b32 v53, v52")
                    if n == 13: a("v_permlane16_swap_b32 v52, v53"); a("v_add_f32 v52, v52, v53"); a(f"ds_write_b32 v49, v52 offset:{L_ST}")
                    n += 1
    poll2("L_pH", ldH, 8, (76, 84), useH)
    stamp(10)
    for t in range(4):
        for r in range(4): a(f"v_add_f32_dpp v{192+8*t+r}, v{196+8*t+r}, v{192+8*t+r} row_ror:8 row_mask:0xf bank_mask:0xf")
        a(f"ds_write_b128 v26, v[{192+8*t}:{195+8*t}] offset:{L_T2+2048*t}")
    a("s_waitcnt lgkmcnt(0)"); a("s_barrier")
    for k in range(2): a(f"ds_read_b128 v[{92+4*k}:{95+4*k}], v61 offset:{L_ST+16*k}")
    for w in range(4): a(f"ds_read_b128 v[{224+4*w}:{227+4*w}], v63 offset:{L_CS+512*w}")
    for w in range(4): a(f"ds_read_b128 v[{116+4*w}:{119+4*w}], v63 offset:{L_T2+512*w}")
    a("s_waitcnt lgkmcnt(8)")
    for k in range(2): a(f"v_add_f32 v{92+k}, v{92+k}, v{94+k}"); a(f"v_add_f32 v{96+k}, v{96+k}, v{98+k}")
    a("v_add_f32 v52, v92, v96"); a("v_add_f32 v53, v93, v97")
    a(f"v_mul_f32 v52, {f32(1/512)}, v52"); a(f"v_mul_f32 v53, {f32(1/512)}, v53")
    a("v_fma_f32 v53, -v52, v52, v53"); a("v_max_f32 v53, 0, v53")
    bf16r("v53"); bf16r("v52")
    a(f"v_add_f32 v53, {f32(1e-5)}, v53"); bf16r("v53")
    a("v_sqrt_f32 v53, v53")
    a("s_waitcnt lgkmcnt(4)")
    for r in range(4): a(f"v_add_f32 v{224+r}, v{224+r}, v{228+r}"); a(f"v_add_f32 v{232+r}, v{232+r}, v{236+r}")
    bf16r("v53"); a("v_rcp_f32 v53, v53")
    for r in range(4): a(f"v_add_f32 v{108+r}, v{224+r}, v{232+r}")
    a("s_waitcnt lgkmcnt(0)")
    for r in range(4): a(f"v_add_f32 v{116+r}, v{116+r}, v{120+r}"); a(f"v_add_f32 v{124+r}, v{124+r}, v{128+r}")
    for r in range(4): a(f"v_add_f32 v{116+r}, v{116+r}, v{124+r}")
    for r in range(4): a(f"v_fma_f32 v{116+r}, -v52, v{108+r}, v{116+r}")
    for r in range(4): a(f"v_mul_f32 v{116+r}, v{116+r}, v53")
    for r in range(2): a(f"v_cvt_pk_bf16_f32 v{120+r}, v{116+2*r}, v{117+2*r}")
    for r in range(2): a(f"v_permlane32_swap_b32 v{120+r}, v{122+r}")
    for r in range(2):
        a(f"v_lshlrev_b32 v{116+2*r}, 16, v{120+r}"); a(f"v_and_b32 v{117+2*r}, 0xffff0000, v{120+r}")
        a(f"v_lshlrev_b32 v{124+2*r}, 16, v{122+r}"); a(f"v_and_b32 v{125+2*r}, 0xffff0000, v{122+r}")
    for r in range(4): a(f"v_max_f32 v{116+r}, 0, v{116+r}")
    for r in range(4): a(f"v_mul_f32 v{116+r}, v{116+r}, v{124+r}")
    for r in range(2): a(f"v_cvt_pk_bf16_f32 v{120+r}, v{116+2*r}, v{117+2*r}")
    a("s_mov_b64 exec, 0x00ff00ff")
    for r in range(2): a(f"v_min_u32 v{120+r}, -2, v{120+r}")
    a("buffer_store_dwordx2 v[120:121], v70, s[32:35], 0 offen sc1")
    stamp(11)
    a("s_branch L_fin")

    C("---- reducer: sum the 32 heads' partials of 2 rows x 32 columns, add x, publish h")
    a("L_s2:")
    a("v_lshlrev_b32 v62, 4, v1")
    a("s_lshl_b32 s59, s89, 13"); a("s_add_u32 s92, s59, 4096")
    a("v_lshlrev_b32 v50, 16, v71"); a("v_and_b32 v51, 0xffff0000, v71")
    def ld8(b): return [f"buffer_load_dwordx4 v[{b+4*u}:{b+3+4*u}], v62, s[32:35], {'s59' if u < 4 else 's92'} offen offset:{(u&3)*1024} sc1" for u in range(8)]
    def useP(b):
        for r in range(16): a(f"v_add_f32 v{108+r}, v{b+r}, v{b+16+r}")
    poll2("L_pP", ld8, 32, (76, 128), useP)
    stamp(8)
    for st in (8, 4):
        for r in range(st): a(f"v_add_f32 v{108+r}, v{108+r}, v{108+st+r}")
    a("v_permlane32_swap_b32 v108, v110"); a("v_permlane32_swap_b32 v109, v111")
    a("v_add_f32 v108, v108, v110"); a("v_add_f32 v109, v109, v111")
    a("v_mov_b32 v110, v108"); a("v_mov_b32 v111, v109")
    a("v_permlane16_swap_b32 v108, v110"); a("v_permlane16_swap_b32 v109, v111")
    a("v_add_f32 v108, v108, v110"); a("v_add_f32 v109, v109, v111")
    a("v_cvt_pk_bf16_f32 v108, v108, v109")
    a("v_and_b32 v109, 0xffff0000, v108"); a("v_lshlrev_b32 v108, 16, v108")
    a("v_add_f32 v108, v108, v50"); a("v_add_f32 v109, v109, v51")
    a("v_cvt_pk_bf16_f32 v108, v108, v109")
    a("s_mov_b32 exec_lo, 0xffff"); a("s_mov_b32 exec_hi, 0xffff")
    a("v_min_u32 v108, -2, v108")
    a("buffer_store_dword v108, v69, s[32:35], 0 offen sc1")
    stamp(9)
    a("s_branch L_fin")

    C("---- 16 output columns, 448 rows of W_down per wave")
    a("L_s4:")
    a("v_lshlrev_b32 v60, 5, v60"); a("v_lshl_add_u32 v60, v61, 3, v60")
    a(f"s_mul_i32 s58, s3, {448*32}"); a(f"s_add_u32 s58, s58, {L_W}"); a("v_add_u32 v60, s58, v60")
    C("h address v49 = H + ((s'>>1)*4 + (b>>1))*128 + (b&1)*64 + (s'&1)*32 + g*8 ; out address v50 = b*1024 + s'*32 + g*8")
    a("v_lshrrev_b32 v49, 1, v27"); a("v_lshlrev_b32 v49, 7, v49"); a("v_and_b32 v50, 1, v27"); a("v_lshl_add_u32 v49, v50, 6, v49")
    a("v_lshl_add_u32 v49, v74, 3, v49")
    a("s_lshr_b32 s58, s89, 1"); a("s_lshl_b32 s58, s58, 9"); a("s_and_b32 s92, s89, 1"); a("s_lshl_b32 s92, s92, 5"); a("s_add_u32 s58, s58, s92")
    a(f"s_add_u32 s58, s58, {WS_H}"); a("v_add_u32 v49, s58, v49")
    a("v_lshlrev_b32 v50, 10, v27"); a("v_lshl_add_u32 v50, v74, 3, v50"); a("s_lshl_b32 s58, s89, 5"); a("v_add_u32 v50, s58, v50")
    a(f"s_mul_i32 s59, s3, {7*1024}"); a(f"s_add_u32 s59, s59, {WS_G}"); a("s_add_u32 s92, s59, 4096")
    a("v_lshlrev_b32 v62, 4, v1")
    a("s_waitcnt vmcnt(0)")
    stamp(13)
    for u in range(7):
        for hf in range(2):
            for sec in range(2): trread(128 + 8*u + 4*hf + 2*sec, "v60", (64*u + 8*hf + 4*sec) * 32)
        if u in (2, 5): a("s_waitcnt lgkmcnt(4)")
    a("s_waitcnt lgkmcnt(0)")
    def ldG(b): return ld8(b)[:7] + [f"buffer_load_dwordx2 v[{b+28}:{b+29}], v49, s[32:35], 0 offen sc1"]
    def useG(b):
        for u in range(7):
            for hf in range(2): mfma(108 + 4*hf, f"v[{128+8*u+4*hf}:{131+8*u+4*hf}]", f"v[{b+4*u}:{b+3+4*u}]", u == 0)
        for r in range(2):
            a(f"v_lshlrev_b32 v{116+2*r}, 16, v{b+28+r}"); a(f"v_and_b32 v{117+2*r}, 0xffff0000, v{b+28+r}")
    poll2("L_pG", ldG, 30, (76, 192), useG)
    stamp(10)
    for r in range(4): a(f"v_add_f32_dpp v{108+r}, v{112+r}, v{108+r} row_ror:8 row_mask:0xf bank_mask:0xf")
    a("s_mov_b32 exec_lo, 0x00ff00ff"); a("s_mov_b32 exec_hi, 0x00ff00ff")
    a(f"ds_write_b128 v26, v[108:111] offset:{L_TX}")
    a("s_waitcnt lgkmcnt(0)"); a("s_barrier")
    a("s_cmp_eq_u32 s3, 3"); a("s_cbranch_scc0 L_fin")
    for w in range(4): a(f"ds_read_b128 v[{128+4*w}:{131+4*w}], v63 offset:{L_TX+512*w}")
    a("s_waitcnt lgkmcnt(0)")
    for r in range(4):
        a(f"v_add_f32 v{128+r}, v{128+r}, v{132+r}"); a(f"v_add_f32 v{136+r}, v{136+r}, v{140+r}")
    for r in range(4): a(f"v_add_f32 v{128+r}, v{128+r}, v{136+r}")
    for r in range(2): a(f"v_cvt_pk_bf16_f32 v{132+r}, v{128+2*r}, v{129+2*r}")
    for r in range(2):
        a(f"v_lshlrev_b32 v{128+2*r}, 16, v{132+r}"); a(f"v_and_b32 v{129+2*r}, 0xffff0000, v{132+r}")
    for r in range(4): a(f"v_add_f32 v{128+r}, v{128+r}, v{116+r}")
    for r in range(2): a(f"v_cvt_pk_bf16_f32 v{132+r}, v{128+2*r}, v{129+2*r}")
    a("buffer_store_dwordx2 v[132:133], v50, s[36:39], 0 offen")
    stamp(11)
    a("L_fin:")
    if probe is not None:
        a(f"s_cmp_eq_u32 s2, {pwg}"); a("s_cbranch_scc0 L_end"); a("s_cmp_eq_u32 s3, 3"); a("s_cbranch_scc0 L_end")
        if probe == 0: a("s_mov_b32 s101, 0")
        a("s_add_u32 s101, s101, 10000")
        a("L_probe:")
        a("s_sleep 4"); a("s_memrealtime s[94:95]"); a("s_waitcnt lgkmcnt(0)"); a("s_sub_u32 s94, s94, s18")
        a("s_cmp_lt_u32 s94, s101"); a("s_cbranch_scc1 L_probe")
    if stamps:
        a("s_mov_b64 exec, -1")
        stamp(12)
        a("s_getreg_b32 s92, hwreg(HW_REG_XCC_ID)"); a("v_writelane_b32 v73, s92, 15")
        a("s_lshl_b32 s58, s2, 2"); a("s_add_u32 s58, s58, s3"); a("s_lshl_b32 s58, s58, 7"); a(f"s_add_u32 s58, s58, {WS_ST}")
        a("v_lshlrev_b32 v48, 2, v1"); a("s_mov_b32 exec_hi, 0")
        a("buffer_store_dword v73, v48, s[32:35], s58 offen")
        if "dbgout" in xp:
            a("s_cmp_eq_u32 s2, 229"); a("s_cbranch_scc0 L_end"); a("s_cmp_eq_u32 s3, 3"); a("s_cbranch_scc0 L_end")
            a("v_subrev_u32 v73, s18, v73"); a("s_mov_b64 exec, 0xffff")
            a("global_store_dword v48, v73, s[84:85] sc1")
    a("L_end:")
    a("s_endpgm")
    body = a.finish()
    head_ = HEADER + f"; @launch grid=(256,1,1) block=(256,1,1) lds={L_SIZE}\n" + '.amdgcn_target "amdgcn-amd-amdhsa--gfx950"\n.text\n' + \
        f".globl {NAME}\n.p2align 8\n.type {NAME},@function\n"
    tail = f""".section .rodata,"a"
.p2align 6
.amdhsa_kernel {NAME}
  .amdhsa_next_free_vgpr 384
  .amdhsa_next_free_sgpr 102
  .amdhsa_accum_offset 256
  .amdhsa_group_segment_fixed_size 0
  .amdhsa_kernarg_size 96
  .amdhsa_user_sgpr_count 2
  .amdhsa_user_sgpr_kernarg_segment_ptr 1
  .amdhsa_system_sgpr_workgroup_id_x 1
.end_amdhsa_kernel
"""
    return head_ + body + tail

if __name__ == "__main__":
    kw = eval("dict(%s)" % (sys.argv[2] if len(sys.argv) > 2 else ""))
    open(sys.argv[1], "w").write(gen(**kw))
```

```python
import sys, struct
sys.path.insert(0, __file__.rsplit('/', 1)[0])
from asmlib import Asm

NAME = "sequential_preLN__mha_block_cached__glu_gated_reglu__decode_kernel"
HEADER = open(__file__.rsplit('/', 1)[0] + '/header.txt').read()

def f32(x): return "0x%08x" % struct.unpack('<I', struct.pack('<f', x))[0]

WS_P, WS_H, WS_G, WS_ST, WS_SIZE = 0, 0x80000, 0x82000, 0x100000, 0x140000
L_QP, L_OP, L_ML, L_ST, L_TX, L_T2, L_CS, L_W, L_DUMP, L_SIZE = 0, 2048, 4096, 4160, 4608, 8192, 16384, 24576, 90112, 106496
RING = 128
NB = 32
SPIN = 200000

def gen(D=5, hi=1, pol="nt", wpol="", fpol="", early=(2, 7, 12, 17), n1=5, kq=2, nbar=2, nA=3, nB=3, D1=None,
        stag=4, ctl=1, slack=130, eps=0, head=(300, 350), hiu=(4, 4), cal=3, stamps=0, xp=(), probe=None, pwg=130, vpol=None):
    a = Asm()
    vm = []
    def C(t): a("; " + t)
    def vwait(tag):
        n = len(vm) - 1 - vm.index(tag)
        a(f"s_waitcnt vmcnt({min(n, 63)})")
    def stamp(k):
        if probe == k:
            a("s_memrealtime s[94:95]"); a("s_waitcnt lgkmcnt(0)"); a("s_sub_u32 s20, s94, s18")
        if stamps == 2 and k not in (6, 12): return
        if stamps == 3 and k not in (3, 4, 6, 12): return
        if stamps:
            a("s_memrealtime s[94:95]"); a("s_waitcnt lgkmcnt(0)"); a(f"v_writelane_b32 v73, s94, {k}")
    def lapstamp(off):
        if stamps == 3:
            a("s_memrealtime s[94:95]"); a(f"s_add_u32 m0, s56, {off}"); a("s_waitcnt lgkmcnt(0)"); a("v_writelane_b32 v73, s94, m0")
    def allred(op, v, t):
        for n in (8, 4, 2, 1): a(f"{op}_dpp {v}, {v}, {v} row_ror:{n} row_mask:0xf bank_mask:0xf")
        for sw in ("v_permlane16_swap_b32", "v_permlane32_swap_b32"):
            a(f"v_mov_b32 {t}, {v}"); a(f"{sw} {v}, {t}"); a(f"{op} {v}, {v}, {t}")
    def bf16r(v):
        a(f"v_cvt_pk_bf16_f32 {v}, {v}, {v}"); a(f"v_and_b32 {v}, 0xffff0000, {v}")
    def srd(d, lo, hi_, size, add=None):
        if add is None:
            a(f"s_mov_b32 s{d}, s{lo}"); a(f"s_mov_b32 s{d+1}, s{hi_}")
        else:
            a(f"s_add_u32 s{d}, s{lo}, {add}"); a(f"s_addc_u32 s{d+1}, s{hi_}, 0")
        a(f"s_mov_b32 s{d+2}, {size}"); a(f"s_mov_b32 s{d+3}, 0x20000")
    cur = [pol]
    def ring(j): j %= NB; return f"v[{RING+4*j}:{RING+4*j+3}]"
    def sload(j):
        s, b = ("s[12:15]", "s55") if j >= NB else ("s[8:11]", "s54")
        j %= NB
        a(f"buffer_load_dwordx4 {ring(j)}, v{2+(j>>2)}, {s}, {b} offen offset:{(j&3)*1024} {cur[0]}")
    def masks(t, src, lane):
        for r in range(4):
            a(f"v_and_b32_dpp v{18+4*(t&1)+r}, {src}, v{14+r} row_newbcast:{lane} row_mask:0xf bank_mask:0xf")
    def mop(t): return f"v[{18+4*(t&1)}:{21+4*(t&1)}]"
    def mfma(d, x, y, first): a(f"v_mfma_f32_16x16x32_bf16 v[{d}:{d+3}], {x}, {y}, {'0' if first else 'v[%d:%d]' % (d, d+3)}")
    def bitrev(t): return ((t & 1) << 3) | ((t & 2) << 1) | ((t & 4) >> 1) | ((t & 8) >> 3)
    def check(regs, ok):
        r = list(regs)
        a(f"v_max3_u32 v48, v{r[0]}, v{r[1]}, v{r[2]}"); r = r[3:]
        while len(r) >= 2:
            a(f"v_max3_u32 v48, v48, v{r[0]}, v{r[1]}"); r = r[2:]
        if r: a(f"v_max_u32 v48, v48, v{r[0]}")
        a("v_cmp_eq_u32 vcc, -1, v48")
        a(f"s_cbranch_vccz {ok}")
    def poll2(label, loads, nreg, bases, use):
        n = len(loads(bases[0]))
        a(f"s_mov_b32 s88, {SPIN}")
        for l in loads(bases[0]): a(l)
        if stag: a(f"s_sleep {stag}")
        a(f"{label}:")
        for l in loads(bases[1]): a(l)
        a(f"s_waitcnt vmcnt({n})")
        check(range(bases[0], bases[0] + nreg), f"{label}_A")
        for l in loads(bases[0]): a(l)
        a(f"s_waitcnt vmcnt({n})")
        check(range(bases[1], bases[1] + nreg), f"{label}_B")
        a("s_sub_u32 s88, s88, 1")
        a(f"s_cbranch_scc0 {label}")
        a(f"{label}_B:")
        use(bases[1])
        a(f"s_branch {label}_done")
        a(f"{label}_A:")
        use(bases[0])
        a(f"{label}_done:")
    def trread(dst, addr, off): a(f"ds_read_b64_tr_b16 v[{dst}:{dst+1}], {addr} offset:{off}")

    a(f"{NAME}:")
    a("s_cmp_ge_u32 s2, 256"); a("s_cbranch_scc1 L_end")
    a("s_memrealtime s[18:19]")
    a("s_load_dwordx16 s[64:79], s[0:1], 0")
    a("s_load_dwordx8 s[80:87], s[0:1], 64")
    C("s3 wave, s4 batch row, s5 head; v1 lane, v74 lane>>4 (g), v75 lane&15 (i)")
    a("v_lshrrev_b32 v1, 6, v0")
    a("v_readfirstlane_b32 s3, v1")
    a("v_and_b32 v1, 63, v0")
    a("s_lshr_b32 s4, s2, 5"); a("s_and_b32 s5, s2, 31")
    a("v_lshrrev_b32 v74, 4, v1"); a("v_and_b32 v75, 15, v1")
    a("v_lshlrev_b32 v48, 4, v1")
    a("s_lshl_b32 s58, s3, 12"); a("v_add_u32 v2, s58, v48")
    for k in range(1, 8): a(f"v_add_u32 v{2+k}, {k*16384}, v2")
    a("s_lshl_b32 s58, s3, 8"); a("v_lshlrev_b32 v49, 3, v75"); a("v_lshl_add_u32 v49, v74, 1, v49"); a("v_add_u32 v49, s58, v49")
    a("v_lshrrev_b32 v51, 1, v74")
    C("wq lane offset v58 = (128w+g)*8192 + i*16 ; wo lane offset v59 = g*1024 + w*256 + i*16")
    a("s_lshl_b32 s58, s3, 20"); a("v_lshlrev_b32 v58, 13, v74"); a("v_lshl_add_u32 v58, v75, 4, v58"); a("v_add_u32 v58, s58, v58")
    a("s_lshl_b32 s58, s3, 8"); a("v_lshlrev_b32 v59, 10, v74"); a("v_lshl_add_u32 v59, v75, 4, v59"); a("v_add_u32 v59, s58, v59")
    a("s_lshl_b32 s57, s4, 10"); a("s_lshl_b32 s58, s5, 8"); a("s_lshl_b32 s59, s2, 20")
    a("s_sub_u32 s92, 0x400000, s58")
    a("s_mov_b32 s54, 0")
    a("s_waitcnt lgkmcnt(0)")
    if stamps: a("v_mov_b32 v73, 0"); a("v_writelane_b32 v73, s18, 0")
    kiss = 0
    def kload():
        nonlocal kiss
        sload(kiss - kbase); vm.append(f"k{kiss}"); kiss += 1
    kbase = 0
    srd(8, 66, 67, 0x100000, "s59")
    kload()
    srd(28, 64, 65, 8192)
    a("buffer_load_dwordx4 v[52:55], v48, s[28:31], s57 offen"); vm.append("x")
    a("buffer_load_ushort v56, v49, s[28:31], s57 offen"); vm.append("xc0")
    a("buffer_load_ushort v57, v49, s[28:31], s57 offen offset:128"); vm.append("xc1")
    srd(20, 70, 71, "s92", "s58")
    wiss = 0
    def wqload():
        nonlocal wiss
        a(f"s_mov_b32 s58, {wiss*32768}")
        a(f"buffer_load_dwordx4 a[{4*wiss}:{4*wiss+3}], v58, s[20:23], s58 offen {wpol}"); vm.append(f"wq{wiss}"); wiss += 1
    for j in range(n1):
        if j: kload()
        wqload(); wqload()
    a("s_add_u32 s16, s68, s59"); a("s_addc_u32 s17, s69, 0")
    a("s_mov_b32 s12, s8"); a("s_mov_b32 s13, s9"); a("s_mov_b32 s14, 0x100000"); a("s_mov_b32 s15, 0x20000")
    a("s_lshl_b32 s58, s5, 17"); srd(24, 72, 73, 0x20000, "s58")
    srd(32, 86, 87, WS_SIZE); srd(36, 82, 83, 8192)
    srd(40, 76, 77, 512*3584); srd(44, 78, 79, 512*3584)
    C("role s7 / index s89: 1 gate+up tiles (wg<56), 2 reducer (64<=wg<128), 3 output slice (wg>=224), 0 none")
    a("s_and_b32 s58, s2, 7"); a("s_lshr_b32 s92, s2, 3")
    a("s_mul_i32 s89, s58, 7"); a("s_add_u32 s89, s89, s92")
    a("s_cmp_lt_u32 s2, 56"); a("s_cselect_b32 s7, 1, 0")
    a("s_lshl_b32 s58, s58, 2"); a("s_add_u32 s58, s58, s92"); a("s_sub_u32 s58, s58, 28")
    a("s_cmp_ge_u32 s2, 224"); a("s_cselect_b32 s89, s58, s89"); a("s_cselect_b32 s7, 3, s7")
    a("s_sub_u32 s58, s2, 64"); a("s_cmp_lt_u32 s58, 64"); a("s_cselect_b32 s89, s58, s89"); a("s_cselect_b32 s7, 2, s7")
    a("s_lshl_b32 s6, s3, 2"); a("s_add_u32 s6, s6, s7")
    C("P store offset v68 = ((4w + (i>>2))*4 + (b>>1))*8192 + (2h + (b&1))*128 + (i&3)*32 + g*16")
    a("v_lshrrev_b32 v68, 2, v75"); a("v_lshlrev_b32 v68, 15, v68"); a("v_lshl_add_u32 v68, v74, 4, v68")
    a("v_and_b32 v60, 3, v75"); a("v_lshl_add_u32 v68, v60, 5, v68")
    a("s_lshl_b32 s58, s3, 17"); a("s_lshr_b32 s92, s4, 1"); a("s_lshl_b32 s92, s92, 13"); a("s_add_u32 s58, s58, s92")
    a("s_lshl_b32 s92, s5, 8"); a("s_add_u32 s58, s58, s92")
    a("s_and_b32 s92, s4, 1"); a("s_lshl_b32 s92, s92, 7"); a("s_add_u32 s58, s58, s92"); a("v_add_u32 v68, s58, v68")
    C("H store offset v69 = H + rho*128 + i*8 + (g>>1)*4 ; x offset v50 = (2(rho&3) + (i>>3))*1024 + (rho>>2)*64 + (i&7)*8 + (g>>1)*4")
    a("v_lshlrev_b32 v69, 3, v75"); a("v_lshl_add_u32 v69, v51, 2, v69")
    a("v_lshrrev_b32 v50, 3, v75"); a("v_lshlrev_b32 v50, 10, v50"); a("v_and_b32 v60, 7, v75"); a("v_lshl_add_u32 v50, v60, 3, v50")
    a("v_lshl_add_u32 v50, v51, 2, v50")
    a("s_and_b32 s58, s89, 3"); a("s_lshl_b32 s58, s58, 11"); a("s_lshr_b32 s92, s89, 2"); a("s_lshl_b32 s92, s92, 6"); a("s_add_u32 s58, s58, s92")
    a("v_add_u32 v50, s58, v50")
    a("s_lshl_b32 s58, s89, 7"); a(f"s_add_u32 s58, s58, {WS_H}"); a("v_add_u32 v69, s58, v69")
    a("buffer_load_dword v71, v50, s[28:31], 0 offen"); vm.append("xr")
    C("G store offset v70 = G + (4*s89 + w)*128 + i*16 + g*8")
    a("v_lshlrev_b32 v70, 4, v75"); a("v_lshl_add_u32 v70, v74, 3, v70")
    a("s_lshl_b32 s58, s89, 2"); a("s_add_u32 s58, s58, s3"); a("s_lshl_b32 s58, s58, 7"); a(f"s_add_u32 s58, s58, {WS_G}"); a("v_add_u32 v70, s58, v70")
    C("the reducers mark every hand-off line empty (all ones): own P lines, own H line, four G lines")
    a("s_cmp_eq_u32 s7, 2"); a("s_cbranch_scc0 L_noclr")
    for r in range(4): a(f"v_mov_b32 v{60+r}, -1")
    a("s_lshl_b32 s58, s89, 13"); a("s_lshl_b32 s92, s3, 11"); a("s_add_u32 s58, s58, s92")
    a("buffer_store_dwordx4 v[60:63], v48, s[32:35], s58 offen sc1")
    a("buffer_store_dwordx4 v[60:63], v48, s[32:35], s58 offen offset:1024 sc1")
    a("s_mov_b64 exec, 0x00ff00ff")
    a("buffer_store_dwordx2 v[60:61], v70, s[32:35], 0 offen sc1")
    a("s_cmp_eq_u32 s3, 0"); a("s_cbranch_scc0 L_noclr")
    a("s_mov_b32 exec_lo, 0xffff"); a("s_mov_b32 exec_hi, 0xffff")
    a("buffer_store_dword v60, v69, s[32:35], 0 offen sc1")
    a("L_noclr:")
    a("s_mov_b64 exec, -1")
    for j in range(nA): kload()
    stamp(1)
    a("s_mov_b32 s60, 0xcccccccc"); a("s_mov_b32 s61, 0xcccccccc"); a("s_mov_b32 s62, 0xaaaaaaaa"); a("s_mov_b32 s63, 0xaaaaaaaa")
    a(f"s_mov_b32 s90, {f32(128 ** -0.5)}"); a(f"s_mov_b32 s91, {f32(1.4426950408889634)}")
    C("selector masks v14..17: lane (g,m): m<8 and m>>1==r -> m&1 ? 0xffff0000 : 0xffff")
    a("v_and_b32 v60, 1, v75"); a("v_lshlrev_b32 v60, 4, v60"); a("v_mov_b32 v61, 0xffff"); a("v_lshlrev_b32 v60, v60, v61")
    a("v_lshrrev_b32 v61, 1, v75")
    for r in range(4):
        a(f"v_cmp_eq_u32 vcc, {r}, v61"); a(f"v_cndmask_b32 v{14+r}, 0, v60, vcc")
    C("---- LayerNorm of x[b]")
    vwait("x")
    for j in range(nB): kload()
    for k in range(4):
        a(f"v_lshlrev_b32 v{76+2*k}, 16, v{52+k}"); a(f"v_and_b32 v{77+2*k}, 0xffff0000, v{52+k}")
    a("v_add_f32 v84, v76, v77")
    for k in range(2, 8): a(f"v_add_f32 v84, v84, v{76+k}")
    allred("v_add_f32", "v84", "v85")
    a(f"v_mul_f32 v84, {f32(1/512)}, v84")
    for k in range(8): a(f"v_sub_f32 v{76+k}, v{76+k}, v84")
    a("v_mul_f32 v86, v76, v76")
    for k in range(1, 8): a(f"v_fmac_f32 v86, v{76+k}, v{76+k}")
    allred("v_add_f32", "v86", "v85")
    a(f"v_mul_f32 v86, {f32(1/512)}, v86")
    bf16r("v84"); bf16r("v86")
    a(f"v_add_f32 v86, {f32(1e-5)}, v86"); bf16r("v86")
    a("v_sqrt_f32 v86, v86"); bf16r("v86"); a("v_rcp_f32 v86, v86")
    vwait("xc1")
    for k in range(2):
        a(f"v_lshlrev_b32 v{56+k}, 16, v{56+k}"); a(f"v_sub_f32 v{56+k}, v{56+k}, v84"); bf16r(f"v{56+k}")
        a(f"v_mul_f32 v{56+k}, v{56+k}, v86"); a(f"v_cvt_pk_bf16_f32 v{66+k}, v{56+k}, v{56+k}")
    stamp(2)
    C("---- q = xn @ wq[:, head], 128 rows per wave")
    masks(0, "v66", 0)
    for t in range(32):
        vwait(f"wq{t}")
        mfma(28, mop(t), f"a[{4*t}:{4*t+3}]", t == 0)
        if wiss < 32: wqload()
        if int((t + 1) / kq) > int(t / kq) and kiss < NB: kload()
        if t < 31: masks(t + 1, "v66" if t + 1 < 16 else "v67", (t + 1) & 15)
    for j in range(nbar):
        if kiss < NB: kload()
    a("v_lshlrev_b32 v27, 5, v75"); a("v_lshl_add_u32 v26, v74, 4, v27"); a("s_lshl_b32 s58, s3, 9"); a("v_add_u32 v26, s58, v26")
    a("s_mov_b32 exec_hi, 0")
    a(f"ds_write_b128 v26, v[28:31] offset:{L_QP}")
    a("s_mov_b64 exec, -1")
    a("s_waitcnt lgkmcnt(0)"); a("s_barrier")
    for w in range(4):
        for hh in range(2): a(f"ds_read_b128 v[{76+8*w+4*hh}:{79+8*w+4*hh}], v27 offset:{L_QP+512*w+16*hh}")
    a("s_waitcnt lgkmcnt(0)")
    for k in range(8):
        a(f"v_add_f32 v{76+k}, v{76+k}, v{84+k}"); a(f"v_add_f32 v{92+k}, v{92+k}, v{100+k}")
    for k in range(8): a(f"v_add_f32 v{76+k}, v{76+k}, v{92+k}")
    for k in range(4): a(f"v_cvt_pk_bf16_f32 v{10+k}, v{76+2*k}, v{77+2*k}")
    a("v_mov_b32 v64, 0xff800000"); a("v_mov_b32 v65, 0")
    stamp(3)

    def kconsume(i):
        t = i & 15
        x = f"v{48 + (t & 1)}"
        base = RING + 4 * i
        a(f"v_dot2_f32_bf16 {x}, v{base}, v10, 0")
        for r in range(1, 4): a(f"v_dot2_f32_bf16 {x}, v{base+r}, v{10+r}, {x}")
        if t & 1:
            d = f"v{50 + ((t >> 1) & 1)}"
            a(f"v_add_f32_dpp {d}, v48, v48 row_ror:8 row_mask:0xf bank_mask:0x3")
            a(f"v_add_f32_dpp {d}, v49, v49 row_ror:8 row_mask:0xf bank_mask:0xc")
        if t & 3 == 3:
            d = f"v{52 + ((t >> 2) & 1)}"
            a(f"v_add_f32_dpp {d}, v50, v50 row_half_mirror row_mask:0xf bank_mask:0x5")
            a(f"v_add_f32_dpp {d}, v51, v51 row_half_mirror row_mask:0xf bank_mask:0xa")
        if t & 7 == 7:
            d = f"v{54 + ((t >> 3) & 1)}"
            a("v_add_f32_dpp v52, v52, v52 quad_perm:[2,3,0,1] row_mask:0xf bank_mask:0xf")
            a("v_add_f32_dpp v53, v53, v53 quad_perm:[2,3,0,1] row_mask:0xf bank_mask:0xf")
            a(f"v_cndmask_b32 {d}, v52, v53, s[60:61]")
        if t == 15:
            s = f"v{46 + (i >> 4)}"
            a("v_add_f32_dpp v54, v54, v54 quad_perm:[1,0,3,2] row_mask:0xf bank_mask:0xf")
            a("v_add_f32_dpp v55, v55, v55 quad_perm:[1,0,3,2] row_mask:0xf bank_mask:0xf")
            a(f"v_cndmask_b32 {s}, v54, v55, s[62:63]")
            bf16r(s); a(f"v_mul_f32 {s}, s90, {s}"); bf16r(s)
            a(f"v_max_f32 v64, v64, {s}")
    C("---- lap 0: the keys that arrived while q was formed")
    a(f"s_mov_b32 s55, {NB*4096}")
    left = NB + D - kiss
    early = list(early)
    while early and early[-1] >= NB - (left - len(early)): early.pop()
    sched = early + list(range(NB - (left - len(early)), NB))
    assert len(set(sched)) == left, (sched, left)
    for i in range(NB):
        vwait(f"k{i}")
        if i in sched:
            assert kiss - NB < i
            kload()
        kconsume(i)
    stamp(4)
    C("---- lap 1 also brings in this head's rows of wo")
    a("s_mov_b32 s54, s55"); a(f"s_add_u32 s55, s55, {NB*4096}")
    for k in range(2): a(f"v_mov_b32 v{44+k}, v{46+k}")
    kbase = NB
    for j in range((D1 or D) - D): kload()
    for i in range(NB):
        vwait(f"k{NB+i}")
        if kiss < 2 * NB + D: kload()
        a(f"s_mov_b32 s58, {i*4096}")
        a(f"buffer_load_dwordx4 a[{4*i}:{4*i+3}], v59, s[24:27], s58 offen {wpol}"); vm.append(f"wo{i}")
        kconsume(i)

    def decide(label, br):
        a("s_waitcnt lgkmcnt(0)")
        a("s_sub_u32 s58, s52, s48"); a("s_lshl_b32 s58, s58, 8"); a("s_sub_u32 s58, s58, s49"); a("s_add_u32 s49, s49, s57")
        a("s_sub_u32 s19, s19, 1"); a("s_cmp_ge_i32 s19, 0"); a("s_cselect_b32 s58, 1, s58")
        a("s_cmp_gt_i32 s58, 0")
        a(f"s_cbranch_{br} {label}")
    def segment(tag, mode, k, consume):
        DD = D + (hi if mode else 0); i0 = 16 * k
        if mode:
            a("s_cmp_eq_u32 s51, 1"); a(f"s_cbranch_scc1 {tag}_in")
            for j in range(D, DD): sload(i0 + j)
            a(f"{tag}_in:")
        for i in range(i0, i0 + 16):
            a(f"s_waitcnt vmcnt({DD - 1})")
            skip = (not mode) and i - i0 < hi
            if skip: a("s_cmp_eq_u32 s51, 1"); a(f"s_cbranch_scc1 {tag}_s{i}")
            sload(i + DD)
            if skip: a(f"{tag}_s{i}:")
            if i - i0 == hi: a(f"s_mov_b32 s51, {mode}")
            if i - i0 == 15: a("s_memrealtime s[52:53]")
            consume(i)
    def cal_events(base):
        lo, up = (2, 8) if base == 0 else (8, 16)
        if lo <= cal < up:
            a("s_waitcnt lgkmcnt(0)"); a(f"s_cmp_eq_u32 s56, {cal-base}"); a("s_cselect_b32 s88, s52, s88")
        if lo <= cal + 2 < up:
            a("s_lshl_b32 s58, s6, 4"); a("s_add_u32 s58, s58, s56")
            a(f"s_cmp_eq_u32 s58, {32+cal+2-base}"); a("s_cbranch_scc0 L_norep")
            a("s_waitcnt lgkmcnt(0)")
            a("s_sub_u32 s58, s52, s88"); a("s_min_u32 s58, s58, 0xffff"); a("s_max_u32 s58, s58, 1"); a("s_pack_ll_b32_b16 s58, s52, s58")
            a("v_mov_b32 v61, s58"); a("s_lshl_b32 s58, s89, 2"); a("v_mov_b32 v60, s58"); a("s_mov_b64 exec, 1")
            a("global_store_dword v60, v61, s[84:85] sc1")
            a("s_mov_b64 exec, -1")
            a("L_norep:")
        if lo <= cal + 3 < up:
            a(f"s_cmp_eq_u32 s56, {cal+3-base}"); a("s_cbranch_scc0 L_nold")
            a("v_lshlrev_b32 v60, 2, v1"); a("global_load_dword v72, v60, s[84:85] sc1")
            a("L_nold:")
        if lo <= cal + 4 < up:
            a(f"s_cmp_eq_u32 s56, {cal+4-base}"); a("s_cbranch_scc0 L_nocal")
            a("v_cmp_eq_u32 vcc, 0, v72"); a("s_cbranch_vccnz L_nocal")
            a("s_mov_b32 s50, 0")
            if ctl:
                a("s_waitcnt lgkmcnt(0)")
                a("s_mov_b32 s48, s52")
                a("v_lshrrev_b32 v60, 16, v72"); a("v_subrev_u32 v61, s52, v72"); a("v_bfe_i32 v61, v61, 0, 16")
                allred("v_add_u32", "v60", "v62"); allred("v_add_u32", "v61", "v62")
                a("v_readfirstlane_b32 s57, v60"); a("v_readfirstlane_b32 s49, v61")
                if eps > 0: a(f"s_lshr_b32 s58, s57, {eps}"); a("s_add_u32 s57, s57, s58")
                if eps < 0: a(f"s_lshr_b32 s58, s57, {-eps}"); a("s_sub_u32 s57, s57, s58")
                a("s_add_u32 s49, s49, s57"); a("s_lshl_b32 s49, s49, 2")
                a(f"s_mov_b32 s58, {slack*256}")
                a("s_cmp_eq_u32 s7, 1"); a(f"s_cselect_b32 s58, {(slack-head[0])*256}, s58")
                a("s_cmp_eq_u32 s7, 3"); a(f"s_cselect_b32 s58, {(slack-head[1])*256}, s58")
                a("s_add_u32 s49, s49, s58")
            a("L_nocal:")
    def laploop(name, head_code, consume):
        a(".p2align 3")
        a(f"{name}:")
        head_code()
        decide(f"{name}_h0", "scc1")
        segment(f"{name}_l0", 0, 0, consume)
        decide(f"{name}_h1", "scc1")
        a(f"{name}_l1:")
        segment(f"{name}_l1", 0, 1, consume)
        a("s_add_u32 s56, s56, 1"); a("s_cmp_lt_u32 s56, 8"); a(f"s_cbranch_scc1 {name}")
        a(f"s_branch {name}_end")
        a(f"{name}_h0:")
        segment(f"{name}_h0", 1, 0, consume)
        decide(f"{name}_l1", "scc0")
        a(f"{name}_h1:")
        segment(f"{name}_h1", 1, 1, consume)
        a("s_add_u32 s56, s56, 1"); a("s_cmp_lt_u32 s56, 8"); a(f"s_cbranch_scc1 {name}")
        a(f"{name}_end:")
    C("s48 time base, s49 deadline (1/256 ticks), s50 reports seen, s51 depth in use, s[52:53] clock, s57 pace, s19 fixed deep segments")
    a("s_mov_b32 s56, 2")
    a("s_memrealtime s[52:53]"); a("s_mov_b32 s51, 0"); a("s_mov_b32 s50, 99"); a("s_mov_b32 s57, 0")
    a("s_mov_b32 s48, s18"); a("s_mov_b32 s49, 0x7fffffff"); a("s_mov_b32 s88, 0")
    a("s_cmp_eq_u32 s7, 1"); a(f"s_cselect_b32 s19, {hiu[0]-4}, 0"); a("s_cmp_eq_u32 s7, 3"); a(f"s_cselect_b32 s19, {hiu[1]-4}, s19")
    def khead():
        lapstamp(16)
        a("s_mov_b32 s54, s55"); a(f"s_add_u32 s55, s55, {NB*4096}")
        a("s_cmp_eq_u32 s56, 7")
        a("s_cselect_b32 s12, s16, s12"); a("s_cselect_b32 s13, s17, s13"); a("s_cselect_b32 s55, 0, s55")
        for k in range(14): a(f"v_mov_b32 v{32+k}, v{34+k}")
        cal_events(0)
    laploop("L_k", khead, kconsume)
    stamp(5)
    C("---- maximum of this wave's scores, in log2 units, negated")
    allred("v_max_f32", "v64", "v48")
    a("v_mul_f32 v64, s91, v64"); a("v_sub_f32 v64, 0, v64")
    a("s_mov_b32 s8, s12"); a("s_mov_b32 s9, s13"); a("s_mov_b32 s56, 0")
    for r in range(4): a(f"v_mov_b32 v{28+r}, 0")
    def vhead():
        lapstamp(24)
        a("s_mov_b32 s54, s55"); a(f"s_add_u32 s55, s55, {NB*4096}")
        for k in range(2):
            a(f"v_fma_f32 v{56+k}, v{32+k}, s91, v64"); a(f"v_exp_f32 v{56+k}, v{56+k}")
            a(f"v_add_f32 v65, v65, v{56+k}"); a(f"v_cvt_pk_bf16_f32 v{66+k}, v{56+k}, v{56+k}")
        for k in range(14): a(f"v_mov_b32 v{32+k}, v{34+k}")
        masks(0, "v66", 0)
        cal_events(8)
        a("s_cmp_eq_u32 s56, 7"); a("s_cbranch_scc0 L_nolast")
        allred("v_add_f32", "v65", "v48")
        a("s_lshl_b32 s58, s3, 3"); a("v_mov_b32 v48, s58"); a("s_mov_b64 exec, 1")
        a(f"ds_write_b64 v48, v[64:65] offset:{L_ML}")
        a("s_mov_b64 exec, -1")
        a("s_cmp_lg_u32 s50, 99"); a("s_cbranch_scc1 L_nolast")
        a(f"s_mov_b32 s88, {SPIN}"); a("v_lshlrev_b32 v60, 2, v1")
        a("L_cnt:")
        a("global_load_dword v72, v60, s[84:85] sc1"); a("s_waitcnt vmcnt(0)")
        a("v_cmp_eq_u32 vcc, 0, v72"); a("s_cbranch_vccz L_nolast")
        a("s_sleep 8"); a("s_sub_u32 s88, s88, 1"); a("s_cbranch_scc0 L_cnt")
        a("L_nolast:")
    def vconsume(i):
        mfma(28, mop(i), ring(i), False)
        if i < NB - 1: masks(i + 1, f"v{66 + ((i + 1) >> 4)}", bitrev((i + 1) & 15))
    if vpol is not None: cur[0] = vpol
    laploop("L_v", vhead, vconsume)
    stamp(6)
    C("---- combine the four waves, project through wo, publish the partial row")
    a("v_lshlrev_b32 v27, 4, v75"); a("v_lshl_add_u32 v27, v74, 2, v27")
    a("v_mov_b32 v48, 0")
    a("s_mov_b32 exec_hi, 0")
    a(f"ds_write_b128 v26, v[28:31] offset:{L_OP}")
    a("s_mov_b64 exec, -1")
    a("s_waitcnt lgkmcnt(0)"); a("s_barrier")
    a(f"ds_read_b128 v[76:79], v48 offset:{L_ML}"); a(f"ds_read_b128 v[80:83], v48 offset:{L_ML+16}")
    for w in range(4): a(f"ds_read2st64_b32 v[{84+2*w}:{85+2*w}], v27 offset0:{L_OP//256+2*w} offset1:{L_OP//256+2*w+1}")
    a("s_waitcnt lgkmcnt(4)")
    a("v_min_f32 v48, v76, v78"); a("v_min3_f32 v48, v48, v80, v82")
    for w in range(4): a(f"v_sub_f32 v{76+2*w}, v48, v{76+2*w}")
    for w in range(4): a(f"v_exp_f32 v{76+2*w}, v{76+2*w}")
    a("v_mul_f32 v49, v76, v77")
    for w in range(1, 4): a(f"v_fmac_f32 v49, v{76+2*w}, v{77+2*w}")
    a("v_rcp_f32 v49, v49")
    a("s_waitcnt lgkmcnt(0)")
    for k in range(2):
        a(f"v_mul_f32 v{56+k}, v76, v{84+k}")
        for w in range(1, 4): a(f"v_fmac_f32 v{56+k}, v{76+2*w}, v{84+2*w+k}")
    for k in range(2):
        a(f"v_mul_f32 v{56+k}, v{56+k}, v49"); a(f"v_cvt_pk_bf16_f32 v{66+k}, v{56+k}, v{56+k}")
    masks(0, "v66", 0)
    for t in range(32):
        if t < 31: masks(t + 1, "v66" if t + 1 < 16 else "v67", (t + 1) & 15)
        mfma(28, mop(t), f"a[{4*t}:{4*t+3}]", t == 0)
    a("s_mov_b32 exec_hi, 0")
    for r in range(4): a(f"v_min_u32 v{28+r}, -2, v{28+r}")
    a("buffer_store_dwordx4 v[28:31], v68, s[32:35], 0 offen sc1")
    a("s_mov_b64 exec, -1")
    stamp(7)
    a("s_cmp_eq_u32 s6, 2"); a("s_cbranch_scc1 L_s2")
    a("s_and_b32 s58, s7, 1"); a("s_cbranch_scc0 L_fin")
    C("---- this workgroup's FFN weights -> LDS: A via s[40:43], B via s[44:47]; s96/s97 source, s98/s99 LDS, s100/s101 steps")
    a("s_cmp_eq_u32 s7, 1"); a("s_cbranch_scc0 L_dmaD")
    a("v_lshrrev_b32 v62, 2, v1"); a("s_movk_i32 s58, 3584"); a("v_mul_u32_u24 v62, s58, v62")
    a("v_and_b32 v63, 3, v1"); a("v_lshl_add_u32 v62, v63, 4, v62")
    a("s_lshl_b32 s58, s89, 6"); a("v_add_u32 v62, s58, v62")
    a(f"s_mul_i32 s96, s3, {128*3584}"); a("s_mov_b32 s97, s96")
    a("s_lshl_b32 s98, s3, 13"); a(f"s_add_u32 s98, s98, {L_W}"); a("s_add_u32 s99, s98, 32768")
    a(f"s_mov_b32 s100, {16*3584}"); a("s_mov_b32 s101, 1024"); a("s_mov_b32 s93, 8")
    a("s_branch L_dma")
    a("L_dmaD:")
    a("v_lshrrev_b32 v62, 1, v1"); a("v_lshlrev_b32 v62, 10, v62"); a("v_and_b32 v63, 1, v1"); a("v_lshl_add_u32 v62, v63, 4, v62")
    a("s_lshl_b32 s58, s89, 5"); a("v_add_u32 v62, s58, v62")
    for d in (40, 44):
        a(f"s_mov_b32 s{d}, s80"); a(f"s_mov_b32 s{d+1}, s81"); a(f"s_mov_b32 s{d+2}, {1792*1024}")
    a(f"s_mul_i32 s96, s3, {448*1024}"); a("s_add_u32 s97, s96, 32768")
    a(f"s_mul_i32 s98, s3, {448*32}"); a(f"s_add_u32 s98, s98, {L_W}"); a("s_add_u32 s99, s98, 1024")
    a("s_mov_b32 s100, 65536"); a("s_mov_b32 s101, 2048"); a("s_mov_b32 s93, 7")
    a("L_dma:")
    a("s_mov_b32 m0, s98"); a("s_sub_u32 s93, s93, 1")
    a(f"buffer_load_dwordx4 v62, s[40:43], s96 offen {fpol} lds")
    a("s_mov_b32 m0, s99"); a("s_add_u32 s96, s96, s100")
    a(f"buffer_load_dwordx4 v62, s[44:47], s97 offen {fpol} lds")
    a("s_add_u32 s97, s97, s100"); a("s_add_u32 s98, s98, s101"); a("s_add_u32 s99, s99, s101")
    a("s_cmp_lg_u32 s93, 0"); a("s_cbranch_scc1 L_dma")
    C("exchange addresses v63 = g*128 + b*16, v26 = w*512 + v63 ; v60 = 16g + r', v61 = c' for the transposing reads")
    a("v_and_b32 v27, 7, v75"); a("v_lshlrev_b32 v63, 4, v27"); a("v_lshl_add_u32 v63, v74, 7, v63")
    a("s_lshl_b32 s58, s3, 9"); a("v_add_u32 v26, s58, v63")
    a("v_lshrrev_b32 v60, 2, v75"); a("v_lshl_add_u32 v60, v74, 4, v60"); a("v_and_b32 v61, 3, v1")
    a("s_cmp_eq_u32 s7, 3"); a("s_cbranch_scc1 L_s4")

    C("---- gate / up: four tiles of 8+8 columns, 128 rows of h per wave; LayerNorm is applied to the sums")
    a("v_lshlrev_b32 v60, 6, v60"); a("v_lshrrev_b32 v49, 1, v61"); a("v_lshl_add_u32 v60, v49, 15, v60")
    a("v_and_b32 v49, 1, v61"); a("v_lshl_add_u32 v60, v49, 3, v60")
    a("s_lshl_b32 s58, s3, 13"); a(f"s_add_u32 s58, s58, {L_W}"); a("v_add_u32 v60, s58, v60")
    for r in range(4): a(f"v_mov_b32 v{112+r}, 0x3f803f80")
    C("h fragment address v62 = (g>>1)*512 + (b>>1)*128 + (b&1)*64 + (g&1)*32 + half*16")
    a("v_lshrrev_b32 v62, 1, v74"); a("v_lshlrev_b32 v62, 9, v62"); a("v_bfe_u32 v49, v75, 1, 2"); a("v_lshl_add_u32 v62, v49, 7, v62")
    a("v_and_b32 v49, 1, v75"); a("v_lshl_add_u32 v62, v49, 6, v62"); a("v_and_b32 v49, 1, v74"); a("v_lshl_add_u32 v62, v49, 5, v62")
    a("v_lshrrev_b32 v49, 3, v75"); a("v_lshl_add_u32 v62, v49, 4, v62")
    a(f"s_mov_b32 s58, {L_DUMP-L_T2}"); a("v_mad_u32_u24 v26, v49, s58, v26")
    a("s_lshl_b32 s58, s3, 11"); a("v_add_u32 v63, s58, v63")
    a("v_lshrrev_b32 v49, 1, v74"); a("v_lshlrev_b32 v49, 2, v49"); a("v_lshlrev_b32 v61, 5, v27"); a("v_add_u32 v49, v49, v61")
    a("s_lshl_b32 s58, s3, 3"); a("v_add_u32 v49, s58, v49")
    a("s_lshl_b32 s59, s3, 11"); a(f"s_add_u32 s59, s59, {WS_H}")
    a("s_waitcnt vmcnt(0)")
    stamp(13)
    for t in range(4):
        for u in range(2):
            for hf in range(2):
                for sec in range(2): trread(128 + 16*t + 8*u + 4*hf + 2*sec, "v60", (64*u + 8*hf + 4*sec) * 64 + 16*t)
        if t: a("s_waitcnt lgkmcnt(6)")
    a("s_waitcnt lgkmcnt(0)")
    for k in range(4):
        for t in range(4): mfma(224 + 4*t, f"v[{128+16*t+4*k}:{131+16*t+4*k}]", "v[112:115]", k == 0)
    for t in range(4): a(f"ds_write_b128 v26, v[{224+4*t}:{227+4*t}] offset:{L_CS+2048*t}")
    def ldH(b): return [f"buffer_load_dwordx4 v[{b+4*u}:{b+3+4*u}], v62, s[32:35], s59 offen offset:{u*1024} sc1" for u in range(2)]
    def useH(b):
        n = 0
        for u in range(2):
            for t in range(4):
                for hf in range(2):
                    mfma(192 + 8*t + 4*hf, f"v[{128+16*t+8*u+4*hf}:{131+16*t+8*u+4*hf}]", f"v[{b+4*u}:{b+3+4*u}]", u == 0)
                    if n < 8:
                        a(f"v_dot2_f32_bf16 v52, v{b+n}, v112, {'0' if n == 0 else 'v52'}")
                        a(f"v_dot2_f32_bf16 v53, v{b+n}, v{b+n}, {'0' if n == 0 else 'v53'}")
                    if n == 9:
                        for r in range(2): a(f"v_add_f32_dpp v{52+r}, v{52+r}, v{52+r} row_ror:8 row_mask:0xf bank_mask:0xf")
                    if n == 11: a("v_permlane32_swap_b32 v52, v53"); a("v_add_f32 v52, v52, v53"); a("v_mov_b32 v53, v52")
                    if n == 13: a("v_permlane16_swap_b32 v52, v53"); a("v_add_f32 v52, v52, v53"); a(f"ds_write_b32 v49, v52 offset:{L_ST}")
                    n += 1
    poll2("L_pH", ldH, 8, (76, 84), useH)
    stamp(10)
    for t in range(4):
        for r in range(4): a(f"v_add_f32_dpp v{192+8*t+r}, v{196+8*t+r}, v{192+8*t+r} row_ror:8 row_mask:0xf bank_mask:0xf")
        a(f"ds_write_b128 v26, v[{192+8*t}:{195+8*t}] offset:{L_T2+2048*t}")
    a("s_waitcnt lgkmcnt(0)"); a("s_barrier")
    for k in range(2): a(f"ds_read_b128 v[{92+4*k}:{95+4*k}], v61 offset:{L_ST+16*k}")
    for w in range(4): a(f"ds_read_b128 v[{224+4*w}:{227+4*w}], v63 offset:{L_CS+512*w}")
    for w in range(4): a(f"ds_read_b128 v[{116+4*w}:{119+4*w}], v63 offset:{L_T2+512*w}")
    a("s_waitcnt lgkmcnt(8)")
    for k in range(2): a(f"v_add_f32 v{92+k}, v{92+k}, v{94+k}"); a(f"v_add_f32 v{96+k}, v{96+k}, v{98+k}")
    a("v_add_f32 v52, v92, v96"); a("v_add_f32 v53, v93, v97")
    a(f"v_mul_f32 v52, {f32(1/512)}, v52"); a(f"v_mul_f32 v53, {f32(1/512)}, v53")
    a("v_fma_f32 v53, -v52, v52, v53"); a("v_max_f32 v53, 0, v53")
    bf16r("v53"); bf16r("v52")
    a(f"v_add_f32 v53, {f32(1e-5)}, v53"); bf16r("v53")
    a("v_sqrt_f32 v53, v53")
    a("s_waitcnt lgkmcnt(4)")
    for r in range(4): a(f"v_add_f32 v{224+r}, v{224+r}, v{228+r}"); a(f"v_add_f32 v{232+r}, v{232+r}, v{236+r}")
    bf16r("v53"); a("v_rcp_f32 v53, v53")
    for r in range(4): a(f"v_add_f32 v{108+r}, v{224+r}, v{232+r}")
    a("s_waitcnt lgkmcnt(0)")
    for r in range(4): a(f"v_add_f32 v{116+r}, v{116+r}, v{120+r}"); a(f"v_add_f32 v{124+r}, v{124+r}, v{128+r}")
    for r in range(4): a(f"v_add_f32 v{116+r}, v{116+r}, v{124+r}")
    for r in range(4): a(f"v_fma_f32 v{116+r}, -v52, v{108+r}, v{116+r}")
    for r in range(4): a(f"v_mul_f32 v{116+r}, v{116+r}, v53")
    for r in range(2): a(f"v_cvt_pk_bf16_f32 v{120+r}, v{116+2*r}, v{117+2*r}")
    for r in range(2): a(f"v_permlane32_swap_b32 v{120+r}, v{122+r}")
    for r in range(2):
        a(f"v_lshlrev_b32 v{116+2*r}, 16, v{120+r}"); a(f"v_and_b32 v{117+2*r}, 0xffff0000, v{120+r}")
        a(f"v_lshlrev_b32 v{124+2*r}, 16, v{122+r}"); a(f"v_and_b32 v{125+2*r}, 0xffff0000, v{122+r}")
    for r in range(4): a(f"v_max_f32 v{116+r}, 0, v{116+r}")
    for r in range(4): a(f"v_mul_f32 v{116+r}, v{116+r}, v{124+r}")
    for r in range(2): a(f"v_cvt_pk_bf16_f32 v{120+r}, v{116+2*r}, v{117+2*r}")
    a("s_mov_b64 exec, 0x00ff00ff")
    for r in range(2): a(f"v_min_u32 v{120+r}, -2, v{120+r}")
    a("buffer_store_dwordx2 v[120:121], v70, s[32:35], 0 offen sc1")
    stamp(11)
    a("s_branch L_fin")

    C("---- reducer: sum the 32 heads' partials of 2 rows x 32 columns, add x, publish h")
    a("L_s2:")
    a("v_lshlrev_b32 v62, 4, v1")
    a("s_lshl_b32 s59, s89, 13"); a("s_add_u32 s92, s59, 4096")
    a("v_lshlrev_b32 v50, 16, v71"); a("v_and_b32 v51, 0xffff0000, v71")
    def ld8(b): return [f"buffer_load_dwordx4 v[{b+4*u}:{b+3+4*u}], v62, s[32:35], {'s59' if u < 4 else 's92'} offen offset:{(u&3)*1024} sc1" for u in range(8)]
    def useP(b):
        for r in range(16): a(f"v_add_f32 v{108+r}, v{b+r}, v{b+16+r}")
    poll2("L_pP", ld8, 32, (76, 128), useP)
    stamp(8)
    for st in (8, 4):
        for r in range(st): a(f"v_add_f32 v{108+r}, v{108+r}, v{108+st+r}")
    a("v_permlane32_swap_b32 v108, v110"); a("v_permlane32_swap_b32 v109, v111")
    a("v_add_f32 v108, v108, v110"); a("v_add_f32 v109, v109, v111")
    a("v_mov_b32 v110, v108"); a("v_mov_b32 v111, v109")
    a("v_permlane16_swap_b32 v108, v110"); a("v_permlane16_swap_b32 v109, v111")
    a("v_add_f32 v108, v108, v110"); a("v_add_f32 v109, v109, v111")
    a("v_cvt_pk_bf16_f32 v108, v108, v109")
    a("v_and_b32 v109, 0xffff0000, v108"); a("v_lshlrev_b32 v108, 16, v108")
    a("v_add_f32 v108, v108, v50"); a("v_add_f32 v109, v109, v51")
    a("v_cvt_pk_bf16_f32 v108, v108, v109")
    a("s_mov_b32 exec_lo, 0xffff"); a("s_mov_b32 exec_hi, 0xffff")
    a("v_min_u32 v108, -2, v108")
    a("buffer_store_dword v108, v69, s[32:35], 0 offen sc1")
    stamp(9)
    a("s_branch L_fin")

    C("---- 16 output columns, 448 rows of W_down per wave")
    a("L_s4:")
    a("v_lshlrev_b32 v60, 5, v60"); a("v_lshl_add_u32 v60, v61, 3, v60")
    a(f"s_mul_i32 s58, s3, {448*32}"); a(f"s_add_u32 s58, s58, {L_W}"); a("v_add_u32 v60, s58, v60")
    C("h address v49 = H + ((s'>>1)*4 + (b>>1))*128 + (b&1)*64 + (s'&1)*32 + g*8 ; out address v50 = b*1024 + s'*32 + g*8")
    a("v_lshrrev_b32 v49, 1, v27"); a("v_lshlrev_b32 v49, 7, v49"); a("v_and_b32 v50, 1, v27"); a("v_lshl_add_u32 v49, v50, 6, v49")
    a("v_lshl_add_u32 v49, v74, 3, v49")
    a("s_lshr_b32 s58, s89, 1"); a("s_lshl_b32 s58, s58, 9"); a("s_and_b32 s92, s89, 1"); a("s_lshl_b32 s92, s92, 5"); a("s_add_u32 s58, s58, s92")
    a(f"s_add_u32 s58, s58, {WS_H}"); a("v_add_u32 v49, s58, v49")
    a("v_lshlrev_b32 v50, 10, v27"); a("v_lshl_add_u32 v50, v74, 3, v50"); a("s_lshl_b32 s58, s89, 5"); a("v_add_u32 v50, s58, v50")
    a(f"s_mul_i32 s59, s3, {7*1024}"); a(f"s_add_u32 s59, s59, {WS_G}"); a("s_add_u32 s92, s59, 4096")
    a("v_lshlrev_b32 v62, 4, v1")
    a("s_waitcnt vmcnt(0)")
    stamp(13)
    for u in range(7):
        for hf in range(2):
            for sec in range(2): trread(128 + 8*u + 4*hf + 2*sec, "v60", (64*u + 8*hf + 4*sec) * 32)
        if u in (2, 5): a("s_waitcnt lgkmcnt(4)")
    a("s_waitcnt lgkmcnt(0)")
    def ldG(b): return ld8(b)[:7] + [f"buffer_load_dwordx2 v[{b+28}:{b+29}], v49, s[32:35], 0 offen sc1"]
    def useG(b):
        for u in range(7):
            for hf in range(2): mfma(108 + 4*hf, f"v[{128+8*u+4*hf}:{131+8*u+4*hf}]", f"v[{b+4*u}:{b+3+4*u}]", u == 0)
        for r in range(2):
            a(f"v_lshlrev_b32 v{116+2*r}, 16, v{b+28+r}"); a(f"v_and_b32 v{117+2*r}, 0xffff0000, v{b+28+r}")
    poll2("L_pG", ldG, 30, (76, 192), useG)
    stamp(10)
    for r in range(4): a(f"v_add_f32_dpp v{108+r}, v{112+r}, v{108+r} row_ror:8 row_mask:0xf bank_mask:0xf")
    a("s_mov_b32 exec_lo, 0x00ff00ff"); a("s_mov_b32 exec_hi, 0x00ff00ff")
    a(f"ds_write_b128 v26, v[108:111] offset:{L_TX}")
    a("s_waitcnt lgkmcnt(0)"); a("s_barrier")
    a("s_cmp_eq_u32 s3, 3"); a("s_cbranch_scc0 L_fin")
    for w in range(4): a(f"ds_read_b128 v[{128+4*w}:{131+4*w}], v63 offset:{L_TX+512*w}")
    a("s_waitcnt lgkmcnt(0)")
    for r in range(4):
        a(f"v_add_f32 v{128+r}, v{128+r}, v{132+r}"); a(f"v_add_f32 v{136+r}, v{136+r}, v{140+r}")
    for r in range(4): a(f"v_add_f32 v{128+r}, v{128+r}, v{136+r}")
    for r in range(2): a(f"v_cvt_pk_bf16_f32 v{132+r}, v{128+2*r}, v{129+2*r}")
    for r in range(2):
        a(f"v_lshlrev_b32 v{128+2*r}, 16, v{132+r}"); a(f"v_and_b32 v{129+2*r}, 0xffff0000, v{132+r}")
    for r in range(4): a(f"v_add_f32 v{128+r}, v{128+r}, v{116+r}")
    for r in range(2): a(f"v_cvt_pk_bf16_f32 v{132+r}, v{128+2*r}, v{129+2*r}")
    a("buffer_store_dwordx2 v[132:133], v50, s[36:39], 0 offen")
    stamp(11)
    a("L_fin:")
    if probe is not None:
        a(f"s_cmp_eq_u32 s2, {pwg}"); a("s_cbranch_scc0 L_end"); a("s_cmp_eq_u32 s3, 3"); a("s_cbranch_scc0 L_end")
        if probe == 0: a("s_mov_b32 s20, 0")
        a("s_add_u32 s20, s20, 10000")
        a("L_probe:")
        a("s_sleep 4"); a("s_memrealtime s[94:95]"); a("s_waitcnt lgkmcnt(0)"); a("s_sub_u32 s94, s94, s18")
        a("s_cmp_lt_u32 s94, s20"); a("s_cbranch_scc1 L_probe")
    if stamps:
        a("s_mov_b64 exec, -1")
        stamp(12)
        a("s_getreg_b32 s92, hwreg(HW_REG_XCC_ID)"); a("v_writelane_b32 v73, s92, 15")
        a("s_lshl_b32 s58, s2, 2"); a("s_add_u32 s58, s58, s3"); a("s_lshl_b32 s58, s58, 7"); a(f"s_add_u32 s58, s58, {WS_ST}")
        a("v_lshlrev_b32 v48, 2, v1"); a("s_mov_b32 exec_hi, 0")
        a("buffer_store_dword v73, v48, s[32:35], s58 offen")
        if "dbgout" in xp:
            a("s_cmp_eq_u32 s2, 229"); a("s_cbranch_scc0 L_end"); a("s_cmp_eq_u32 s3, 3"); a("s_cbranch_scc0 L_end")
            a("v_subrev_u32 v73, s18, v73"); a("s_mov_b64 exec, 0xffff")
            a("global_store_dword v48, v73, s[84:85] sc1")
    a("L_end:")
    a("s_endpgm")
    body = a.finish()
    head_ = HEADER + f"; @launch grid=(256,1,1) block=(256,1,1) lds={L_SIZE}\n" + '.amdgcn_target "amdgcn-amd-amdhsa--gfx950"\n.text\n' + \
        f".globl {NAME}\n.p2align 8\n.type {NAME},@function\n"
    tail = f""".section .rodata,"a"
.p2align 6
.amdhsa_kernel {NAME}
  .amdhsa_next_free_vgpr 384
  .amdhsa_next_free_sgpr 102
  .amdhsa_accum_offset 256
  .amdhsa_group_segment_fixed_size 0
  .amdhsa_kernarg_size 96
  .amdhsa_user_sgpr_count 2
  .amdhsa_user_sgpr_kernarg_segment_ptr 1
  .amdhsa_system_sgpr_workgroup_id_x 1
.end_amdhsa_kernel
"""
    return head_ + body + tail

if __name__ == "__main__":
    kw = eval("dict(%s)" % (sys.argv[2] if len(sys.argv) > 2 else ""))
    open(sys.argv[1], "w").write(gen(**kw))
```

```python
import sys, struct
sys.path.insert(0, __file__.rsplit('/', 1)[0])
from asmlib import Asm

NAME = "sequential_preLN__mha_block_cached__glu_gated_reglu__decode_kernel"
HEADER = open(__file__.rsplit('/', 1)[0] + '/header.txt').read()

def f32(x): return "0x%08x" % struct.unpack('<I', struct.pack('<f', x))[0]

WS_P, WS_H, WS_G, WS_ST, WS_SIZE = 0, 0x80000, 0x82000, 0x100000, 0x140000
L_QP, L_OP, L_ML, L_ST, L_TX, L_T2, L_CS, L_W, L_DUMP, L_SIZE = 0, 2048, 4096, 4160, 4608, 8192, 16384, 24576, 90112, 106496
RING = 128
NB = 32
SPIN = 200000

def gen(D=5, hi=1, pol="nt", wpol="", fpol="", early=(2, 7, 12, 17), n1=5, kq=2, nbar=2, nA=3, nB=3, D1=None,
        stag=4, ctl=1, slack=130, eps=0, head=(300, 350), hiu=(4, 4), cal=3, stamps=0, xp=(), probe=None, pwg=130, vpol=None, pre=4):
    a = Asm()
    vm = []
    def C(t): a("; " + t)
    def vwait(tag):
        n = len(vm) - 1 - vm.index(tag)
        a(f"s_waitcnt vmcnt({min(n, 63)})")
    def stamp(k):
        if probe == k:
            a("s_memrealtime s[94:95]"); a("s_waitcnt lgkmcnt(0)"); a("s_sub_u32 s20, s94, s18")
        if stamps == 2 and k not in (6, 12): return
        if stamps == 3 and k not in (3, 4, 6, 12): return
        if stamps:
            a("s_memrealtime s[94:95]"); a("s_waitcnt lgkmcnt(0)"); a(f"v_writelane_b32 v73, s94, {k}")
    def lapstamp(off):
        if stamps == 3:
            a("s_memrealtime s[94:95]"); a(f"s_add_u32 m0, s56, {off}"); a("s_waitcnt lgkmcnt(0)"); a("v_writelane_b32 v73, s94, m0")
    def allred(op, v, t):
        for n in (8, 4, 2, 1): a(f"{op}_dpp {v}, {v}, {v} row_ror:{n} row_mask:0xf bank_mask:0xf")
        for sw in ("v_permlane16_swap_b32", "v_permlane32_swap_b32"):
            a(f"v_mov_b32 {t}, {v}"); a(f"{sw} {v}, {t}"); a(f"{op} {v}, {v}, {t}")
    def bf16r(v):
        a(f"v_cvt_pk_bf16_f32 {v}, {v}, {v}"); a(f"v_and_b32 {v}, 0xffff0000, {v}")
    def srd(d, lo, hi_, size, add=None):
        if add is None:
            a(f"s_mov_b32 s{d}, s{lo}"); a(f"s_mov_b32 s{d+1}, s{hi_}")
        else:
            a(f"s_add_u32 s{d}, s{lo}, {add}"); a(f"s_addc_u32 s{d+1}, s{hi_}, 0")
        a(f"s_mov_b32 s{d+2}, {size}"); a(f"s_mov_b32 s{d+3}, 0x20000")
    cur = [pol]
    def ring(j): j %= NB; return f"v[{RING+4*j}:{RING+4*j+3}]"
    def sload(j):
        s, b = ("s[12:15]", "s55") if j >= NB else ("s[8:11]", "s54")
        j %= NB
        a(f"buffer_load_dwordx4 {ring(j)}, v{2+(j>>2)}, {s}, {b} offen offset:{(j&3)*1024} {cur[0]}")
    def masks(t, src, lane):
        for r in range(4):
            a(f"v_and_b32_dpp v{18+4*(t&1)+r}, {src}, v{14+r} row_newbcast:{lane} row_mask:0xf bank_mask:0xf")
    def mop(t): return f"v[{18+4*(t&1)}:{21+4*(t&1)}]"
    def mfma(d, x, y, first): a(f"v_mfma_f32_16x16x32_bf16 v[{d}:{d+3}], {x}, {y}, {'0' if first else 'v[%d:%d]' % (d, d+3)}")
    def bitrev(t): return ((t & 1) << 3) | ((t & 2) << 1) | ((t & 4) >> 1) | ((t & 8) >> 3)
    def check(regs, ok):
        r = list(regs)
        a(f"v_max3_u32 v48, v{r[0]}, v{r[1]}, v{r[2]}"); r = r[3:]
        while len(r) >= 2:
            a(f"v_max3_u32 v48, v48, v{r[0]}, v{r[1]}"); r = r[2:]
        if r: a(f"v_max_u32 v48, v48, v{r[0]}")
        a("v_cmp_eq_u32 vcc, -1, v48")
        a(f"s_cbranch_vccz {ok}")
    def poll2(label, loads, nreg, bases, use):
        n = len(loads(bases[0]))
        a(f"s_mov_b32 s88, {SPIN}")
        for l in loads(bases[0]): a(l)
        if stag: a(f"s_sleep {stag}")
        a(f"{label}:")
        for l in loads(bases[1]): a(l)
        a(f"s_waitcnt vmcnt({n})")
        check(range(bases[0], bases[0] + nreg), f"{label}_A")
        for l in loads(bases[0]): a(l)
        a(f"s_waitcnt vmcnt({n})")
        check(range(bases[1], bases[1] + nreg), f"{label}_B")
        a("s_sub_u32 s88, s88, 1")
        a(f"s_cbranch_scc0 {label}")
        a(f"{label}_B:")
        use(bases[1])
        a(f"s_branch {label}_done")
        a(f"{label}_A:")
        use(bases[0])
        a(f"{label}_done:")
    def trread(dst, addr, off): a(f"ds_read_b64_tr_b16 v[{dst}:{dst+1}], {addr} offset:{off}")

    a(f"{NAME}:")
    a("s_cmp_ge_u32 s2, 256"); a("s_cbranch_scc1 L_end")
    a("s_memrealtime s[18:19]")
    a("s_load_dwordx16 s[64:79], s[0:1], 0")
    a("s_load_dwordx8 s[80:87], s[0:1], 64")
    C("s3 wave, s4 batch row, s5 head; v1 lane, v74 lane>>4 (g), v75 lane&15 (i)")
    a("v_lshrrev_b32 v1, 6, v0")
    a("v_readfirstlane_b32 s3, v1")
    a("v_and_b32 v1, 63, v0")
    a("s_lshr_b32 s4, s2, 5"); a("s_and_b32 s5, s2, 31")
    a("v_lshrrev_b32 v74, 4, v1"); a("v_and_b32 v75, 15, v1")
    a("v_lshlrev_b32 v48, 4, v1")
    a("s_lshl_b32 s58, s3, 12"); a("v_add_u32 v2, s58, v48")
    for k in range(1, 8): a(f"v_add_u32 v{2+k}, {k*16384}, v2")
    a("s_lshl_b32 s58, s3, 8"); a("v_lshlrev_b32 v49, 3, v75"); a("v_lshl_add_u32 v49, v74, 1, v49"); a("v_add_u32 v49, s58, v49")
    a("v_lshrrev_b32 v51, 1, v74")
    C("wq lane offset v58 = (128w+g)*8192 + i*16 ; wo lane offset v59 = g*1024 + w*256 + i*16")
    a("s_lshl_b32 s58, s3, 20"); a("v_lshlrev_b32 v58, 13, v74"); a("v_lshl_add_u32 v58, v75, 4, v58"); a("v_add_u32 v58, s58, v58")
    a("s_lshl_b32 s58, s3, 8"); a("v_lshlrev_b32 v59, 10, v74"); a("v_lshl_add_u32 v59, v75, 4, v59"); a("v_add_u32 v59, s58, v59")
    a("s_lshl_b32 s57, s4, 10"); a("s_lshl_b32 s58, s5, 8"); a("s_lshl_b32 s59, s2, 20")
    a("s_sub_u32 s92, 0x400000, s58")
    a("s_mov_b32 s54, 0")
    a("s_waitcnt lgkmcnt(0)")
    if stamps: a("v_mov_b32 v73, 0"); a("v_writelane_b32 v73, s18, 0")
    kiss = 0
    def kload():
        nonlocal kiss
        sload(kiss - kbase); vm.append(f"k{kiss}"); kiss += 1
    kbase = 0
    srd(8, 66, 67, 0x100000, "s59")
    kload()
    srd(28, 64, 65, 8192)
    a("buffer_load_dwordx4 v[52:55], v48, s[28:31], s57 offen"); vm.append("x")
    a("buffer_load_ushort v56, v49, s[28:31], s57 offen"); vm.append("xc0")
    a("buffer_load_ushort v57, v49, s[28:31], s57 offen offset:128"); vm.append("xc1")
    srd(20, 70, 71, "s92", "s58")
    wiss = 0
    def wqload():
        nonlocal wiss
        a(f"s_mov_b32 s58, {wiss*32768}")
        a(f"buffer_load_dwordx4 a[{4*wiss}:{4*wiss+3}], v58, s[20:23], s58 offen {wpol}"); vm.append(f"wq{wiss}"); wiss += 1
    for j in range(n1):
        if j: kload()
        wqload(); wqload()
    a("s_add_u32 s16, s68, s59"); a("s_addc_u32 s17, s69, 0")
    a("s_mov_b32 s12, s8"); a("s_mov_b32 s13, s9"); a("s_mov_b32 s14, 0x100000"); a("s_mov_b32 s15, 0x20000")
    a("s_lshl_b32 s58, s5, 17"); srd(24, 72, 73, 0x20000, "s58")
    srd(32, 86, 87, WS_SIZE); srd(36, 82, 83, 8192)
    srd(40, 76, 77, 512*3584); srd(44, 78, 79, 512*3584)
    C("role s7 / index s89: 1 gate+up tiles (wg<56), 2 reducer (64<=wg<128), 3 output slice (wg>=224), 0 none")
    a("s_and_b32 s58, s2, 7"); a("s_lshr_b32 s92, s2, 3")
    a("s_mul_i32 s89, s58, 7"); a("s_add_u32 s89, s89, s92")
    a("s_cmp_lt_u32 s2, 56"); a("s_cselect_b32 s7, 1, 0")
    a("s_lshl_b32 s58, s58, 2"); a("s_add_u32 s58, s58, s92"); a("s_sub_u32 s58, s58, 28")
    a("s_cmp_ge_u32 s2, 224"); a("s_cselect_b32 s89, s58, s89"); a("s_cselect_b32 s7, 3, s7")
    a("s_sub_u32 s58, s2, 64"); a("s_cmp_lt_u32 s58, 64"); a("s_cselect_b32 s89, s58, s89"); a("s_cselect_b32 s7, 2, s7")
    a("s_lshl_b32 s6, s3, 2"); a("s_add_u32 s6, s6, s7")
    C("P store offset v68 = ((4w + (i>>2))*4 + (b>>1))*8192 + (2h + (b&1))*128 + (i&3)*32 + g*16")
    a("v_lshrrev_b32 v68, 2, v75"); a("v_lshlrev_b32 v68, 15, v68"); a("v_lshl_add_u32 v68, v74, 4, v68")
    a("v_and_b32 v60, 3, v75"); a("v_lshl_add_u32 v68, v60, 5, v68")
    a("s_lshl_b32 s58, s3, 17"); a("s_lshr_b32 s92, s4, 1"); a("s_lshl_b32 s92, s92, 13"); a("s_add_u32 s58, s58, s92")
    a("s_lshl_b32 s92, s5, 8"); a("s_add_u32 s58, s58, s92")
    a("s_and_b32 s92, s4, 1"); a("s_lshl_b32 s92, s92, 7"); a("s_add_u32 s58, s58, s92"); a("v_add_u32 v68, s58, v68")
    C("H store offset v69 = H + rho*128 + i*8 + (g>>1)*4 ; x offset v50 = (2(rho&3) + (i>>3))*1024 + (rho>>2)*64 + (i&7)*8 + (g>>1)*4")
    a("v_lshlrev_b32 v69, 3, v75"); a("v_lshl_add_u32 v69, v51, 2, v69")
    a("v_lshrrev_b32 v50, 3, v75"); a("v_lshlrev_b32 v50, 10, v50"); a("v_and_b32 v60, 7, v75"); a("v_lshl_add_u32 v50, v60, 3, v50")
    a("v_lshl_add_u32 v50, v51, 2, v50")
    a("s_and_b32 s58, s89, 3"); a("s_lshl_b32 s58, s58, 11"); a("s_lshr_b32 s92, s89, 2"); a("s_lshl_b32 s92, s92, 6"); a("s_add_u32 s58, s58, s92")
    a("v_add_u32 v50, s58, v50")
    a("s_lshl_b32 s58, s89, 7"); a(f"s_add_u32 s58, s58, {WS_H}"); a("v_add_u32 v69, s58, v69")
    a("buffer_load_dword v71, v50, s[28:31], 0 offen"); vm.append("xr")
    C("G store offset v70 = G + (4*s89 + w)*128 + i*16 + g*8")
    a("v_lshlrev_b32 v70, 4, v75"); a("v_lshl_add_u32 v70, v74, 3, v70")
    a("s_lshl_b32 s58, s89, 2"); a("s_add_u32 s58, s58, s3"); a("s_lshl_b32 s58, s58, 7"); a(f"s_add_u32 s58, s58, {WS_G}"); a("v_add_u32 v70, s58, v70")
    C("the reducers mark every hand-off line empty (all ones): own P lines, own H line, four G lines")
    a("s_cmp_eq_u32 s7, 2"); a("s_cbranch_scc0 L_noclr")
    for r in range(4): a(f"v_mov_b32 v{60+r}, -1")
    a("s_lshl_b32 s58, s89, 13"); a("s_lshl_b32 s92, s3, 11"); a("s_add_u32 s58, s58, s92")
    a("buffer_store_dwordx4 v[60:63], v48, s[32:35], s58 offen sc1")
    a("buffer_store_dwordx4 v[60:63], v48, s[32:35], s58 offen offset:1024 sc1")
    a("s_mov_b64 exec, 0x00ff00ff")
    a("buffer_store_dwordx2 v[60:61], v70, s[32:35], 0 offen sc1")
    a("s_cmp_eq_u32 s3, 0"); a("s_cbranch_scc0 L_noclr")
    a("s_mov_b32 exec_lo, 0xffff"); a("s_mov_b32 exec_hi, 0xffff")
    a("buffer_store_dword v60, v69, s[32:35], 0 offen sc1")
    a("L_noclr:")
    a("s_mov_b64 exec, -1")
    for j in range(nA): kload()
    stamp(1)
    a("s_mov_b32 s60, 0xcccccccc"); a("s_mov_b32 s61, 0xcccccccc"); a("s_mov_b32 s62, 0xaaaaaaaa"); a("s_mov_b32 s63, 0xaaaaaaaa")
    a(f"s_mov_b32 s90, {f32(128 ** -0.5)}"); a(f"s_mov_b32 s91, {f32(1.4426950408889634)}")
    C("selector masks v14..17: lane (g,m): m<8 and m>>1==r -> m&1 ? 0xffff0000 : 0xffff")
    a("v_and_b32 v60, 1, v75"); a("v_lshlrev_b32 v60, 4, v60"); a("v_mov_b32 v61, 0xffff"); a("v_lshlrev_b32 v60, v60, v61")
    a("v_lshrrev_b32 v61, 1, v75")
    for r in range(4):
        a(f"v_cmp_eq_u32 vcc, {r}, v61"); a(f"v_cndmask_b32 v{14+r}, 0, v60, vcc")
    C("---- LayerNorm of x[b]")
    vwait("x")
    for j in range(nB): kload()
    for k in range(4):
        a(f"v_lshlrev_b32 v{76+2*k}, 16, v{52+k}"); a(f"v_and_b32 v{77+2*k}, 0xffff0000, v{52+k}")
    a("v_add_f32 v84, v76, v77")
    for k in range(2, 8): a(f"v_add_f32 v84, v84, v{76+k}")
    allred("v_add_f32", "v84", "v85")
    a(f"v_mul_f32 v84, {f32(1/512)}, v84")
    for k in range(8): a(f"v_sub_f32 v{76+k}, v{76+k}, v84")
    a("v_mul_f32 v86, v76, v76")
    for k in range(1, 8): a(f"v_fmac_f32 v86, v{76+k}, v{76+k}")
    allred("v_add_f32", "v86", "v85")
    a(f"v_mul_f32 v86, {f32(1/512)}, v86")
    bf16r("v84"); bf16r("v86")
    a(f"v_add_f32 v86, {f32(1e-5)}, v86"); bf16r("v86")
    a("v_sqrt_f32 v86, v86"); bf16r("v86"); a("v_rcp_f32 v86, v86")
    vwait("xc1")
    for k in range(2):
        a(f"v_lshlrev_b32 v{56+k}, 16, v{56+k}"); a(f"v_sub_f32 v{56+k}, v{56+k}, v84"); bf16r(f"v{56+k}")
        a(f"v_mul_f32 v{56+k}, v{56+k}, v86"); a(f"v_cvt_pk_bf16_f32 v{66+k}, v{56+k}, v{56+k}")
    stamp(2)
    C("---- q = xn @ wq[:, head], 128 rows per wave")
    masks(0, "v66", 0)
    for t in range(32):
        vwait(f"wq{t}")
        mfma(28, mop(t), f"a[{4*t}:{4*t+3}]", t == 0)
        if wiss < 32: wqload()
        if int((t + 1) / kq) > int(t / kq) and kiss < NB: kload()
        if t < 31: masks(t + 1, "v66" if t + 1 < 16 else "v67", (t + 1) & 15)
    for j in range(nbar):
        if kiss < NB: kload()
    a("v_lshlrev_b32 v27, 5, v75"); a("v_lshl_add_u32 v26, v74, 4, v27"); a("s_lshl_b32 s58, s3, 9"); a("v_add_u32 v26, s58, v26")
    a("s_mov_b32 exec_hi, 0")
    a(f"ds_write_b128 v26, v[28:31] offset:{L_QP}")
    a("s_mov_b64 exec, -1")
    a("s_waitcnt lgkmcnt(0)"); a("s_barrier")
    for w in range(4):
        for hh in range(2): a(f"ds_read_b128 v[{76+8*w+4*hh}:{79+8*w+4*hh}], v27 offset:{L_QP+512*w+16*hh}")
    a("s_waitcnt lgkmcnt(0)")
    for k in range(8):
        a(f"v_add_f32 v{76+k}, v{76+k}, v{84+k}"); a(f"v_add_f32 v{92+k}, v{92+k}, v{100+k}")
    for k in range(8): a(f"v_add_f32 v{76+k}, v{76+k}, v{92+k}")
    for k in range(4): a(f"v_cvt_pk_bf16_f32 v{10+k}, v{76+2*k}, v{77+2*k}")
    a("v_mov_b32 v64, 0xff800000"); a("v_mov_b32 v65, 0")
    stamp(3)

    def kconsume(i):
        t = i & 15
        x = f"v{48 + (t & 1)}"
        base = RING + 4 * i
        a(f"v_dot2_f32_bf16 {x}, v{base}, v10, 0")
        for r in range(1, 4): a(f"v_dot2_f32_bf16 {x}, v{base+r}, v{10+r}, {x}")
        if t & 1:
            d = f"v{50 + ((t >> 1) & 1)}"
            a(f"v_add_f32_dpp {d}, v48, v48 row_ror:8 row_mask:0xf bank_mask:0x3")
            a(f"v_add_f32_dpp {d}, v49, v49 row_ror:8 row_mask:0xf bank_mask:0xc")
        if t & 3 == 3:
            d = f"v{52 + ((t >> 2) & 1)}"
            a(f"v_add_f32_dpp {d}, v50, v50 row_half_mirror row_mask:0xf bank_mask:0x5")
            a(f"v_add_f32_dpp {d}, v51, v51 row_half_mirror row_mask:0xf bank_mask:0xa")
        if t & 7 == 7:
            d = f"v{54 + ((t >> 3) & 1)}"
            a("v_add_f32_dpp v52, v52, v52 quad_perm:[2,3,0,1] row_mask:0xf bank_mask:0xf")
            a("v_add_f32_dpp v53, v53, v53 quad_perm:[2,3,0,1] row_mask:0xf bank_mask:0xf")
            a(f"v_cndmask_b32 {d}, v52, v53, s[60:61]")
        if t == 15:
            s = f"v{46 + (i >> 4)}"
            a("v_add_f32_dpp v54, v54, v54 quad_perm:[1,0,3,2] row_mask:0xf bank_mask:0xf")
            a("v_add_f32_dpp v55, v55, v55 quad_perm:[1,0,3,2] row_mask:0xf bank_mask:0xf")
            a(f"v_cndmask_b32 {s}, v54, v55, s[62:63]")
            bf16r(s); a(f"v_mul_f32 {s}, s90, {s}"); bf16r(s)
            a(f"v_max_f32 v64, v64, {s}")
    C("---- lap 0: the keys that arrived while q was formed")
    a(f"s_mov_b32 s55, {NB*4096}")
    left = NB + D - kiss
    early = list(early)
    while early and early[-1] >= NB - (left - len(early)): early.pop()
    sched = early + list(range(NB - (left - len(early)), NB))
    assert len(set(sched)) == left, (sched, left)
    for i in range(NB):
        vwait(f"k{i}")
        if i in sched:
            assert kiss - NB < i
            kload()
        kconsume(i)
    stamp(4)
    C("---- lap 1 also brings in this head's rows of wo")
    a("s_mov_b32 s54, s55"); a(f"s_add_u32 s55, s55, {NB*4096}")
    for k in range(2): a(f"v_mov_b32 v{44+k}, v{46+k}")
    kbase = NB
    for j in range((D1 or D) - D): kload()
    for i in range(NB):
        vwait(f"k{NB+i}")
        if kiss < 2 * NB + D: kload()
        a(f"s_mov_b32 s58, {i*4096}")
        a(f"buffer_load_dwordx4 a[{4*i}:{4*i+3}], v59, s[24:27], s58 offen {wpol}"); vm.append(f"wo{i}")
        kconsume(i)

    def decide(label, br):
        a("s_waitcnt lgkmcnt(0)")
        a("s_sub_u32 s58, s52, s48"); a("s_lshl_b32 s58, s58, 8"); a("s_sub_u32 s58, s58, s49"); a("s_add_u32 s49, s49, s57")
        a("s_sub_u32 s19, s19, 1"); a("s_cmp_ge_i32 s19, 0"); a("s_cselect_b32 s58, 1, s58")
        a("s_cmp_gt_i32 s58, 0")
        a(f"s_cbranch_{br} {label}")
    def segment(tag, mode, k, consume):
        DD = D + (hi if mode else 0); i0 = 16 * k
        if mode:
            a("s_cmp_eq_u32 s51, 1"); a(f"s_cbranch_scc1 {tag}_in")
            for j in range(D, DD): sload(i0 + j)
            a(f"{tag}_in:")
        for i in range(i0, i0 + 16):
            a(f"s_waitcnt vmcnt({DD - 1})")
            skip = (not mode) and i - i0 < hi
            if skip: a("s_cmp_eq_u32 s51, 1"); a(f"s_cbranch_scc1 {tag}_s{i}")
            sload(i + DD)
            if skip: a(f"{tag}_s{i}:")
            if i - i0 == hi: a(f"s_mov_b32 s51, {mode}")
            if i - i0 == 15: a("s_memrealtime s[52:53]")
            consume(i)
    def cal_events(base):
        lo, up = (2, 8) if base == 0 else (8, 16)
        if lo <= cal < up:
            a("s_waitcnt lgkmcnt(0)"); a(f"s_cmp_eq_u32 s56, {cal-base}"); a("s_cselect_b32 s88, s52, s88")
        if lo <= cal + 2 < up:
            a("s_lshl_b32 s58, s6, 4"); a("s_add_u32 s58, s58, s56")
            a(f"s_cmp_eq_u32 s58, {32+cal+2-base}"); a("s_cbranch_scc0 L_norep")
            a("s_waitcnt lgkmcnt(0)")
            a("s_sub_u32 s58, s52, s88"); a("s_min_u32 s58, s58, 0xffff"); a("s_max_u32 s58, s58, 1"); a("s_pack_ll_b32_b16 s58, s52, s58")
            a("v_mov_b32 v61, s58"); a("s_lshl_b32 s58, s89, 2"); a("v_mov_b32 v60, s58"); a("s_mov_b64 exec, 1")
            a("global_store_dword v60, v61, s[84:85] sc1")
            a("s_mov_b64 exec, -1")
            a("L_norep:")
        if lo <= cal + 2 < up and pre:
            a("s_and_b32 s58, s7, 1"); a("s_lshl_b32 s58, s58, 4"); a("s_add_u32 s58, s58, s56")
            a(f"s_cmp_eq_u32 s58, {16+cal+2-base}"); a(f"s_cselect_b32 s19, {pre}, s19")
        x = "K" if base == 0 else "V"
        a("s_cmp_lg_u32 s50, 0"); a(f"s_cbranch_scc0 L_nocal{x}")
        if cal + 3 - base > max(lo - base, 0):
            a(f"s_cmp_ge_u32 s56, {cal+3-base}"); a(f"s_cbranch_scc0 L_nocal{x}")
        a("v_cmp_eq_u32 vcc, 0, v72"); a(f"s_cbranch_vccz L_cal{x}")
        a("v_lshlrev_b32 v60, 2, v1"); a("global_load_dword v72, v60, s[84:85] sc1")
        a(f"s_branch L_nocal{x}")
        a(f"L_cal{x}:")
        a("s_mov_b32 s50, 0")
        if ctl:
            a("s_waitcnt lgkmcnt(0)")
            a("s_mov_b32 s48, s52")
            a("v_lshrrev_b32 v60, 16, v72"); a("v_subrev_u32 v61, s52, v72"); a("v_bfe_i32 v61, v61, 0, 16")
            allred("v_add_u32", "v60", "v62"); allred("v_add_u32", "v61", "v62")
            a("v_readfirstlane_b32 s57, v60"); a("v_readfirstlane_b32 s49, v61")
            if eps > 0: a(f"s_lshr_b32 s58, s57, {eps}"); a("s_add_u32 s57, s57, s58")
            if eps < 0: a(f"s_lshr_b32 s58, s57, {-eps}"); a("s_sub_u32 s57, s57, s58")
            a(f"s_add_u32 s58, s56, {base-cal-2}"); a("s_lshl_b32 s58, s58, 1"); a("s_mul_i32 s58, s58, s57")
            a("s_lshl_b32 s49, s49, 2"); a("s_add_u32 s49, s49, s58")
            a(f"s_mov_b32 s58, {slack*256}")
            a("s_cmp_eq_u32 s7, 1"); a(f"s_cselect_b32 s58, {(slack-head[0])*256}, s58")
            a("s_cmp_eq_u32 s7, 3"); a(f"s_cselect_b32 s58, {(slack-head[1])*256}, s58")
            a("s_add_u32 s49, s49, s58")
        a(f"L_nocal{x}:")
    def laploop(name, head_code, consume):
        a(".p2align 3")
        a(f"{name}:")
        head_code()
        decide(f"{name}_h0", "scc1")
        segment(f"{name}_l0", 0, 0, consume)
        decide(f"{name}_h1", "scc1")
        a(f"{name}_l1:")
        segment(f"{name}_l1", 0, 1, consume)
        a("s_add_u32 s56, s56, 1"); a("s_cmp_lt_u32 s56, 8"); a(f"s_cbranch_scc1 {name}")
        a(f"s_branch {name}_end")
        a(f"{name}_h0:")
        segment(f"{name}_h0", 1, 0, consume)
        decide(f"{name}_l1", "scc0")
        a(f"{name}_h1:")
        segment(f"{name}_h1", 1, 1, consume)
        a("s_add_u32 s56, s56, 1"); a("s_cmp_lt_u32 s56, 8"); a(f"s_cbranch_scc1 {name}")
        a(f"{name}_end:")
    C("s48 time base, s49 deadline (1/256 ticks), s50 reports seen, s51 depth in use, s[52:53] clock, s57 pace, s19 fixed deep segments")
    a("s_mov_b32 s56, 2")
    a("s_memrealtime s[52:53]"); a("s_mov_b32 s51, 0"); a("s_mov_b32 s50, 99"); a("s_mov_b32 s57, 0")
    a("s_mov_b32 s48, s18"); a("s_mov_b32 s49, 0x7fffffff"); a("s_mov_b32 s88, 0"); a("v_mov_b32 v72, 0")
    a("s_cmp_eq_u32 s7, 1"); a(f"s_cselect_b32 s19, {hiu[0]-4}, 0"); a("s_cmp_eq_u32 s7, 3"); a(f"s_cselect_b32 s19, {hiu[1]-4}, s19")
    def khead():
        lapstamp(16)
        a("s_mov_b32 s54, s55"); a(f"s_add_u32 s55, s55, {NB*4096}")
        a("s_cmp_eq_u32 s56, 7")
        a("s_cselect_b32 s12, s16, s12"); a("s_cselect_b32 s13, s17, s13"); a("s_cselect_b32 s55, 0, s55")
        for k in range(14): a(f"v_mov_b32 v{32+k}, v{34+k}")
        cal_events(0)
    laploop("L_k", khead, kconsume)
    stamp(5)
    C("---- maximum of this wave's scores, in log2 units, negated")
    allred("v_max_f32", "v64", "v48")
    a("v_mul_f32 v64, s91, v64"); a("v_sub_f32 v64, 0, v64")
    a("s_mov_b32 s8, s12"); a("s_mov_b32 s9, s13"); a("s_mov_b32 s56, 0")
    for r in range(4): a(f"v_mov_b32 v{28+r}, 0")
    def vhead():
        lapstamp(24)
        a("s_mov_b32 s54, s55"); a(f"s_add_u32 s55, s55, {NB*4096}")
        for k in range(2):
            a(f"v_fma_f32 v{56+k}, v{32+k}, s91, v64"); a(f"v_exp_f32 v{56+k}, v{56+k}")
            a(f"v_add_f32 v65, v65, v{56+k}"); a(f"v_cvt_pk_bf16_f32 v{66+k}, v{56+k}, v{56+k}")
        for k in range(14): a(f"v_mov_b32 v{32+k}, v{34+k}")
        masks(0, "v66", 0)
        cal_events(8)
        a("s_cmp_eq_u32 s56, 7"); a("s_cbranch_scc0 L_nolast")
        allred("v_add_f32", "v65", "v48")
        a("s_lshl_b32 s58, s3, 3"); a("v_mov_b32 v48, s58"); a("s_mov_b64 exec, 1")
        a(f"ds_write_b64 v48, v[64:65] offset:{L_ML}")
        a("s_mov_b64 exec, -1")
        a("s_cmp_eq_u32 s50, 0"); a("s_cbranch_scc1 L_nolast")
        a(f"s_mov_b32 s88, {SPIN}"); a("v_lshlrev_b32 v60, 2, v1")
        a("L_cnt:")
        a("global_load_dword v72, v60, s[84:85] sc1"); a("s_waitcnt vmcnt(0)")
        a("v_cmp_eq_u32 vcc, 0, v72"); a("s_cbranch_vccz L_nolast")
        a("s_sleep 8"); a("s_sub_u32 s88, s88, 1"); a("s_cbranch_scc0 L_cnt")
        a("L_nolast:")
    def vconsume(i):
        mfma(28, mop(i), ring(i), False)
        if i < NB - 1: masks(i + 1, f"v{66 + ((i + 1) >> 4)}", bitrev((i + 1) & 15))
    if vpol is not None: cur[0] = vpol
    laploop("L_v", vhead, vconsume)
    stamp(6)
    C("---- combine the four waves, project through wo, publish the partial row")
    a("v_lshlrev_b32 v27, 4, v75"); a("v_lshl_add_u32 v27, v74, 2, v27")
    a("v_mov_b32 v48, 0")
    a("s_mov_b32 exec_hi, 0")
    a(f"ds_write_b128 v26, v[28:31] offset:{L_OP}")
    a("s_mov_b64 exec, -1")
    a("s_waitcnt lgkmcnt(0)"); a("s_barrier")
    a(f"ds_read_b128 v[76:79], v48 offset:{L_ML}"); a(f"ds_read_b128 v[80:83], v48 offset:{L_ML+16}")
    for w in range(4): a(f"ds_read2st64_b32 v[{84+2*w}:{85+2*w}], v27 offset0:{L_OP//256+2*w} offset1:{L_OP//256+2*w+1}")
    a("s_waitcnt lgkmcnt(4)")
    a("v_min_f32 v48, v76, v78"); a("v_min3_f32 v48, v48, v80, v82")
    for w in range(4): a(f"v_sub_f32 v{76+2*w}, v48, v{76+2*w}")
    for w in range(4): a(f"v_exp_f32 v{76+2*w}, v{76+2*w}")
    a("v_mul_f32 v49, v76, v77")
    for w in range(1, 4): a(f"v_fmac_f32 v49, v{76+2*w}, v{77+2*w}")
    a("v_rcp_f32 v49, v49")
    a("s_waitcnt lgkmcnt(0)")
    for k in range(2):
        a(f"v_mul_f32 v{56+k}, v76, v{84+k}")
        for w in range(1, 4): a(f"v_fmac_f32 v{56+k}, v{76+2*w}, v{84+2*w+k}")
    for k in range(2):
        a(f"v_mul_f32 v{56+k}, v{56+k}, v49"); a(f"v_cvt_pk_bf16_f32 v{66+k}, v{56+k}, v{56+k}")
    masks(0, "v66", 0)
    for t in range(32):
        if t < 31: masks(t + 1, "v66" if t + 1 < 16 else "v67", (t + 1) & 15)
        mfma(28, mop(t), f"a[{4*t}:{4*t+3}]", t == 0)
    a("s_mov_b32 exec_hi, 0")
    for r in range(4): a(f"v_min_u32 v{28+r}, -2, v{28+r}")
    a("buffer_store_dwordx4 v[28:31], v68, s[32:35], 0 offen sc1")
    a("s_mov_b64 exec, -1")
    stamp(7)
    a("s_cmp_eq_u32 s6, 2"); a("s_cbranch_scc1 L_s2")
    a("s_and_b32 s58, s7, 1"); a("s_cbranch_scc0 L_fin")
    C("---- this workgroup's FFN weights -> LDS: A via s[40:43], B via s[44:47]; s96/s97 source, s98/s99 LDS, s100/s101 steps")
    a("s_cmp_eq_u32 s7, 1"); a("s_cbranch_scc0 L_dmaD")
    a("v_lshrrev_b32 v62, 2, v1"); a("s_movk_i32 s58, 3584"); a("v_mul_u32_u24 v62, s58, v62")
    a("v_and_b32 v63, 3, v1"); a("v_lshl_add_u32 v62, v63, 4, v62")
    a("s_lshl_b32 s58, s89, 6"); a("v_add_u32 v62, s58, v62")
    a(f"s_mul_i32 s96, s3, {128*3584}"); a("s_mov_b32 s97, s96")
    a("s_lshl_b32 s98, s3, 13"); a(f"s_add_u32 s98, s98, {L_W}"); a("s_add_u32 s99, s98, 32768")
    a(f"s_mov_b32 s100, {16*3584}"); a("s_mov_b32 s101, 1024"); a("s_mov_b32 s93, 8")
    a("s_branch L_dma")
    a("L_dmaD:")
    a("v_lshrrev_b32 v62, 1, v1"); a("v_lshlrev_b32 v62, 10, v62"); a("v_and_b32 v63, 1, v1"); a("v_lshl_add_u32 v62, v63, 4, v62")
    a("s_lshl_b32 s58, s89, 5"); a("v_add_u32 v62, s58, v62")
    for d in (40, 44):
        a(f"s_mov_b32 s{d}, s80"); a(f"s_mov_b32 s{d+1}, s81"); a(f"s_mov_b32 s{d+2}, {1792*1024}")
    a(f"s_mul_i32 s96, s3, {448*1024}"); a("s_add_u32 s97, s96, 32768")
    a(f"s_mul_i32 s98, s3, {448*32}"); a(f"s_add_u32 s98, s98, {L_W}"); a("s_add_u32 s99, s98, 1024")
    a("s_mov_b32 s100, 65536"); a("s_mov_b32 s101, 2048"); a("s_mov_b32 s93, 7")
    a("L_dma:")
    a("s_mov_b32 m0, s98"); a("s_sub_u32 s93, s93, 1")
    a(f"buffer_load_dwordx4 v62, s[40:43], s96 offen {fpol} lds")
    a("s_mov_b32 m0, s99"); a("s_add_u32 s96, s96, s100")
    a(f"buffer_load_dwordx4 v62, s[44:47], s97 offen {fpol} lds")
    a("s_add_u32 s97, s97, s100"); a("s_add_u32 s98, s98, s101"); a("s_add_u32 s99, s99, s101")
    a("s_cmp_lg_u32 s93, 0"); a("s_cbranch_scc1 L_dma")
    C("exchange addresses v63 = g*128 + b*16, v26 = w*512 + v63 ; v60 = 16g + r', v61 = c' for the transposing reads")
    a("v_and_b32 v27, 7, v75"); a("v_lshlrev_b32 v63, 4, v27"); a("v_lshl_add_u32 v63, v74, 7, v63")
    a("s_lshl_b32 s58, s3, 9"); a("v_add_u32 v26, s58, v63")
    a("v_lshrrev_b32 v60, 2, v75"); a("v_lshl_add_u32 v60, v74, 4, v60"); a("v_and_b32 v61, 3, v1")
    a("s_cmp_eq_u32 s7, 3"); a("s_cbranch_scc1 L_s4")

    C("---- gate / up: four tiles of 8+8 columns, 128 rows of h per wave; LayerNorm is applied to the sums")
    a("v_lshlrev_b32 v60, 6, v60"); a("v_lshrrev_b32 v49, 1, v61"); a("v_lshl_add_u32 v60, v49, 15, v60")
    a("v_and_b32 v49, 1, v61"); a("v_lshl_add_u32 v60, v49, 3, v60")
    a("s_lshl_b32 s58, s3, 13"); a(f"s_add_u32 s58, s58, {L_W}"); a("v_add_u32 v60, s58, v60")
    for r in range(4): a(f"v_mov_b32 v{112+r}, 0x3f803f80")
    C("h fragment address v62 = (g>>1)*512 + (b>>1)*128 + (b&1)*64 + (g&1)*32 + half*16")
    a("v_lshrrev_b32 v62, 1, v74"); a("v_lshlrev_b32 v62, 9, v62"); a("v_bfe_u32 v49, v75, 1, 2"); a("v_lshl_add_u32 v62, v49, 7, v62")
    a("v_and_b32 v49, 1, v75"); a("v_lshl_add_u32 v62, v49, 6, v62"); a("v_and_b32 v49, 1, v74"); a("v_lshl_add_u32 v62, v49, 5, v62")
    a("v_lshrrev_b32 v49, 3, v75"); a("v_lshl_add_u32 v62, v49, 4, v62")
    a(f"s_mov_b32 s58, {L_DUMP-L_T2}"); a("v_mad_u32_u24 v26, v49, s58, v26")
    a("s_lshl_b32 s58, s3, 11"); a("v_add_u32 v63, s58, v63")
    a("v_lshrrev_b32 v49, 1, v74"); a("v_lshlrev_b32 v49, 2, v49"); a("v_lshlrev_b32 v61, 5, v27"); a("v_add_u32 v49, v49, v61")
    a("s_lshl_b32 s58, s3, 3"); a("v_add_u32 v49, s58, v49")
    a("s_lshl_b32 s59, s3, 11"); a(f"s_add_u32 s59, s59, {WS_H}")
    a("s_waitcnt vmcnt(0)")
    stamp(13)
    for t in range(4):
        for u in range(2):
            for hf in range(2):
                for sec in range(2): trread(128 + 16*t + 8*u + 4*hf + 2*sec, "v60", (64*u + 8*hf + 4*sec) * 64 + 16*t)
        if t: a("s_waitcnt lgkmcnt(6)")
    a("s_waitcnt lgkmcnt(0)")
    for k in range(4):
        for t in range(4): mfma(224 + 4*t, f"v[{128+16*t+4*k}:{131+16*t+4*k}]", "v[112:115]", k == 0)
    for t in range(4): a(f"ds_write_b128 v26, v[{224+4*t}:{227+4*t}] offset:{L_CS+2048*t}")
    def ldH(b): return [f"buffer_load_dwordx4 v[{b+4*u}:{b+3+4*u}], v62, s[32:35], s59 offen offset:{u*1024} sc1" for u in range(2)]
    def useH(b):
        n = 0
        for u in range(2):
            for t in range(4):
                for hf in range(2):
                    mfma(192 + 8*t + 4*hf, f"v[{128+16*t+8*u+4*hf}:{131+16*t+8*u+4*hf}]", f"v[{b+4*u}:{b+3+4*u}]", u == 0)
                    if n < 8:
                        a(f"v_dot2_f32_bf16 v52, v{b+n}, v112, {'0' if n == 0 else 'v52'}")
                        a(f"v_dot2_f32_bf16 v53, v{b+n}, v{b+n}, {'0' if n == 0 else 'v53'}")
                    if n == 9:
                        for r in range(2): a(f"v_add_f32_dpp v{52+r}, v{52+r}, v{52+r} row_ror:8 row_mask:0xf bank_mask:0xf")
                    if n == 11: a("v_permlane32_swap_b32 v52, v53"); a("v_add_f32 v52, v52, v53"); a("v_mov_b32 v53, v52")
                    if n == 13: a("v_permlane16_swap_b32 v52, v53"); a("v_add_f32 v52, v52, v53"); a(f"ds_write_b32 v49, v52 offset:{L_ST}")
                    n += 1
    poll2("L_pH", ldH, 8, (76, 84), useH)
    stamp(10)
    for t in range(4):
        for r in range(4): a(f"v_add_f32_dpp v{192+8*t+r}, v{196+8*t+r}, v{192+8*t+r} row_ror:8 row_mask:0xf bank_mask:0xf")
        a(f"ds_write_b128 v26, v[{192+8*t}:{195+8*t}] offset:{L_T2+2048*t}")
    a("s_waitcnt lgkmcnt(0)"); a("s_barrier")
    for k in range(2): a(f"ds_read_b128 v[{92+4*k}:{95+4*k}], v61 offset:{L_ST+16*k}")
    for w in range(4): a(f"ds_read_b128 v[{224+4*w}:{227+4*w}], v63 offset:{L_CS+512*w}")
    for w in range(4): a(f"ds_read_b128 v[{116+4*w}:{119+4*w}], v63 offset:{L_T2+512*w}")
    a("s_waitcnt lgkmcnt(8)")
    for k in range(2): a(f"v_add_f32 v{92+k}, v{92+k}, v{94+k}"); a(f"v_add_f32 v{96+k}, v{96+k}, v{98+k}")
    a("v_add_f32 v52, v92, v96"); a("v_add_f32 v53, v93, v97")
    a(f"v_mul_f32 v52, {f32(1/512)}, v52"); a(f"v_mul_f32 v53, {f32(1/512)}, v53")
    a("v_fma_f32 v53, -v52, v52, v53"); a("v_max_f32 v53, 0, v53")
    bf16r("v53"); bf16r("v52")
    a(f"v_add_f32 v53, {f32(1e-5)}, v53"); bf16r("v53")
    a("v_sqrt_f32 v53, v53")
    a("s_waitcnt lgkmcnt(4)")
    for r in range(4): a(f"v_add_f32 v{224+r}, v{224+r}, v{228+r}"); a(f"v_add_f32 v{232+r}, v{232+r}, v{236+r}")
    bf16r("v53"); a("v_rcp_f32 v53, v53")
    for r in range(4): a(f"v_add_f32 v{108+r}, v{224+r}, v{232+r}")
    a("s_waitcnt lgkmcnt(0)")
    for r in range(4): a(f"v_add_f32 v{116+r}, v{116+r}, v{120+r}"); a(f"v_add_f32 v{124+r}, v{124+r}, v{128+r}")
    for r in range(4): a(f"v_add_f32 v{116+r}, v{116+r}, v{124+r}")
    for r in range(4): a(f"v_fma_f32 v{116+r}, -v52, v{108+r}, v{116+r}")
    for r in range(4): a(f"v_mul_f32 v{116+r}, v{116+r}, v53")
    for r in range(2): a(f"v_cvt_pk_bf16_f32 v{120+r}, v{116+2*r}, v{117+2*r}")
    for r in range(2): a(f"v_permlane32_swap_b32 v{120+r}, v{122+r}")
    for r in range(2):
        a(f"v_lshlrev_b32 v{116+2*r}, 16, v{120+r}"); a(f"v_and_b32 v{117+2*r}, 0xffff0000, v{120+r}")
        a(f"v_lshlrev_b32 v{124+2*r}, 16, v{122+r}"); a(f"v_and_b32 v{125+2*r}, 0xffff0000, v{122+r}")
    for r in range(4): a(f"v_max_f32 v{116+r}, 0, v{116+r}")
    for r in range(4): a(f"v_mul_f32 v{116+r}, v{116+r}, v{124+r}")
    for r in range(2): a(f"v_cvt_pk_bf16_f32 v{120+r}, v{116+2*r}, v{117+2*r}")
    a("s_mov_b64 exec, 0x00ff00ff")
    for r in range(2): a(f"v_min_u32 v{120+r}, -2, v{120+r}")
    a("buffer_store_dwordx2 v[120:121], v70, s[32:35], 0 offen sc1")
    stamp(11)
    a("s_branch L_fin")

    C("---- reducer: sum the 32 heads' partials of 2 rows x 32 columns, add x, publish h")
    a("L_s2:")
    a("v_lshlrev_b32 v62, 4, v1")
    a("s_lshl_b32 s59, s89, 13"); a("s_add_u32 s92, s59, 4096")
    a("v_lshlrev_b32 v50, 16, v71"); a("v_and_b32 v51, 0xffff0000, v71")
    def ld8(b): return [f"buffer_load_dwordx4 v[{b+4*u}:{b+3+4*u}], v62, s[32:35], {'s59' if u < 4 else 's92'} offen offset:{(u&3)*1024} sc1" for u in range(8)]
    def useP(b):
        for r in range(16): a(f"v_add_f32 v{108+r}, v{b+r}, v{b+16+r}")
    poll2("L_pP", ld8, 32, (76, 128), useP)
    stamp(8)
    for st in (8, 4):
        for r in range(st): a(f"v_add_f32 v{108+r}, v{108+r}, v{108+st+r}")
    a("v_permlane32_swap_b32 v108, v110"); a("v_permlane32_swap_b32 v109, v111")
    a("v_add_f32 v108, v108, v110"); a("v_add_f32 v109, v109, v111")
    a("v_mov_b32 v110, v108"); a("v_mov_b32 v111, v109")
    a("v_permlane16_swap_b32 v108, v110"); a("v_permlane16_swap_b32 v109, v111")
    a("v_add_f32 v108, v108, v110"); a("v_add_f32 v109, v109, v111")
    a("v_cvt_pk_bf16_f32 v108, v108, v109")
    a("v_and_b32 v109, 0xffff0000, v108"); a("v_lshlrev_b32 v108, 16, v108")
    a("v_add_f32 v108, v108, v50"); a("v_add_f32 v109, v109, v51")
    a("v_cvt_pk_bf16_f32 v108, v108, v109")
    a("s_mov_b32 exec_lo, 0xffff"); a("s_mov_b32 exec_hi, 0xffff")
    a("v_min_u32 v108, -2, v108")
    a("buffer_store_dword v108, v69, s[32:35], 0 offen sc1")
    stamp(9)
    a("s_branch L_fin")

    C("---- 16 output columns, 448 rows of W_down per wave")
    a("L_s4:")
    a("v_lshlrev_b32 v60, 5, v60"); a("v_lshl_add_u32 v60, v61, 3, v60")
    a(f"s_mul_i32 s58, s3, {448*32}"); a(f"s_add_u32 s58, s58, {L_W}"); a("v_add_u32 v60, s58, v60")
    C("h address v49 = H + ((s'>>1)*4 + (b>>1))*128 + (b&1)*64 + (s'&1)*32 + g*8 ; out address v50 = b*1024 + s'*32 + g*8")
    a("v_lshrrev_b32 v49, 1, v27"); a("v_lshlrev_b32 v49, 7, v49"); a("v_and_b32 v50, 1, v27"); a("v_lshl_add_u32 v49, v50, 6, v49")
    a("v_lshl_add_u32 v49, v74, 3, v49")
    a("s_lshr_b32 s58, s89, 1"); a("s_lshl_b32 s58, s58, 9"); a("s_and_b32 s92, s89, 1"); a("s_lshl_b32 s92, s92, 5"); a("s_add_u32 s58, s58, s92")
    a(f"s_add_u32 s58, s58, {WS_H}"); a("v_add_u32 v49, s58, v49")
    a("v_lshlrev_b32 v50, 10, v27"); a("v_lshl_add_u32 v50, v74, 3, v50"); a("s_lshl_b32 s58, s89, 5"); a("v_add_u32 v50, s58, v50")
    a(f"s_mul_i32 s59, s3, {7*1024}"); a(f"s_add_u32 s59, s59, {WS_G}"); a("s_add_u32 s92, s59, 4096")
    a("v_lshlrev_b32 v62, 4, v1")
    a("s_waitcnt vmcnt(0)")
    stamp(13)
    for u in range(7):
        for hf in range(2):
            for sec in range(2): trread(128 + 8*u + 4*hf + 2*sec, "v60", (64*u + 8*hf + 4*sec) * 32)
        if u in (2, 5): a("s_waitcnt lgkmcnt(4)")
    a("s_waitcnt lgkmcnt(0)")
    def ldG(b): return ld8(b)[:7] + [f"buffer_load_dwordx2 v[{b+28}:{b+29}], v49, s[32:35], 0 offen sc1"]
    def useG(b):
        for u in range(7):
            for hf in range(2): mfma(108 + 4*hf, f"v[{128+8*u+4*hf}:{131+8*u+4*hf}]", f"v[{b+4*u}:{b+3+4*u}]", u == 0)
        for r in range(2):
            a(f"v_lshlrev_b32 v{116+2*r}, 16, v{b+28+r}"); a(f"v_and_b32 v{117+2*r}, 0xffff0000, v{b+28+r}")
    poll2("L_pG", ldG, 30, (76, 192), useG)
    stamp(10)
    for r in range(4): a(f"v_add_f32_dpp v{108+r}, v{112+r}, v{108+r} row_ror:8 row_mask:0xf bank_mask:0xf")
    a("s_mov_b32 exec_lo, 0x00ff00ff"); a("s_mov_b32 exec_hi, 0x00ff00ff")
    a(f"ds_write_b128 v26, v[108:111] offset:{L_TX}")
    a("s_waitcnt lgkmcnt(0)"); a("s_barrier")
    a("s_cmp_eq_u32 s3, 3"); a("s_cbranch_scc0 L_fin")
    for w in range(4): a(f"ds_read_b128 v[{128+4*w}:{131+4*w}], v63 offset:{L_TX+512*w}")
    a("s_waitcnt lgkmcnt(0)")
    for r in range(4):
        a(f"v_add_f32 v{128+r}, v{128+r}, v{132+r}"); a(f"v_add_f32 v{136+r}, v{136+r}, v{140+r}")
    for r in range(4): a(f"v_add_f32 v{128+r}, v{128+r}, v{136+r}")
    for r in range(2): a(f"v_cvt_pk_bf16_f32 v{132+r}, v{128+2*r}, v{129+2*r}")
    for r in range(2):
        a(f"v_lshlrev_b32 v{128+2*r}, 16, v{132+r}"); a(f"v_and_b32 v{129+2*r}, 0xffff0000, v{132+r}")
    for r in range(4): a(f"v_add_f32 v{128+r}, v{128+r}, v{116+r}")
    for r in range(2): a(f"v_cvt_pk_bf16_f32 v{132+r}, v{128+2*r}, v{129+2*r}")
    a("buffer_store_dwordx2 v[132:133], v50, s[36:39], 0 offen")
    stamp(11)
    a("L_fin:")
    if probe is not None:
        a(f"s_cmp_eq_u32 s2, {pwg}"); a("s_cbranch_scc0 L_end"); a("s_cmp_eq_u32 s3, 3"); a("s_cbranch_scc0 L_end")
        if probe == 0: a("s_mov_b32 s20, 0")
        a("s_add_u32 s20, s20, 10000")
        a("L_probe:")
        a("s_sleep 4"); a("s_memrealtime s[94:95]"); a("s_waitcnt lgkmcnt(0)"); a("s_sub_u32 s94, s94, s18")
        a("s_cmp_lt_u32 s94, s20"); a("s_cbranch_scc1 L_probe")
    if stamps:
        a("s_mov_b64 exec, -1")
        stamp(12)
        a("s_getreg_b32 s92, hwreg(HW_REG_XCC_ID)"); a("v_writelane_b32 v73, s92, 15")
        a("s_lshl_b32 s58, s2, 2"); a("s_add_u32 s58, s58, s3"); a("s_lshl_b32 s58, s58, 7"); a(f"s_add_u32 s58, s58, {WS_ST}")
        a("v_lshlrev_b32 v48, 2, v1"); a("s_mov_b32 exec_hi, 0")
        a("buffer_store_dword v73, v48, s[32:35], s58 offen")
        if "dbgout" in xp:
            a("s_cmp_eq_u32 s2, 229"); a("s_cbranch_scc0 L_end"); a("s_cmp_eq_u32 s3, 3"); a("s_cbranch_scc0 L_end")
            a("v_subrev_u32 v73, s18, v73"); a("s_mov_b64 exec, 0xffff")
            a("global_store_dword v48, v73, s[84:85] sc1")
    a("L_end:")
    a("s_endpgm")
    body = a.finish()
    head_ = HEADER + f"; @launch grid=(256,1,1) block=(256,1,1) lds={L_SIZE}\n" + '.amdgcn_target "amdgcn-amd-amdhsa--gfx950"\n.text\n' + \
        f".globl {NAME}\n.p2align 8\n.type {NAME},@function\n"
    tail = f""".section .rodata,"a"
.p2align 6
.amdhsa_kernel {NAME}
  .amdhsa_next_free_vgpr 384
  .amdhsa_next_free_sgpr 102
  .amdhsa_accum_offset 256
  .amdhsa_group_segment_fixed_size 0
  .amdhsa_kernarg_size 96
  .amdhsa_user_sgpr_count 2
  .amdhsa_user_sgpr_kernarg_segment_ptr 1
  .amdhsa_system_sgpr_workgroup_id_x 1
.end_amdhsa_kernel
"""
    return head_ + body + tail

if __name__ == "__main__":
    kw = eval("dict(%s)" % (sys.argv[2] if len(sys.argv) > 2 else ""))
    open(sys.argv[1], "w").write(gen(**kw))
```

```python
import sys, struct
sys.path.insert(0, __file__.rsplit('/', 1)[0])
from asmlib import Asm

NAME = "sequential_preLN__mha_block_cached__glu_gated_reglu__decode_kernel"
HEADER = open(__file__.rsplit('/', 1)[0] + '/header.txt').read()

def f32(x): return "0x%08x" % struct.unpack('<I', struct.pack('<f', x))[0]

WS_P, WS_H, WS_G, WS_ST, WS_SIZE = 0, 0x80000, 0x82000, 0x100000, 0x140000
L_QP, L_OP, L_ML, L_ST, L_TX, L_T2, L_CS, L_W, L_DUMP, L_SIZE = 0, 2048, 4096, 4160, 4608, 8192, 16384, 24576, 90112, 106496
RING = 128
NB = 32
SPIN = 200000

def gen(D=5, hi=1, pol="nt", wpol="", fpol="", early=(2, 7, 12, 17), n1=5, kq=2, nbar=2, nA=3, nB=3, D1=None,
        stag=4, ctl=1, slack=170, k0=1, late=0, cpf=23, rot=0, nw=2, nwl=1, eps=0, head=(300, 350), hiu=(4, 4), cal=3, stamps=0, xp=(), probe=None, pwg=130, vpol=None, pre=4, r2=0, slack2=40):
    a = Asm()
    vm = []
    def C(t): a("; " + t)
    def vwait(tag):
        n = len(vm) - 1 - vm.index(tag)
        a(f"s_waitcnt vmcnt({min(n, 63)})")
    def stamp(k):
        if probe == k:
            a("s_memrealtime s[94:95]"); a("s_waitcnt lgkmcnt(0)"); a("s_sub_u32 s20, s94, s18")
        if stamps == 2 and k not in (6, 12): return
        if stamps == 3 and k not in (3, 4, 6, 12): return
        if stamps:
            a("s_memrealtime s[94:95]"); a("s_waitcnt lgkmcnt(0)"); a(f"v_writelane_b32 v73, s94, {k}")
    def lapstamp(off):
        if stamps == 3:
            a("s_memrealtime s[94:95]"); a(f"s_add_u32 m0, s56, {off}"); a("s_waitcnt lgkmcnt(0)"); a("v_writelane_b32 v73, s94, m0")
    def allred(op, v, t):
        for n in (8, 4, 2, 1): a(f"{op}_dpp {v}, {v}, {v} row_ror:{n} row_mask:0xf bank_mask:0xf")
        for sw in ("v_permlane16_swap_b32", "v_permlane32_swap_b32"):
            a(f"v_mov_b32 {t}, {v}"); a(f"{sw} {v}, {t}"); a(f"{op} {v}, {v}, {t}")
    def bf16r(v):
        a(f"v_cvt_pk_bf16_f32 {v}, {v}, {v}"); a(f"v_and_b32 {v}, 0xffff0000, {v}")
    def srd(d, lo, hi_, size, add=None):
        if add is None:
            a(f"s_mov_b32 s{d}, s{lo}"); a(f"s_mov_b32 s{d+1}, s{hi_}")
        else:
            a(f"s_add_u32 s{d}, s{lo}, {add}"); a(f"s_addc_u32 s{d+1}, s{hi_}, 0")
        a(f"s_mov_b32 s{d+2}, {size}"); a(f"s_mov_b32 s{d+3}, 0x20000")
    cur = [pol]
    def ring(j): j %= NB; return f"v[{RING+4*j}:{RING+4*j+3}]"
    def sload(j):
        s, b = ("s[12:15]", "s55") if j >= NB else ("s[8:11]", "s54")
        j %= NB
        a(f"buffer_load_dwordx4 {ring(j)}, v{2+(j>>2)}, {s}, {b} offen offset:{(j&3)*1024} {cur[0]}")
    def masks(t, src, lane):
        for r in range(4):
            a(f"v_and_b32_dpp v{18+4*(t&1)+r}, {src}, v{14+r} row_newbcast:{lane} row_mask:0xf bank_mask:0xf")
    def mop(t): return f"v[{18+4*(t&1)}:{21+4*(t&1)}]"
    def mfma(d, x, y, first): a(f"v_mfma_f32_16x16x32_bf16 v[{d}:{d+3}], {x}, {y}, {'0' if first else 'v[%d:%d]' % (d, d+3)}")
    def bitrev(t): return ((t & 1) << 3) | ((t & 2) << 1) | ((t & 4) >> 1) | ((t & 8) >> 3)
    def check(regs, ok):
        r = list(regs)
        a(f"v_max3_u32 v48, v{r[0]}, v{r[1]}, v{r[2]}"); r = r[3:]
        while len(r) >= 2:
            a(f"v_max3_u32 v48, v48, v{r[0]}, v{r[1]}"); r = r[2:]
        if r: a(f"v_max_u32 v48, v48, v{r[0]}")
        a("v_cmp_eq_u32 vcc, -1, v48")
        a(f"s_cbranch_vccz {ok}")
    def poll2(label, loads, nreg, bases, use):
        n = len(loads(bases[0]))
        a(f"s_mov_b32 s88, {SPIN}")
        for l in loads(bases[0]): a(l)
        if stag: a(f"s_sleep {stag}")
        a(f"{label}:")
        for l in loads(bases[1]): a(l)
        a(f"s_waitcnt vmcnt({n})")
        check(range(bases[0], bases[0] + nreg), f"{label}_A")
        for l in loads(bases[0]): a(l)
        a(f"s_waitcnt vmcnt({n})")
        check(range(bases[1], bases[1] + nreg), f"{label}_B")
        a("s_sub_u32 s88, s88, 1")
        a(f"s_cbranch_scc0 {label}")
        a(f"{label}_B:")
        use(bases[1])
        a(f"s_branch {label}_done")
        a(f"{label}_A:")
        use(bases[0])
        a(f"{label}_done:")
    def trread(dst, addr, off): a(f"ds_read_b64_tr_b16 v[{dst}:{dst+1}], {addr} offset:{off}")

    a(f"{NAME}:")
    a("s_cmp_ge_u32 s2, 256"); a("s_cbranch_scc1 L_end")
    a("s_memrealtime s[18:19]")
    a("s_load_dwordx16 s[64:79], s[0:1], 0")
    a("s_load_dwordx8 s[80:87], s[0:1], 64")
    if cpf:
        C("pull the kernel's own code towards this die's L2, one KiB per wave")
        a("s_getpc_b64 s[60:61]"); a("s_and_b32 s60, s60, 0xffffff00")
        a("s_lshr_b32 s58, s2, 3"); a("s_lshl_b32 s58, s58, 8"); a("v_add_u32 v60, s58, v0"); a("v_lshlrev_b32 v60, 4, v60")
        a(f"v_cmp_gt_u32 vcc, {cpf*1024}, v60"); a("s_and_saveexec_b64 s[62:63], vcc"); a("s_cbranch_execz L_nocpf")
        a("global_load_dwordx4 v[76:79], v60, s[60:61]")
        a("L_nocpf:")
        a("s_mov_b64 exec, -1")
    C("s3 wave, s4 batch row, s5 head; v1 lane, v74 lane>>4 (g), v75 lane&15 (i)")
    a("v_lshrrev_b32 v1, 6, v0")
    a("v_readfirstlane_b32 s3, v1")
    a("v_and_b32 v1, 63, v0")
    a("s_lshr_b32 s4, s2, 5"); a("s_and_b32 s5, s2, 31")
    a("v_lshrrev_b32 v74, 4, v1"); a("v_and_b32 v75, 15, v1")
    a("v_lshlrev_b32 v48, 4, v1")
    a("s_lshl_b32 s58, s3, 12"); a("v_add_u32 v2, s58, v48")
    for k in range(1, 8): a(f"v_add_u32 v{2+k}, {k*16384}, v2")
    C("the eight workgroups of a head walk its rows of wq / wo from different starting points: v72 = (i + 2b) & 15")
    a(f"s_lshl_b32 s97, s4, 1") if rot else a("s_mov_b32 s97, 0")
    a("v_add_u32 v72, s97, v75"); a("v_and_b32 v72, 15, v72")
    a("s_lshl_b32 s58, s3, 8"); a("v_lshlrev_b32 v49, 3, v72"); a("v_lshl_add_u32 v49, v74, 1, v49"); a("v_add_u32 v49, s58, v49")
    a("v_lshlrev_b32 v67, 4, v72"); a("v_lshl_add_u32 v65, v74, 2, v67")
    a("v_lshrrev_b32 v51, 1, v74")
    C("wq lane offset v58 = (128w+g)*8192 + i*16 ; wo lane offset v59 = g*1024 + w*256 + i*16")
    a("s_lshl_b32 s58, s3, 20"); a("v_lshlrev_b32 v58, 13, v74"); a("v_lshl_add_u32 v58, v75, 4, v58"); a("v_add_u32 v58, s58, v58")
    a("s_lshl_b32 s58, s3, 8"); a("v_lshlrev_b32 v59, 10, v74"); a("v_lshl_add_u32 v59, v75, 4, v59"); a("v_add_u32 v59, s58, v59")
    a("s_lshl_b32 s57, s4, 10"); a("s_lshl_b32 s58, s5, 8"); a("s_lshl_b32 s59, s2, 20")
    a("s_sub_u32 s92, 0x400000, s58")
    a("s_mov_b32 s54, 0")
    a("s_waitcnt lgkmcnt(0)")
    if stamps: a("v_mov_b32 v73, 0"); a("v_writelane_b32 v73, s18, 0")
    kiss = 0
    def kload():
        nonlocal kiss
        sload(kiss - kbase); vm.append(f"k{kiss}"); kiss += 1
    kbase = 0
    srd(8, 66, 67, 0x100000, "s59")
    for j in range(k0): kload()
    srd(28, 64, 65, 8192)
    a("buffer_load_dwordx4 v[52:55], v48, s[28:31], s57 offen"); vm.append("x")
    a("buffer_load_ushort v56, v49, s[28:31], s57 offen"); vm.append("xc0")
    a("buffer_load_ushort v57, v49, s[28:31], s57 offen offset:128"); vm.append("xc1")
    srd(20, 70, 71, "s92", "s58")
    wiss = 0
    def wqload():
        nonlocal wiss
        a(f"s_add_u32 s58, s97, {wiss & 15}"); a("s_and_b32 s58, s58, 15"); a("s_lshl_b32 s58, s58, 15")
        if wiss >= 16: a("s_or_b32 s58, s58, 0x80000")
        a(f"buffer_load_dwordx4 a[{4*wiss}:{4*wiss+3}], v58, s[20:23], s58 offen {wpol}"); vm.append(f"wq{wiss}"); wiss += 1
    for j in range(n1):
        if j: kload()
        for x in range(nw): wqload()
    a("s_add_u32 s16, s68, s59"); a("s_addc_u32 s17, s69, 0")
    a("s_mov_b32 s12, s8"); a("s_mov_b32 s13, s9"); a("s_mov_b32 s14, 0x100000"); a("s_mov_b32 s15, 0x20000")
    a("s_lshl_b32 s58, s5, 17"); srd(24, 72, 73, 0x20000, "s58")
    def setup_late():
        a("v_lshrrev_b32 v77, 1, v74"); a("v_lshlrev_b32 v78, 4, v1")
        srd(32, 86, 87, WS_SIZE); srd(36, 82, 83, 8192)
        srd(40, 76, 77, 512*3584); srd(44, 78, 79, 512*3584)
        C("role s7 / index s89: 1 gate+up tiles (wg<56), 2 reducer (64<=wg<128), 3 output slice (wg>=224), 0 none")
        a("s_and_b32 s58, s2, 7"); a("s_lshr_b32 s92, s2, 3")
        a("s_mul_i32 s89, s58, 7"); a("s_add_u32 s89, s89, s92")
        a("s_cmp_lt_u32 s2, 56"); a("s_cselect_b32 s7, 1, 0")
        a("s_lshl_b32 s58, s58, 2"); a("s_add_u32 s58, s58, s92"); a("s_sub_u32 s58, s58, 28")
        a("s_cmp_ge_u32 s2, 224"); a("s_cselect_b32 s89, s58, s89"); a("s_cselect_b32 s7, 3, s7")
        a("s_sub_u32 s58, s2, 64"); a("s_cmp_lt_u32 s58, 64"); a("s_cselect_b32 s89, s58, s89"); a("s_cselect_b32 s7, 2, s7")
        a("s_lshl_b32 s6, s3, 2"); a("s_add_u32 s6, s6, s7")
        C("P store offset v68 = ((4w + (i>>2))*4 + (b>>1))*8192 + (2h + (b&1))*128 + (i&3)*32 + g*16")
        a("v_lshrrev_b32 v68, 2, v75"); a("v_lshlrev_b32 v68, 15, v68"); a("v_lshl_add_u32 v68, v74, 4, v68")
        a("v_and_b32 v60, 3, v75"); a("v_lshl_add_u32 v68, v60, 5, v68")
        a("s_lshl_b32 s58, s3, 17"); a("s_lshr_b32 s92, s4, 1"); a("s_lshl_b32 s92, s92, 13"); a("s_add_u32 s58, s58, s92")
        a("s_lshl_b32 s92, s5, 8"); a("s_add_u32 s58, s58, s92")
        a("s_and_b32 s92, s4, 1"); a("s_lshl_b32 s92, s92, 7"); a("s_add_u32 s58, s58, s92"); a("v_add_u32 v68, s58, v68")
        C("H store offset v69 = H + rho*128 + i*8 + (g>>1)*4 ; x offset v76 = (2(rho&3) + (i>>3))*1024 + (rho>>2)*64 + (i&7)*8 + (g>>1)*4")
        a("v_lshlrev_b32 v69, 3, v75"); a("v_lshl_add_u32 v69, v77, 2, v69")
        a("v_lshrrev_b32 v76, 3, v75"); a("v_lshlrev_b32 v76, 10, v76"); a("v_and_b32 v60, 7, v75"); a("v_lshl_add_u32 v76, v60, 3, v76")
        a("v_lshl_add_u32 v76, v77, 2, v76")
        a("s_and_b32 s58, s89, 3"); a("s_lshl_b32 s58, s58, 11"); a("s_lshr_b32 s92, s89, 2"); a("s_lshl_b32 s92, s92, 6"); a("s_add_u32 s58, s58, s92")
        a("v_add_u32 v76, s58, v76")
        a("s_lshl_b32 s58, s89, 7"); a(f"s_add_u32 s58, s58, {WS_H}"); a("v_add_u32 v69, s58, v69")
        a("buffer_load_dword v71, v76, s[28:31], 0 offen"); vm.append("xr")
        C("G store offset v70 = G + (4*s89 + w)*128 + i*16 + g*8")
        a("v_lshlrev_b32 v70, 4, v75"); a("v_lshl_add_u32 v70, v74, 3, v70")
        a("s_lshl_b32 s58, s89, 2"); a("s_add_u32 s58, s58, s3"); a("s_lshl_b32 s58, s58, 7"); a(f"s_add_u32 s58, s58, {WS_G}"); a("v_add_u32 v70, s58, v70")
        C("wave 0 of the reducers marks every hand-off line empty (all ones): own P lines, own H line, four G lines")
        a("s_cmp_eq_u32 s6, 2"); a("s_cbranch_scc0 L_noclr")
        for r in range(4): a(f"v_mov_b32 v{60+r}, -1")
        a("s_lshl_b32 s58, s89, 13"); a("s_add_u32 s92, s58, 4096")
        for u in range(8): a(f"buffer_store_dwordx4 v[60:63], v78, s[32:35], {'s58' if u < 4 else 's92'} offen offset:{(u&3)*1024} sc1")
        a("s_lshl_b32 s58, s89, 9"); a(f"s_add_u32 s58, s58, {WS_G}"); a("s_mov_b32 exec_hi, 0")
        a("buffer_store_dwordx4 v[60:63], v78, s[32:35], s58 offen sc1")
        a("s_lshl_b32 s58, s89, 7"); a(f"s_add_u32 s58, s58, {WS_H}"); a("s_mov_b32 exec_lo, 0xff")
        a("buffer_store_dwordx4 v[60:63], v78, s[32:35], s58 offen sc1")
        a("s_mov_b64 exec, -1")
        a("L_noclr:")
    if not late:
        srd(32, 86, 87, WS_SIZE); srd(36, 82, 83, 8192)
        srd(40, 76, 77, 512*3584); srd(44, 78, 79, 512*3584)
        C("role s7 / index s89: 1 gate+up tiles (wg<56), 2 reducer (64<=wg<128), 3 output slice (wg>=224), 0 none")
        a("s_and_b32 s58, s2, 7"); a("s_lshr_b32 s92, s2, 3")
        a("s_mul_i32 s89, s58, 7"); a("s_add_u32 s89, s89, s92")
        a("s_cmp_lt_u32 s2, 56"); a("s_cselect_b32 s7, 1, 0")
        a("s_lshl_b32 s58, s58, 2"); a("s_add_u32 s58, s58, s92"); a("s_sub_u32 s58, s58, 28")
        a("s_cmp_ge_u32 s2, 224"); a("s_cselect_b32 s89, s58, s89"); a("s_cselect_b32 s7, 3, s7")
        a("s_sub_u32 s58, s2, 64"); a("s_cmp_lt_u32 s58, 64"); a("s_cselect_b32 s89, s58, s89"); a("s_cselect_b32 s7, 2, s7")
        a("s_lshl_b32 s6, s3, 2"); a("s_add_u32 s6, s6, s7")
        C("P store offset v68 = ((4w + (i>>2))*4 + (b>>1))*8192 + (2h + (b&1))*128 + (i&3)*32 + g*16")
        a("v_lshrrev_b32 v68, 2, v75"); a("v_lshlrev_b32 v68, 15, v68"); a("v_lshl_add_u32 v68, v74, 4, v68")
        a("v_and_b32 v60, 3, v75"); a("v_lshl_add_u32 v68, v60, 5, v68")
        a("s_lshl_b32 s58, s3, 17"); a("s_lshr_b32 s92, s4, 1"); a("s_lshl_b32 s92, s92, 13"); a("s_add_u32 s58, s58, s92")
        a("s_lshl_b32 s92, s5, 8"); a("s_add_u32 s58, s58, s92")
        a("s_and_b32 s92, s4, 1"); a("s_lshl_b32 s92, s92, 7"); a("s_add_u32 s58, s58, s92"); a("v_add_u32 v68, s58, v68")
        C("H store offset v69 = H + rho*128 + i*8 + (g>>1)*4 ; x offset v50 = (2(rho&3) + (i>>3))*1024 + (rho>>2)*64 + (i&7)*8 + (g>>1)*4")
        a("v_lshlrev_b32 v69, 3, v75"); a("v_lshl_add_u32 v69, v51, 2, v69")
        a("v_lshrrev_b32 v50, 3, v75"); a("v_lshlrev_b32 v50, 10, v50"); a("v_and_b32 v60, 7, v75"); a("v_lshl_add_u32 v50, v60, 3, v50")
        a("v_lshl_add_u32 v50, v51, 2, v50")
        a("s_and_b32 s58, s89, 3"); a("s_lshl_b32 s58, s58, 11"); a("s_lshr_b32 s92, s89, 2"); a("s_lshl_b32 s92, s92, 6"); a("s_add_u32 s58, s58, s92")
        a("v_add_u32 v50, s58, v50")
        a("s_lshl_b32 s58, s89, 7"); a(f"s_add_u32 s58, s58, {WS_H}"); a("v_add_u32 v69, s58, v69")
        a("buffer_load_dword v71, v50, s[28:31], 0 offen"); vm.append("xr")
        C("G store offset v70 = G + (4*s89 + w)*128 + i*16 + g*8")
        a("v_lshlrev_b32 v70, 4, v75"); a("v_lshl_add_u32 v70, v74, 3, v70")
        a("s_lshl_b32 s58, s89, 2"); a("s_add_u32 s58, s58, s3"); a("s_lshl_b32 s58, s58, 7"); a(f"s_add_u32 s58, s58, {WS_G}"); a("v_add_u32 v70, s58, v70")
        C("the reducers mark every hand-off line empty (all ones): own P lines, own H line, four G lines")
        a("s_cmp_eq_u32 s7, 2"); a("s_cbranch_scc0 L_noclr")
        for r in range(4): a(f"v_mov_b32 v{60+r}, -1")
        a("s_lshl_b32 s58, s89, 13"); a("s_lshl_b32 s92, s3, 11"); a("s_add_u32 s58, s58, s92")
        a("buffer_store_dwordx4 v[60:63], v48, s[32:35], s58 offen sc1")
        a("buffer_store_dwordx4 v[60:63], v48, s[32:35], s58 offen offset:1024 sc1")
        a("s_mov_b64 exec, 0x00ff00ff")
        a("buffer_store_dwordx2 v[60:61], v70, s[32:35], 0 offen sc1")
        a("s_cmp_eq_u32 s3, 0"); a("s_cbranch_scc0 L_noclr")
        a("s_mov_b32 exec_lo, 0xffff"); a("s_mov_b32 exec_hi, 0xffff")
        a("buffer_store_dword v60, v69, s[32:35], 0 offen sc1")
        a("L_noclr:")
        a("s_mov_b64 exec, -1")
    for j in range(nA): kload()
    stamp(1)
    a("s_mov_b32 s60, 0xcccccccc"); a("s_mov_b32 s61, 0xcccccccc"); a("s_mov_b32 s62, 0xaaaaaaaa"); a("s_mov_b32 s63, 0xaaaaaaaa")
    a(f"s_mov_b32 s90, {f32(128 ** -0.5)}"); a(f"s_mov_b32 s91, {f32(1.4426950408889634)}")
    C("selector masks v14..17: lane (g,m): m<8 and m>>1==r -> m&1 ? 0xffff0000 : 0xffff")
    a("v_and_b32 v60, 1, v75"); a("v_lshlrev_b32 v60, 4, v60"); a("v_mov_b32 v61, 0xffff"); a("v_lshlrev_b32 v60, v60, v61")
    a("v_lshrrev_b32 v61, 1, v75")
    for r in range(4):
        a(f"v_cmp_eq_u32 vcc, {r}, v61"); a(f"v_cndmask_b32 v{14+r}, 0, v60, vcc")
    C("---- LayerNorm of x[b]")
    vwait("x")
    for j in range(nB): kload()
    for k in range(4):
        a(f"v_lshlrev_b32 v{76+2*k}, 16, v{52+k}"); a(f"v_and_b32 v{77+2*k}, 0xffff0000, v{52+k}")
    a("v_add_f32 v84, v76, v77")
    for k in range(2, 8): a(f"v_add_f32 v84, v84, v{76+k}")
    allred("v_add_f32", "v84", "v85")
    a(f"v_mul_f32 v84, {f32(1/512)}, v84")
    for k in range(8): a(f"v_sub_f32 v{76+k}, v{76+k}, v84")
    a("v_mul_f32 v86, v76, v76")
    for k in range(1, 8): a(f"v_fmac_f32 v86, v{76+k}, v{76+k}")
    allred("v_add_f32", "v86", "v85")
    a(f"v_mul_f32 v86, {f32(1/512)}, v86")
    bf16r("v84"); bf16r("v86")
    a(f"v_add_f32 v86, {f32(1e-5)}, v86"); bf16r("v86")
    a("v_sqrt_f32 v86, v86"); bf16r("v86"); a("v_rcp_f32 v86, v86")
    vwait("xc1")
    for k in range(2):
        a(f"v_lshlrev_b32 v{56+k}, 16, v{56+k}"); a(f"v_sub_f32 v{56+k}, v{56+k}, v84"); bf16r(f"v{56+k}")
        a(f"v_mul_f32 v{56+k}, v{56+k}, v86"); a(f"v_cvt_pk_bf16_f32 v{66+k}, v{56+k}, v{56+k}")
    stamp(2)
    C("---- q = xn @ wq[:, head], 128 rows per wave")
    masks(0, "v66", 0)
    for t in range(32):
        vwait(f"wq{t}")
        mfma(28, mop(t), f"a[{4*t}:{4*t+3}]", t == 0)
        if wiss < 32: wqload()
        if int((t + 1) / kq) > int(t / kq) and kiss < NB: kload()
        if t < 31: masks(t + 1, "v66" if t + 1 < 16 else "v67", (t + 1) & 15)
    for j in range(nbar):
        if kiss < NB: kload()
    a("v_lshlrev_b32 v27, 5, v75"); a("v_lshl_add_u32 v26, v74, 4, v27"); a("s_lshl_b32 s58, s3, 9"); a("v_add_u32 v26, s58, v26")
    a("s_mov_b32 exec_hi, 0")
    a(f"ds_write_b128 v26, v[28:31] offset:{L_QP}")
    a("s_mov_b64 exec, -1")
    a("s_waitcnt lgkmcnt(0)"); a("s_barrier")
    for w in range(4):
        for hh in range(2): a(f"ds_read_b128 v[{76+8*w+4*hh}:{79+8*w+4*hh}], v27 offset:{L_QP+512*w+16*hh}")
    a("s_waitcnt lgkmcnt(0)")
    for k in range(8):
        a(f"v_add_f32 v{76+k}, v{76+k}, v{84+k}"); a(f"v_add_f32 v{92+k}, v{92+k}, v{100+k}")
    for k in range(8): a(f"v_add_f32 v{76+k}, v{76+k}, v{92+k}")
    for k in range(4): a(f"v_cvt_pk_bf16_f32 v{10+k}, v{76+2*k}, v{77+2*k}")
    a("v_mov_b32 v27, v65")
    a("v_mov_b32 v64, 0xff800000"); a("v_mov_b32 v65, 0")
    stamp(3)

    def kconsume(i):
        t = i & 15
        x = f"v{48 + (t & 1)}"
        base = RING + 4 * i
        a(f"v_dot2_f32_bf16 {x}, v{base}, v10, 0")
        for r in range(1, 4): a(f"v_dot2_f32_bf16 {x}, v{base+r}, v{10+r}, {x}")
        if t & 1:
            d = f"v{50 + ((t >> 1) & 1)}"
            a(f"v_add_f32_dpp {d}, v48, v48 row_ror:8 row_mask:0xf bank_mask:0x3")
            a(f"v_add_f32_dpp {d}, v49, v49 row_ror:8 row_mask:0xf bank_mask:0xc")
        if t & 3 == 3:
            d = f"v{52 + ((t >> 2) & 1)}"
            a(f"v_add_f32_dpp {d}, v50, v50 row_half_mirror row_mask:0xf bank_mask:0x5")
            a(f"v_add_f32_dpp {d}, v51, v51 row_half_mirror row_mask:0xf bank_mask:0xa")
        if t & 7 == 7:
            d = f"v{54 + ((t >> 3) & 1)}"
            a("v_add_f32_dpp v52, v52, v52 quad_perm:[2,3,0,1] row_mask:0xf bank_mask:0xf")
            a("v_add_f32_dpp v53, v53, v53 quad_perm:[2,3,0,1] row_mask:0xf bank_mask:0xf")
            a(f"v_cndmask_b32 {d}, v52, v53, s[60:61]")
        if t == 15:
            s = f"v{46 + (i >> 4)}"
            a("v_add_f32_dpp v54, v54, v54 quad_perm:[1,0,3,2] row_mask:0xf bank_mask:0xf")
            a("v_add_f32_dpp v55, v55, v55 quad_perm:[1,0,3,2] row_mask:0xf bank_mask:0xf")
            a(f"v_cndmask_b32 {s}, v54, v55, s[62:63]")
            bf16r(s); a(f"v_mul_f32 {s}, s90, {s}"); bf16r(s)
            a(f"v_max_f32 v64, v64, {s}")
    C("---- lap 0: the keys that arrived while q was formed")
    a(f"s_mov_b32 s55, {NB*4096}")
    left = NB + D - kiss
    early = list(early)
    while early and early[-1] >= NB - (left - len(early)): early.pop()
    sched = early + list(range(NB - (left - len(early)), NB))
    assert len(set(sched)) == left, (sched, left)
    for i in range(NB):
        vwait(f"k{i}")
        if i in sched:
            assert kiss - NB < i
            kload()
        kconsume(i)
    stamp(4)
    C("---- the next laps also bring in this head's rows of wo")
    wo = 0
    for lap in range(1, nwl + 1):
        a("s_mov_b32 s54, s55"); a(f"s_add_u32 s55, s55, {NB*4096}")
        for k in range(2 * lap): a(f"v_mov_b32 v{46-2*lap+k}, v{48-2*lap+k}")
        kbase = NB * lap
        if lap == 1:
            for j in range((D1 or D) - D): kload()
        for i in range(NB):
            vwait(f"k{NB*lap+i}")
            if kiss < (nwl + 1) * NB + D: kload()
            if wo < 32 and i % nwl == 0:
                a(f"s_add_u32 s58, s97, {wo & 15}"); a("s_and_b32 s58, s58, 15"); a("s_lshl_b32 s58, s58, 12")
                if wo >= 16: a("s_or_b32 s58, s58, 0x10000")
                a(f"buffer_load_dwordx4 a[{4*wo}:{4*wo+3}], v59, s[24:27], s58 offen {wpol}"); vm.append(f"wo{wo}"); wo += 1
            kconsume(i)
            if late and lap == 1 and i == 4: setup_late()
    assert wo == 32

    def decide(label, br):
        a("s_waitcnt lgkmcnt(0)")
        a("s_sub_u32 s58, s52, s48"); a("s_lshl_b32 s58, s58, 8"); a("s_sub_u32 s58, s58, s49"); a("s_add_u32 s49, s49, s57")
        a("s_sub_u32 s19, s19, 1"); a("s_cmp_ge_i32 s19, 0"); a("s_cselect_b32 s58, 1, s58")
        a("s_cmp_gt_i32 s58, 0")
        a(f"s_cbranch_{br} {label}")
    def segment(tag, mode, k, consume):
        DD = D + (hi if mode else 0); i0 = 16 * k
        if mode:
            a("s_cmp_eq_u32 s51, 1"); a(f"s_cbranch_scc1 {tag}_in")
            for j in range(D, DD): sload(i0 + j)
            a(f"{tag}_in:")
        for i in range(i0, i0 + 16):
            a(f"s_waitcnt vmcnt({DD - 1})")
            skip = (not mode) and i - i0 < hi
            if skip: a("s_cmp_eq_u32 s51, 1"); a(f"s_cbranch_scc1 {tag}_s{i}")
            sload(i + DD)
            if skip: a(f"{tag}_s{i}:")
            if i - i0 == hi: a(f"s_mov_b32 s51, {mode}")
            if i - i0 == 15: a("s_memrealtime s[52:53]")
            consume(i)
    def cal_events(base):
        lo, up = (nwl + 1, 8) if base == 0 else (8, 16)
        if lo <= cal < up:
            a("s_waitcnt lgkmcnt(0)"); a(f"s_cmp_eq_u32 s56, {cal-base}"); a("s_cselect_b32 s88, s52, s88")
        if lo <= cal + 2 < up:
            a("s_lshl_b32 s58, s6, 4"); a("s_add_u32 s58, s58, s56")
            a(f"s_cmp_eq_u32 s58, {32+cal+2-base}"); a("s_cbranch_scc0 L_norep")
            a("s_waitcnt lgkmcnt(0)")
            a("s_sub_u32 s58, s52, s88"); a("s_min_u32 s58, s58, 0x7fff"); a("s_max_u32 s58, s58, 1"); a("s_pack_ll_b32_b16 s58, s52, s58")
            a("v_mov_b32 v61, s58"); a("s_lshl_b32 s58, s89, 2"); a("v_mov_b32 v60, s58"); a("s_mov_b64 exec, 1")
            a("global_store_dword v60, v61, s[84:85] sc1")
            a("s_mov_b64 exec, -1")
            a("L_norep:")
        if lo <= cal + 2 < up and pre:
            a("s_and_b32 s58, s7, 1"); a("s_lshl_b32 s58, s58, 4"); a("s_add_u32 s58, s58, s56")
            a(f"s_cmp_eq_u32 s58, {16+cal+2-base}"); a(f"s_cselect_b32 s19, {pre}, s19")
        x = "K" if base == 0 else "V"
        a("s_cmp_lg_u32 s50, 0"); a(f"s_cbranch_scc0 L_nocal{x}")
        if cal + 3 - base > max(lo - base, 0):
            a(f"s_cmp_ge_u32 s56, {cal+3-base}"); a(f"s_cbranch_scc0 L_nocal{x}")
        a("v_cmp_eq_u32 vcc, 0, v72"); a(f"s_cbranch_vccz L_cal{x}")
        a("v_lshlrev_b32 v60, 2, v1"); a("global_load_dword v72, v60, s[84:85] sc1")
        a(f"s_branch L_nocal{x}")
        a(f"L_cal{x}:")
        a("s_mov_b32 s50, 0")
        if ctl:
            a("s_waitcnt lgkmcnt(0)")
            a("s_mov_b32 s48, s52")
            a("v_bfe_u32 v60, v72, 16, 15"); a("v_subrev_u32 v61, s52, v72"); a("v_bfe_i32 v61, v61, 0, 16")
            allred("v_add_u32", "v60", "v62"); allred("v_add_u32", "v61", "v62")
            a("v_readfirstlane_b32 s57, v60"); a("v_readfirstlane_b32 s49, v61")
            if eps > 0: a(f"s_lshr_b32 s58, s57, {eps}"); a("s_add_u32 s57, s57, s58")
            if eps < 0: a(f"s_lshr_b32 s58, s57, {-eps}"); a("s_sub_u32 s57, s57, s58")
            a(f"s_add_u32 s58, s56, {base-cal-2}"); a("s_lshl_b32 s58, s58, 1"); a("s_mul_i32 s58, s58, s57")
            a("s_lshl_b32 s49, s49, 2"); a("s_add_u32 s49, s49, s58")
            a(f"s_mov_b32 s58, {slack*256}")
            a("s_cmp_eq_u32 s7, 1"); a(f"s_cselect_b32 s58, {(slack-head[0])*256}, s58")
            a("s_cmp_eq_u32 s7, 3"); a(f"s_cselect_b32 s58, {(slack-head[1])*256}, s58")
            a("s_add_u32 s49, s49, s58")
        a(f"L_nocal{x}:")
        if ctl and r2 and base == 8:
            a("s_lshl_b32 s58, s6, 4"); a("s_add_u32 s58, s58, s56")
            a(f"s_cmp_eq_u32 s58, {32+r2-8}"); a("s_cbranch_scc0 L_norep2")
            a("s_waitcnt lgkmcnt(0)")
            a("s_pack_ll_b32_b16 s58, s52, -1")
            a("v_mov_b32 v61, s58"); a("s_lshl_b32 s58, s89, 2"); a("v_mov_b32 v60, s58"); a("s_mov_b64 exec, 1")
            a("global_store_dword v60, v61, s[84:85] sc1")
            a("s_mov_b64 exec, -1")
            a("L_norep2:")
            a("s_or_b32 s58, s50, s21"); a("s_cbranch_scc1 L_nocal2")
            a(f"s_cmp_ge_u32 s56, {r2+1-8}"); a("s_cbranch_scc0 L_nocal2")
            a("v_cmp_le_i32 vcc, 0, v72"); a("s_cbranch_vccz L_cal2")
            a("v_lshlrev_b32 v60, 2, v1"); a("global_load_dword v72, v60, s[84:85] sc1")
            a("s_branch L_nocal2")
            a("L_cal2:")
            a("s_mov_b32 s21, 1")
            a("s_waitcnt lgkmcnt(0)")
            a("s_mov_b32 s48, s52")
            a("v_subrev_u32 v61, s52, v72"); a("v_bfe_i32 v61, v61, 0, 16")
            allred("v_add_u32", "v61", "v62")
            a("v_readfirstlane_b32 s49, v61")
            a(f"s_add_u32 s58, s56, {8-r2}"); a("s_lshl_b32 s58, s58, 1"); a("s_mul_i32 s58, s58, s57")
            a("s_lshl_b32 s49, s49, 2"); a("s_add_u32 s49, s49, s58")
            a(f"s_mov_b32 s58, {slack2*256}")
            a("s_cmp_eq_u32 s7, 1"); a(f"s_cselect_b32 s58, {(slack2-head[0])*256}, s58")
            a("s_cmp_eq_u32 s7, 3"); a(f"s_cselect_b32 s58, {(slack2-head[1])*256}, s58")
            a("s_add_u32 s49, s49, s58")
            a("L_nocal2:")
    def laploop(name, head_code, consume):
        a(".p2align 3")
        a(f"{name}:")
        head_code()
        decide(f"{name}_h0", "scc1")
        segment(f"{name}_l0", 0, 0, consume)
        decide(f"{name}_h1", "scc1")
        a(f"{name}_l1:")
        segment(f"{name}_l1", 0, 1, consume)
        a("s_add_u32 s56, s56, 1"); a("s_cmp_lt_u32 s56, 8"); a(f"s_cbranch_scc1 {name}")
        a(f"s_branch {name}_end")
        a(f"{name}_h0:")
        segment(f"{name}_h0", 1, 0, consume)
        decide(f"{name}_l1", "scc0")
        a(f"{name}_h1:")
        segment(f"{name}_h1", 1, 1, consume)
        a("s_add_u32 s56, s56, 1"); a("s_cmp_lt_u32 s56, 8"); a(f"s_cbranch_scc1 {name}")
        a(f"{name}_end:")
    C("s48 time base, s49 deadline (1/256 ticks), s50 reports seen, s51 depth in use, s[52:53] clock, s57 pace, s19 fixed deep segments")
    a(f"s_mov_b32 s56, {nwl+1}")
    a("s_memrealtime s[52:53]"); a("s_mov_b32 s51, 0"); a("s_mov_b32 s50, 99"); a("s_mov_b32 s57, 0")
    a("s_mov_b32 s48, s18"); a("s_mov_b32 s49, 0x7fffffff"); a("s_mov_b32 s88, 0"); a("s_mov_b32 s21, 0"); a("v_mov_b32 v72, 0")
    a("s_cmp_eq_u32 s7, 1"); a(f"s_cselect_b32 s19, {hiu[0]-4}, 0"); a("s_cmp_eq_u32 s7, 3"); a(f"s_cselect_b32 s19, {hiu[1]-4}, s19")
    def khead():
        lapstamp(16)
        a("s_mov_b32 s54, s55"); a(f"s_add_u32 s55, s55, {NB*4096}")
        a("s_cmp_eq_u32 s56, 7")
        a("s_cselect_b32 s12, s16, s12"); a("s_cselect_b32 s13, s17, s13"); a("s_cselect_b32 s55, 0, s55")
        for k in range(14): a(f"v_mov_b32 v{32+k}, v{34+k}")
        cal_events(0)
    laploop("L_k", khead, kconsume)
    stamp(5)
    C("---- maximum of this wave's scores, in log2 units, negated")
    allred("v_max_f32", "v64", "v48")
    a("v_mul_f32 v64, s91, v64"); a("v_sub_f32 v64, 0, v64")
    a("s_mov_b32 s8, s12"); a("s_mov_b32 s9, s13"); a("s_mov_b32 s56, 0")
    for r in range(4): a(f"v_mov_b32 v{28+r}, 0")
    def vhead():
        lapstamp(24)
        a("s_mov_b32 s54, s55"); a(f"s_add_u32 s55, s55, {NB*4096}")
        for k in range(2):
            a(f"v_fma_f32 v{56+k}, v{32+k}, s91, v64"); a(f"v_exp_f32 v{56+k}, v{56+k}")
            a(f"v_add_f32 v65, v65, v{56+k}"); a(f"v_cvt_pk_bf16_f32 v{66+k}, v{56+k}, v{56+k}")
        for k in range(14): a(f"v_mov_b32 v{32+k}, v{34+k}")
        masks(0, "v66", 0)
        cal_events(8)
        a("s_cmp_eq_u32 s56, 7"); a("s_cbranch_scc0 L_nolast")
        allred("v_add_f32", "v65", "v48")
        a("s_lshl_b32 s58, s3, 3"); a("v_mov_b32 v48, s58"); a("s_mov_b64 exec, 1")
        a(f"ds_write_b64 v48, v[64:65] offset:{L_ML}")
        a("s_mov_b64 exec, -1")
        a("s_cmp_eq_u32 s50, 0"); a("s_cbranch_scc1 L_nolast")
        a(f"s_mov_b32 s88, {SPIN}"); a("v_lshlrev_b32 v60, 2, v1")
        a("L_cnt:")
        a("global_load_dword v72, v60, s[84:85] sc1"); a("s_waitcnt vmcnt(0)")
        a("v_cmp_eq_u32 vcc, 0, v72"); a("s_cbranch_vccz L_nolast")
        a("s_sleep 8"); a("s_sub_u32 s88, s88, 1"); a("s_cbranch_scc0 L_cnt")
        a("L_nolast:")
    def vconsume(i):
        mfma(28, mop(i), ring(i), False)
        if i < NB - 1: masks(i + 1, f"v{66 + ((i + 1) >> 4)}", bitrev((i + 1) & 15))
    if vpol is not None: cur[0] = vpol
    laploop("L_v", vhead, vconsume)
    stamp(6)
    C("---- combine the four waves, project through wo, publish the partial row")
    a("v_mov_b32 v48, 0")
    a("s_mov_b32 exec_hi, 0")
    a(f"ds_write_b128 v26, v[28:31] offset:{L_OP}")
    a("s_mov_b64 exec, -1")
    a("s_waitcnt lgkmcnt(0)"); a("s_barrier")
    a(f"ds_read_b128 v[76:79], v48 offset:{L_ML}"); a(f"ds_read_b128 v[80:83], v48 offset:{L_ML+16}")
    for w in range(4): a(f"ds_read2st64_b32 v[{84+2*w}:{85+2*w}], v27 offset0:{L_OP//256+2*w} offset1:{L_OP//256+2*w+1}")
    a("s_waitcnt lgkmcnt(4)")
    a("v_min_f32 v48, v76, v78"); a("v_min3_f32 v48, v48, v80, v82")
    for w in range(4): a(f"v_sub_f32 v{76+2*w}, v48, v{76+2*w}")
    for w in range(4): a(f"v_exp_f32 v{76+2*w}, v{76+2*w}")
    a("v_mul_f32 v49, v76, v77")
    for w in range(1, 4): a(f"v_fmac_f32 v49, v{76+2*w}, v{77+2*w}")
    a("v_rcp_f32 v49, v49")
    a("s_waitcnt lgkmcnt(0)")
    for k in range(2):
        a(f"v_mul_f32 v{56+k}, v76, v{84+k}")
        for w in range(1, 4): a(f"v_fmac_f32 v{56+k}, v{76+2*w}, v{84+2*w+k}")
    for k in range(2):
        a(f"v_mul_f32 v{56+k}, v{56+k}, v49"); a(f"v_cvt_pk_bf16_f32 v{66+k}, v{56+k}, v{56+k}")
    masks(0, "v66", 0)
    for t in range(32):
        if t < 31: masks(t + 1, "v66" if t + 1 < 16 else "v67", (t + 1) & 15)
        mfma(28, mop(t), f"a[{4*t}:{4*t+3}]", t == 0)
    a("s_mov_b32 exec_hi, 0")
    for r in range(4): a(f"v_min_u32 v{28+r}, -2, v{28+r}")
    a("buffer_store_dwordx4 v[28:31], v68, s[32:35], 0 offen sc1")
    a("s_mov_b64 exec, -1")
    stamp(7)
    a("s_cmp_eq_u32 s6, 2"); a("s_cbranch_scc1 L_s2")
    a("s_and_b32 s58, s7, 1"); a("s_cbranch_scc0 L_fin")
    C("---- this workgroup's FFN weights -> LDS: A via s[40:43], B via s[44:47]; s96/s97 source, s98/s99 LDS, s100/s101 steps")
    a("s_cmp_eq_u32 s7, 1"); a("s_cbranch_scc0 L_dmaD")
    a("v_lshrrev_b32 v62, 2, v1"); a("s_movk_i32 s58, 3584"); a("v_mul_u32_u24 v62, s58, v62")
    a("v_and_b32 v63, 3, v1"); a("v_lshl_add_u32 v62, v63, 4, v62")
    a("s_lshl_b32 s58, s89, 6"); a("v_add_u32 v62, s58, v62")
    a(f"s_mul_i32 s96, s3, {128*3584}"); a("s_mov_b32 s97, s96")
    a("s_lshl_b32 s98, s3, 13"); a(f"s_add_u32 s98, s98, {L_W}"); a("s_add_u32 s99, s98, 32768")
    a(f"s_mov_b32 s100, {16*3584}"); a("s_mov_b32 s101, 1024"); a("s_mov_b32 s93, 8")
    a("s_branch L_dma")
    a("L_dmaD:")
    a("v_lshrrev_b32 v62, 1, v1"); a("v_lshlrev_b32 v62, 10, v62"); a("v_and_b32 v63, 1, v1"); a("v_lshl_add_u32 v62, v63, 4, v62")
    a("s_lshl_b32 s58, s89, 5"); a("v_add_u32 v62, s58, v62")
    for d in (40, 44):
        a(f"s_mov_b32 s{d}, s80"); a(f"s_mov_b32 s{d+1}, s81"); a(f"s_mov_b32 s{d+2}, {1792*1024}")
    a(f"s_mul_i32 s96, s3, {448*1024}"); a("s_add_u32 s97, s96, 32768")
    a(f"s_mul_i32 s98, s3, {448*32}"); a(f"s_add_u32 s98, s98, {L_W}"); a("s_add_u32 s99, s98, 1024")
    a("s_mov_b32 s100, 65536"); a("s_mov_b32 s101, 2048"); a("s_mov_b32 s93, 7")
    a("L_dma:")
    a("s_mov_b32 m0, s98"); a("s_sub_u32 s93, s93, 1")
    a(f"buffer_load_dwordx4 v62, s[40:43], s96 offen {fpol} lds")
    a("s_mov_b32 m0, s99"); a("s_add_u32 s96, s96, s100")
    a(f"buffer_load_dwordx4 v62, s[44:47], s97 offen {fpol} lds")
    a("s_add_u32 s97, s97, s100"); a("s_add_u32 s98, s98, s101"); a("s_add_u32 s99, s99, s101")
    a("s_cmp_lg_u32 s93, 0"); a("s_cbranch_scc1 L_dma")
    C("exchange addresses v63 = g*128 + b*16, v26 = w*512 + v63 ; v60 = 16g + r', v61 = c' for the transposing reads")
    a("v_and_b32 v27, 7, v75"); a("v_lshlrev_b32 v63, 4, v27"); a("v_lshl_add_u32 v63, v74, 7, v63")
    a("s_lshl_b32 s58, s3, 9"); a("v_add_u32 v26, s58, v63")
    a("v_lshrrev_b32 v60, 2, v75"); a("v_lshl_add_u32 v60, v74, 4, v60"); a("v_and_b32 v61, 3, v1")
    a("s_cmp_eq_u32 s7, 3"); a("s_cbranch_scc1 L_s4")

    C("---- gate / up: four tiles of 8+8 columns, 128 rows of h per wave; LayerNorm is applied to the sums")
    a("v_lshlrev_b32 v60, 6, v60"); a("v_lshrrev_b32 v49, 1, v61"); a("v_lshl_add_u32 v60, v49, 15, v60")
    a("v_and_b32 v49, 1, v61"); a("v_lshl_add_u32 v60, v49, 3, v60")
    a("s_lshl_b32 s58, s3, 13"); a(f"s_add_u32 s58, s58, {L_W}"); a("v_add_u32 v60, s58, v60")
    for r in range(4): a(f"v_mov_b32 v{112+r}, 0x3f803f80")
    C("h fragment address v62 = (g>>1)*512 + (b>>1)*128 + (b&1)*64 + (g&1)*32 + half*16")
    a("v_lshrrev_b32 v62, 1, v74"); a("v_lshlrev_b32 v62, 9, v62"); a("v_bfe_u32 v49, v75, 1, 2"); a("v_lshl_add_u32 v62, v49, 7, v62")
    a("v_and_b32 v49, 1, v75"); a("v_lshl_add_u32 v62, v49, 6, v62"); a("v_and_b32 v49, 1, v74"); a("v_lshl_add_u32 v62, v49, 5, v62")
    a("v_lshrrev_b32 v49, 3, v75"); a("v_lshl_add_u32 v62, v49, 4, v62")
    a(f"s_mov_b32 s58, {L_DUMP-L_T2}"); a("v_mad_u32_u24 v26, v49, s58, v26")
    a("s_lshl_b32 s58, s3, 11"); a("v_add_u32 v63, s58, v63")
    a("v_lshrrev_b32 v49, 1, v74"); a("v_lshlrev_b32 v49, 2, v49"); a("v_lshlrev_b32 v61, 5, v27"); a("v_add_u32 v49, v49, v61")
    a("s_lshl_b32 s58, s3, 3"); a("v_add_u32 v49, s58, v49")
    a("s_lshl_b32 s59, s3, 11"); a(f"s_add_u32 s59, s59, {WS_H}")
    a("s_waitcnt vmcnt(0)")
    stamp(13)
    for t in range(4):
        for u in range(2):
            for hf in range(2):
                for sec in range(2): trread(128 + 16*t + 8*u + 4*hf + 2*sec, "v60", (64*u + 8*hf + 4*sec) * 64 + 16*t)
        if t: a("s_waitcnt lgkmcnt(6)")
    a("s_waitcnt lgkmcnt(0)")
    for k in range(4):
        for t in range(4): mfma(224 + 4*t, f"v[{128+16*t+4*k}:{131+16*t+4*k}]", "v[112:115]", k == 0)
    for t in range(4): a(f"ds_write_b128 v26, v[{224+4*t}:{227+4*t}] offset:{L_CS+2048*t}")
    def ldH(b): return [f"buffer_load_dwordx4 v[{b+4*u}:{b+3+4*u}], v62, s[32:35], s59 offen offset:{u*1024} sc1" for u in range(2)]
    def useH(b):
        n = 0
        for u in range(2):
            for t in range(4):
                for hf in range(2):
                    mfma(192 + 8*t + 4*hf, f"v[{128+16*t+8*u+4*hf}:{131+16*t+8*u+4*hf}]", f"v[{b+4*u}:{b+3+4*u}]", u == 0)
                    if n < 8:
                        a(f"v_dot2_f32_bf16 v52, v{b+n}, v112, {'0' if n == 0 else 'v52'}")
                        a(f"v_dot2_f32_bf16 v53, v{b+n}, v{b+n}, {'0' if n == 0 else 'v53'}")
                    if n == 9:
                        for r in range(2): a(f"v_add_f32_dpp v{52+r}, v{52+r}, v{52+r} row_ror:8 row_mask:0xf bank_mask:0xf")
                    if n == 11: a("v_permlane32_swap_b32 v52, v53"); a("v_add_f32 v52, v52, v53"); a("v_mov_b32 v53, v52")
                    if n == 13: a("v_permlane16_swap_b32 v52, v53"); a("v_add_f32 v52, v52, v53"); a(f"ds_write_b32 v49, v52 offset:{L_ST}")
                    n += 1
    poll2("L_pH", ldH, 8, (76, 84), useH)
    stamp(10)
    for t in range(4):
        for r in range(4): a(f"v_add_f32_dpp v{192+8*t+r}, v{196+8*t+r}, v{192+8*t+r} row_ror:8 row_mask:0xf bank_mask:0xf")
        a(f"ds_write_b128 v26, v[{192+8*t}:{195+8*t}] offset:{L_T2+2048*t}")
    a("s_waitcnt lgkmcnt(0)"); a("s_barrier")
    for k in range(2): a(f"ds_read_b128 v[{92+4*k}:{95+4*k}], v61 offset:{L_ST+16*k}")
    for w in range(4): a(f"ds_read_b128 v[{224+4*w}:{227+4*w}], v63 offset:{L_CS+512*w}")
    for w in range(4): a(f"ds_read_b128 v[{116+4*w}:{119+4*w}], v63 offset:{L_T2+512*w}")
    a("s_waitcnt lgkmcnt(8)")
    for k in range(2): a(f"v_add_f32 v{92+k}, v{92+k}, v{94+k}"); a(f"v_add_f32 v{96+k}, v{96+k}, v{98+k}")
    a("v_add_f32 v52, v92, v96"); a("v_add_f32 v53, v93, v97")
    a(f"v_mul_f32 v52, {f32(1/512)}, v52"); a(f"v_mul_f32 v53, {f32(1/512)}, v53")
    a("v_fma_f32 v53, -v52, v52, v53"); a("v_max_f32 v53, 0, v53")
    bf16r("v53"); bf16r("v52")
    a(f"v_add_f32 v53, {f32(1e-5)}, v53"); bf16r("v53")
    a("v_sqrt_f32 v53, v53")
    a("s_waitcnt lgkmcnt(4)")
    for r in range(4): a(f"v_add_f32 v{224+r}, v{224+r}, v{228+r}"); a(f"v_add_f32 v{232+r}, v{232+r}, v{236+r}")
    bf16r("v53"); a("v_rcp_f32 v53, v53")
    for r in range(4): a(f"v_add_f32 v{108+r}, v{224+r}, v{232+r}")
    a("s_waitcnt lgkmcnt(0)")
    for r in range(4): a(f"v_add_f32 v{116+r}, v{116+r}, v{120+r}"); a(f"v_add_f32 v{124+r}, v{124+r}, v{128+r}")
    for r in range(4): a(f"v_add_f32 v{116+r}, v{116+r}, v{124+r}")
    for r in range(4): a(f"v_fma_f32 v{116+r}, -v52, v{108+r}, v{116+r}")
    for r in range(4): a(f"v_mul_f32 v{116+r}, v{116+r}, v53")
    for r in range(2): a(f"v_cvt_pk_bf16_f32 v{120+r}, v{116+2*r}, v{117+2*r}")
    for r in range(2): a(f"v_permlane32_swap_b32 v{120+r}, v{122+r}")
    for r in range(2):
        a(f"v_lshlrev_b32 v{116+2*r}, 16, v{120+r}"); a(f"v_and_b32 v{117+2*r}, 0xffff0000, v{120+r}")
        a(f"v_lshlrev_b32 v{124+2*r}, 16, v{122+r}"); a(f"v_and_b32 v{125+2*r}, 0xffff0000, v{122+r}")
    for r in range(4): a(f"v_max_f32 v{116+r}, 0, v{116+r}")
    for r in range(4): a(f"v_mul_f32 v{116+r}, v{116+r}, v{124+r}")
    for r in range(2): a(f"v_cvt_pk_bf16_f32 v{120+r}, v{116+2*r}, v{117+2*r}")
    a("s_mov_b64 exec, 0x00ff00ff")
    for r in range(2): a(f"v_min_u32 v{120+r}, -2, v{120+r}")
    a("buffer_store_dwordx2 v[120:121], v70, s[32:35], 0 offen sc1")
    stamp(11)
    a("s_branch L_fin")

    C("---- reducer: sum the 32 heads' partials of 2 rows x 32 columns, add x, publish h")
    a("L_s2:")
    a("v_lshlrev_b32 v62, 4, v1")
    a("s_lshl_b32 s59, s89, 13"); a("s_add_u32 s92, s59, 4096")
    a("v_lshlrev_b32 v50, 16, v71"); a("v_and_b32 v51, 0xffff0000, v71")
    def ld8(b): return [f"buffer_load_dwordx4 v[{b+4*u}:{b+3+4*u}], v62, s[32:35], {'s59' if u < 4 else 's92'} offen offset:{(u&3)*1024} sc1" for u in range(8)]
    def useP(b):
        for r in range(16): a(f"v_add_f32 v{108+r}, v{b+r}, v{b+16+r}")
    poll2("L_pP", ld8, 32, (76, 128), useP)
    stamp(8)
    for st in (8, 4):
        for r in range(st): a(f"v_add_f32 v{108+r}, v{108+r}, v{108+st+r}")
    a("v_permlane32_swap_b32 v108, v110"); a("v_permlane32_swap_b32 v109, v111")
    a("v_add_f32 v108, v108, v110"); a("v_add_f32 v109, v109, v111")
    a("v_mov_b32 v110, v108"); a("v_mov_b32 v111, v109")
    a("v_permlane16_swap_b32 v108, v110"); a("v_permlane16_swap_b32 v109, v111")
    a("v_add_f32 v108, v108, v110"); a("v_add_f32 v109, v109, v111")
    a("v_cvt_pk_bf16_f32 v108, v108, v109")
    a("v_and_b32 v109, 0xffff0000, v108"); a("v_lshlrev_b32 v108, 16, v108")
    a("v_add_f32 v108, v108, v50"); a("v_add_f32 v109, v109, v51")
    a("v_cvt_pk_bf16_f32 v108, v108, v109")
    a("s_mov_b32 exec_lo, 0xffff"); a("s_mov_b32 exec_hi, 0xffff")
    a("v_min_u32 v108, -2, v108")
    a("buffer_store_dword v108, v69, s[32:35], 0 offen sc1")
    stamp(9)
    a("s_branch L_fin")

    C("---- 16 output columns, 448 rows of W_down per wave")
    a("L_s4:")
    a("v_lshlrev_b32 v60, 5, v60"); a("v_lshl_add_u32 v60, v61, 3, v60")
    a(f"s_mul_i32 s58, s3, {448*32}"); a(f"s_add_u32 s58, s58, {L_W}"); a("v_add_u32 v60, s58, v60")
    C("h address v49 = H + ((s'>>1)*4 + (b>>1))*128 + (b&1)*64 + (s'&1)*32 + g*8 ; out address v50 = b*1024 + s'*32 + g*8")
    a("v_lshrrev_b32 v49, 1, v27"); a("v_lshlrev_b32 v49, 7, v49"); a("v_and_b32 v50, 1, v27"); a("v_lshl_add_u32 v49, v50, 6, v49")
    a("v_lshl_add_u32 v49, v74, 3, v49")
    a("s_lshr_b32 s58, s89, 1"); a("s_lshl_b32 s58, s58, 9"); a("s_and_b32 s92, s89, 1"); a("s_lshl_b32 s92, s92, 5"); a("s_add_u32 s58, s58, s92")
    a(f"s_add_u32 s58, s58, {WS_H}"); a("v_add_u32 v49, s58, v49")
    a("v_lshlrev_b32 v50, 10, v27"); a("v_lshl_add_u32 v50, v74, 3, v50"); a("s_lshl_b32 s58, s89, 5"); a("v_add_u32 v50, s58, v50")
    a(f"s_mul_i32 s59, s3, {7*1024}"); a(f"s_add_u32 s59, s59, {WS_G}"); a("s_add_u32 s92, s59, 4096")
    a("v_lshlrev_b32 v62, 4, v1")
    a("s_waitcnt vmcnt(0)")
    stamp(13)
    for u in range(7):
        for hf in range(2):
            for sec in range(2): trread(128 + 8*u + 4*hf + 2*sec, "v60", (64*u + 8*hf + 4*sec) * 32)
        if u in (2, 5): a("s_waitcnt lgkmcnt(4)")
    a("s_waitcnt lgkmcnt(0)")
    def ldG(b): return ld8(b)[:7] + [f"buffer_load_dwordx2 v[{b+28}:{b+29}], v49, s[32:35], 0 offen sc1"]
    def useG(b):
        for u in range(7):
            for hf in range(2): mfma(108 + 4*hf, f"v[{128+8*u+4*hf}:{131+8*u+4*hf}]", f"v[{b+4*u}:{b+3+4*u}]", u == 0)
        for r in range(2):
            a(f"v_lshlrev_b32 v{116+2*r}, 16, v{b+28+r}"); a(f"v_and_b32 v{117+2*r}, 0xffff0000, v{b+28+r}")
    poll2("L_pG", ldG, 30, (76, 192), useG)
    stamp(10)
    for r in range(4): a(f"v_add_f32_dpp v{108+r}, v{112+r}, v{108+r} row_ror:8 row_mask:0xf bank_mask:0xf")
    a("s_mov_b32 exec_lo, 0x00ff00ff"); a("s_mov_b32 exec_hi, 0x00ff00ff")
    a(f"ds_write_b128 v26, v[108:111] offset:{L_TX}")
    a("s_waitcnt lgkmcnt(0)"); a("s_barrier")
    a("s_cmp_eq_u32 s3, 3"); a("s_cbranch_scc0 L_fin")
    for w in range(4): a(f"ds_read_b128 v[{128+4*w}:{131+4*w}], v63 offset:{L_TX+512*w}")
    a("s_waitcnt lgkmcnt(0)")
    for r in range(4):
        a(f"v_add_f32 v{128+r}, v{128+r}, v{132+r}"); a(f"v_add_f32 v{136+r}, v{136+r}, v{140+r}")
    for r in range(4): a(f"v_add_f32 v{128+r}, v{128+r}, v{136+r}")
    for r in range(2): a(f"v_cvt_pk_bf16_f32 v{132+r}, v{128+2*r}, v{129+2*r}")
    for r in range(2):
        a(f"v_lshlrev_b32 v{128+2*r}, 16, v{132+r}"); a(f"v_and_b32 v{129+2*r}, 0xffff0000, v{132+r}")
    for r in range(4): a(f"v_add_f32 v{128+r}, v{128+r}, v{116+r}")
    for r in range(2): a(f"v_cvt_pk_bf16_f32 v{132+r}, v{128+2*r}, v{129+2*r}")
    a("buffer_store_dwordx2 v[132:133], v50, s[36:39], 0 offen")
    stamp(11)
    a("L_fin:")
    if probe is not None:
        a(f"s_cmp_eq_u32 s2, {pwg}"); a("s_cbranch_scc0 L_end"); a("s_cmp_eq_u32 s3, 3"); a("s_cbranch_scc0 L_end")
        if probe == 0: a("s_mov_b32 s20, 0")
        a("s_add_u32 s20, s20, 10000")
        a("L_probe:")
        a("s_sleep 4"); a("s_memrealtime s[94:95]"); a("s_waitcnt lgkmcnt(0)"); a("s_sub_u32 s94, s94, s18")
        a("s_cmp_lt_u32 s94, s20"); a("s_cbranch_scc1 L_probe")
    if stamps:
        a("s_mov_b64 exec, -1")
        stamp(12)
        a("s_getreg_b32 s92, hwreg(HW_REG_XCC_ID)"); a("v_writelane_b32 v73, s92, 15")
        a("s_lshl_b32 s58, s2, 2"); a("s_add_u32 s58, s58, s3"); a("s_lshl_b32 s58, s58, 7"); a(f"s_add_u32 s58, s58, {WS_ST}")
        a("v_lshlrev_b32 v48, 2, v1"); a("s_mov_b32 exec_hi, 0")
        a("buffer_store_dword v73, v48, s[32:35], s58 offen")
        if "dbgout" in xp:
            a("s_cmp_eq_u32 s2, 229"); a("s_cbranch_scc0 L_end"); a("s_cmp_eq_u32 s3, 3"); a("s_cbranch_scc0 L_end")
            a("v_subrev_u32 v73, s18, v73"); a("s_mov_b64 exec, 0xffff")
            a("global_store_dword v48, v73, s[84:85] sc1")
    a("L_end:")
    a("s_endpgm")
    body = a.finish()
    head_ = HEADER + f"; @launch grid=(256,1,1) block=(256,1,1) lds={L_SIZE}\n" + '.amdgcn_target "amdgcn-amd-amdhsa--gfx950"\n.text\n' + \
        f".globl {NAME}\n.p2align 8\n.type {NAME},@function\n"
    tail = f""".section .rodata,"a"
.p2align 6
.amdhsa_kernel {NAME}
  .amdhsa_next_free_vgpr 384
  .amdhsa_next_free_sgpr 102
  .amdhsa_accum_offset 256
  .amdhsa_group_segment_fixed_size 0
  .amdhsa_kernarg_size 96
  .amdhsa_user_sgpr_count 2
  .amdhsa_user_sgpr_kernarg_segment_ptr 1
  .amdhsa_system_sgpr_workgroup_id_x 1
.end_amdhsa_kernel
"""
    return head_ + body + tail

if __name__ == "__main__":
    kw = eval("dict(%s)" % (sys.argv[2] if len(sys.argv) > 2 else ""))
    open(sys.argv[1], "w").write(gen(**kw))
```

```python
import sys, struct
sys.path.insert(0, __file__.rsplit('/', 1)[0])
from asmlib import Asm

NAME = "sequential_preLN__mha_block_cached__glu_gated_reglu__decode_kernel"
HEADER = open(__file__.rsplit('/', 1)[0] + '/header.txt').read()

def f32(x): return "0x%08x" % struct.unpack('<I', struct.pack('<f', x))[0]

WS_P, WS_H, WS_G, WS_ST, WS_SIZE = 0, 0x80000, 0x82000, 0x100000, 0x140000
L_QP, L_OP, L_ML, L_ST, L_TX, L_T2, L_CS, L_W, L_DUMP, L_SIZE = 0, 2048, 4096, 4160, 4608, 8192, 16384, 24576, 90112, 106496
RING = 128
NB = 32
SPIN = 200000

def gen(D=5, hi=1, pol="nt", wpol="", fpol="", early=(2, 7, 12, 17), n1=5, kq=2, nbar=2, nA=3, nB=3, D1=None,
        stag=0, cpf2=0, fin=10, ctl=1, slack=170, k0=1, late=0, cpf=23, rot=0, nw=2, nwl=1, eps=0, head=(300, 350), hiu=(4, 4), cal=3, stamps=0, xp=(), probe=None, pwg=130, vpol=None, pre=4, r2=0, slack2=40):
    a = Asm()
    vm = []
    def C(t): a("; " + t)
    def vwait(tag):
        n = len(vm) - 1 - vm.index(tag)
        a(f"s_waitcnt vmcnt({min(n, 63)})")
    def stamp(k):
        if probe == k:
            a("s_memrealtime s[94:95]"); a("s_waitcnt lgkmcnt(0)"); a("s_sub_u32 s20, s94, s18")
        if stamps == 2 and k not in (6, 12): return
        if stamps == 3 and k not in (3, 4, 6, 12): return
        if stamps:
            a("s_memrealtime s[94:95]"); a("s_waitcnt lgkmcnt(0)"); a(f"v_writelane_b32 v73, s94, {k}")
    def lapstamp(off):
        if stamps == 3:
            a("s_memrealtime s[94:95]"); a(f"s_add_u32 m0, s56, {off}"); a("s_waitcnt lgkmcnt(0)"); a("v_writelane_b32 v73, s94, m0")
    def allred(op, v, t):
        for n in (8, 4, 2, 1): a(f"{op}_dpp {v}, {v}, {v} row_ror:{n} row_mask:0xf bank_mask:0xf")
        for sw in ("v_permlane16_swap_b32", "v_permlane32_swap_b32"):
            a(f"v_mov_b32 {t}, {v}"); a(f"{sw} {v}, {t}"); a(f"{op} {v}, {v}, {t}")
    def bf16r(v):
        a(f"v_cvt_pk_bf16_f32 {v}, {v}, {v}"); a(f"v_and_b32 {v}, 0xffff0000, {v}")
    def srd(d, lo, hi_, size, add=None):
        if add is None:
            a(f"s_mov_b32 s{d}, s{lo}"); a(f"s_mov_b32 s{d+1}, s{hi_}")
        else:
            a(f"s_add_u32 s{d}, s{lo}, {add}"); a(f"s_addc_u32 s{d+1}, s{hi_}, 0")
        a(f"s_mov_b32 s{d+2}, {size}"); a(f"s_mov_b32 s{d+3}, 0x20000")
    cur = [pol]
    def ring(j): j %= NB; return f"v[{RING+4*j}:{RING+4*j+3}]"
    def sload(j):
        s, b = ("s[12:15]", "s55") if j >= NB else ("s[8:11]", "s54")
        j %= NB
        a(f"buffer_load_dwordx4 {ring(j)}, v{2+(j>>2)}, {s}, {b} offen offset:{(j&3)*1024} {cur[0]}")
    def masks(t, src, lane):
        for r in range(4):
            a(f"v_and_b32_dpp v{18+4*(t&1)+r}, {src}, v{14+r} row_newbcast:{lane} row_mask:0xf bank_mask:0xf")
    def mop(t): return f"v[{18+4*(t&1)}:{21+4*(t&1)}]"
    def mfma(d, x, y, first): a(f"v_mfma_f32_16x16x32_bf16 v[{d}:{d+3}], {x}, {y}, {'0' if first else 'v[%d:%d]' % (d, d+3)}")
    def bitrev(t): return ((t & 1) << 3) | ((t & 2) << 1) | ((t & 4) >> 1) | ((t & 8) >> 3)
    def check(regs, ok):
        r = list(regs)
        a(f"v_max3_u32 v48, v{r[0]}, v{r[1]}, v{r[2]}"); r = r[3:]
        while len(r) >= 2:
            a(f"v_max3_u32 v48, v48, v{r[0]}, v{r[1]}"); r = r[2:]
        if r: a(f"v_max_u32 v48, v48, v{r[0]}")
        a("v_cmp_eq_u32 vcc, -1, v48")
        a(f"s_cbranch_vccz {ok}")
    def poll2(label, loads, nreg, bases, use):
        n = len(loads(bases[0]))
        a(f"s_mov_b32 s88, {SPIN}")
        for l in loads(bases[0]): a(l)
        if stag: a(f"s_sleep {stag}")
        a(f"{label}:")
        for l in loads(bases[1]): a(l)
        a(f"s_waitcnt vmcnt({n})")
        check(range(bases[0], bases[0] + nreg), f"{label}_A")
        for l in loads(bases[0]): a(l)
        a(f"s_waitcnt vmcnt({n})")
        check(range(bases[1], bases[1] + nreg), f"{label}_B")
        a("s_sub_u32 s88, s88, 1")
        a(f"s_cbranch_scc0 {label}")
        a(f"{label}_B:")
        use(bases[1])
        a(f"s_branch {label}_done")
        a(f"{label}_A:")
        use(bases[0])
        a(f"{label}_done:")
    def trread(dst, addr, off): a(f"ds_read_b64_tr_b16 v[{dst}:{dst+1}], {addr} offset:{off}")

    a(f"{NAME}:")
    a("s_cmp_ge_u32 s2, 256"); a("s_cbranch_scc1 L_end")
    a("s_memrealtime s[18:19]")
    a("s_load_dwordx16 s[64:79], s[0:1], 0")
    a("s_load_dwordx8 s[80:87], s[0:1], 64")
    if cpf:
        C("pull the kernel's own code towards this die's L2, one KiB per wave")
        a("s_getpc_b64 s[60:61]"); a("s_and_b32 s60, s60, 0xffffff00")
        a("s_lshr_b32 s58, s2, 3"); a("s_lshl_b32 s58, s58, 8"); a("v_add_u32 v60, s58, v0"); a("v_lshlrev_b32 v60, 4, v60")
        a(f"v_cmp_gt_u32 vcc, {cpf*1024}, v60"); a("s_and_saveexec_b64 s[62:63], vcc"); a("s_cbranch_execz L_nocpf")
        a("global_load_dwordx4 v[76:79], v60, s[60:61]")
        a("L_nocpf:")
        a("s_mov_b64 exec, -1")
    C("s3 wave, s4 batch row, s5 head; v1 lane, v74 lane>>4 (g), v75 lane&15 (i)")
    a("v_lshrrev_b32 v1, 6, v0")
    a("v_readfirstlane_b32 s3, v1")
    a("v_and_b32 v1, 63, v0")
    a("s_lshr_b32 s4, s2, 5"); a("s_and_b32 s5, s2, 31")
    a("v_lshrrev_b32 v74, 4, v1"); a("v_and_b32 v75, 15, v1")
    a("v_lshlrev_b32 v48, 4, v1")
    a("s_lshl_b32 s58, s3, 12"); a("v_add_u32 v2, s58, v48")
    for k in range(1, 8): a(f"v_add_u32 v{2+k}, {k*16384}, v2")
    C("the eight workgroups of a head walk its rows of wq / wo from different starting points: v72 = (i + 2b) & 15")
    a(f"s_lshl_b32 s97, s4, 1") if rot else a("s_mov_b32 s97, 0")
    a("v_add_u32 v72, s97, v75"); a("v_and_b32 v72, 15, v72")
    a("s_lshl_b32 s58, s3, 8"); a("v_lshlrev_b32 v49, 3, v72"); a("v_lshl_add_u32 v49, v74, 1, v49"); a("v_add_u32 v49, s58, v49")
    a("v_lshlrev_b32 v67, 4, v72"); a("v_lshl_add_u32 v65, v74, 2, v67")
    a("v_lshrrev_b32 v51, 1, v74")
    C("wq lane offset v58 = (128w+g)*8192 + i*16 ; wo lane offset v59 = g*1024 + w*256 + i*16")
    a("s_lshl_b32 s58, s3, 20"); a("v_lshlrev_b32 v58, 13, v74"); a("v_lshl_add_u32 v58, v75, 4, v58"); a("v_add_u32 v58, s58, v58")
    a("s_lshl_b32 s58, s3, 8"); a("v_lshlrev_b32 v59, 10, v74"); a("v_lshl_add_u32 v59, v75, 4, v59"); a("v_add_u32 v59, s58, v59")
    a("s_lshl_b32 s57, s4, 10"); a("s_lshl_b32 s58, s5, 8"); a("s_lshl_b32 s59, s2, 20")
    a("s_sub_u32 s92, 0x400000, s58")
    a("s_mov_b32 s54, 0")
    a("s_waitcnt lgkmcnt(0)")
    if stamps: a("v_mov_b32 v73, 0"); a("v_writelane_b32 v73, s18, 0")
    kiss = 0
    def kload():
        nonlocal kiss
        sload(kiss - kbase); vm.append(f"k{kiss}"); kiss += 1
    kbase = 0
    srd(8, 66, 67, 0x100000, "s59")
    for j in range(k0): kload()
    srd(28, 64, 65, 8192)
    a("buffer_load_dwordx4 v[52:55], v48, s[28:31], s57 offen"); vm.append("x")
    a("buffer_load_ushort v56, v49, s[28:31], s57 offen"); vm.append("xc0")
    a("buffer_load_ushort v57, v49, s[28:31], s57 offen offset:128"); vm.append("xc1")
    srd(20, 70, 71, "s92", "s58")
    wiss = 0
    def wqload():
        nonlocal wiss
        a(f"s_add_u32 s58, s97, {wiss & 15}"); a("s_and_b32 s58, s58, 15"); a("s_lshl_b32 s58, s58, 15")
        if wiss >= 16: a("s_or_b32 s58, s58, 0x80000")
        a(f"buffer_load_dwordx4 a[{4*wiss}:{4*wiss+3}], v58, s[20:23], s58 offen {wpol}"); vm.append(f"wq{wiss}"); wiss += 1
    for j in range(n1):
        if j: kload()
        for x in range(nw): wqload()
    a("s_add_u32 s16, s68, s59"); a("s_addc_u32 s17, s69, 0")
    a("s_mov_b32 s12, s8"); a("s_mov_b32 s13, s9"); a("s_mov_b32 s14, 0x100000"); a("s_mov_b32 s15, 0x20000")
    a("s_lshl_b32 s58, s5, 17"); srd(24, 72, 73, 0x20000, "s58")
    def setup_late():
        a("v_lshrrev_b32 v77, 1, v74"); a("v_lshlrev_b32 v78, 4, v1")
        srd(32, 86, 87, WS_SIZE); srd(36, 82, 83, 8192)
        srd(40, 76, 77, 512*3584); srd(44, 78, 79, 512*3584)
        C("role s7 / index s89: 1 gate+up tiles (wg<56), 2 reducer (64<=wg<128), 3 output slice (wg>=224), 0 none")
        a("s_and_b32 s58, s2, 7"); a("s_lshr_b32 s92, s2, 3")
        a("s_mul_i32 s89, s58, 7"); a("s_add_u32 s89, s89, s92")
        a("s_cmp_lt_u32 s2, 56"); a("s_cselect_b32 s7, 1, 0")
        a("s_lshl_b32 s58, s58, 2"); a("s_add_u32 s58, s58, s92"); a("s_sub_u32 s58, s58, 28")
        a("s_cmp_ge_u32 s2, 224"); a("s_cselect_b32 s89, s58, s89"); a("s_cselect_b32 s7, 3, s7")
        a("s_sub_u32 s58, s2, 64"); a("s_cmp_lt_u32 s58, 64"); a("s_cselect_b32 s89, s58, s89"); a("s_cselect_b32 s7, 2, s7")
        a("s_lshl_b32 s6, s3, 2"); a("s_add_u32 s6, s6, s7")
        C("P store offset v68 = ((4w + (i>>2))*4 + (b>>1))*8192 + (2h + (b&1))*128 + (i&3)*32 + g*16")
        a("v_lshrrev_b32 v68, 2, v75"); a("v_lshlrev_b32 v68, 15, v68"); a("v_lshl_add_u32 v68, v74, 4, v68")
        a("v_and_b32 v60, 3, v75"); a("v_lshl_add_u32 v68, v60, 5, v68")
        a("s_lshl_b32 s58, s3, 17"); a("s_lshr_b32 s92, s4, 1"); a("s_lshl_b32 s92, s92, 13"); a("s_add_u32 s58, s58, s92")
        a("s_lshl_b32 s92, s5, 8"); a("s_add_u32 s58, s58, s92")
        a("s_and_b32 s92, s4, 1"); a("s_lshl_b32 s92, s92, 7"); a("s_add_u32 s58, s58, s92"); a("v_add_u32 v68, s58, v68")
        C("H store offset v69 = H + rho*128 + i*8 + (g>>1)*4 ; x offset v76 = (2(rho&3) + (i>>3))*1024 + (rho>>2)*64 + (i&7)*8 + (g>>1)*4")
        a("v_lshlrev_b32 v69, 3, v75"); a("v_lshl_add_u32 v69, v77, 2, v69")
        a("v_lshrrev_b32 v76, 3, v75"); a("v_lshlrev_b32 v76, 10, v76"); a("v_and_b32 v60, 7, v75"); a("v_lshl_add_u32 v76, v60, 3, v76")
        a("v_lshl_add_u32 v76, v77, 2, v76")
        a("s_and_b32 s58, s89, 3"); a("s_lshl_b32 s58, s58, 11"); a("s_lshr_b32 s92, s89, 2"); a("s_lshl_b32 s92, s92, 6"); a("s_add_u32 s58, s58, s92")
        a("v_add_u32 v76, s58, v76")
        a("s_lshl_b32 s58, s89, 7"); a(f"s_add_u32 s58, s58, {WS_H}"); a("v_add_u32 v69, s58, v69")
        a("buffer_load_dword v71, v76, s[28:31], 0 offen"); vm.append("xr")
        C("G store offset v70 = G + (4*s89 + w)*128 + i*16 + g*8")
        a("v_lshlrev_b32 v70, 4, v75"); a("v_lshl_add_u32 v70, v74, 3, v70")
        a("s_lshl_b32 s58, s89, 2"); a("s_add_u32 s58, s58, s3"); a("s_lshl_b32 s58, s58, 7"); a(f"s_add_u32 s58, s58, {WS_G}"); a("v_add_u32 v70, s58, v70")
        C("wave 0 of the reducers marks every hand-off line empty (all ones): own P lines, own H line, four G lines")
        a("s_cmp_eq_u32 s6, 2"); a("s_cbranch_scc0 L_noclr")
        for r in range(4): a(f"v_mov_b32 v{60+r}, -1")
        a("s_lshl_b32 s58, s89, 13"); a("s_add_u32 s92, s58, 4096")
        for u in range(8): a(f"buffer_store_dwordx4 v[60:63], v78, s[32:35], {'s58' if u < 4 else 's92'} offen offset:{(u&3)*1024} sc1")
        a("s_lshl_b32 s58, s89, 9"); a(f"s_add_u32 s58, s58, {WS_G}"); a("s_mov_b32 exec_hi, 0")
        a("buffer_store_dwordx4 v[60:63], v78, s[32:35], s58 offen sc1")
        a("s_lshl_b32 s58, s89, 7"); a(f"s_add_u32 s58, s58, {WS_H}"); a("s_mov_b32 exec_lo, 0xff")
        a("buffer_store_dwordx4 v[60:63], v78, s[32:35], s58 offen sc1")
        a("s_mov_b64 exec, -1")
        a("L_noclr:")
    if not late:
        srd(32, 86, 87, WS_SIZE); srd(36, 82, 83, 8192)
        srd(40, 76, 77, 512*3584); srd(44, 78, 79, 512*3584)
        C("role s7 / index s89: 1 gate+up tiles (wg<56), 2 reducer (64<=wg<128), 3 output slice (wg>=224), 0 none")
        a("s_and_b32 s58, s2, 7"); a("s_lshr_b32 s92, s2, 3")
        a("s_mul_i32 s89, s58, 7"); a("s_add_u32 s89, s89, s92")
        a("s_cmp_lt_u32 s2, 56"); a("s_cselect_b32 s7, 1, 0")
        a("s_lshl_b32 s58, s58, 2"); a("s_add_u32 s58, s58, s92"); a("s_sub_u32 s58, s58, 28")
        a("s_cmp_ge_u32 s2, 224"); a("s_cselect_b32 s89, s58, s89"); a("s_cselect_b32 s7, 3, s7")
        a("s_sub_u32 s58, s2, 64"); a("s_cmp_lt_u32 s58, 64"); a("s_cselect_b32 s89, s58, s89"); a("s_cselect_b32 s7, 2, s7")
        a("s_lshl_b32 s6, s3, 2"); a("s_add_u32 s6, s6, s7")
        C("P store offset v68 = ((4w + (i>>2))*4 + (b>>1))*8192 + (2h + (b&1))*128 + (i&3)*32 + g*16")
        a("v_lshrrev_b32 v68, 2, v75"); a("v_lshlrev_b32 v68, 15, v68"); a("v_lshl_add_u32 v68, v74, 4, v68")
        a("v_and_b32 v60, 3, v75"); a("v_lshl_add_u32 v68, v60, 5, v68")
        a("s_lshl_b32 s58, s3, 17"); a("s_lshr_b32 s92, s4, 1"); a("s_lshl_b32 s92, s92, 13"); a("s_add_u32 s58, s58, s92")
        a("s_lshl_b32 s92, s5, 8"); a("s_add_u32 s58, s58, s92")
        a("s_and_b32 s92, s4, 1"); a("s_lshl_b32 s92, s92, 7"); a("s_add_u32 s58, s58, s92"); a("v_add_u32 v68, s58, v68")
        C("H store offset v69 = H + rho*128 + i*8 + (g>>1)*4 ; x offset v50 = (2(rho&3) + (i>>3))*1024 + (rho>>2)*64 + (i&7)*8 + (g>>1)*4")
        a("v_lshlrev_b32 v69, 3, v75"); a("v_lshl_add_u32 v69, v51, 2, v69")
        a("v_lshrrev_b32 v50, 3, v75"); a("v_lshlrev_b32 v50, 10, v50"); a("v_and_b32 v60, 7, v75"); a("v_lshl_add_u32 v50, v60, 3, v50")
        a("v_lshl_add_u32 v50, v51, 2, v50")
        a("s_and_b32 s58, s89, 3"); a("s_lshl_b32 s58, s58, 11"); a("s_lshr_b32 s92, s89, 2"); a("s_lshl_b32 s92, s92, 6"); a("s_add_u32 s58, s58, s92")
        a("v_add_u32 v50, s58, v50")
        a("s_lshl_b32 s58, s89, 7"); a(f"s_add_u32 s58, s58, {WS_H}"); a("v_add_u32 v69, s58, v69")
        a("buffer_load_dword v71, v50, s[28:31], 0 offen"); vm.append("xr")
        C("G store offset v70 = G + (4*s89 + w)*128 + i*16 + g*8")
        a("v_lshlrev_b32 v70, 4, v75"); a("v_lshl_add_u32 v70, v74, 3, v70")
        a("s_lshl_b32 s58, s89, 2"); a("s_add_u32 s58, s58, s3"); a("s_lshl_b32 s58, s58, 7"); a(f"s_add_u32 s58, s58, {WS_G}"); a("v_add_u32 v70, s58, v70")
        C("the reducers mark every hand-off line empty (all ones): own P lines, own H line, four G lines")
        a("s_cmp_eq_u32 s7, 2"); a("s_cbranch_scc0 L_noclr")
        for r in range(4): a(f"v_mov_b32 v{60+r}, -1")
        a("s_lshl_b32 s58, s89, 13"); a("s_lshl_b32 s92, s3, 11"); a("s_add_u32 s58, s58, s92")
        a("buffer_store_dwordx4 v[60:63], v48, s[32:35], s58 offen sc1")
        a("buffer_store_dwordx4 v[60:63], v48, s[32:35], s58 offen offset:1024 sc1")
        a("s_mov_b64 exec, 0x00ff00ff")
        a("buffer_store_dwordx2 v[60:61], v70, s[32:35], 0 offen sc1")
        a("s_cmp_eq_u32 s3, 0"); a("s_cbranch_scc0 L_noclr")
        a("s_mov_b32 exec_lo, 0xffff"); a("s_mov_b32 exec_hi, 0xffff")
        a("buffer_store_dword v60, v69, s[32:35], 0 offen sc1")
        a("L_noclr:")
        a("s_mov_b64 exec, -1")
    for j in range(nA): kload()
    stamp(1)
    a("s_mov_b32 s60, 0xcccccccc"); a("s_mov_b32 s61, 0xcccccccc"); a("s_mov_b32 s62, 0xaaaaaaaa"); a("s_mov_b32 s63, 0xaaaaaaaa")
    a(f"s_mov_b32 s90, {f32(128 ** -0.5)}"); a(f"s_mov_b32 s91, {f32(1.4426950408889634)}")
    C("selector masks v14..17: lane (g,m): m<8 and m>>1==r -> m&1 ? 0xffff0000 : 0xffff")
    a("v_and_b32 v60, 1, v75"); a("v_lshlrev_b32 v60, 4, v60"); a("v_mov_b32 v61, 0xffff"); a("v_lshlrev_b32 v60, v60, v61")
    a("v_lshrrev_b32 v61, 1, v75")
    for r in range(4):
        a(f"v_cmp_eq_u32 vcc, {r}, v61"); a(f"v_cndmask_b32 v{14+r}, 0, v60, vcc")
    C("---- LayerNorm of x[b]")
    vwait("x")
    for j in range(nB): kload()
    for k in range(4):
        a(f"v_lshlrev_b32 v{76+2*k}, 16, v{52+k}"); a(f"v_and_b32 v{77+2*k}, 0xffff0000, v{52+k}")
    a("v_add_f32 v84, v76, v77")
    for k in range(2, 8): a(f"v_add_f32 v84, v84, v{76+k}")
    allred("v_add_f32", "v84", "v85")
    a(f"v_mul_f32 v84, {f32(1/512)}, v84")
    for k in range(8): a(f"v_sub_f32 v{76+k}, v{76+k}, v84")
    a("v_mul_f32 v86, v76, v76")
    for k in range(1, 8): a(f"v_fmac_f32 v86, v{76+k}, v{76+k}")
    allred("v_add_f32", "v86", "v85")
    a(f"v_mul_f32 v86, {f32(1/512)}, v86")
    bf16r("v84"); bf16r("v86")
    a(f"v_add_f32 v86, {f32(1e-5)}, v86"); bf16r("v86")
    a("v_sqrt_f32 v86, v86"); bf16r("v86"); a("v_rcp_f32 v86, v86")
    vwait("xc1")
    for k in range(2):
        a(f"v_lshlrev_b32 v{56+k}, 16, v{56+k}"); a(f"v_sub_f32 v{56+k}, v{56+k}, v84"); bf16r(f"v{56+k}")
        a(f"v_mul_f32 v{56+k}, v{56+k}, v86"); a(f"v_cvt_pk_bf16_f32 v{66+k}, v{56+k}, v{56+k}")
    stamp(2)
    C("---- q = xn @ wq[:, head], 128 rows per wave")
    masks(0, "v66", 0)
    for t in range(32):
        vwait(f"wq{t}")
        mfma(28, mop(t), f"a[{4*t}:{4*t+3}]", t == 0)
        if wiss < 32: wqload()
        if int((t + 1) / kq) > int(t / kq) and kiss < NB: kload()
        if t < 31: masks(t + 1, "v66" if t + 1 < 16 else "v67", (t + 1) & 15)
    for j in range(nbar):
        if kiss < NB: kload()
    a("v_lshlrev_b32 v27, 5, v75"); a("v_lshl_add_u32 v26, v74, 4, v27"); a("s_lshl_b32 s58, s3, 9"); a("v_add_u32 v26, s58, v26")
    a("s_mov_b32 exec_hi, 0")
    a(f"ds_write_b128 v26, v[28:31] offset:{L_QP}")
    a("s_mov_b64 exec, -1")
    a("s_waitcnt lgkmcnt(0)"); a("s_barrier")
    for w in range(4):
        for hh in range(2): a(f"ds_read_b128 v[{76+8*w+4*hh}:{79+8*w+4*hh}], v27 offset:{L_QP+512*w+16*hh}")
    a("s_waitcnt lgkmcnt(0)")
    for k in range(8):
        a(f"v_add_f32 v{76+k}, v{76+k}, v{84+k}"); a(f"v_add_f32 v{92+k}, v{92+k}, v{100+k}")
    for k in range(8): a(f"v_add_f32 v{76+k}, v{76+k}, v{92+k}")
    for k in range(4): a(f"v_cvt_pk_bf16_f32 v{10+k}, v{76+2*k}, v{77+2*k}")
    a("v_mov_b32 v27, v65")
    a("v_mov_b32 v64, 0xff800000"); a("v_mov_b32 v65, 0")
    stamp(3)

    def kconsume(i):
        t = i & 15
        x = f"v{48 + (t & 1)}"
        base = RING + 4 * i
        a(f"v_dot2_f32_bf16 {x}, v{base}, v10, 0")
        for r in range(1, 4): a(f"v_dot2_f32_bf16 {x}, v{base+r}, v{10+r}, {x}")
        if t & 1:
            d = f"v{50 + ((t >> 1) & 1)}"
            a(f"v_add_f32_dpp {d}, v48, v48 row_ror:8 row_mask:0xf bank_mask:0x3")
            a(f"v_add_f32_dpp {d}, v49, v49 row_ror:8 row_mask:0xf bank_mask:0xc")
        if t & 3 == 3:
            d = f"v{52 + ((t >> 2) & 1)}"
            a(f"v_add_f32_dpp {d}, v50, v50 row_half_mirror row_mask:0xf bank_mask:0x5")
            a(f"v_add_f32_dpp {d}, v51, v51 row_half_mirror row_mask:0xf bank_mask:0xa")
        if t & 7 == 7:
            d = f"v{54 + ((t >> 3) & 1)}"
            a("v_add_f32_dpp v52, v52, v52 quad_perm:[2,3,0,1] row_mask:0xf bank_mask:0xf")
            a("v_add_f32_dpp v53, v53, v53 quad_perm:[2,3,0,1] row_mask:0xf bank_mask:0xf")
            a(f"v_cndmask_b32 {d}, v52, v53, s[60:61]")
        if t == 15:
            s = f"v{46 + (i >> 4)}"
            a("v_add_f32_dpp v54, v54, v54 quad_perm:[1,0,3,2] row_mask:0xf bank_mask:0xf")
            a("v_add_f32_dpp v55, v55, v55 quad_perm:[1,0,3,2] row_mask:0xf bank_mask:0xf")
            a(f"v_cndmask_b32 {s}, v54, v55, s[62:63]")
            bf16r(s); a(f"v_mul_f32 {s}, s90, {s}"); bf16r(s)
            a(f"v_max_f32 v64, v64, {s}")
    C("---- lap 0: the keys that arrived while q was formed")
    a(f"s_mov_b32 s55, {NB*4096}")
    left = NB + D - kiss
    early = list(early)
    while early and early[-1] >= NB - (left - len(early)): early.pop()
    sched = early + list(range(NB - (left - len(early)), NB))
    assert len(set(sched)) == left, (sched, left)
    for i in range(NB):
        vwait(f"k{i}")
        if i in sched:
            assert kiss - NB < i
            kload()
        kconsume(i)
    stamp(4)
    C("---- the next laps also bring in this head's rows of wo")
    wo = 0
    for lap in range(1, nwl + 1):
        a("s_mov_b32 s54, s55"); a(f"s_add_u32 s55, s55, {NB*4096}")
        for k in range(2 * lap): a(f"v_mov_b32 v{46-2*lap+k}, v{48-2*lap+k}")
        kbase = NB * lap
        if lap == 1:
            for j in range((D1 or D) - D): kload()
        for i in range(NB):
            vwait(f"k{NB*lap+i}")
            if kiss < (nwl + 1) * NB + D: kload()
            if wo < 32 and i % nwl == 0:
                a(f"s_add_u32 s58, s97, {wo & 15}"); a("s_and_b32 s58, s58, 15"); a("s_lshl_b32 s58, s58, 12")
                if wo >= 16: a("s_or_b32 s58, s58, 0x10000")
                a(f"buffer_load_dwordx4 a[{4*wo}:{4*wo+3}], v59, s[24:27], s58 offen {wpol}"); vm.append(f"wo{wo}"); wo += 1
            kconsume(i)
            if late and lap == 1 and i == 4: setup_late()
    assert wo == 32

    def decide(label, br):
        a("s_waitcnt lgkmcnt(0)")
        a("s_sub_u32 s58, s52, s48"); a("s_lshl_b32 s58, s58, 8"); a("s_sub_u32 s58, s58, s49"); a("s_add_u32 s49, s49, s57")
        a("s_sub_u32 s19, s19, 1"); a("s_cmp_ge_i32 s19, 0"); a("s_cselect_b32 s58, 1, s58")
        a("s_cmp_gt_i32 s58, 0")
        a(f"s_cbranch_{br} {label}")
    def segment(tag, mode, k, consume):
        DD = D + (hi if mode else 0); i0 = 16 * k
        if mode:
            a("s_cmp_eq_u32 s51, 1"); a(f"s_cbranch_scc1 {tag}_in")
            for j in range(D, DD): sload(i0 + j)
            a(f"{tag}_in:")
        for i in range(i0, i0 + 16):
            a(f"s_waitcnt vmcnt({DD - 1})")
            skip = (not mode) and i - i0 < hi
            if skip: a("s_cmp_eq_u32 s51, 1"); a(f"s_cbranch_scc1 {tag}_s{i}")
            sload(i + DD)
            if skip: a(f"{tag}_s{i}:")
            if i - i0 == hi: a(f"s_mov_b32 s51, {mode}")
            if i - i0 == 15: a("s_memrealtime s[52:53]")
            consume(i)
    def cal_events(base):
        lo, up = (nwl + 1, 8) if base == 0 else (8, 16)
        if lo <= cal < up:
            a("s_waitcnt lgkmcnt(0)"); a(f"s_cmp_eq_u32 s56, {cal-base}"); a("s_cselect_b32 s88, s52, s88")
        if lo <= cal + 2 < up:
            a("s_lshl_b32 s58, s6, 4"); a("s_add_u32 s58, s58, s56")
            a(f"s_cmp_eq_u32 s58, {32+cal+2-base}"); a("s_cbranch_scc0 L_norep")
            a("s_waitcnt lgkmcnt(0)")
            a("s_sub_u32 s58, s52, s88"); a("s_min_u32 s58, s58, 0x7fff"); a("s_max_u32 s58, s58, 1"); a("s_pack_ll_b32_b16 s58, s52, s58")
            a("v_mov_b32 v61, s58"); a("s_lshl_b32 s58, s89, 2"); a("v_mov_b32 v60, s58"); a("s_mov_b64 exec, 1")
            a("global_store_dword v60, v61, s[84:85] sc1")
            a("s_mov_b64 exec, -1")
            a("L_norep:")
        if lo <= cal + 2 < up and pre:
            a("s_and_b32 s58, s7, 1"); a("s_lshl_b32 s58, s58, 4"); a("s_add_u32 s58, s58, s56")
            a(f"s_cmp_eq_u32 s58, {16+cal+2-base}"); a(f"s_cselect_b32 s19, {pre}, s19")
        x = "K" if base == 0 else "V"
        a("s_cmp_lg_u32 s50, 0"); a(f"s_cbranch_scc0 L_nocal{x}")
        if cal + 3 - base > max(lo - base, 0):
            a(f"s_cmp_ge_u32 s56, {cal+3-base}"); a(f"s_cbranch_scc0 L_nocal{x}")
        a("v_cmp_eq_u32 vcc, 0, v72"); a(f"s_cbranch_vccz L_cal{x}")
        a("v_lshlrev_b32 v60, 2, v1"); a("global_load_dword v72, v60, s[84:85] sc1")
        a(f"s_branch L_nocal{x}")
        a(f"L_cal{x}:")
        a("s_mov_b32 s50, 0")
        if ctl:
            a("s_waitcnt lgkmcnt(0)")
            a("s_mov_b32 s48, s52")
            a("v_bfe_u32 v60, v72, 16, 15"); a("v_subrev_u32 v61, s52, v72"); a("v_bfe_i32 v61, v61, 0, 16")
            allred("v_add_u32", "v60", "v62"); allred("v_add_u32", "v61", "v62")
            a("v_readfirstlane_b32 s57, v60"); a("v_readfirstlane_b32 s49, v61")
            if eps > 0: a(f"s_lshr_b32 s58, s57, {eps}"); a("s_add_u32 s57, s57, s58")
            if eps < 0: a(f"s_lshr_b32 s58, s57, {-eps}"); a("s_sub_u32 s57, s57, s58")
            a(f"s_add_u32 s58, s56, {base-cal-2}"); a("s_lshl_b32 s58, s58, 1"); a("s_mul_i32 s58, s58, s57")
            a("s_lshl_b32 s49, s49, 2"); a("s_add_u32 s49, s49, s58")
            a(f"s_mov_b32 s58, {slack*256}")
            a("s_cmp_eq_u32 s7, 1"); a(f"s_cselect_b32 s58, {(slack-head[0])*256}, s58")
            a("s_cmp_eq_u32 s7, 3"); a(f"s_cselect_b32 s58, {(slack-head[1])*256}, s58")
            a("s_add_u32 s49, s49, s58")
        a(f"L_nocal{x}:")
        if ctl and r2 and base == 8:
            a("s_lshl_b32 s58, s6, 4"); a("s_add_u32 s58, s58, s56")
            a(f"s_cmp_eq_u32 s58, {32+r2-8}"); a("s_cbranch_scc0 L_norep2")
            a("s_waitcnt lgkmcnt(0)")
            a("s_pack_ll_b32_b16 s58, s52, -1")
            a("v_mov_b32 v61, s58"); a("s_lshl_b32 s58, s89, 2"); a("v_mov_b32 v60, s58"); a("s_mov_b64 exec, 1")
            a("global_store_dword v60, v61, s[84:85] sc1")
            a("s_mov_b64 exec, -1")
            a("L_norep2:")
            a("s_or_b32 s58, s50, s21"); a("s_cbranch_scc1 L_nocal2")
            a(f"s_cmp_ge_u32 s56, {r2+1-8}"); a("s_cbranch_scc0 L_nocal2")
            a("v_cmp_le_i32 vcc, 0, v72"); a("s_cbranch_vccz L_cal2")
            a("v_lshlrev_b32 v60, 2, v1"); a("global_load_dword v72, v60, s[84:85] sc1")
            a("s_branch L_nocal2")
            a("L_cal2:")
            a("s_mov_b32 s21, 1")
            a("s_waitcnt lgkmcnt(0)")
            a("s_mov_b32 s48, s52")
            a("v_subrev_u32 v61, s52, v72"); a("v_bfe_i32 v61, v61, 0, 16")
            allred("v_add_u32", "v61", "v62")
            a("v_readfirstlane_b32 s49, v61")
            a(f"s_add_u32 s58, s56, {8-r2}"); a("s_lshl_b32 s58, s58, 1"); a("s_mul_i32 s58, s58, s57")
            a("s_lshl_b32 s49, s49, 2"); a("s_add_u32 s49, s49, s58")
            a(f"s_mov_b32 s58, {slack2*256}")
            a("s_cmp_eq_u32 s7, 1"); a(f"s_cselect_b32 s58, {(slack2-head[0])*256}, s58")
            a("s_cmp_eq_u32 s7, 3"); a(f"s_cselect_b32 s58, {(slack2-head[1])*256}, s58")
            a("s_add_u32 s49, s49, s58")
            a("L_nocal2:")
    def laploop(name, head_code, consume, fin=0):
        a(".p2align 3")
        a(f"{name}:")
        head_code()
        decide(f"{name}_h0", "scc1")
        segment(f"{name}_l0", 0, 0, consume)
        if fin: a("s_cmp_eq_u32 s56, 7"); a(f"s_cbranch_scc1 {name}_f")
        decide(f"{name}_h1", "scc1")
        a(f"{name}_l1:")
        segment(f"{name}_l1", 0, 1, consume)
        a("s_add_u32 s56, s56, 1"); a("s_cmp_lt_u32 s56, 8"); a(f"s_cbranch_scc1 {name}")
        a(f"s_branch {name}_end")
        a(f"{name}_h0:")
        segment(f"{name}_h0", 1, 0, consume)
        if fin: a("s_cmp_eq_u32 s56, 7"); a(f"s_cbranch_scc1 {name}_g")
        decide(f"{name}_l1", "scc0")
        a(f"{name}_h1:")
        segment(f"{name}_h1", 1, 1, consume)
        a("s_add_u32 s56, s56, 1"); a("s_cmp_lt_u32 s56, 8"); a(f"s_cbranch_scc1 {name}")
        if fin:
            a(f"{name}_f:")
            for j in range(D, D + hi): sload(16 + j)
            a(f"{name}_g:")
            nx = 16 + D + hi
            while nx < min(16 + fin, NB): sload(nx); nx += 1
            for i in range(16, NB):
                a(f"s_waitcnt vmcnt({nx - 1 - i})")
                if nx < NB: sload(nx); nx += 1
                consume(i)
        a(f"{name}_end:")
    C("s48 time base, s49 deadline (1/256 ticks), s50 reports seen, s51 depth in use, s[52:53] clock, s57 pace, s19 fixed deep segments")
    a(f"s_mov_b32 s56, {nwl+1}")
    a("s_memrealtime s[52:53]"); a("s_mov_b32 s51, 0"); a("s_mov_b32 s50, 99"); a("s_mov_b32 s57, 0")
    a("s_mov_b32 s48, s18"); a("s_mov_b32 s49, 0x7fffffff"); a("s_mov_b32 s88, 0"); a("s_mov_b32 s21, 0"); a("v_mov_b32 v72, 0")
    a("s_cmp_eq_u32 s7, 1"); a(f"s_cselect_b32 s19, {hiu[0]-4}, 0"); a("s_cmp_eq_u32 s7, 3"); a(f"s_cselect_b32 s19, {hiu[1]-4}, s19")
    def khead():
        lapstamp(16)
        a("s_mov_b32 s54, s55"); a(f"s_add_u32 s55, s55, {NB*4096}")
        a("s_cmp_eq_u32 s56, 7")
        a("s_cselect_b32 s12, s16, s12"); a("s_cselect_b32 s13, s17, s13"); a("s_cselect_b32 s55, 0, s55")
        for k in range(14): a(f"v_mov_b32 v{32+k}, v{34+k}")
        cal_events(0)
    laploop("L_k", khead, kconsume)
    stamp(5)
    C("---- maximum of this wave's scores, in log2 units, negated")
    allred("v_max_f32", "v64", "v48")
    a("v_mul_f32 v64, s91, v64"); a("v_sub_f32 v64, 0, v64")
    a("s_mov_b32 s8, s12"); a("s_mov_b32 s9, s13"); a("s_mov_b32 s56, 0")
    for r in range(4): a(f"v_mov_b32 v{28+r}, 0")
    def vhead():
        lapstamp(24)
        a("s_mov_b32 s54, s55"); a(f"s_add_u32 s55, s55, {NB*4096}")
        for k in range(2):
            a(f"v_fma_f32 v{56+k}, v{32+k}, s91, v64"); a(f"v_exp_f32 v{56+k}, v{56+k}")
            a(f"v_add_f32 v65, v65, v{56+k}"); a(f"v_cvt_pk_bf16_f32 v{66+k}, v{56+k}, v{56+k}")
        for k in range(14): a(f"v_mov_b32 v{32+k}, v{34+k}")
        masks(0, "v66", 0)
        cal_events(8)
        if cpf2:
            a(f"s_cmp_eq_u32 s56, {cpf2}"); a("s_cbranch_scc0 L_nocpf2")
            a("s_getpc_b64 s[60:61]")
            a("L_pc2:")
            a("s_add_u32 s60, s60, L_v_end-L_pc2"); a("s_addc_u32 s61, s61, 0"); a("s_and_b32 s60, s60, 0xffffff80")
            a("s_lshr_b32 s58, s2, 3"); a("s_lshl_b32 s58, s58, 8"); a("v_add_u32 v60, s58, v0"); a("v_lshlrev_b32 v60, 4, v60")
            a("v_cmp_gt_u32 vcc, L_end-L_v_end, v60"); a("s_and_saveexec_b64 s[62:63], vcc"); a("s_cbranch_execz L_nocpf3")
            a("global_load_dwordx4 v[76:79], v60, s[60:61]")
            a("L_nocpf3:")
            a("s_mov_b64 exec, -1")
            a("L_nocpf2:")
        a("s_cmp_eq_u32 s56, 7"); a("s_cbranch_scc0 L_nolast")
        allred("v_add_f32", "v65", "v48")
        a("s_lshl_b32 s58, s3, 3"); a("v_mov_b32 v48, s58"); a("s_mov_b64 exec, 1")
        a(f"ds_write_b64 v48, v[64:65] offset:{L_ML}")
        a("s_mov_b64 exec, -1")
        a("s_cmp_eq_u32 s50, 0"); a("s_cbranch_scc1 L_nolast")
        a(f"s_mov_b32 s88, {SPIN}"); a("v_lshlrev_b32 v60, 2, v1")
        a("L_cnt:")
        a("global_load_dword v72, v60, s[84:85] sc1"); a("s_waitcnt vmcnt(0)")
        a("v_cmp_eq_u32 vcc, 0, v72"); a("s_cbranch_vccz L_nolast")
        a("s_sleep 8"); a("s_sub_u32 s88, s88, 1"); a("s_cbranch_scc0 L_cnt")
        a("L_nolast:")
    def vconsume(i):
        mfma(28, mop(i), ring(i), False)
        if i < NB - 1: masks(i + 1, f"v{66 + ((i + 1) >> 4)}", bitrev((i + 1) & 15))
    if vpol is not None: cur[0] = vpol
    laploop("L_v", vhead, vconsume, fin)
    stamp(6)
    C("---- combine the four waves, project through wo, publish the partial row")
    a("v_mov_b32 v48, 0")
    a("s_mov_b32 exec_hi, 0")
    a(f"ds_write_b128 v26, v[28:31] offset:{L_OP}")
    a("s_mov_b64 exec, -1")
    a("s_waitcnt lgkmcnt(0)"); a("s_barrier")
    a(f"ds_read_b128 v[76:79], v48 offset:{L_ML}"); a(f"ds_read_b128 v[80:83], v48 offset:{L_ML+16}")
    for w in range(4): a(f"ds_read2st64_b32 v[{84+2*w}:{85+2*w}], v27 offset0:{L_OP//256+2*w} offset1:{L_OP//256+2*w+1}")
    a("s_waitcnt lgkmcnt(4)")
    a("v_min_f32 v48, v76, v78"); a("v_min3_f32 v48, v48, v80, v82")
    for w in range(4): a(f"v_sub_f32 v{76+2*w}, v48, v{76+2*w}")
    for w in range(4): a(f"v_exp_f32 v{76+2*w}, v{76+2*w}")
    a("v_mul_f32 v49, v76, v77")
    for w in range(1, 4): a(f"v_fmac_f32 v49, v{76+2*w}, v{77+2*w}")
    a("v_rcp_f32 v49, v49")
    a("s_waitcnt lgkmcnt(0)")
    for k in range(2):
        a(f"v_mul_f32 v{56+k}, v76, v{84+k}")
        for w in range(1, 4): a(f"v_fmac_f32 v{56+k}, v{76+2*w}, v{84+2*w+k}")
    for k in range(2):
        a(f"v_mul_f32 v{56+k}, v{56+k}, v49"); a(f"v_cvt_pk_bf16_f32 v{66+k}, v{56+k}, v{56+k}")
    masks(0, "v66", 0)
    for t in range(32):
        if t < 31: masks(t + 1, "v66" if t + 1 < 16 else "v67", (t + 1) & 15)
        mfma(28, mop(t), f"a[{4*t}:{4*t+3}]", t == 0)
    a("s_mov_b32 exec_hi, 0")
    for r in range(4): a(f"v_min_u32 v{28+r}, -2, v{28+r}")
    a("buffer_store_dwordx4 v[28:31], v68, s[32:35], 0 offen sc1")
    a("s_mov_b64 exec, -1")
    stamp(7)
    a("s_cmp_eq_u32 s6, 2"); a("s_cbranch_scc1 L_s2")
    a("s_and_b32 s58, s7, 1"); a("s_cbranch_scc0 L_fin")
    C("---- this workgroup's FFN weights -> LDS: A via s[40:43], B via s[44:47]; s96/s97 source, s98/s99 LDS, s100/s101 steps")
    a("s_cmp_eq_u32 s7, 1"); a("s_cbranch_scc0 L_dmaD")
    a("v_lshrrev_b32 v62, 2, v1"); a("s_movk_i32 s58, 3584"); a("v_mul_u32_u24 v62, s58, v62")
    a("v_and_b32 v63, 3, v1"); a("v_lshl_add_u32 v62, v63, 4, v62")
    a("s_lshl_b32 s58, s89, 6"); a("v_add_u32 v62, s58, v62")
    a(f"s_mul_i32 s96, s3, {128*3584}"); a("s_mov_b32 s97, s96")
    a("s_lshl_b32 s98, s3, 13"); a(f"s_add_u32 s98, s98, {L_W}"); a("s_add_u32 s99, s98, 32768")
    a(f"s_mov_b32 s100, {16*3584}"); a("s_mov_b32 s101, 1024"); a("s_mov_b32 s93, 8")
    a("s_branch L_dma")
    a("L_dmaD:")
    a("v_lshrrev_b32 v62, 1, v1"); a("v_lshlrev_b32 v62, 10, v62"); a("v_and_b32 v63, 1, v1"); a("v_lshl_add_u32 v62, v63, 4, v62")
    a("s_lshl_b32 s58, s89, 5"); a("v_add_u32 v62, s58, v62")
    for d in (40, 44):
        a(f"s_mov_b32 s{d}, s80"); a(f"s_mov_b32 s{d+1}, s81"); a(f"s_mov_b32 s{d+2}, {1792*1024}")
    a(f"s_mul_i32 s96, s3, {448*1024}"); a("s_add_u32 s97, s96, 32768")
    a(f"s_mul_i32 s98, s3, {448*32}"); a(f"s_add_u32 s98, s98, {L_W}"); a("s_add_u32 s99, s98, 1024")
    a("s_mov_b32 s100, 65536"); a("s_mov_b32 s101, 2048"); a("s_mov_b32 s93, 7")
    a("L_dma:")
    a("s_mov_b32 m0, s98"); a("s_sub_u32 s93, s93, 1")
    a(f"buffer_load_dwordx4 v62, s[40:43], s96 offen {fpol} lds")
    a("s_mov_b32 m0, s99"); a("s_add_u32 s96, s96, s100")
    a(f"buffer_load_dwordx4 v62, s[44:47], s97 offen {fpol} lds")
    a("s_add_u32 s97, s97, s100"); a("s_add_u32 s98, s98, s101"); a("s_add_u32 s99, s99, s101")
    a("s_cmp_lg_u32 s93, 0"); a("s_cbranch_scc1 L_dma")
    C("exchange addresses v63 = g*128 + b*16, v26 = w*512 + v63 ; v60 = 16g + r', v61 = c' for the transposing reads")
    a("v_and_b32 v27, 7, v75"); a("v_lshlrev_b32 v63, 4, v27"); a("v_lshl_add_u32 v63, v74, 7, v63")
    a("s_lshl_b32 s58, s3, 9"); a("v_add_u32 v26, s58, v63")
    a("v_lshrrev_b32 v60, 2, v75"); a("v_lshl_add_u32 v60, v74, 4, v60"); a("v_and_b32 v61, 3, v1")
    a("s_cmp_eq_u32 s7, 3"); a("s_cbranch_scc1 L_s4")

    C("---- gate / up: four tiles of 8+8 columns, 128 rows of h per wave; LayerNorm is applied to the sums")
    a("v_lshlrev_b32 v60, 6, v60"); a("v_lshrrev_b32 v49, 1, v61"); a("v_lshl_add_u32 v60, v49, 15, v60")
    a("v_and_b32 v49, 1, v61"); a("v_lshl_add_u32 v60, v49, 3, v60")
    a("s_lshl_b32 s58, s3, 13"); a(f"s_add_u32 s58, s58, {L_W}"); a("v_add_u32 v60, s58, v60")
    for r in range(4): a(f"v_mov_b32 v{112+r}, 0x3f803f80")
    C("h fragment address v62 = (g>>1)*512 + (b>>1)*128 + (b&1)*64 + (g&1)*32 + half*16")
    a("v_lshrrev_b32 v62, 1, v74"); a("v_lshlrev_b32 v62, 9, v62"); a("v_bfe_u32 v49, v75, 1, 2"); a("v_lshl_add_u32 v62, v49, 7, v62")
    a("v_and_b32 v49, 1, v75"); a("v_lshl_add_u32 v62, v49, 6, v62"); a("v_and_b32 v49, 1, v74"); a("v_lshl_add_u32 v62, v49, 5, v62")
    a("v_lshrrev_b32 v49, 3, v75"); a("v_lshl_add_u32 v62, v49, 4, v62")
    a(f"s_mov_b32 s58, {L_DUMP-L_T2}"); a("v_mad_u32_u24 v26, v49, s58, v26")
    a("s_lshl_b32 s58, s3, 11"); a("v_add_u32 v63, s58, v63")
    a("v_lshrrev_b32 v49, 1, v74"); a("v_lshlrev_b32 v49, 2, v49"); a("v_lshlrev_b32 v61, 5, v27"); a("v_add_u32 v49, v49, v61")
    a("s_lshl_b32 s58, s3, 3"); a("v_add_u32 v49, s58, v49")
    a("s_lshl_b32 s59, s3, 11"); a(f"s_add_u32 s59, s59, {WS_H}")
    a("s_waitcnt vmcnt(0)")
    stamp(13)
    for t in range(4):
        for u in range(2):
            for hf in range(2):
                for sec in range(2): trread(128 + 16*t + 8*u + 4*hf + 2*sec, "v60", (64*u + 8*hf + 4*sec) * 64 + 16*t)
        if t: a("s_waitcnt lgkmcnt(6)")
    a("s_waitcnt lgkmcnt(0)")
    for k in range(4):
        for t in range(4): mfma(224 + 4*t, f"v[{128+16*t+4*k}:{131+16*t+4*k}]", "v[112:115]", k == 0)
    for t in range(4): a(f"ds_write_b128 v26, v[{224+4*t}:{227+4*t}] offset:{L_CS+2048*t}")
    def ldH(b): return [f"buffer_load_dwordx4 v[{b+4*u}:{b+3+4*u}], v62, s[32:35], s59 offen offset:{u*1024} sc1" for u in range(2)]
    def useH(b):
        n = 0
        for u in range(2):
            for t in range(4):
                for hf in range(2):
                    mfma(192 + 8*t + 4*hf, f"v[{128+16*t+8*u+4*hf}:{131+16*t+8*u+4*hf}]", f"v[{b+4*u}:{b+3+4*u}]", u == 0)
                    if n < 8:
                        a(f"v_dot2_f32_bf16 v52, v{b+n}, v112, {'0' if n == 0 else 'v52'}")
                        a(f"v_dot2_f32_bf16 v53, v{b+n}, v{b+n}, {'0' if n == 0 else 'v53'}")
                    if n == 9:
                        for r in range(2): a(f"v_add_f32_dpp v{52+r}, v{52+r}, v{52+r} row_ror:8 row_mask:0xf bank_mask:0xf")
                    if n == 11: a("v_permlane32_swap_b32 v52, v53"); a("v_add_f32 v52, v52, v53"); a("v_mov_b32 v53, v52")
                    if n == 13: a("v_permlane16_swap_b32 v52, v53"); a("v_add_f32 v52, v52, v53"); a(f"ds_write_b32 v49, v52 offset:{L_ST}")
                    n += 1
    poll2("L_pH", ldH, 8, (76, 84), useH)
    stamp(10)
    for t in range(4):
        for r in range(4): a(f"v_add_f32_dpp v{192+8*t+r}, v{196+8*t+r}, v{192+8*t+r} row_ror:8 row_mask:0xf bank_mask:0xf")
        a(f"ds_write_b128 v26, v[{192+8*t}:{195+8*t}] offset:{L_T2+2048*t}")
    a("s_waitcnt lgkmcnt(0)"); a("s_barrier")
    for k in range(2): a(f"ds_read_b128 v[{92+4*k}:{95+4*k}], v61 offset:{L_ST+16*k}")
    for w in range(4): a(f"ds_read_b128 v[{224+4*w}:{227+4*w}], v63 offset:{L_CS+512*w}")
    for w in range(4): a(f"ds_read_b128 v[{116+4*w}:{119+4*w}], v63 offset:{L_T2+512*w}")
    a("s_waitcnt lgkmcnt(8)")
    for k in range(2): a(f"v_add_f32 v{92+k}, v{92+k}, v{94+k}"); a(f"v_add_f32 v{96+k}, v{96+k}, v{98+k}")
    a("v_add_f32 v52, v92, v96"); a("v_add_f32 v53, v93, v97")
    a(f"v_mul_f32 v52, {f32(1/512)}, v52"); a(f"v_mul_f32 v53, {f32(1/512)}, v53")
    a("v_fma_f32 v53, -v52, v52, v53"); a("v_max_f32 v53, 0, v53")
    bf16r("v53"); bf16r("v52")
    a(f"v_add_f32 v53, {f32(1e-5)}, v53"); bf16r("v53")
    a("v_sqrt_f32 v53, v53")
    a("s_waitcnt lgkmcnt(4)")
    for r in range(4): a(f"v_add_f32 v{224+r}, v{224+r}, v{228+r}"); a(f"v_add_f32 v{232+r}, v{232+r}, v{236+r}")
    bf16r("v53"); a("v_rcp_f32 v53, v53")
    for r in range(4): a(f"v_add_f32 v{108+r}, v{224+r}, v{232+r}")
    a("s_waitcnt lgkmcnt(0)")
    for r in range(4): a(f"v_add_f32 v{116+r}, v{116+r}, v{120+r}"); a(f"v_add_f32 v{124+r}, v{124+r}, v{128+r}")
    for r in range(4): a(f"v_add_f32 v{116+r}, v{116+r}, v{124+r}")
    for r in range(4): a(f"v_fma_f32 v{116+r}, -v52, v{108+r}, v{116+r}")
    for r in range(4): a(f"v_mul_f32 v{116+r}, v{116+r}, v53")
    for r in range(2): a(f"v_cvt_pk_bf16_f32 v{120+r}, v{116+2*r}, v{117+2*r}")
    for r in range(2): a(f"v_permlane32_swap_b32 v{120+r}, v{122+r}")
    for r in range(2):
        a(f"v_lshlrev_b32 v{116+2*r}, 16, v{120+r}"); a(f"v_and_b32 v{117+2*r}, 0xffff0000, v{120+r}")
        a(f"v_lshlrev_b32 v{124+2*r}, 16, v{122+r}"); a(f"v_and_b32 v{125+2*r}, 0xffff0000, v{122+r}")
    for r in range(4): a(f"v_max_f32 v{116+r}, 0, v{116+r}")
    for r in range(4): a(f"v_mul_f32 v{116+r}, v{116+r}, v{124+r}")
    for r in range(2): a(f"v_cvt_pk_bf16_f32 v{120+r}, v{116+2*r}, v{117+2*r}")
    a("s_mov_b64 exec, 0x00ff00ff")
    for r in range(2): a(f"v_min_u32 v{120+r}, -2, v{120+r}")
    a("buffer_store_dwordx2 v[120:121], v70, s[32:35], 0 offen sc1")
    stamp(11)
    a("s_branch L_fin")

    C("---- reducer: sum the 32 heads' partials of 2 rows x 32 columns, add x, publish h")
    a("L_s2:")
    a("v_lshlrev_b32 v62, 4, v1")
    a("s_lshl_b32 s59, s89, 13"); a("s_add_u32 s92, s59, 4096")
    a("v_lshlrev_b32 v50, 16, v71"); a("v_and_b32 v51, 0xffff0000, v71")
    def ld8(b): return [f"buffer_load_dwordx4 v[{b+4*u}:{b+3+4*u}], v62, s[32:35], {'s59' if u < 4 else 's92'} offen offset:{(u&3)*1024} sc1" for u in range(8)]
    def useP(b):
        for r in range(16): a(f"v_add_f32 v{108+r}, v{b+r}, v{b+16+r}")
    poll2("L_pP", ld8, 32, (76, 128), useP)
    stamp(8)
    for st in (8, 4):
        for r in range(st): a(f"v_add_f32 v{108+r}, v{108+r}, v{108+st+r}")
    a("v_permlane32_swap_b32 v108, v110"); a("v_permlane32_swap_b32 v109, v111")
    a("v_add_f32 v108, v108, v110"); a("v_add_f32 v109, v109, v111")
    a("v_mov_b32 v110, v108"); a("v_mov_b32 v111, v109")
    a("v_permlane16_swap_b32 v108, v110"); a("v_permlane16_swap_b32 v109, v111")
    a("v_add_f32 v108, v108, v110"); a("v_add_f32 v109, v109, v111")
    a("v_cvt_pk_bf16_f32 v108, v108, v109")
    a("v_and_b32 v109, 0xffff0000, v108"); a("v_lshlrev_b32 v108, 16, v108")
    a("v_add_f32 v108, v108, v50"); a("v_add_f32 v109, v109, v51")
    a("v_cvt_pk_bf16_f32 v108, v108, v109")
    a("s_mov_b32 exec_lo, 0xffff"); a("s_mov_b32 exec_hi, 0xffff")
    a("v_min_u32 v108, -2, v108")
    a("buffer_store_dword v108, v69, s[32:35], 0 offen sc1")
    stamp(9)
    a("s_branch L_fin")

    C("---- 16 output columns, 448 rows of W_down per wave")
    a("L_s4:")
    a("v_lshlrev_b32 v60, 5, v60"); a("v_lshl_add_u32 v60, v61, 3, v60")
    a(f"s_mul_i32 s58, s3, {448*32}"); a(f"s_add_u32 s58, s58, {L_W}"); a("v_add_u32 v60, s58, v60")
    C("h address v49 = H + ((s'>>1)*4 + (b>>1))*128 + (b&1)*64 + (s'&1)*32 + g*8 ; out address v50 = b*1024 + s'*32 + g*8")
    a("v_lshrrev_b32 v49, 1, v27"); a("v_lshlrev_b32 v49, 7, v49"); a("v_and_b32 v50, 1, v27"); a("v_lshl_add_u32 v49, v50, 6, v49")
    a("v_lshl_add_u32 v49, v74, 3, v49")
    a("s_lshr_b32 s58, s89, 1"); a("s_lshl_b32 s58, s58, 9"); a("s_and_b32 s92, s89, 1"); a("s_lshl_b32 s92, s92, 5"); a("s_add_u32 s58, s58, s92")
    a(f"s_add_u32 s58, s58, {WS_H}"); a("v_add_u32 v49, s58, v49")
    a("v_lshlrev_b32 v50, 10, v27"); a("v_lshl_add_u32 v50, v74, 3, v50"); a("s_lshl_b32 s58, s89, 5"); a("v_add_u32 v50, s58, v50")
    a(f"s_mul_i32 s59, s3, {7*1024}"); a(f"s_add_u32 s59, s59, {WS_G}"); a("s_add_u32 s92, s59, 4096")
    a("v_lshlrev_b32 v62, 4, v1")
    a("s_waitcnt vmcnt(0)")
    stamp(13)
    for u in range(7):
        for hf in range(2):
            for sec in range(2): trread(128 + 8*u + 4*hf + 2*sec, "v60", (64*u + 8*hf + 4*sec) * 32)
        if u in (2, 5): a("s_waitcnt lgkmcnt(4)")
    a("s_waitcnt lgkmcnt(0)")
    def ldG(b): return ld8(b)[:7] + [f"buffer_load_dwordx2 v[{b+28}:{b+29}], v49, s[32:35], 0 offen sc1"]
    def useG(b):
        for u in range(7):
            for hf in range(2): mfma(108 + 4*hf, f"v[{128+8*u+4*hf}:{131+8*u+4*hf}]", f"v[{b+4*u}:{b+3+4*u}]", u == 0)
        for r in range(2):
            a(f"v_lshlrev_b32 v{116+2*r}, 16, v{b+28+r}"); a(f"v_and_b32 v{117+2*r}, 0xffff0000, v{b+28+r}")
    poll2("L_pG", ldG, 30, (76, 192), useG)
    stamp(10)
    for r in range(4): a(f"v_add_f32_dpp v{108+r}, v{112+r}, v{108+r} row_ror:8 row_mask:0xf bank_mask:0xf")
    a("s_mov_b32 exec_lo, 0x00ff00ff"); a("s_mov_b32 exec_hi, 0x00ff00ff")
    a(f"ds_write_b128 v26, v[108:111] offset:{L_TX}")
    a("s_waitcnt lgkmcnt(0)"); a("s_barrier")
    a("s_cmp_eq_u32 s3, 3"); a("s_cbranch_scc0 L_fin")
    for w in range(4): a(f"ds_read_b128 v[{128+4*w}:{131+4*w}], v63 offset:{L_TX+512*w}")
    a("s_waitcnt lgkmcnt(0)")
    for r in range(4):
        a(f"v_add_f32 v{128+r}, v{128+r}, v{132+r}"); a(f"v_add_f32 v{136+r}, v{136+r}, v{140+r}")
    for r in range(4): a(f"v_add_f32 v{128+r}, v{128+r}, v{136+r}")
    for r in range(2): a(f"v_cvt_pk_bf16_f32 v{132+r}, v{128+2*r}, v{129+2*r}")
    for r in range(2):
        a(f"v_lshlrev_b32 v{128+2*r}, 16, v{132+r}"); a(f"v_and_b32 v{129+2*r}, 0xffff0000, v{132+r}")
    for r in range(4): a(f"v_add_f32 v{128+r}, v{128+r}, v{116+r}")
    for r in range(2): a(f"v_cvt_pk_bf16_f32 v{132+r}, v{128+2*r}, v{129+2*r}")
    a("buffer_store_dwordx2 v[132:133], v50, s[36:39], 0 offen")
    stamp(11)
    a("L_fin:")
    if probe is not None:
        a(f"s_cmp_eq_u32 s2, {pwg}"); a("s_cbranch_scc0 L_end"); a("s_cmp_eq_u32 s3, 3"); a("s_cbranch_scc0 L_end")
        if probe == 0: a("s_mov_b32 s20, 0")
        a("s_add_u32 s20, s20, 10000")
        a("L_probe:")
        a("s_sleep 4"); a("s_memrealtime s[94:95]"); a("s_waitcnt lgkmcnt(0)"); a("s_sub_u32 s94, s94, s18")
        a("s_cmp_lt_u32 s94, s20"); a("s_cbranch_scc1 L_probe")
    if stamps:
        a("s_mov_b64 exec, -1")
        stamp(12)
        a("s_getreg_b32 s92, hwreg(HW_REG_XCC_ID)"); a("v_writelane_b32 v73, s92, 15")
        a("s_lshl_b32 s58, s2, 2"); a("s_add_u32 s58, s58, s3"); a("s_lshl_b32 s58, s58, 7"); a(f"s_add_u32 s58, s58, {WS_ST}")
        a("v_lshlrev_b32 v48, 2, v1"); a("s_mov_b32 exec_hi, 0")
        a("buffer_store_dword v73, v48, s[32:35], s58 offen")
        if "dbgout" in xp:
            a("s_cmp_eq_u32 s2, 229"); a("s_cbranch_scc0 L_end"); a("s_cmp_eq_u32 s3, 3"); a("s_cbranch_scc0 L_end")
            a("v_subrev_u32 v73, s18, v73"); a("s_mov_b64 exec, 0xffff")
            a("global_store_dword v48, v73, s[84:85] sc1")
    a("L_end:")
    a("s_endpgm")
    body = a.finish()
    head_ = HEADER + f"; @launch grid=(256,1,1) block=(256,1,1) lds={L_SIZE}\n" + '.amdgcn_target "amdgcn-amd-amdhsa--gfx950"\n.text\n' + \
        f".globl {NAME}\n.p2align 8\n.type {NAME},@function\n"
    tail = f""".section .rodata,"a"
.p2align 6
.amdhsa_kernel {NAME}
  .amdhsa_next_free_vgpr 384
  .amdhsa_next_free_sgpr 102
  .amdhsa_accum_offset 256
  .amdhsa_group_segment_fixed_size 0
  .amdhsa_kernarg_size 96
  .amdhsa_user_sgpr_count 2
  .amdhsa_user_sgpr_kernarg_segment_ptr 1
  .amdhsa_system_sgpr_workgroup_id_x 1
.end_amdhsa_kernel
"""
    return head_ + body + tail

if __name__ == "__main__":
    kw = eval("dict(%s)" % (sys.argv[2] if len(sys.argv) > 2 else ""))
    open(sys.argv[1], "w").write(gen(**kw))
```

```python
import sys, struct
sys.path.insert(0, __file__.rsplit('/', 1)[0])
from asmlib import Asm

NAME = "sequential_preLN__mha_block_cached__glu_gated_reglu__decode_kernel"
HEADER = open(__file__.rsplit('/', 1)[0] + '/header.txt').read()

def f32(x): return "0x%08x" % struct.unpack('<I', struct.pack('<f', x))[0]

WS_P, WS_H, WS_G, WS_ST, WS_SIZE = 0, 0x80000, 0x82000, 0x100000, 0x140000
L_QP, L_OP, L_ML, L_ST, L_TX, L_T2, L_CS, L_W, L_DUMP, L_SIZE = 0, 2048, 4096, 4160, 4608, 8192, 16384, 24576, 90112, 106496
RING = 128
NB = 32
SPIN = 200000

def gen(D=5, hi=1, pol="nt", wpol="", fpol="", early=(2, 7, 12, 17), n1=7, kq=2, nbar=2, nA=3, nB=3, D1=None,
        stag=0, cpf2=0, fin=10, ctl=1, slack=170, k0=1, late=0, cpf=23, rot=0, nw=2, nwl=1, eps=0, head=(300, 350), hiu=(4, 4), cal=3, stamps=0, xp=(), probe=None, pwg=130, vpol=None, pre=0, ahead=0, r2=0, slack2=40):
    a = Asm()
    vm = []
    def C(t): a("; " + t)
    def vwait(tag):
        n = len(vm) - 1 - vm.index(tag)
        a(f"s_waitcnt vmcnt({min(n, 63)})")
    def stamp(k):
        if probe == k:
            a("s_memrealtime s[94:95]"); a("s_waitcnt lgkmcnt(0)"); a("s_sub_u32 s20, s94, s18")
        if stamps == 2 and k not in (6, 12): return
        if stamps == 3 and k not in (3, 4, 6, 12): return
        if stamps:
            a("s_memrealtime s[94:95]"); a("s_waitcnt lgkmcnt(0)"); a(f"v_writelane_b32 v73, s94, {k}")
    def lapstamp(off):
        if stamps == 3:
            a("s_memrealtime s[94:95]"); a(f"s_add_u32 m0, s56, {off}"); a("s_waitcnt lgkmcnt(0)"); a("v_writelane_b32 v73, s94, m0")
    def allred(op, v, t):
        for n in (8, 4, 2, 1): a(f"{op}_dpp {v}, {v}, {v} row_ror:{n} row_mask:0xf bank_mask:0xf")
        for sw in ("v_permlane16_swap_b32", "v_permlane32_swap_b32"):
            a(f"v_mov_b32 {t}, {v}"); a(f"{sw} {v}, {t}"); a(f"{op} {v}, {v}, {t}")
    def bf16r(v):
        a(f"v_cvt_pk_bf16_f32 {v}, {v}, {v}"); a(f"v_and_b32 {v}, 0xffff0000, {v}")
    def srd(d, lo, hi_, size, add=None):
        if add is None:
            a(f"s_mov_b32 s{d}, s{lo}"); a(f"s_mov_b32 s{d+1}, s{hi_}")
        else:
            a(f"s_add_u32 s{d}, s{lo}, {add}"); a(f"s_addc_u32 s{d+1}, s{hi_}, 0")
        a(f"s_mov_b32 s{d+2}, {size}"); a(f"s_mov_b32 s{d+3}, 0x20000")
    cur = [pol]
    def ring(j): j %= NB; return f"v[{RING+4*j}:{RING+4*j+3}]"
    def sload(j):
        s, b = ("s[12:15]", "s55") if j >= NB else ("s[8:11]", "s54")
        j %= NB
        a(f"buffer_load_dwordx4 {ring(j)}, v{2+(j>>2)}, {s}, {b} offen offset:{(j&3)*1024} {cur[0]}")
    def masks(t, src, lane):
        for r in range(4):
            a(f"v_and_b32_dpp v{18+4*(t&1)+r}, {src}, v{14+r} row_newbcast:{lane} row_mask:0xf bank_mask:0xf")
    def mop(t): return f"v[{18+4*(t&1)}:{21+4*(t&1)}]"
    def mfma(d, x, y, first): a(f"v_mfma_f32_16x16x32_bf16 v[{d}:{d+3}], {x}, {y}, {'0' if first else 'v[%d:%d]' % (d, d+3)}")
    def bitrev(t): return ((t & 1) << 3) | ((t & 2) << 1) | ((t & 4) >> 1) | ((t & 8) >> 3)
    def check(regs, ok):
        r = list(regs)
        a(f"v_max3_u32 v48, v{r[0]}, v{r[1]}, v{r[2]}"); r = r[3:]
        while len(r) >= 2:
            a(f"v_max3_u32 v48, v48, v{r[0]}, v{r[1]}"); r = r[2:]
        if r: a(f"v_max_u32 v48, v48, v{r[0]}")
        a("v_cmp_eq_u32 vcc, -1, v48")
        a(f"s_cbranch_vccz {ok}")
    def poll2(label, loads, nreg, bases, use):
        n = len(loads(bases[0]))
        a(f"s_mov_b32 s88, {SPIN}")
        for l in loads(bases[0]): a(l)
        if stag: a(f"s_sleep {stag}")
        a(f"{label}:")
        for l in loads(bases[1]): a(l)
        a(f"s_waitcnt vmcnt({n})")
        check(range(bases[0], bases[0] + nreg), f"{label}_A")
        for l in loads(bases[0]): a(l)
        a(f"s_waitcnt vmcnt({n})")
        check(range(bases[1], bases[1] + nreg), f"{label}_B")
        a("s_sub_u32 s88, s88, 1")
        a(f"s_cbranch_scc0 {label}")
        a(f"{label}_B:")
        use(bases[1])
        a(f"s_branch {label}_done")
        a(f"{label}_A:")
        use(bases[0])
        a(f"{label}_done:")
    def trread(dst, addr, off): a(f"ds_read_b64_tr_b16 v[{dst}:{dst+1}], {addr} offset:{off}")

    a(f"{NAME}:")
    a("s_cmp_ge_u32 s2, 256"); a("s_cbranch_scc1 L_end")
    a("s_memrealtime s[18:19]")
    a("s_load_dwordx16 s[64:79], s[0:1], 0")
    a("s_load_dwordx8 s[80:87], s[0:1], 64")
    if cpf:
        C("pull the kernel's own code towards this die's L2, one KiB per wave")
        a("s_getpc_b64 s[60:61]"); a("s_and_b32 s60, s60, 0xffffff00")
        a("s_lshr_b32 s58, s2, 3"); a("s_lshl_b32 s58, s58, 8"); a("v_add_u32 v60, s58, v0"); a("v_lshlrev_b32 v60, 4, v60")
        a(f"v_cmp_gt_u32 vcc, {cpf*1024}, v60"); a("s_and_saveexec_b64 s[62:63], vcc"); a("s_cbranch_execz L_nocpf")
        a("global_load_dwordx4 v[76:79], v60, s[60:61]")
        a("L_nocpf:")
        a("s_mov_b64 exec, -1")
    C("s3 wave, s4 batch row, s5 head; v1 lane, v74 lane>>4 (g), v75 lane&15 (i)")
    a("v_lshrrev_b32 v1, 6, v0")
    a("v_readfirstlane_b32 s3, v1")
    a("v_and_b32 v1, 63, v0")
    a("s_lshr_b32 s4, s2, 5"); a("s_and_b32 s5, s2, 31")
    a("v_lshrrev_b32 v74, 4, v1"); a("v_and_b32 v75, 15, v1")
    a("v_lshlrev_b32 v48, 4, v1")
    a("s_lshl_b32 s58, s3, 12"); a("v_add_u32 v2, s58, v48")
    for k in range(1, 8): a(f"v_add_u32 v{2+k}, {k*16384}, v2")
    C("the eight workgroups of a head walk its rows of wq / wo from different starting points: v72 = (i + 2b) & 15")
    a(f"s_lshl_b32 s97, s4, 1") if rot else a("s_mov_b32 s97, 0")
    a("v_add_u32 v72, s97, v75"); a("v_and_b32 v72, 15, v72")
    a("s_lshl_b32 s58, s3, 8"); a("v_lshlrev_b32 v49, 3, v72"); a("v_lshl_add_u32 v49, v74, 1, v49"); a("v_add_u32 v49, s58, v49")
    a("v_lshlrev_b32 v67, 4, v72"); a("v_lshl_add_u32 v65, v74, 2, v67")
    a("v_lshrrev_b32 v51, 1, v74")
    C("wq lane offset v58 = (128w+g)*8192 + i*16 ; wo lane offset v59 = g*1024 + w*256 + i*16")
    a("s_lshl_b32 s58, s3, 20"); a("v_lshlrev_b32 v58, 13, v74"); a("v_lshl_add_u32 v58, v75, 4, v58"); a("v_add_u32 v58, s58, v58")
    a("s_lshl_b32 s58, s3, 8"); a("v_lshlrev_b32 v59, 10, v74"); a("v_lshl_add_u32 v59, v75, 4, v59"); a("v_add_u32 v59, s58, v59")
    a("s_lshl_b32 s57, s4, 10"); a("s_lshl_b32 s58, s5, 8"); a("s_lshl_b32 s59, s2, 20")
    a("s_sub_u32 s92, 0x400000, s58")
    a("s_mov_b32 s54, 0")
    a("s_waitcnt lgkmcnt(0)")
    if stamps: a("v_mov_b32 v73, 0"); a("v_writelane_b32 v73, s18, 0")
    kiss = 0
    def kload():
        nonlocal kiss
        sload(kiss - kbase); vm.append(f"k{kiss}"); kiss += 1
    kbase = 0
    srd(8, 66, 67, 0x100000, "s59")
    for j in range(k0): kload()
    srd(28, 64, 65, 8192)
    a("buffer_load_dwordx4 v[52:55], v48, s[28:31], s57 offen"); vm.append("x")
    a("buffer_load_ushort v56, v49, s[28:31], s57 offen"); vm.append("xc0")
    a("buffer_load_ushort v57, v49, s[28:31], s57 offen offset:128"); vm.append("xc1")
    srd(20, 70, 71, "s92", "s58")
    wiss = 0
    def wqload():
        nonlocal wiss
        a(f"s_add_u32 s58, s97, {wiss & 15}"); a("s_and_b32 s58, s58, 15"); a("s_lshl_b32 s58, s58, 15")
        if wiss >= 16: a("s_or_b32 s58, s58, 0x80000")
        a(f"buffer_load_dwordx4 a[{4*wiss}:{4*wiss+3}], v58, s[20:23], s58 offen {wpol}"); vm.append(f"wq{wiss}"); wiss += 1
    for j in range(n1):
        if j: kload()
        for x in range(nw): wqload()
    a("s_add_u32 s16, s68, s59"); a("s_addc_u32 s17, s69, 0")
    a("s_mov_b32 s12, s8"); a("s_mov_b32 s13, s9"); a("s_mov_b32 s14, 0x100000"); a("s_mov_b32 s15, 0x20000")
    a("s_lshl_b32 s58, s5, 17"); srd(24, 72, 73, 0x20000, "s58")
    def setup_late():
        a("v_lshrrev_b32 v77, 1, v74"); a("v_lshlrev_b32 v78, 4, v1")
        srd(32, 86, 87, WS_SIZE); srd(36, 82, 83, 8192)
        srd(40, 76, 77, 512*3584); srd(44, 78, 79, 512*3584)
        C("role s7 / index s89: 1 gate+up tiles (wg<56), 2 reducer (64<=wg<128), 3 output slice (wg>=224), 0 none")
        a("s_and_b32 s58, s2, 7"); a("s_lshr_b32 s92, s2, 3")
        a("s_mul_i32 s89, s58, 7"); a("s_add_u32 s89, s89, s92")
        a("s_cmp_lt_u32 s2, 56"); a("s_cselect_b32 s7, 1, 0")
        a("s_lshl_b32 s58, s58, 2"); a("s_add_u32 s58, s58, s92"); a("s_sub_u32 s58, s58, 28")
        a("s_cmp_ge_u32 s2, 224"); a("s_cselect_b32 s89, s58, s89"); a("s_cselect_b32 s7, 3, s7")
        a("s_sub_u32 s58, s2, 64"); a("s_cmp_lt_u32 s58, 64"); a("s_cselect_b32 s89, s58, s89"); a("s_cselect_b32 s7, 2, s7")
        a("s_lshl_b32 s6, s3, 2"); a("s_add_u32 s6, s6, s7")
        C("P store offset v68 = ((4w + (i>>2))*4 + (b>>1))*8192 + (2h + (b&1))*128 + (i&3)*32 + g*16")
        a("v_lshrrev_b32 v68, 2, v75"); a("v_lshlrev_b32 v68, 15, v68"); a("v_lshl_add_u32 v68, v74, 4, v68")
        a("v_and_b32 v60, 3, v75"); a("v_lshl_add_u32 v68, v60, 5, v68")
        a("s_lshl_b32 s58, s3, 17"); a("s_lshr_b32 s92, s4, 1"); a("s_lshl_b32 s92, s92, 13"); a("s_add_u32 s58, s58, s92")
        a("s_lshl_b32 s92, s5, 8"); a("s_add_u32 s58, s58, s92")
        a("s_and_b32 s92, s4, 1"); a("s_lshl_b32 s92, s92, 7"); a("s_add_u32 s58, s58, s92"); a("v_add_u32 v68, s58, v68")
        C("H store offset v69 = H + rho*128 + i*8 + (g>>1)*4 ; x offset v76 = (2(rho&3) + (i>>3))*1024 + (rho>>2)*64 + (i&7)*8 + (g>>1)*4")
        a("v_lshlrev_b32 v69, 3, v75"); a("v_lshl_add_u32 v69, v77, 2, v69")
        a("v_lshrrev_b32 v76, 3, v75"); a("v_lshlrev_b32 v76, 10, v76"); a("v_and_b32 v60, 7, v75"); a("v_lshl_add_u32 v76, v60, 3, v76")
        a("v_lshl_add_u32 v76, v77, 2, v76")
        a("s_and_b32 s58, s89, 3"); a("s_lshl_b32 s58, s58, 11"); a("s_lshr_b32 s92, s89, 2"); a("s_lshl_b32 s92, s92, 6"); a("s_add_u32 s58, s58, s92")
        a("v_add_u32 v76, s58, v76")
        a("s_lshl_b32 s58, s89, 7"); a(f"s_add_u32 s58, s58, {WS_H}"); a("v_add_u32 v69, s58, v69")
        a("buffer_load_dword v71, v76, s[28:31], 0 offen"); vm.append("xr")
        C("G store offset v70 = G + (4*s89 + w)*128 + i*16 + g*8")
        a("v_lshlrev_b32 v70, 4, v75"); a("v_lshl_add_u32 v70, v74, 3, v70")
        a("s_lshl_b32 s58, s89, 2"); a("s_add_u32 s58, s58, s3"); a("s_lshl_b32 s58, s58, 7"); a(f"s_add_u32 s58, s58, {WS_G}"); a("v_add_u32 v70, s58, v70")
        C("wave 0 of the reducers marks every hand-off line empty (all ones): own P lines, own H line, four G lines")
        a("s_cmp_eq_u32 s6, 2"); a("s_cbranch_scc0 L_noclr")
        for r in range(4): a(f"v_mov_b32 v{60+r}, -1")
        a("s_lshl_b32 s58, s89, 13"); a("s_add_u32 s92, s58, 4096")
        for u in range(8): a(f"buffer_store_dwordx4 v[60:63], v78, s[32:35], {'s58' if u < 4 else 's92'} offen offset:{(u&3)*1024} sc1")
        a("s_lshl_b32 s58, s89, 9"); a(f"s_add_u32 s58, s58, {WS_G}"); a("s_mov_b32 exec_hi, 0")
        a("buffer_store_dwordx4 v[60:63], v78, s[32:35], s58 offen sc1")
        a("s_lshl_b32 s58, s89, 7"); a(f"s_add_u32 s58, s58, {WS_H}"); a("s_mov_b32 exec_lo, 0xff")
        a("buffer_store_dwordx4 v[60:63], v78, s[32:35], s58 offen sc1")
        a("s_mov_b64 exec, -1")
        a("L_noclr:")
    if not late:
        srd(32, 86, 87, WS_SIZE); srd(36, 82, 83, 8192)
        srd(40, 76, 77, 512*3584); srd(44, 78, 79, 512*3584)
        C("role s7 / index s89: 1 gate+up tiles (wg<56), 2 reducer (64<=wg<128), 3 output slice (wg>=224), 0 none")
        a("s_and_b32 s58, s2, 7"); a("s_lshr_b32 s92, s2, 3")
        a("s_mul_i32 s89, s58, 7"); a("s_add_u32 s89, s89, s92")
        a("s_cmp_lt_u32 s2, 56"); a("s_cselect_b32 s7, 1, 0")
        a("s_lshl_b32 s58, s58, 2"); a("s_add_u32 s58, s58, s92"); a("s_sub_u32 s58, s58, 28")
        a("s_cmp_ge_u32 s2, 224"); a("s_cselect_b32 s89, s58, s89"); a("s_cselect_b32 s7, 3, s7")
        a("s_sub_u32 s58, s2, 64"); a("s_cmp_lt_u32 s58, 64"); a("s_cselect_b32 s89, s58, s89"); a("s_cselect_b32 s7, 2, s7")
        a("s_lshl_b32 s6, s3, 2"); a("s_add_u32 s6, s6, s7")
        C("P store offset v68 = ((4w + (i>>2))*4 + (b>>1))*8192 + (2h + (b&1))*128 + (i&3)*32 + g*16")
        a("v_lshrrev_b32 v68, 2, v75"); a("v_lshlrev_b32 v68, 15, v68"); a("v_lshl_add_u32 v68, v74, 4, v68")
        a("v_and_b32 v60, 3, v75"); a("v_lshl_add_u32 v68, v60, 5, v68")
        a("s_lshl_b32 s58, s3, 17"); a("s_lshr_b32 s92, s4, 1"); a("s_lshl_b32 s92, s92, 13"); a("s_add_u32 s58, s58, s92")
        a("s_lshl_b32 s92, s5, 8"); a("s_add_u32 s58, s58, s92")
        a("s_and_b32 s92, s4, 1"); a("s_lshl_b32 s92, s92, 7"); a("s_add_u32 s58, s58, s92"); a("v_add_u32 v68, s58, v68")
        C("H store offset v69 = H + rho*128 + i*8 + (g>>1)*4 ; x offset v50 = (2(rho&3) + (i>>3))*1024 + (rho>>2)*64 + (i&7)*8 + (g>>1)*4")
        a("v_lshlrev_b32 v69, 3, v75"); a("v_lshl_add_u32 v69, v51, 2, v69")
        a("v_lshrrev_b32 v50, 3, v75"); a("v_lshlrev_b32 v50, 10, v50"); a("v_and_b32 v60, 7, v75"); a("v_lshl_add_u32 v50, v60, 3, v50")
        a("v_lshl_add_u32 v50, v51, 2, v50")
        a("s_and_b32 s58, s89, 3"); a("s_lshl_b32 s58, s58, 11"); a("s_lshr_b32 s92, s89, 2"); a("s_lshl_b32 s92, s92, 6"); a("s_add_u32 s58, s58, s92")
        a("v_add_u32 v50, s58, v50")
        a("s_lshl_b32 s58, s89, 7"); a(f"s_add_u32 s58, s58, {WS_H}"); a("v_add_u32 v69, s58, v69")
        a("buffer_load_dword v71, v50, s[28:31], 0 offen"); vm.append("xr")
        C("G store offset v70 = G + (4*s89 + w)*128 + i*16 + g*8")
        a("v_lshlrev_b32 v70, 4, v75"); a("v_lshl_add_u32 v70, v74, 3, v70")
        a("s_lshl_b32 s58, s89, 2"); a("s_add_u32 s58, s58, s3"); a("s_lshl_b32 s58, s58, 7"); a(f"s_add_u32 s58, s58, {WS_G}"); a("v_add_u32 v70, s58, v70")
        C("the reducers mark every hand-off line empty (all ones): own P lines, own H line, four G lines")
        a("s_cmp_eq_u32 s7, 2"); a("s_cbranch_scc0 L_noclr")
        for r in range(4): a(f"v_mov_b32 v{60+r}, -1")
        a("s_lshl_b32 s58, s89, 13"); a("s_lshl_b32 s92, s3, 11"); a("s_add_u32 s58, s58, s92")
        a("buffer_store_dwordx4 v[60:63], v48, s[32:35], s58 offen sc1")
        a("buffer_store_dwordx4 v[60:63], v48, s[32:35], s58 offen offset:1024 sc1")
        a("s_mov_b64 exec, 0x00ff00ff")
        a("buffer_store_dwordx2 v[60:61], v70, s[32:35], 0 offen sc1")
        a("s_cmp_eq_u32 s3, 0"); a("s_cbranch_scc0 L_noclr")
        a("s_mov_b32 exec_lo, 0xffff"); a("s_mov_b32 exec_hi, 0xffff")
        a("buffer_store_dword v60, v69, s[32:35], 0 offen sc1")
        a("L_noclr:")
        a("s_mov_b64 exec, -1")
    for j in range(nA): kload()
    stamp(1)
    a("s_mov_b32 s60, 0xcccccccc"); a("s_mov_b32 s61, 0xcccccccc"); a("s_mov_b32 s62, 0xaaaaaaaa"); a("s_mov_b32 s63, 0xaaaaaaaa")
    a(f"s_mov_b32 s90, {f32(128 ** -0.5)}"); a(f"s_mov_b32 s91, {f32(1.4426950408889634)}")
    C("selector masks v14..17: lane (g,m): m<8 and m>>1==r -> m&1 ? 0xffff0000 : 0xffff")
    a("v_and_b32 v60, 1, v75"); a("v_lshlrev_b32 v60, 4, v60"); a("v_mov_b32 v61, 0xffff"); a("v_lshlrev_b32 v60, v60, v61")
    a("v_lshrrev_b32 v61, 1, v75")
    for r in range(4):
        a(f"v_cmp_eq_u32 vcc, {r}, v61"); a(f"v_cndmask_b32 v{14+r}, 0, v60, vcc")
    C("---- LayerNorm of x[b]")
    vwait("x")
    for j in range(nB): kload()
    for k in range(4):
        a(f"v_lshlrev_b32 v{76+2*k}, 16, v{52+k}"); a(f"v_and_b32 v{77+2*k}, 0xffff0000, v{52+k}")
    a("v_add_f32 v84, v76, v77")
    for k in range(2, 8): a(f"v_add_f32 v84, v84, v{76+k}")
    allred("v_add_f32", "v84", "v85")
    a(f"v_mul_f32 v84, {f32(1/512)}, v84")
    for k in range(8): a(f"v_sub_f32 v{76+k}, v{76+k}, v84")
    a("v_mul_f32 v86, v76, v76")
    for k in range(1, 8): a(f"v_fmac_f32 v86, v{76+k}, v{76+k}")
    allred("v_add_f32", "v86", "v85")
    a(f"v_mul_f32 v86, {f32(1/512)}, v86")
    bf16r("v84"); bf16r("v86")
    a(f"v_add_f32 v86, {f32(1e-5)}, v86"); bf16r("v86")
    a("v_sqrt_f32 v86, v86"); bf16r("v86"); a("v_rcp_f32 v86, v86")
    vwait("xc1")
    for k in range(2):
        a(f"v_lshlrev_b32 v{56+k}, 16, v{56+k}"); a(f"v_sub_f32 v{56+k}, v{56+k}, v84"); bf16r(f"v{56+k}")
        a(f"v_mul_f32 v{56+k}, v{56+k}, v86"); a(f"v_cvt_pk_bf16_f32 v{66+k}, v{56+k}, v{56+k}")
    stamp(2)
    C("---- q = xn @ wq[:, head], 128 rows per wave")
    masks(0, "v66", 0)
    for t in range(32):
        vwait(f"wq{t}")
        mfma(28, mop(t), f"a[{4*t}:{4*t+3}]", t == 0)
        if wiss < 32: wqload()
        if int((t + 1) / kq) > int(t / kq) and kiss < NB: kload()
        if t < 31: masks(t + 1, "v66" if t + 1 < 16 else "v67", (t + 1) & 15)
    for j in range(nbar):
        if kiss < NB: kload()
    a("v_lshlrev_b32 v27, 5, v75"); a("v_lshl_add_u32 v26, v74, 4, v27"); a("s_lshl_b32 s58, s3, 9"); a("v_add_u32 v26, s58, v26")
    a("s_mov_b32 exec_hi, 0")
    a(f"ds_write_b128 v26, v[28:31] offset:{L_QP}")
    a("s_mov_b64 exec, -1")
    a("s_waitcnt lgkmcnt(0)"); a("s_barrier")
    for w in range(4):
        for hh in range(2): a(f"ds_read_b128 v[{76+8*w+4*hh}:{79+8*w+4*hh}], v27 offset:{L_QP+512*w+16*hh}")
    a("s_waitcnt lgkmcnt(0)")
    for k in range(8):
        a(f"v_add_f32 v{76+k}, v{76+k}, v{84+k}"); a(f"v_add_f32 v{92+k}, v{92+k}, v{100+k}")
    for k in range(8): a(f"v_add_f32 v{76+k}, v{76+k}, v{92+k}")
    for k in range(4): a(f"v_cvt_pk_bf16_f32 v{10+k}, v{76+2*k}, v{77+2*k}")
    a("v_mov_b32 v27, v65")
    a("v_mov_b32 v64, 0xff800000"); a("v_mov_b32 v65, 0")
    stamp(3)

    def kconsume(i):
        t = i & 15
        x = f"v{48 + (t & 1)}"
        base = RING + 4 * i
        a(f"v_dot2_f32_bf16 {x}, v{base}, v10, 0")
        for r in range(1, 4): a(f"v_dot2_f32_bf16 {x}, v{base+r}, v{10+r}, {x}")
        if t & 1:
            d = f"v{50 + ((t >> 1) & 1)}"
            a(f"v_add_f32_dpp {d}, v48, v48 row_ror:8 row_mask:0xf bank_mask:0x3")
            a(f"v_add_f32_dpp {d}, v49, v49 row_ror:8 row_mask:0xf bank_mask:0xc")
        if t & 3 == 3:
            d = f"v{52 + ((t >> 2) & 1)}"
            a(f"v_add_f32_dpp {d}, v50, v50 row_half_mirror row_mask:0xf bank_mask:0x5")
            a(f"v_add_f32_dpp {d}, v51, v51 row_half_mirror row_mask:0xf bank_mask:0xa")
        if t & 7 == 7:
            d = f"v{54 + ((t >> 3) & 1)}"
            a("v_add_f32_dpp v52, v52, v52 quad_perm:[2,3,0,1] row_mask:0xf bank_mask:0xf")
            a("v_add_f32_dpp v53, v53, v53 quad_perm:[2,3,0,1] row_mask:0xf bank_mask:0xf")
            a(f"v_cndmask_b32 {d}, v52, v53, s[60:61]")
        if t == 15:
            s = f"v{46 + (i >> 4)}"
            a("v_add_f32_dpp v54, v54, v54 quad_perm:[1,0,3,2] row_mask:0xf bank_mask:0xf")
            a("v_add_f32_dpp v55, v55, v55 quad_perm:[1,0,3,2] row_mask:0xf bank_mask:0xf")
            a(f"v_cndmask_b32 {s}, v54, v55, s[62:63]")
            bf16r(s); a(f"v_mul_f32 {s}, s90, {s}"); bf16r(s)
            a(f"v_max_f32 v64, v64, {s}")
    C("---- lap 0: the keys that arrived while q was formed")
    a(f"s_mov_b32 s55, {NB*4096}")
    left = NB + D - kiss
    early = list(early)
    while early and early[-1] >= NB - (left - len(early)): early.pop()
    sched = early + list(range(NB - (left - len(early)), NB))
    assert len(set(sched)) == left, (sched, left)
    for i in range(NB):
        vwait(f"k{i}")
        if i in sched:
            assert kiss - NB < i
            kload()
        kconsume(i)
    stamp(4)
    C("---- the next laps also bring in this head's rows of wo")
    wo = 0
    for lap in range(1, nwl + 1):
        a("s_mov_b32 s54, s55"); a(f"s_add_u32 s55, s55, {NB*4096}")
        for k in range(2 * lap): a(f"v_mov_b32 v{46-2*lap+k}, v{48-2*lap+k}")
        kbase = NB * lap
        if lap == 1:
            for j in range((D1 or D) - D): kload()
        for i in range(NB):
            vwait(f"k{NB*lap+i}")
            if kiss < (nwl + 1) * NB + D: kload()
            if wo < 32 and i % nwl == 0:
                a(f"s_add_u32 s58, s97, {wo & 15}"); a("s_and_b32 s58, s58, 15"); a("s_lshl_b32 s58, s58, 12")
                if wo >= 16: a("s_or_b32 s58, s58, 0x10000")
                a(f"buffer_load_dwordx4 a[{4*wo}:{4*wo+3}], v59, s[24:27], s58 offen {wpol}"); vm.append(f"wo{wo}"); wo += 1
            kconsume(i)
            if late and lap == 1 and i == 4: setup_late()
    assert wo == 32

    leads = ([D - 1] if ahead else []) + [D, D + hi]
    def decide(name, k):
        a("s_waitcnt lgkmcnt(0)")
        a("s_sub_u32 s58, s52, s48"); a("s_lshl_b32 s58, s58, 8"); a("s_sub_u32 s58, s58, s49"); a("s_add_u32 s49, s49, s57")
        a("s_sub_u32 s19, s19, 1"); a("s_cmp_ge_i32 s19, 0"); a("s_cselect_b32 s58, 1, s58")
        a("s_cmp_gt_i32 s58, 0"); a(f"s_cbranch_scc1 {name}_{k}_{D+hi}")
        if ahead:
            a("s_cmp_lt_i32 s58, s21"); a(f"s_cbranch_scc1 {name}_{k}_{D-1}")
    def segment(name, k, DD, consume):
        tag = f"{name}_{k}_{DD}"; i0 = 16 * k
        a(f"{tag}:")
        for j in range(leads[0], DD):
            a(f"s_cmp_gt_u32 s51, {j}"); a(f"s_cbranch_scc1 {tag}_i{j}")
            sload(i0 + j)
            a(f"{tag}_i{j}:")
        nskip = leads[-1] - DD
        for i in range(i0, i0 + 16):
            a(f"s_waitcnt vmcnt({DD - 1})")
            skip = i - i0 < nskip
            if skip: a(f"s_cmp_gt_u32 s51, {DD + i - i0}"); a(f"s_cbranch_scc1 {tag}_s{i}")
            sload(i + DD)
            if skip: a(f"{tag}_s{i}:")
            if i - i0 == nskip: a(f"s_mov_b32 s51, {DD}")
            if i - i0 == 15: a("s_memrealtime s[52:53]")
            consume(i)
    def cal_events(base):
        lo, up = (nwl + 1, 8) if base == 0 else (8, 16)
        if lo <= cal < up:
            a("s_waitcnt lgkmcnt(0)"); a(f"s_cmp_eq_u32 s56, {cal-base}"); a("s_cselect_b32 s88, s52, s88")
        if lo <= cal + 2 < up:
            a("s_lshl_b32 s58, s6, 4"); a("s_add_u32 s58, s58, s56")
            a(f"s_cmp_eq_u32 s58, {32+cal+2-base}"); a("s_cbranch_scc0 L_norep")
            a("s_waitcnt lgkmcnt(0)")
            a("s_sub_u32 s58, s52, s88"); a("s_min_u32 s58, s58, 0x7fff"); a("s_max_u32 s58, s58, 1"); a("s_pack_ll_b32_b16 s58, s52, s58")
            a("v_mov_b32 v61, s58"); a("s_lshl_b32 s58, s89, 2"); a("v_mov_b32 v60, s58"); a("s_mov_b64 exec, 1")
            a("global_store_dword v60, v61, s[84:85] sc1")
            a("s_mov_b64 exec, -1")
            a("L_norep:")
        if lo <= cal + 2 < up and pre:
            a("s_and_b32 s58, s7, 1"); a("s_lshl_b32 s58, s58, 4"); a("s_add_u32 s58, s58, s56")
            a(f"s_cmp_eq_u32 s58, {16+cal+2-base}"); a(f"s_cselect_b32 s19, {pre}, s19")
        x = "K" if base == 0 else "V"
        a("s_cmp_lg_u32 s50, 0"); a(f"s_cbranch_scc0 L_nocal{x}")
        if cal + 3 - base > max(lo - base, 0):
            a(f"s_cmp_ge_u32 s56, {cal+3-base}"); a(f"s_cbranch_scc0 L_nocal{x}")
        a("v_cmp_eq_u32 vcc, 0, v72"); a(f"s_cbranch_vccz L_cal{x}")
        a("v_lshlrev_b32 v60, 2, v1"); a("global_load_dword v72, v60, s[84:85] sc1")
        a(f"s_branch L_nocal{x}")
        a(f"L_cal{x}:")
        a("s_mov_b32 s50, 0")
        if ctl:
            a("s_waitcnt lgkmcnt(0)")
            a("s_mov_b32 s48, s52")
            a("v_bfe_u32 v60, v72, 16, 15"); a("v_subrev_u32 v61, s52, v72"); a("v_bfe_i32 v61, v61, 0, 16")
            allred("v_add_u32", "v60", "v62"); allred("v_add_u32", "v61", "v62")
            a("v_readfirstlane_b32 s57, v60"); a("v_readfirstlane_b32 s49, v61")
            if eps > 0: a(f"s_lshr_b32 s58, s57, {eps}"); a("s_add_u32 s57, s57, s58")
            if eps < 0: a(f"s_lshr_b32 s58, s57, {-eps}"); a("s_sub_u32 s57, s57, s58")
            a(f"s_add_u32 s58, s56, {base-cal-2}"); a("s_lshl_b32 s58, s58, 1"); a("s_mul_i32 s58, s58, s57")
            a("s_lshl_b32 s49, s49, 2"); a("s_add_u32 s49, s49, s58")
            a(f"s_mov_b32 s58, {slack*256}")
            a("s_cmp_eq_u32 s7, 1"); a(f"s_cselect_b32 s58, {(slack-head[0])*256}, s58")
            a("s_cmp_eq_u32 s7, 3"); a(f"s_cselect_b32 s58, {(slack-head[1])*256}, s58")
            a("s_add_u32 s49, s49, s58")
            if ahead: a(f"s_mov_b32 s21, {-ahead*256}")
        a(f"L_nocal{x}:")
    def laploop(name, head_code, consume, fin=0):
        others = [x for x in leads if x != D]
        a(".p2align 3")
        a(f"{name}:")
        head_code()
        decide(name, 0)
        segment(name, 0, D, consume)
        a(f"{name}_mid:")
        if fin: a("s_cmp_eq_u32 s56, 7"); a(f"s_cbranch_scc1 {name}_f")
        decide(name, 1)
        segment(name, 1, D, consume)
        a(f"{name}_nxt:")
        a("s_add_u32 s56, s56, 1"); a("s_cmp_lt_u32 s56, 8"); a(f"s_cbranch_scc1 {name}")
        a(f"s_branch {name}_end")
        for x in others:
            segment(name, 0, x, consume); a(f"s_branch {name}_mid")
            segment(name, 1, x, consume); a(f"s_branch {name}_nxt")
        if fin:
            a(f"{name}_f:")
            for j in range(leads[0], leads[-1]):
                a(f"s_cmp_gt_u32 s51, {j}"); a(f"s_cbranch_scc1 {name}_f{j}")
                sload(16 + j)
                a(f"{name}_f{j}:")
            nx = 16 + leads[-1]
            while nx < min(16 + fin, NB): sload(nx); nx += 1
            for i in range(16, NB):
                a(f"s_waitcnt vmcnt({nx - 1 - i})")
                if nx < NB: sload(nx); nx += 1
                consume(i)
        a(f"{name}_end:")
    C("s48 time base, s49 deadline (1/256 ticks), s50 reports seen, s51 depth in use, s[52:53] clock, s57 pace, s19 fixed deep segments")
    a(f"s_mov_b32 s56, {nwl+1}")
    a("s_memrealtime s[52:53]"); a(f"s_mov_b32 s51, {D}"); a("s_mov_b32 s50, 99"); a("s_mov_b32 s57, 0")
    a("s_mov_b32 s48, s18"); a("s_mov_b32 s49, 0x7fffffff"); a("s_mov_b32 s88, 0"); a("s_mov_b32 s21, 0x80000000"); a("v_mov_b32 v72, 0")
    a("s_cmp_eq_u32 s7, 1"); a(f"s_cselect_b32 s19, {hiu[0]-4}, 0"); a("s_cmp_eq_u32 s7, 3"); a(f"s_cselect_b32 s19, {hiu[1]-4}, s19")
    def khead():
        lapstamp(16)
        a("s_mov_b32 s54, s55"); a(f"s_add_u32 s55, s55, {NB*4096}")
        a("s_cmp_eq_u32 s56, 7")
        a("s_cselect_b32 s12, s16, s12"); a("s_cselect_b32 s13, s17, s13"); a("s_cselect_b32 s55, 0, s55")
        for k in range(14): a(f"v_mov_b32 v{32+k}, v{34+k}")
        cal_events(0)
    laploop("L_k", khead, kconsume)
    stamp(5)
    C("---- maximum of this wave's scores, in log2 units, negated")
    allred("v_max_f32", "v64", "v48")
    a("v_mul_f32 v64, s91, v64"); a("v_sub_f32 v64, 0, v64")
    a("s_mov_b32 s8, s12"); a("s_mov_b32 s9, s13"); a("s_mov_b32 s56, 0")
    for r in range(4): a(f"v_mov_b32 v{28+r}, 0")
    def vhead():
        lapstamp(24)
        a("s_mov_b32 s54, s55"); a(f"s_add_u32 s55, s55, {NB*4096}")
        for k in range(2):
            a(f"v_fma_f32 v{56+k}, v{32+k}, s91, v64"); a(f"v_exp_f32 v{56+k}, v{56+k}")
            a(f"v_add_f32 v65, v65, v{56+k}"); a(f"v_cvt_pk_bf16_f32 v{66+k}, v{56+k}, v{56+k}")
        for k in range(14): a(f"v_mov_b32 v{32+k}, v{34+k}")
        masks(0, "v66", 0)
        cal_events(8)
        if cpf2:
            a(f"s_cmp_eq_u32 s56, {cpf2}"); a("s_cbranch_scc0 L_nocpf2")
            a("s_getpc_b64 s[60:61]")
            a("L_pc2:")
            a("s_add_u32 s60, s60, L_v_end-L_pc2"); a("s_addc_u32 s61, s61, 0"); a("s_and_b32 s60, s60, 0xffffff80")
            a("s_lshr_b32 s58, s2, 3"); a("s_lshl_b32 s58, s58, 8"); a("v_add_u32 v60, s58, v0"); a("v_lshlrev_b32 v60, 4, v60")
            a("v_cmp_gt_u32 vcc, L_end-L_v_end, v60"); a("s_and_saveexec_b64 s[62:63], vcc"); a("s_cbranch_execz L_nocpf3")
            a("global_load_dwordx4 v[76:79], v60, s[60:61]")
            a("L_nocpf3:")
            a("s_mov_b64 exec, -1")
            a("L_nocpf2:")
        a("s_cmp_eq_u32 s56, 7"); a("s_cbranch_scc0 L_nolast")
        allred("v_add_f32", "v65", "v48")
        a("s_lshl_b32 s58, s3, 3"); a("v_mov_b32 v48, s58"); a("s_mov_b64 exec, 1")
        a(f"ds_write_b64 v48, v[64:65] offset:{L_ML}")
        a("s_mov_b64 exec, -1")
        a("s_cmp_eq_u32 s50, 0"); a("s_cbranch_scc1 L_nolast")
        a(f"s_mov_b32 s88, {SPIN}"); a("v_lshlrev_b32 v60, 2, v1")
        a("L_cnt:")
        a("global_load_dword v72, v60, s[84:85] sc1"); a("s_waitcnt vmcnt(0)")
        a("v_cmp_eq_u32 vcc, 0, v72"); a("s_cbranch_vccz L_nolast")
        a("s_sleep 8"); a("s_sub_u32 s88, s88, 1"); a("s_cbranch_scc0 L_cnt")
        a("L_nolast:")
    def vconsume(i):
        mfma(28, mop(i), ring(i), False)
        if i < NB - 1: masks(i + 1, f"v{66 + ((i + 1) >> 4)}", bitrev((i + 1) & 15))
    if vpol is not None: cur[0] = vpol
    laploop("L_v", vhead, vconsume, fin)
    stamp(6)
    C("---- combine the four waves, project through wo, publish the partial row")
    a("v_mov_b32 v48, 0")
    a("s_mov_b32 exec_hi, 0")
    a(f"ds_write_b128 v26, v[28:31] offset:{L_OP}")
    a("s_mov_b64 exec, -1")
    a("s_waitcnt lgkmcnt(0)"); a("s_barrier")
    a(f"ds_read_b128 v[76:79], v48 offset:{L_ML}"); a(f"ds_read_b128 v[80:83], v48 offset:{L_ML+16}")
    for w in range(4): a(f"ds_read2st64_b32 v[{84+2*w}:{85+2*w}], v27 offset0:{L_OP//256+2*w} offset1:{L_OP//256+2*w+1}")
    a("s_waitcnt lgkmcnt(4)")
    a("v_min_f32 v48, v76, v78"); a("v_min3_f32 v48, v48, v80, v82")
    for w in range(4): a(f"v_sub_f32 v{76+2*w}, v48, v{76+2*w}")
    for w in range(4): a(f"v_exp_f32 v{76+2*w}, v{76+2*w}")
    a("v_mul_f32 v49, v76, v77")
    for w in range(1, 4): a(f"v_fmac_f32 v49, v{76+2*w}, v{77+2*w}")
    a("v_rcp_f32 v49, v49")
    a("s_waitcnt lgkmcnt(0)")
    for k in range(2):
        a(f"v_mul_f32 v{56+k}, v76, v{84+k}")
        for w in range(1, 4): a(f"v_fmac_f32 v{56+k}, v{76+2*w}, v{84+2*w+k}")
    for k in range(2):
        a(f"v_mul_f32 v{56+k}, v{56+k}, v49"); a(f"v_cvt_pk_bf16_f32 v{66+k}, v{56+k}, v{56+k}")
    masks(0, "v66", 0)
    for t in range(32):
        if t < 31: masks(t + 1, "v66" if t + 1 < 16 else "v67", (t + 1) & 15)
        mfma(28, mop(t), f"a[{4*t}:{4*t+3}]", t == 0)
    a("s_mov_b32 exec_hi, 0")
    for r in range(4): a(f"v_min_u32 v{28+r}, -2, v{28+r}")
    a("buffer_store_dwordx4 v[28:31], v68, s[32:35], 0 offen sc1")
    a("s_mov_b64 exec, -1")
    stamp(7)
    a("s_cmp_eq_u32 s6, 2"); a("s_cbranch_scc1 L_s2")
    a("s_and_b32 s58, s7, 1"); a("s_cbranch_scc0 L_fin")
    C("---- this workgroup's FFN weights -> LDS: A via s[40:43], B via s[44:47]; s96/s97 source, s98/s99 LDS, s100/s101 steps")
    a("s_cmp_eq_u32 s7, 1"); a("s_cbranch_scc0 L_dmaD")
    a("v_lshrrev_b32 v62, 2, v1"); a("s_movk_i32 s58, 3584"); a("v_mul_u32_u24 v62, s58, v62")
    a("v_and_b32 v63, 3, v1"); a("v_lshl_add_u32 v62, v63, 4, v62")
    a("s_lshl_b32 s58, s89, 6"); a("v_add_u32 v62, s58, v62")
    a(f"s_mul_i32 s96, s3, {128*3584}"); a("s_mov_b32 s97, s96")
    a("s_lshl_b32 s98, s3, 13"); a(f"s_add_u32 s98, s98, {L_W}"); a("s_add_u32 s99, s98, 32768")
    a(f"s_mov_b32 s100, {16*3584}"); a("s_mov_b32 s101, 1024"); a("s_mov_b32 s93, 8")
    a("s_branch L_dma")
    a("L_dmaD:")
    a("v_lshrrev_b32 v62, 1, v1"); a("v_lshlrev_b32 v62, 10, v62"); a("v_and_b32 v63, 1, v1"); a("v_lshl_add_u32 v62, v63, 4, v62")
    a("s_lshl_b32 s58, s89, 5"); a("v_add_u32 v62, s58, v62")
    for d in (40, 44):
        a(f"s_mov_b32 s{d}, s80"); a(f"s_mov_b32 s{d+1}, s81"); a(f"s_mov_b32 s{d+2}, {1792*1024}")
    a(f"s_mul_i32 s96, s3, {448*1024}"); a("s_add_u32 s97, s96, 32768")
    a(f"s_mul_i32 s98, s3, {448*32}"); a(f"s_add_u32 s98, s98, {L_W}"); a("s_add_u32 s99, s98, 1024")
    a("s_mov_b32 s100, 65536"); a("s_mov_b32 s101, 2048"); a("s_mov_b32 s93, 7")
    a("L_dma:")
    a("s_mov_b32 m0, s98"); a("s_sub_u32 s93, s93, 1")
    a(f"buffer_load_dwordx4 v62, s[40:43], s96 offen {fpol} lds")
    a("s_mov_b32 m0, s99"); a("s_add_u32 s96, s96, s100")
    a(f"buffer_load_dwordx4 v62, s[44:47], s97 offen {fpol} lds")
    a("s_add_u32 s97, s97, s100"); a("s_add_u32 s98, s98, s101"); a("s_add_u32 s99, s99, s101")
    a("s_cmp_lg_u32 s93, 0"); a("s_cbranch_scc1 L_dma")
    C("exchange addresses v63 = g*128 + b*16, v26 = w*512 + v63 ; v60 = 16g + r', v61 = c' for the transposing reads")
    a("v_and_b32 v27, 7, v75"); a("v_lshlrev_b32 v63, 4, v27"); a("v_lshl_add_u32 v63, v74, 7, v63")
    a("s_lshl_b32 s58, s3, 9"); a("v_add_u32 v26, s58, v63")
    a("v_lshrrev_b32 v60, 2, v75"); a("v_lshl_add_u32 v60, v74, 4, v60"); a("v_and_b32 v61, 3, v1")
    a("s_cmp_eq_u32 s7, 3"); a("s_cbranch_scc1 L_s4")

    C("---- gate / up: four tiles of 8+8 columns, 128 rows of h per wave; LayerNorm is applied to the sums")
    a("v_lshlrev_b32 v60, 6, v60"); a("v_lshrrev_b32 v49, 1, v61"); a("v_lshl_add_u32 v60, v49, 15, v60")
    a("v_and_b32 v49, 1, v61"); a("v_lshl_add_u32 v60, v49, 3, v60")
    a("s_lshl_b32 s58, s3, 13"); a(f"s_add_u32 s58, s58, {L_W}"); a("v_add_u32 v60, s58, v60")
    for r in range(4): a(f"v_mov_b32 v{112+r}, 0x3f803f80")
    C("h fragment address v62 = (g>>1)*512 + (b>>1)*128 + (b&1)*64 + (g&1)*32 + half*16")
    a("v_lshrrev_b32 v62, 1, v74"); a("v_lshlrev_b32 v62, 9, v62"); a("v_bfe_u32 v49, v75, 1, 2"); a("v_lshl_add_u32 v62, v49, 7, v62")
    a("v_and_b32 v49, 1, v75"); a("v_lshl_add_u32 v62, v49, 6, v62"); a("v_and_b32 v49, 1, v74"); a("v_lshl_add_u32 v62, v49, 5, v62")
    a("v_lshrrev_b32 v49, 3, v75"); a("v_lshl_add_u32 v62, v49, 4, v62")
    a(f"s_mov_b32 s58, {L_DUMP-L_T2}"); a("v_mad_u32_u24 v26, v49, s58, v26")
    a("s_lshl_b32 s58, s3, 11"); a("v_add_u32 v63, s58, v63")
    a("v_lshrrev_b32 v49, 1, v74"); a("v_lshlrev_b32 v49, 2, v49"); a("v_lshlrev_b32 v61, 5, v27"); a("v_add_u32 v49, v49, v61")
    a("s_lshl_b32 s58, s3, 3"); a("v_add_u32 v49, s58, v49")
    a("s_lshl_b32 s59, s3, 11"); a(f"s_add_u32 s59, s59, {WS_H}")
    a("s_waitcnt vmcnt(0)")
    stamp(13)
    for t in range(4):
        for u in range(2):
            for hf in range(2):
                for sec in range(2): trread(128 + 16*t + 8*u + 4*hf + 2*sec, "v60", (64*u + 8*hf + 4*sec) * 64 + 16*t)
        if t: a("s_waitcnt lgkmcnt(6)")
    a("s_waitcnt lgkmcnt(0)")
    for k in range(4):
        for t in range(4): mfma(224 + 4*t, f"v[{128+16*t+4*k}:{131+16*t+4*k}]", "v[112:115]", k == 0)
    for t in range(4): a(f"ds_write_b128 v26, v[{224+4*t}:{227+4*t}] offset:{L_CS+2048*t}")
    def ldH(b): return [f"buffer_load_dwordx4 v[{b+4*u}:{b+3+4*u}], v62, s[32:35], s59 offen offset:{u*1024} sc1" for u in range(2)]
    def useH(b):
        n = 0
        for u in range(2):
            for t in range(4):
                for hf in range(2):
                    mfma(192 + 8*t + 4*hf, f"v[{128+16*t+8*u+4*hf}:{131+16*t+8*u+4*hf}]", f"v[{b+4*u}:{b+3+4*u}]", u == 0)
                    if n < 8:
                        a(f"v_dot2_f32_bf16 v52, v{b+n}, v112, {'0' if n == 0 else 'v52'}")
                        a(f"v_dot2_f32_bf16 v53, v{b+n}, v{b+n}, {'0' if n == 0 else 'v53'}")
                    if n == 9:
                        for r in range(2): a(f"v_add_f32_dpp v{52+r}, v{52+r}, v{52+r} row_ror:8 row_mask:0xf bank_mask:0xf")
                    if n == 11: a("v_permlane32_swap_b32 v52, v53"); a("v_add_f32 v52, v52, v53"); a("v_mov_b32 v53, v52")
                    if n == 13: a("v_permlane16_swap_b32 v52, v53"); a("v_add_f32 v52, v52, v53"); a(f"ds_write_b32 v49, v52 offset:{L_ST}")
                    n += 1
    poll2("L_pH", ldH, 8, (76, 84), useH)
    stamp(10)
    for t in range(4):
        for r in range(4): a(f"v_add_f32_dpp v{192+8*t+r}, v{196+8*t+r}, v{192+8*t+r} row_ror:8 row_mask:0xf bank_mask:0xf")
        a(f"ds_write_b128 v26, v[{192+8*t}:{195+8*t}] offset:{L_T2+2048*t}")
    a("s_waitcnt lgkmcnt(0)"); a("s_barrier")
    for k in range(2): a(f"ds_read_b128 v[{92+4*k}:{95+4*k}], v61 offset:{L_ST+16*k}")
    for w in range(4): a(f"ds_read_b128 v[{224+4*w}:{227+4*w}], v63 offset:{L_CS+512*w}")
    for w in range(4): a(f"ds_read_b128 v[{116+4*w}:{119+4*w}], v63 offset:{L_T2+512*w}")
    a("s_waitcnt lgkmcnt(8)")
    for k in range(2): a(f"v_add_f32 v{92+k}, v{92+k}, v{94+k}"); a(f"v_add_f32 v{96+k}, v{96+k}, v{98+k}")
    a("v_add_f32 v52, v92, v96"); a("v_add_f32 v53, v93, v97")
    a(f"v_mul_f32 v52, {f32(1/512)}, v52"); a(f"v_mul_f32 v53, {f32(1/512)}, v53")
    a("v_fma_f32 v53, -v52, v52, v53"); a("v_max_f32 v53, 0, v53")
    bf16r("v53"); bf16r("v52")
    a(f"v_add_f32 v53, {f32(1e-5)}, v53"); bf16r("v53")
    a("v_sqrt_f32 v53, v53")
    a("s_waitcnt lgkmcnt(4)")
    for r in range(4): a(f"v_add_f32 v{224+r}, v{224+r}, v{228+r}"); a(f"v_add_f32 v{232+r}, v{232+r}, v{236+r}")
    bf16r("v53"); a("v_rcp_f32 v53, v53")
    for r in range(4): a(f"v_add_f32 v{108+r}, v{224+r}, v{232+r}")
    a("s_waitcnt lgkmcnt(0)")
    for r in range(4): a(f"v_add_f32 v{116+r}, v{116+r}, v{120+r}"); a(f"v_add_f32 v{124+r}, v{124+r}, v{128+r}")
    for r in range(4): a(f"v_add_f32 v{116+r}, v{116+r}, v{124+r}")
    for r in range(4): a(f"v_fma_f32 v{116+r}, -v52, v{108+r}, v{116+r}")
    for r in range(4): a(f"v_mul_f32 v{116+r}, v{116+r}, v53")
    for r in range(2): a(f"v_cvt_pk_bf16_f32 v{120+r}, v{116+2*r}, v{117+2*r}")
    for r in range(2): a(f"v_permlane32_swap_b32 v{120+r}, v{122+r}")
    for r in range(2):
        a(f"v_lshlrev_b32 v{116+2*r}, 16, v{120+r}"); a(f"v_and_b32 v{117+2*r}, 0xffff0000, v{120+r}")
        a(f"v_lshlrev_b32 v{124+2*r}, 16, v{122+r}"); a(f"v_and_b32 v{125+2*r}, 0xffff0000, v{122+r}")
    for r in range(4): a(f"v_max_f32 v{116+r}, 0, v{116+r}")
    for r in range(4): a(f"v_mul_f32 v{116+r}, v{116+r}, v{124+r}")
    for r in range(2): a(f"v_cvt_pk_bf16_f32 v{120+r}, v{116+2*r}, v{117+2*r}")
    a("s_mov_b64 exec, 0x00ff00ff")
    for r in range(2): a(f"v_min_u32 v{120+r}, -2, v{120+r}")
    a("buffer_store_dwordx2 v[120:121], v70, s[32:35], 0 offen sc1")
    stamp(11)
    a("s_branch L_fin")

    C("---- reducer: sum the 32 heads' partials of 2 rows x 32 columns, add x, publish h")
    a("L_s2:")
    a("v_lshlrev_b32 v62, 4, v1")
    a("s_lshl_b32 s59, s89, 13"); a("s_add_u32 s92, s59, 4096")
    a("v_lshlrev_b32 v50, 16, v71"); a("v_and_b32 v51, 0xffff0000, v71")
    def ld8(b): return [f"buffer_load_dwordx4 v[{b+4*u}:{b+3+4*u}], v62, s[32:35], {'s59' if u < 4 else 's92'} offen offset:{(u&3)*1024} sc1" for u in range(8)]
    def useP(b):
        for r in range(16): a(f"v_add_f32 v{108+r}, v{b+r}, v{b+16+r}")
    poll2("L_pP", ld8, 32, (76, 128), useP)
    stamp(8)
    for st in (8, 4):
        for r in range(st): a(f"v_add_f32 v{108+r}, v{108+r}, v{108+st+r}")
    a("v_permlane32_swap_b32 v108, v110"); a("v_permlane32_swap_b32 v109, v111")
    a("v_add_f32 v108, v108, v110"); a("v_add_f32 v109, v109, v111")
    a("v_mov_b32 v110, v108"); a("v_mov_b32 v111, v109")
    a("v_permlane16_swap_b32 v108, v110"); a("v_permlane16_swap_b32 v109, v111")
    a("v_add_f32 v108, v108, v110"); a("v_add_f32 v109, v109, v111")
    a("v_cvt_pk_bf16_f32 v108, v108, v109")
    a("v_and_b32 v109, 0xffff0000, v108"); a("v_lshlrev_b32 v108, 16, v108")
    a("v_add_f32 v108, v108, v50"); a("v_add_f32 v109, v109, v51")
    a("v_cvt_pk_bf16_f32 v108, v108, v109")
    a("s_mov_b32 exec_lo, 0xffff"); a("s_mov_b32 exec_hi, 0xffff")
    a("v_min_u32 v108, -2, v108")
    a("buffer_store_dword v108, v69, s[32:35], 0 offen sc1")
    stamp(9)
    a("s_branch L_fin")

    C("---- 16 output columns, 448 rows of W_down per wave")
    a("L_s4:")
    a("v_lshlrev_b32 v60, 5, v60"); a("v_lshl_add_u32 v60, v61, 3, v60")
    a(f"s_mul_i32 s58, s3, {448*32}"); a(f"s_add_u32 s58, s58, {L_W}"); a("v_add_u32 v60, s58, v60")
    C("h address v49 = H + ((s'>>1)*4 + (b>>1))*128 + (b&1)*64 + (s'&1)*32 + g*8 ; out address v50 = b*1024 + s'*32 + g*8")
    a("v_lshrrev_b32 v49, 1, v27"); a("v_lshlrev_b32 v49, 7, v49"); a("v_and_b32 v50, 1, v27"); a("v_lshl_add_u32 v49, v50, 6, v49")
    a("v_lshl_add_u32 v49, v74, 3, v49")
    a("s_lshr_b32 s58, s89, 1"); a("s_lshl_b32 s58, s58, 9"); a("s_and_b32 s92, s89, 1"); a("s_lshl_b32 s92, s92, 5"); a("s_add_u32 s58, s58, s92")
    a(f"s_add_u32 s58, s58, {WS_H}"); a("v_add_u32 v49, s58, v49")
    a("v_lshlrev_b32 v50, 10, v27"); a("v_lshl_add_u32 v50, v74, 3, v50"); a("s_lshl_b32 s58, s89, 5"); a("v_add_u32 v50, s58, v50")
    a(f"s_mul_i32 s59, s3, {7*1024}"); a(f"s_add_u32 s59, s59, {WS_G}"); a("s_add_u32 s92, s59, 4096")
    a("v_lshlrev_b32 v62, 4, v1")
    a("s_waitcnt vmcnt(0)")
    stamp(13)
    for u in range(7):
        for hf in range(2):
            for sec in range(2): trread(128 + 8*u + 4*hf + 2*sec, "v60", (64*u + 8*hf + 4*sec) * 32)
        if u in (2, 5): a("s_waitcnt lgkmcnt(4)")
    a("s_waitcnt lgkmcnt(0)")
    def ldG(b): return ld8(b)[:7] + [f"buffer_load_dwordx2 v[{b+28}:{b+29}], v49, s[32:35], 0 offen sc1"]
    def useG(b):
        for u in range(7):
            for hf in range(2): mfma(108 + 4*hf, f"v[{128+8*u+4*hf}:{131+8*u+4*hf}]", f"v[{b+4*u}:{b+3+4*u}]", u == 0)
        for r in range(2):
            a(f"v_lshlrev_b32 v{116+2*r}, 16, v{b+28+r}"); a(f"v_and_b32 v{117+2*r}, 0xffff0000, v{b+28+r}")
    poll2("L_pG", ldG, 30, (76, 192), useG)
    stamp(10)
    for r in range(4): a(f"v_add_f32_dpp v{108+r}, v{112+r}, v{108+r} row_ror:8 row_mask:0xf bank_mask:0xf")
    a("s_mov_b32 exec_lo, 0x00ff00ff"); a("s_mov_b32 exec_hi, 0x00ff00ff")
    a(f"ds_write_b128 v26, v[108:111] offset:{L_TX}")
    a("s_waitcnt lgkmcnt(0)"); a("s_barrier")
    a("s_cmp_eq_u32 s3, 3"); a("s_cbranch_scc0 L_fin")
    for w in range(4): a(f"ds_read_b128 v[{128+4*w}:{131+4*w}], v63 offset:{L_TX+512*w}")
    a("s_waitcnt lgkmcnt(0)")
    for r in range(4):
        a(f"v_add_f32 v{128+r}, v{128+r}, v{132+r}"); a(f"v_add_f32 v{136+r}, v{136+r}, v{140+r}")
    for r in range(4): a(f"v_add_f32 v{128+r}, v{128+r}, v{136+r}")
    for r in range(2): a(f"v_cvt_pk_bf16_f32 v{132+r}, v{128+2*r}, v{129+2*r}")
    for r in range(2):
        a(f"v_lshlrev_b32 v{128+2*r}, 16, v{132+r}"); a(f"v_and_b32 v{129+2*r}, 0xffff0000, v{132+r}")
    for r in range(4): a(f"v_add_f32 v{128+r}, v{128+r}, v{116+r}")
    for r in range(2): a(f"v_cvt_pk_bf16_f32 v{132+r}, v{128+2*r}, v{129+2*r}")
    a("buffer_store_dwordx2 v[132:133], v50, s[36:39], 0 offen")
    stamp(11)
    a("L_fin:")
    if probe is not None:
        a(f"s_cmp_eq_u32 s2, {pwg}"); a("s_cbranch_scc0 L_end"); a("s_cmp_eq_u32 s3, 3"); a("s_cbranch_scc0 L_end")
        if probe == 0: a("s_mov_b32 s20, 0")
        a("s_add_u32 s20, s20, 10000")
        a("L_probe:")
        a("s_sleep 4"); a("s_memrealtime s[94:95]"); a("s_waitcnt lgkmcnt(0)"); a("s_sub_u32 s94, s94, s18")
        a("s_cmp_lt_u32 s94, s20"); a("s_cbranch_scc1 L_probe")
    if stamps:
        a("s_mov_b64 exec, -1")
        stamp(12)
        a("s_getreg_b32 s92, hwreg(HW_REG_XCC_ID)"); a("v_writelane_b32 v73, s92, 15")
        a("s_lshl_b32 s58, s2, 2"); a("s_add_u32 s58, s58, s3"); a("s_lshl_b32 s58, s58, 7"); a(f"s_add_u32 s58, s58, {WS_ST}")
        a("v_lshlrev_b32 v48, 2, v1"); a("s_mov_b32 exec_hi, 0")
        a("buffer_store_dword v73, v48, s[32:35], s58 offen")
        if "dbgout" in xp:
            a("s_cmp_eq_u32 s2, 229"); a("s_cbranch_scc0 L_end"); a("s_cmp_eq_u32 s3, 3"); a("s_cbranch_scc0 L_end")
            a("v_subrev_u32 v73, s18, v73"); a("s_mov_b64 exec, 0xffff")
            a("global_store_dword v48, v73, s[84:85] sc1")
    a("L_end:")
    a("s_endpgm")
    body = a.finish()
    head_ = HEADER + f"; @launch grid=(256,1,1) block=(256,1,1) lds={L_SIZE}\n" + '.amdgcn_target "amdgcn-amd-amdhsa--gfx950"\n.text\n' + \
        f".globl {NAME}\n.p2align 8\n.type {NAME},@function\n"
    tail = f""".section .rodata,"a"
.p2align 6
.amdhsa_kernel {NAME}
  .amdhsa_next_free_vgpr 384
  .amdhsa_next_free_sgpr 102
  .amdhsa_accum_offset 256
  .amdhsa_group_segment_fixed_size 0
  .amdhsa_kernarg_size 96
  .amdhsa_user_sgpr_count 2
  .amdhsa_user_sgpr_kernarg_segment_ptr 1
  .amdhsa_system_sgpr_workgroup_id_x 1
.end_amdhsa_kernel
"""
    return head_ + body + tail

if __name__ == "__main__":
    kw = eval("dict(%s)" % (sys.argv[2] if len(sys.argv) > 2 else ""))
    open(sys.argv[1], "w").write(gen(**kw))
```

```python
import sys, struct
sys.path.insert(0, __file__.rsplit('/', 1)[0])
from asmlib import Asm

NAME = "sequential_preLN__mha_block_cached__glu_gated_reglu__decode_kernel"
HEADER = open(__file__.rsplit('/', 1)[0] + '/header.txt').read()

def f32(x): return "0x%08x" % struct.unpack('<I', struct.pack('<f', x))[0]

WS_P, WS_H, WS_G, WS_ST, WS_SIZE = 0, 0x80000, 0x82000, 0x100000, 0x140000
L_QP, L_OP, L_ML, L_ST, L_TX, L_T2, L_CS, L_W, L_DUMP, L_SIZE = 0, 2048, 4096, 4160, 4608, 8192, 16384, 24576, 90112, 106496
RING = 128
NB = 32
SPIN = 200000

def gen(D=5, hi=1, pol="nt", wpol="", fpol="", early=(2, 7, 12, 17), n1=7, kq=2, nbar=2, nA=3, nB=3, D1=None,
        stag=0, cpf2=0, fin=10, touch=0, cspre=0, wend=32, wov=0, wod=0, initlow=0, prescale=1, slide=1, staged=1, ctl=1, slack=200, k0=1, late=0, cpf=23, rot=0, nw=2, nwl=1, eps=0, head=(300, 350), hiu=(4, 4), cal=3, stamps=0, xp=(), probe=None, pwg=130, vpol=None, pre=0, ahead=0, r2=0, slack2=40):
    a = Asm()
    vm = []
    def C(t): a("; " + t)
    def vwait(tag):
        n = len(vm) - 1 - vm.index(tag)
        a(f"s_waitcnt vmcnt({min(n, 63)})")
    def stamp(k):
        if probe == k:
            a("s_memrealtime s[94:95]"); a("s_waitcnt lgkmcnt(0)"); a("s_sub_u32 s20, s94, s18")
        if stamps == 2 and k not in (6, 12): return
        if stamps == 3 and k not in (3, 4, 6, 12): return
        if stamps:
            a("s_memrealtime s[94:95]"); a("s_waitcnt lgkmcnt(0)"); a(f"v_writelane_b32 v73, s94, {k}")
    def lapstamp(off):
        if stamps == 3:
            a("s_memrealtime s[94:95]"); a(f"s_add_u32 m0, s56, {off}"); a("s_waitcnt lgkmcnt(0)"); a("v_writelane_b32 v73, s94, m0")
    def allred(op, v, t):
        for n in (8, 4, 2, 1): a(f"{op}_dpp {v}, {v}, {v} row_ror:{n} row_mask:0xf bank_mask:0xf")
        for sw in ("v_permlane16_swap_b32", "v_permlane32_swap_b32"):
            a(f"v_mov_b32 {t}, {v}"); a(f"{sw} {v}, {t}"); a(f"{op} {v}, {v}, {t}")
    def bf16r(v):
        a(f"v_cvt_pk_bf16_f32 {v}, {v}, {v}"); a(f"v_and_b32 {v}, 0xffff0000, {v}")
    def srd(d, lo, hi_, size, add=None):
        if add is None:
            a(f"s_mov_b32 s{d}, s{lo}"); a(f"s_mov_b32 s{d+1}, s{hi_}")
        else:
            a(f"s_add_u32 s{d}, s{lo}, {add}"); a(f"s_addc_u32 s{d+1}, s{hi_}, 0")
        a(f"s_mov_b32 s{d+2}, {size}"); a(f"s_mov_b32 s{d+3}, 0x20000")
    cur = [pol]
    def ring(j): j %= NB; return f"v[{RING+4*j}:{RING+4*j+3}]"
    def sload(j):
        s, b = ("s[12:15]", "s55") if j >= NB else ("s[8:11]", "s54")
        j %= NB
        a(f"buffer_load_dwordx4 {ring(j)}, v{2+(j>>2)}, {s}, {b} offen offset:{(j&3)*1024} {cur[0]}")
    def masks(t, src, lane):
        for r in range(4):
            a(f"v_and_b32_dpp v{18+4*(t&1)+r}, {src}, v{14+r} row_newbcast:{lane} row_mask:0xf bank_mask:0xf")
    def mop(t): return f"v[{18+4*(t&1)}:{21+4*(t&1)}]"
    def mfma(d, x, y, first): a(f"v_mfma_f32_16x16x32_bf16 v[{d}:{d+3}], {x}, {y}, {'0' if first else 'v[%d:%d]' % (d, d+3)}")
    def bitrev(t): return ((t & 1) << 3) | ((t & 2) << 1) | ((t & 4) >> 1) | ((t & 8) >> 3)
    def check(regs, ok):
        r = list(regs)
        a(f"v_max3_u32 v48, v{r[0]}, v{r[1]}, v{r[2]}"); r = r[3:]
        while len(r) >= 2:
            a(f"v_max3_u32 v48, v48, v{r[0]}, v{r[1]}"); r = r[2:]
        if r: a(f"v_max_u32 v48, v48, v{r[0]}")
        a("v_cmp_eq_u32 vcc, -1, v48")
        a(f"s_cbranch_vccz {ok}")
    def poll2(label, loads, nreg, bases, use, pre=None):
        n = len(loads(bases[0]))
        a(f"s_mov_b32 s88, {SPIN}")
        for l in loads(bases[0]): a(l)
        if stag: a(f"s_sleep {stag}")
        if pre: pre()
        a(f"{label}:")
        for l in loads(bases[1]): a(l)
        a(f"s_waitcnt vmcnt({n})")
        check(range(bases[0], bases[0] + nreg), f"{label}_A")
        for l in loads(bases[0]): a(l)
        a(f"s_waitcnt vmcnt({n})")
        check(range(bases[1], bases[1] + nreg), f"{label}_B")
        a("s_sub_u32 s88, s88, 1")
        a(f"s_cbranch_scc0 {label}")
        a(f"{label}_B:")
        use(bases[1])
        a(f"s_branch {label}_done")
        a(f"{label}_A:")
        use(bases[0])
        a(f"{label}_done:")
    def trread(dst, addr, off): a(f"ds_read_b64_tr_b16 v[{dst}:{dst+1}], {addr} offset:{off}")

    a(f"{NAME}:")
    a("s_cmp_ge_u32 s2, 256"); a("s_cbranch_scc1 L_end")
    a("s_memrealtime s[18:19]")
    a("s_load_dwordx16 s[64:79], s[0:1], 0")
    a("s_load_dwordx8 s[80:87], s[0:1], 64")
    if cpf:
        C("pull the kernel's own code towards this die's L2, one KiB per wave")
        a("s_getpc_b64 s[60:61]"); a("s_and_b32 s60, s60, 0xffffff00")
        a("s_lshr_b32 s58, s2, 3"); a("s_lshl_b32 s58, s58, 8"); a("v_add_u32 v60, s58, v0"); a("v_lshlrev_b32 v60, 4, v60")
        a(f"v_cmp_gt_u32 vcc, {cpf*1024}, v60"); a("s_and_saveexec_b64 s[62:63], vcc"); a("s_cbranch_execz L_nocpf")
        a("global_load_dwordx4 v[76:79], v60, s[60:61]")
        a("L_nocpf:")
        a("s_mov_b64 exec, -1")
    C("s3 wave, s4 batch row, s5 head; v1 lane, v74 lane>>4 (g), v75 lane&15 (i)")
    a("v_lshrrev_b32 v1, 6, v0")
    a("v_readfirstlane_b32 s3, v1")
    a("v_and_b32 v1, 63, v0")
    a("s_lshr_b32 s4, s2, 5"); a("s_and_b32 s5, s2, 31")
    a("v_lshrrev_b32 v74, 4, v1"); a("v_and_b32 v75, 15, v1")
    a("v_lshlrev_b32 v48, 4, v1")
    a("s_lshl_b32 s58, s3, 12"); a("v_add_u32 v2, s58, v48")
    for k in range(1, 8): a(f"v_add_u32 v{2+k}, {k*16384}, v2")
    C("the eight workgroups of a head walk its rows of wq / wo from different starting points: v72 = (i + 2b) & 15")
    a(f"s_lshl_b32 s97, s4, 1") if rot else a("s_mov_b32 s97, 0")
    a("v_add_u32 v72, s97, v75"); a("v_and_b32 v72, 15, v72")
    a("s_lshl_b32 s58, s3, 8"); a("v_lshlrev_b32 v49, 3, v72"); a("v_lshl_add_u32 v49, v74, 1, v49"); a("v_add_u32 v49, s58, v49")
    a("v_lshlrev_b32 v67, 4, v72"); a("v_lshl_add_u32 v65, v74, 2, v67")
    a("v_lshrrev_b32 v51, 1, v74")
    C("wq lane offset v58 = (128w+g)*8192 + i*16 ; wo lane offset v59 = g*1024 + w*256 + i*16")
    a("s_lshl_b32 s58, s3, 20"); a("v_lshlrev_b32 v58, 13, v74"); a("v_lshl_add_u32 v58, v75, 4, v58"); a("v_add_u32 v58, s58, v58")
    a("s_lshl_b32 s58, s3, 8"); a("v_lshlrev_b32 v59, 10, v74"); a("v_lshl_add_u32 v59, v75, 4, v59"); a("v_add_u32 v59, s58, v59")
    a("s_lshl_b32 s57, s4, 10"); a("s_lshl_b32 s58, s5, 8"); a("s_lshl_b32 s59, s2, 20")
    a("s_sub_u32 s92, 0x400000, s58")
    a("s_mov_b32 s54, 0")
    a("s_waitcnt lgkmcnt(0)")
    if stamps: a("v_mov_b32 v73, 0"); a("v_writelane_b32 v73, s18, 0")
    kiss = 0
    def kload():
        nonlocal kiss
        sload(kiss - kbase); vm.append(f"k{kiss}"); kiss += 1
    kbase = 0
    srd(8, 66, 67, 0x100000, "s59")
    for j in range(k0): kload()
    srd(28, 64, 65, 8192)
    a("buffer_load_dwordx4 v[52:55], v48, s[28:31], s57 offen"); vm.append("x")
    a("buffer_load_ushort v56, v49, s[28:31], s57 offen"); vm.append("xc0")
    a("buffer_load_ushort v57, v49, s[28:31], s57 offen offset:128"); vm.append("xc1")
    srd(20, 70, 71, "s92", "s58")
    wiss = 0
    def wqload():
        nonlocal wiss
        a(f"s_add_u32 s58, s97, {wiss & 15}"); a("s_and_b32 s58, s58, 15"); a("s_lshl_b32 s58, s58, 15")
        if wiss >= 16: a("s_or_b32 s58, s58, 0x80000")
        a(f"buffer_load_dwordx4 a[{4*wiss}:{4*wiss+3}], v58, s[20:23], s58 offen {wpol}"); vm.append(f"wq{wiss}"); wiss += 1
    for j in range(n1):
        if j: kload()
        for x in range(nw): wqload()
    a("s_add_u32 s16, s68, s59"); a("s_addc_u32 s17, s69, 0")
    a("s_mov_b32 s12, s8"); a("s_mov_b32 s13, s9"); a("s_mov_b32 s14, 0x100000"); a("s_mov_b32 s15, 0x20000")
    a("s_lshl_b32 s58, s5, 17"); srd(24, 72, 73, 0x20000, "s58")
    def setup_late():
        a("v_lshrrev_b32 v77, 1, v74"); a("v_lshlrev_b32 v78, 4, v1")
        srd(32, 86, 87, WS_SIZE); srd(36, 82, 83, 8192)
        srd(40, 76, 77, 512*3584); srd(44, 78, 79, 512*3584)
        C("role s7 / index s89: 1 gate+up tiles (wg<56), 2 reducer (64<=wg<128), 3 output slice (wg>=224), 0 none")
        a("s_and_b32 s58, s2, 7"); a("s_lshr_b32 s92, s2, 3")
        a("s_mul_i32 s89, s58, 7"); a("s_add_u32 s89, s89, s92")
        a("s_cmp_lt_u32 s2, 56"); a("s_cselect_b32 s7, 1, 0")
        a("s_lshl_b32 s58, s58, 2"); a("s_add_u32 s58, s58, s92"); a("s_sub_u32 s58, s58, 28")
        a("s_cmp_ge_u32 s2, 224"); a("s_cselect_b32 s89, s58, s89"); a("s_cselect_b32 s7, 3, s7")
        a("s_sub_u32 s58, s2, 64"); a("s_cmp_lt_u32 s58, 64"); a("s_cselect_b32 s89, s58, s89"); a("s_cselect_b32 s7, 2, s7")
        a("s_lshl_b32 s6, s3, 2"); a("s_add_u32 s6, s6, s7")
        C("P store offset v68 = ((4w + (i>>2))*4 + (b>>1))*8192 + (2h + (b&1))*128 + (i&3)*32 + g*16")
        a("v_lshrrev_b32 v68, 2, v75"); a("v_lshlrev_b32 v68, 15, v68"); a("v_lshl_add_u32 v68, v74, 4, v68")
        a("v_and_b32 v60, 3, v75"); a("v_lshl_add_u32 v68, v60, 5, v68")
        a("s_lshl_b32 s58, s3, 17"); a("s_lshr_b32 s92, s4, 1"); a("s_lshl_b32 s92, s92, 13"); a("s_add_u32 s58, s58, s92")
        a("s_lshl_b32 s92, s5, 8"); a("s_add_u32 s58, s58, s92")
        a("s_and_b32 s92, s4, 1"); a("s_lshl_b32 s92, s92, 7"); a("s_add_u32 s58, s58, s92"); a("v_add_u32 v68, s58, v68")
        C("H store offset v69 = H + rho*128 + i*8 + (g>>1)*4 ; x offset v76 = (2(rho&3) + (i>>3))*1024 + (rho>>2)*64 + (i&7)*8 + (g>>1)*4")
        a("v_lshlrev_b32 v69, 3, v75"); a("v_lshl_add_u32 v69, v77, 2, v69")
        a("v_lshrrev_b32 v76, 3, v75"); a("v_lshlrev_b32 v76, 10, v76"); a("v_and_b32 v60, 7, v75"); a("v_lshl_add_u32 v76, v60, 3, v76")
        a("v_lshl_add_u32 v76, v77, 2, v76")
        a("s_and_b32 s58, s89, 3"); a("s_lshl_b32 s58, s58, 11"); a("s_lshr_b32 s92, s89, 2"); a("s_lshl_b32 s92, s92, 6"); a("s_add_u32 s58, s58, s92")
        a("v_add_u32 v76, s58, v76")
        a("s_lshl_b32 s58, s89, 7"); a(f"s_add_u32 s58, s58, {WS_H}"); a("v_add_u32 v69, s58, v69")
        a("buffer_load_dword v71, v76, s[28:31], 0 offen"); vm.append("xr")
        C("G store offset v70 = G + (4*s89 + w)*128 + i*16 + g*8")
        a("v_lshlrev_b32 v70, 4, v75"); a("v_lshl_add_u32 v70, v74, 3, v70")
        a("s_lshl_b32 s58, s89, 2"); a("s_add_u32 s58, s58, s3"); a("s_lshl_b32 s58, s58, 7"); a(f"s_add_u32 s58, s58, {WS_G}"); a("v_add_u32 v70, s58, v70")
        C("wave 0 of the reducers marks every hand-off line empty (all ones): own P lines, own H line, four G lines")
        a("s_cmp_eq_u32 s6, 2"); a("s_cbranch_scc0 L_noclr")
        for r in range(4): a(f"v_mov_b32 v{60+r}, -1")
        a("s_lshl_b32 s58, s89, 13"); a("s_add_u32 s92, s58, 4096")
        for u in range(8): a(f"buffer_store_dwordx4 v[60:63], v78, s[32:35], {'s58' if u < 4 else 's92'} offen offset:{(u&3)*1024} sc1")
        a("s_lshl_b32 s58, s89, 9"); a(f"s_add_u32 s58, s58, {WS_G}"); a("s_mov_b32 exec_hi, 0")
        a("buffer_store_dwordx4 v[60:63], v78, s[32:35], s58 offen sc1")
        a("s_lshl_b32 s58, s89, 7"); a(f"s_add_u32 s58, s58, {WS_H}"); a("s_mov_b32 exec_lo, 0xff")
        a("buffer_store_dwordx4 v[60:63], v78, s[32:35], s58 offen sc1")
        a("s_mov_b64 exec, -1")
        a("L_noclr:")
    if not late:
        srd(32, 86, 87, WS_SIZE); srd(36, 82, 83, 8192)
        srd(40, 76, 77, 512*3584); srd(44, 78, 79, 512*3584)
        C("role s7 / index s89: 1 gate+up tiles (wg<56), 2 reducer (64<=wg<128), 3 output slice (wg>=224), 0 none")
        a("s_and_b32 s58, s2, 7"); a("s_lshr_b32 s92, s2, 3")
        a("s_mul_i32 s89, s58, 7"); a("s_add_u32 s89, s89, s92")
        a("s_cmp_lt_u32 s2, 56"); a("s_cselect_b32 s7, 1, 0")
        a("s_lshl_b32 s58, s58, 2"); a("s_add_u32 s58, s58, s92"); a("s_sub_u32 s58, s58, 28")
        a("s_cmp_ge_u32 s2, 224"); a("s_cselect_b32 s89, s58, s89"); a("s_cselect_b32 s7, 3, s7")
        a("s_sub_u32 s58, s2, 64"); a("s_cmp_lt_u32 s58, 64"); a("s_cselect_b32 s89, s58, s89"); a("s_cselect_b32 s7, 2, s7")
        a("s_lshl_b32 s6, s3, 2"); a("s_add_u32 s6, s6, s7")
        C("P store offset v68 = ((4w + (i>>2))*4 + (b>>1))*8192 + (2h + (b&1))*128 + (i&3)*32 + g*16")
        a("v_lshrrev_b32 v68, 2, v75"); a("v_lshlrev_b32 v68, 15, v68"); a("v_lshl_add_u32 v68, v74, 4, v68")
        a("v_and_b32 v60, 3, v75"); a("v_lshl_add_u32 v68, v60, 5, v68")
        a("s_lshl_b32 s58, s3, 17"); a("s_lshr_b32 s92, s4, 1"); a("s_lshl_b32 s92, s92, 13"); a("s_add_u32 s58, s58, s92")
        a("s_lshl_b32 s92, s5, 8"); a("s_add_u32 s58, s58, s92")
        a("s_and_b32 s92, s4, 1"); a("s_lshl_b32 s92, s92, 7"); a("s_add_u32 s58, s58, s92"); a("v_add_u32 v68, s58, v68")
        C("H store offset v69 = H + rho*128 + i*8 + (g>>1)*4 ; x offset v50 = (2(rho&3) + (i>>3))*1024 + (rho>>2)*64 + (i&7)*8 + (g>>1)*4")
        a("v_lshlrev_b32 v69, 3, v75"); a("v_lshl_add_u32 v69, v51, 2, v69")
        a("v_lshrrev_b32 v50, 3, v75"); a("v_lshlrev_b32 v50, 10, v50"); a("v_and_b32 v60, 7, v75"); a("v_lshl_add_u32 v50, v60, 3, v50")
        a("v_lshl_add_u32 v50, v51, 2, v50")
        a("s_and_b32 s58, s89, 3"); a("s_lshl_b32 s58, s58, 11"); a("s_lshr_b32 s92, s89, 2"); a("s_lshl_b32 s92, s92, 6"); a("s_add_u32 s58, s58, s92")
        a("v_add_u32 v50, s58, v50")
        a("s_lshl_b32 s58, s89, 7"); a(f"s_add_u32 s58, s58, {WS_H}"); a("v_add_u32 v69, s58, v69")
        a("buffer_load_dword v71, v50, s[28:31], 0 offen"); vm.append("xr")
        C("G store offset v70 = G + (4*s89 + w)*128 + i*16 + g*8")
        a("v_lshlrev_b32 v70, 4, v75"); a("v_lshl_add_u32 v70, v74, 3, v70")
        a("s_lshl_b32 s58, s89, 2"); a("s_add_u32 s58, s58, s3"); a("s_lshl_b32 s58, s58, 7"); a(f"s_add_u32 s58, s58, {WS_G}"); a("v_add_u32 v70, s58, v70")
        C("the reducers mark every hand-off line empty (all ones): own P lines, own H line, four G lines")
        a("s_cmp_eq_u32 s7, 2"); a("s_cbranch_scc0 L_noclr")
        for r in range(4): a(f"v_mov_b32 v{60+r}, -1")
        a("s_lshl_b32 s58, s89, 13"); a("s_lshl_b32 s92, s3, 11"); a("s_add_u32 s58, s58, s92")
        a("buffer_store_dwordx4 v[60:63], v48, s[32:35], s58 offen sc1")
        a("buffer_store_dwordx4 v[60:63], v48, s[32:35], s58 offen offset:1024 sc1")
        a("s_mov_b64 exec, 0x00ff00ff")
        a("buffer_store_dwordx2 v[60:61], v70, s[32:35], 0 offen sc1")
        a("s_cmp_eq_u32 s3, 0"); a("s_cbranch_scc0 L_noclr")
        a("s_mov_b32 exec_lo, 0xffff"); a("s_mov_b32 exec_hi, 0xffff")
        a("buffer_store_dword v60, v69, s[32:35], 0 offen sc1")
        a("L_noclr:")
        a("s_mov_b64 exec, -1")
    for j in range(nA): kload()
    stamp(1)
    a("s_mov_b32 s60, 0xcccccccc"); a("s_mov_b32 s61, 0xcccccccc"); a("s_mov_b32 s62, 0xaaaaaaaa"); a("s_mov_b32 s63, 0xaaaaaaaa")
    a(f"s_mov_b32 s90, {f32(128 ** -0.5)}"); a(f"s_mov_b32 s91, {f32(1.4426950408889634)}")
    C("selector masks v14..17: lane (g,m): m<8 and m>>1==r -> m&1 ? 0xffff0000 : 0xffff")
    a("v_and_b32 v60, 1, v75"); a("v_lshlrev_b32 v60, 4, v60"); a("v_mov_b32 v61, 0xffff"); a("v_lshlrev_b32 v60, v60, v61")
    a("v_lshrrev_b32 v61, 1, v75")
    for r in range(4):
        a(f"v_cmp_eq_u32 vcc, {r}, v61"); a(f"v_cndmask_b32 v{14+r}, 0, v60, vcc")
    C("---- LayerNorm of x[b]")
    vwait("x")
    for j in range(nB): kload()
    for k in range(4):
        a(f"v_lshlrev_b32 v{76+2*k}, 16, v{52+k}"); a(f"v_and_b32 v{77+2*k}, 0xffff0000, v{52+k}")
    a("v_add_f32 v84, v76, v77")
    for k in range(2, 8): a(f"v_add_f32 v84, v84, v{76+k}")
    allred("v_add_f32", "v84", "v85")
    a(f"v_mul_f32 v84, {f32(1/512)}, v84")
    for k in range(8): a(f"v_sub_f32 v{76+k}, v{76+k}, v84")
    a("v_mul_f32 v86, v76, v76")
    for k in range(1, 8): a(f"v_fmac_f32 v86, v{76+k}, v{76+k}")
    allred("v_add_f32", "v86", "v85")
    a(f"v_mul_f32 v86, {f32(1/512)}, v86")
    bf16r("v84"); bf16r("v86")
    a(f"v_add_f32 v86, {f32(1e-5)}, v86"); bf16r("v86")
    a("v_sqrt_f32 v86, v86"); bf16r("v86"); a("v_rcp_f32 v86, v86")
    vwait("xc1")
    for k in range(2):
        a(f"v_lshlrev_b32 v{56+k}, 16, v{56+k}"); a(f"v_sub_f32 v{56+k}, v{56+k}, v84"); bf16r(f"v{56+k}")
        a(f"v_mul_f32 v{56+k}, v{56+k}, v86"); a(f"v_cvt_pk_bf16_f32 v{66+k}, v{56+k}, v{56+k}")
    stamp(2)
    C("---- q = xn @ wq[:, head], 128 rows per wave")
    masks(0, "v66", 0)
    for t in range(32):
        vwait(f"wq{t}")
        mfma(28, mop(t), f"a[{4*t}:{4*t+3}]", t == 0)
        if wiss < 32: wqload()
        if int((t + 1) / kq) > int(t / kq) and kiss < NB: kload()
        if t < 31: masks(t + 1, "v66" if t + 1 < 16 else "v67", (t + 1) & 15)
    for j in range(nbar):
        if kiss < NB: kload()
    a("v_lshlrev_b32 v27, 5, v75"); a("v_lshl_add_u32 v26, v74, 4, v27"); a("s_lshl_b32 s58, s3, 9"); a("v_add_u32 v26, s58, v26")
    a("s_mov_b32 exec_hi, 0")
    a(f"ds_write_b128 v26, v[28:31] offset:{L_QP}")
    a("s_mov_b64 exec, -1")
    a("s_waitcnt lgkmcnt(0)"); a("s_barrier")
    for w in range(4):
        for hh in range(2): a(f"ds_read_b128 v[{76+8*w+4*hh}:{79+8*w+4*hh}], v27 offset:{L_QP+512*w+16*hh}")
    a("s_waitcnt lgkmcnt(0)")
    for k in range(8):
        a(f"v_add_f32 v{76+k}, v{76+k}, v{84+k}"); a(f"v_add_f32 v{92+k}, v{92+k}, v{100+k}")
    for k in range(8): a(f"v_add_f32 v{76+k}, v{76+k}, v{92+k}")
    for k in range(4): a(f"v_cvt_pk_bf16_f32 v{10+k}, v{76+2*k}, v{77+2*k}")
    a("v_mov_b32 v27, v65")
    a("v_mov_b32 v64, 0xff800000"); a("v_mov_b32 v65, 0")
    stamp(3)

    def kconsume(i):
        t = i & 15
        x = f"v{48 + (t & 1)}"
        base = RING + 4 * i
        a(f"v_dot2_f32_bf16 {x}, v{base}, v10, 0")
        for r in range(1, 4): a(f"v_dot2_f32_bf16 {x}, v{base+r}, v{10+r}, {x}")
        if t & 1:
            d = f"v{50 + ((t >> 1) & 1)}"
            a(f"v_add_f32_dpp {d}, v48, v48 row_ror:8 row_mask:0xf bank_mask:0x3")
            a(f"v_add_f32_dpp {d}, v49, v49 row_ror:8 row_mask:0xf bank_mask:0xc")
        if t & 3 == 3:
            d = f"v{52 + ((t >> 2) & 1)}"
            a(f"v_add_f32_dpp {d}, v50, v50 row_half_mirror row_mask:0xf bank_mask:0x5")
            a(f"v_add_f32_dpp {d}, v51, v51 row_half_mirror row_mask:0xf bank_mask:0xa")
        if t & 7 == 7:
            d = f"v{54 + ((t >> 3) & 1)}"
            a("v_add_f32_dpp v52, v52, v52 quad_perm:[2,3,0,1] row_mask:0xf bank_mask:0xf")
            a("v_add_f32_dpp v53, v53, v53 quad_perm:[2,3,0,1] row_mask:0xf bank_mask:0xf")
            a(f"v_cndmask_b32 {d}, v52, v53, s[60:61]")
        if t == 15:
            s = f"v{46 + (i >> 4)}"
            a("v_add_f32_dpp v54, v54, v54 quad_perm:[1,0,3,2] row_mask:0xf bank_mask:0xf")
            a("v_add_f32_dpp v55, v55, v55 quad_perm:[1,0,3,2] row_mask:0xf bank_mask:0xf")
            a(f"v_cndmask_b32 {s}, v54, v55, s[62:63]")
            bf16r(s); a(f"v_mul_f32 {s}, s90, {s}"); bf16r(s)
            a(f"v_max_f32 v64, v64, {s}")
    C("---- lap 0: the keys that arrived while q was formed")
    a(f"s_mov_b32 s55, {NB*4096}")
    left = NB + D - kiss
    early = list(early)
    while early and early[-1] >= NB - (left - len(early)): early.pop()
    sched = early + list(range(NB - (left - len(early)), NB))
    assert len(set(sched)) == left, (sched, left)
    for i in range(NB):
        vwait(f"k{i}")
        if i in sched:
            assert kiss - NB < i
            kload()
        kconsume(i)
    stamp(4)
    C("---- the next laps also bring in this head's rows of wo")
    wo = 0
    if wov: nwl = 0; wo = 32
    for lap in range(1, nwl + 1):
        a("s_mov_b32 s54, s55"); a(f"s_add_u32 s55, s55, {NB*4096}")
        for k in range(2 * lap): a(f"v_mov_b32 v{46-2*lap+k}, v{48-2*lap+k}")
        kbase = NB * lap
        if lap == 1:
            for j in range((D1 or D) - D): kload()
        for i in range(NB):
            vwait(f"k{NB*lap+i}")
            if kiss < (nwl + 1) * NB + D: kload()
            while wo < 32 and (i % nwl == 0 if wend == 32 else wo * wend < (i + 1) * 32) and (wend < 32 or wo * nwl <= NB * (lap - 1) + i):
                a(f"s_add_u32 s58, s97, {wo & 15}"); a("s_and_b32 s58, s58, 15"); a("s_lshl_b32 s58, s58, 12")
                if wo >= 16: a("s_or_b32 s58, s58, 0x10000")
                a(f"buffer_load_dwordx4 a[{4*wo}:{4*wo+3}], v59, s[24:27], s58 offen {wpol}"); vm.append(f"wo{wo}"); wo += 1
            kconsume(i)
            if late and lap == 1 and i == 4: setup_late()
    assert wo == 32

    leads = ([D - 1] if ahead else []) + [D, D + hi]
    def decide(name, k):
        a("s_waitcnt lgkmcnt(0)")
        a("s_sub_u32 s58, s52, s48"); a("s_lshl_b32 s58, s58, 8"); a("s_sub_u32 s58, s58, s49"); a("s_add_u32 s49, s49, s57")
        a("s_sub_u32 s19, s19, 1"); a("s_cmp_ge_i32 s19, 0"); a("s_cselect_b32 s58, 1, s58")
        a("s_cmp_gt_i32 s58, 0"); a(f"s_cbranch_scc1 {name}_{k}_{D+hi}")
        if ahead:
            a("s_cmp_lt_i32 s58, s21"); a(f"s_cbranch_scc1 {name}_{k}_{D-1}")
    def segment(name, k, DD, consume):
        tag = f"{name}_{k}_{DD}"; i0 = 16 * k
        a(f"{tag}:")
        for j in range(leads[0], DD):
            a(f"s_cmp_gt_u32 s51, {j}"); a(f"s_cbranch_scc1 {tag}_i{j}")
            sload(i0 + j)
            a(f"{tag}_i{j}:")
        nskip = leads[-1] - DD
        for i in range(i0, i0 + 16):
            a(f"s_waitcnt vmcnt({DD - 1})")
            skip = i - i0 < nskip
            if skip: a(f"s_cmp_gt_u32 s51, {DD + i - i0}"); a(f"s_cbranch_scc1 {tag}_s{i}")
            sload(i + DD)
            if skip: a(f"{tag}_s{i}:")
            if i - i0 == nskip: a(f"s_mov_b32 s51, {DD}")
            if i - i0 == 15: a("s_memrealtime s[52:53]")
            consume(i)
    def cal_events(base):
        lo, up = (nwl + 1, 8) if base == 0 else (8, 16)
        if lo <= cal < up:
            a("s_waitcnt lgkmcnt(0)"); a(f"s_cmp_eq_u32 s56, {cal-base}"); a("s_cselect_b32 s88, s52, s88")
        if lo <= cal + 2 < up:
            a("s_lshl_b32 s58, s6, 4"); a("s_add_u32 s58, s58, s56")
            a(f"s_cmp_eq_u32 s58, {32+cal+2-base}"); a("s_cbranch_scc0 L_norep")
            a("s_waitcnt lgkmcnt(0)")
            a("s_sub_u32 s58, s52, s88"); a("s_min_u32 s58, s58, 0x7fff"); a("s_max_u32 s58, s58, 1"); a("s_pack_ll_b32_b16 s58, s52, s58")
            a("v_mov_b32 v61, s58"); a("s_lshl_b32 s58, s89, 2"); a("v_mov_b32 v60, s58"); a("s_mov_b64 exec, 1")
            a("global_store_dword v60, v61, s[84:85] sc1")
            a("s_mov_b64 exec, -1")
            a("L_norep:")
        if lo <= cal + 2 < up and pre:
            a("s_and_b32 s58, s7, 1"); a("s_lshl_b32 s58, s58, 4"); a("s_add_u32 s58, s58, s56")
            a(f"s_cmp_eq_u32 s58, {16+cal+2-base}"); a(f"s_cselect_b32 s19, {pre}, s19")
        x = "K" if base == 0 else "V"
        a("s_cmp_lg_u32 s50, 0"); a(f"s_cbranch_scc0 L_nocal{x}")
        if cal + 3 - base > max(lo - base, 0):
            a(f"s_cmp_ge_u32 s56, {cal+3-base}"); a(f"s_cbranch_scc0 L_nocal{x}")
        a("v_cmp_eq_u32 vcc, 0, v72"); a(f"s_cbranch_vccz L_cal{x}")
        a("v_lshlrev_b32 v60, 2, v1"); a("global_load_dword v72, v60, s[84:85] sc1")
        a(f"s_branch L_nocal{x}")
        a(f"L_cal{x}:")
        a("s_mov_b32 s50, 0")
        if ctl:
            a("s_waitcnt lgkmcnt(0)")
            a("s_mov_b32 s48, s52")
            a("v_bfe_u32 v60, v72, 16, 15"); a("v_subrev_u32 v61, s52, v72"); a("v_bfe_i32 v61, v61, 0, 16")
            allred("v_add_u32", "v60", "v62"); allred("v_add_u32", "v61", "v62")
            a("v_readfirstlane_b32 s57, v60"); a("v_readfirstlane_b32 s49, v61")
            if eps > 0: a(f"s_lshr_b32 s58, s57, {eps}"); a("s_add_u32 s57, s57, s58")
            if eps < 0: a(f"s_lshr_b32 s58, s57, {-eps}"); a("s_sub_u32 s57, s57, s58")
            a(f"s_add_u32 s58, s56, {base-cal-2}"); a("s_lshl_b32 s58, s58, 1"); a("s_mul_i32 s58, s58, s57")
            a("s_lshl_b32 s49, s49, 2"); a("s_add_u32 s49, s49, s58")
            a(f"s_mov_b32 s58, {slack*256}")
            a("s_cmp_eq_u32 s7, 1"); a(f"s_cselect_b32 s58, {(slack-head[0])*256}, s58")
            a("s_cmp_eq_u32 s7, 3"); a(f"s_cselect_b32 s58, {(slack-head[1])*256}, s58")
            a("s_add_u32 s49, s49, s58")
            if ahead: a(f"s_mov_b32 s21, {-ahead*256}")
        a(f"L_nocal{x}:")
    def laploop(name, head_code, consume, fin=0):
        others = [x for x in leads if x != D]
        a(".p2align 3")
        a(f"{name}:")
        head_code()
        if wov and fin: a("s_cmp_eq_u32 s56, s96"); a(f"s_cbranch_scc1 {name}_wo")
        decide(name, 0)
        segment(name, 0, D, consume)
        a(f"{name}_mid:")
        if fin: a("s_cmp_eq_u32 s56, 7"); a(f"s_cbranch_scc1 {name}_f")
        decide(name, 1)
        segment(name, 1, D, consume)
        a(f"{name}_nxt:")
        a("s_add_u32 s56, s56, 1"); a("s_cmp_lt_u32 s56, 8"); a(f"s_cbranch_scc1 {name}")
        a(f"s_branch {name}_end")
        for x in others:
            segment(name, 0, x, consume); a(f"s_branch {name}_mid")
            segment(name, 1, x, consume); a(f"s_branch {name}_nxt")
        if wov and fin:
            DD = D + wod
            a(f"{name}_wo:")
            a("s_add_u32 s49, s49, s57"); a("s_add_u32 s49, s49, s57")
            for j in range(leads[0], DD):
                a(f"s_cmp_gt_u32 s51, {j}"); a(f"s_cbranch_scc1 {name}_wi{j}")
                sload(j)
                a(f"{name}_wi{j}:")
            nskip = leads[-1] - DD
            for i in range(NB):
                a(f"s_waitcnt vmcnt({DD - 1 + min(i, DD)})")
                skip = i < nskip
                if skip: a(f"s_cmp_gt_u32 s51, {DD + i}"); a(f"s_cbranch_scc1 {name}_ws{i}")
                sload(i + DD)
                if skip: a(f"{name}_ws{i}:")
                if i == nskip: a(f"s_mov_b32 s51, {DD}")
                a(f"s_mov_b32 s58, {i*4096}")
                a(f"buffer_load_dwordx4 a[{4*i}:{4*i+3}], v59, s[24:27], s58 offen {wpol}")
                if i == NB - 1: a("s_memrealtime s[52:53]")
                consume(i)
            a(f"s_branch {name}_nxt")
        if fin:
            a(f"{name}_f:")
            for j in range(leads[0], leads[-1]):
                a(f"s_cmp_gt_u32 s51, {j}"); a(f"s_cbranch_scc1 {name}_f{j}")
                sload(16 + j)
                a(f"{name}_f{j}:")
            nx = 16 + leads[-1]
            while nx < min(16 + fin, NB): sload(nx); nx += 1
            if prescale:
                C("every wave has published its maximum and sum: this wave's weight v60 = exp2(m_w - m) / L")
                a("v_mov_b32 v48, 0"); a("s_waitcnt lgkmcnt(0)"); a("s_barrier")
                a(f"ds_read_b128 v[76:79], v48 offset:{L_ML}"); a(f"ds_read_b128 v[80:83], v48 offset:{L_ML+16}")
                a("s_waitcnt lgkmcnt(0)")
                a("v_min_f32 v48, v76, v78"); a("v_min3_f32 v48, v48, v80, v82")
                for w in range(4): a(f"v_sub_f32 v{76+2*w}, v48, v{76+2*w}")
                a("v_sub_f32 v60, v48, v64")
                for w in range(4): a(f"v_exp_f32 v{76+2*w}, v{76+2*w}")
                a("v_exp_f32 v60, v60")
                a("v_mul_f32 v49, v76, v77")
                for w in range(1, 4): a(f"v_fmac_f32 v49, v{76+2*w}, v{77+2*w}")
                a("v_rcp_f32 v49, v49")
                a("v_mul_f32 v60, v60, v49")
                if slide: a("v_accvgpr_mov_b32 a128, a0"); a("v_accvgpr_mov_b32 a129, a1")
            for i in range(16, NB):
                a(f"s_waitcnt vmcnt({nx - 1 - i})")
                if nx < NB: sload(nx); nx += 1
                consume(i)
        a(f"{name}_end:")
    if wov:
        a(f"s_mul_i32 s96, s5, {wov}"); a("s_lshr_b32 s96, s96, 5")
    C("s48 time base, s49 deadline (1/256 ticks), s50 reports seen, s51 depth in use, s[52:53] clock, s57 pace, s19 fixed deep segments")
    a(f"s_mov_b32 s56, {nwl+1}")
    a("s_memrealtime s[52:53]"); a(f"s_mov_b32 s51, {D}"); a("s_mov_b32 s50, 99"); a("s_mov_b32 s57, 0")
    a("s_mov_b32 s48, s18"); a("s_mov_b32 s49, 0x7fffffff"); a("s_mov_b32 s88, 0"); a(f"s_mov_b32 s21, {0 if initlow else 0x80000000}"); a("v_mov_b32 v72, 0")
    a("s_cmp_eq_u32 s7, 1"); a(f"s_cselect_b32 s19, {hiu[0]-4}, 0"); a("s_cmp_eq_u32 s7, 3"); a(f"s_cselect_b32 s19, {hiu[1]-4}, s19")
    def khead():
        lapstamp(16)
        a("s_mov_b32 s54, s55"); a(f"s_add_u32 s55, s55, {NB*4096}")
        a("s_cmp_eq_u32 s56, 7")
        a("s_cselect_b32 s12, s16, s12"); a("s_cselect_b32 s13, s17, s13"); a("s_cselect_b32 s55, 0, s55")
        for k in range(14): a(f"v_mov_b32 v{32+k}, v{34+k}")
        cal_events(0)
    laploop("L_k", khead, kconsume)
    stamp(5)
    C("---- maximum of this wave's scores, in log2 units, negated")
    allred("v_max_f32", "v64", "v48")
    a("v_mul_f32 v64, s91, v64"); a("v_sub_f32 v64, 0, v64")
    a("s_mov_b32 s8, s12"); a("s_mov_b32 s9, s13"); a("s_mov_b32 s56, 0")
    for r in range(4): a(f"v_mov_b32 v{28+r}, 0")
    def vhead():
        lapstamp(24)
        a("s_mov_b32 s54, s55"); a(f"s_add_u32 s55, s55, {NB*4096}")
        for k in range(2):
            a(f"v_fma_f32 v{56+k}, v{32+k}, s91, v64"); a(f"v_exp_f32 v{56+k}, v{56+k}")
            a(f"v_add_f32 v65, v65, v{56+k}"); a(f"v_cvt_pk_bf16_f32 v{66+k}, v{56+k}, v{56+k}")
        for k in range(14): a(f"v_mov_b32 v{32+k}, v{34+k}")
        masks(0, "v66", 0)
        cal_events(8)
        if touch:
            C("first touch of the pages the last stages use, so that their translations are at hand (values unused)")
            a(f"s_cmp_eq_u32 s56, {touch}"); a("s_cbranch_scc0 L_notouch")
            a("v_mov_b32 v60, 0"); a("s_mov_b64 exec, 1")
            a(f"s_mov_b32 s58, {WS_G+0x7f00}")
            a("buffer_load_dword v76, v60, s[32:35], s58 offen")
            a("s_and_b32 s58, s7, 1"); a("s_cbranch_scc0 L_notouch1")
            a("buffer_load_dword v76, v60, s[36:39], 0 offen")
            a("buffer_load_dword v76, v60, s[40:43], 0 offen"); a("buffer_load_dword v76, v60, s[44:47], 0 offen")
            a("global_load_dword v76, v60, s[80:81]")
            a("L_notouch1:")
            a("s_mov_b64 exec, -1")
            a("L_notouch:")
        if cpf2:
            a(f"s_cmp_eq_u32 s56, {cpf2}"); a("s_cbranch_scc0 L_nocpf2")
            a("s_getpc_b64 s[60:61]")
            a("L_pc2:")
            a("s_add_u32 s60, s60, L_v_end-L_pc2"); a("s_addc_u32 s61, s61, 0"); a("s_and_b32 s60, s60, 0xffffff80")
            a("s_lshr_b32 s58, s2, 3"); a("s_lshl_b32 s58, s58, 8"); a("v_add_u32 v60, s58, v0"); a("v_lshlrev_b32 v60, 4, v60")
            a("v_cmp_gt_u32 vcc, L_end-L_v_end, v60"); a("s_and_saveexec_b64 s[62:63], vcc"); a("s_cbranch_execz L_nocpf3")
            a("global_load_dwordx4 v[76:79], v60, s[60:61]")
            a("L_nocpf3:")
            a("s_mov_b64 exec, -1")
            a("L_nocpf2:")
        a("s_cmp_eq_u32 s56, 7"); a("s_cbranch_scc0 L_nolast")
        allred("v_add_f32", "v65", "v48")
        a("s_lshl_b32 s58, s3, 3"); a("v_mov_b32 v48, s58"); a("s_mov_b64 exec, 1")
        a(f"ds_write_b64 v48, v[64:65] offset:{L_ML}")
        a("s_mov_b64 exec, -1")
        a("s_cmp_eq_u32 s50, 0"); a("s_cbranch_scc1 L_nolast")
        a(f"s_mov_b32 s88, {SPIN}"); a("v_lshlrev_b32 v60, 2, v1")
        a("L_cnt:")
        a("global_load_dword v72, v60, s[84:85] sc1"); a("s_waitcnt vmcnt(0)")
        a("v_cmp_eq_u32 vcc, 0, v72"); a("s_cbranch_vccz L_nolast")
        a("s_sleep 8"); a("s_sub_u32 s88, s88, 1"); a("s_cbranch_scc0 L_cnt")
        a("L_nolast:")
    def vconsume(i):
        mfma(28, mop(i), ring(i), False)
        if i < NB - 1: masks(i + 1, f"v{66 + ((i + 1) >> 4)}", bitrev((i + 1) & 15))
    if vpol is not None: cur[0] = vpol
    laploop("L_v", vhead, vconsume, fin)
    stamp(6)
    C("---- combine the four waves, project through wo, publish the partial row")
    if prescale:
        for r in range(4): a(f"v_mul_f32 v{28+r}, v{28+r}, v60")
        a("s_mov_b32 exec_hi, 0")
        a(f"ds_write_b128 v26, v[28:31] offset:{L_OP}")
        a("s_mov_b64 exec, -1")
        a("s_waitcnt lgkmcnt(0)"); a("s_barrier")
        for w in range(4): a(f"ds_read2st64_b32 v[{84+2*w}:{85+2*w}], v27 offset0:{L_OP//256+2*w} offset1:{L_OP//256+2*w+1}")
        a("s_waitcnt lgkmcnt(2)")
        for k in range(2): a(f"v_add_f32 v{84+k}, v{84+k}, v{86+k}")
        a("s_waitcnt lgkmcnt(0)")
        for k in range(2): a(f"v_add_f32 v{88+k}, v{88+k}, v{90+k}")
        for k in range(2): a(f"v_add_f32 v{56+k}, v{84+k}, v{88+k}")
        for k in range(2): a(f"v_cvt_pk_bf16_f32 v{66+k}, v{56+k}, v{56+k}")
    else:
        a("v_mov_b32 v48, 0")
        a("s_mov_b32 exec_hi, 0")
        a(f"ds_write_b128 v26, v[28:31] offset:{L_OP}")
        a("s_mov_b64 exec, -1")
        a("s_waitcnt lgkmcnt(0)"); a("s_barrier")
        a(f"ds_read_b128 v[76:79], v48 offset:{L_ML}"); a(f"ds_read_b128 v[80:83], v48 offset:{L_ML+16}")
        for w in range(4): a(f"ds_read2st64_b32 v[{84+2*w}:{85+2*w}], v27 offset0:{L_OP//256+2*w} offset1:{L_OP//256+2*w+1}")
        a("s_waitcnt lgkmcnt(4)")
        a("v_min_f32 v48, v76, v78"); a("v_min3_f32 v48, v48, v80, v82")
        for w in range(4): a(f"v_sub_f32 v{76+2*w}, v48, v{76+2*w}")
        for w in range(4): a(f"v_exp_f32 v{76+2*w}, v{76+2*w}")
        a("v_mul_f32 v49, v76, v77")
        for w in range(1, 4): a(f"v_fmac_f32 v49, v{76+2*w}, v{77+2*w}")
        a("v_rcp_f32 v49, v49")
        a("s_waitcnt lgkmcnt(0)")
        for k in range(2):
            a(f"v_mul_f32 v{56+k}, v76, v{84+k}")
            for w in range(1, 4): a(f"v_fmac_f32 v{56+k}, v{76+2*w}, v{84+2*w+k}")
        for k in range(2):
            a(f"v_mul_f32 v{56+k}, v{56+k}, v49"); a(f"v_cvt_pk_bf16_f32 v{66+k}, v{56+k}, v{56+k}")
    if slide:
        C("product t takes the upper half of row group t and the lower half of group t+1, so a selector pair serves two products")
        def sel(t):
            for r in range(2):
                a(f"v_and_b32_dpp v{128+2*t+r}, v{66 + ((t & 31) >> 4)}, v{14+2*(t&1)+r} row_newbcast:{t & 15} row_mask:0xf bank_mask:0xf")
        sel(0); sel(1); sel(2)
        for t in range(32):
            mfma(28 if t & 1 else 76, f"v[{128+2*t}:{131+2*t}]", f"a[{4*t+2}:{4*t+5}]", t < 2)
            if t + 3 <= 32: sel(t + 3)
        for r in range(4): a(f"v_permlane16_swap_b32 v{76+r}, v{76+r}")
        for r in range(4): a(f"v_add_f32 v{28+r}, v{28+r}, v{76+r}")
    else:
        masks(0, "v66", 0)
        for t in range(32):
            if t < 31: masks(t + 1, "v66" if t + 1 < 16 else "v67", (t + 1) & 15)
            mfma(28, mop(t), f"a[{4*t}:{4*t+3}]", t == 0)
    a("s_mov_b32 exec_hi, 0")
    for r in range(4): a(f"v_min_u32 v{28+r}, -2, v{28+r}")
    a("buffer_store_dwordx4 v[28:31], v68, s[32:35], 0 offen sc1")
    a("s_mov_b64 exec, -1")
    stamp(7)
    a("s_cmp_eq_u32 s6, 2"); a("s_cbranch_scc1 L_s2")
    a("s_and_b32 s58, s7, 1"); a("s_cbranch_scc0 L_fin")
    C("---- this workgroup's FFN weights -> LDS: A via s[40:43], B via s[44:47]; s96/s97 source, s98/s99 LDS, s100/s101 steps")
    a("s_cmp_eq_u32 s7, 1"); a("s_cbranch_scc0 L_dmaD")
    a("v_lshrrev_b32 v62, 2, v1"); a("s_movk_i32 s58, 3584"); a("v_mul_u32_u24 v62, s58, v62")
    a("v_and_b32 v63, 3, v1"); a("v_lshl_add_u32 v62, v63, 4, v62")
    a("s_lshl_b32 s58, s89, 6"); a("v_add_u32 v62, s58, v62")
    a(f"s_mul_i32 s96, s3, {128*3584}"); a("s_mov_b32 s97, s96")
    a("s_lshl_b32 s98, s3, 13"); a(f"s_add_u32 s98, s98, {L_W}"); a("s_add_u32 s99, s98, 32768")
    a(f"s_mov_b32 s100, {16*3584}"); a("s_mov_b32 s101, 1024"); a("s_mov_b32 s93, 8")
    a("s_branch L_dma")
    a("L_dmaD:")
    a("v_lshrrev_b32 v62, 1, v1"); a("v_lshlrev_b32 v62, 10, v62"); a("v_and_b32 v63, 1, v1"); a("v_lshl_add_u32 v62, v63, 4, v62")
    a("s_lshl_b32 s58, s89, 5"); a("v_add_u32 v62, s58, v62")
    for d in (40, 44):
        a(f"s_mov_b32 s{d}, s80"); a(f"s_mov_b32 s{d+1}, s81"); a(f"s_mov_b32 s{d+2}, {1792*1024}")
    a(f"s_mul_i32 s96, s3, {448*1024}"); a("s_add_u32 s97, s96, 32768")
    a(f"s_mul_i32 s98, s3, {448*32}"); a(f"s_add_u32 s98, s98, {L_W}"); a("s_add_u32 s99, s98, 1024")
    a("s_mov_b32 s100, 65536"); a("s_mov_b32 s101, 2048"); a("s_mov_b32 s93, 7")
    a("L_dma:")
    a("s_mov_b32 m0, s98"); a("s_sub_u32 s93, s93, 1")
    a(f"buffer_load_dwordx4 v62, s[40:43], s96 offen {fpol} lds")
    a("s_mov_b32 m0, s99"); a("s_add_u32 s96, s96, s100")
    a(f"buffer_load_dwordx4 v62, s[44:47], s97 offen {fpol} lds")
    a("s_add_u32 s97, s97, s100"); a("s_add_u32 s98, s98, s101"); a("s_add_u32 s99, s99, s101")
    a("s_cmp_lg_u32 s93, 0"); a("s_cbranch_scc1 L_dma")
    C("exchange addresses v63 = g*128 + b*16, v26 = w*512 + v63 ; v60 = 16g + r', v61 = c' for the transposing reads")
    a("v_and_b32 v27, 7, v75"); a("v_lshlrev_b32 v63, 4, v27"); a("v_lshl_add_u32 v63, v74, 7, v63")
    a("s_lshl_b32 s58, s3, 9"); a("v_add_u32 v26, s58, v63")
    a("v_lshrrev_b32 v60, 2, v75"); a("v_lshl_add_u32 v60, v74, 4, v60"); a("v_and_b32 v61, 3, v1")
    a("s_cmp_eq_u32 s7, 3"); a("s_cbranch_scc1 L_s4")

    C("---- gate / up: four tiles of 8+8 columns, 128 rows of h per wave; LayerNorm is applied to the sums")
    a("v_lshlrev_b32 v60, 6, v60"); a("v_lshrrev_b32 v49, 1, v61"); a("v_lshl_add_u32 v60, v49, 15, v60")
    a("v_and_b32 v49, 1, v61"); a("v_lshl_add_u32 v60, v49, 3, v60")
    a("s_lshl_b32 s58, s3, 13"); a(f"s_add_u32 s58, s58, {L_W}"); a("v_add_u32 v60, s58, v60")
    for r in range(4): a(f"v_mov_b32 v{112+r}, 0x3f803f80")
    C("h fragment address v62 = (g>>1)*512 + (b>>1)*128 + (b&1)*64 + (g&1)*32 + half*16")
    a("v_lshrrev_b32 v62, 1, v74"); a("v_lshlrev_b32 v62, 9, v62"); a("v_bfe_u32 v49, v75, 1, 2"); a("v_lshl_add_u32 v62, v49, 7, v62")
    a("v_and_b32 v49, 1, v75"); a("v_lshl_add_u32 v62, v49, 6, v62"); a("v_and_b32 v49, 1, v74"); a("v_lshl_add_u32 v62, v49, 5, v62")
    a("v_lshrrev_b32 v49, 3, v75"); a("v_lshl_add_u32 v62, v49, 4, v62")
    a(f"s_mov_b32 s58, {L_DUMP-L_T2}"); a("v_mad_u32_u24 v26, v49, s58, v26")
    a("s_lshl_b32 s58, s3, 11"); a("v_add_u32 v63, s58, v63")
    a("v_lshrrev_b32 v49, 1, v74"); a("v_lshlrev_b32 v49, 2, v49"); a("v_lshlrev_b32 v61, 5, v27"); a("v_add_u32 v49, v49, v61")
    a("s_lshl_b32 s58, s3, 3"); a("v_add_u32 v49, s58, v49")
    a("s_lshl_b32 s59, s3, 11"); a(f"s_add_u32 s59, s59, {WS_H}")
    def colsum():
        a("s_waitcnt lgkmcnt(0)")
        for k in range(4):
            for t in range(4): mfma(224 + 4*t, f"v[{128+16*t+4*k}:{131+16*t+4*k}]", "v[112:115]", k == 0)
        for t in range(4): a(f"ds_write_b128 v26, v[{224+4*t}:{227+4*t}] offset:{L_CS+2048*t}")
    if staged:
        for u in range(2):
            a(f"s_waitcnt vmcnt({8 - 8*u})")
            if u: stamp(13)
            for t in range(4):
                for hf in range(2):
                    for sec in range(2): trread(128 + 16*t + 8*u + 4*hf + 2*sec, "v60", (64*u + 8*hf + 4*sec) * 64 + 16*t)
                if t == 2: a("s_waitcnt lgkmcnt(6)")
            if u == 0: a("s_waitcnt lgkmcnt(0)")
    else:
        a("s_waitcnt vmcnt(0)")
        stamp(13)
        for t in range(4):
            for u in range(2):
                for hf in range(2):
                    for sec in range(2): trread(128 + 16*t + 8*u + 4*hf + 2*sec, "v60", (64*u + 8*hf + 4*sec) * 64 + 16*t)
            if t: a("s_waitcnt lgkmcnt(6)")
        a("s_waitcnt lgkmcnt(0)")
        for k in range(4):
            for t in range(4): mfma(224 + 4*t, f"v[{128+16*t+4*k}:{131+16*t+4*k}]", "v[112:115]", k == 0)
        for t in range(4): a(f"ds_write_b128 v26, v[{224+4*t}:{227+4*t}] offset:{L_CS+2048*t}")
    if cspre:
        a("s_waitcnt lgkmcnt(0)"); a("s_barrier")
        for w in range(4): a(f"ds_read_b128 v[{224+4*w}:{227+4*w}], v63 offset:{L_CS+512*w}")
        a("s_waitcnt lgkmcnt(0)")
        for r in range(4): a(f"v_add_f32 v{224+r}, v{224+r}, v{228+r}"); a(f"v_add_f32 v{232+r}, v{232+r}, v{236+r}")
        for r in range(4): a(f"v_add_f32 v{108+r}, v{224+r}, v{232+r}")
    def ldH(b): return [f"buffer_load_dwordx4 v[{b+4*u}:{b+3+4*u}], v62, s[32:35], s59 offen offset:{u*1024} sc1" for u in range(2)]
    def useH(b):
        n = 0
        for u in range(2):
            for t in range(4):
                for hf in range(2):
                    mfma(192 + 8*t + 4*hf, f"v[{128+16*t+8*u+4*hf}:{131+16*t+8*u+4*hf}]", f"v[{b+4*u}:{b+3+4*u}]", u == 0)
                    if n < 8:
                        a(f"v_dot2_f32_bf16 v52, v{b+n}, v112, {'0' if n == 0 else 'v52'}")
                        a(f"v_dot2_f32_bf16 v53, v{b+n}, v{b+n}, {'0' if n == 0 else 'v53'}")
                    if n == 9:
                        for r in range(2): a(f"v_add_f32_dpp v{52+r}, v{52+r}, v{52+r} row_ror:8 row_mask:0xf bank_mask:0xf")
                    if n == 11: a("v_permlane32_swap_b32 v52, v53"); a("v_add_f32 v52, v52, v53"); a("v_mov_b32 v53, v52")
                    if n == 13: a("v_permlane16_swap_b32 v52, v53"); a("v_add_f32 v52, v52, v53"); a(f"ds_write_b32 v49, v52 offset:{L_ST}")
                    n += 1
    poll2("L_pH", ldH, 8, (76, 84), useH, colsum if staged else None)
    stamp(10)
    for t in range(4):
        for r in range(4): a(f"v_add_f32_dpp v{192+8*t+r}, v{196+8*t+r}, v{192+8*t+r} row_ror:8 row_mask:0xf bank_mask:0xf")
        a(f"ds_write_b128 v26, v[{192+8*t}:{195+8*t}] offset:{L_T2+2048*t}")
    a("s_waitcnt lgkmcnt(0)"); a("s_barrier")
    for k in range(2): a(f"ds_read_b128 v[{92+4*k}:{95+4*k}], v61 offset:{L_ST+16*k}")
    if not cspre:
        for w in range(4): a(f"ds_read_b128 v[{224+4*w}:{227+4*w}], v63 offset:{L_CS+512*w}")
    for w in range(4): a(f"ds_read_b128 v[{116+4*w}:{119+4*w}], v63 offset:{L_T2+512*w}")
    a(f"s_waitcnt lgkmcnt({4 if cspre else 8})")
    for k in range(2): a(f"v_add_f32 v{92+k}, v{92+k}, v{94+k}"); a(f"v_add_f32 v{96+k}, v{96+k}, v{98+k}")
    a("v_add_f32 v52, v92, v96"); a("v_add_f32 v53, v93, v97")
    a(f"v_mul_f32 v52, {f32(1/512)}, v52"); a(f"v_mul_f32 v53, {f32(1/512)}, v53")
    a("v_fma_f32 v53, -v52, v52, v53"); a("v_max_f32 v53, 0, v53")
    bf16r("v53"); bf16r("v52")
    a(f"v_add_f32 v53, {f32(1e-5)}, v53"); bf16r("v53")
    a("v_sqrt_f32 v53, v53")
    if not cspre:
        a("s_waitcnt lgkmcnt(4)")
        for r in range(4): a(f"v_add_f32 v{224+r}, v{224+r}, v{228+r}"); a(f"v_add_f32 v{232+r}, v{232+r}, v{236+r}")
        bf16r("v53"); a("v_rcp_f32 v53, v53")
        for r in range(4): a(f"v_add_f32 v{108+r}, v{224+r}, v{232+r}")
    a("s_waitcnt lgkmcnt(0)")
    for r in range(4): a(f"v_add_f32 v{116+r}, v{116+r}, v{120+r}"); a(f"v_add_f32 v{124+r}, v{124+r}, v{128+r}")
    if cspre: bf16r("v53"); a("v_rcp_f32 v53, v53")
    for r in range(4): a(f"v_add_f32 v{116+r}, v{116+r}, v{124+r}")
    for r in range(4): a(f"v_fma_f32 v{116+r}, -v52, v{108+r}, v{116+r}")
    for r in range(4): a(f"v_mul_f32 v{116+r}, v{116+r}, v53")
    for r in range(2): a(f"v_cvt_pk_bf16_f32 v{120+r}, v{116+2*r}, v{117+2*r}")
    for r in range(2): a(f"v_permlane32_swap_b32 v{120+r}, v{122+r}")
    for r in range(2):
        a(f"v_lshlrev_b32 v{116+2*r}, 16, v{120+r}"); a(f"v_and_b32 v{117+2*r}, 0xffff0000, v{120+r}")
        a(f"v_lshlrev_b32 v{124+2*r}, 16, v{122+r}"); a(f"v_and_b32 v{125+2*r}, 0xffff0000, v{122+r}")
    for r in range(4): a(f"v_max_f32 v{116+r}, 0, v{116+r}")
    for r in range(4): a(f"v_mul_f32 v{116+r}, v{116+r}, v{124+r}")
    for r in range(2): a(f"v_cvt_pk_bf16_f32 v{120+r}, v{116+2*r}, v{117+2*r}")
    a("s_mov_b64 exec, 0x00ff00ff")
    for r in range(2): a(f"v_min_u32 v{120+r}, -2, v{120+r}")
    a("buffer_store_dwordx2 v[120:121], v70, s[32:35], 0 offen sc1")
    stamp(11)
    a("s_branch L_fin")

    C("---- reducer: sum the 32 heads' partials of 2 rows x 32 columns, add x, publish h")
    a("L_s2:")
    a("v_lshlrev_b32 v62, 4, v1")
    a("s_lshl_b32 s59, s89, 13"); a("s_add_u32 s92, s59, 4096")
    a("v_lshlrev_b32 v50, 16, v71"); a("v_and_b32 v51, 0xffff0000, v71")
    def ld8(b): return [f"buffer_load_dwordx4 v[{b+4*u}:{b+3+4*u}], v62, s[32:35], {'s59' if u < 4 else 's92'} offen offset:{(u&3)*1024} sc1" for u in range(8)]
    def useP(b):
        for r in range(16): a(f"v_add_f32 v{108+r}, v{b+r}, v{b+16+r}")
    poll2("L_pP", ld8, 32, (76, 128), useP)
    stamp(8)
    for st in (8, 4):
        for r in range(st): a(f"v_add_f32 v{108+r}, v{108+r}, v{108+st+r}")
    a("v_permlane32_swap_b32 v108, v110"); a("v_permlane32_swap_b32 v109, v111")
    a("v_add_f32 v108, v108, v110"); a("v_add_f32 v109, v109, v111")
    a("v_mov_b32 v110, v108"); a("v_mov_b32 v111, v109")
    a("v_permlane16_swap_b32 v108, v110"); a("v_permlane16_swap_b32 v109, v111")
    a("v_add_f32 v108, v108, v110"); a("v_add_f32 v109, v109, v111")
    a("v_cvt_pk_bf16_f32 v108, v108, v109")
    a("v_and_b32 v109, 0xffff0000, v108"); a("v_lshlrev_b32 v108, 16, v108")
    a("v_add_f32 v108, v108, v50"); a("v_add_f32 v109, v109, v51")
    a("v_cvt_pk_bf16_f32 v108, v108, v109")
    a("s_mov_b32 exec_lo, 0xffff"); a("s_mov_b32 exec_hi, 0xffff")
    a("v_min_u32 v108, -2, v108")
    a("buffer_store_dword v108, v69, s[32:35], 0 offen sc1")
    stamp(9)
    a("s_branch L_fin")

    C("---- 16 output columns, 448 rows of W_down per wave")
    a("L_s4:")
    a("v_lshlrev_b32 v60, 5, v60"); a("v_lshl_add_u32 v60, v61, 3, v60")
    a(f"s_mul_i32 s58, s3, {448*32}"); a(f"s_add_u32 s58, s58, {L_W}"); a("v_add_u32 v60, s58, v60")
    C("h address v49 = H + ((s'>>1)*4 + (b>>1))*128 + (b&1)*64 + (s'&1)*32 + g*8 ; out address v50 = b*1024 + s'*32 + g*8")
    a("v_lshrrev_b32 v49, 1, v27"); a("v_lshlrev_b32 v49, 7, v49"); a("v_and_b32 v50, 1, v27"); a("v_lshl_add_u32 v49, v50, 6, v49")
    a("v_lshl_add_u32 v49, v74, 3, v49")
    a("s_lshr_b32 s58, s89, 1"); a("s_lshl_b32 s58, s58, 9"); a("s_and_b32 s92, s89, 1"); a("s_lshl_b32 s92, s92, 5"); a("s_add_u32 s58, s58, s92")
    a(f"s_add_u32 s58, s58, {WS_H}"); a("v_add_u32 v49, s58, v49")
    a("v_lshlrev_b32 v50, 10, v27"); a("v_lshl_add_u32 v50, v74, 3, v50"); a("s_lshl_b32 s58, s89, 5"); a("v_add_u32 v50, s58, v50")
    a(f"s_mul_i32 s59, s3, {7*1024}"); a(f"s_add_u32 s59, s59, {WS_G}"); a("s_add_u32 s92, s59, 4096")
    a("v_lshlrev_b32 v62, 4, v1")
    if not staged: a("s_waitcnt vmcnt(0)"); stamp(13)
    for u in range(7):
        if staged: a(f"s_waitcnt vmcnt({12 - 2*u})")
        if staged and u == 6: stamp(13)
        for hf in range(2):
            for sec in range(2): trread(128 + 8*u + 4*hf + 2*sec, "v60", (64*u + 8*hf + 4*sec) * 32)
        if u in (2, 5): a("s_waitcnt lgkmcnt(4)")
    a("s_waitcnt lgkmcnt(0)")
    def ldG(b): return ld8(b)[:7] + [f"buffer_load_dwordx2 v[{b+28}:{b+29}], v49, s[32:35], 0 offen sc1"]
    def useG(b):
        for u in range(7):
            for hf in range(2): mfma(108 + 4*hf, f"v[{128+8*u+4*hf}:{131+8*u+4*hf}]", f"v[{b+4*u}:{b+3+4*u}]", u == 0)
        for r in range(2):
            a(f"v_lshlrev_b32 v{116+2*r}, 16, v{b+28+r}"); a(f"v_and_b32 v{117+2*r}, 0xffff0000, v{b+28+r}")
    poll2("L_pG", ldG, 30, (76, 192), useG)
    stamp(10)
    for r in range(4): a(f"v_add_f32_dpp v{108+r}, v{112+r}, v{108+r} row_ror:8 row_mask:0xf bank_mask:0xf")
    a("s_mov_b32 exec_lo, 0x00ff00ff"); a("s_mov_b32 exec_hi, 0x00ff00ff")
    a(f"ds_write_b128 v26, v[108:111] offset:{L_TX}")
    a("s_waitcnt lgkmcnt(0)"); a("s_barrier")
    a("s_cmp_eq_u32 s3, 3"); a("s_cbranch_scc0 L_fin")
    for w in range(4): a(f"ds_read_b128 v[{128+4*w}:{131+4*w}], v63 offset:{L_TX+512*w}")
    a("s_waitcnt lgkmcnt(0)")
    for r in range(4):
        a(f"v_add_f32 v{128+r}, v{128+r}, v{132+r}"); a(f"v_add_f32 v{136+r}, v{136+r}, v{140+r}")
    for r in range(4): a(f"v_add_f32 v{128+r}, v{128+r}, v{136+r}")
    for r in range(2): a(f"v_cvt_pk_bf16_f32 v{132+r}, v{128+2*r}, v{129+2*r}")
    for r in range(2):
        a(f"v_lshlrev_b32 v{128+2*r}, 16, v{132+r}"); a(f"v_and_b32 v{129+2*r}, 0xffff0000, v{132+r}")
    for r in range(4): a(f"v_add_f32 v{128+r}, v{128+r}, v{116+r}")
    for r in range(2): a(f"v_cvt_pk_bf16_f32 v{132+r}, v{128+2*r}, v{129+2*r}")
    a("buffer_store_dwordx2 v[132:133], v50, s[36:39], 0 offen")
    stamp(11)
    a("L_fin:")
    if probe is not None:
        a(f"s_cmp_eq_u32 s2, {pwg}"); a("s_cbranch_scc0 L_end"); a("s_cmp_eq_u32 s3, 3"); a("s_cbranch_scc0 L_end")
        if probe == 0: a("s_mov_b32 s20, 0")
        a("s_add_u32 s20, s20, 10000")
        a("L_probe:")
        a("s_sleep 4"); a("s_memrealtime s[94:95]"); a("s_waitcnt lgkmcnt(0)"); a("s_sub_u32 s94, s94, s18")
        a("s_cmp_lt_u32 s94, s20"); a("s_cbranch_scc1 L_probe")
    if stamps:
        a("s_mov_b64 exec, -1")
        stamp(12)
        a("s_getreg_b32 s92, hwreg(HW_REG_XCC_ID)"); a("v_writelane_b32 v73, s92, 15")
        a("s_lshl_b32 s58, s2, 2"); a("s_add_u32 s58, s58, s3"); a("s_lshl_b32 s58, s58, 7"); a(f"s_add_u32 s58, s58, {WS_ST}")
        a("v_lshlrev_b32 v48, 2, v1"); a("s_mov_b32 exec_hi, 0")
        a("buffer_store_dword v73, v48, s[32:35], s58 offen")
        if "dbgout" in xp:
            a("s_cmp_eq_u32 s2, 229"); a("s_cbranch_scc0 L_end"); a("s_cmp_eq_u32 s3, 3"); a("s_cbranch_scc0 L_end")
            a("v_subrev_u32 v73, s18, v73"); a("s_mov_b64 exec, 0xffff")
            a("global_store_dword v48, v73, s[84:85] sc1")
    a("L_end:")
    a("s_endpgm")
    body = a.finish()
    head_ = HEADER + f"; @launch grid=(256,1,1) block=(256,1,1) lds={L_SIZE}\n" + '.amdgcn_target "amdgcn-amd-amdhsa--gfx950"\n.text\n' + \
        f".globl {NAME}\n.p2align 8\n.type {NAME},@function\n"
    tail = f""".section .rodata,"a"
.p2align 6
.amdhsa_kernel {NAME}
  .amdhsa_next_free_vgpr 392
  .amdhsa_next_free_sgpr 102
  .amdhsa_accum_offset 256
  .amdhsa_group_segment_fixed_size 0
  .amdhsa_kernarg_size 96
  .amdhsa_user_sgpr_count 2
  .amdhsa_user_sgpr_kernarg_segment_ptr 1
  .amdhsa_system_sgpr_workgroup_id_x 1
.end_amdhsa_kernel
"""
    return head_ + body + tail

if __name__ == "__main__":
    kw = eval("dict(%s)" % (sys.argv[2] if len(sys.argv) > 2 else ""))
    open(sys.argv[1], "w").write(gen(**kw))
```

```python
import sys, struct
sys.path.insert(0, __file__.rsplit('/', 1)[0])
from asmlib import Asm

NAME = "sequential_preLN__mha_block_cached__glu_gated_reglu__decode_kernel"
HEADER = open(__file__.rsplit('/', 1)[0] + '/header.txt').read()

def f32(x): return "0x%08x" % struct.unpack('<I', struct.pack('<f', x))[0]

WS_P, WS_H, WS_G, WS_ST, WS_SIZE = 0, 0x80000, 0x82000, 0x100000, 0x140000
L_QP, L_OP, L_ML, L_ST, L_TX, L_T2, L_CS, L_W, L_DUMP, L_SIZE = 0, 2048, 4096, 4160, 4608, 8192, 16384, 24576, 90112, 106496
DOC = r"""; ---------------------------------------------------------------------------------------------------------
; ---------------------------------------------------------------------------------------------------------
"""
RING = 128
NB = 32
SPIN = 200000

def gen(D=5, hi=1, pol="nt", wpol="", fpol="", early=(2, 7, 12, 17), n1=7, kq=2, nbar=2, nA=3, nB=3, D1=None,
        stag=0, cpf2=0, fin=10, touch=0, cspre=0, wend=32, wov=0, wod=0, initlow=0, prescale=1, slide=1, staged=1, vt=0, lasthi=0, mpf=7, pf0=30, xpf=0, ctl=1, slack=90, k0=1, late=0, cpf=23, rot=0, nw=2, nwl=1, eps=0, head=(60, 80), hiu=(4, 4), cal=3, stamps=0, xp=(), probe=None, pwg=130, vpol=None, pre=0, ahead=0, r2=0, slack2=40):
    a = Asm()
    vm = []
    def C(t): a("; " + t)
    def vwait(tag):
        n = len(vm) - 1 - vm.index(tag)
        a(f"s_waitcnt vmcnt({min(n, 63)})")
    def stamp(k):
        if probe == k:
            a("s_memrealtime s[94:95]"); a("s_waitcnt lgkmcnt(0)"); a("s_sub_u32 s20, s94, s18")
        if stamps == 2 and k not in (6, 12): return
        if stamps == 3 and k not in (3, 4, 6, 12): return
        if stamps:
            a("s_memrealtime s[94:95]"); a("s_waitcnt lgkmcnt(0)"); a(f"v_writelane_b32 v73, s94, {k}")
    def lapstamp(off):
        if stamps == 3:
            a("s_memrealtime s[94:95]"); a(f"s_add_u32 m0, s56, {off}"); a("s_waitcnt lgkmcnt(0)"); a("v_writelane_b32 v73, s94, m0")
    def allred(op, v, t):
        for n in (8, 4, 2, 1): a(f"{op}_dpp {v}, {v}, {v} row_ror:{n} row_mask:0xf bank_mask:0xf")
        for sw in ("v_permlane16_swap_b32", "v_permlane32_swap_b32"):
            a(f"v_mov_b32 {t}, {v}"); a(f"{sw} {v}, {t}"); a(f"{op} {v}, {v}, {t}")
    def bf16r(v):
        a(f"v_cvt_pk_bf16_f32 {v}, {v}, {v}"); a(f"v_and_b32 {v}, 0xffff0000, {v}")
    def srd(d, lo, hi_, size, add=None):
        if add is None:
            a(f"s_mov_b32 s{d}, s{lo}"); a(f"s_mov_b32 s{d+1}, s{hi_}")
        else:
            a(f"s_add_u32 s{d}, s{lo}, {add}"); a(f"s_addc_u32 s{d+1}, s{hi_}, 0")
        a(f"s_mov_b32 s{d+2}, {size}"); a(f"s_mov_b32 s{d+3}, 0x20000")
    cur = [pol]
    def ring(j): j %= NB; return f"v[{RING+4*j}:{RING+4*j+3}]"
    def sload(j):
        s, b = ("s[12:15]", "s55") if j >= NB else ("s[8:11]", "s54")
        j %= NB
        a(f"buffer_load_dwordx4 {ring(j)}, v{2+(j>>2)}, {s}, {b} offen offset:{(j&3)*1024} {cur[0]}")
    def masks(t, src, lane):
        for r in range(4):
            a(f"v_and_b32_dpp v{18+4*(t&1)+r}, {src}, v{14+r} row_newbcast:{lane} row_mask:0xf bank_mask:0xf")
    def mop(t): return f"v[{18+4*(t&1)}:{21+4*(t&1)}]"
    def mfma(d, x, y, first): a(f"v_mfma_f32_16x16x32_bf16 v[{d}:{d+3}], {x}, {y}, {'0' if first else 'v[%d:%d]' % (d, d+3)}")
    def bitrev(t): return ((t & 1) << 3) | ((t & 2) << 1) | ((t & 4) >> 1) | ((t & 8) >> 3)
    def check(regs, ok):
        r = list(regs)
        a(f"v_max3_u32 v48, v{r[0]}, v{r[1]}, v{r[2]}"); r = r[3:]
        while len(r) >= 2:
            a(f"v_max3_u32 v48, v48, v{r[0]}, v{r[1]}"); r = r[2:]
        if r: a(f"v_max_u32 v48, v48, v{r[0]}")
        a("v_cmp_eq_u32 vcc, -1, v48")
        a(f"s_cbranch_vccz {ok}")
    def poll2(label, loads, nreg, bases, use, pre=None):
        n = len(loads(bases[0]))
        a(f"s_mov_b32 s88, {SPIN}")
        for l in loads(bases[0]): a(l)
        if stag: a(f"s_sleep {stag}")
        if pre: pre()
        a(f"{label}:")
        for l in loads(bases[1]): a(l)
        a(f"s_waitcnt vmcnt({n})")
        check(range(bases[0], bases[0] + nreg), f"{label}_A")
        for l in loads(bases[0]): a(l)
        a(f"s_waitcnt vmcnt({n})")
        check(range(bases[1], bases[1] + nreg), f"{label}_B")
        a("s_sub_u32 s88, s88, 1")
        a(f"s_cbranch_scc0 {label}")
        a(f"{label}_B:")
        use(bases[1])
        a(f"s_branch {label}_done")
        a(f"{label}_A:")
        use(bases[0])
        a(f"{label}_done:")
    def trread(dst, addr, off): a(f"ds_read_b64_tr_b16 v[{dst}:{dst+1}], {addr} offset:{off}")

    a(f"{NAME}:")
    a("s_cmp_ge_u32 s2, 256"); a("s_cbranch_scc1 L_end")
    a("s_memrealtime s[18:19]")
    a("s_load_dwordx16 s[64:79], s[0:1], 0")
    a("s_load_dwordx8 s[80:87], s[0:1], 64")
    if cpf:
        C("pull the kernel's own code towards this die's L2, one KiB per wave")
        a("s_getpc_b64 s[60:61]"); a("s_and_b32 s60, s60, 0xffffff00")
        a("s_lshr_b32 s58, s2, 3"); a("s_lshl_b32 s58, s58, 8"); a("v_add_u32 v60, s58, v0"); a("v_lshlrev_b32 v60, 4, v60")
        a(f"v_cmp_gt_u32 vcc, {cpf*1024}, v60"); a("s_and_saveexec_b64 s[62:63], vcc"); a("s_cbranch_execz L_nocpf")
        a("global_load_dwordx4 v[76:79], v60, s[60:61]")
        a("L_nocpf:")
        a("s_mov_b64 exec, -1")
    C("s3 wave, s4 batch row, s5 head; v1 lane, v74 lane>>4 (g), v75 lane&15 (i)")
    a("v_lshrrev_b32 v1, 6, v0")
    a("v_readfirstlane_b32 s3, v1")
    a("v_and_b32 v1, 63, v0")
    a("s_lshr_b32 s4, s2, 5"); a("s_and_b32 s5, s2, 31")
    a("v_lshrrev_b32 v74, 4, v1"); a("v_and_b32 v75, 15, v1")
    a("v_lshlrev_b32 v48, 4, v1")
    a("s_lshl_b32 s58, s3, 12"); a("v_add_u32 v2, s58, v48")
    for k in range(1, 8): a(f"v_add_u32 v{2+k}, {k*16384}, v2")
    a("s_lshl_b32 s58, s3, 8"); a("v_lshlrev_b32 v49, 3, v75"); a("v_lshl_add_u32 v49, v74, 1, v49"); a("v_add_u32 v49, s58, v49")
    a("v_lshrrev_b32 v51, 1, v74")
    C("wq lane offset v58 = (128w+g)*8192 + i*16 ; wo lane offset v59 = g*1024 + w*256 + i*16")
    a("s_lshl_b32 s58, s3, 20"); a("v_lshlrev_b32 v58, 13, v74"); a("v_lshl_add_u32 v58, v75, 4, v58"); a("v_add_u32 v58, s58, v58")
    a("s_lshl_b32 s58, s3, 8"); a("v_lshlrev_b32 v59, 10, v74"); a("v_lshl_add_u32 v59, v75, 4, v59"); a("v_add_u32 v59, s58, v59")
    a("s_lshl_b32 s57, s4, 10"); a("s_lshl_b32 s58, s5, 8"); a("s_lshl_b32 s59, s2, 20")
    a("s_sub_u32 s92, 0x400000, s58")
    a("s_mov_b32 s54, 0")
    a("s_waitcnt lgkmcnt(0)")
    if stamps: a("v_mov_b32 v73, 0"); a("v_writelane_b32 v73, s18, 0")
    kiss = 0
    def kload():
        nonlocal kiss
        sload(kiss - kbase); vm.append(f"k{kiss}"); kiss += 1
    kbase = 0
    srd(8, 66, 67, 0x100000, "s59")
    for j in range(k0): kload()
    srd(28, 64, 65, 8192)
    a("buffer_load_dwordx4 v[52:55], v48, s[28:31], s57 offen"); vm.append("x")
    a("buffer_load_ushort v56, v49, s[28:31], s57 offen"); vm.append("xc0")
    a("buffer_load_ushort v57, v49, s[28:31], s57 offen offset:128"); vm.append("xc1")
    srd(20, 70, 71, "s92", "s58")
    wiss = 0
    def wqload():
        nonlocal wiss
        a(f"s_mov_b32 s58, {wiss*32768}")
        a(f"buffer_load_dwordx4 a[{4*wiss}:{4*wiss+3}], v58, s[20:23], s58 offen {wpol}"); vm.append(f"wq{wiss}"); wiss += 1
    for j in range(n1):
        if j: kload()
        for x in range(nw): wqload()
    a("s_add_u32 s16, s68, s59"); a("s_addc_u32 s17, s69, 0")
    a("s_mov_b32 s12, s8"); a("s_mov_b32 s13, s9"); a("s_mov_b32 s14, 0x100000"); a("s_mov_b32 s15, 0x20000")
    a("s_lshl_b32 s58, s5, 17"); srd(24, 72, 73, 0x20000, "s58")
    def setup_late():
        a("v_lshrrev_b32 v77, 1, v74"); a("v_lshlrev_b32 v78, 4, v1")
        srd(32, 86, 87, WS_SIZE); srd(36, 82, 83, 8192)
        srd(40, 76, 77, 512*3584); srd(44, 78, 79, 512*3584)
        C("role s7 / index s89: 1 gate+up tiles (wg<56), 2 reducer (64<=wg<128), 3 output slice (wg>=224), 0 none")
        a("s_and_b32 s58, s2, 7"); a("s_lshr_b32 s92, s2, 3")
        a("s_mul_i32 s89, s58, 7"); a("s_add_u32 s89, s89, s92")
        a("s_cmp_lt_u32 s2, 56"); a("s_cselect_b32 s7, 1, 0")
        a("s_lshl_b32 s58, s58, 2"); a("s_add_u32 s58, s58, s92"); a("s_sub_u32 s58, s58, 28")
        a("s_cmp_ge_u32 s2, 224"); a("s_cselect_b32 s89, s58, s89"); a("s_cselect_b32 s7, 3, s7")
        a("s_sub_u32 s58, s2, 64"); a("s_cmp_lt_u32 s58, 64"); a("s_cselect_b32 s89, s58, s89"); a("s_cselect_b32 s7, 2, s7")
        a("s_lshl_b32 s6, s3, 2"); a("s_add_u32 s6, s6, s7")
        C("P store offset v68 = ((4w + (i>>2))*4 + (b>>1))*8192 + (2h + (b&1))*128 + (i&3)*32 + g*16")
        a("v_lshrrev_b32 v68, 2, v75"); a("v_lshlrev_b32 v68, 15, v68"); a("v_lshl_add_u32 v68, v74, 4, v68")
        a("v_and_b32 v60, 3, v75"); a("v_lshl_add_u32 v68, v60, 5, v68")
        a("s_lshl_b32 s58, s3, 17"); a("s_lshr_b32 s92, s4, 1"); a("s_lshl_b32 s92, s92, 13"); a("s_add_u32 s58, s58, s92")
        a("s_lshl_b32 s92, s5, 8"); a("s_add_u32 s58, s58, s92")
        a("s_and_b32 s92, s4, 1"); a("s_lshl_b32 s92, s92, 7"); a("s_add_u32 s58, s58, s92"); a("v_add_u32 v68, s58, v68")
        C("H store offset v69 = H + rho*128 + i*8 + (g>>1)*4 ; x offset v76 = (2(rho&3) + (i>>3))*1024 + (rho>>2)*64 + (i&7)*8 + (g>>1)*4")
        a("v_lshlrev_b32 v69, 3, v75"); a("v_lshl_add_u32 v69, v77, 2, v69")
        a("v_lshrrev_b32 v76, 3, v75"); a("v_lshlrev_b32 v76, 10, v76"); a("v_and_b32 v60, 7, v75"); a("v_lshl_add_u32 v76, v60, 3, v76")
        a("v_lshl_add_u32 v76, v77, 2, v76")
        a("s_and_b32 s58, s89, 3"); a("s_lshl_b32 s58, s58, 11"); a("s_lshr_b32 s92, s89, 2"); a("s_lshl_b32 s92, s92, 6"); a("s_add_u32 s58, s58, s92")
        a("v_add_u32 v76, s58, v76")
        a("s_lshl_b32 s58, s89, 7"); a(f"s_add_u32 s58, s58, {WS_H}"); a("v_add_u32 v69, s58, v69")
        a("buffer_load_dword v71, v76, s[28:31], 0 offen"); vm.append("xr")
        C("G store offset v70 = G + (4*s89 + w)*128 + i*16 + g*8")
        a("v_lshlrev_b32 v70, 4, v75"); a("v_lshl_add_u32 v70, v74, 3, v70")
        a("s_lshl_b32 s58, s89, 2"); a("s_add_u32 s58, s58, s3"); a("s_lshl_b32 s58, s58, 7"); a(f"s_add_u32 s58, s58, {WS_G}"); a("v_add_u32 v70, s58, v70")
        C("wave 0 of the reducers marks every hand-off line empty (all ones): own P lines, own H line, four G lines")
        a("s_cmp_eq_u32 s6, 2"); a("s_cbranch_scc0 L_noclr")
        for r in range(4): a(f"v_mov_b32 v{60+r}, -1")
        a("s_lshl_b32 s58, s89, 13"); a("s_add_u32 s92, s58, 4096")
        for u in range(8): a(f"buffer_store_dwordx4 v[60:63], v78, s[32:35], {'s58' if u < 4 else 's92'} offen offset:{(u&3)*1024} sc1")
        a("s_lshl_b32 s58, s89, 9"); a(f"s_add_u32 s58, s58, {WS_G}"); a("s_mov_b32 exec_hi, 0")
        a("buffer_store_dwordx4 v[60:63], v78, s[32:35], s58 offen sc1")
        a("s_lshl_b32 s58, s89, 7"); a(f"s_add_u32 s58, s58, {WS_H}"); a("s_mov_b32 exec_lo, 0xff")
        a("buffer_store_dwordx4 v[60:63], v78, s[32:35], s58 offen sc1")
        a("s_mov_b64 exec, -1")
        a("L_noclr:")
    if not late:
        srd(32, 86, 87, WS_SIZE); srd(36, 82, 83, 8192)
        srd(40, 76, 77, 512*3584); srd(44, 78, 79, 512*3584)
        C("role s7 / index s89: 1 gate+up tiles (wg<56), 2 reducer (64<=wg<128), 3 output slice (wg>=224), 0 none")
        a("s_and_b32 s58, s2, 7"); a("s_lshr_b32 s92, s2, 3")
        a("s_mul_i32 s89, s58, 7"); a("s_add_u32 s89, s89, s92")
        a("s_cmp_lt_u32 s2, 56"); a("s_cselect_b32 s7, 1, 0")
        a("s_lshl_b32 s58, s58, 2"); a("s_add_u32 s58, s58, s92"); a("s_sub_u32 s58, s58, 28")
        a("s_cmp_ge_u32 s2, 224"); a("s_cselect_b32 s89, s58, s89"); a("s_cselect_b32 s7, 3, s7")
        a("s_sub_u32 s58, s2, 64"); a("s_cmp_lt_u32 s58, 64"); a("s_cselect_b32 s89, s58, s89"); a("s_cselect_b32 s7, 2, s7")
        a("s_lshl_b32 s6, s3, 2"); a("s_add_u32 s6, s6, s7")
        C("P store offset v68 = ((4w + (i>>2))*4 + (b>>1))*8192 + (2h + (b&1))*128 + (i&3)*32 + g*16")
        a("v_lshrrev_b32 v68, 2, v75"); a("v_lshlrev_b32 v68, 15, v68"); a("v_lshl_add_u32 v68, v74, 4, v68")
        a("v_and_b32 v60, 3, v75"); a("v_lshl_add_u32 v68, v60, 5, v68")
        a("s_lshl_b32 s58, s3, 17"); a("s_lshr_b32 s92, s4, 1"); a("s_lshl_b32 s92, s92, 13"); a("s_add_u32 s58, s58, s92")
        a("s_lshl_b32 s92, s5, 8"); a("s_add_u32 s58, s58, s92")
        a("s_and_b32 s92, s4, 1"); a("s_lshl_b32 s92, s92, 7"); a("s_add_u32 s58, s58, s92"); a("v_add_u32 v68, s58, v68")
        C("H store offset v69 = H + rho*128 + i*8 + (g>>1)*4 ; x offset v50 = (2(rho&3) + (i>>3))*1024 + (rho>>2)*64 + (i&7)*8 + (g>>1)*4")
        a("v_lshlrev_b32 v69, 3, v75"); a("v_lshl_add_u32 v69, v51, 2, v69")
        a("v_lshrrev_b32 v50, 3, v75"); a("v_lshlrev_b32 v50, 10, v50"); a("v_and_b32 v60, 7, v75"); a("v_lshl_add_u32 v50, v60, 3, v50")
        a("v_lshl_add_u32 v50, v51, 2, v50")
        a("s_and_b32 s58, s89, 3"); a("s_lshl_b32 s58, s58, 11"); a("s_lshr_b32 s92, s89, 2"); a("s_lshl_b32 s92, s92, 6"); a("s_add_u32 s58, s58, s92")
        a("v_add_u32 v50, s58, v50")
        a("s_lshl_b32 s58, s89, 7"); a(f"s_add_u32 s58, s58, {WS_H}"); a("v_add_u32 v69, s58, v69")
        a("buffer_load_dword v71, v50, s[28:31], 0 offen"); vm.append("xr")
        C("G store offset v70 = G + (4*s89 + w)*128 + i*16 + g*8")
        a("v_lshlrev_b32 v70, 4, v75"); a("v_lshl_add_u32 v70, v74, 3, v70")
        a("s_lshl_b32 s58, s89, 2"); a("s_add_u32 s58, s58, s3"); a("s_lshl_b32 s58, s58, 7"); a(f"s_add_u32 s58, s58, {WS_G}"); a("v_add_u32 v70, s58, v70")
        C("the reducers mark every hand-off line empty (all ones): own P lines, own H line, four G lines")
        a("s_cmp_eq_u32 s7, 2"); a("s_cbranch_scc0 L_noclr")
        for r in range(4): a(f"v_mov_b32 v{60+r}, -1")
        a("s_lshl_b32 s58, s89, 13"); a("s_lshl_b32 s92, s3, 11"); a("s_add_u32 s58, s58, s92")
        a("buffer_store_dwordx4 v[60:63], v48, s[32:35], s58 offen sc1")
        a("buffer_store_dwordx4 v[60:63], v48, s[32:35], s58 offen offset:1024 sc1")
        a("s_mov_b64 exec, 0x00ff00ff")
        a("buffer_store_dwordx2 v[60:61], v70, s[32:35], 0 offen sc1")
        a("s_cmp_eq_u32 s3, 0"); a("s_cbranch_scc0 L_noclr")
        a("s_mov_b32 exec_lo, 0xffff"); a("s_mov_b32 exec_hi, 0xffff")
        a("buffer_store_dword v60, v69, s[32:35], 0 offen sc1")
        a("L_noclr:")
        a("s_mov_b64 exec, -1")
    for j in range(nA): kload()
    stamp(1)
    a("s_mov_b32 s60, 0xcccccccc"); a("s_mov_b32 s61, 0xcccccccc"); a("s_mov_b32 s62, 0xaaaaaaaa"); a("s_mov_b32 s63, 0xaaaaaaaa")
    a(f"s_mov_b32 s90, {f32(128 ** -0.5)}"); a(f"s_mov_b32 s91, {f32(1.4426950408889634)}")
    C("selector masks v14..17: lane (g,m): m<8 and m>>1==r -> m&1 ? 0xffff0000 : 0xffff")
    a("v_and_b32 v60, 1, v75"); a("v_lshlrev_b32 v60, 4, v60"); a("v_mov_b32 v61, 0xffff"); a("v_lshlrev_b32 v60, v60, v61")
    a("v_lshrrev_b32 v61, 1, v75")
    for r in range(4):
        a(f"v_cmp_eq_u32 vcc, {r}, v61"); a(f"v_cndmask_b32 v{14+r}, 0, v60, vcc")
    C("---- LayerNorm of x[b]")
    vwait("x")
    for j in range(nB): kload()
    for k in range(4):
        a(f"v_lshlrev_b32 v{76+2*k}, 16, v{52+k}"); a(f"v_and_b32 v{77+2*k}, 0xffff0000, v{52+k}")
    a("v_add_f32 v84, v76, v77")
    for k in range(2, 8): a(f"v_add_f32 v84, v84, v{76+k}")
    allred("v_add_f32", "v84", "v85")
    a(f"v_mul_f32 v84, {f32(1/512)}, v84")
    for k in range(8): a(f"v_sub_f32 v{76+k}, v{76+k}, v84")
    a("v_mul_f32 v86, v76, v76")
    for k in range(1, 8): a(f"v_fmac_f32 v86, v{76+k}, v{76+k}")
    allred("v_add_f32", "v86", "v85")
    a(f"v_mul_f32 v86, {f32(1/512)}, v86")
    bf16r("v84"); bf16r("v86")
    a(f"v_add_f32 v86, {f32(1e-5)}, v86"); bf16r("v86")
    a("v_sqrt_f32 v86, v86"); bf16r("v86"); a("v_rcp_f32 v86, v86")
    vwait("xc1")
    for k in range(2):
        a(f"v_lshlrev_b32 v{56+k}, 16, v{56+k}"); a(f"v_sub_f32 v{56+k}, v{56+k}, v84"); bf16r(f"v{56+k}")
        a(f"v_mul_f32 v{56+k}, v{56+k}, v86"); a(f"v_cvt_pk_bf16_f32 v{66+k}, v{56+k}, v{56+k}")
    stamp(2)
    C("---- q = xn @ wq[:, head], 128 rows per wave")
    masks(0, "v66", 0)
    for t in range(32):
        vwait(f"wq{t}")
        mfma(28, mop(t), f"a[{4*t}:{4*t+3}]", t == 0)
        if wiss < 32: wqload()
        if int((t + 1) / kq) > int(t / kq) and kiss < NB: kload()
        if t < 31: masks(t + 1, "v66" if t + 1 < 16 else "v67", (t + 1) & 15)
    for j in range(nbar):
        if kiss < NB: kload()
    a("v_lshlrev_b32 v27, 5, v75"); a("v_lshl_add_u32 v26, v74, 4, v27"); a("s_lshl_b32 s58, s3, 9"); a("v_add_u32 v26, s58, v26")
    a("s_mov_b32 exec_hi, 0")
    a(f"ds_write_b128 v26, v[28:31] offset:{L_QP}")
    a("s_mov_b64 exec, -1")
    a("s_waitcnt lgkmcnt(0)"); a("s_barrier")
    for w in range(4):
        for hh in range(2): a(f"ds_read_b128 v[{76+8*w+4*hh}:{79+8*w+4*hh}], v27 offset:{L_QP+512*w+16*hh}")
    a("s_waitcnt lgkmcnt(0)")
    for k in range(8):
        a(f"v_add_f32 v{76+k}, v{76+k}, v{84+k}"); a(f"v_add_f32 v{92+k}, v{92+k}, v{100+k}")
    for k in range(8): a(f"v_add_f32 v{76+k}, v{76+k}, v{92+k}")
    for k in range(4): a(f"v_cvt_pk_bf16_f32 v{10+k}, v{76+2*k}, v{77+2*k}")
    a("v_lshlrev_b32 v27, 4, v75"); a("v_lshl_add_u32 v27, v74, 2, v27")
    a("v_mov_b32 v64, 0xff800000"); a("v_mov_b32 v65, 0")
    stamp(3)

    def kconsume(i):
        t = i & 15
        x = f"v{48 + (t & 1)}"
        base = RING + 4 * i
        a(f"v_dot2_f32_bf16 {x}, v{base}, v10, 0")
        for r in range(1, 4): a(f"v_dot2_f32_bf16 {x}, v{base+r}, v{10+r}, {x}")
        if t & 1:
            d = f"v{50 + ((t >> 1) & 1)}"
            a(f"v_add_f32_dpp {d}, v48, v48 row_ror:8 row_mask:0xf bank_mask:0x3")
            a(f"v_add_f32_dpp {d}, v49, v49 row_ror:8 row_mask:0xf bank_mask:0xc")
        if t & 3 == 3:
            d = f"v{52 + ((t >> 2) & 1)}"
            a(f"v_add_f32_dpp {d}, v50, v50 row_half_mirror row_mask:0xf bank_mask:0x5")
            a(f"v_add_f32_dpp {d}, v51, v51 row_half_mirror row_mask:0xf bank_mask:0xa")
        if t & 7 == 7:
            d = f"v{54 + ((t >> 3) & 1)}"
            a("v_add_f32_dpp v52, v52, v52 quad_perm:[2,3,0,1] row_mask:0xf bank_mask:0xf")
            a("v_add_f32_dpp v53, v53, v53 quad_perm:[2,3,0,1] row_mask:0xf bank_mask:0xf")
            a(f"v_cndmask_b32 {d}, v52, v53, s[60:61]")
        if t == 15:
            s = f"v{46 + (i >> 4)}"
            a("v_add_f32_dpp v54, v54, v54 quad_perm:[1,0,3,2] row_mask:0xf bank_mask:0xf")
            a("v_add_f32_dpp v55, v55, v55 quad_perm:[1,0,3,2] row_mask:0xf bank_mask:0xf")
            a(f"v_cndmask_b32 {s}, v54, v55, s[62:63]")
            bf16r(s); a(f"v_mul_f32 {s}, s90, {s}"); bf16r(s)
            a(f"v_max_f32 v64, v64, {s}")
    C("---- lap 0: the keys that arrived while q was formed")
    a(f"s_mov_b32 s55, {NB*4096}")
    left = NB + D - kiss
    early = list(early)
    while early and early[-1] >= NB - (left - len(early)): early.pop()
    sched = early + list(range(NB - (left - len(early)), NB))
    assert len(set(sched)) == left, (sched, left)
    for i in range(NB):
        vwait(f"k{i}")
        if i in sched:
            assert kiss - NB < i
            kload()
        kconsume(i)
    stamp(4)
    C("---- the next laps also bring in this head's rows of wo")
    wo = 0
    if wov: nwl = 0; wo = 32
    for lap in range(1, nwl + 1):
        a("s_mov_b32 s54, s55"); a(f"s_add_u32 s55, s55, {NB*4096}")
        for k in range(2 * lap): a(f"v_mov_b32 v{46-2*lap+k}, v{48-2*lap+k}")
        kbase = NB * lap
        if lap == 1:
            for j in range((D1 or D) - D): kload()
        for i in range(NB):
            vwait(f"k{NB*lap+i}")
            if kiss < (nwl + 1) * NB + D: kload()
            while wo < 32 and (i % nwl == 0 if wend == 32 else wo * wend < (i + 1) * 32) and (wend < 32 or wo * nwl <= NB * (lap - 1) + i):
                a(f"s_mov_b32 s58, {wo*4096}")
                a(f"buffer_load_dwordx4 a[{4*wo}:{4*wo+3}], v59, s[24:27], s58 offen {wpol}"); vm.append(f"wo{wo}"); wo += 1
            if mpf == 1 and lap == 1:
                if i == 0:
                    srd(20, 80, 81, 1792*1024)
                    a("s_lshl_b32 s96, s2, 2"); a("s_add_u32 s96, s96, s3"); a("s_lshl_b32 s96, s96, 11"); a("v_lshlrev_b32 v62, 4, v1")
                if i % 5 == 2 and i // 5 < 6:
                    k = i // 5
                    a(f"buffer_load_dwordx4 v[76:79], v62, s[{(40, 44, 20)[k >> 1]}:{(43, 47, 23)[k >> 1]}], s96 offen offset:{(k & 1) * 1024}"); vm.append(f"pf{k}")
            kconsume(i)
            if late and lap == 1 and i == 4: setup_late()
    assert wo == 32

    leads = ([D - 1] if ahead else []) + [D, D + hi]
    def decide(name, k):
        a("s_waitcnt lgkmcnt(0)")
        a("s_sub_u32 s58, s52, s48"); a("s_lshl_b32 s58, s58, 8"); a("s_sub_u32 s58, s58, s49"); a("s_add_u32 s49, s49, s57")
        a("s_sub_u32 s19, s19, 1"); a("s_cmp_ge_i32 s19, 0"); a("s_cselect_b32 s58, 1, s58")
        a("s_cmp_gt_i32 s58, 0"); a(f"s_cbranch_scc1 {name}_{k}_{D+hi}")
        if ahead:
            a("s_cmp_lt_i32 s58, s93"); a(f"s_cbranch_scc1 {name}_{k}_{D-1}")
    def segment(name, k, DD, consume):
        tag = f"{name}_{k}_{DD}"; i0 = 16 * k
        a(f"{tag}:")
        for j in range(leads[0], DD):
            a(f"s_cmp_gt_u32 s51, {j}"); a(f"s_cbranch_scc1 {tag}_i{j}")
            sload(i0 + j)
            a(f"{tag}_i{j}:")
        nskip = leads[-1] - DD
        for i in range(i0, i0 + 16):
            a(f"s_waitcnt vmcnt({DD - 1})")
            skip = i - i0 < nskip
            if skip: a(f"s_cmp_gt_u32 s51, {DD + i - i0}"); a(f"s_cbranch_scc1 {tag}_s{i}")
            sload(i + DD)
            if skip: a(f"{tag}_s{i}:")
            if i - i0 == nskip: a(f"s_mov_b32 s51, {DD}")
            if i - i0 == 15: a("s_memrealtime s[52:53]")
            consume(i)
    def cal_events(base):
        lo, up = (nwl + 1, 8) if base == 0 else (8, 16)
        if lo <= cal < up:
            a("s_waitcnt lgkmcnt(0)"); a(f"s_cmp_eq_u32 s56, {cal-base}"); a("s_cselect_b32 s88, s52, s88")
        if lo <= cal + 2 < up:
            a("s_lshl_b32 s58, s6, 4"); a("s_add_u32 s58, s58, s56")
            a(f"s_cmp_eq_u32 s58, {32+cal+2-base}"); a("s_cbranch_scc0 L_norep")
            a("s_waitcnt lgkmcnt(0)")
            a("s_sub_u32 s58, s52, s88"); a("s_min_u32 s58, s58, 0x7fff"); a("s_max_u32 s58, s58, 1"); a("s_pack_ll_b32_b16 s58, s52, s58")
            a("v_mov_b32 v61, s58"); a("s_lshl_b32 s58, s89, 2"); a("v_mov_b32 v60, s58"); a("s_mov_b64 exec, 1")
            a("global_store_dword v60, v61, s[84:85] sc1")
            a("s_mov_b64 exec, -1")
            a("L_norep:")
        if lo <= cal + 2 < up and pre:
            a("s_and_b32 s58, s7, 1"); a("s_lshl_b32 s58, s58, 4"); a("s_add_u32 s58, s58, s56")
            a(f"s_cmp_eq_u32 s58, {16+cal+2-base}"); a(f"s_cselect_b32 s19, {pre}, s19")
        x = "K" if base == 0 else "V"
        a("s_cmp_lg_u32 s50, 0"); a(f"s_cbranch_scc0 L_nocal{x}")
        if cal + 3 - base > max(lo - base, 0):
            a(f"s_cmp_ge_u32 s56, {cal+3-base}"); a(f"s_cbranch_scc0 L_nocal{x}")
        a("v_cmp_eq_u32 vcc, 0, v72"); a(f"s_cbranch_vccz L_cal{x}")
        a("v_lshlrev_b32 v60, 2, v1"); a("global_load_dword v72, v60, s[84:85] sc1")
        a(f"s_branch L_nocal{x}")
        a(f"L_cal{x}:")
        a("s_mov_b32 s50, 0")
        if ctl:
            a("s_waitcnt lgkmcnt(0)")
            a("s_mov_b32 s48, s52")
            a("v_bfe_u32 v60, v72, 16, 15"); a("v_subrev_u32 v61, s52, v72"); a("v_bfe_i32 v61, v61, 0, 16")
            allred("v_add_u32", "v60", "v62"); allred("v_add_u32", "v61", "v62")
            a("v_readfirstlane_b32 s57, v60"); a("v_readfirstlane_b32 s49, v61")
            if eps > 0: a(f"s_lshr_b32 s58, s57, {eps}"); a("s_add_u32 s57, s57, s58")
            if eps < 0: a(f"s_lshr_b32 s58, s57, {-eps}"); a("s_sub_u32 s57, s57, s58")
            a(f"s_add_u32 s58, s56, {base-cal-2}"); a("s_lshl_b32 s58, s58, 1"); a("s_mul_i32 s58, s58, s57")
            a("s_lshl_b32 s49, s49, 2"); a("s_add_u32 s49, s49, s58")
            a(f"s_mov_b32 s58, {slack*256}")
            a("s_cmp_eq_u32 s7, 1"); a(f"s_cselect_b32 s58, {(slack-head[0])*256}, s58")
            a("s_cmp_eq_u32 s7, 3"); a(f"s_cselect_b32 s58, {(slack-head[1])*256}, s58")
            a("s_add_u32 s49, s49, s58")
            if ahead: a(f"s_mov_b32 s93, {-ahead*256}")
        a(f"L_nocal{x}:")
    def laploop(name, head_code, consume, fin=0):
        others = [x for x in leads if x != D]
        a(".p2align 3")
        a(f"{name}:")
        head_code()
        if wov and fin: a("s_cmp_eq_u32 s56, s96"); a(f"s_cbranch_scc1 {name}_wo")
        decide(name, 0)
        segment(name, 0, D, consume)
        a(f"{name}_mid:")
        if fin: a("s_cmp_eq_u32 s56, 7"); a(f"s_cbranch_scc1 {name}_f")
        decide(name, 1)
        segment(name, 1, D, consume)
        a(f"{name}_nxt:")
        a("s_add_u32 s56, s56, 1"); a("s_cmp_lt_u32 s56, 8"); a(f"s_cbranch_scc1 {name}")
        a(f"s_branch {name}_end")
        for x in others:
            segment(name, 0, x, consume); a(f"s_branch {name}_mid")
            segment(name, 1, x, consume); a(f"s_branch {name}_nxt")
        if wov and fin:
            DD = D + wod
            a(f"{name}_wo:")
            a("s_add_u32 s49, s49, s57"); a("s_add_u32 s49, s49, s57")
            for j in range(leads[0], DD):
                a(f"s_cmp_gt_u32 s51, {j}"); a(f"s_cbranch_scc1 {name}_wi{j}")
                sload(j)
                a(f"{name}_wi{j}:")
            nskip = leads[-1] - DD
            for i in range(NB):
                a(f"s_waitcnt vmcnt({DD - 1 + min(i, DD)})")
                skip = i < nskip
                if skip: a(f"s_cmp_gt_u32 s51, {DD + i}"); a(f"s_cbranch_scc1 {name}_ws{i}")
                sload(i + DD)
                if skip: a(f"{name}_ws{i}:")
                if i == nskip: a(f"s_mov_b32 s51, {DD}")
                a(f"s_mov_b32 s58, {i*4096}")
                a(f"buffer_load_dwordx4 a[{4*i}:{4*i+3}], v59, s[24:27], s58 offen {wpol}")
                if i == NB - 1: a("s_memrealtime s[52:53]")
                consume(i)
            a(f"s_branch {name}_nxt")
        if fin:
            a(f"{name}_f:")
            for j in range(leads[0], leads[-1]):
                a(f"s_cmp_gt_u32 s51, {j}"); a(f"s_cbranch_scc1 {name}_f{j}")
                sload(16 + j)
                a(f"{name}_f{j}:")
            nx = 16 + leads[-1]
            while nx < min(16 + fin, NB): sload(nx); nx += 1
            if prescale:
                C("every wave has published its maximum and sum: this wave's weight v60 = exp2(m_w - m) / L")
                a("v_mov_b32 v48, 0"); a("s_waitcnt lgkmcnt(0)"); a("s_barrier")
                a(f"ds_read_b128 v[76:79], v48 offset:{L_ML}"); a(f"ds_read_b128 v[80:83], v48 offset:{L_ML+16}")
                a("s_waitcnt lgkmcnt(0)")
                a("v_min_f32 v48, v76, v78"); a("v_min3_f32 v48, v48, v80, v82")
                for w in range(4): a(f"v_sub_f32 v{76+2*w}, v48, v{76+2*w}")
                a("v_sub_f32 v60, v48, v64")
                for w in range(4): a(f"v_exp_f32 v{76+2*w}, v{76+2*w}")
                a("v_exp_f32 v60, v60")
                a("v_mul_f32 v49, v76, v77")
                for w in range(1, 4): a(f"v_fmac_f32 v49, v{76+2*w}, v{77+2*w}")
                a("v_rcp_f32 v49, v49")
                a("v_mul_f32 v60, v60, v49")
                if slide: a("v_accvgpr_mov_b32 a128, a0"); a("v_accvgpr_mov_b32 a129, a1")
            npf = 0
            for i in range(16, NB):
                a(f"s_waitcnt vmcnt({nx - 1 - i + npf})")
                if nx < NB: sload(nx); nx += 1
                elif mpf >= 2 and i >= pf0:
                    for x in range(mpf - 1):
                        if npf < 6:
                            k = npf
                            pfload(k); npf += 1
                consume(i)
        a(f"{name}_end:")
    if wov:
        a(f"s_mul_i32 s96, s5, {wov}"); a("s_lshr_b32 s96, s96, 5")
    C("s48 time base, s49 deadline (1/256 ticks), s50 reports seen, s51 depth in use, s[52:53] clock, s57 pace, s19 fixed deep segments")
    a(f"s_mov_b32 s56, {nwl+1}")
    a("s_memrealtime s[52:53]"); a(f"s_mov_b32 s51, {D}"); a("s_mov_b32 s50, 99"); a("s_mov_b32 s57, 0")
    a("s_mov_b32 s48, s18"); a("s_mov_b32 s49, 0x7fffffff"); a("s_mov_b32 s88, 0"); a(f"s_mov_b32 s93, {0 if initlow else 0x80000000}"); a("v_mov_b32 v72, 0")
    a("s_cmp_eq_u32 s7, 1"); a(f"s_cselect_b32 s19, {hiu[0]-4}, 0"); a("s_cmp_eq_u32 s7, 3"); a(f"s_cselect_b32 s19, {hiu[1]-4}, s19")
    def khead():
        lapstamp(16)
        a("s_mov_b32 s54, s55"); a(f"s_add_u32 s55, s55, {NB*4096}")
        a("s_cmp_eq_u32 s56, 7")
        a("s_cselect_b32 s12, s16, s12"); a("s_cselect_b32 s13, s17, s13"); a("s_cselect_b32 s55, 0, s55")
        for k in range(14): a(f"v_mov_b32 v{32+k}, v{34+k}")
        cal_events(0)
        if vt:
            a("s_lshl_b32 s58, s3, 4"); a("s_add_u32 s58, s58, s56")
            a(f"s_cmp_eq_u32 s58, {vt}"); a("s_cbranch_scc0 L_novt")
            a("v_mov_b32 v60, 0"); a("s_mov_b64 exec, 1")
            a("global_load_dword v76, v60, s[16:17] nt")
            a("s_mov_b64 exec, -1")
            a("L_novt:")
    laploop("L_k", khead, kconsume)
    stamp(5)
    C("---- maximum of this wave's scores, in log2 units, negated")
    allred("v_max_f32", "v64", "v48")
    a("v_mul_f32 v64, s91, v64"); a("v_sub_f32 v64, 0, v64")
    a("s_mov_b32 s8, s12"); a("s_mov_b32 s9, s13"); a("s_mov_b32 s56, 0")
    for r in range(4): a(f"v_mov_b32 v{28+r}, 0")
    def pfload(k):
        sr = f"s[{(40, 44, 20)[k >> 1]}:{(43, 47, 23)[k >> 1]}]"
        if xpf: a(f"buffer_load_dwordx4 a[132:135], {'v58' if k < 4 else 'v59'}, {sr}, s{(96 if k < 4 else 98) + (k & 1)} offen")
        else: a(f"buffer_load_dwordx4 a[132:135], v58, {sr}, s96 offen offset:{(k & 1) * 1024}")
    if mpf >= 2:
        C("every wave fetches a share of the FFN weights as its stream ends, so that their users find them in a cache")
        srd(20, 80, 81, 1792*1024)
        if xpf:
            a("s_lshr_b32 s98, s2, 3"); a("s_lshl_b32 s98, s98, 2"); a("s_add_u32 s98, s98, s3")
            a(f"s_mul_i32 s96, s98, {4*3584}"); a(f"s_add_u32 s97, s96, {2*3584}")
            a(f"s_mul_i32 s98, s98, {14*1024}"); a("s_add_u32 s99, s98, 8192")
            a("s_and_b32 s58, s2, 7"); a("s_mul_i32 s92, s58, 448"); a("s_and_b32 s92, s92, 0xff80"); a("s_lshl_b32 s58, s58, 7")
            a("v_lshrrev_b32 v58, 5, v1"); a("v_mul_u32_u24 v58, 3584, v58"); a("v_and_b32 v59, 31, v1"); a("v_lshl_add_u32 v58, v59, 4, v58"); a("v_add_u32 v58, s92, v58")
            a("v_lshrrev_b32 v59, 3, v1"); a("v_lshlrev_b32 v59, 10, v59"); a("v_and_b32 v48, 7, v1"); a("v_lshl_add_u32 v59, v48, 4, v59"); a("v_add_u32 v59, s58, v59")
        else:
            a("s_lshl_b32 s96, s2, 2"); a("s_add_u32 s96, s96, s3"); a("s_lshl_b32 s96, s96, 11"); a("v_lshlrev_b32 v58, 4, v1")
    def vhead():
        lapstamp(24)
        a("s_mov_b32 s54, s55"); a(f"s_add_u32 s55, s55, {NB*4096}")
        for k in range(2):
            a(f"v_fma_f32 v{56+k}, v{32+k}, s91, v64"); a(f"v_exp_f32 v{56+k}, v{56+k}")
            a(f"v_add_f32 v65, v65, v{56+k}"); a(f"v_cvt_pk_bf16_f32 v{66+k}, v{56+k}, v{56+k}")
        for k in range(14): a(f"v_mov_b32 v{32+k}, v{34+k}")
        masks(0, "v66", 0)
        cal_events(8)
        if lasthi:
            a(f"s_cmp_eq_u32 s56, {7 if lasthi == 1 else 6}"); a(f"s_cselect_b32 s19, {1 if lasthi == 1 else 3}, s19")
        if touch:
            C("first touch of the pages the last stages use, so that their translations are at hand (values unused)")
            a(f"s_cmp_eq_u32 s56, {touch}"); a("s_cbranch_scc0 L_notouch")
            a("v_mov_b32 v60, 0"); a("s_mov_b64 exec, 1")
            a(f"s_mov_b32 s58, {WS_G+0x7f00}")
            a("buffer_load_dword v76, v60, s[32:35], s58 offen")
            a("s_and_b32 s58, s7, 1"); a("s_cbranch_scc0 L_notouch1")
            a("buffer_load_dword v76, v60, s[36:39], 0 offen")
            a("buffer_load_dword v76, v60, s[40:43], 0 offen"); a("buffer_load_dword v76, v60, s[44:47], 0 offen")
            a("global_load_dword v76, v60, s[80:81]")
            a("L_notouch1:")
            a("s_mov_b64 exec, -1")
            a("L_notouch:")
        if cpf2:
            a(f"s_cmp_eq_u32 s56, {cpf2}"); a("s_cbranch_scc0 L_nocpf2")
            a("s_getpc_b64 s[60:61]")
            a("L_pc2:")
            a("s_add_u32 s60, s60, L_v_end-L_pc2"); a("s_addc_u32 s61, s61, 0"); a("s_and_b32 s60, s60, 0xffffff80")
            a("s_lshr_b32 s58, s2, 3"); a("s_lshl_b32 s58, s58, 8"); a("v_add_u32 v60, s58, v0"); a("v_lshlrev_b32 v60, 4, v60")
            a("v_cmp_gt_u32 vcc, L_end-L_v_end, v60"); a("s_and_saveexec_b64 s[62:63], vcc"); a("s_cbranch_execz L_nocpf3")
            a("global_load_dwordx4 v[76:79], v60, s[60:61]")
            a("L_nocpf3:")
            a("s_mov_b64 exec, -1")
            a("L_nocpf2:")
        a("s_cmp_eq_u32 s56, 7"); a("s_cbranch_scc0 L_nolast")
        allred("v_add_f32", "v65", "v48")
        a("s_lshl_b32 s58, s3, 3"); a("v_mov_b32 v48, s58"); a("s_mov_b64 exec, 1")
        a(f"ds_write_b64 v48, v[64:65] offset:{L_ML}")
        a("s_mov_b64 exec, -1")
        a("s_cmp_eq_u32 s50, 0"); a("s_cbranch_scc1 L_nolast")
        a(f"s_mov_b32 s88, {SPIN}"); a("v_lshlrev_b32 v60, 2, v1")
        a("L_cnt:")
        a("global_load_dword v72, v60, s[84:85] sc1"); a("s_waitcnt vmcnt(0)")
        a("v_cmp_eq_u32 vcc, 0, v72"); a("s_cbranch_vccz L_nolast")
        a("s_sleep 8"); a("s_sub_u32 s88, s88, 1"); a("s_cbranch_scc0 L_cnt")
        a("L_nolast:")
    def vconsume(i):
        mfma(28, mop(i), ring(i), False)
        if i < NB - 1: masks(i + 1, f"v{66 + ((i + 1) >> 4)}", bitrev((i + 1) & 15))
    if vpol is not None: cur[0] = vpol
    laploop("L_v", vhead, vconsume, fin)
    stamp(6)
    C("---- combine the four waves, project through wo, publish the partial row")
    if prescale:
        for r in range(4): a(f"v_mul_f32 v{28+r}, v{28+r}, v60")
        a("s_mov_b32 exec_hi, 0")
        a(f"ds_write_b128 v26, v[28:31] offset:{L_OP}")
        a("s_mov_b64 exec, -1")
        a("s_waitcnt lgkmcnt(0)"); a("s_barrier")
        for w in range(4): a(f"ds_read2st64_b32 v[{84+2*w}:{85+2*w}], v27 offset0:{L_OP//256+2*w} offset1:{L_OP//256+2*w+1}")
        a("s_waitcnt lgkmcnt(2)")
        for k in range(2): a(f"v_add_f32 v{84+k}, v{84+k}, v{86+k}")
        a("s_waitcnt lgkmcnt(0)")
        for k in range(2): a(f"v_add_f32 v{88+k}, v{88+k}, v{90+k}")
        for k in range(2): a(f"v_add_f32 v{56+k}, v{84+k}, v{88+k}")
        for k in range(2): a(f"v_cvt_pk_bf16_f32 v{66+k}, v{56+k}, v{56+k}")
    else:
        a("v_mov_b32 v48, 0")
        a("s_mov_b32 exec_hi, 0")
        a(f"ds_write_b128 v26, v[28:31] offset:{L_OP}")
        a("s_mov_b64 exec, -1")
        a("s_waitcnt lgkmcnt(0)"); a("s_barrier")
        a(f"ds_read_b128 v[76:79], v48 offset:{L_ML}"); a(f"ds_read_b128 v[80:83], v48 offset:{L_ML+16}")
        for w in range(4): a(f"ds_read2st64_b32 v[{84+2*w}:{85+2*w}], v27 offset0:{L_OP//256+2*w} offset1:{L_OP//256+2*w+1}")
        a("s_waitcnt lgkmcnt(4)")
        a("v_min_f32 v48, v76, v78"); a("v_min3_f32 v48, v48, v80, v82")
        for w in range(4): a(f"v_sub_f32 v{76+2*w}, v48, v{76+2*w}")
        for w in range(4): a(f"v_exp_f32 v{76+2*w}, v{76+2*w}")
        a("v_mul_f32 v49, v76, v77")
        for w in range(1, 4): a(f"v_fmac_f32 v49, v{76+2*w}, v{77+2*w}")
        a("v_rcp_f32 v49, v49")
        a("s_waitcnt lgkmcnt(0)")
        for k in range(2):
            a(f"v_mul_f32 v{56+k}, v76, v{84+k}")
            for w in range(1, 4): a(f"v_fmac_f32 v{56+k}, v{76+2*w}, v{84+2*w+k}")
        for k in range(2):
            a(f"v_mul_f32 v{56+k}, v{56+k}, v49"); a(f"v_cvt_pk_bf16_f32 v{66+k}, v{56+k}, v{56+k}")
    if slide:
        C("product t takes the upper half of row group t and the lower half of group t+1, so a selector pair serves two products")
        def sel(t):
            for r in range(2):
                a(f"v_and_b32_dpp v{128+2*t+r}, v{66 + ((t & 31) >> 4)}, v{14+2*(t&1)+r} row_newbcast:{t & 15} row_mask:0xf bank_mask:0xf")
        sel(0); sel(1); sel(2)
        for t in range(32):
            mfma(28 if t & 1 else 76, f"v[{128+2*t}:{131+2*t}]", f"a[{4*t+2}:{4*t+5}]", t < 2)
            if t + 3 <= 32: sel(t + 3)
        for r in range(4): a(f"v_permlane16_swap_b32 v{76+r}, v{76+r}")
        for r in range(4): a(f"v_add_f32 v{28+r}, v{28+r}, v{76+r}")
    else:
        masks(0, "v66", 0)
        for t in range(32):
            if t < 31: masks(t + 1, "v66" if t + 1 < 16 else "v67", (t + 1) & 15)
            mfma(28, mop(t), f"a[{4*t}:{4*t+3}]", t == 0)
    a("s_mov_b32 exec_hi, 0")
    for r in range(4): a(f"v_min_u32 v{28+r}, -2, v{28+r}")
    a("buffer_store_dwordx4 v[28:31], v68, s[32:35], 0 offen sc1")
    a("s_mov_b64 exec, -1")
    if mpf >= 2 and pf0 >= NB:
        for k in range(6): pfload(k)
    stamp(7)
    a("s_cmp_eq_u32 s6, 2"); a("s_cbranch_scc1 L_s2")
    a("s_and_b32 s58, s7, 1"); a("s_cbranch_scc0 L_fin")
    C("---- this workgroup's FFN weights -> LDS: A via s[40:43], B via s[44:47]; s96/s97 source, s98/s99 LDS, s100/s101 steps")
    a("s_cmp_eq_u32 s7, 1"); a("s_cbranch_scc0 L_dmaD")
    a("v_lshrrev_b32 v62, 2, v1"); a("s_movk_i32 s58, 3584"); a("v_mul_u32_u24 v62, s58, v62")
    a("v_and_b32 v63, 3, v1"); a("v_lshl_add_u32 v62, v63, 4, v62")
    a("s_lshl_b32 s58, s89, 6"); a("v_add_u32 v62, s58, v62")
    a(f"s_mul_i32 s96, s3, {128*3584}"); a("s_mov_b32 s97, s96")
    a("s_lshl_b32 s98, s3, 13"); a(f"s_add_u32 s98, s98, {L_W}"); a("s_add_u32 s99, s98, 32768")
    a(f"s_mov_b32 s100, {16*3584}"); a("s_mov_b32 s101, 1024"); a("s_mov_b32 s93, 8")
    a("s_branch L_dma")
    a("L_dmaD:")
    a("v_lshrrev_b32 v62, 1, v1"); a("v_lshlrev_b32 v62, 10, v62"); a("v_and_b32 v63, 1, v1"); a("v_lshl_add_u32 v62, v63, 4, v62")
    a("s_lshl_b32 s58, s89, 5"); a("v_add_u32 v62, s58, v62")
    for d in (40, 44):
        a(f"s_mov_b32 s{d}, s80"); a(f"s_mov_b32 s{d+1}, s81"); a(f"s_mov_b32 s{d+2}, {1792*1024}")
    a(f"s_mul_i32 s96, s3, {448*1024}"); a("s_add_u32 s97, s96, 32768")
    a(f"s_mul_i32 s98, s3, {448*32}"); a(f"s_add_u32 s98, s98, {L_W}"); a("s_add_u32 s99, s98, 1024")
    a("s_mov_b32 s100, 65536"); a("s_mov_b32 s101, 2048"); a("s_mov_b32 s93, 7")
    a("L_dma:")
    a("s_mov_b32 m0, s98"); a("s_sub_u32 s93, s93, 1")
    a(f"buffer_load_dwordx4 v62, s[40:43], s96 offen {fpol} lds")
    a("s_mov_b32 m0, s99"); a("s_add_u32 s96, s96, s100")
    a(f"buffer_load_dwordx4 v62, s[44:47], s97 offen {fpol} lds")
    a("s_add_u32 s97, s97, s100"); a("s_add_u32 s98, s98, s101"); a("s_add_u32 s99, s99, s101")
    a("s_cmp_lg_u32 s93, 0"); a("s_cbranch_scc1 L_dma")
    C("exchange addresses v63 = g*128 + b*16, v26 = w*512 + v63 ; v60 = 16g + r', v61 = c' for the transposing reads")
    a("v_and_b32 v27, 7, v75"); a("v_lshlrev_b32 v63, 4, v27"); a("v_lshl_add_u32 v63, v74, 7, v63")
    a("s_lshl_b32 s58, s3, 9"); a("v_add_u32 v26, s58, v63")
    a("v_lshrrev_b32 v60, 2, v75"); a("v_lshl_add_u32 v60, v74, 4, v60"); a("v_and_b32 v61, 3, v1")
    a("s_cmp_eq_u32 s7, 3"); a("s_cbranch_scc1 L_s4")

    C("---- gate / up: four tiles of 8+8 columns, 128 rows of h per wave; LayerNorm is applied to the sums")
    a("v_lshlrev_b32 v60, 6, v60"); a("v_lshrrev_b32 v49, 1, v61"); a("v_lshl_add_u32 v60, v49, 15, v60")
    a("v_and_b32 v49, 1, v61"); a("v_lshl_add_u32 v60, v49, 3, v60")
    a("s_lshl_b32 s58, s3, 13"); a(f"s_add_u32 s58, s58, {L_W}"); a("v_add_u32 v60, s58, v60")
    for r in range(4): a(f"v_mov_b32 v{112+r}, 0x3f803f80")
    C("h fragment address v62 = (g>>1)*512 + (b>>1)*128 + (b&1)*64 + (g&1)*32 + half*16")
    a("v_lshrrev_b32 v62, 1, v74"); a("v_lshlrev_b32 v62, 9, v62"); a("v_bfe_u32 v49, v75, 1, 2"); a("v_lshl_add_u32 v62, v49, 7, v62")
    a("v_and_b32 v49, 1, v75"); a("v_lshl_add_u32 v62, v49, 6, v62"); a("v_and_b32 v49, 1, v74"); a("v_lshl_add_u32 v62, v49, 5, v62")
    a("v_lshrrev_b32 v49, 3, v75"); a("v_lshl_add_u32 v62, v49, 4, v62")
    a(f"s_mov_b32 s58, {L_DUMP-L_T2}"); a("v_mad_u32_u24 v26, v49, s58, v26")
    a("s_lshl_b32 s58, s3, 11"); a("v_add_u32 v63, s58, v63")
    a("v_lshrrev_b32 v49, 1, v74"); a("v_lshlrev_b32 v49, 2, v49"); a("v_lshlrev_b32 v61, 5, v27"); a("v_add_u32 v49, v49, v61")
    a("s_lshl_b32 s58, s3, 3"); a("v_add_u32 v49, s58, v49")
    a("s_lshl_b32 s59, s3, 11"); a(f"s_add_u32 s59, s59, {WS_H}")
    def colsum():
        a("s_waitcnt lgkmcnt(0)")
        for k in range(4):
            for t in range(4): mfma(224 + 4*t, f"v[{128+16*t+4*k}:{131+16*t+4*k}]", "v[112:115]", k == 0)
        for t in range(4): a(f"ds_write_b128 v26, v[{224+4*t}:{227+4*t}] offset:{L_CS+2048*t}")
    if staged:
        for u in range(2):
            a(f"s_waitcnt vmcnt({8 - 8*u})")
            if u: stamp(13)
            for t in range(4):
                for hf in range(2):
                    for sec in range(2): trread(128 + 16*t + 8*u + 4*hf + 2*sec, "v60", (64*u + 8*hf + 4*sec) * 64 + 16*t)
                if t == 2: a("s_waitcnt lgkmcnt(6)")
            if u == 0: a("s_waitcnt lgkmcnt(0)")
    else:
        a("s_waitcnt vmcnt(0)")
        stamp(13)
        for t in range(4):
            for u in range(2):
                for hf in range(2):
                    for sec in range(2): trread(128 + 16*t + 8*u + 4*hf + 2*sec, "v60", (64*u + 8*hf + 4*sec) * 64 + 16*t)
            if t: a("s_waitcnt lgkmcnt(6)")
        a("s_waitcnt lgkmcnt(0)")
        for k in range(4):
            for t in range(4): mfma(224 + 4*t, f"v[{128+16*t+4*k}:{131+16*t+4*k}]", "v[112:115]", k == 0)
        for t in range(4): a(f"ds_write_b128 v26, v[{224+4*t}:{227+4*t}] offset:{L_CS+2048*t}")
    if cspre:
        a("s_waitcnt lgkmcnt(0)"); a("s_barrier")
        for w in range(4): a(f"ds_read_b128 v[{224+4*w}:{227+4*w}], v63 offset:{L_CS+512*w}")
        a("s_waitcnt lgkmcnt(0)")
        for r in range(4): a(f"v_add_f32 v{224+r}, v{224+r}, v{228+r}"); a(f"v_add_f32 v{232+r}, v{232+r}, v{236+r}")
        for r in range(4): a(f"v_add_f32 v{108+r}, v{224+r}, v{232+r}")
    def ldH(b): return [f"buffer_load_dwordx4 v[{b+4*u}:{b+3+4*u}], v62, s[32:35], s59 offen offset:{u*1024} sc1" for u in range(2)]
    def useH(b):
        n = 0
        for u in range(2):
            for t in range(4):
                for hf in range(2):
                    mfma(192 + 8*t + 4*hf, f"v[{128+16*t+8*u+4*hf}:{131+16*t+8*u+4*hf}]", f"v[{b+4*u}:{b+3+4*u}]", u == 0)
                    if n < 8:
                        a(f"v_dot2_f32_bf16 v52, v{b+n}, v112, {'0' if n == 0 else 'v52'}")
                        a(f"v_dot2_f32_bf16 v53, v{b+n}, v{b+n}, {'0' if n == 0 else 'v53'}")
                    if n == 9:
                        for r in range(2): a(f"v_add_f32_dpp v{52+r}, v{52+r}, v{52+r} row_ror:8 row_mask:0xf bank_mask:0xf")
                    if n == 11: a("v_permlane32_swap_b32 v52, v53"); a("v_add_f32 v52, v52, v53"); a("v_mov_b32 v53, v52")
                    if n == 13: a("v_permlane16_swap_b32 v52, v53"); a("v_add_f32 v52, v52, v53"); a(f"ds_write_b32 v49, v52 offset:{L_ST}")
                    n += 1
    poll2("L_pH", ldH, 8, (76, 84), useH, colsum if staged else None)
    stamp(10)
    for t in range(4):
        for r in range(4): a(f"v_add_f32_dpp v{192+8*t+r}, v{196+8*t+r}, v{192+8*t+r} row_ror:8 row_mask:0xf bank_mask:0xf")
        a(f"ds_write_b128 v26, v[{192+8*t}:{195+8*t}] offset:{L_T2+2048*t}")
    a("s_waitcnt lgkmcnt(0)"); a("s_barrier")
    for k in range(2): a(f"ds_read_b128 v[{92+4*k}:{95+4*k}], v61 offset:{L_ST+16*k}")
    if not cspre:
        for w in range(4): a(f"ds_read_b128 v[{224+4*w}:{227+4*w}], v63 offset:{L_CS+512*w}")
    for w in range(4): a(f"ds_read_b128 v[{116+4*w}:{119+4*w}], v63 offset:{L_T2+512*w}")
    a(f"s_waitcnt lgkmcnt({4 if cspre else 8})")
    for k in range(2): a(f"v_add_f32 v{92+k}, v{92+k}, v{94+k}"); a(f"v_add_f32 v{96+k}, v{96+k}, v{98+k}")
    a("v_add_f32 v52, v92, v96"); a("v_add_f32 v53, v93, v97")
    a(f"v_mul_f32 v52, {f32(1/512)}, v52"); a(f"v_mul_f32 v53, {f32(1/512)}, v53")
    a("v_fma_f32 v53, -v52, v52, v53"); a("v_max_f32 v53, 0, v53")
    bf16r("v53"); bf16r("v52")
    a(f"v_add_f32 v53, {f32(1e-5)}, v53"); bf16r("v53")
    a("v_sqrt_f32 v53, v53")
    if not cspre:
        a("s_waitcnt lgkmcnt(4)")
        for r in range(4): a(f"v_add_f32 v{224+r}, v{224+r}, v{228+r}"); a(f"v_add_f32 v{232+r}, v{232+r}, v{236+r}")
        bf16r("v53"); a("v_rcp_f32 v53, v53")
        for r in range(4): a(f"v_add_f32 v{108+r}, v{224+r}, v{232+r}")
    a("s_waitcnt lgkmcnt(0)")
    for r in range(4): a(f"v_add_f32 v{116+r}, v{116+r}, v{120+r}"); a(f"v_add_f32 v{124+r}, v{124+r}, v{128+r}")
    if cspre: bf16r("v53"); a("v_rcp_f32 v53, v53")
    for r in range(4): a(f"v_add_f32 v{116+r}, v{116+r}, v{124+r}")
    for r in range(4): a(f"v_fma_f32 v{116+r}, -v52, v{108+r}, v{116+r}")
    for r in range(4): a(f"v_mul_f32 v{116+r}, v{116+r}, v53")
    for r in range(2): a(f"v_cvt_pk_bf16_f32 v{120+r}, v{116+2*r}, v{117+2*r}")
    for r in range(2): a(f"v_permlane32_swap_b32 v{120+r}, v{122+r}")
    for r in range(2):
        a(f"v_lshlrev_b32 v{116+2*r}, 16, v{120+r}"); a(f"v_and_b32 v{117+2*r}, 0xffff0000, v{120+r}")
        a(f"v_lshlrev_b32 v{124+2*r}, 16, v{122+r}"); a(f"v_and_b32 v{125+2*r}, 0xffff0000, v{122+r}")
    for r in range(4): a(f"v_max_f32 v{116+r}, 0, v{116+r}")
    for r in range(4): a(f"v_mul_f32 v{116+r}, v{116+r}, v{124+r}")
    for r in range(2): a(f"v_cvt_pk_bf16_f32 v{120+r}, v{116+2*r}, v{117+2*r}")
    a("s_mov_b64 exec, 0x00ff00ff")
    for r in range(2): a(f"v_min_u32 v{120+r}, -2, v{120+r}")
    a("buffer_store_dwordx2 v[120:121], v70, s[32:35], 0 offen sc1")
    stamp(11)
    a("s_branch L_fin")

    C("---- reducer: sum the 32 heads' partials of 2 rows x 32 columns, add x, publish h")
    a("L_s2:")
    a("v_lshlrev_b32 v62, 4, v1")
    a("s_lshl_b32 s59, s89, 13"); a("s_add_u32 s92, s59, 4096")
    a("v_lshlrev_b32 v50, 16, v71"); a("v_and_b32 v51, 0xffff0000, v71")
    def ld8(b): return [f"buffer_load_dwordx4 v[{b+4*u}:{b+3+4*u}], v62, s[32:35], {'s59' if u < 4 else 's92'} offen offset:{(u&3)*1024} sc1" for u in range(8)]
    def useP(b):
        for r in range(16): a(f"v_add_f32 v{108+r}, v{b+r}, v{b+16+r}")
    poll2("L_pP", ld8, 32, (76, 128), useP)
    stamp(8)
    for st in (8, 4):
        for r in range(st): a(f"v_add_f32 v{108+r}, v{108+r}, v{108+st+r}")
    a("v_permlane32_swap_b32 v108, v110"); a("v_permlane32_swap_b32 v109, v111")
    a("v_add_f32 v108, v108, v110"); a("v_add_f32 v109, v109, v111")
    a("v_mov_b32 v110, v108"); a("v_mov_b32 v111, v109")
    a("v_permlane16_swap_b32 v108, v110"); a("v_permlane16_swap_b32 v109, v111")
    a("v_add_f32 v108, v108, v110"); a("v_add_f32 v109, v109, v111")
    a("v_cvt_pk_bf16_f32 v108, v108, v109")
    a("v_and_b32 v109, 0xffff0000, v108"); a("v_lshlrev_b32 v108, 16, v108")
    a("v_add_f32 v108, v108, v50"); a("v_add_f32 v109, v109, v51")
    a("v_cvt_pk_bf16_f32 v108, v108, v109")
    a("s_mov_b32 exec_lo, 0xffff"); a("s_mov_b32 exec_hi, 0xffff")
    a("v_min_u32 v108, -2, v108")
    a("buffer_store_dword v108, v69, s[32:35], 0 offen sc1")
    stamp(9)
    a("s_branch L_fin")

    C("---- 16 output columns, 448 rows of W_down per wave")
    a("L_s4:")
    a("v_lshlrev_b32 v60, 5, v60"); a("v_lshl_add_u32 v60, v61, 3, v60")
    a(f"s_mul_i32 s58, s3, {448*32}"); a(f"s_add_u32 s58, s58, {L_W}"); a("v_add_u32 v60, s58, v60")
    C("h address v49 = H + ((s'>>1)*4 + (b>>1))*128 + (b&1)*64 + (s'&1)*32 + g*8 ; out address v50 = b*1024 + s'*32 + g*8")
    a("v_lshrrev_b32 v49, 1, v27"); a("v_lshlrev_b32 v49, 7, v49"); a("v_and_b32 v50, 1, v27"); a("v_lshl_add_u32 v49, v50, 6, v49")
    a("v_lshl_add_u32 v49, v74, 3, v49")
    a("s_lshr_b32 s58, s89, 1"); a("s_lshl_b32 s58, s58, 9"); a("s_and_b32 s92, s89, 1"); a("s_lshl_b32 s92, s92, 5"); a("s_add_u32 s58, s58, s92")
    a(f"s_add_u32 s58, s58, {WS_H}"); a("v_add_u32 v49, s58, v49")
    a("v_lshlrev_b32 v50, 10, v27"); a("v_lshl_add_u32 v50, v74, 3, v50"); a("s_lshl_b32 s58, s89, 5"); a("v_add_u32 v50, s58, v50")
    a(f"s_mul_i32 s59, s3, {7*1024}"); a(f"s_add_u32 s59, s59, {WS_G}"); a("s_add_u32 s92, s59, 4096")
    a("v_lshlrev_b32 v62, 4, v1")
    if not staged: a("s_waitcnt vmcnt(0)"); stamp(13)
    for u in range(7):
        if staged: a(f"s_waitcnt vmcnt({12 - 2*u})")
        if staged and u == 6: stamp(13)
        for hf in range(2):
            for sec in range(2): trread(128 + 8*u + 4*hf + 2*sec, "v60", (64*u + 8*hf + 4*sec) * 32)
        if u in (2, 5): a("s_waitcnt lgkmcnt(4)")
    a("s_waitcnt lgkmcnt(0)")
    def ldG(b): return ld8(b)[:7] + [f"buffer_load_dwordx2 v[{b+28}:{b+29}], v49, s[32:35], 0 offen sc1"]
    def useG(b):
        for u in range(7):
            for hf in range(2): mfma(108 + 4*hf, f"v[{128+8*u+4*hf}:{131+8*u+4*hf}]", f"v[{b+4*u}:{b+3+4*u}]", u == 0)
        for r in range(2):
            a(f"v_lshlrev_b32 v{116+2*r}, 16, v{b+28+r}"); a(f"v_and_b32 v{117+2*r}, 0xffff0000, v{b+28+r}")
    poll2("L_pG", ldG, 30, (76, 192), useG)
    stamp(10)
    for r in range(4): a(f"v_add_f32_dpp v{108+r}, v{112+r}, v{108+r} row_ror:8 row_mask:0xf bank_mask:0xf")
    a("s_mov_b32 exec_lo, 0x00ff00ff"); a("s_mov_b32 exec_hi, 0x00ff00ff")
    a(f"ds_write_b128 v26, v[108:111] offset:{L_TX}")
    a("s_waitcnt lgkmcnt(0)"); a("s_barrier")
    a("s_cmp_eq_u32 s3, 3"); a("s_cbranch_scc0 L_fin")
    for w in range(4): a(f"ds_read_b128 v[{128+4*w}:{131+4*w}], v63 offset:{L_TX+512*w}")
    a("s_waitcnt lgkmcnt(0)")
    for r in range(4):
        a(f"v_add_f32 v{128+r}, v{128+r}, v{132+r}"); a(f"v_add_f32 v{136+r}, v{136+r}, v{140+r}")
    for r in range(4): a(f"v_add_f32 v{128+r}, v{128+r}, v{136+r}")
    for r in range(2): a(f"v_cvt_pk_bf16_f32 v{132+r}, v{128+2*r}, v{129+2*r}")
    for r in range(2):
        a(f"v_lshlrev_b32 v{128+2*r}, 16, v{132+r}"); a(f"v_and_b32 v{129+2*r}, 0xffff0000, v{132+r}")
    for r in range(4): a(f"v_add_f32 v{128+r}, v{128+r}, v{116+r}")
    for r in range(2): a(f"v_cvt_pk_bf16_f32 v{132+r}, v{128+2*r}, v{129+2*r}")
    a("buffer_store_dwordx2 v[132:133], v50, s[36:39], 0 offen")
    stamp(11)
    a("L_fin:")
    if probe is not None:
        a(f"s_cmp_eq_u32 s2, {pwg}"); a("s_cbranch_scc0 L_end"); a("s_cmp_eq_u32 s3, 3"); a("s_cbranch_scc0 L_end")
        if probe == 0: a("s_mov_b32 s20, 0")
        a("s_add_u32 s20, s20, 10000")
        a("L_probe:")
        a("s_sleep 4"); a("s_memrealtime s[94:95]"); a("s_waitcnt lgkmcnt(0)"); a("s_sub_u32 s94, s94, s18")
        a("s_cmp_lt_u32 s94, s20"); a("s_cbranch_scc1 L_probe")
    if stamps:
        a("s_mov_b64 exec, -1")
        stamp(12)
        a("s_getreg_b32 s92, hwreg(HW_REG_XCC_ID)"); a("v_writelane_b32 v73, s92, 15")
        a("s_lshl_b32 s58, s2, 2"); a("s_add_u32 s58, s58, s3"); a("s_lshl_b32 s58, s58, 7"); a(f"s_add_u32 s58, s58, {WS_ST}")
        a("v_lshlrev_b32 v48, 2, v1"); a("s_mov_b32 exec_hi, 0")
        a("buffer_store_dword v73, v48, s[32:35], s58 offen")
        if "dbgout" in xp:
            a("s_cmp_eq_u32 s2, 229"); a("s_cbranch_scc0 L_end"); a("s_cmp_eq_u32 s3, 3"); a("s_cbranch_scc0 L_end")
            a("v_subrev_u32 v73, s18, v73"); a("s_mov_b64 exec, 0xffff")
            a("global_store_dword v48, v73, s[84:85] sc1")
    a("L_end:")
    a("s_endpgm")
    body = a.finish()
    head_ = HEADER + f"; @launch grid=(256,1,1) block=(256,1,1) lds={L_SIZE}\n" + '.amdgcn_target "amdgcn-amd-amdhsa--gfx950"\n.text\n' + \
        DOC + f".globl {NAME}\n.p2align 8\n.type {NAME},@function\n"
    tail = f""".section .rodata,"a"
.p2align 6
.amdhsa_kernel {NAME}
  .amdhsa_next_free_vgpr 392
  .amdhsa_next_free_sgpr 102
  .amdhsa_accum_offset 256
  .amdhsa_group_segment_fixed_size 0
  .amdhsa_kernarg_size 96
  .amdhsa_user_sgpr_count 2
  .amdhsa_user_sgpr_kernarg_segment_ptr 1
  .amdhsa_system_sgpr_workgroup_id_x 1
.end_amdhsa_kernel
"""
    return head_ + body + tail

if __name__ == "__main__":
    kw = eval("dict(%s)" % (sys.argv[2] if len(sys.argv) > 2 else ""))
    open(sys.argv[1], "w").write(gen(**kw))
```

```python
import sys, struct
sys.path.insert(0, __file__.rsplit('/', 1)[0])
from asmlib import Asm

NAME = "sequential_preLN__mha_block_cached__glu_gated_reglu__decode_kernel"
HEADER = open(__file__.rsplit('/', 1)[0] + '/header.txt').read()

def f32(x): return "0x%08x" % struct.unpack('<I', struct.pack('<f', x))[0]

WS_P, WS_H, WS_G, WS_ST, WS_SIZE = 0, 0x80000, 0x82000, 0x100000, 0x140000
L_QP, L_OP, L_ML, L_ST, L_TX, L_T2, L_CS, L_W, L_DUMP, L_SIZE = 0, 2048, 4096, 4160, 4608, 8192, 16384, 24576, 90112, 106496
DOC = r"""; ---------------------------------------------------------------------------------------------------------
; ---------------------------------------------------------------------------------------------------------
"""
RING = 128
NB = 32
SPIN = 200000

def gen(D=5, hi=1, pol="nt", wpol="", fpol="", early=(2, 7, 12, 17), n1=7, kq=2, nbar=2, nA=3, nB=3, D1=None,
        stag=0, cpf2=0, fin=10, touch=0, cspre=0, wend=32, wov=0, wod=0, initlow=0, prescale=1, slide=1, staged=1, vt=0, lasthi=0, mpf=7, pf0=32, xpf=1, pfn=6, pfo=(0, 1, 2, 3, 4, 5), rskip=0, ctl=1, slack=80, k0=1, late=0, cpf=23, rot=0, nw=2, nwl=1, eps=0, head=(60, 80), hiu=(4, 4), cal=3, stamps=0, xp=(), probe=None, pwg=130, vpol=None, pre=0, ahead=0, r2=0, slack2=40):
    a = Asm()
    vm = []
    def C(t): a("; " + t)
    def vwait(tag):
        n = len(vm) - 1 - vm.index(tag)
        a(f"s_waitcnt vmcnt({min(n, 63)})")
    def stamp(k):
        if probe == k:
            a("s_memrealtime s[94:95]"); a("s_waitcnt lgkmcnt(0)"); a("s_sub_u32 s20, s94, s18")
        if stamps == 2 and k not in (6, 12): return
        if stamps == 3 and k not in (3, 4, 6, 12): return
        if stamps:
            a("s_memrealtime s[94:95]"); a("s_waitcnt lgkmcnt(0)"); a(f"v_writelane_b32 v73, s94, {k}")
    def lapstamp(off):
        if stamps == 3:
            a("s_memrealtime s[94:95]"); a(f"s_add_u32 m0, s56, {off}"); a("s_waitcnt lgkmcnt(0)"); a("v_writelane_b32 v73, s94, m0")
    def allred(op, v, t):
        for n in (8, 4, 2, 1): a(f"{op}_dpp {v}, {v}, {v} row_ror:{n} row_mask:0xf bank_mask:0xf")
        for sw in ("v_permlane16_swap_b32", "v_permlane32_swap_b32"):
            a(f"v_mov_b32 {t}, {v}"); a(f"{sw} {v}, {t}"); a(f"{op} {v}, {v}, {t}")
    def bf16r(v):
        a(f"v_cvt_pk_bf16_f32 {v}, {v}, {v}"); a(f"v_and_b32 {v}, 0xffff0000, {v}")
    def srd(d, lo, hi_, size, add=None):
        if add is None:
            a(f"s_mov_b32 s{d}, s{lo}"); a(f"s_mov_b32 s{d+1}, s{hi_}")
        else:
            a(f"s_add_u32 s{d}, s{lo}, {add}"); a(f"s_addc_u32 s{d+1}, s{hi_}, 0")
        a(f"s_mov_b32 s{d+2}, {size}"); a(f"s_mov_b32 s{d+3}, 0x20000")
    cur = [pol]
    def ring(j): j %= NB; return f"v[{RING+4*j}:{RING+4*j+3}]"
    def sload(j):
        s, b = ("s[12:15]", "s55") if j >= NB else ("s[8:11]", "s54")
        j %= NB
        a(f"buffer_load_dwordx4 {ring(j)}, v{2+(j>>2)}, {s}, {b} offen offset:{(j&3)*1024} {cur[0]}")
    def masks(t, src, lane):
        for r in range(4):
            a(f"v_and_b32_dpp v{18+4*(t&1)+r}, {src}, v{14+r} row_newbcast:{lane} row_mask:0xf bank_mask:0xf")
    def mop(t): return f"v[{18+4*(t&1)}:{21+4*(t&1)}]"
    def mfma(d, x, y, first): a(f"v_mfma_f32_16x16x32_bf16 v[{d}:{d+3}], {x}, {y}, {'0' if first else 'v[%d:%d]' % (d, d+3)}")
    def bitrev(t): return ((t & 1) << 3) | ((t & 2) << 1) | ((t & 4) >> 1) | ((t & 8) >> 3)
    def check(regs, ok):
        r = list(regs)
        a(f"v_max3_u32 v48, v{r[0]}, v{r[1]}, v{r[2]}"); r = r[3:]
        while len(r) >= 2:
            a(f"v_max3_u32 v48, v48, v{r[0]}, v{r[1]}"); r = r[2:]
        if r: a(f"v_max_u32 v48, v48, v{r[0]}")
        a("v_cmp_eq_u32 vcc, -1, v48")
        a(f"s_cbranch_vccz {ok}")
    def poll2(label, loads, nreg, bases, use, pre=None):
        n = len(loads(bases[0]))
        a(f"s_mov_b32 s88, {SPIN}")
        for l in loads(bases[0]): a(l)
        if stag: a(f"s_sleep {stag}")
        if pre: pre()
        a(f"{label}:")
        for l in loads(bases[1]): a(l)
        a(f"s_waitcnt vmcnt({n})")
        check(range(bases[0], bases[0] + nreg), f"{label}_A")
        for l in loads(bases[0]): a(l)
        a(f"s_waitcnt vmcnt({n})")
        check(range(bases[1], bases[1] + nreg), f"{label}_B")
        a("s_sub_u32 s88, s88, 1")
        a(f"s_cbranch_scc0 {label}")
        a(f"{label}_B:")
        use(bases[1])
        a(f"s_branch {label}_done")
        a(f"{label}_A:")
        use(bases[0])
        a(f"{label}_done:")
    def trread(dst, addr, off): a(f"ds_read_b64_tr_b16 v[{dst}:{dst+1}], {addr} offset:{off}")

    a(f"{NAME}:")
    a("s_cmp_ge_u32 s2, 256"); a("s_cbranch_scc1 L_end")
    a("s_memrealtime s[18:19]")
    a("s_load_dwordx16 s[64:79], s[0:1], 0")
    a("s_load_dwordx8 s[80:87], s[0:1], 64")
    if cpf:
        C("pull the kernel's own code towards this die's L2, one KiB per wave")
        a("s_getpc_b64 s[60:61]"); a("s_and_b32 s60, s60, 0xffffff00")
        a("s_lshr_b32 s58, s2, 3"); a("s_lshl_b32 s58, s58, 8"); a("v_add_u32 v60, s58, v0"); a("v_lshlrev_b32 v60, 4, v60")
        a(f"v_cmp_gt_u32 vcc, {cpf*1024}, v60"); a("s_and_saveexec_b64 s[62:63], vcc"); a("s_cbranch_execz L_nocpf")
        a("global_load_dwordx4 v[76:79], v60, s[60:61]")
        a("L_nocpf:")
        a("s_mov_b64 exec, -1")
    C("s3 wave, s4 batch row, s5 head; v1 lane, v74 lane>>4 (g), v75 lane&15 (i)")
    a("v_lshrrev_b32 v1, 6, v0")
    a("v_readfirstlane_b32 s3, v1")
    a("v_and_b32 v1, 63, v0")
    a("s_lshr_b32 s4, s2, 5"); a("s_and_b32 s5, s2, 31")
    a("v_lshrrev_b32 v74, 4, v1"); a("v_and_b32 v75, 15, v1")
    a("v_lshlrev_b32 v48, 4, v1")
    a("s_lshl_b32 s58, s3, 12"); a("v_add_u32 v2, s58, v48")
    for k in range(1, 8): a(f"v_add_u32 v{2+k}, {k*16384}, v2")
    a("s_lshl_b32 s58, s3, 8"); a("v_lshlrev_b32 v49, 3, v75"); a("v_lshl_add_u32 v49, v74, 1, v49"); a("v_add_u32 v49, s58, v49")
    a("v_lshrrev_b32 v51, 1, v74")
    C("wq lane offset v58 = (128w+g)*8192 + i*16 ; wo lane offset v59 = g*1024 + w*256 + i*16")
    a("s_lshl_b32 s58, s3, 20"); a("v_lshlrev_b32 v58, 13, v74"); a("v_lshl_add_u32 v58, v75, 4, v58"); a("v_add_u32 v58, s58, v58")
    a("s_lshl_b32 s58, s3, 8"); a("v_lshlrev_b32 v59, 10, v74"); a("v_lshl_add_u32 v59, v75, 4, v59"); a("v_add_u32 v59, s58, v59")
    a("s_lshl_b32 s57, s4, 10"); a("s_lshl_b32 s58, s5, 8"); a("s_lshl_b32 s59, s2, 20")
    a("s_sub_u32 s92, 0x400000, s58")
    a("s_mov_b32 s54, 0")
    a("s_waitcnt lgkmcnt(0)")
    if stamps: a("v_mov_b32 v73, 0"); a("v_writelane_b32 v73, s18, 0")
    kiss = 0
    def kload():
        nonlocal kiss
        sload(kiss - kbase); vm.append(f"k{kiss}"); kiss += 1
    kbase = 0
    srd(8, 66, 67, 0x100000, "s59")
    for j in range(k0): kload()
    srd(28, 64, 65, 8192)
    a("buffer_load_dwordx4 v[52:55], v48, s[28:31], s57 offen"); vm.append("x")
    a("buffer_load_ushort v56, v49, s[28:31], s57 offen"); vm.append("xc0")
    a("buffer_load_ushort v57, v49, s[28:31], s57 offen offset:128"); vm.append("xc1")
    srd(20, 70, 71, "s92", "s58")
    wiss = 0
    def wqload():
        nonlocal wiss
        a(f"s_mov_b32 s58, {wiss*32768}")
        a(f"buffer_load_dwordx4 a[{4*wiss}:{4*wiss+3}], v58, s[20:23], s58 offen {wpol}"); vm.append(f"wq{wiss}"); wiss += 1
    for j in range(n1):
        if j: kload()
        for x in range(nw): wqload()
    a("s_add_u32 s16, s68, s59"); a("s_addc_u32 s17, s69, 0")
    a("s_mov_b32 s12, s8"); a("s_mov_b32 s13, s9"); a("s_mov_b32 s14, 0x100000"); a("s_mov_b32 s15, 0x20000")
    a("s_lshl_b32 s58, s5, 17"); srd(24, 72, 73, 0x20000, "s58")
    def setup_late():
        a("v_lshrrev_b32 v77, 1, v74"); a("v_lshlrev_b32 v78, 4, v1")
        srd(32, 86, 87, WS_SIZE); srd(36, 82, 83, 8192)
        srd(40, 76, 77, 512*3584); srd(44, 78, 79, 512*3584)
        C("role s7 / index s89: 1 gate+up tiles (wg<56), 2 reducer (64<=wg<128), 3 output slice (wg>=224), 0 none")
        a("s_and_b32 s58, s2, 7"); a("s_lshr_b32 s92, s2, 3")
        a("s_mul_i32 s89, s58, 7"); a("s_add_u32 s89, s89, s92")
        a("s_cmp_lt_u32 s2, 56"); a("s_cselect_b32 s7, 1, 0")
        a("s_lshl_b32 s58, s58, 2"); a("s_add_u32 s58, s58, s92"); a("s_sub_u32 s58, s58, 28")
        a("s_cmp_ge_u32 s2, 224"); a("s_cselect_b32 s89, s58, s89"); a("s_cselect_b32 s7, 3, s7")
        a("s_sub_u32 s58, s2, 64"); a("s_cmp_lt_u32 s58, 64"); a("s_cselect_b32 s89, s58, s89"); a("s_cselect_b32 s7, 2, s7")
        a("s_lshl_b32 s6, s3, 2"); a("s_add_u32 s6, s6, s7")
        C("P store offset v68 = ((4w + (i>>2))*4 + (b>>1))*8192 + (2h + (b&1))*128 + (i&3)*32 + g*16")
        a("v_lshrrev_b32 v68, 2, v75"); a("v_lshlrev_b32 v68, 15, v68"); a("v_lshl_add_u32 v68, v74, 4, v68")
        a("v_and_b32 v60, 3, v75"); a("v_lshl_add_u32 v68, v60, 5, v68")
        a("s_lshl_b32 s58, s3, 17"); a("s_lshr_b32 s92, s4, 1"); a("s_lshl_b32 s92, s92, 13"); a("s_add_u32 s58, s58, s92")
        a("s_lshl_b32 s92, s5, 8"); a("s_add_u32 s58, s58, s92")
        a("s_and_b32 s92, s4, 1"); a("s_lshl_b32 s92, s92, 7"); a("s_add_u32 s58, s58, s92"); a("v_add_u32 v68, s58, v68")
        C("H store offset v69 = H + rho*128 + i*8 + (g>>1)*4 ; x offset v76 = (2(rho&3) + (i>>3))*1024 + (rho>>2)*64 + (i&7)*8 + (g>>1)*4")
        a("v_lshlrev_b32 v69, 3, v75"); a("v_lshl_add_u32 v69, v77, 2, v69")
        a("v_lshrrev_b32 v76, 3, v75"); a("v_lshlrev_b32 v76, 10, v76"); a("v_and_b32 v60, 7, v75"); a("v_lshl_add_u32 v76, v60, 3, v76")
        a("v_lshl_add_u32 v76, v77, 2, v76")
        a("s_and_b32 s58, s89, 3"); a("s_lshl_b32 s58, s58, 11"); a("s_lshr_b32 s92, s89, 2"); a("s_lshl_b32 s92, s92, 6"); a("s_add_u32 s58, s58, s92")
        a("v_add_u32 v76, s58, v76")
        a("s_lshl_b32 s58, s89, 7"); a(f"s_add_u32 s58, s58, {WS_H}"); a("v_add_u32 v69, s58, v69")
        a("buffer_load_dword v71, v76, s[28:31], 0 offen"); vm.append("xr")
        C("G store offset v70 = G + (4*s89 + w)*128 + i*16 + g*8")
        a("v_lshlrev_b32 v70, 4, v75"); a("v_lshl_add_u32 v70, v74, 3, v70")
        a("s_lshl_b32 s58, s89, 2"); a("s_add_u32 s58, s58, s3"); a("s_lshl_b32 s58, s58, 7"); a(f"s_add_u32 s58, s58, {WS_G}"); a("v_add_u32 v70, s58, v70")
        C("wave 0 of the reducers marks every hand-off line empty (all ones): own P lines, own H line, four G lines")
        a("s_cmp_eq_u32 s6, 2"); a("s_cbranch_scc0 L_noclr")
        for r in range(4): a(f"v_mov_b32 v{60+r}, -1")
        a("s_lshl_b32 s58, s89, 13"); a("s_add_u32 s92, s58, 4096")
        for u in range(8): a(f"buffer_store_dwordx4 v[60:63], v78, s[32:35], {'s58' if u < 4 else 's92'} offen offset:{(u&3)*1024} sc1")
        a("s_lshl_b32 s58, s89, 9"); a(f"s_add_u32 s58, s58, {WS_G}"); a("s_mov_b32 exec_hi, 0")
        a("buffer_store_dwordx4 v[60:63], v78, s[32:35], s58 offen sc1")
        a("s_lshl_b32 s58, s89, 7"); a(f"s_add_u32 s58, s58, {WS_H}"); a("s_mov_b32 exec_lo, 0xff")
        a("buffer_store_dwordx4 v[60:63], v78, s[32:35], s58 offen sc1")
        a("s_mov_b64 exec, -1")
        a("L_noclr:")
    if not late:
        srd(32, 86, 87, WS_SIZE); srd(36, 82, 83, 8192)
        srd(40, 76, 77, 512*3584); srd(44, 78, 79, 512*3584)
        C("role s7 / index s89: 1 gate+up tiles (wg<56), 2 reducer (64<=wg<128), 3 output slice (wg>=224), 0 none")
        a("s_and_b32 s58, s2, 7"); a("s_lshr_b32 s92, s2, 3")
        a("s_mul_i32 s89, s58, 7"); a("s_add_u32 s89, s89, s92")
        a("s_cmp_lt_u32 s2, 56"); a("s_cselect_b32 s7, 1, 0")
        a("s_lshl_b32 s58, s58, 2"); a("s_add_u32 s58, s58, s92"); a("s_sub_u32 s58, s58, 28")
        a("s_cmp_ge_u32 s2, 224"); a("s_cselect_b32 s89, s58, s89"); a("s_cselect_b32 s7, 3, s7")
        a("s_sub_u32 s58, s2, 64"); a("s_cmp_lt_u32 s58, 64"); a("s_cselect_b32 s89, s58, s89"); a("s_cselect_b32 s7, 2, s7")
        a("s_lshl_b32 s6, s3, 2"); a("s_add_u32 s6, s6, s7")
        C("P store offset v68 = ((4w + (i>>2))*4 + (b>>1))*8192 + (2h + (b&1))*128 + (i&3)*32 + g*16")
        a("v_lshrrev_b32 v68, 2, v75"); a("v_lshlrev_b32 v68, 15, v68"); a("v_lshl_add_u32 v68, v74, 4, v68")
        a("v_and_b32 v60, 3, v75"); a("v_lshl_add_u32 v68, v60, 5, v68")
        a("s_lshl_b32 s58, s3, 17"); a("s_lshr_b32 s92, s4, 1"); a("s_lshl_b32 s92, s92, 13"); a("s_add_u32 s58, s58, s92")
        a("s_lshl_b32 s92, s5, 8"); a("s_add_u32 s58, s58, s92")
        a("s_and_b32 s92, s4, 1"); a("s_lshl_b32 s92, s92, 7"); a("s_add_u32 s58, s58, s92"); a("v_add_u32 v68, s58, v68")
        C("H store offset v69 = H + rho*128 + i*8 + (g>>1)*4 ; x offset v50 = (2(rho&3) + (i>>3))*1024 + (rho>>2)*64 + (i&7)*8 + (g>>1)*4")
        a("v_lshlrev_b32 v69, 3, v75"); a("v_lshl_add_u32 v69, v51, 2, v69")
        a("v_lshrrev_b32 v50, 3, v75"); a("v_lshlrev_b32 v50, 10, v50"); a("v_and_b32 v60, 7, v75"); a("v_lshl_add_u32 v50, v60, 3, v50")
        a("v_lshl_add_u32 v50, v51, 2, v50")
        a("s_and_b32 s58, s89, 3"); a("s_lshl_b32 s58, s58, 11"); a("s_lshr_b32 s92, s89, 2"); a("s_lshl_b32 s92, s92, 6"); a("s_add_u32 s58, s58, s92")
        a("v_add_u32 v50, s58, v50")
        a("s_lshl_b32 s58, s89, 7"); a(f"s_add_u32 s58, s58, {WS_H}"); a("v_add_u32 v69, s58, v69")
        a("buffer_load_dword v71, v50, s[28:31], 0 offen"); vm.append("xr")
        C("G store offset v70 = G + (4*s89 + w)*128 + i*16 + g*8")
        a("v_lshlrev_b32 v70, 4, v75"); a("v_lshl_add_u32 v70, v74, 3, v70")
        a("s_lshl_b32 s58, s89, 2"); a("s_add_u32 s58, s58, s3"); a("s_lshl_b32 s58, s58, 7"); a(f"s_add_u32 s58, s58, {WS_G}"); a("v_add_u32 v70, s58, v70")
        C("the reducers mark every hand-off line empty (all ones): own P lines, own H line, four G lines")
        a("s_cmp_eq_u32 s7, 2"); a("s_cbranch_scc0 L_noclr")
        for r in range(4): a(f"v_mov_b32 v{60+r}, -1")
        a("s_lshl_b32 s58, s89, 13"); a("s_lshl_b32 s92, s3, 11"); a("s_add_u32 s58, s58, s92")
        a("buffer_store_dwordx4 v[60:63], v48, s[32:35], s58 offen sc1")
        a("buffer_store_dwordx4 v[60:63], v48, s[32:35], s58 offen offset:1024 sc1")
        a("s_mov_b64 exec, 0x00ff00ff")
        a("buffer_store_dwordx2 v[60:61], v70, s[32:35], 0 offen sc1")
        a("s_cmp_eq_u32 s3, 0"); a("s_cbranch_scc0 L_noclr")
        a("s_mov_b32 exec_lo, 0xffff"); a("s_mov_b32 exec_hi, 0xffff")
        a("buffer_store_dword v60, v69, s[32:35], 0 offen sc1")
        a("L_noclr:")
        a("s_mov_b64 exec, -1")
    for j in range(nA): kload()
    stamp(1)
    a("s_mov_b32 s60, 0xcccccccc"); a("s_mov_b32 s61, 0xcccccccc"); a("s_mov_b32 s62, 0xaaaaaaaa"); a("s_mov_b32 s63, 0xaaaaaaaa")
    a(f"s_mov_b32 s90, {f32(128 ** -0.5)}"); a(f"s_mov_b32 s91, {f32(1.4426950408889634)}")
    C("selector masks v14..17: lane (g,m): m<8 and m>>1==r -> m&1 ? 0xffff0000 : 0xffff")
    a("v_and_b32 v60, 1, v75"); a("v_lshlrev_b32 v60, 4, v60"); a("v_mov_b32 v61, 0xffff"); a("v_lshlrev_b32 v60, v60, v61")
    a("v_lshrrev_b32 v61, 1, v75")
    for r in range(4):
        a(f"v_cmp_eq_u32 vcc, {r}, v61"); a(f"v_cndmask_b32 v{14+r}, 0, v60, vcc")
    C("---- LayerNorm of x[b]")
    vwait("x")
    for j in range(nB): kload()
    for k in range(4):
        a(f"v_lshlrev_b32 v{76+2*k}, 16, v{52+k}"); a(f"v_and_b32 v{77+2*k}, 0xffff0000, v{52+k}")
    a("v_add_f32 v84, v76, v77")
    for k in range(2, 8): a(f"v_add_f32 v84, v84, v{76+k}")
    allred("v_add_f32", "v84", "v85")
    a(f"v_mul_f32 v84, {f32(1/512)}, v84")
    for k in range(8): a(f"v_sub_f32 v{76+k}, v{76+k}, v84")
    a("v_mul_f32 v86, v76, v76")
    for k in range(1, 8): a(f"v_fmac_f32 v86, v{76+k}, v{76+k}")
    allred("v_add_f32", "v86", "v85")
    a(f"v_mul_f32 v86, {f32(1/512)}, v86")
    bf16r("v84"); bf16r("v86")
    a(f"v_add_f32 v86, {f32(1e-5)}, v86"); bf16r("v86")
    a("v_sqrt_f32 v86, v86"); bf16r("v86"); a("v_rcp_f32 v86, v86")
    vwait("xc1")
    for k in range(2):
        a(f"v_lshlrev_b32 v{56+k}, 16, v{56+k}"); a(f"v_sub_f32 v{56+k}, v{56+k}, v84"); bf16r(f"v{56+k}")
        a(f"v_mul_f32 v{56+k}, v{56+k}, v86"); a(f"v_cvt_pk_bf16_f32 v{66+k}, v{56+k}, v{56+k}")
    stamp(2)
    C("---- q = xn @ wq[:, head], 128 rows per wave")
    masks(0, "v66", 0)
    for t in range(32):
        vwait(f"wq{t}")
        mfma(28, mop(t), f"a[{4*t}:{4*t+3}]", t == 0)
        if wiss < 32: wqload()
        if int((t + 1) / kq) > int(t / kq) and kiss < NB: kload()
        if t < 31: masks(t + 1, "v66" if t + 1 < 16 else "v67", (t + 1) & 15)
    for j in range(nbar):
        if kiss < NB: kload()
    a("v_lshlrev_b32 v27, 5, v75"); a("v_lshl_add_u32 v26, v74, 4, v27"); a("s_lshl_b32 s58, s3, 9"); a("v_add_u32 v26, s58, v26")
    a("s_mov_b32 exec_hi, 0")
    a(f"ds_write_b128 v26, v[28:31] offset:{L_QP}")
    a("s_mov_b64 exec, -1")
    a("s_waitcnt lgkmcnt(0)"); a("s_barrier")
    for w in range(4):
        for hh in range(2): a(f"ds_read_b128 v[{76+8*w+4*hh}:{79+8*w+4*hh}], v27 offset:{L_QP+512*w+16*hh}")
    a("s_waitcnt lgkmcnt(0)")
    for k in range(8):
        a(f"v_add_f32 v{76+k}, v{76+k}, v{84+k}"); a(f"v_add_f32 v{92+k}, v{92+k}, v{100+k}")
    for k in range(8): a(f"v_add_f32 v{76+k}, v{76+k}, v{92+k}")
    for k in range(4): a(f"v_cvt_pk_bf16_f32 v{10+k}, v{76+2*k}, v{77+2*k}")
    a("v_lshlrev_b32 v27, 4, v75"); a("v_lshl_add_u32 v27, v74, 2, v27")
    a("v_mov_b32 v64, 0xff800000"); a("v_mov_b32 v65, 0")
    stamp(3)

    def kconsume(i):
        t = i & 15
        x = f"v{48 + (t & 1)}"
        base = RING + 4 * i
        a(f"v_dot2_f32_bf16 {x}, v{base}, v10, 0")
        for r in range(1, 4): a(f"v_dot2_f32_bf16 {x}, v{base+r}, v{10+r}, {x}")
        if t & 1:
            d = f"v{50 + ((t >> 1) & 1)}"
            a(f"v_add_f32_dpp {d}, v48, v48 row_ror:8 row_mask:0xf bank_mask:0x3")
            a(f"v_add_f32_dpp {d}, v49, v49 row_ror:8 row_mask:0xf bank_mask:0xc")
        if t & 3 == 3:
            d = f"v{52 + ((t >> 2) & 1)}"
            a(f"v_add_f32_dpp {d}, v50, v50 row_half_mirror row_mask:0xf bank_mask:0x5")
            a(f"v_add_f32_dpp {d}, v51, v51 row_half_mirror row_mask:0xf bank_mask:0xa")
        if t & 7 == 7:
            d = f"v{54 + ((t >> 3) & 1)}"
            a("v_add_f32_dpp v52, v52, v52 quad_perm:[2,3,0,1] row_mask:0xf bank_mask:0xf")
            a("v_add_f32_dpp v53, v53, v53 quad_perm:[2,3,0,1] row_mask:0xf bank_mask:0xf")
            a(f"v_cndmask_b32 {d}, v52, v53, s[60:61]")
        if t == 15:
            s = f"v{46 + (i >> 4)}"
            a("v_add_f32_dpp v54, v54, v54 quad_perm:[1,0,3,2] row_mask:0xf bank_mask:0xf")
            a("v_add_f32_dpp v55, v55, v55 quad_perm:[1,0,3,2] row_mask:0xf bank_mask:0xf")
            a(f"v_cndmask_b32 {s}, v54, v55, s[62:63]")
            bf16r(s); a(f"v_mul_f32 {s}, s90, {s}"); bf16r(s)
            a(f"v_max_f32 v64, v64, {s}")
    C("---- lap 0: the keys that arrived while q was formed")
    a(f"s_mov_b32 s55, {NB*4096}")
    left = NB + D - kiss
    early = list(early)
    while early and early[-1] >= NB - (left - len(early)): early.pop()
    sched = early + list(range(NB - (left - len(early)), NB))
    assert len(set(sched)) == left, (sched, left)
    for i in range(NB):
        vwait(f"k{i}")
        if i in sched:
            assert kiss - NB < i
            kload()
        kconsume(i)
    stamp(4)
    C("---- the next laps also bring in this head's rows of wo")
    wo = 0
    if wov: nwl = 0; wo = 32
    for lap in range(1, nwl + 1):
        a("s_mov_b32 s54, s55"); a(f"s_add_u32 s55, s55, {NB*4096}")
        for k in range(2 * lap): a(f"v_mov_b32 v{46-2*lap+k}, v{48-2*lap+k}")
        kbase = NB * lap
        if lap == 1:
            for j in range((D1 or D) - D): kload()
        for i in range(NB):
            vwait(f"k{NB*lap+i}")
            if kiss < (nwl + 1) * NB + D: kload()
            while wo < 32 and (i % nwl == 0 if wend == 32 else wo * wend < (i + 1) * 32) and (wend < 32 or wo * nwl <= NB * (lap - 1) + i):
                a(f"s_mov_b32 s58, {wo*4096}")
                a(f"buffer_load_dwordx4 a[{4*wo}:{4*wo+3}], v59, s[24:27], s58 offen {wpol}"); vm.append(f"wo{wo}"); wo += 1
            if mpf == 1 and lap == 1:
                if i == 0:
                    srd(20, 80, 81, 1792*1024)
                    a("s_lshl_b32 s96, s2, 2"); a("s_add_u32 s96, s96, s3"); a("s_lshl_b32 s96, s96, 11"); a("v_lshlrev_b32 v62, 4, v1")
                if i % 5 == 2 and i // 5 < 6:
                    k = i // 5
                    a(f"buffer_load_dwordx4 v[76:79], v62, s[{(40, 44, 20)[k >> 1]}:{(43, 47, 23)[k >> 1]}], s96 offen offset:{(k & 1) * 1024}"); vm.append(f"pf{k}")
            kconsume(i)
            if late and lap == 1 and i == 4: setup_late()
    assert wo == 32

    leads = ([D - 1] if ahead else []) + [D, D + hi]
    def decide(name, k):
        a("s_waitcnt lgkmcnt(0)")
        a("s_sub_u32 s58, s52, s48"); a("s_lshl_b32 s58, s58, 8"); a("s_sub_u32 s58, s58, s49"); a("s_add_u32 s49, s49, s57")
        a("s_sub_u32 s19, s19, 1"); a("s_cmp_ge_i32 s19, 0"); a("s_cselect_b32 s58, 1, s58")
        a("s_cmp_gt_i32 s58, 0"); a(f"s_cbranch_scc1 {name}_{k}_{D+hi}")
        if ahead:
            a("s_cmp_lt_i32 s58, s93"); a(f"s_cbranch_scc1 {name}_{k}_{D-1}")
    def segment(name, k, DD, consume):
        tag = f"{name}_{k}_{DD}"; i0 = 16 * k
        a(f"{tag}:")
        for j in range(leads[0], DD):
            a(f"s_cmp_gt_u32 s51, {j}"); a(f"s_cbranch_scc1 {tag}_i{j}")
            sload(i0 + j)
            a(f"{tag}_i{j}:")
        nskip = leads[-1] - DD
        for i in range(i0, i0 + 16):
            a(f"s_waitcnt vmcnt({DD - 1})")
            skip = i - i0 < nskip
            if skip: a(f"s_cmp_gt_u32 s51, {DD + i - i0}"); a(f"s_cbranch_scc1 {tag}_s{i}")
            sload(i + DD)
            if skip: a(f"{tag}_s{i}:")
            if i - i0 == nskip: a(f"s_mov_b32 s51, {DD}")
            if i - i0 == 15: a("s_memrealtime s[52:53]")
            consume(i)
    def cal_events(base):
        lo, up = (nwl + 1, 8) if base == 0 else (8, 16)
        if lo <= cal < up:
            a("s_waitcnt lgkmcnt(0)"); a(f"s_cmp_eq_u32 s56, {cal-base}"); a("s_cselect_b32 s88, s52, s88")
        if lo <= cal + 2 < up:
            a("s_lshl_b32 s58, s6, 4"); a("s_add_u32 s58, s58, s56")
            a(f"s_cmp_eq_u32 s58, {32+cal+2-base}"); a("s_cbranch_scc0 L_norep")
            a("s_waitcnt lgkmcnt(0)")
            a("s_sub_u32 s58, s52, s88"); a("s_min_u32 s58, s58, 0x7fff"); a("s_max_u32 s58, s58, 1"); a("s_pack_ll_b32_b16 s58, s52, s58")
            a("v_mov_b32 v61, s58"); a("s_lshl_b32 s58, s89, 2"); a("v_mov_b32 v60, s58"); a("s_mov_b64 exec, 1")
            a("global_store_dword v60, v61, s[84:85] sc1")
            a("s_mov_b64 exec, -1")
            a("L_norep:")
        if lo <= cal + 2 < up and pre:
            a("s_and_b32 s58, s7, 1"); a("s_lshl_b32 s58, s58, 4"); a("s_add_u32 s58, s58, s56")
            a(f"s_cmp_eq_u32 s58, {16+cal+2-base}"); a(f"s_cselect_b32 s19, {pre}, s19")
        x = "K" if base == 0 else "V"
        a("s_cmp_lg_u32 s50, 0"); a(f"s_cbranch_scc0 L_nocal{x}")
        if cal + 3 - base > max(lo - base, 0):
            a(f"s_cmp_ge_u32 s56, {cal+3-base}"); a(f"s_cbranch_scc0 L_nocal{x}")
        a("v_cmp_eq_u32 vcc, 0, v72"); a(f"s_cbranch_vccz L_cal{x}")
        a("v_lshlrev_b32 v60, 2, v1"); a("global_load_dword v72, v60, s[84:85] sc1")
        a(f"s_branch L_nocal{x}")
        a(f"L_cal{x}:")
        a("s_mov_b32 s50, 0")
        if ctl:
            a("s_waitcnt lgkmcnt(0)")
            a("s_mov_b32 s48, s52")
            a("v_bfe_u32 v60, v72, 16, 15"); a("v_subrev_u32 v61, s52, v72"); a("v_bfe_i32 v61, v61, 0, 16")
            allred("v_add_u32", "v60", "v62"); allred("v_add_u32", "v61", "v62")
            a("v_readfirstlane_b32 s57, v60"); a("v_readfirstlane_b32 s49, v61")
            if eps > 0: a(f"s_lshr_b32 s58, s57, {eps}"); a("s_add_u32 s57, s57, s58")
            if eps < 0: a(f"s_lshr_b32 s58, s57, {-eps}"); a("s_sub_u32 s57, s57, s58")
            a(f"s_add_u32 s58, s56, {base-cal-2}"); a("s_lshl_b32 s58, s58, 1"); a("s_mul_i32 s58, s58, s57")
            a("s_lshl_b32 s49, s49, 2"); a("s_add_u32 s49, s49, s58")
            a(f"s_mov_b32 s58, {slack*256}")
            a("s_cmp_eq_u32 s7, 1"); a(f"s_cselect_b32 s58, {(slack-head[0])*256}, s58")
            a("s_cmp_eq_u32 s7, 3"); a(f"s_cselect_b32 s58, {(slack-head[1])*256}, s58")
            a("s_add_u32 s49, s49, s58")
            if ahead: a(f"s_mov_b32 s93, {-ahead*256}")
        a(f"L_nocal{x}:")
    def laploop(name, head_code, consume, fin=0):
        others = [x for x in leads if x != D]
        a(".p2align 3")
        a(f"{name}:")
        head_code()
        if wov and fin: a("s_cmp_eq_u32 s56, s96"); a(f"s_cbranch_scc1 {name}_wo")
        decide(name, 0)
        segment(name, 0, D, consume)
        a(f"{name}_mid:")
        if fin: a("s_cmp_eq_u32 s56, 7"); a(f"s_cbranch_scc1 {name}_f")
        decide(name, 1)
        segment(name, 1, D, consume)
        a(f"{name}_nxt:")
        a("s_add_u32 s56, s56, 1"); a("s_cmp_lt_u32 s56, 8"); a(f"s_cbranch_scc1 {name}")
        a(f"s_branch {name}_end")
        for x in others:
            segment(name, 0, x, consume); a(f"s_branch {name}_mid")
            segment(name, 1, x, consume); a(f"s_branch {name}_nxt")
        if wov and fin:
            DD = D + wod
            a(f"{name}_wo:")
            a("s_add_u32 s49, s49, s57"); a("s_add_u32 s49, s49, s57")
            for j in range(leads[0], DD):
                a(f"s_cmp_gt_u32 s51, {j}"); a(f"s_cbranch_scc1 {name}_wi{j}")
                sload(j)
                a(f"{name}_wi{j}:")
            nskip = leads[-1] - DD
            for i in range(NB):
                a(f"s_waitcnt vmcnt({DD - 1 + min(i, DD)})")
                skip = i < nskip
                if skip: a(f"s_cmp_gt_u32 s51, {DD + i}"); a(f"s_cbranch_scc1 {name}_ws{i}")
                sload(i + DD)
                if skip: a(f"{name}_ws{i}:")
                if i == nskip: a(f"s_mov_b32 s51, {DD}")
                a(f"s_mov_b32 s58, {i*4096}")
                a(f"buffer_load_dwordx4 a[{4*i}:{4*i+3}], v59, s[24:27], s58 offen {wpol}")
                if i == NB - 1: a("s_memrealtime s[52:53]")
                consume(i)
            a(f"s_branch {name}_nxt")
        if fin:
            a(f"{name}_f:")
            for j in range(leads[0], leads[-1]):
                a(f"s_cmp_gt_u32 s51, {j}"); a(f"s_cbranch_scc1 {name}_f{j}")
                sload(16 + j)
                a(f"{name}_f{j}:")
            nx = 16 + leads[-1]
            while nx < min(16 + fin, NB): sload(nx); nx += 1
            if prescale:
                C("every wave has published its maximum and sum: this wave's weight v60 = exp2(m_w - m) / L")
                a("v_mov_b32 v48, 0"); a("s_waitcnt lgkmcnt(0)"); a("s_barrier")
                a(f"ds_read_b128 v[76:79], v48 offset:{L_ML}"); a(f"ds_read_b128 v[80:83], v48 offset:{L_ML+16}")
                a("s_waitcnt lgkmcnt(0)")
                a("v_min_f32 v48, v76, v78"); a("v_min3_f32 v48, v48, v80, v82")
                for w in range(4): a(f"v_sub_f32 v{76+2*w}, v48, v{76+2*w}")
                a("v_sub_f32 v60, v48, v64")
                for w in range(4): a(f"v_exp_f32 v{76+2*w}, v{76+2*w}")
                a("v_exp_f32 v60, v60")
                a("v_mul_f32 v49, v76, v77")
                for w in range(1, 4): a(f"v_fmac_f32 v49, v{76+2*w}, v{77+2*w}")
                a("v_rcp_f32 v49, v49")
                a("v_mul_f32 v60, v60, v49")
                if slide: a("v_accvgpr_mov_b32 a128, a0"); a("v_accvgpr_mov_b32 a129, a1")
            npf = 0
            for i in range(16, NB):
                a(f"s_waitcnt vmcnt({nx - 1 - i + npf})")
                if nx < NB: sload(nx); nx += 1
                elif mpf >= 2 and i >= pf0:
                    for x in range(mpf - 1):
                        if npf < pfn:
                            k = npf
                            pfload(k); npf += 1
                consume(i)
        a(f"{name}_end:")
    if wov:
        a(f"s_mul_i32 s96, s5, {wov}"); a("s_lshr_b32 s96, s96, 5")
    C("s48 time base, s49 deadline (1/256 ticks), s50 reports seen, s51 depth in use, s[52:53] clock, s57 pace, s19 fixed deep segments")
    a(f"s_mov_b32 s56, {nwl+1}")
    a("s_memrealtime s[52:53]"); a(f"s_mov_b32 s51, {D}"); a("s_mov_b32 s50, 99"); a("s_mov_b32 s57, 0")
    a("s_mov_b32 s48, s18"); a("s_mov_b32 s49, 0x7fffffff"); a("s_mov_b32 s88, 0"); a(f"s_mov_b32 s93, {0 if initlow else 0x80000000}"); a("v_mov_b32 v72, 0")
    a("s_cmp_eq_u32 s7, 1"); a(f"s_cselect_b32 s19, {hiu[0]-4}, 0"); a("s_cmp_eq_u32 s7, 3"); a(f"s_cselect_b32 s19, {hiu[1]-4}, s19")
    def khead():
        lapstamp(16)
        a("s_mov_b32 s54, s55"); a(f"s_add_u32 s55, s55, {NB*4096}")
        a("s_cmp_eq_u32 s56, 7")
        a("s_cselect_b32 s12, s16, s12"); a("s_cselect_b32 s13, s17, s13"); a("s_cselect_b32 s55, 0, s55")
        for k in range(14): a(f"v_mov_b32 v{32+k}, v{34+k}")
        cal_events(0)
        if vt:
            a("s_lshl_b32 s58, s3, 4"); a("s_add_u32 s58, s58, s56")
            a(f"s_cmp_eq_u32 s58, {vt}"); a("s_cbranch_scc0 L_novt")
            a("v_mov_b32 v60, 0"); a("s_mov_b64 exec, 1")
            a("global_load_dword v76, v60, s[16:17] nt")
            a("s_mov_b64 exec, -1")
            a("L_novt:")
    laploop("L_k", khead, kconsume)
    stamp(5)
    C("---- maximum of this wave's scores, in log2 units, negated")
    allred("v_max_f32", "v64", "v48")
    a("v_mul_f32 v64, s91, v64"); a("v_sub_f32 v64, 0, v64")
    a("s_mov_b32 s8, s12"); a("s_mov_b32 s9, s13"); a("s_mov_b32 s56, 0")
    for r in range(4): a(f"v_mov_b32 v{28+r}, 0")
    def pfload(k):
        k = pfo[k]
        sr = f"s[{(40, 44, 20)[k >> 1]}:{(43, 47, 23)[k >> 1]}]"
        if xpf: a(f"buffer_load_dwordx4 a[132:135], {'v58' if k < 4 else 'v59'}, {sr}, s{(96 if k < 4 else 98) + (k & 1)} offen")
        else: a(f"buffer_load_dwordx4 a[132:135], v58, {sr}, s96 offen offset:{(k & 1) * 1024}")
    if mpf >= 2:
        C("every wave fetches a share of the FFN weights as its stream ends, so that their users find them in a cache")
        srd(20, 80, 81, 1792*1024)
        if xpf:
            a("s_lshr_b32 s98, s2, 3"); a("s_lshl_b32 s98, s98, 2"); a("s_add_u32 s98, s98, s3")
            a(f"s_mul_i32 s96, s98, {4*3584}"); a(f"s_add_u32 s97, s96, {2*3584}")
            a(f"s_mul_i32 s98, s98, {14*1024}"); a("s_add_u32 s99, s98, 8192")
            a("s_and_b32 s58, s2, 7"); a("s_mul_i32 s92, s58, 448"); a("s_and_b32 s92, s92, 0xff80"); a("s_lshl_b32 s58, s58, 7")
            a("v_lshrrev_b32 v58, 5, v1"); a("v_mul_u32_u24 v58, 3584, v58"); a("v_and_b32 v59, 31, v1"); a("v_lshl_add_u32 v58, v59, 4, v58"); a("v_add_u32 v58, s92, v58")
            a("v_lshrrev_b32 v59, 3, v1"); a("v_lshlrev_b32 v59, 10, v59"); a("v_and_b32 v48, 7, v1"); a("v_lshl_add_u32 v59, v48, 4, v59"); a("v_add_u32 v59, s58, v59")
        else:
            a("s_lshl_b32 s96, s2, 2"); a("s_add_u32 s96, s96, s3"); a("s_lshl_b32 s96, s96, 11"); a("v_lshlrev_b32 v58, 4, v1")
    def vhead():
        lapstamp(24)
        a("s_mov_b32 s54, s55"); a(f"s_add_u32 s55, s55, {NB*4096}")
        for k in range(2):
            a(f"v_fma_f32 v{56+k}, v{32+k}, s91, v64"); a(f"v_exp_f32 v{56+k}, v{56+k}")
            a(f"v_add_f32 v65, v65, v{56+k}"); a(f"v_cvt_pk_bf16_f32 v{66+k}, v{56+k}, v{56+k}")
        for k in range(14): a(f"v_mov_b32 v{32+k}, v{34+k}")
        masks(0, "v66", 0)
        cal_events(8)
        if lasthi:
            a(f"s_cmp_eq_u32 s56, {7 if lasthi == 1 else 6}"); a(f"s_cselect_b32 s19, {1 if lasthi == 1 else 3}, s19")
        if touch:
            C("first touch of the pages the last stages use, so that their translations are at hand (values unused)")
            a(f"s_cmp_eq_u32 s56, {touch}"); a("s_cbranch_scc0 L_notouch")
            a("v_mov_b32 v60, 0"); a("s_mov_b64 exec, 1")
            a(f"s_mov_b32 s58, {WS_G+0x7f00}")
            a("buffer_load_dword v76, v60, s[32:35], s58 offen")
            a("s_and_b32 s58, s7, 1"); a("s_cbranch_scc0 L_notouch1")
            a("buffer_load_dword v76, v60, s[36:39], 0 offen")
            a("buffer_load_dword v76, v60, s[40:43], 0 offen"); a("buffer_load_dword v76, v60, s[44:47], 0 offen")
            a("global_load_dword v76, v60, s[80:81]")
            a("L_notouch1:")
            a("s_mov_b64 exec, -1")
            a("L_notouch:")
        if cpf2:
            a(f"s_cmp_eq_u32 s56, {cpf2}"); a("s_cbranch_scc0 L_nocpf2")
            a("s_getpc_b64 s[60:61]")
            a("L_pc2:")
            a("s_add_u32 s60, s60, L_v_end-L_pc2"); a("s_addc_u32 s61, s61, 0"); a("s_and_b32 s60, s60, 0xffffff80")
            a("s_lshr_b32 s58, s2, 3"); a("s_lshl_b32 s58, s58, 8"); a("v_add_u32 v60, s58, v0"); a("v_lshlrev_b32 v60, 4, v60")
            a("v_cmp_gt_u32 vcc, L_end-L_v_end, v60"); a("s_and_saveexec_b64 s[62:63], vcc"); a("s_cbranch_execz L_nocpf3")
            a("global_load_dwordx4 v[76:79], v60, s[60:61]")
            a("L_nocpf3:")
            a("s_mov_b64 exec, -1")
            a("L_nocpf2:")
        a("s_cmp_eq_u32 s56, 7"); a("s_cbranch_scc0 L_nolast")
        allred("v_add_f32", "v65", "v48")
        a("s_lshl_b32 s58, s3, 3"); a("v_mov_b32 v48, s58"); a("s_mov_b64 exec, 1")
        a(f"ds_write_b64 v48, v[64:65] offset:{L_ML}")
        a("s_mov_b64 exec, -1")
        a("s_cmp_eq_u32 s50, 0"); a("s_cbranch_scc1 L_nolast")
        a(f"s_mov_b32 s88, {SPIN}"); a("v_lshlrev_b32 v60, 2, v1")
        a("L_cnt:")
        a("global_load_dword v72, v60, s[84:85] sc1"); a("s_waitcnt vmcnt(0)")
        a("v_cmp_eq_u32 vcc, 0, v72"); a("s_cbranch_vccz L_nolast")
        a("s_sleep 8"); a("s_sub_u32 s88, s88, 1"); a("s_cbranch_scc0 L_cnt")
        a("L_nolast:")
    def vconsume(i):
        mfma(28, mop(i), ring(i), False)
        if i < NB - 1: masks(i + 1, f"v{66 + ((i + 1) >> 4)}", bitrev((i + 1) & 15))
    if vpol is not None: cur[0] = vpol
    laploop("L_v", vhead, vconsume, fin)
    stamp(6)
    C("---- combine the four waves, project through wo, publish the partial row")
    if prescale:
        for r in range(4): a(f"v_mul_f32 v{28+r}, v{28+r}, v60")
        a("s_mov_b32 exec_hi, 0")
        a(f"ds_write_b128 v26, v[28:31] offset:{L_OP}")
        a("s_mov_b64 exec, -1")
        a("s_waitcnt lgkmcnt(0)"); a("s_barrier")
        for w in range(4): a(f"ds_read2st64_b32 v[{84+2*w}:{85+2*w}], v27 offset0:{L_OP//256+2*w} offset1:{L_OP//256+2*w+1}")
        a("s_waitcnt lgkmcnt(2)")
        for k in range(2): a(f"v_add_f32 v{84+k}, v{84+k}, v{86+k}")
        a("s_waitcnt lgkmcnt(0)")
        for k in range(2): a(f"v_add_f32 v{88+k}, v{88+k}, v{90+k}")
        for k in range(2): a(f"v_add_f32 v{56+k}, v{84+k}, v{88+k}")
        for k in range(2): a(f"v_cvt_pk_bf16_f32 v{66+k}, v{56+k}, v{56+k}")
    else:
        a("v_mov_b32 v48, 0")
        a("s_mov_b32 exec_hi, 0")
        a(f"ds_write_b128 v26, v[28:31] offset:{L_OP}")
        a("s_mov_b64 exec, -1")
        a("s_waitcnt lgkmcnt(0)"); a("s_barrier")
        a(f"ds_read_b128 v[76:79], v48 offset:{L_ML}"); a(f"ds_read_b128 v[80:83], v48 offset:{L_ML+16}")
        for w in range(4): a(f"ds_read2st64_b32 v[{84+2*w}:{85+2*w}], v27 offset0:{L_OP//256+2*w} offset1:{L_OP//256+2*w+1}")
        a("s_waitcnt lgkmcnt(4)")
        a("v_min_f32 v48, v76, v78"); a("v_min3_f32 v48, v48, v80, v82")
        for w in range(4): a(f"v_sub_f32 v{76+2*w}, v48, v{76+2*w}")
        for w in range(4): a(f"v_exp_f32 v{76+2*w}, v{76+2*w}")
        a("v_mul_f32 v49, v76, v77")
        for w in range(1, 4): a(f"v_fmac_f32 v49, v{76+2*w}, v{77+2*w}")
        a("v_rcp_f32 v49, v49")
        a("s_waitcnt lgkmcnt(0)")
        for k in range(2):
            a(f"v_mul_f32 v{56+k}, v76, v{84+k}")
            for w in range(1, 4): a(f"v_fmac_f32 v{56+k}, v{76+2*w}, v{84+2*w+k}")
        for k in range(2):
            a(f"v_mul_f32 v{56+k}, v{56+k}, v49"); a(f"v_cvt_pk_bf16_f32 v{66+k}, v{56+k}, v{56+k}")
    if slide:
        C("product t takes the upper half of row group t and the lower half of group t+1, so a selector pair serves two products")
        def sel(t):
            for r in range(2):
                a(f"v_and_b32_dpp v{128+2*t+r}, v{66 + ((t & 31) >> 4)}, v{14+2*(t&1)+r} row_newbcast:{t & 15} row_mask:0xf bank_mask:0xf")
        sel(0); sel(1); sel(2)
        for t in range(32):
            mfma(28 if t & 1 else 76, f"v[{128+2*t}:{131+2*t}]", f"a[{4*t+2}:{4*t+5}]", t < 2)
            if t + 3 <= 32: sel(t + 3)
        for r in range(4): a(f"v_permlane16_swap_b32 v{76+r}, v{76+r}")
        for r in range(4): a(f"v_add_f32 v{28+r}, v{28+r}, v{76+r}")
    else:
        masks(0, "v66", 0)
        for t in range(32):
            if t < 31: masks(t + 1, "v66" if t + 1 < 16 else "v67", (t + 1) & 15)
            mfma(28, mop(t), f"a[{4*t}:{4*t+3}]", t == 0)
    a("s_mov_b32 exec_hi, 0")
    for r in range(4): a(f"v_min_u32 v{28+r}, -2, v{28+r}")
    a("buffer_store_dwordx4 v[28:31], v68, s[32:35], 0 offen sc1")
    a("s_mov_b64 exec, -1")
    stamp(7)
    if rskip: a("s_cmp_eq_u32 s6, 2"); a("s_cbranch_scc1 L_s2")
    if mpf >= 2:
        for k in range(0 if pf0 >= NB else pfn, 6): pfload(k)
    if not rskip: a("s_cmp_eq_u32 s6, 2"); a("s_cbranch_scc1 L_s2")
    a("s_and_b32 s58, s7, 1"); a("s_cbranch_scc0 L_fin")
    C("---- this workgroup's FFN weights -> LDS: A via s[40:43], B via s[44:47]; s96/s97 source, s98/s99 LDS, s100/s101 steps")
    a("s_cmp_eq_u32 s7, 1"); a("s_cbranch_scc0 L_dmaD")
    a("v_lshrrev_b32 v62, 2, v1"); a("s_movk_i32 s58, 3584"); a("v_mul_u32_u24 v62, s58, v62")
    a("v_and_b32 v63, 3, v1"); a("v_lshl_add_u32 v62, v63, 4, v62")
    a("s_lshl_b32 s58, s89, 6"); a("v_add_u32 v62, s58, v62")
    a(f"s_mul_i32 s96, s3, {128*3584}"); a("s_mov_b32 s97, s96")
    a("s_lshl_b32 s98, s3, 13"); a(f"s_add_u32 s98, s98, {L_W}"); a("s_add_u32 s99, s98, 32768")
    a(f"s_mov_b32 s100, {16*3584}"); a("s_mov_b32 s101, 1024"); a("s_mov_b32 s93, 8")
    a("s_branch L_dma")
    a("L_dmaD:")
    a("v_lshrrev_b32 v62, 1, v1"); a("v_lshlrev_b32 v62, 10, v62"); a("v_and_b32 v63, 1, v1"); a("v_lshl_add_u32 v62, v63, 4, v62")
    a("s_lshl_b32 s58, s89, 5"); a("v_add_u32 v62, s58, v62")
    for d in (40, 44):
        a(f"s_mov_b32 s{d}, s80"); a(f"s_mov_b32 s{d+1}, s81"); a(f"s_mov_b32 s{d+2}, {1792*1024}")
    a(f"s_mul_i32 s96, s3, {448*1024}"); a("s_add_u32 s97, s96, 32768")
    a(f"s_mul_i32 s98, s3, {448*32}"); a(f"s_add_u32 s98, s98, {L_W}"); a("s_add_u32 s99, s98, 1024")
    a("s_mov_b32 s100, 65536"); a("s_mov_b32 s101, 2048"); a("s_mov_b32 s93, 7")
    a("L_dma:")
    a("s_mov_b32 m0, s98"); a("s_sub_u32 s93, s93, 1")
    a(f"buffer_load_dwordx4 v62, s[40:43], s96 offen {fpol} lds")
    a("s_mov_b32 m0, s99"); a("s_add_u32 s96, s96, s100")
    a(f"buffer_load_dwordx4 v62, s[44:47], s97 offen {fpol} lds")
    a("s_add_u32 s97, s97, s100"); a("s_add_u32 s98, s98, s101"); a("s_add_u32 s99, s99, s101")
    a("s_cmp_lg_u32 s93, 0"); a("s_cbranch_scc1 L_dma")
    C("exchange addresses v63 = g*128 + b*16, v26 = w*512 + v63 ; v60 = 16g + r', v61 = c' for the transposing reads")
    a("v_and_b32 v27, 7, v75"); a("v_lshlrev_b32 v63, 4, v27"); a("v_lshl_add_u32 v63, v74, 7, v63")
    a("s_lshl_b32 s58, s3, 9"); a("v_add_u32 v26, s58, v63")
    a("v_lshrrev_b32 v60, 2, v75"); a("v_lshl_add_u32 v60, v74, 4, v60"); a("v_and_b32 v61, 3, v1")
    a("s_cmp_eq_u32 s7, 3"); a("s_cbranch_scc1 L_s4")

    C("---- gate / up: four tiles of 8+8 columns, 128 rows of h per wave; LayerNorm is applied to the sums")
    a("v_lshlrev_b32 v60, 6, v60"); a("v_lshrrev_b32 v49, 1, v61"); a("v_lshl_add_u32 v60, v49, 15, v60")
    a("v_and_b32 v49, 1, v61"); a("v_lshl_add_u32 v60, v49, 3, v60")
    a("s_lshl_b32 s58, s3, 13"); a(f"s_add_u32 s58, s58, {L_W}"); a("v_add_u32 v60, s58, v60")
    for r in range(4): a(f"v_mov_b32 v{112+r}, 0x3f803f80")
    C("h fragment address v62 = (g>>1)*512 + (b>>1)*128 + (b&1)*64 + (g&1)*32 + half*16")
    a("v_lshrrev_b32 v62, 1, v74"); a("v_lshlrev_b32 v62, 9, v62"); a("v_bfe_u32 v49, v75, 1, 2"); a("v_lshl_add_u32 v62, v49, 7, v62")
    a("v_and_b32 v49, 1, v75"); a("v_lshl_add_u32 v62, v49, 6, v62"); a("v_and_b32 v49, 1, v74"); a("v_lshl_add_u32 v62, v49, 5, v62")
    a("v_lshrrev_b32 v49, 3, v75"); a("v_lshl_add_u32 v62, v49, 4, v62")
    a(f"s_mov_b32 s58, {L_DUMP-L_T2}"); a("v_mad_u32_u24 v26, v49, s58, v26")
    a("s_lshl_b32 s58, s3, 11"); a("v_add_u32 v63, s58, v63")
    a("v_lshrrev_b32 v49, 1, v74"); a("v_lshlrev_b32 v49, 2, v49"); a("v_lshlrev_b32 v61, 5, v27"); a("v_add_u32 v49, v49, v61")
    a("s_lshl_b32 s58, s3, 3"); a("v_add_u32 v49, s58, v49")
    a("s_lshl_b32 s59, s3, 11"); a(f"s_add_u32 s59, s59, {WS_H}")
    def colsum():
        a("s_waitcnt lgkmcnt(0)")
        for k in range(4):
            for t in range(4): mfma(224 + 4*t, f"v[{128+16*t+4*k}:{131+16*t+4*k}]", "v[112:115]", k == 0)
        for t in range(4): a(f"ds_write_b128 v26, v[{224+4*t}:{227+4*t}] offset:{L_CS+2048*t}")
    if staged:
        for u in range(2):
            a(f"s_waitcnt vmcnt({8 - 8*u})")
            if u: stamp(13)
            for t in range(4):
                for hf in range(2):
                    for sec in range(2): trread(128 + 16*t + 8*u + 4*hf + 2*sec, "v60", (64*u + 8*hf + 4*sec) * 64 + 16*t)
                if t == 2: a("s_waitcnt lgkmcnt(6)")
            if u == 0: a("s_waitcnt lgkmcnt(0)")
    else:
        a("s_waitcnt vmcnt(0)")
        stamp(13)
        for t in range(4):
            for u in range(2):
                for hf in range(2):
                    for sec in range(2): trread(128 + 16*t + 8*u + 4*hf + 2*sec, "v60", (64*u + 8*hf + 4*sec) * 64 + 16*t)
            if t: a("s_waitcnt lgkmcnt(6)")
        a("s_waitcnt lgkmcnt(0)")
        for k in range(4):
            for t in range(4): mfma(224 + 4*t, f"v[{128+16*t+4*k}:{131+16*t+4*k}]", "v[112:115]", k == 0)
        for t in range(4): a(f"ds_write_b128 v26, v[{224+4*t}:{227+4*t}] offset:{L_CS+2048*t}")
    if cspre:
        a("s_waitcnt lgkmcnt(0)"); a("s_barrier")
        for w in range(4): a(f"ds_read_b128 v[{224+4*w}:{227+4*w}], v63 offset:{L_CS+512*w}")
        a("s_waitcnt lgkmcnt(0)")
        for r in range(4): a(f"v_add_f32 v{224+r}, v{224+r}, v{228+r}"); a(f"v_add_f32 v{232+r}, v{232+r}, v{236+r}")
        for r in range(4): a(f"v_add_f32 v{108+r}, v{224+r}, v{232+r}")
    def ldH(b): return [f"buffer_load_dwordx4 v[{b+4*u}:{b+3+4*u}], v62, s[32:35], s59 offen offset:{u*1024} sc1" for u in range(2)]
    def useH(b):
        n = 0
        for u in range(2):
            for t in range(4):
                for hf in range(2):
                    mfma(192 + 8*t + 4*hf, f"v[{128+16*t+8*u+4*hf}:{131+16*t+8*u+4*hf}]", f"v[{b+4*u}:{b+3+4*u}]", u == 0)
                    if n < 8:
                        a(f"v_dot2_f32_bf16 v52, v{b+n}, v112, {'0' if n == 0 else 'v52'}")
                        a(f"v_dot2_f32_bf16 v53, v{b+n}, v{b+n}, {'0' if n == 0 else 'v53'}")
                    if n == 9:
                        for r in range(2): a(f"v_add_f32_dpp v{52+r}, v{52+r}, v{52+r} row_ror:8 row_mask:0xf bank_mask:0xf")
                    if n == 11: a("v_permlane32_swap_b32 v52, v53"); a("v_add_f32 v52, v52, v53"); a("v_mov_b32 v53, v52")
                    if n == 13: a("v_permlane16_swap_b32 v52, v53"); a("v_add_f32 v52, v52, v53"); a(f"ds_write_b32 v49, v52 offset:{L_ST}")
                    n += 1
    poll2("L_pH", ldH, 8, (76, 84), useH, colsum if staged else None)
    stamp(10)
    for t in range(4):
        for r in range(4): a(f"v_add_f32_dpp v{192+8*t+r}, v{196+8*t+r}, v{192+8*t+r} row_ror:8 row_mask:0xf bank_mask:0xf")
        a(f"ds_write_b128 v26, v[{192+8*t}:{195+8*t}] offset:{L_T2+2048*t}")
    a("s_waitcnt lgkmcnt(0)"); a("s_barrier")
    for k in range(2): a(f"ds_read_b128 v[{92+4*k}:{95+4*k}], v61 offset:{L_ST+16*k}")
    if not cspre:
        for w in range(4): a(f"ds_read_b128 v[{224+4*w}:{227+4*w}], v63 offset:{L_CS+512*w}")
    for w in range(4): a(f"ds_read_b128 v[{116+4*w}:{119+4*w}], v63 offset:{L_T2+512*w}")
    a(f"s_waitcnt lgkmcnt({4 if cspre else 8})")
    for k in range(2): a(f"v_add_f32 v{92+k}, v{92+k}, v{94+k}"); a(f"v_add_f32 v{96+k}, v{96+k}, v{98+k}")
    a("v_add_f32 v52, v92, v96"); a("v_add_f32 v53, v93, v97")
    a(f"v_mul_f32 v52, {f32(1/512)}, v52"); a(f"v_mul_f32 v53, {f32(1/512)}, v53")
    a("v_fma_f32 v53, -v52, v52, v53"); a("v_max_f32 v53, 0, v53")
    bf16r("v53"); bf16r("v52")
    a(f"v_add_f32 v53, {f32(1e-5)}, v53"); bf16r("v53")
    a("v_sqrt_f32 v53, v53")
    if not cspre:
        a("s_waitcnt lgkmcnt(4)")
        for r in range(4): a(f"v_add_f32 v{224+r}, v{224+r}, v{228+r}"); a(f"v_add_f32 v{232+r}, v{232+r}, v{236+r}")
        bf16r("v53"); a("v_rcp_f32 v53, v53")
        for r in range(4): a(f"v_add_f32 v{108+r}, v{224+r}, v{232+r}")
    a("s_waitcnt lgkmcnt(0)")
    for r in range(4): a(f"v_add_f32 v{116+r}, v{116+r}, v{120+r}"); a(f"v_add_f32 v{124+r}, v{124+r}, v{128+r}")
    if cspre: bf16r("v53"); a("v_rcp_f32 v53, v53")
    for r in range(4): a(f"v_add_f32 v{116+r}, v{116+r}, v{124+r}")
    for r in range(4): a(f"v_fma_f32 v{116+r}, -v52, v{108+r}, v{116+r}")
    for r in range(4): a(f"v_mul_f32 v{116+r}, v{116+r}, v53")
    for r in range(2): a(f"v_cvt_pk_bf16_f32 v{120+r}, v{116+2*r}, v{117+2*r}")
    for r in range(2): a(f"v_permlane32_swap_b32 v{120+r}, v{122+r}")
    for r in range(2):
        a(f"v_lshlrev_b32 v{116+2*r}, 16, v{120+r}"); a(f"v_and_b32 v{117+2*r}, 0xffff0000, v{120+r}")
        a(f"v_lshlrev_b32 v{124+2*r}, 16, v{122+r}"); a(f"v_and_b32 v{125+2*r}, 0xffff0000, v{122+r}")
    for r in range(4): a(f"v_max_f32 v{116+r}, 0, v{116+r}")
    for r in range(4): a(f"v_mul_f32 v{116+r}, v{116+r}, v{124+r}")
    for r in range(2): a(f"v_cvt_pk_bf16_f32 v{120+r}, v{116+2*r}, v{117+2*r}")
    a("s_mov_b64 exec, 0x00ff00ff")
    for r in range(2): a(f"v_min_u32 v{120+r}, -2, v{120+r}")
    a("buffer_store_dwordx2 v[120:121], v70, s[32:35], 0 offen sc1")
    stamp(11)
    a("s_branch L_fin")

    C("---- reducer: sum the 32 heads' partials of 2 rows x 32 columns, add x, publish h")
    a("L_s2:")
    a("v_lshlrev_b32 v62, 4, v1")
    a("s_lshl_b32 s59, s89, 13"); a("s_add_u32 s92, s59, 4096")
    a("v_lshlrev_b32 v50, 16, v71"); a("v_and_b32 v51, 0xffff0000, v71")
    def ld8(b): return [f"buffer_load_dwordx4 v[{b+4*u}:{b+3+4*u}], v62, s[32:35], {'s59' if u < 4 else 's92'} offen offset:{(u&3)*1024} sc1" for u in range(8)]
    def useP(b):
        for r in range(16): a(f"v_add_f32 v{108+r}, v{b+r}, v{b+16+r}")
    poll2("L_pP", ld8, 32, (76, 128), useP)
    stamp(8)
    for st in (8, 4):
        for r in range(st): a(f"v_add_f32 v{108+r}, v{108+r}, v{108+st+r}")
    a("v_permlane32_swap_b32 v108, v110"); a("v_permlane32_swap_b32 v109, v111")
    a("v_add_f32 v108, v108, v110"); a("v_add_f32 v109, v109, v111")
    a("v_mov_b32 v110, v108"); a("v_mov_b32 v111, v109")
    a("v_permlane16_swap_b32 v108, v110"); a("v_permlane16_swap_b32 v109, v111")
    a("v_add_f32 v108, v108, v110"); a("v_add_f32 v109, v109, v111")
    a("v_cvt_pk_bf16_f32 v108, v108, v109")
    a("v_and_b32 v109, 0xffff0000, v108"); a("v_lshlrev_b32 v108, 16, v108")
    a("v_add_f32 v108, v108, v50"); a("v_add_f32 v109, v109, v51")
    a("v_cvt_pk_bf16_f32 v108, v108, v109")
    a("s_mov_b32 exec_lo, 0xffff"); a("s_mov_b32 exec_hi, 0xffff")
    a("v_min_u32 v108, -2, v108")
    a("buffer_store_dword v108, v69, s[32:35], 0 offen sc1")
    if rskip == 2:
        a("s_mov_b64 exec, -1")
        for k in range(0 if pf0 >= NB else pfn, 6): pfload(k)
    stamp(9)
    a("s_branch L_fin")

    C("---- 16 output columns, 448 rows of W_down per wave")
    a("L_s4:")
    a("v_lshlrev_b32 v60, 5, v60"); a("v_lshl_add_u32 v60, v61, 3, v60")
    a(f"s_mul_i32 s58, s3, {448*32}"); a(f"s_add_u32 s58, s58, {L_W}"); a("v_add_u32 v60, s58, v60")
    C("h address v49 = H + ((s'>>1)*4 + (b>>1))*128 + (b&1)*64 + (s'&1)*32 + g*8 ; out address v50 = b*1024 + s'*32 + g*8")
    a("v_lshrrev_b32 v49, 1, v27"); a("v_lshlrev_b32 v49, 7, v49"); a("v_and_b32 v50, 1, v27"); a("v_lshl_add_u32 v49, v50, 6, v49")
    a("v_lshl_add_u32 v49, v74, 3, v49")
    a("s_lshr_b32 s58, s89, 1"); a("s_lshl_b32 s58, s58, 9"); a("s_and_b32 s92, s89, 1"); a("s_lshl_b32 s92, s92, 5"); a("s_add_u32 s58, s58, s92")
    a(f"s_add_u32 s58, s58, {WS_H}"); a("v_add_u32 v49, s58, v49")
    a("v_lshlrev_b32 v50, 10, v27"); a("v_lshl_add_u32 v50, v74, 3, v50"); a("s_lshl_b32 s58, s89, 5"); a("v_add_u32 v50, s58, v50")
    a(f"s_mul_i32 s59, s3, {7*1024}"); a(f"s_add_u32 s59, s59, {WS_G}"); a("s_add_u32 s92, s59, 4096")
    a("v_lshlrev_b32 v62, 4, v1")
    if not staged: a("s_waitcnt vmcnt(0)"); stamp(13)
    for u in range(7):
        if staged: a(f"s_waitcnt vmcnt({12 - 2*u})")
        if staged and u == 6: stamp(13)
        for hf in range(2):
            for sec in range(2): trread(128 + 8*u + 4*hf + 2*sec, "v60", (64*u + 8*hf + 4*sec) * 32)
        if u in (2, 5): a("s_waitcnt lgkmcnt(4)")
    a("s_waitcnt lgkmcnt(0)")
    def ldG(b): return ld8(b)[:7] + [f"buffer_load_dwordx2 v[{b+28}:{b+29}], v49, s[32:35], 0 offen sc1"]
    def useG(b):
        for u in range(7):
            for hf in range(2): mfma(108 + 4*hf, f"v[{128+8*u+4*hf}:{131+8*u+4*hf}]", f"v[{b+4*u}:{b+3+4*u}]", u == 0)
        for r in range(2):
            a(f"v_lshlrev_b32 v{116+2*r}, 16, v{b+28+r}"); a(f"v_and_b32 v{117+2*r}, 0xffff0000, v{b+28+r}")
    poll2("L_pG", ldG, 30, (76, 192), useG)
    stamp(10)
    for r in range(4): a(f"v_add_f32_dpp v{108+r}, v{112+r}, v{108+r} row_ror:8 row_mask:0xf bank_mask:0xf")
    a("s_mov_b32 exec_lo, 0x00ff00ff"); a("s_mov_b32 exec_hi, 0x00ff00ff")
    a(f"ds_write_b128 v26, v[108:111] offset:{L_TX}")
    a("s_waitcnt lgkmcnt(0)"); a("s_barrier")
    a("s_cmp_eq_u32 s3, 3"); a("s_cbranch_scc0 L_fin")
    for w in range(4): a(f"ds_read_b128 v[{128+4*w}:{131+4*w}], v63 offset:{L_TX+512*w}")
    a("s_waitcnt lgkmcnt(0)")
    for r in range(4):
        a(f"v_add_f32 v{128+r}, v{128+r}, v{132+r}"); a(f"v_add_f32 v{136+r}, v{136+r}, v{140+r}")
    for r in range(4): a(f"v_add_f32 v{128+r}, v{128+r}, v{136+r}")
    for r in range(2): a(f"v_cvt_pk_bf16_f32 v{132+r}, v{128+2*r}, v{129+2*r}")
    for r in range(2):
        a(f"v_lshlrev_b32 v{128+2*r}, 16, v{132+r}"); a(f"v_and_b32 v{129+2*r}, 0xffff0000, v{132+r}")
    for r in range(4): a(f"v_add_f32 v{128+r}, v{128+r}, v{116+r}")
    for r in range(2): a(f"v_cvt_pk_bf16_f32 v{132+r}, v{128+2*r}, v{129+2*r}")
    a("buffer_store_dwordx2 v[132:133], v50, s[36:39], 0 offen")
    stamp(11)
    a("L_fin:")
    if probe is not None:
        a(f"s_cmp_eq_u32 s2, {pwg}"); a("s_cbranch_scc0 L_end"); a("s_cmp_eq_u32 s3, 3"); a("s_cbranch_scc0 L_end")
        if probe == 0: a("s_mov_b32 s20, 0")
        a("s_add_u32 s20, s20, 10000")
        a("L_probe:")
        a("s_sleep 4"); a("s_memrealtime s[94:95]"); a("s_waitcnt lgkmcnt(0)"); a("s_sub_u32 s94, s94, s18")
        a("s_cmp_lt_u32 s94, s20"); a("s_cbranch_scc1 L_probe")
    if stamps:
        a("s_mov_b64 exec, -1")
        stamp(12)
        a("s_getreg_b32 s92, hwreg(HW_REG_XCC_ID)"); a("v_writelane_b32 v73, s92, 15")
        a("s_lshl_b32 s58, s2, 2"); a("s_add_u32 s58, s58, s3"); a("s_lshl_b32 s58, s58, 7"); a(f"s_add_u32 s58, s58, {WS_ST}")
        a("v_lshlrev_b32 v48, 2, v1"); a("s_mov_b32 exec_hi, 0")
        a("buffer_store_dword v73, v48, s[32:35], s58 offen")
        if "dbgout" in xp:
            a("s_cmp_eq_u32 s2, 229"); a("s_cbranch_scc0 L_end"); a("s_cmp_eq_u32 s3, 3"); a("s_cbranch_scc0 L_end")
            a("v_subrev_u32 v73, s18, v73"); a("s_mov_b64 exec, 0xffff")
            a("global_store_dword v48, v73, s[84:85] sc1")
    a("L_end:")
    a("s_endpgm")
    body = a.finish()
    head_ = HEADER + f"; @launch grid=(256,1,1) block=(256,1,1) lds={L_SIZE}\n" + '.amdgcn_target "amdgcn-amd-amdhsa--gfx950"\n.text\n' + \
        DOC + f".globl {NAME}\n.p2align 8\n.type {NAME},@function\n"
    tail = f""".section .rodata,"a"
.p2align 6
.amdhsa_kernel {NAME}
  .amdhsa_next_free_vgpr 392
  .amdhsa_next_free_sgpr 102
  .amdhsa_accum_offset 256
  .amdhsa_group_segment_fixed_size 0
  .amdhsa_kernarg_size 96
  .amdhsa_user_sgpr_count 2
  .amdhsa_user_sgpr_kernarg_segment_ptr 1
  .amdhsa_system_sgpr_workgroup_id_x 1
.end_amdhsa_kernel
"""
    return head_ + body + tail

if __name__ == "__main__":
    kw = eval("dict(%s)" % (sys.argv[2] if len(sys.argv) > 2 else ""))
    open(sys.argv[1], "w").write(gen(**kw))
```

```python
import sys, struct
sys.path.insert(0, __file__.rsplit('/', 1)[0])
from asmlib import Asm

NAME = "sequential_preLN__mha_block_cached__glu_gated_reglu__decode_kernel"
HEADER = open(__file__.rsplit('/', 1)[0] + '/header.txt').read()

def f32(x): return "0x%08x" % struct.unpack('<I', struct.pack('<f', x))[0]

WS_P, WS_H, WS_G, WS_ST, WS_SIZE = 0, 0x80000, 0x82000, 0x100000, 0x140000
L_QP, L_OP, L_ML, L_ST, L_TX, L_T2, L_CS, L_W, L_DUMP, L_SIZE = 0, 2048, 4096, 4160, 4608, 8192, 16384, 24576, 90112, 106496
DOC = r"""; ---------------------------------------------------------------------------------------------------------
; ---------------------------------------------------------------------------------------------------------
"""
RING = 128
NB = 32
SPIN = 200000

def gen(D=5, hi=1, pol="nt", wpol="", fpol="", early=(2, 7, 12, 17), n1=7, kq=2, nbar=2, nA=3, nB=3, D1=None,
        stag=0, cpf2=0, fin=10, touch=0, cspre=0, wend=32, wov=0, wod=0, initlow=0, prescale=1, slide=1, staged=1, vt=0, lasthi=0, mpf=7, pf0=32, xpf=1, pfn=6, pfo=(0, 1, 2, 3, 4, 5), rskip=0, pfw=0, hmap=0, ctl=1, slack=80, k0=1, late=0, cpf=23, rot=0, nw=2, nwl=1, eps=0, head=(60, 80), hiu=(4, 4), cal=3, stamps=0, xp=(), probe=None, pwg=130, vpol=None, pre=0, ahead=0, r2=0, slack2=40):
    a = Asm()
    vm = []
    def C(t): a("; " + t)
    def vwait(tag):
        n = len(vm) - 1 - vm.index(tag)
        a(f"s_waitcnt vmcnt({min(n, 63)})")
    def stamp(k):
        if probe == k:
            a("s_memrealtime s[94:95]"); a("s_waitcnt lgkmcnt(0)"); a("s_sub_u32 s20, s94, s18")
        if stamps == 2 and k not in (6, 12): return
        if stamps == 3 and k not in (3, 4, 6, 12): return
        if stamps:
            a("s_memrealtime s[94:95]"); a("s_waitcnt lgkmcnt(0)"); a(f"v_writelane_b32 v73, s94, {k}")
    def lapstamp(off):
        if stamps == 3:
            a("s_memrealtime s[94:95]"); a(f"s_add_u32 m0, s56, {off}"); a("s_waitcnt lgkmcnt(0)"); a("v_writelane_b32 v73, s94, m0")
    def allred(op, v, t):
        for n in (8, 4, 2, 1): a(f"{op}_dpp {v}, {v}, {v} row_ror:{n} row_mask:0xf bank_mask:0xf")
        for sw in ("v_permlane16_swap_b32", "v_permlane32_swap_b32"):
            a(f"v_mov_b32 {t}, {v}"); a(f"{sw} {v}, {t}"); a(f"{op} {v}, {v}, {t}")
    def bf16r(v):
        a(f"v_cvt_pk_bf16_f32 {v}, {v}, {v}"); a(f"v_and_b32 {v}, 0xffff0000, {v}")
    def srd(d, lo, hi_, size, add=None):
        if add is None:
            a(f"s_mov_b32 s{d}, s{lo}"); a(f"s_mov_b32 s{d+1}, s{hi_}")
        else:
            a(f"s_add_u32 s{d}, s{lo}, {add}"); a(f"s_addc_u32 s{d+1}, s{hi_}, 0")
        a(f"s_mov_b32 s{d+2}, {size}"); a(f"s_mov_b32 s{d+3}, 0x20000")
    cur = [pol]
    def ring(j): j %= NB; return f"v[{RING+4*j}:{RING+4*j+3}]"
    def sload(j):
        s, b = ("s[12:15]", "s55") if j >= NB else ("s[8:11]", "s54")
        j %= NB
        a(f"buffer_load_dwordx4 {ring(j)}, v{2+(j>>2)}, {s}, {b} offen offset:{(j&3)*1024} {cur[0]}")
    def masks(t, src, lane):
        for r in range(4):
            a(f"v_and_b32_dpp v{18+4*(t&1)+r}, {src}, v{14+r} row_newbcast:{lane} row_mask:0xf bank_mask:0xf")
    def mop(t): return f"v[{18+4*(t&1)}:{21+4*(t&1)}]"
    def mfma(d, x, y, first): a(f"v_mfma_f32_16x16x32_bf16 v[{d}:{d+3}], {x}, {y}, {'0' if first else 'v[%d:%d]' % (d, d+3)}")
    def bitrev(t): return ((t & 1) << 3) | ((t & 2) << 1) | ((t & 4) >> 1) | ((t & 8) >> 3)
    def check(regs, ok):
        r = list(regs)
        a(f"v_max3_u32 v48, v{r[0]}, v{r[1]}, v{r[2]}"); r = r[3:]
        while len(r) >= 2:
            a(f"v_max3_u32 v48, v48, v{r[0]}, v{r[1]}"); r = r[2:]
        if r: a(f"v_max_u32 v48, v48, v{r[0]}")
        a("v_cmp_eq_u32 vcc, -1, v48")
        a(f"s_cbranch_vccz {ok}")
    def poll2(label, loads, nreg, bases, use, pre=None):
        n = len(loads(bases[0]))
        a(f"s_mov_b32 s88, {SPIN}")
        for l in loads(bases[0]): a(l)
        if stag: a(f"s_sleep {stag}")
        if pre: pre()
        a(f"{label}:")
        for l in loads(bases[1]): a(l)
        a(f"s_waitcnt vmcnt({n})")
        check(range(bases[0], bases[0] + nreg), f"{label}_A")
        for l in loads(bases[0]): a(l)
        a(f"s_waitcnt vmcnt({n})")
        check(range(bases[1], bases[1] + nreg), f"{label}_B")
        a("s_sub_u32 s88, s88, 1")
        a(f"s_cbranch_scc0 {label}")
        a(f"{label}_B:")
        use(bases[1])
        a(f"s_branch {label}_done")
        a(f"{label}_A:")
        use(bases[0])
        a(f"{label}_done:")
    def trread(dst, addr, off): a(f"ds_read_b64_tr_b16 v[{dst}:{dst+1}], {addr} offset:{off}")

    a(f"{NAME}:")
    a("s_cmp_ge_u32 s2, 256"); a("s_cbranch_scc1 L_end")
    a("s_memrealtime s[18:19]")
    a("s_load_dwordx16 s[64:79], s[0:1], 0")
    a("s_load_dwordx8 s[80:87], s[0:1], 64")
    if cpf:
        C("pull the kernel's own code towards this die's L2, one KiB per wave")
        a("s_getpc_b64 s[60:61]"); a("s_and_b32 s60, s60, 0xffffff00")
        a("s_lshr_b32 s58, s2, 3"); a("s_lshl_b32 s58, s58, 8"); a("v_add_u32 v60, s58, v0"); a("v_lshlrev_b32 v60, 4, v60")
        a(f"v_cmp_gt_u32 vcc, {cpf*1024}, v60"); a("s_and_saveexec_b64 s[62:63], vcc"); a("s_cbranch_execz L_nocpf")
        a("global_load_dwordx4 v[76:79], v60, s[60:61]")
        a("L_nocpf:")
        a("s_mov_b64 exec, -1")
    C("s3 wave, s4 batch row, s5 head; v1 lane, v74 lane>>4 (g), v75 lane&15 (i)")
    a("v_lshrrev_b32 v1, 6, v0")
    a("v_readfirstlane_b32 s3, v1")
    a("v_and_b32 v1, 63, v0")
    a("s_lshr_b32 s4, s2, 5"); a("s_and_b32 s5, s2, 31")
    if hmap:
        C("head = bits 0..4 of the workgroup id, reordered: neighbours in memory are spread over the dies as the HBM likes it best")
        a("s_mov_b32 s5, 0")
        for k, pbit in enumerate(hmap):
            a(f"s_bfe_u32 s58, s2, {0x10000 + k:#x}"); a(f"s_lshl_b32 s58, s58, {pbit}"); a("s_or_b32 s5, s5, s58")
    a("v_lshrrev_b32 v74, 4, v1"); a("v_and_b32 v75, 15, v1")
    a("v_lshlrev_b32 v48, 4, v1")
    a("s_lshl_b32 s58, s3, 12"); a("v_add_u32 v2, s58, v48")
    for k in range(1, 8): a(f"v_add_u32 v{2+k}, {k*16384}, v2")
    a("s_lshl_b32 s58, s3, 8"); a("v_lshlrev_b32 v49, 3, v75"); a("v_lshl_add_u32 v49, v74, 1, v49"); a("v_add_u32 v49, s58, v49")
    a("v_lshrrev_b32 v51, 1, v74")
    C("wq lane offset v58 = (128w+g)*8192 + i*16 ; wo lane offset v59 = g*1024 + w*256 + i*16")
    a("s_lshl_b32 s58, s3, 20"); a("v_lshlrev_b32 v58, 13, v74"); a("v_lshl_add_u32 v58, v75, 4, v58"); a("v_add_u32 v58, s58, v58")
    a("s_lshl_b32 s58, s3, 8"); a("v_lshlrev_b32 v59, 10, v74"); a("v_lshl_add_u32 v59, v75, 4, v59"); a("v_add_u32 v59, s58, v59")
    a("s_lshl_b32 s57, s4, 10"); a("s_lshl_b32 s58, s5, 8"); a("s_lshl_b32 s59, s4, 5"); a("s_add_u32 s59, s59, s5"); a("s_lshl_b32 s59, s59, 20")
    a("s_sub_u32 s92, 0x400000, s58")
    a("s_mov_b32 s54, 0")
    a("s_waitcnt lgkmcnt(0)")
    if stamps: a("v_mov_b32 v73, 0"); a("v_writelane_b32 v73, s18, 0")
    kiss = 0
    def kload():
        nonlocal kiss
        sload(kiss - kbase); vm.append(f"k{kiss}"); kiss += 1
    kbase = 0
    stamp(16)
    srd(8, 66, 67, 0x100000, "s59")
    for j in range(k0): kload()
    srd(28, 64, 65, 8192)
    a("buffer_load_dwordx4 v[52:55], v48, s[28:31], s57 offen"); vm.append("x")
    a("buffer_load_ushort v56, v49, s[28:31], s57 offen"); vm.append("xc0")
    a("buffer_load_ushort v57, v49, s[28:31], s57 offen offset:128"); vm.append("xc1")
    srd(20, 70, 71, "s92", "s58")
    wiss = 0
    def wqload():
        nonlocal wiss
        a(f"s_mov_b32 s58, {wiss*32768}")
        a(f"buffer_load_dwordx4 a[{4*wiss}:{4*wiss+3}], v58, s[20:23], s58 offen {wpol}"); vm.append(f"wq{wiss}"); wiss += 1
    for j in range(n1):
        if j: kload()
        for x in range(nw): wqload()
    stamp(17)
    a("s_add_u32 s16, s68, s59"); a("s_addc_u32 s17, s69, 0")
    a("s_mov_b32 s12, s8"); a("s_mov_b32 s13, s9"); a("s_mov_b32 s14, 0x100000"); a("s_mov_b32 s15, 0x20000")
    a("s_lshl_b32 s58, s5, 17"); srd(24, 72, 73, 0x20000, "s58")
    def setup_late():
        a("v_lshrrev_b32 v77, 1, v74"); a("v_lshlrev_b32 v78, 4, v1")
        srd(32, 86, 87, WS_SIZE); srd(36, 82, 83, 8192)
        srd(40, 76, 77, 512*3584); srd(44, 78, 79, 512*3584)
        C("role s7 / index s89: 1 gate+up tiles (wg<56), 2 reducer (64<=wg<128), 3 output slice (wg>=224), 0 none")
        a("s_and_b32 s58, s2, 7"); a("s_lshr_b32 s92, s2, 3")
        a("s_mul_i32 s89, s58, 7"); a("s_add_u32 s89, s89, s92")
        a("s_cmp_lt_u32 s2, 56"); a("s_cselect_b32 s7, 1, 0")
        a("s_lshl_b32 s58, s58, 2"); a("s_add_u32 s58, s58, s92"); a("s_sub_u32 s58, s58, 28")
        a("s_cmp_ge_u32 s2, 224"); a("s_cselect_b32 s89, s58, s89"); a("s_cselect_b32 s7, 3, s7")
        a("s_sub_u32 s58, s2, 64"); a("s_cmp_lt_u32 s58, 64"); a("s_cselect_b32 s89, s58, s89"); a("s_cselect_b32 s7, 2, s7")
        a("s_lshl_b32 s6, s3, 2"); a("s_add_u32 s6, s6, s7")
        C("P store offset v68 = ((4w + (i>>2))*4 + (b>>1))*8192 + (2h + (b&1))*128 + (i&3)*32 + g*16")
        a("v_lshrrev_b32 v68, 2, v75"); a("v_lshlrev_b32 v68, 15, v68"); a("v_lshl_add_u32 v68, v74, 4, v68")
        a("v_and_b32 v60, 3, v75"); a("v_lshl_add_u32 v68, v60, 5, v68")
        a("s_lshl_b32 s58, s3, 17"); a("s_lshr_b32 s92, s4, 1"); a("s_lshl_b32 s92, s92, 13"); a("s_add_u32 s58, s58, s92")
        a("s_lshl_b32 s92, s5, 8"); a("s_add_u32 s58, s58, s92")
        a("s_and_b32 s92, s4, 1"); a("s_lshl_b32 s92, s92, 7"); a("s_add_u32 s58, s58, s92"); a("v_add_u32 v68, s58, v68")
        C("H store offset v69 = H + rho*128 + i*8 + (g>>1)*4 ; x offset v76 = (2(rho&3) + (i>>3))*1024 + (rho>>2)*64 + (i&7)*8 + (g>>1)*4")
        a("v_lshlrev_b32 v69, 3, v75"); a("v_lshl_add_u32 v69, v77, 2, v69")
        a("v_lshrrev_b32 v76, 3, v75"); a("v_lshlrev_b32 v76, 10, v76"); a("v_and_b32 v60, 7, v75"); a("v_lshl_add_u32 v76, v60, 3, v76")
        a("v_lshl_add_u32 v76, v77, 2, v76")
        a("s_and_b32 s58, s89, 3"); a("s_lshl_b32 s58, s58, 11"); a("s_lshr_b32 s92, s89, 2"); a("s_lshl_b32 s92, s92, 6"); a("s_add_u32 s58, s58, s92")
        a("v_add_u32 v76, s58, v76")
        a("s_lshl_b32 s58, s89, 7"); a(f"s_add_u32 s58, s58, {WS_H}"); a("v_add_u32 v69, s58, v69")
        a("buffer_load_dword v71, v76, s[28:31], 0 offen"); vm.append("xr")
        C("G store offset v70 = G + (4*s89 + w)*128 + i*16 + g*8")
        a("v_lshlrev_b32 v70, 4, v75"); a("v_lshl_add_u32 v70, v74, 3, v70")
        a("s_lshl_b32 s58, s89, 2"); a("s_add_u32 s58, s58, s3"); a("s_lshl_b32 s58, s58, 7"); a(f"s_add_u32 s58, s58, {WS_G}"); a("v_add_u32 v70, s58, v70")
        C("wave 0 of the reducers marks every hand-off line empty (all ones): own P lines, own H line, four G lines")
        a("s_cmp_eq_u32 s6, 2"); a("s_cbranch_scc0 L_noclr")
        for r in range(4): a(f"v_mov_b32 v{60+r}, -1")
        a("s_lshl_b32 s58, s89, 13"); a("s_add_u32 s92, s58, 4096")
        for u in range(8): a(f"buffer_store_dwordx4 v[60:63], v78, s[32:35], {'s58' if u < 4 else 's92'} offen offset:{(u&3)*1024} sc1")
        a("s_lshl_b32 s58, s89, 9"); a(f"s_add_u32 s58, s58, {WS_G}"); a("s_mov_b32 exec_hi, 0")
        a("buffer_store_dwordx4 v[60:63], v78, s[32:35], s58 offen sc1")
        a("s_lshl_b32 s58, s89, 7"); a(f"s_add_u32 s58, s58, {WS_H}"); a("s_mov_b32 exec_lo, 0xff")
        a("buffer_store_dwordx4 v[60:63], v78, s[32:35], s58 offen sc1")
        a("s_mov_b64 exec, -1")
        a("L_noclr:")
    if not late:
        srd(32, 86, 87, WS_SIZE); srd(36, 82, 83, 8192)
        srd(40, 76, 77, 512*3584); srd(44, 78, 79, 512*3584)
        C("role s7 / index s89: 1 gate+up tiles (wg<56), 2 reducer (64<=wg<128), 3 output slice (wg>=224), 0 none")
        a("s_and_b32 s58, s2, 7"); a("s_lshr_b32 s92, s2, 3")
        a("s_mul_i32 s89, s58, 7"); a("s_add_u32 s89, s89, s92")
        a("s_cmp_lt_u32 s2, 56"); a("s_cselect_b32 s7, 1, 0")
        a("s_lshl_b32 s58, s58, 2"); a("s_add_u32 s58, s58, s92"); a("s_sub_u32 s58, s58, 28")
        a("s_cmp_ge_u32 s2, 224"); a("s_cselect_b32 s89, s58, s89"); a("s_cselect_b32 s7, 3, s7")
        a("s_sub_u32 s58, s2, 64"); a("s_cmp_lt_u32 s58, 64"); a("s_cselect_b32 s89, s58, s89"); a("s_cselect_b32 s7, 2, s7")
        a("s_lshl_b32 s6, s3, 2"); a("s_add_u32 s6, s6, s7")
        C("P store offset v68 = ((4w + (i>>2))*4 + (b>>1))*8192 + (2h + (b&1))*128 + (i&3)*32 + g*16")
        a("v_lshrrev_b32 v68, 2, v75"); a("v_lshlrev_b32 v68, 15, v68"); a("v_lshl_add_u32 v68, v74, 4, v68")
        a("v_and_b32 v60, 3, v75"); a("v_lshl_add_u32 v68, v60, 5, v68")
        a("s_lshl_b32 s58, s3, 17"); a("s_lshr_b32 s92, s4, 1"); a("s_lshl_b32 s92, s92, 13"); a("s_add_u32 s58, s58, s92")
        a("s_lshl_b32 s92, s5, 8"); a("s_add_u32 s58, s58, s92")
        a("s_and_b32 s92, s4, 1"); a("s_lshl_b32 s92, s92, 7"); a("s_add_u32 s58, s58, s92"); a("v_add_u32 v68, s58, v68")
        C("H store offset v69 = H + rho*128 + i*8 + (g>>1)*4 ; x offset v50 = (2(rho&3) + (i>>3))*1024 + (rho>>2)*64 + (i&7)*8 + (g>>1)*4")
        a("v_lshlrev_b32 v69, 3, v75"); a("v_lshl_add_u32 v69, v51, 2, v69")
        a("v_lshrrev_b32 v50, 3, v75"); a("v_lshlrev_b32 v50, 10, v50"); a("v_and_b32 v60, 7, v75"); a("v_lshl_add_u32 v50, v60, 3, v50")
        a("v_lshl_add_u32 v50, v51, 2, v50")
        a("s_and_b32 s58, s89, 3"); a("s_lshl_b32 s58, s58, 11"); a("s_lshr_b32 s92, s89, 2"); a("s_lshl_b32 s92, s92, 6"); a("s_add_u32 s58, s58, s92")
        a("v_add_u32 v50, s58, v50")
        a("s_lshl_b32 s58, s89, 7"); a(f"s_add_u32 s58, s58, {WS_H}"); a("v_add_u32 v69, s58, v69")
        a("buffer_load_dword v71, v50, s[28:31], 0 offen"); vm.append("xr")
        C("G store offset v70 = G + (4*s89 + w)*128 + i*16 + g*8")
        a("v_lshlrev_b32 v70, 4, v75"); a("v_lshl_add_u32 v70, v74, 3, v70")
        a("s_lshl_b32 s58, s89, 2"); a("s_add_u32 s58, s58, s3"); a("s_lshl_b32 s58, s58, 7"); a(f"s_add_u32 s58, s58, {WS_G}"); a("v_add_u32 v70, s58, v70")
        C("the reducers mark every hand-off line empty (all ones): own P lines, own H line, four G lines")
        a("s_cmp_eq_u32 s7, 2"); a("s_cbranch_scc0 L_noclr")
        for r in range(4): a(f"v_mov_b32 v{60+r}, -1")
        a("s_lshl_b32 s58, s89, 13"); a("s_lshl_b32 s92, s3, 11"); a("s_add_u32 s58, s58, s92")
        a("buffer_store_dwordx4 v[60:63], v48, s[32:35], s58 offen sc1")
        a("buffer_store_dwordx4 v[60:63], v48, s[32:35], s58 offen offset:1024 sc1")
        a("s_mov_b64 exec, 0x00ff00ff")
        a("buffer_store_dwordx2 v[60:61], v70, s[32:35], 0 offen sc1")
        a("s_cmp_eq_u32 s3, 0"); a("s_cbranch_scc0 L_noclr")
        a("s_mov_b32 exec_lo, 0xffff"); a("s_mov_b32 exec_hi, 0xffff")
        a("buffer_store_dword v60, v69, s[32:35], 0 offen sc1")
        a("L_noclr:")
        a("s_mov_b64 exec, -1")
    for j in range(nA): kload()
    stamp(1)
    a("s_mov_b32 s60, 0xcccccccc"); a("s_mov_b32 s61, 0xcccccccc"); a("s_mov_b32 s62, 0xaaaaaaaa"); a("s_mov_b32 s63, 0xaaaaaaaa")
    a(f"s_mov_b32 s90, {f32(128 ** -0.5)}"); a(f"s_mov_b32 s91, {f32(1.4426950408889634)}")
    C("selector masks v14..17: lane (g,m): m<8 and m>>1==r -> m&1 ? 0xffff0000 : 0xffff")
    a("v_and_b32 v60, 1, v75"); a("v_lshlrev_b32 v60, 4, v60"); a("v_mov_b32 v61, 0xffff"); a("v_lshlrev_b32 v60, v60, v61")
    a("v_lshrrev_b32 v61, 1, v75")
    for r in range(4):
        a(f"v_cmp_eq_u32 vcc, {r}, v61"); a(f"v_cndmask_b32 v{14+r}, 0, v60, vcc")
    C("---- LayerNorm of x[b]")
    vwait("x")
    stamp(18)
    for j in range(nB): kload()
    for k in range(4):
        a(f"v_lshlrev_b32 v{76+2*k}, 16, v{52+k}"); a(f"v_and_b32 v{77+2*k}, 0xffff0000, v{52+k}")
    a("v_add_f32 v84, v76, v77")
    for k in range(2, 8): a(f"v_add_f32 v84, v84, v{76+k}")
    allred("v_add_f32", "v84", "v85")
    a(f"v_mul_f32 v84, {f32(1/512)}, v84")
    for k in range(8): a(f"v_sub_f32 v{76+k}, v{76+k}, v84")
    a("v_mul_f32 v86, v76, v76")
    for k in range(1, 8): a(f"v_fmac_f32 v86, v{76+k}, v{76+k}")
    allred("v_add_f32", "v86", "v85")
    a(f"v_mul_f32 v86, {f32(1/512)}, v86")
    bf16r("v84"); bf16r("v86")
    a(f"v_add_f32 v86, {f32(1e-5)}, v86"); bf16r("v86")
    a("v_sqrt_f32 v86, v86"); bf16r("v86"); a("v_rcp_f32 v86, v86")
    vwait("xc1")
    for k in range(2):
        a(f"v_lshlrev_b32 v{56+k}, 16, v{56+k}"); a(f"v_sub_f32 v{56+k}, v{56+k}, v84"); bf16r(f"v{56+k}")
        a(f"v_mul_f32 v{56+k}, v{56+k}, v86"); a(f"v_cvt_pk_bf16_f32 v{66+k}, v{56+k}, v{56+k}")
    stamp(2)
    C("---- q = xn @ wq[:, head], 128 rows per wave")
    masks(0, "v66", 0)
    for t in range(32):
        vwait(f"wq{t}")
        if t in (0, 13): stamp(19 + (t > 0))
        mfma(28, mop(t), f"a[{4*t}:{4*t+3}]", t == 0)
        if wiss < 32: wqload()
        if int((t + 1) / kq) > int(t / kq) and kiss < NB: kload()
        if t < 31: masks(t + 1, "v66" if t + 1 < 16 else "v67", (t + 1) & 15)
    for j in range(nbar):
        if kiss < NB: kload()
    a("v_lshlrev_b32 v27, 5, v75"); a("v_lshl_add_u32 v26, v74, 4, v27"); a("s_lshl_b32 s58, s3, 9"); a("v_add_u32 v26, s58, v26")
    a("s_mov_b32 exec_hi, 0")
    a(f"ds_write_b128 v26, v[28:31] offset:{L_QP}")
    a("s_mov_b64 exec, -1")
    a("s_waitcnt lgkmcnt(0)"); a("s_barrier")
    for w in range(4):
        for hh in range(2): a(f"ds_read_b128 v[{76+8*w+4*hh}:{79+8*w+4*hh}], v27 offset:{L_QP+512*w+16*hh}")
    a("s_waitcnt lgkmcnt(0)")
    for k in range(8):
        a(f"v_add_f32 v{76+k}, v{76+k}, v{84+k}"); a(f"v_add_f32 v{92+k}, v{92+k}, v{100+k}")
    for k in range(8): a(f"v_add_f32 v{76+k}, v{76+k}, v{92+k}")
    for k in range(4): a(f"v_cvt_pk_bf16_f32 v{10+k}, v{76+2*k}, v{77+2*k}")
    a("v_lshlrev_b32 v27, 4, v75"); a("v_lshl_add_u32 v27, v74, 2, v27")
    a("v_mov_b32 v64, 0xff800000"); a("v_mov_b32 v65, 0")
    stamp(3)

    def kconsume(i):
        t = i & 15
        x = f"v{48 + (t & 1)}"
        base = RING + 4 * i
        a(f"v_dot2_f32_bf16 {x}, v{base}, v10, 0")
        for r in range(1, 4): a(f"v_dot2_f32_bf16 {x}, v{base+r}, v{10+r}, {x}")
        if t & 1:
            d = f"v{50 + ((t >> 1) & 1)}"
            a(f"v_add_f32_dpp {d}, v48, v48 row_ror:8 row_mask:0xf bank_mask:0x3")
            a(f"v_add_f32_dpp {d}, v49, v49 row_ror:8 row_mask:0xf bank_mask:0xc")
        if t & 3 == 3:
            d = f"v{52 + ((t >> 2) & 1)}"
            a(f"v_add_f32_dpp {d}, v50, v50 row_half_mirror row_mask:0xf bank_mask:0x5")
            a(f"v_add_f32_dpp {d}, v51, v51 row_half_mirror row_mask:0xf bank_mask:0xa")
        if t & 7 == 7:
            d = f"v{54 + ((t >> 3) & 1)}"
            a("v_add_f32_dpp v52, v52, v52 quad_perm:[2,3,0,1] row_mask:0xf bank_mask:0xf")
            a("v_add_f32_dpp v53, v53, v53 quad_perm:[2,3,0,1] row_mask:0xf bank_mask:0xf")
            a(f"v_cndmask_b32 {d}, v52, v53, s[60:61]")
        if t == 15:
            s = f"v{46 + (i >> 4)}"
            a("v_add_f32_dpp v54, v54, v54 quad_perm:[1,0,3,2] row_mask:0xf bank_mask:0xf")
            a("v_add_f32_dpp v55, v55, v55 quad_perm:[1,0,3,2] row_mask:0xf bank_mask:0xf")
            a(f"v_cndmask_b32 {s}, v54, v55, s[62:63]")
            bf16r(s); a(f"v_mul_f32 {s}, s90, {s}"); bf16r(s)
            a(f"v_max_f32 v64, v64, {s}")
    C("---- lap 0: the keys that arrived while q was formed")
    a(f"s_mov_b32 s55, {NB*4096}")
    left = NB + D - kiss
    early = list(early)
    while early and early[-1] >= NB - (left - len(early)): early.pop()
    sched = early + list(range(NB - (left - len(early)), NB))
    assert len(set(sched)) == left, (sched, left)
    for i in range(NB):
        vwait(f"k{i}")
        if i in sched:
            assert kiss - NB < i
            kload()
        kconsume(i)
    stamp(4)
    C("---- the next laps also bring in this head's rows of wo")
    wo = 0
    if wov: nwl = 0; wo = 32
    for lap in range(1, nwl + 1):
        a("s_mov_b32 s54, s55"); a(f"s_add_u32 s55, s55, {NB*4096}")
        for k in range(2 * lap): a(f"v_mov_b32 v{46-2*lap+k}, v{48-2*lap+k}")
        kbase = NB * lap
        if lap == 1:
            for j in range((D1 or D) - D): kload()
        for i in range(NB):
            vwait(f"k{NB*lap+i}")
            if kiss < (nwl + 1) * NB + D: kload()
            while wo < 32 and (i % nwl == 0 if wend == 32 else wo * wend < (i + 1) * 32) and (wend < 32 or wo * nwl <= NB * (lap - 1) + i):
                a(f"s_mov_b32 s58, {wo*4096}")
                a(f"buffer_load_dwordx4 a[{4*wo}:{4*wo+3}], v59, s[24:27], s58 offen {wpol}"); vm.append(f"wo{wo}"); wo += 1
            if mpf == 1 and lap == 1:
                if i == 0:
                    srd(20, 80, 81, 1792*1024)
                    a("s_lshl_b32 s96, s2, 2"); a("s_add_u32 s96, s96, s3"); a("s_lshl_b32 s96, s96, 11"); a("v_lshlrev_b32 v62, 4, v1")
                if i % 5 == 2 and i // 5 < 6:
                    k = i // 5
                    a(f"buffer_load_dwordx4 v[76:79], v62, s[{(40, 44, 20)[k >> 1]}:{(43, 47, 23)[k >> 1]}], s96 offen offset:{(k & 1) * 1024}"); vm.append(f"pf{k}")
            kconsume(i)
            if late and lap == 1 and i == 4: setup_late()
    assert wo == 32

    leads = ([D - 1] if ahead else []) + [D, D + hi]
    def decide(name, k):
        a("s_waitcnt lgkmcnt(0)")
        a("s_sub_u32 s58, s52, s48"); a("s_lshl_b32 s58, s58, 8"); a("s_sub_u32 s58, s58, s49"); a("s_add_u32 s49, s49, s57")
        a("s_sub_u32 s19, s19, 1"); a("s_cmp_ge_i32 s19, 0"); a("s_cselect_b32 s58, 1, s58")
        a("s_cmp_gt_i32 s58, 0"); a(f"s_cbranch_scc1 {name}_{k}_{D+hi}")
        if ahead:
            a("s_cmp_lt_i32 s58, s93"); a(f"s_cbranch_scc1 {name}_{k}_{D-1}")
    def segment(name, k, DD, consume):
        tag = f"{name}_{k}_{DD}"; i0 = 16 * k
        a(f"{tag}:")
        for j in range(leads[0], DD):
            a(f"s_cmp_gt_u32 s51, {j}"); a(f"s_cbranch_scc1 {tag}_i{j}")
            sload(i0 + j)
            a(f"{tag}_i{j}:")
        nskip = leads[-1] - DD
        for i in range(i0, i0 + 16):
            a(f"s_waitcnt vmcnt({DD - 1})")
            skip = i - i0 < nskip
            if skip: a(f"s_cmp_gt_u32 s51, {DD + i - i0}"); a(f"s_cbranch_scc1 {tag}_s{i}")
            sload(i + DD)
            if skip: a(f"{tag}_s{i}:")
            if i - i0 == nskip: a(f"s_mov_b32 s51, {DD}")
            if i - i0 == 15: a("s_memrealtime s[52:53]")
            consume(i)
    def cal_events(base):
        lo, up = (nwl + 1, 8) if base == 0 else (8, 16)
        if lo <= cal < up:
            a("s_waitcnt lgkmcnt(0)"); a(f"s_cmp_eq_u32 s56, {cal-base}"); a("s_cselect_b32 s88, s52, s88")
        if lo <= cal + 2 < up:
            a("s_lshl_b32 s58, s6, 4"); a("s_add_u32 s58, s58, s56")
            a(f"s_cmp_eq_u32 s58, {32+cal+2-base}"); a("s_cbranch_scc0 L_norep")
            a("s_waitcnt lgkmcnt(0)")
            a("s_sub_u32 s58, s52, s88"); a("s_min_u32 s58, s58, 0x7fff"); a("s_max_u32 s58, s58, 1"); a("s_pack_ll_b32_b16 s58, s52, s58")
            a("v_mov_b32 v61, s58"); a("s_lshl_b32 s58, s89, 2"); a("v_mov_b32 v60, s58"); a("s_mov_b64 exec, 1")
            a("global_store_dword v60, v61, s[84:85] sc1")
            a("s_mov_b64 exec, -1")
            a("L_norep:")
        if lo <= cal + 2 < up and pre:
            a("s_and_b32 s58, s7, 1"); a("s_lshl_b32 s58, s58, 4"); a("s_add_u32 s58, s58, s56")
            a(f"s_cmp_eq_u32 s58, {16+cal+2-base}"); a(f"s_cselect_b32 s19, {pre}, s19")
        x = "K" if base == 0 else "V"
        a("s_cmp_lg_u32 s50, 0"); a(f"s_cbranch_scc0 L_nocal{x}")
        if cal + 3 - base > max(lo - base, 0):
            a(f"s_cmp_ge_u32 s56, {cal+3-base}"); a(f"s_cbranch_scc0 L_nocal{x}")
        a("v_cmp_eq_u32 vcc, 0, v72"); a(f"s_cbranch_vccz L_cal{x}")
        a("v_lshlrev_b32 v60, 2, v1"); a("global_load_dword v72, v60, s[84:85] sc1")
        a(f"s_branch L_nocal{x}")
        a(f"L_cal{x}:")
        a("s_mov_b32 s50, 0")
        if ctl:
            a("s_waitcnt lgkmcnt(0)")
            a("s_mov_b32 s48, s52")
            a("v_bfe_u32 v60, v72, 16, 15"); a("v_subrev_u32 v61, s52, v72"); a("v_bfe_i32 v61, v61, 0, 16")
            allred("v_add_u32", "v60", "v62"); allred("v_add_u32", "v61", "v62")
            a("v_readfirstlane_b32 s57, v60"); a("v_readfirstlane_b32 s49, v61")
            if eps > 0: a(f"s_lshr_b32 s58, s57, {eps}"); a("s_add_u32 s57, s57, s58")
            if eps < 0: a(f"s_lshr_b32 s58, s57, {-eps}"); a("s_sub_u32 s57, s57, s58")
            a(f"s_add_u32 s58, s56, {base-cal-2}"); a("s_lshl_b32 s58, s58, 1"); a("s_mul_i32 s58, s58, s57")
            a("s_lshl_b32 s49, s49, 2"); a("s_add_u32 s49, s49, s58")
            a(f"s_mov_b32 s58, {slack*256}")
            a("s_cmp_eq_u32 s7, 1"); a(f"s_cselect_b32 s58, {(slack-head[0])*256}, s58")
            a("s_cmp_eq_u32 s7, 3"); a(f"s_cselect_b32 s58, {(slack-head[1])*256}, s58")
            a("s_add_u32 s49, s49, s58")
            if ahead: a(f"s_mov_b32 s93, {-ahead*256}")
        a(f"L_nocal{x}:")
    def laploop(name, head_code, consume, fin=0):
        others = [x for x in leads if x != D]
        a(".p2align 3")
        a(f"{name}:")
        head_code()
        if wov and fin: a("s_cmp_eq_u32 s56, s96"); a(f"s_cbranch_scc1 {name}_wo")
        decide(name, 0)
        segment(name, 0, D, consume)
        a(f"{name}_mid:")
        if fin: a("s_cmp_eq_u32 s56, 7"); a(f"s_cbranch_scc1 {name}_f")
        decide(name, 1)
        segment(name, 1, D, consume)
        a(f"{name}_nxt:")
        a("s_add_u32 s56, s56, 1"); a("s_cmp_lt_u32 s56, 8"); a(f"s_cbranch_scc1 {name}")
        a(f"s_branch {name}_end")
        for x in others:
            segment(name, 0, x, consume); a(f"s_branch {name}_mid")
            segment(name, 1, x, consume); a(f"s_branch {name}_nxt")
        if wov and fin:
            DD = D + wod
            a(f"{name}_wo:")
            a("s_add_u32 s49, s49, s57"); a("s_add_u32 s49, s49, s57")
            for j in range(leads[0], DD):
                a(f"s_cmp_gt_u32 s51, {j}"); a(f"s_cbranch_scc1 {name}_wi{j}")
                sload(j)
                a(f"{name}_wi{j}:")
            nskip = leads[-1] - DD
            for i in range(NB):
                a(f"s_waitcnt vmcnt({DD - 1 + min(i, DD)})")
                skip = i < nskip
                if skip: a(f"s_cmp_gt_u32 s51, {DD + i}"); a(f"s_cbranch_scc1 {name}_ws{i}")
                sload(i + DD)
                if skip: a(f"{name}_ws{i}:")
                if i == nskip: a(f"s_mov_b32 s51, {DD}")
                a(f"s_mov_b32 s58, {i*4096}")
                a(f"buffer_load_dwordx4 a[{4*i}:{4*i+3}], v59, s[24:27], s58 offen {wpol}")
                if i == NB - 1: a("s_memrealtime s[52:53]")
                consume(i)
            a(f"s_branch {name}_nxt")
        if fin:
            a(f"{name}_f:")
            for j in range(leads[0], leads[-1]):
                a(f"s_cmp_gt_u32 s51, {j}"); a(f"s_cbranch_scc1 {name}_f{j}")
                sload(16 + j)
                a(f"{name}_f{j}:")
            nx = 16 + leads[-1]
            while nx < min(16 + fin, NB): sload(nx); nx += 1
            if prescale:
                C("every wave has published its maximum and sum: this wave's weight v60 = exp2(m_w - m) / L")
                a("v_mov_b32 v48, 0"); a("s_waitcnt lgkmcnt(0)"); a("s_barrier")
                a(f"ds_read_b128 v[76:79], v48 offset:{L_ML}"); a(f"ds_read_b128 v[80:83], v48 offset:{L_ML+16}")
                a("s_waitcnt lgkmcnt(0)")
                a("v_min_f32 v48, v76, v78"); a("v_min3_f32 v48, v48, v80, v82")
                for w in range(4): a(f"v_sub_f32 v{76+2*w}, v48, v{76+2*w}")
                a("v_sub_f32 v60, v48, v64")
                for w in range(4): a(f"v_exp_f32 v{76+2*w}, v{76+2*w}")
                a("v_exp_f32 v60, v60")
                a("v_mul_f32 v49, v76, v77")
                for w in range(1, 4): a(f"v_fmac_f32 v49, v{76+2*w}, v{77+2*w}")
                a("v_rcp_f32 v49, v49")
                a("v_mul_f32 v60, v60, v49")
                if slide: a("v_accvgpr_mov_b32 a128, a0"); a("v_accvgpr_mov_b32 a129, a1")
            npf = 0
            for i in range(16, NB):
                a(f"s_waitcnt vmcnt({nx - 1 - i + npf})")
                if nx < NB: sload(nx); nx += 1
                elif mpf >= 2 and i >= pf0:
                    for x in range(mpf - 1):
                        if npf < pfn:
                            k = npf
                            pfload(k); npf += 1
                consume(i)
        a(f"{name}_end:")
    if wov:
        a(f"s_mul_i32 s96, s5, {wov}"); a("s_lshr_b32 s96, s96, 5")
    C("s48 time base, s49 deadline (1/256 ticks), s50 reports seen, s51 depth in use, s[52:53] clock, s57 pace, s19 fixed deep segments")
    a(f"s_mov_b32 s56, {nwl+1}")
    a("s_memrealtime s[52:53]"); a(f"s_mov_b32 s51, {D}"); a("s_mov_b32 s50, 99"); a("s_mov_b32 s57, 0")
    a("s_mov_b32 s48, s18"); a("s_mov_b32 s49, 0x7fffffff"); a("s_mov_b32 s88, 0"); a(f"s_mov_b32 s93, {0 if initlow else 0x80000000}"); a("v_mov_b32 v72, 0")
    a("s_cmp_eq_u32 s7, 1"); a(f"s_cselect_b32 s19, {hiu[0]-4}, 0"); a("s_cmp_eq_u32 s7, 3"); a(f"s_cselect_b32 s19, {hiu[1]-4}, s19")
    def khead():
        lapstamp(16)
        a("s_mov_b32 s54, s55"); a(f"s_add_u32 s55, s55, {NB*4096}")
        a("s_cmp_eq_u32 s56, 7")
        a("s_cselect_b32 s12, s16, s12"); a("s_cselect_b32 s13, s17, s13"); a("s_cselect_b32 s55, 0, s55")
        for k in range(14): a(f"v_mov_b32 v{32+k}, v{34+k}")
        cal_events(0)
        if vt:
            a("s_lshl_b32 s58, s3, 4"); a("s_add_u32 s58, s58, s56")
            a(f"s_cmp_eq_u32 s58, {vt}"); a("s_cbranch_scc0 L_novt")
            a("v_mov_b32 v60, 0"); a("s_mov_b64 exec, 1")
            a("global_load_dword v76, v60, s[16:17] nt")
            a("s_mov_b64 exec, -1")
            a("L_novt:")
    laploop("L_k", khead, kconsume)
    stamp(5)
    C("---- maximum of this wave's scores, in log2 units, negated")
    allred("v_max_f32", "v64", "v48")
    a("v_mul_f32 v64, s91, v64"); a("v_sub_f32 v64, 0, v64")
    a("s_mov_b32 s8, s12"); a("s_mov_b32 s9, s13"); a("s_mov_b32 s56, 0")
    for r in range(4): a(f"v_mov_b32 v{28+r}, 0")
    def pfload(k):
        k = pfo[k]
        sr = f"s[{(40, 44, 20)[k >> 1]}:{(43, 47, 23)[k >> 1]}]"
        if xpf: a(f"buffer_load_dwordx4 a[132:135], {'v58' if k < 4 else 'v59'}, {sr}, s{(96 if k < 4 else 98) + (k & 1)} offen")
        else: a(f"buffer_load_dwordx4 a[132:135], v58, {sr}, s96 offen offset:{(k & 1) * 1024}")
    if mpf >= 2:
        C("every wave fetches a share of the FFN weights as its stream ends, so that their users find them in a cache")
        srd(20, 80, 81, 1792*1024)
        if xpf:
            a("s_lshr_b32 s98, s2, 3"); a("s_lshl_b32 s98, s98, 2"); a("s_add_u32 s98, s98, s3")
            a(f"s_mul_i32 s96, s98, {4*3584}"); a(f"s_add_u32 s97, s96, {2*3584}")
            a(f"s_mul_i32 s98, s98, {14*1024}"); a("s_add_u32 s99, s98, 8192")
            a("s_and_b32 s58, s2, 7"); a("s_mul_i32 s92, s58, 448"); a("s_and_b32 s92, s92, 0xff80"); a("s_lshl_b32 s58, s58, 7")
            a("v_lshrrev_b32 v58, 5, v1"); a("v_mul_u32_u24 v58, 3584, v58"); a("v_and_b32 v59, 31, v1"); a("v_lshl_add_u32 v58, v59, 4, v58"); a("v_add_u32 v58, s92, v58")
            a("v_lshrrev_b32 v59, 3, v1"); a("v_lshlrev_b32 v59, 10, v59"); a("v_and_b32 v48, 7, v1"); a("v_lshl_add_u32 v59, v48, 4, v59"); a("v_add_u32 v59, s58, v59")
        else:
            a("s_lshl_b32 s96, s2, 2"); a("s_add_u32 s96, s96, s3"); a("s_lshl_b32 s96, s96, 11"); a("v_lshlrev_b32 v58, 4, v1")
    def vhead():
        lapstamp(24)
        a("s_mov_b32 s54, s55"); a(f"s_add_u32 s55, s55, {NB*4096}")
        for k in range(2):
            a(f"v_fma_f32 v{56+k}, v{32+k}, s91, v64"); a(f"v_exp_f32 v{56+k}, v{56+k}")
            a(f"v_add_f32 v65, v65, v{56+k}"); a(f"v_cvt_pk_bf16_f32 v{66+k}, v{56+k}, v{56+k}")
        for k in range(14): a(f"v_mov_b32 v{32+k}, v{34+k}")
        masks(0, "v66", 0)
        cal_events(8)
        if lasthi:
            a(f"s_cmp_eq_u32 s56, {7 if lasthi == 1 else 6}"); a(f"s_cselect_b32 s19, {1 if lasthi == 1 else 3}, s19")
        if touch:
            C("first touch of the pages the last stages use, so that their translations are at hand (values unused)")
            a(f"s_cmp_eq_u32 s56, {touch}"); a("s_cbranch_scc0 L_notouch")
            a("v_mov_b32 v60, 0"); a("s_mov_b64 exec, 1")
            a(f"s_mov_b32 s58, {WS_G+0x7f00}")
            a("buffer_load_dword v76, v60, s[32:35], s58 offen")
            a("s_and_b32 s58, s7, 1"); a("s_cbranch_scc0 L_notouch1")
            a("buffer_load_dword v76, v60, s[36:39], 0 offen")
            a("buffer_load_dword v76, v60, s[40:43], 0 offen"); a("buffer_load_dword v76, v60, s[44:47], 0 offen")
            a("global_load_dword v76, v60, s[80:81]")
            a("L_notouch1:")
            a("s_mov_b64 exec, -1")
            a("L_notouch:")
        if cpf2:
            a(f"s_cmp_eq_u32 s56, {cpf2}"); a("s_cbranch_scc0 L_nocpf2")
            a("s_getpc_b64 s[60:61]")
            a("L_pc2:")
            a("s_add_u32 s60, s60, L_v_end-L_pc2"); a("s_addc_u32 s61, s61, 0"); a("s_and_b32 s60, s60, 0xffffff80")
            a("s_lshr_b32 s58, s2, 3"); a("s_lshl_b32 s58, s58, 8"); a("v_add_u32 v60, s58, v0"); a("v_lshlrev_b32 v60, 4, v60")
            a("v_cmp_gt_u32 vcc, L_end-L_v_end, v60"); a("s_and_saveexec_b64 s[62:63], vcc"); a("s_cbranch_execz L_nocpf3")
            a("global_load_dwordx4 v[76:79], v60, s[60:61]")
            a("L_nocpf3:")
            a("s_mov_b64 exec, -1")
            a("L_nocpf2:")
        a("s_cmp_eq_u32 s56, 7"); a("s_cbranch_scc0 L_nolast")
        allred("v_add_f32", "v65", "v48")
        a("s_lshl_b32 s58, s3, 3"); a("v_mov_b32 v48, s58"); a("s_mov_b64 exec, 1")
        a(f"ds_write_b64 v48, v[64:65] offset:{L_ML}")
        a("s_mov_b64 exec, -1")
        a("s_cmp_eq_u32 s50, 0"); a("s_cbranch_scc1 L_nolast")
        a(f"s_mov_b32 s88, {SPIN}"); a("v_lshlrev_b32 v60, 2, v1")
        a("L_cnt:")
        a("global_load_dword v72, v60, s[84:85] sc1"); a("s_waitcnt vmcnt(0)")
        a("v_cmp_eq_u32 vcc, 0, v72"); a("s_cbranch_vccz L_nolast")
        a("s_sleep 8"); a("s_sub_u32 s88, s88, 1"); a("s_cbranch_scc0 L_cnt")
        a("L_nolast:")
    def vconsume(i):
        mfma(28, mop(i), ring(i), False)
        if i < NB - 1: masks(i + 1, f"v{66 + ((i + 1) >> 4)}", bitrev((i + 1) & 15))
    if vpol is not None: cur[0] = vpol
    laploop("L_v", vhead, vconsume, fin)
    stamp(6)
    C("---- combine the four waves, project through wo, publish the partial row")
    if prescale:
        for r in range(4): a(f"v_mul_f32 v{28+r}, v{28+r}, v60")
        a("s_mov_b32 exec_hi, 0")
        a(f"ds_write_b128 v26, v[28:31] offset:{L_OP}")
        a("s_mov_b64 exec, -1")
        a("s_waitcnt lgkmcnt(0)"); a("s_barrier")
        for w in range(4): a(f"ds_read2st64_b32 v[{84+2*w}:{85+2*w}], v27 offset0:{L_OP//256+2*w} offset1:{L_OP//256+2*w+1}")
        a("s_waitcnt lgkmcnt(2)")
        for k in range(2): a(f"v_add_f32 v{84+k}, v{84+k}, v{86+k}")
        a("s_waitcnt lgkmcnt(0)")
        for k in range(2): a(f"v_add_f32 v{88+k}, v{88+k}, v{90+k}")
        for k in range(2): a(f"v_add_f32 v{56+k}, v{84+k}, v{88+k}")
        for k in range(2): a(f"v_cvt_pk_bf16_f32 v{66+k}, v{56+k}, v{56+k}")
    else:
        a("v_mov_b32 v48, 0")
        a("s_mov_b32 exec_hi, 0")
        a(f"ds_write_b128 v26, v[28:31] offset:{L_OP}")
        a("s_mov_b64 exec, -1")
        a("s_waitcnt lgkmcnt(0)"); a("s_barrier")
        a(f"ds_read_b128 v[76:79], v48 offset:{L_ML}"); a(f"ds_read_b128 v[80:83], v48 offset:{L_ML+16}")
        for w in range(4): a(f"ds_read2st64_b32 v[{84+2*w}:{85+2*w}], v27 offset0:{L_OP//256+2*w} offset1:{L_OP//256+2*w+1}")
        a("s_waitcnt lgkmcnt(4)")
        a("v_min_f32 v48, v76, v78"); a("v_min3_f32 v48, v48, v80, v82")
        for w in range(4): a(f"v_sub_f32 v{76+2*w}, v48, v{76+2*w}")
        for w in range(4): a(f"v_exp_f32 v{76+2*w}, v{76+2*w}")
        a("v_mul_f32 v49, v76, v77")
        for w in range(1, 4): a(f"v_fmac_f32 v49, v{76+2*w}, v{77+2*w}")
        a("v_rcp_f32 v49, v49")
        a("s_waitcnt lgkmcnt(0)")
        for k in range(2):
            a(f"v_mul_f32 v{56+k}, v76, v{84+k}")
            for w in range(1, 4): a(f"v_fmac_f32 v{56+k}, v{76+2*w}, v{84+2*w+k}")
        for k in range(2):
            a(f"v_mul_f32 v{56+k}, v{56+k}, v49"); a(f"v_cvt_pk_bf16_f32 v{66+k}, v{56+k}, v{56+k}")
    if slide:
        C("product t takes the upper half of row group t and the lower half of group t+1, so a selector pair serves two products")
        def sel(t):
            for r in range(2):
                a(f"v_and_b32_dpp v{128+2*t+r}, v{66 + ((t & 31) >> 4)}, v{14+2*(t&1)+r} row_newbcast:{t & 15} row_mask:0xf bank_mask:0xf")
        sel(0); sel(1); sel(2)
        for t in range(32):
            mfma(28 if t & 1 else 76, f"v[{128+2*t}:{131+2*t}]", f"a[{4*t+2}:{4*t+5}]", t < 2)
            if t + 3 <= 32: sel(t + 3)
        for r in range(4): a(f"v_permlane16_swap_b32 v{76+r}, v{76+r}")
        for r in range(4): a(f"v_add_f32 v{28+r}, v{28+r}, v{76+r}")
    else:
        masks(0, "v66", 0)
        for t in range(32):
            if t < 31: masks(t + 1, "v66" if t + 1 < 16 else "v67", (t + 1) & 15)
            mfma(28, mop(t), f"a[{4*t}:{4*t+3}]", t == 0)
    a("s_mov_b32 exec_hi, 0")
    for r in range(4): a(f"v_min_u32 v{28+r}, -2, v{28+r}")
    a("buffer_store_dwordx4 v[28:31], v68, s[32:35], 0 offen sc1")
    a("s_mov_b64 exec, -1")
    stamp(7)
    if rskip: a("s_cmp_eq_u32 s6, 2"); a("s_cbranch_scc1 L_s2")
    if pfw:
        a("s_and_b32 s58, s7, 1"); a("s_cbranch_scc1 L_nopfw"); a("s_cmp_eq_u32 s6, 2"); a("s_cbranch_scc1 L_nopfw")
        a("s_waitcnt vmcnt(0)")
        a("L_nopfw:")
    if mpf >= 2:
        for k in range(0 if pf0 >= NB else pfn, 6): pfload(k)
    if not rskip: a("s_cmp_eq_u32 s6, 2"); a("s_cbranch_scc1 L_s2")
    a("s_and_b32 s58, s7, 1"); a("s_cbranch_scc0 L_fin")
    C("---- this workgroup's FFN weights -> LDS: A via s[40:43], B via s[44:47]; s96/s97 source, s98/s99 LDS, s100/s101 steps")
    a("s_cmp_eq_u32 s7, 1"); a("s_cbranch_scc0 L_dmaD")
    a("v_lshrrev_b32 v62, 2, v1"); a("s_movk_i32 s58, 3584"); a("v_mul_u32_u24 v62, s58, v62")
    a("v_and_b32 v63, 3, v1"); a("v_lshl_add_u32 v62, v63, 4, v62")
    a("s_lshl_b32 s58, s89, 6"); a("v_add_u32 v62, s58, v62")
    a(f"s_mul_i32 s96, s3, {128*3584}"); a("s_mov_b32 s97, s96")
    a("s_lshl_b32 s98, s3, 13"); a(f"s_add_u32 s98, s98, {L_W}"); a("s_add_u32 s99, s98, 32768")
    a(f"s_mov_b32 s100, {16*3584}"); a("s_mov_b32 s101, 1024"); a("s_mov_b32 s93, 8")
    a("s_branch L_dma")
    a("L_dmaD:")
    a("v_lshrrev_b32 v62, 1, v1"); a("v_lshlrev_b32 v62, 10, v62"); a("v_and_b32 v63, 1, v1"); a("v_lshl_add_u32 v62, v63, 4, v62")
    a("s_lshl_b32 s58, s89, 5"); a("v_add_u32 v62, s58, v62")
    for d in (40, 44):
        a(f"s_mov_b32 s{d}, s80"); a(f"s_mov_b32 s{d+1}, s81"); a(f"s_mov_b32 s{d+2}, {1792*1024}")
    a(f"s_mul_i32 s96, s3, {448*1024}"); a("s_add_u32 s97, s96, 32768")
    a(f"s_mul_i32 s98, s3, {448*32}"); a(f"s_add_u32 s98, s98, {L_W}"); a("s_add_u32 s99, s98, 1024")
    a("s_mov_b32 s100, 65536"); a("s_mov_b32 s101, 2048"); a("s_mov_b32 s93, 7")
    a("L_dma:")
    a("s_mov_b32 m0, s98"); a("s_sub_u32 s93, s93, 1")
    a(f"buffer_load_dwordx4 v62, s[40:43], s96 offen {fpol} lds")
    a("s_mov_b32 m0, s99"); a("s_add_u32 s96, s96, s100")
    a(f"buffer_load_dwordx4 v62, s[44:47], s97 offen {fpol} lds")
    a("s_add_u32 s97, s97, s100"); a("s_add_u32 s98, s98, s101"); a("s_add_u32 s99, s99, s101")
    a("s_cmp_lg_u32 s93, 0"); a("s_cbranch_scc1 L_dma")
    C("exchange addresses v63 = g*128 + b*16, v26 = w*512 + v63 ; v60 = 16g + r', v61 = c' for the transposing reads")
    a("v_and_b32 v27, 7, v75"); a("v_lshlrev_b32 v63, 4, v27"); a("v_lshl_add_u32 v63, v74, 7, v63")
    a("s_lshl_b32 s58, s3, 9"); a("v_add_u32 v26, s58, v63")
    a("v_lshrrev_b32 v60, 2, v75"); a("v_lshl_add_u32 v60, v74, 4, v60"); a("v_and_b32 v61, 3, v1")
    a("s_cmp_eq_u32 s7, 3"); a("s_cbranch_scc1 L_s4")

    C("---- gate / up: four tiles of 8+8 columns, 128 rows of h per wave; LayerNorm is applied to the sums")
    a("v_lshlrev_b32 v60, 6, v60"); a("v_lshrrev_b32 v49, 1, v61"); a("v_lshl_add_u32 v60, v49, 15, v60")
    a("v_and_b32 v49, 1, v61"); a("v_lshl_add_u32 v60, v49, 3, v60")
    a("s_lshl_b32 s58, s3, 13"); a(f"s_add_u32 s58, s58, {L_W}"); a("v_add_u32 v60, s58, v60")
    for r in range(4): a(f"v_mov_b32 v{112+r}, 0x3f803f80")
    C("h fragment address v62 = (g>>1)*512 + (b>>1)*128 + (b&1)*64 + (g&1)*32 + half*16")
    a("v_lshrrev_b32 v62, 1, v74"); a("v_lshlrev_b32 v62, 9, v62"); a("v_bfe_u32 v49, v75, 1, 2"); a("v_lshl_add_u32 v62, v49, 7, v62")
    a("v_and_b32 v49, 1, v75"); a("v_lshl_add_u32 v62, v49, 6, v62"); a("v_and_b32 v49, 1, v74"); a("v_lshl_add_u32 v62, v49, 5, v62")
    a("v_lshrrev_b32 v49, 3, v75"); a("v_lshl_add_u32 v62, v49, 4, v62")
    a(f"s_mov_b32 s58, {L_DUMP-L_T2}"); a("v_mad_u32_u24 v26, v49, s58, v26")
    a("s_lshl_b32 s58, s3, 11"); a("v_add_u32 v63, s58, v63")
    a("v_lshrrev_b32 v49, 1, v74"); a("v_lshlrev_b32 v49, 2, v49"); a("v_lshlrev_b32 v61, 5, v27"); a("v_add_u32 v49, v49, v61")
    a("s_lshl_b32 s58, s3, 3"); a("v_add_u32 v49, s58, v49")
    a("s_lshl_b32 s59, s3, 11"); a(f"s_add_u32 s59, s59, {WS_H}")
    def colsum():
        a("s_waitcnt lgkmcnt(0)")
        for k in range(4):
            for t in range(4): mfma(224 + 4*t, f"v[{128+16*t+4*k}:{131+16*t+4*k}]", "v[112:115]", k == 0)
        for t in range(4): a(f"ds_write_b128 v26, v[{224+4*t}:{227+4*t}] offset:{L_CS+2048*t}")
    if staged:
        for u in range(2):
            a(f"s_waitcnt vmcnt({8 - 8*u})")
            if u: stamp(13)
            for t in range(4):
                for hf in range(2):
                    for sec in range(2): trread(128 + 16*t + 8*u + 4*hf + 2*sec, "v60", (64*u + 8*hf + 4*sec) * 64 + 16*t)
                if t == 2: a("s_waitcnt lgkmcnt(6)")
            if u == 0: a("s_waitcnt lgkmcnt(0)")
    else:
        a("s_waitcnt vmcnt(0)")
        stamp(13)
        for t in range(4):
            for u in range(2):
                for hf in range(2):
                    for sec in range(2): trread(128 + 16*t + 8*u + 4*hf + 2*sec, "v60", (64*u + 8*hf + 4*sec) * 64 + 16*t)
            if t: a("s_waitcnt lgkmcnt(6)")
        a("s_waitcnt lgkmcnt(0)")
        for k in range(4):
            for t in range(4): mfma(224 + 4*t, f"v[{128+16*t+4*k}:{131+16*t+4*k}]", "v[112:115]", k == 0)
        for t in range(4): a(f"ds_write_b128 v26, v[{224+4*t}:{227+4*t}] offset:{L_CS+2048*t}")
    if cspre:
        a("s_waitcnt lgkmcnt(0)"); a("s_barrier")
        for w in range(4): a(f"ds_read_b128 v[{224+4*w}:{227+4*w}], v63 offset:{L_CS+512*w}")
        a("s_waitcnt lgkmcnt(0)")
        for r in range(4): a(f"v_add_f32 v{224+r}, v{224+r}, v{228+r}"); a(f"v_add_f32 v{232+r}, v{232+r}, v{236+r}")
        for r in range(4): a(f"v_add_f32 v{108+r}, v{224+r}, v{232+r}")
    def ldH(b): return [f"buffer_load_dwordx4 v[{b+4*u}:{b+3+4*u}], v62, s[32:35], s59 offen offset:{u*1024} sc1" for u in range(2)]
    def useH(b):
        n = 0
        for u in range(2):
            for t in range(4):
                for hf in range(2):
                    mfma(192 + 8*t + 4*hf, f"v[{128+16*t+8*u+4*hf}:{131+16*t+8*u+4*hf}]", f"v[{b+4*u}:{b+3+4*u}]", u == 0)
                    if n < 8:
                        a(f"v_dot2_f32_bf16 v52, v{b+n}, v112, {'0' if n == 0 else 'v52'}")
                        a(f"v_dot2_f32_bf16 v53, v{b+n}, v{b+n}, {'0' if n == 0 else 'v53'}")
                    if n == 9:
                        for r in range(2): a(f"v_add_f32_dpp v{52+r}, v{52+r}, v{52+r} row_ror:8 row_mask:0xf bank_mask:0xf")
                    if n == 11: a("v_permlane32_swap_b32 v52, v53"); a("v_add_f32 v52, v52, v53"); a("v_mov_b32 v53, v52")
                    if n == 13: a("v_permlane16_swap_b32 v52, v53"); a("v_add_f32 v52, v52, v53"); a(f"ds_write_b32 v49, v52 offset:{L_ST}")
                    n += 1
    poll2("L_pH", ldH, 8, (76, 84), useH, colsum if staged else None)
    stamp(10)
    for t in range(4):
        for r in range(4): a(f"v_add_f32_dpp v{192+8*t+r}, v{196+8*t+r}, v{192+8*t+r} row_ror:8 row_mask:0xf bank_mask:0xf")
        a(f"ds_write_b128 v26, v[{192+8*t}:{195+8*t}] offset:{L_T2+2048*t}")
    a("s_waitcnt lgkmcnt(0)"); a("s_barrier")
    for k in range(2): a(f"ds_read_b128 v[{92+4*k}:{95+4*k}], v61 offset:{L_ST+16*k}")
    if not cspre:
        for w in range(4): a(f"ds_read_b128 v[{224+4*w}:{227+4*w}], v63 offset:{L_CS+512*w}")
    for w in range(4): a(f"ds_read_b128 v[{116+4*w}:{119+4*w}], v63 offset:{L_T2+512*w}")
    a(f"s_waitcnt lgkmcnt({4 if cspre else 8})")
    for k in range(2): a(f"v_add_f32 v{92+k}, v{92+k}, v{94+k}"); a(f"v_add_f32 v{96+k}, v{96+k}, v{98+k}")
    a("v_add_f32 v52, v92, v96"); a("v_add_f32 v53, v93, v97")
    a(f"v_mul_f32 v52, {f32(1/512)}, v52"); a(f"v_mul_f32 v53, {f32(1/512)}, v53")
    a("v_fma_f32 v53, -v52, v52, v53"); a("v_max_f32 v53, 0, v53")
    bf16r("v53"); bf16r("v52")
    a(f"v_add_f32 v53, {f32(1e-5)}, v53"); bf16r("v53")
    a("v_sqrt_f32 v53, v53")
    if not cspre:
        a("s_waitcnt lgkmcnt(4)")
        for r in range(4): a(f"v_add_f32 v{224+r}, v{224+r}, v{228+r}"); a(f"v_add_f32 v{232+r}, v{232+r}, v{236+r}")
        bf16r("v53"); a("v_rcp_f32 v53, v53")
        for r in range(4): a(f"v_add_f32 v{108+r}, v{224+r}, v{232+r}")
    a("s_waitcnt lgkmcnt(0)")
    for r in range(4): a(f"v_add_f32 v{116+r}, v{116+r}, v{120+r}"); a(f"v_add_f32 v{124+r}, v{124+r}, v{128+r}")
    if cspre: bf16r("v53"); a("v_rcp_f32 v53, v53")
    for r in range(4): a(f"v_add_f32 v{116+r}, v{116+r}, v{124+r}")
    for r in range(4): a(f"v_fma_f32 v{116+r}, -v52, v{108+r}, v{116+r}")
    for r in range(4): a(f"v_mul_f32 v{116+r}, v{116+r}, v53")
    for r in range(2): a(f"v_cvt_pk_bf16_f32 v{120+r}, v{116+2*r}, v{117+2*r}")
    for r in range(2): a(f"v_permlane32_swap_b32 v{120+r}, v{122+r}")
    for r in range(2):
        a(f"v_lshlrev_b32 v{116+2*r}, 16, v{120+r}"); a(f"v_and_b32 v{117+2*r}, 0xffff0000, v{120+r}")
        a(f"v_lshlrev_b32 v{124+2*r}, 16, v{122+r}"); a(f"v_and_b32 v{125+2*r}, 0xffff0000, v{122+r}")
    for r in range(4): a(f"v_max_f32 v{116+r}, 0, v{116+r}")
    for r in range(4): a(f"v_mul_f32 v{116+r}, v{116+r}, v{124+r}")
    for r in range(2): a(f"v_cvt_pk_bf16_f32 v{120+r}, v{116+2*r}, v{117+2*r}")
    a("s_mov_b64 exec, 0x00ff00ff")
    for r in range(2): a(f"v_min_u32 v{120+r}, -2, v{120+r}")
    a("buffer_store_dwordx2 v[120:121], v70, s[32:35], 0 offen sc1")
    stamp(11)
    a("s_branch L_fin")

    C("---- reducer: sum the 32 heads' partials of 2 rows x 32 columns, add x, publish h")
    a("L_s2:")
    a("v_lshlrev_b32 v62, 4, v1")
    a("s_lshl_b32 s59, s89, 13"); a("s_add_u32 s92, s59, 4096")
    a("v_lshlrev_b32 v50, 16, v71"); a("v_and_b32 v51, 0xffff0000, v71")
    def ld8(b): return [f"buffer_load_dwordx4 v[{b+4*u}:{b+3+4*u}], v62, s[32:35], {'s59' if u < 4 else 's92'} offen offset:{(u&3)*1024} sc1" for u in range(8)]
    def useP(b):
        for r in range(16): a(f"v_add_f32 v{108+r}, v{b+r}, v{b+16+r}")
    poll2("L_pP", ld8, 32, (76, 128), useP)
    stamp(8)
    for st in (8, 4):
        for r in range(st): a(f"v_add_f32 v{108+r}, v{108+r}, v{108+st+r}")
    a("v_permlane32_swap_b32 v108, v110"); a("v_permlane32_swap_b32 v109, v111")
    a("v_add_f32 v108, v108, v110"); a("v_add_f32 v109, v109, v111")
    a("v_mov_b32 v110, v108"); a("v_mov_b32 v111, v109")
    a("v_permlane16_swap_b32 v108, v110"); a("v_permlane16_swap_b32 v109, v111")
    a("v_add_f32 v108, v108, v110"); a("v_add_f32 v109, v109, v111")
    a("v_cvt_pk_bf16_f32 v108, v108, v109")
    a("v_and_b32 v109, 0xffff0000, v108"); a("v_lshlrev_b32 v108, 16, v108")
    a("v_add_f32 v108, v108, v50"); a("v_add_f32 v109, v109, v51")
    a("v_cvt_pk_bf16_f32 v108, v108, v109")
    a("s_mov_b32 exec_lo, 0xffff"); a("s_mov_b32 exec_hi, 0xffff")
    a("v_min_u32 v108, -2, v108")
    a("buffer_store_dword v108, v69, s[32:35], 0 offen sc1")
    if rskip == 2:
        a("s_mov_b64 exec, -1")
        for k in range(0 if pf0 >= NB else pfn, 6): pfload(k)
    stamp(9)
    a("s_branch L_fin")

    C("---- 16 output columns, 448 rows of W_down per wave")
    a("L_s4:")
    a("v_lshlrev_b32 v60, 5, v60"); a("v_lshl_add_u32 v60, v61, 3, v60")
    a(f"s_mul_i32 s58, s3, {448*32}"); a(f"s_add_u32 s58, s58, {L_W}"); a("v_add_u32 v60, s58, v60")
    C("h address v49 = H + ((s'>>1)*4 + (b>>1))*128 + (b&1)*64 + (s'&1)*32 + g*8 ; out address v50 = b*1024 + s'*32 + g*8")
    a("v_lshrrev_b32 v49, 1, v27"); a("v_lshlrev_b32 v49, 7, v49"); a("v_and_b32 v50, 1, v27"); a("v_lshl_add_u32 v49, v50, 6, v49")
    a("v_lshl_add_u32 v49, v74, 3, v49")
    a("s_lshr_b32 s58, s89, 1"); a("s_lshl_b32 s58, s58, 9"); a("s_and_b32 s92, s89, 1"); a("s_lshl_b32 s92, s92, 5"); a("s_add_u32 s58, s58, s92")
    a(f"s_add_u32 s58, s58, {WS_H}"); a("v_add_u32 v49, s58, v49")
    a("v_lshlrev_b32 v50, 10, v27"); a("v_lshl_add_u32 v50, v74, 3, v50"); a("s_lshl_b32 s58, s89, 5"); a("v_add_u32 v50, s58, v50")
    a(f"s_mul_i32 s59, s3, {7*1024}"); a(f"s_add_u32 s59, s59, {WS_G}"); a("s_add_u32 s92, s59, 4096")
    a("v_lshlrev_b32 v62, 4, v1")
    if not staged: a("s_waitcnt vmcnt(0)"); stamp(13)
    for u in range(7):
        if staged: a(f"s_waitcnt vmcnt({12 - 2*u})")
        if staged and u == 6: stamp(13)
        for hf in range(2):
            for sec in range(2): trread(128 + 8*u + 4*hf + 2*sec, "v60", (64*u + 8*hf + 4*sec) * 32)
        if u in (2, 5): a("s_waitcnt lgkmcnt(4)")
    a("s_waitcnt lgkmcnt(0)")
    def ldG(b): return ld8(b)[:7] + [f"buffer_load_dwordx2 v[{b+28}:{b+29}], v49, s[32:35], 0 offen sc1"]
    def useG(b):
        for u in range(7):
            for hf in range(2): mfma(108 + 4*hf, f"v[{128+8*u+4*hf}:{131+8*u+4*hf}]", f"v[{b+4*u}:{b+3+4*u}]", u == 0)
        for r in range(2):
            a(f"v_lshlrev_b32 v{116+2*r}, 16, v{b+28+r}"); a(f"v_and_b32 v{117+2*r}, 0xffff0000, v{b+28+r}")
    poll2("L_pG", ldG, 30, (76, 192), useG)
    stamp(10)
    for r in range(4): a(f"v_add_f32_dpp v{108+r}, v{112+r}, v{108+r} row_ror:8 row_mask:0xf bank_mask:0xf")
    a("s_mov_b32 exec_lo, 0x00ff00ff"); a("s_mov_b32 exec_hi, 0x00ff00ff")
    a(f"ds_write_b128 v26, v[108:111] offset:{L_TX}")
    a("s_waitcnt lgkmcnt(0)"); a("s_barrier")
    a("s_cmp_eq_u32 s3, 3"); a("s_cbranch_scc0 L_fin")
    for w in range(4): a(f"ds_read_b128 v[{128+4*w}:{131+4*w}], v63 offset:{L_TX+512*w}")
    a("s_waitcnt lgkmcnt(0)")
    for r in range(4):
        a(f"v_add_f32 v{128+r}, v{128+r}, v{132+r}"); a(f"v_add_f32 v{136+r}, v{136+r}, v{140+r}")
    for r in range(4): a(f"v_add_f32 v{128+r}, v{128+r}, v{136+r}")
    for r in range(2): a(f"v_cvt_pk_bf16_f32 v{132+r}, v{128+2*r}, v{129+2*r}")
    for r in range(2):
        a(f"v_lshlrev_b32 v{128+2*r}, 16, v{132+r}"); a(f"v_and_b32 v{129+2*r}, 0xffff0000, v{132+r}")
    for r in range(4): a(f"v_add_f32 v{128+r}, v{128+r}, v{116+r}")
    for r in range(2): a(f"v_cvt_pk_bf16_f32 v{132+r}, v{128+2*r}, v{129+2*r}")
    a("buffer_store_dwordx2 v[132:133], v50, s[36:39], 0 offen")
    stamp(11)
    a("L_fin:")
    if probe is not None:
        a(f"s_cmp_eq_u32 s2, {pwg}"); a("s_cbranch_scc0 L_end"); a("s_cmp_eq_u32 s3, 3"); a("s_cbranch_scc0 L_end")
        if probe == 0: a("s_mov_b32 s20, 0")
        a("s_add_u32 s20, s20, 10000")
        a("L_probe:")
        a("s_sleep 4"); a("s_memrealtime s[94:95]"); a("s_waitcnt lgkmcnt(0)"); a("s_sub_u32 s94, s94, s18")
        a("s_cmp_lt_u32 s94, s20"); a("s_cbranch_scc1 L_probe")
    if stamps:
        a("s_mov_b64 exec, -1")
        stamp(12)
        a("s_getreg_b32 s92, hwreg(HW_REG_XCC_ID)"); a("v_writelane_b32 v73, s92, 15")
        a("s_lshl_b32 s58, s2, 2"); a("s_add_u32 s58, s58, s3"); a("s_lshl_b32 s58, s58, 7"); a(f"s_add_u32 s58, s58, {WS_ST}")
        a("v_lshlrev_b32 v48, 2, v1"); a("s_mov_b32 exec_hi, 0")
        a("buffer_store_dword v73, v48, s[32:35], s58 offen")
        if "dbgout" in xp:
            a("s_cmp_eq_u32 s2, 229"); a("s_cbranch_scc0 L_end"); a("s_cmp_eq_u32 s3, 3"); a("s_cbranch_scc0 L_end")
            a("v_subrev_u32 v73, s18, v73"); a("s_mov_b64 exec, 0xffff")
            a("global_store_dword v48, v73, s[84:85] sc1")
    a("L_end:")
    a("s_endpgm")
    body = a.finish()
    head_ = HEADER + f"; @launch grid=(256,1,1) block=(256,1,1) lds={L_SIZE}\n" + '.amdgcn_target "amdgcn-amd-amdhsa--gfx950"\n.text\n' + \
        DOC + f".globl {NAME}\n.p2align 8\n.type {NAME},@function\n"
    tail = f""".section .rodata,"a"
.p2align 6
.amdhsa_kernel {NAME}
  .amdhsa_next_free_vgpr 392
  .amdhsa_next_free_sgpr 102
  .amdhsa_accum_offset 256
  .amdhsa_group_segment_fixed_size 0
  .amdhsa_kernarg_size 96
  .amdhsa_user_sgpr_count 2
  .amdhsa_user_sgpr_kernarg_segment_ptr 1
  .amdhsa_system_sgpr_workgroup_id_x 1
.end_amdhsa_kernel
"""
    return head_ + body + tail

if __name__ == "__main__":
    kw = eval("dict(%s)" % (sys.argv[2] if len(sys.argv) > 2 else ""))
    open(sys.argv[1], "w").write(gen(**kw))
```

```python
import sys, struct
sys.path.insert(0, __file__.rsplit('/', 1)[0])
from asmlib import Asm

NAME = "sequential_preLN__mha_block_cached__glu_gated_reglu__decode_kernel"
HEADER = open(__file__.rsplit('/', 1)[0] + '/header.txt').read()

def f32(x): return "0x%08x" % struct.unpack('<I', struct.pack('<f', x))[0]

WS_P, WS_H, WS_G, WS_ST, WS_SIZE = 0, 0x80000, 0x82000, 0x100000, 0x140000
L_QP, L_OP, L_ML, L_ST, L_TX, L_T2, L_CS, L_W, L_DUMP, L_SIZE = 0, 2048, 4096, 4160, 4608, 8192, 16384, 24576, 90112, 106496
DOC = r"""; ---------------------------------------------------------------------------------------------------------
; ---------------------------------------------------------------------------------------------------------
"""
RING = 128
NB = 32
SPIN = 200000

def gen(D=5, hi=1, pol="nt", wpol="", fpol="", early=(2, 7, 12, 17), n1=7, kq=2, nbar=2, nA=3, nB=3, D1=None,
        stag=0, cpf2=0, fin=10, touch=0, cspre=0, wend=32, wov=0, wod=0, initlow=0, prescale=1, slide=1, staged=1, vt=0, lasthi=0, mpf=7, pf0=32, xpf=1, pfn=6, pfo=(0, 1, 2, 3, 4, 5), rskip=0, pfw=0, rw=None, rlo=None, hmap=(0, 2, 3, 1, 4), ctl=1, slack=80, k0=1, late=0, cpf=23, rot=0, nw=2, nwl=1, eps=0, head=(60, 80), hiu=(4, 4), cal=3, stamps=0, xp=(), probe=None, pwg=130, vpol=None, pre=0, ahead=0, r2=0, slack2=40):
    a = Asm()
    vm = []
    def C(t): a("; " + t)
    def vwait(tag):
        n = len(vm) - 1 - vm.index(tag)
        a(f"s_waitcnt vmcnt({min(n, 63)})")
    def stamp(k):
        if probe == k:
            a("s_memrealtime s[94:95]"); a("s_waitcnt lgkmcnt(0)"); a("s_sub_u32 s20, s94, s18")
        if stamps == 2 and k not in (6, 12): return
        if stamps == 3 and k not in (3, 4, 6, 12): return
        if stamps:
            a("s_memrealtime s[94:95]"); a("s_waitcnt lgkmcnt(0)"); a(f"v_writelane_b32 v73, s94, {k}")
    def lapstamp(off):
        if stamps == 3:
            a("s_memrealtime s[94:95]"); a(f"s_add_u32 m0, s56, {off}"); a("s_waitcnt lgkmcnt(0)"); a("v_writelane_b32 v73, s94, m0")
    def allred(op, v, t):
        for n in (8, 4, 2, 1): a(f"{op}_dpp {v}, {v}, {v} row_ror:{n} row_mask:0xf bank_mask:0xf")
        for sw in ("v_permlane16_swap_b32", "v_permlane32_swap_b32"):
            a(f"v_mov_b32 {t}, {v}"); a(f"{sw} {v}, {t}"); a(f"{op} {v}, {v}, {t}")
    def bf16r(v):
        a(f"v_cvt_pk_bf16_f32 {v}, {v}, {v}"); a(f"v_and_b32 {v}, 0xffff0000, {v}")
    def srd(d, lo, hi_, size, add=None):
        if add is None:
            a(f"s_mov_b32 s{d}, s{lo}"); a(f"s_mov_b32 s{d+1}, s{hi_}")
        else:
            a(f"s_add_u32 s{d}, s{lo}, {add}"); a(f"s_addc_u32 s{d+1}, s{hi_}, 0")
        a(f"s_mov_b32 s{d+2}, {size}"); a(f"s_mov_b32 s{d+3}, 0x20000")
    cur = [pol]
    def ring(j): j %= NB; return f"v[{RING+4*j}:{RING+4*j+3}]"
    def sload(j):
        s, b = ("s[12:15]", "s55") if j >= NB else ("s[8:11]", "s54")
        j %= NB
        a(f"buffer_load_dwordx4 {ring(j)}, v{2+(j>>2)}, {s}, {b} offen offset:{(j&3)*1024} {cur[0]}")
    def masks(t, src, lane):
        for r in range(4):
            a(f"v_and_b32_dpp v{18+4*(t&1)+r}, {src}, v{14+r} row_newbcast:{lane} row_mask:0xf bank_mask:0xf")
    def mop(t): return f"v[{18+4*(t&1)}:{21+4*(t&1)}]"
    def mfma(d, x, y, first): a(f"v_mfma_f32_16x16x32_bf16 v[{d}:{d+3}], {x}, {y}, {'0' if first else 'v[%d:%d]' % (d, d+3)}")
    def bitrev(t): return ((t & 1) << 3) | ((t & 2) << 1) | ((t & 4) >> 1) | ((t & 8) >> 3)
    def check(regs, ok):
        r = list(regs)
        a(f"v_max3_u32 v48, v{r[0]}, v{r[1]}, v{r[2]}"); r = r[3:]
        while len(r) >= 2:
            a(f"v_max3_u32 v48, v48, v{r[0]}, v{r[1]}"); r = r[2:]
        if r: a(f"v_max_u32 v48, v48, v{r[0]}")
        a("v_cmp_eq_u32 vcc, -1, v48")
        a(f"s_cbranch_vccz {ok}")
    def poll2(label, loads, nreg, bases, use, pre=None):
        n = len(loads(bases[0]))
        a(f"s_mov_b32 s88, {SPIN}")
        for l in loads(bases[0]): a(l)
        if stag: a(f"s_sleep {stag}")
        if pre: pre()
        a(f"{label}:")
        for l in loads(bases[1]): a(l)
        a(f"s_waitcnt vmcnt({n})")
        check(range(bases[0], bases[0] + nreg), f"{label}_A")
        for l in loads(bases[0]): a(l)
        a(f"s_waitcnt vmcnt({n})")
        check(range(bases[1], bases[1] + nreg), f"{label}_B")
        a("s_sub_u32 s88, s88, 1")
        a(f"s_cbranch_scc0 {label}")
        a(f"{label}_B:")
        use(bases[1])
        a(f"s_branch {label}_done")
        a(f"{label}_A:")
        use(bases[0])
        a(f"{label}_done:")
    def trread(dst, addr, off): a(f"ds_read_b64_tr_b16 v[{dst}:{dst+1}], {addr} offset:{off}")

    a(f"{NAME}:")
    a("s_cmp_ge_u32 s2, 256"); a("s_cbranch_scc1 L_end")
    a("s_memrealtime s[18:19]")
    a("s_load_dwordx16 s[64:79], s[0:1], 0")
    a("s_load_dwordx8 s[80:87], s[0:1], 64")
    if cpf:
        C("pull the kernel's own code towards this die's L2, one KiB per wave")
        a("s_getpc_b64 s[60:61]"); a("s_and_b32 s60, s60, 0xffffff00")
        a("s_lshr_b32 s58, s2, 3"); a("s_lshl_b32 s58, s58, 8"); a("v_add_u32 v60, s58, v0"); a("v_lshlrev_b32 v60, 4, v60")
        a(f"v_cmp_gt_u32 vcc, {cpf*1024}, v60"); a("s_and_saveexec_b64 s[62:63], vcc"); a("s_cbranch_execz L_nocpf")
        a("global_load_dwordx4 v[76:79], v60, s[60:61]")
        a("L_nocpf:")
        a("s_mov_b64 exec, -1")
    C("s3 wave, s4 batch row, s5 head; v1 lane, v74 lane>>4 (g), v75 lane&15 (i)")
    a("v_lshrrev_b32 v1, 6, v0")
    a("v_readfirstlane_b32 s3, v1")
    a("v_and_b32 v1, 63, v0")
    a("s_lshr_b32 s4, s2, 5"); a("s_and_b32 s5, s2, 31")
    if hmap:
        C("head = bits 0..4 of the workgroup id, reordered: neighbours in memory are spread over the dies as the HBM likes it best")
        a("s_mov_b32 s5, 0")
        for k, pbit in enumerate(hmap):
            a(f"s_bfe_u32 s58, s2, {0x10000 + k:#x}"); a(f"s_lshl_b32 s58, s58, {pbit}"); a("s_or_b32 s5, s5, s58")
    a("v_lshrrev_b32 v74, 4, v1"); a("v_and_b32 v75, 15, v1")
    a("v_lshlrev_b32 v48, 4, v1")
    if rw is None: a("s_lshl_b32 s58, s3, 12")
    else: a(f"s_lshr_b32 s58, s2, {rw}"); a("s_add_u32 s58, s58, s3"); a("s_and_b32 s58, s58, 3"); a("s_lshl_b32 s58, s58, 12")
    a("v_add_u32 v2, s58, v48")
    if rlo is None:
        for k in range(1, 8): a(f"v_add_u32 v{2+k}, {k*16384}, v2")
    else:
        a(f"s_lshr_b32 s58, s2, {rlo}"); a("s_lshl_b32 s58, s58, 14"); a("v_add_u32 v2, s58, v2")
        for k in range(7, -1, -1):
            if k: a(f"v_add_u32 v{2+k}, {k*16384}, v2")
            a(f"v_and_b32 v{2+k}, 0x1ffff, v{2+k}")
    a("s_lshl_b32 s58, s3, 8"); a("v_lshlrev_b32 v49, 3, v75"); a("v_lshl_add_u32 v49, v74, 1, v49"); a("v_add_u32 v49, s58, v49")
    a("v_lshrrev_b32 v51, 1, v74")
    C("wq lane offset v58 = (128w+g)*8192 + i*16 ; wo lane offset v59 = g*1024 + w*256 + i*16")
    a("s_lshl_b32 s58, s3, 20"); a("v_lshlrev_b32 v58, 13, v74"); a("v_lshl_add_u32 v58, v75, 4, v58"); a("v_add_u32 v58, s58, v58")
    a("s_lshl_b32 s58, s3, 8"); a("v_lshlrev_b32 v59, 10, v74"); a("v_lshl_add_u32 v59, v75, 4, v59"); a("v_add_u32 v59, s58, v59")
    a("s_lshl_b32 s57, s4, 10"); a("s_lshl_b32 s58, s5, 8"); a("s_lshl_b32 s59, s4, 5"); a("s_add_u32 s59, s59, s5"); a("s_lshl_b32 s59, s59, 20")
    a("s_sub_u32 s92, 0x400000, s58")
    a("s_mov_b32 s54, 0")
    a("s_waitcnt lgkmcnt(0)")
    if stamps: a("v_mov_b32 v73, 0"); a("v_writelane_b32 v73, s18, 0")
    kiss = 0
    def kload():
        nonlocal kiss
        sload(kiss - kbase); vm.append(f"k{kiss}"); kiss += 1
    kbase = 0
    stamp(16)
    srd(8, 66, 67, 0x100000, "s59")
    for j in range(k0): kload()
    srd(28, 64, 65, 8192)
    a("buffer_load_dwordx4 v[52:55], v48, s[28:31], s57 offen"); vm.append("x")
    a("buffer_load_ushort v56, v49, s[28:31], s57 offen"); vm.append("xc0")
    a("buffer_load_ushort v57, v49, s[28:31], s57 offen offset:128"); vm.append("xc1")
    srd(20, 70, 71, "s92", "s58")
    wiss = 0
    def wqload():
        nonlocal wiss
        a(f"s_mov_b32 s58, {wiss*32768}")
        a(f"buffer_load_dwordx4 a[{4*wiss}:{4*wiss+3}], v58, s[20:23], s58 offen {wpol}"); vm.append(f"wq{wiss}"); wiss += 1
    for j in range(n1):
        if j: kload()
        for x in range(nw): wqload()
    stamp(17)
    a("s_add_u32 s16, s68, s59"); a("s_addc_u32 s17, s69, 0")
    a("s_mov_b32 s12, s8"); a("s_mov_b32 s13, s9"); a("s_mov_b32 s14, 0x100000"); a("s_mov_b32 s15, 0x20000")
    a("s_lshl_b32 s58, s5, 17"); srd(24, 72, 73, 0x20000, "s58")
    def setup_late():
        a("v_lshrrev_b32 v77, 1, v74"); a("v_lshlrev_b32 v78, 4, v1")
        srd(32, 86, 87, WS_SIZE); srd(36, 82, 83, 8192)
        srd(40, 76, 77, 512*3584); srd(44, 78, 79, 512*3584)
        C("role s7 / index s89: 1 gate+up tiles (wg<56), 2 reducer (64<=wg<128), 3 output slice (wg>=224), 0 none")
        a("s_and_b32 s58, s2, 7"); a("s_lshr_b32 s92, s2, 3")
        a("s_mul_i32 s89, s58, 7"); a("s_add_u32 s89, s89, s92")
        a("s_cmp_lt_u32 s2, 56"); a("s_cselect_b32 s7, 1, 0")
        a("s_lshl_b32 s58, s58, 2"); a("s_add_u32 s58, s58, s92"); a("s_sub_u32 s58, s58, 28")
        a("s_cmp_ge_u32 s2, 224"); a("s_cselect_b32 s89, s58, s89"); a("s_cselect_b32 s7, 3, s7")
        a("s_sub_u32 s58, s2, 64"); a("s_cmp_lt_u32 s58, 64"); a("s_cselect_b32 s89, s58, s89"); a("s_cselect_b32 s7, 2, s7")
        a("s_lshl_b32 s6, s3, 2"); a("s_add_u32 s6, s6, s7")
        C("P store offset v68 = ((4w + (i>>2))*4 + (b>>1))*8192 + (2h + (b&1))*128 + (i&3)*32 + g*16")
        a("v_lshrrev_b32 v68, 2, v75"); a("v_lshlrev_b32 v68, 15, v68"); a("v_lshl_add_u32 v68, v74, 4, v68")
        a("v_and_b32 v60, 3, v75"); a("v_lshl_add_u32 v68, v60, 5, v68")
        a("s_lshl_b32 s58, s3, 17"); a("s_lshr_b32 s92, s4, 1"); a("s_lshl_b32 s92, s92, 13"); a("s_add_u32 s58, s58, s92")
        a("s_lshl_b32 s92, s5, 8"); a("s_add_u32 s58, s58, s92")
        a("s_and_b32 s92, s4, 1"); a("s_lshl_b32 s92, s92, 7"); a("s_add_u32 s58, s58, s92"); a("v_add_u32 v68, s58, v68")
        C("H store offset v69 = H + rho*128 + i*8 + (g>>1)*4 ; x offset v76 = (2(rho&3) + (i>>3))*1024 + (rho>>2)*64 + (i&7)*8 + (g>>1)*4")
        a("v_lshlrev_b32 v69, 3, v75"); a("v_lshl_add_u32 v69, v77, 2, v69")
        a("v_lshrrev_b32 v76, 3, v75"); a("v_lshlrev_b32 v76, 10, v76"); a("v_and_b32 v60, 7, v75"); a("v_lshl_add_u32 v76, v60, 3, v76")
        a("v_lshl_add_u32 v76, v77, 2, v76")
        a("s_and_b32 s58, s89, 3"); a("s_lshl_b32 s58, s58, 11"); a("s_lshr_b32 s92, s89, 2"); a("s_lshl_b32 s92, s92, 6"); a("s_add_u32 s58, s58, s92")
        a("v_add_u32 v76, s58, v76")
        a("s_lshl_b32 s58, s89, 7"); a(f"s_add_u32 s58, s58, {WS_H}"); a("v_add_u32 v69, s58, v69")
        a("buffer_load_dword v71, v76, s[28:31], 0 offen"); vm.append("xr")
        C("G store offset v70 = G + (4*s89 + w)*128 + i*16 + g*8")
        a("v_lshlrev_b32 v70, 4, v75"); a("v_lshl_add_u32 v70, v74, 3, v70")
        a("s_lshl_b32 s58, s89, 2"); a("s_add_u32 s58, s58, s3"); a("s_lshl_b32 s58, s58, 7"); a(f"s_add_u32 s58, s58, {WS_G}"); a("v_add_u32 v70, s58, v70")
        C("wave 0 of the reducers marks every hand-off line empty (all ones): own P lines, own H line, four G lines")
        a("s_cmp_eq_u32 s6, 2"); a("s_cbranch_scc0 L_noclr")
        for r in range(4): a(f"v_mov_b32 v{60+r}, -1")
        a("s_lshl_b32 s58, s89, 13"); a("s_add_u32 s92, s58, 4096")
        for u in range(8): a(f"buffer_store_dwordx4 v[60:63], v78, s[32:35], {'s58' if u < 4 else 's92'} offen offset:{(u&3)*1024} sc1")
        a("s_lshl_b32 s58, s89, 9"); a(f"s_add_u32 s58, s58, {WS_G}"); a("s_mov_b32 exec_hi, 0")
        a("buffer_store_dwordx4 v[60:63], v78, s[32:35], s58 offen sc1")
        a("s_lshl_b32 s58, s89, 7"); a(f"s_add_u32 s58, s58, {WS_H}"); a("s_mov_b32 exec_lo, 0xff")
        a("buffer_store_dwordx4 v[60:63], v78, s[32:35], s58 offen sc1")
        a("s_mov_b64 exec, -1")
        a("L_noclr:")
    if not late:
        srd(32, 86, 87, WS_SIZE); srd(36, 82, 83, 8192)
        srd(40, 76, 77, 512*3584); srd(44, 78, 79, 512*3584)
        C("role s7 / index s89: 1 gate+up tiles (wg<56), 2 reducer (64<=wg<128), 3 output slice (wg>=224), 0 none")
        a("s_and_b32 s58, s2, 7"); a("s_lshr_b32 s92, s2, 3")
        a("s_mul_i32 s89, s58, 7"); a("s_add_u32 s89, s89, s92")
        a("s_cmp_lt_u32 s2, 56"); a("s_cselect_b32 s7, 1, 0")
        a("s_lshl_b32 s58, s58, 2"); a("s_add_u32 s58, s58, s92"); a("s_sub_u32 s58, s58, 28")
        a("s_cmp_ge_u32 s2, 224"); a("s_cselect_b32 s89, s58, s89"); a("s_cselect_b32 s7, 3, s7")
        a("s_sub_u32 s58, s2, 64"); a("s_cmp_lt_u32 s58, 64"); a("s_cselect_b32 s89, s58, s89"); a("s_cselect_b32 s7, 2, s7")
        a("s_lshl_b32 s6, s3, 2"); a("s_add_u32 s6, s6, s7")
        C("P store offset v68 = ((4w + (i>>2))*4 + (b>>1))*8192 + (2h + (b&1))*128 + (i&3)*32 + g*16")
        a("v_lshrrev_b32 v68, 2, v75"); a("v_lshlrev_b32 v68, 15, v68"); a("v_lshl_add_u32 v68, v74, 4, v68")
        a("v_and_b32 v60, 3, v75"); a("v_lshl_add_u32 v68, v60, 5, v68")
        a("s_lshl_b32 s58, s3, 17"); a("s_lshr_b32 s92, s4, 1"); a("s_lshl_b32 s92, s92, 13"); a("s_add_u32 s58, s58, s92")
        a("s_lshl_b32 s92, s5, 8"); a("s_add_u32 s58, s58, s92")
        a("s_and_b32 s92, s4, 1"); a("s_lshl_b32 s92, s92, 7"); a("s_add_u32 s58, s58, s92"); a("v_add_u32 v68, s58, v68")
        C("H store offset v69 = H + rho*128 + i*8 + (g>>1)*4 ; x offset v50 = (2(rho&3) + (i>>3))*1024 + (rho>>2)*64 + (i&7)*8 + (g>>1)*4")
        a("v_lshlrev_b32 v69, 3, v75"); a("v_lshl_add_u32 v69, v51, 2, v69")
        a("v_lshrrev_b32 v50, 3, v75"); a("v_lshlrev_b32 v50, 10, v50"); a("v_and_b32 v60, 7, v75"); a("v_lshl_add_u32 v50, v60, 3, v50")
        a("v_lshl_add_u32 v50, v51, 2, v50")
        a("s_and_b32 s58, s89, 3"); a("s_lshl_b32 s58, s58, 11"); a("s_lshr_b32 s92, s89, 2"); a("s_lshl_b32 s92, s92, 6"); a("s_add_u32 s58, s58, s92")
        a("v_add_u32 v50, s58, v50")
        a("s_lshl_b32 s58, s89, 7"); a(f"s_add_u32 s58, s58, {WS_H}"); a("v_add_u32 v69, s58, v69")
        a("buffer_load_dword v71, v50, s[28:31], 0 offen"); vm.append("xr")
        C("G store offset v70 = G + (4*s89 + w)*128 + i*16 + g*8")
        a("v_lshlrev_b32 v70, 4, v75"); a("v_lshl_add_u32 v70, v74, 3, v70")
        a("s_lshl_b32 s58, s89, 2"); a("s_add_u32 s58, s58, s3"); a("s_lshl_b32 s58, s58, 7"); a(f"s_add_u32 s58, s58, {WS_G}"); a("v_add_u32 v70, s58, v70")
        C("the reducers mark every hand-off line empty (all ones): own P lines, own H line, four G lines")
        a("s_cmp_eq_u32 s7, 2"); a("s_cbranch_scc0 L_noclr")
        for r in range(4): a(f"v_mov_b32 v{60+r}, -1")
        a("s_lshl_b32 s58, s89, 13"); a("s_lshl_b32 s92, s3, 11"); a("s_add_u32 s58, s58, s92")
        a("buffer_store_dwordx4 v[60:63], v48, s[32:35], s58 offen sc1")
        a("buffer_store_dwordx4 v[60:63], v48, s[32:35], s58 offen offset:1024 sc1")
        a("s_mov_b64 exec, 0x00ff00ff")
        a("buffer_store_dwordx2 v[60:61], v70, s[32:35], 0 offen sc1")
        a("s_cmp_eq_u32 s3, 0"); a("s_cbranch_scc0 L_noclr")
        a("s_mov_b32 exec_lo, 0xffff"); a("s_mov_b32 exec_hi, 0xffff")
        a("buffer_store_dword v60, v69, s[32:35], 0 offen sc1")
        a("L_noclr:")
        a("s_mov_b64 exec, -1")
    for j in range(nA): kload()
    stamp(1)
    a("s_mov_b32 s60, 0xcccccccc"); a("s_mov_b32 s61, 0xcccccccc"); a("s_mov_b32 s62, 0xaaaaaaaa"); a("s_mov_b32 s63, 0xaaaaaaaa")
    a(f"s_mov_b32 s90, {f32(128 ** -0.5)}"); a(f"s_mov_b32 s91, {f32(1.4426950408889634)}")
    C("selector masks v14..17: lane (g,m): m<8 and m>>1==r -> m&1 ? 0xffff0000 : 0xffff")
    a("v_and_b32 v60, 1, v75"); a("v_lshlrev_b32 v60, 4, v60"); a("v_mov_b32 v61, 0xffff"); a("v_lshlrev_b32 v60, v60, v61")
    a("v_lshrrev_b32 v61, 1, v75")
    for r in range(4):
        a(f"v_cmp_eq_u32 vcc, {r}, v61"); a(f"v_cndmask_b32 v{14+r}, 0, v60, vcc")
    C("---- LayerNorm of x[b]")
    vwait("x")
    stamp(18)
    for j in range(nB): kload()
    for k in range(4):
        a(f"v_lshlrev_b32 v{76+2*k}, 16, v{52+k}"); a(f"v_and_b32 v{77+2*k}, 0xffff0000, v{52+k}")
    a("v_add_f32 v84, v76, v77")
    for k in range(2, 8): a(f"v_add_f32 v84, v84, v{76+k}")
    allred("v_add_f32", "v84", "v85")
    a(f"v_mul_f32 v84, {f32(1/512)}, v84")
    for k in range(8): a(f"v_sub_f32 v{76+k}, v{76+k}, v84")
    a("v_mul_f32 v86, v76, v76")
    for k in range(1, 8): a(f"v_fmac_f32 v86, v{76+k}, v{76+k}")
    allred("v_add_f32", "v86", "v85")
    a(f"v_mul_f32 v86, {f32(1/512)}, v86")
    bf16r("v84"); bf16r("v86")
    a(f"v_add_f32 v86, {f32(1e-5)}, v86"); bf16r("v86")
    a("v_sqrt_f32 v86, v86"); bf16r("v86"); a("v_rcp_f32 v86, v86")
    vwait("xc1")
    for k in range(2):
        a(f"v_lshlrev_b32 v{56+k}, 16, v{56+k}"); a(f"v_sub_f32 v{56+k}, v{56+k}, v84"); bf16r(f"v{56+k}")
        a(f"v_mul_f32 v{56+k}, v{56+k}, v86"); a(f"v_cvt_pk_bf16_f32 v{66+k}, v{56+k}, v{56+k}")
    stamp(2)
    C("---- q = xn @ wq[:, head], 128 rows per wave")
    masks(0, "v66", 0)
    for t in range(32):
        vwait(f"wq{t}")
        if t in (0, 13): stamp(19 + (t > 0))
        mfma(28, mop(t), f"a[{4*t}:{4*t+3}]", t == 0)
        if wiss < 32: wqload()
        if int((t + 1) / kq) > int(t / kq) and kiss < NB: kload()
        if t < 31: masks(t + 1, "v66" if t + 1 < 16 else "v67", (t + 1) & 15)
    for j in range(nbar):
        if kiss < NB: kload()
    a("v_lshlrev_b32 v27, 5, v75"); a("v_lshl_add_u32 v26, v74, 4, v27"); a("s_lshl_b32 s58, s3, 9"); a("v_add_u32 v26, s58, v26")
    a("s_mov_b32 exec_hi, 0")
    a(f"ds_write_b128 v26, v[28:31] offset:{L_QP}")
    a("s_mov_b64 exec, -1")
    a("s_waitcnt lgkmcnt(0)"); a("s_barrier")
    for w in range(4):
        for hh in range(2): a(f"ds_read_b128 v[{76+8*w+4*hh}:{79+8*w+4*hh}], v27 offset:{L_QP+512*w+16*hh}")
    a("s_waitcnt lgkmcnt(0)")
    for k in range(8):
        a(f"v_add_f32 v{76+k}, v{76+k}, v{84+k}"); a(f"v_add_f32 v{92+k}, v{92+k}, v{100+k}")
    for k in range(8): a(f"v_add_f32 v{76+k}, v{76+k}, v{92+k}")
    for k in range(4): a(f"v_cvt_pk_bf16_f32 v{10+k}, v{76+2*k}, v{77+2*k}")
    a("v_lshlrev_b32 v27, 4, v75"); a("v_lshl_add_u32 v27, v74, 2, v27")
    a("v_mov_b32 v64, 0xff800000"); a("v_mov_b32 v65, 0")
    stamp(3)

    def kconsume(i):
        t = i & 15
        x = f"v{48 + (t & 1)}"
        base = RING + 4 * i
        a(f"v_dot2_f32_bf16 {x}, v{base}, v10, 0")
        for r in range(1, 4): a(f"v_dot2_f32_bf16 {x}, v{base+r}, v{10+r}, {x}")
        if t & 1:
            d = f"v{50 + ((t >> 1) & 1)}"
            a(f"v_add_f32_dpp {d}, v48, v48 row_ror:8 row_mask:0xf bank_mask:0x3")
            a(f"v_add_f32_dpp {d}, v49, v49 row_ror:8 row_mask:0xf bank_mask:0xc")
        if t & 3 == 3:
            d = f"v{52 + ((t >> 2) & 1)}"
            a(f"v_add_f32_dpp {d}, v50, v50 row_half_mirror row_mask:0xf bank_mask:0x5")
            a(f"v_add_f32_dpp {d}, v51, v51 row_half_mirror row_mask:0xf bank_mask:0xa")
        if t & 7 == 7:
            d = f"v{54 + ((t >> 3) & 1)}"
            a("v_add_f32_dpp v52, v52, v52 quad_perm:[2,3,0,1] row_mask:0xf bank_mask:0xf")
            a("v_add_f32_dpp v53, v53, v53 quad_perm:[2,3,0,1] row_mask:0xf bank_mask:0xf")
            a(f"v_cndmask_b32 {d}, v52, v53, s[60:61]")
        if t == 15:
            s = f"v{46 + (i >> 4)}"
            a("v_add_f32_dpp v54, v54, v54 quad_perm:[1,0,3,2] row_mask:0xf bank_mask:0xf")
            a("v_add_f32_dpp v55, v55, v55 quad_perm:[1,0,3,2] row_mask:0xf bank_mask:0xf")
            a(f"v_cndmask_b32 {s}, v54, v55, s[62:63]")
            bf16r(s); a(f"v_mul_f32 {s}, s90, {s}"); bf16r(s)
            a(f"v_max_f32 v64, v64, {s}")
    C("---- lap 0: the keys that arrived while q was formed")
    a(f"s_mov_b32 s55, {NB*4096}")
    left = NB + D - kiss
    early = list(early)
    while early and early[-1] >= NB - (left - len(early)): early.pop()
    sched = early + list(range(NB - (left - len(early)), NB))
    assert len(set(sched)) == left, (sched, left)
    for i in range(NB):
        vwait(f"k{i}")
        if i in sched:
            assert kiss - NB < i
            kload()
        kconsume(i)
    stamp(4)
    C("---- the next laps also bring in this head's rows of wo")
    wo = 0
    if wov: nwl = 0; wo = 32
    for lap in range(1, nwl + 1):
        a("s_mov_b32 s54, s55"); a(f"s_add_u32 s55, s55, {NB*4096}")
        for k in range(2 * lap): a(f"v_mov_b32 v{46-2*lap+k}, v{48-2*lap+k}")
        kbase = NB * lap
        if lap == 1:
            for j in range((D1 or D) - D): kload()
        for i in range(NB):
            vwait(f"k{NB*lap+i}")
            if kiss < (nwl + 1) * NB + D: kload()
            while wo < 32 and (i % nwl == 0 if wend == 32 else wo * wend < (i + 1) * 32) and (wend < 32 or wo * nwl <= NB * (lap - 1) + i):
                a(f"s_mov_b32 s58, {wo*4096}")
                a(f"buffer_load_dwordx4 a[{4*wo}:{4*wo+3}], v59, s[24:27], s58 offen {wpol}"); vm.append(f"wo{wo}"); wo += 1
            if mpf == 1 and lap == 1:
                if i == 0:
                    srd(20, 80, 81, 1792*1024)
                    a("s_lshl_b32 s96, s2, 2"); a("s_add_u32 s96, s96, s3"); a("s_lshl_b32 s96, s96, 11"); a("v_lshlrev_b32 v62, 4, v1")
                if i % 5 == 2 and i // 5 < 6:
                    k = i // 5
                    a(f"buffer_load_dwordx4 v[76:79], v62, s[{(40, 44, 20)[k >> 1]}:{(43, 47, 23)[k >> 1]}], s96 offen offset:{(k & 1) * 1024}"); vm.append(f"pf{k}")
            kconsume(i)
            if late and lap == 1 and i == 4: setup_late()
    assert wo == 32

    leads = ([D - 1] if ahead else []) + [D, D + hi]
    def decide(name, k):
        a("s_waitcnt lgkmcnt(0)")
        a("s_sub_u32 s58, s52, s48"); a("s_lshl_b32 s58, s58, 8"); a("s_sub_u32 s58, s58, s49"); a("s_add_u32 s49, s49, s57")
        a("s_sub_u32 s19, s19, 1"); a("s_cmp_ge_i32 s19, 0"); a("s_cselect_b32 s58, 1, s58")
        a("s_cmp_gt_i32 s58, 0"); a(f"s_cbranch_scc1 {name}_{k}_{D+hi}")
        if ahead:
            a("s_cmp_lt_i32 s58, s93"); a(f"s_cbranch_scc1 {name}_{k}_{D-1}")
    def segment(name, k, DD, consume):
        tag = f"{name}_{k}_{DD}"; i0 = 16 * k
        a(f"{tag}:")
        for j in range(leads[0], DD):
            a(f"s_cmp_gt_u32 s51, {j}"); a(f"s_cbranch_scc1 {tag}_i{j}")
            sload(i0 + j)
            a(f"{tag}_i{j}:")
        nskip = leads[-1] - DD
        for i in range(i0, i0 + 16):
            a(f"s_waitcnt vmcnt({DD - 1})")
            skip = i - i0 < nskip
            if skip: a(f"s_cmp_gt_u32 s51, {DD + i - i0}"); a(f"s_cbranch_scc1 {tag}_s{i}")
            sload(i + DD)
            if skip: a(f"{tag}_s{i}:")
            if i - i0 == nskip: a(f"s_mov_b32 s51, {DD}")
            if i - i0 == 15: a("s_memrealtime s[52:53]")
            consume(i)
    def cal_events(base):
        lo, up = (nwl + 1, 8) if base == 0 else (8, 16)
        if lo <= cal < up:
            a("s_waitcnt lgkmcnt(0)"); a(f"s_cmp_eq_u32 s56, {cal-base}"); a("s_cselect_b32 s88, s52, s88")
        if lo <= cal + 2 < up:
            a("s_lshl_b32 s58, s6, 4"); a("s_add_u32 s58, s58, s56")
            a(f"s_cmp_eq_u32 s58, {32+cal+2-base}"); a("s_cbranch_scc0 L_norep")
            a("s_waitcnt lgkmcnt(0)")
            a("s_sub_u32 s58, s52, s88"); a("s_min_u32 s58, s58, 0x7fff"); a("s_max_u32 s58, s58, 1"); a("s_pack_ll_b32_b16 s58, s52, s58")
            a("v_mov_b32 v61, s58"); a("s_lshl_b32 s58, s89, 2"); a("v_mov_b32 v60, s58"); a("s_mov_b64 exec, 1")
            a("global_store_dword v60, v61, s[84:85] sc1")
            a("s_mov_b64 exec, -1")
            a("L_norep:")
        if lo <= cal + 2 < up and pre:
            a("s_and_b32 s58, s7, 1"); a("s_lshl_b32 s58, s58, 4"); a("s_add_u32 s58, s58, s56")
            a(f"s_cmp_eq_u32 s58, {16+cal+2-base}"); a(f"s_cselect_b32 s19, {pre}, s19")
        x = "K" if base == 0 else "V"
        a("s_cmp_lg_u32 s50, 0"); a(f"s_cbranch_scc0 L_nocal{x}")
        if cal + 3 - base > max(lo - base, 0):
            a(f"s_cmp_ge_u32 s56, {cal+3-base}"); a(f"s_cbranch_scc0 L_nocal{x}")
        a("v_cmp_eq_u32 vcc, 0, v72"); a(f"s_cbranch_vccz L_cal{x}")
        a("v_lshlrev_b32 v60, 2, v1"); a("global_load_dword v72, v60, s[84:85] sc1")
        a(f"s_branch L_nocal{x}")
        a(f"L_cal{x}:")
        a("s_mov_b32 s50, 0")
        if ctl:
            a("s_waitcnt lgkmcnt(0)")
            a("s_mov_b32 s48, s52")
            a("v_bfe_u32 v60, v72, 16, 15"); a("v_subrev_u32 v61, s52, v72"); a("v_bfe_i32 v61, v61, 0, 16")
            allred("v_add_u32", "v60", "v62"); allred("v_add_u32", "v61", "v62")
            a("v_readfirstlane_b32 s57, v60"); a("v_readfirstlane_b32 s49, v61")
            if eps > 0: a(f"s_lshr_b32 s58, s57, {eps}"); a("s_add_u32 s57, s57, s58")
            if eps < 0: a(f"s_lshr_b32 s58, s57, {-eps}"); a("s_sub_u32 s57, s57, s58")
            a(f"s_add_u32 s58, s56, {base-cal-2}"); a("s_lshl_b32 s58, s58, 1"); a("s_mul_i32 s58, s58, s57")
            a("s_lshl_b32 s49, s49, 2"); a("s_add_u32 s49, s49, s58")
            a(f"s_mov_b32 s58, {slack*256}")
            a("s_cmp_eq_u32 s7, 1"); a(f"s_cselect_b32 s58, {(slack-head[0])*256}, s58")
            a("s_cmp_eq_u32 s7, 3"); a(f"s_cselect_b32 s58, {(slack-head[1])*256}, s58")
            a("s_add_u32 s49, s49, s58")
            if ahead: a(f"s_mov_b32 s93, {-ahead*256}")
        a(f"L_nocal{x}:")
    def laploop(name, head_code, consume, fin=0):
        others = [x for x in leads if x != D]
        a(".p2align 3")
        a(f"{name}:")
        head_code()
        if wov and fin: a("s_cmp_eq_u32 s56, s96"); a(f"s_cbranch_scc1 {name}_wo")
        decide(name, 0)
        segment(name, 0, D, consume)
        a(f"{name}_mid:")
        if fin: a("s_cmp_eq_u32 s56, 7"); a(f"s_cbranch_scc1 {name}_f")
        decide(name, 1)
        segment(name, 1, D, consume)
        a(f"{name}_nxt:")
        a("s_add_u32 s56, s56, 1"); a("s_cmp_lt_u32 s56, 8"); a(f"s_cbranch_scc1 {name}")
        a(f"s_branch {name}_end")
        for x in others:
            segment(name, 0, x, consume); a(f"s_branch {name}_mid")
            segment(name, 1, x, consume); a(f"s_branch {name}_nxt")
        if wov and fin:
            DD = D + wod
            a(f"{name}_wo:")
            a("s_add_u32 s49, s49, s57"); a("s_add_u32 s49, s49, s57")
            for j in range(leads[0], DD):
                a(f"s_cmp_gt_u32 s51, {j}"); a(f"s_cbranch_scc1 {name}_wi{j}")
                sload(j)
                a(f"{name}_wi{j}:")
            nskip = leads[-1] - DD
            for i in range(NB):
                a(f"s_waitcnt vmcnt({DD - 1 + min(i, DD)})")
                skip = i < nskip
                if skip: a(f"s_cmp_gt_u32 s51, {DD + i}"); a(f"s_cbranch_scc1 {name}_ws{i}")
                sload(i + DD)
                if skip: a(f"{name}_ws{i}:")
                if i == nskip: a(f"s_mov_b32 s51, {DD}")
                a(f"s_mov_b32 s58, {i*4096}")
                a(f"buffer_load_dwordx4 a[{4*i}:{4*i+3}], v59, s[24:27], s58 offen {wpol}")
                if i == NB - 1: a("s_memrealtime s[52:53]")
                consume(i)
            a(f"s_branch {name}_nxt")
        if fin:
            a(f"{name}_f:")
            for j in range(leads[0], leads[-1]):
                a(f"s_cmp_gt_u32 s51, {j}"); a(f"s_cbranch_scc1 {name}_f{j}")
                sload(16 + j)
                a(f"{name}_f{j}:")
            nx = 16 + leads[-1]
            while nx < min(16 + fin, NB): sload(nx); nx += 1
            if prescale:
                C("every wave has published its maximum and sum: this wave's weight v60 = exp2(m_w - m) / L")
                a("v_mov_b32 v48, 0"); a("s_waitcnt lgkmcnt(0)"); a("s_barrier")
                a(f"ds_read_b128 v[76:79], v48 offset:{L_ML}"); a(f"ds_read_b128 v[80:83], v48 offset:{L_ML+16}")
                a("s_waitcnt lgkmcnt(0)")
                a("v_min_f32 v48, v76, v78"); a("v_min3_f32 v48, v48, v80, v82")
                for w in range(4): a(f"v_sub_f32 v{76+2*w}, v48, v{76+2*w}")
                a("v_sub_f32 v60, v48, v64")
                for w in range(4): a(f"v_exp_f32 v{76+2*w}, v{76+2*w}")
                a("v_exp_f32 v60, v60")
                a("v_mul_f32 v49, v76, v77")
                for w in range(1, 4): a(f"v_fmac_f32 v49, v{76+2*w}, v{77+2*w}")
                a("v_rcp_f32 v49, v49")
                a("v_mul_f32 v60, v60, v49")
                if slide: a("v_accvgpr_mov_b32 a128, a0"); a("v_accvgpr_mov_b32 a129, a1")
            npf = 0
            for i in range(16, NB):
                a(f"s_waitcnt vmcnt({nx - 1 - i + npf})")
                if nx < NB: sload(nx); nx += 1
                elif mpf >= 2 and i >= pf0:
                    for x in range(mpf - 1):
                        if npf < pfn:
                            k = npf
                            pfload(k); npf += 1
                consume(i)
        a(f"{name}_end:")
    if wov:
        a(f"s_mul_i32 s96, s5, {wov}"); a("s_lshr_b32 s96, s96, 5")
    C("s48 time base, s49 deadline (1/256 ticks), s50 reports seen, s51 depth in use, s[52:53] clock, s57 pace, s19 fixed deep segments")
    a(f"s_mov_b32 s56, {nwl+1}")
    a("s_memrealtime s[52:53]"); a(f"s_mov_b32 s51, {D}"); a("s_mov_b32 s50, 99"); a("s_mov_b32 s57, 0")
    a("s_mov_b32 s48, s18"); a("s_mov_b32 s49, 0x7fffffff"); a("s_mov_b32 s88, 0"); a(f"s_mov_b32 s93, {0 if initlow else 0x80000000}"); a("v_mov_b32 v72, 0")
    a("s_cmp_eq_u32 s7, 1"); a(f"s_cselect_b32 s19, {hiu[0]-4}, 0"); a("s_cmp_eq_u32 s7, 3"); a(f"s_cselect_b32 s19, {hiu[1]-4}, s19")
    def khead():
        lapstamp(16)
        a("s_mov_b32 s54, s55"); a(f"s_add_u32 s55, s55, {NB*4096}")
        a("s_cmp_eq_u32 s56, 7")
        a("s_cselect_b32 s12, s16, s12"); a("s_cselect_b32 s13, s17, s13"); a("s_cselect_b32 s55, 0, s55")
        for k in range(14): a(f"v_mov_b32 v{32+k}, v{34+k}")
        cal_events(0)
        if vt:
            a("s_lshl_b32 s58, s3, 4"); a("s_add_u32 s58, s58, s56")
            a(f"s_cmp_eq_u32 s58, {vt}"); a("s_cbranch_scc0 L_novt")
            a("v_mov_b32 v60, 0"); a("s_mov_b64 exec, 1")
            a("global_load_dword v76, v60, s[16:17] nt")
            a("s_mov_b64 exec, -1")
            a("L_novt:")
    laploop("L_k", khead, kconsume)
    stamp(5)
    C("---- maximum of this wave's scores, in log2 units, negated")
    allred("v_max_f32", "v64", "v48")
    a("v_mul_f32 v64, s91, v64"); a("v_sub_f32 v64, 0, v64")
    a("s_mov_b32 s8, s12"); a("s_mov_b32 s9, s13"); a("s_mov_b32 s56, 0")
    for r in range(4): a(f"v_mov_b32 v{28+r}, 0")
    def pfload(k):
        k = pfo[k]
        sr = f"s[{(40, 44, 20)[k >> 1]}:{(43, 47, 23)[k >> 1]}]"
        if xpf: a(f"buffer_load_dwordx4 a[132:135], {'v58' if k < 4 else 'v59'}, {sr}, s{(96 if k < 4 else 98) + (k & 1)} offen")
        else: a(f"buffer_load_dwordx4 a[132:135], v58, {sr}, s96 offen offset:{(k & 1) * 1024}")
    if mpf >= 2:
        C("every wave fetches a share of the FFN weights as its stream ends, so that their users find them in a cache")
        srd(20, 80, 81, 1792*1024)
        if xpf:
            a("s_lshr_b32 s98, s2, 3"); a("s_lshl_b32 s98, s98, 2"); a("s_add_u32 s98, s98, s3")
            a(f"s_mul_i32 s96, s98, {4*3584}"); a(f"s_add_u32 s97, s96, {2*3584}")
            a(f"s_mul_i32 s98, s98, {14*1024}"); a("s_add_u32 s99, s98, 8192")
            a("s_and_b32 s58, s2, 7"); a("s_mul_i32 s92, s58, 448"); a("s_and_b32 s92, s92, 0xff80"); a("s_lshl_b32 s58, s58, 7")
            a("v_lshrrev_b32 v58, 5, v1"); a("v_mul_u32_u24 v58, 3584, v58"); a("v_and_b32 v59, 31, v1"); a("v_lshl_add_u32 v58, v59, 4, v58"); a("v_add_u32 v58, s92, v58")
            a("v_lshrrev_b32 v59, 3, v1"); a("v_lshlrev_b32 v59, 10, v59"); a("v_and_b32 v48, 7, v1"); a("v_lshl_add_u32 v59, v48, 4, v59"); a("v_add_u32 v59, s58, v59")
        else:
            a("s_lshl_b32 s96, s2, 2"); a("s_add_u32 s96, s96, s3"); a("s_lshl_b32 s96, s96, 11"); a("v_lshlrev_b32 v58, 4, v1")
    def vhead():
        lapstamp(24)
        a("s_mov_b32 s54, s55"); a(f"s_add_u32 s55, s55, {NB*4096}")
        for k in range(2):
            a(f"v_fma_f32 v{56+k}, v{32+k}, s91, v64"); a(f"v_exp_f32 v{56+k}, v{56+k}")
            a(f"v_add_f32 v65, v65, v{56+k}"); a(f"v_cvt_pk_bf16_f32 v{66+k}, v{56+k}, v{56+k}")
        for k in range(14): a(f"v_mov_b32 v{32+k}, v{34+k}")
        masks(0, "v66", 0)
        cal_events(8)
        if lasthi:
            a(f"s_cmp_eq_u32 s56, {7 if lasthi == 1 else 6}"); a(f"s_cselect_b32 s19, {1 if lasthi == 1 else 3}, s19")
        if touch:
            C("first touch of the pages the last stages use, so that their translations are at hand (values unused)")
            a(f"s_cmp_eq_u32 s56, {touch}"); a("s_cbranch_scc0 L_notouch")
            a("v_mov_b32 v60, 0"); a("s_mov_b64 exec, 1")
            a(f"s_mov_b32 s58, {WS_G+0x7f00}")
            a("buffer_load_dword v76, v60, s[32:35], s58 offen")
            a("s_and_b32 s58, s7, 1"); a("s_cbranch_scc0 L_notouch1")
            a("buffer_load_dword v76, v60, s[36:39], 0 offen")
            a("buffer_load_dword v76, v60, s[40:43], 0 offen"); a("buffer_load_dword v76, v60, s[44:47], 0 offen")
            a("global_load_dword v76, v60, s[80:81]")
            a("L_notouch1:")
            a("s_mov_b64 exec, -1")
            a("L_notouch:")
        if cpf2:
            a(f"s_cmp_eq_u32 s56, {cpf2}"); a("s_cbranch_scc0 L_nocpf2")
            a("s_getpc_b64 s[60:61]")
            a("L_pc2:")
            a("s_add_u32 s60, s60, L_v_end-L_pc2"); a("s_addc_u32 s61, s61, 0"); a("s_and_b32 s60, s60, 0xffffff80")
            a("s_lshr_b32 s58, s2, 3"); a("s_lshl_b32 s58, s58, 8"); a("v_add_u32 v60, s58, v0"); a("v_lshlrev_b32 v60, 4, v60")
            a("v_cmp_gt_u32 vcc, L_end-L_v_end, v60"); a("s_and_saveexec_b64 s[62:63], vcc"); a("s_cbranch_execz L_nocpf3")
            a("global_load_dwordx4 v[76:79], v60, s[60:61]")
            a("L_nocpf3:")
            a("s_mov_b64 exec, -1")
            a("L_nocpf2:")
        a("s_cmp_eq_u32 s56, 7"); a("s_cbranch_scc0 L_nolast")
        allred("v_add_f32", "v65", "v48")
        a("s_lshl_b32 s58, s3, 3"); a("v_mov_b32 v48, s58"); a("s_mov_b64 exec, 1")
        a(f"ds_write_b64 v48, v[64:65] offset:{L_ML}")
        a("s_mov_b64 exec, -1")
        a("s_cmp_eq_u32 s50, 0"); a("s_cbranch_scc1 L_nolast")
        a(f"s_mov_b32 s88, {SPIN}"); a("v_lshlrev_b32 v60, 2, v1")
        a("L_cnt:")
        a("global_load_dword v72, v60, s[84:85] sc1"); a("s_waitcnt vmcnt(0)")
        a("v_cmp_eq_u32 vcc, 0, v72"); a("s_cbranch_vccz L_nolast")
        a("s_sleep 8"); a("s_sub_u32 s88, s88, 1"); a("s_cbranch_scc0 L_cnt")
        a("L_nolast:")
    def vconsume(i):
        mfma(28, mop(i), ring(i), False)
        if i < NB - 1: masks(i + 1, f"v{66 + ((i + 1) >> 4)}", bitrev((i + 1) & 15))
    if vpol is not None: cur[0] = vpol
    laploop("L_v", vhead, vconsume, fin)
    stamp(6)
    C("---- combine the four waves, project through wo, publish the partial row")
    if prescale:
        for r in range(4): a(f"v_mul_f32 v{28+r}, v{28+r}, v60")
        a("s_mov_b32 exec_hi, 0")
        a(f"ds_write_b128 v26, v[28:31] offset:{L_OP}")
        a("s_mov_b64 exec, -1")
        a("s_waitcnt lgkmcnt(0)"); a("s_barrier")
        for w in range(4): a(f"ds_read2st64_b32 v[{84+2*w}:{85+2*w}], v27 offset0:{L_OP//256+2*w} offset1:{L_OP//256+2*w+1}")
        a("s_waitcnt lgkmcnt(2)")
        for k in range(2): a(f"v_add_f32 v{84+k}, v{84+k}, v{86+k}")
        a("s_waitcnt lgkmcnt(0)")
        for k in range(2): a(f"v_add_f32 v{88+k}, v{88+k}, v{90+k}")
        for k in range(2): a(f"v_add_f32 v{56+k}, v{84+k}, v{88+k}")
        for k in range(2): a(f"v_cvt_pk_bf16_f32 v{66+k}, v{56+k}, v{56+k}")
    else:
        a("v_mov_b32 v48, 0")
        a("s_mov_b32 exec_hi, 0")
        a(f"ds_write_b128 v26, v[28:31] offset:{L_OP}")
        a("s_mov_b64 exec, -1")
        a("s_waitcnt lgkmcnt(0)"); a("s_barrier")
        a(f"ds_read_b128 v[76:79], v48 offset:{L_ML}"); a(f"ds_read_b128 v[80:83], v48 offset:{L_ML+16}")
        for w in range(4): a(f"ds_read2st64_b32 v[{84+2*w}:{85+2*w}], v27 offset0:{L_OP//256+2*w} offset1:{L_OP//256+2*w+1}")
        a("s_waitcnt lgkmcnt(4)")
        a("v_min_f32 v48, v76, v78"); a("v_min3_f32 v48, v48, v80, v82")
        for w in range(4): a(f"v_sub_f32 v{76+2*w}, v48, v{76+2*w}")
        for w in range(4): a(f"v_exp_f32 v{76+2*w}, v{76+2*w}")
        a("v_mul_f32 v49, v76, v77")
        for w in range(1, 4): a(f"v_fmac_f32 v49, v{76+2*w}, v{77+2*w}")
        a("v_rcp_f32 v49, v49")
        a("s_waitcnt lgkmcnt(0)")
        for k in range(2):
            a(f"v_mul_f32 v{56+k}, v76, v{84+k}")
            for w in range(1, 4): a(f"v_fmac_f32 v{56+k}, v{76+2*w}, v{84+2*w+k}")
        for k in range(2):
            a(f"v_mul_f32 v{56+k}, v{56+k}, v49"); a(f"v_cvt_pk_bf16_f32 v{66+k}, v{56+k}, v{56+k}")
    if slide:
        C("product t takes the upper half of row group t and the lower half of group t+1, so a selector pair serves two products")
        def sel(t):
            for r in range(2):
                a(f"v_and_b32_dpp v{128+2*t+r}, v{66 + ((t & 31) >> 4)}, v{14+2*(t&1)+r} row_newbcast:{t & 15} row_mask:0xf bank_mask:0xf")
        sel(0); sel(1); sel(2)
        for t in range(32):
            mfma(28 if t & 1 else 76, f"v[{128+2*t}:{131+2*t}]", f"a[{4*t+2}:{4*t+5}]", t < 2)
            if t + 3 <= 32: sel(t + 3)
        for r in range(4): a(f"v_permlane16_swap_b32 v{76+r}, v{76+r}")
        for r in range(4): a(f"v_add_f32 v{28+r}, v{28+r}, v{76+r}")
    else:
        masks(0, "v66", 0)
        for t in range(32):
            if t < 31: masks(t + 1, "v66" if t + 1 < 16 else "v67", (t + 1) & 15)
            mfma(28, mop(t), f"a[{4*t}:{4*t+3}]", t == 0)
    a("s_mov_b32 exec_hi, 0")
    for r in range(4): a(f"v_min_u32 v{28+r}, -2, v{28+r}")
    a("buffer_store_dwordx4 v[28:31], v68, s[32:35], 0 offen sc1")
    a("s_mov_b64 exec, -1")
    stamp(7)
    if rskip: a("s_cmp_eq_u32 s6, 2"); a("s_cbranch_scc1 L_s2")
    if pfw:
        a("s_and_b32 s58, s7, 1"); a("s_cbranch_scc1 L_nopfw"); a("s_cmp_eq_u32 s6, 2"); a("s_cbranch_scc1 L_nopfw")
        a("s_waitcnt vmcnt(0)")
        a("L_nopfw:")
    if mpf >= 2:
        for k in range(0 if pf0 >= NB else pfn, 6): pfload(k)
    if not rskip: a("s_cmp_eq_u32 s6, 2"); a("s_cbranch_scc1 L_s2")
    a("s_and_b32 s58, s7, 1"); a("s_cbranch_scc0 L_fin")
    C("---- this workgroup's FFN weights -> LDS: A via s[40:43], B via s[44:47]; s96/s97 source, s98/s99 LDS, s100/s101 steps")
    a("s_cmp_eq_u32 s7, 1"); a("s_cbranch_scc0 L_dmaD")
    a("v_lshrrev_b32 v62, 2, v1"); a("s_movk_i32 s58, 3584"); a("v_mul_u32_u24 v62, s58, v62")
    a("v_and_b32 v63, 3, v1"); a("v_lshl_add_u32 v62, v63, 4, v62")
    a("s_lshl_b32 s58, s89, 6"); a("v_add_u32 v62, s58, v62")
    a(f"s_mul_i32 s96, s3, {128*3584}"); a("s_mov_b32 s97, s96")
    a("s_lshl_b32 s98, s3, 13"); a(f"s_add_u32 s98, s98, {L_W}"); a("s_add_u32 s99, s98, 32768")
    a(f"s_mov_b32 s100, {16*3584}"); a("s_mov_b32 s101, 1024"); a("s_mov_b32 s93, 8")
    a("s_branch L_dma")
    a("L_dmaD:")
    a("v_lshrrev_b32 v62, 1, v1"); a("v_lshlrev_b32 v62, 10, v62"); a("v_and_b32 v63, 1, v1"); a("v_lshl_add_u32 v62, v63, 4, v62")
    a("s_lshl_b32 s58, s89, 5"); a("v_add_u32 v62, s58, v62")
    for d in (40, 44):
        a(f"s_mov_b32 s{d}, s80"); a(f"s_mov_b32 s{d+1}, s81"); a(f"s_mov_b32 s{d+2}, {1792*1024}")
    a(f"s_mul_i32 s96, s3, {448*1024}"); a("s_add_u32 s97, s96, 32768")
    a(f"s_mul_i32 s98, s3, {448*32}"); a(f"s_add_u32 s98, s98, {L_W}"); a("s_add_u32 s99, s98, 1024")
    a("s_mov_b32 s100, 65536"); a("s_mov_b32 s101, 2048"); a("s_mov_b32 s93, 7")
    a("L_dma:")
    a("s_mov_b32 m0, s98"); a("s_sub_u32 s93, s93, 1")
    a(f"buffer_load_dwordx4 v62, s[40:43], s96 offen {fpol} lds")
    a("s_mov_b32 m0, s99"); a("s_add_u32 s96, s96, s100")
    a(f"buffer_load_dwordx4 v62, s[44:47], s97 offen {fpol} lds")
    a("s_add_u32 s97, s97, s100"); a("s_add_u32 s98, s98, s101"); a("s_add_u32 s99, s99, s101")
    a("s_cmp_lg_u32 s93, 0"); a("s_cbranch_scc1 L_dma")
    C("exchange addresses v63 = g*128 + b*16, v26 = w*512 + v63 ; v60 = 16g + r', v61 = c' for the transposing reads")
    a("v_and_b32 v27, 7, v75"); a("v_lshlrev_b32 v63, 4, v27"); a("v_lshl_add_u32 v63, v74, 7, v63")
    a("s_lshl_b32 s58, s3, 9"); a("v_add_u32 v26, s58, v63")
    a("v_lshrrev_b32 v60, 2, v75"); a("v_lshl_add_u32 v60, v74, 4, v60"); a("v_and_b32 v61, 3, v1")
    a("s_cmp_eq_u32 s7, 3"); a("s_cbranch_scc1 L_s4")

    C("---- gate / up: four tiles of 8+8 columns, 128 rows of h per wave; LayerNorm is applied to the sums")
    a("v_lshlrev_b32 v60, 6, v60"); a("v_lshrrev_b32 v49, 1, v61"); a("v_lshl_add_u32 v60, v49, 15, v60")
    a("v_and_b32 v49, 1, v61"); a("v_lshl_add_u32 v60, v49, 3, v60")
    a("s_lshl_b32 s58, s3, 13"); a(f"s_add_u32 s58, s58, {L_W}"); a("v_add_u32 v60, s58, v60")
    for r in range(4): a(f"v_mov_b32 v{112+r}, 0x3f803f80")
    C("h fragment address v62 = (g>>1)*512 + (b>>1)*128 + (b&1)*64 + (g&1)*32 + half*16")
    a("v_lshrrev_b32 v62, 1, v74"); a("v_lshlrev_b32 v62, 9, v62"); a("v_bfe_u32 v49, v75, 1, 2"); a("v_lshl_add_u32 v62, v49, 7, v62")
    a("v_and_b32 v49, 1, v75"); a("v_lshl_add_u32 v62, v49, 6, v62"); a("v_and_b32 v49, 1, v74"); a("v_lshl_add_u32 v62, v49, 5, v62")
    a("v_lshrrev_b32 v49, 3, v75"); a("v_lshl_add_u32 v62, v49, 4, v62")
    a(f"s_mov_b32 s58, {L_DUMP-L_T2}"); a("v_mad_u32_u24 v26, v49, s58, v26")
    a("s_lshl_b32 s58, s3, 11"); a("v_add_u32 v63, s58, v63")
    a("v_lshrrev_b32 v49, 1, v74"); a("v_lshlrev_b32 v49, 2, v49"); a("v_lshlrev_b32 v61, 5, v27"); a("v_add_u32 v49, v49, v61")
    a("s_lshl_b32 s58, s3, 3"); a("v_add_u32 v49, s58, v49")
    a("s_lshl_b32 s59, s3, 11"); a(f"s_add_u32 s59, s59, {WS_H}")
    def colsum():
        a("s_waitcnt lgkmcnt(0)")
        for k in range(4):
            for t in range(4): mfma(224 + 4*t, f"v[{128+16*t+4*k}:{131+16*t+4*k}]", "v[112:115]", k == 0)
        for t in range(4): a(f"ds_write_b128 v26, v[{224+4*t}:{227+4*t}] offset:{L_CS+2048*t}")
    if staged:
        for u in range(2):
            a(f"s_waitcnt vmcnt({8 - 8*u})")
            if u: stamp(13)
            for t in range(4):
                for hf in range(2):
                    for sec in range(2): trread(128 + 16*t + 8*u + 4*hf + 2*sec, "v60", (64*u + 8*hf + 4*sec) * 64 + 16*t)
                if t == 2: a("s_waitcnt lgkmcnt(6)")
            if u == 0: a("s_waitcnt lgkmcnt(0)")
    else:
        a("s_waitcnt vmcnt(0)")
        stamp(13)
        for t in range(4):
            for u in range(2):
                for hf in range(2):
                    for sec in range(2): trread(128 + 16*t + 8*u + 4*hf + 2*sec, "v60", (64*u + 8*hf + 4*sec) * 64 + 16*t)
            if t: a("s_waitcnt lgkmcnt(6)")
        a("s_waitcnt lgkmcnt(0)")
        for k in range(4):
            for t in range(4): mfma(224 + 4*t, f"v[{128+16*t+4*k}:{131+16*t+4*k}]", "v[112:115]", k == 0)
        for t in range(4): a(f"ds_write_b128 v26, v[{224+4*t}:{227+4*t}] offset:{L_CS+2048*t}")
    if cspre:
        a("s_waitcnt lgkmcnt(0)"); a("s_barrier")
        for w in range(4): a(f"ds_read_b128 v[{224+4*w}:{227+4*w}], v63 offset:{L_CS+512*w}")
        a("s_waitcnt lgkmcnt(0)")
        for r in range(4): a(f"v_add_f32 v{224+r}, v{224+r}, v{228+r}"); a(f"v_add_f32 v{232+r}, v{232+r}, v{236+r}")
        for r in range(4): a(f"v_add_f32 v{108+r}, v{224+r}, v{232+r}")
    def ldH(b): return [f"buffer_load_dwordx4 v[{b+4*u}:{b+3+4*u}], v62, s[32:35], s59 offen offset:{u*1024} sc1" for u in range(2)]
    def useH(b):
        n = 0
        for u in range(2):
            for t in range(4):
                for hf in range(2):
                    mfma(192 + 8*t + 4*hf, f"v[{128+16*t+8*u+4*hf}:{131+16*t+8*u+4*hf}]", f"v[{b+4*u}:{b+3+4*u}]", u == 0)
                    if n < 8:
                        a(f"v_dot2_f32_bf16 v52, v{b+n}, v112, {'0' if n == 0 else 'v52'}")
                        a(f"v_dot2_f32_bf16 v53, v{b+n}, v{b+n}, {'0' if n == 0 else 'v53'}")
                    if n == 9:
                        for r in range(2): a(f"v_add_f32_dpp v{52+r}, v{52+r}, v{52+r} row_ror:8 row_mask:0xf bank_mask:0xf")
                    if n == 11: a("v_permlane32_swap_b32 v52, v53"); a("v_add_f32 v52, v52, v53"); a("v_mov_b32 v53, v52")
                    if n == 13: a("v_permlane16_swap_b32 v52, v53"); a("v_add_f32 v52, v52, v53"); a(f"ds_write_b32 v49, v52 offset:{L_ST}")
                    n += 1
    poll2("L_pH", ldH, 8, (76, 84), useH, colsum if staged else None)
    stamp(10)
    for t in range(4):
        for r in range(4): a(f"v_add_f32_dpp v{192+8*t+r}, v{196+8*t+r}, v{192+8*t+r} row_ror:8 row_mask:0xf bank_mask:0xf")
        a(f"ds_write_b128 v26, v[{192+8*t}:{195+8*t}] offset:{L_T2+2048*t}")
    a("s_waitcnt lgkmcnt(0)"); a("s_barrier")
    for k in range(2): a(f"ds_read_b128 v[{92+4*k}:{95+4*k}], v61 offset:{L_ST+16*k}")
    if not cspre:
        for w in range(4): a(f"ds_read_b128 v[{224+4*w}:{227+4*w}], v63 offset:{L_CS+512*w}")
    for w in range(4): a(f"ds_read_b128 v[{116+4*w}:{119+4*w}], v63 offset:{L_T2+512*w}")
    a(f"s_waitcnt lgkmcnt({4 if cspre else 8})")
    for k in range(2): a(f"v_add_f32 v{92+k}, v{92+k}, v{94+k}"); a(f"v_add_f32 v{96+k}, v{96+k}, v{98+k}")
    a("v_add_f32 v52, v92, v96"); a("v_add_f32 v53, v93, v97")
    a(f"v_mul_f32 v52, {f32(1/512)}, v52"); a(f"v_mul_f32 v53, {f32(1/512)}, v53")
    a("v_fma_f32 v53, -v52, v52, v53"); a("v_max_f32 v53, 0, v53")
    bf16r("v53"); bf16r("v52")
    a(f"v_add_f32 v53, {f32(1e-5)}, v53"); bf16r("v53")
    a("v_sqrt_f32 v53, v53")
    if not cspre:
        a("s_waitcnt lgkmcnt(4)")
        for r in range(4): a(f"v_add_f32 v{224+r}, v{224+r}, v{228+r}"); a(f"v_add_f32 v{232+r}, v{232+r}, v{236+r}")
        bf16r("v53"); a("v_rcp_f32 v53, v53")
        for r in range(4): a(f"v_add_f32 v{108+r}, v{224+r}, v{232+r}")
    a("s_waitcnt lgkmcnt(0)")
    for r in range(4): a(f"v_add_f32 v{116+r}, v{116+r}, v{120+r}"); a(f"v_add_f32 v{124+r}, v{124+r}, v{128+r}")
    if cspre: bf16r("v53"); a("v_rcp_f32 v53, v53")
    for r in range(4): a(f"v_add_f32 v{116+r}, v{116+r}, v{124+r}")
    for r in range(4): a(f"v_fma_f32 v{116+r}, -v52, v{108+r}, v{116+r}")
    for r in range(4): a(f"v_mul_f32 v{116+r}, v{116+r}, v53")
    for r in range(2): a(f"v_cvt_pk_bf16_f32 v{120+r}, v{116+2*r}, v{117+2*r}")
    for r in range(2): a(f"v_permlane32_swap_b32 v{120+r}, v{122+r}")
    for r in range(2):
        a(f"v_lshlrev_b32 v{116+2*r}, 16, v{120+r}"); a(f"v_and_b32 v{117+2*r}, 0xffff0000, v{120+r}")
        a(f"v_lshlrev_b32 v{124+2*r}, 16, v{122+r}"); a(f"v_and_b32 v{125+2*r}, 0xffff0000, v{122+r}")
    for r in range(4): a(f"v_max_f32 v{116+r}, 0, v{116+r}")
    for r in range(4): a(f"v_mul_f32 v{116+r}, v{116+r}, v{124+r}")
    for r in range(2): a(f"v_cvt_pk_bf16_f32 v{120+r}, v{116+2*r}, v{117+2*r}")
    a("s_mov_b64 exec, 0x00ff00ff")
    for r in range(2): a(f"v_min_u32 v{120+r}, -2, v{120+r}")
    a("buffer_store_dwordx2 v[120:121], v70, s[32:35], 0 offen sc1")
    stamp(11)
    a("s_branch L_fin")

    C("---- reducer: sum the 32 heads' partials of 2 rows x 32 columns, add x, publish h")
    a("L_s2:")
    a("v_lshlrev_b32 v62, 4, v1")
    a("s_lshl_b32 s59, s89, 13"); a("s_add_u32 s92, s59, 4096")
    a("v_lshlrev_b32 v50, 16, v71"); a("v_and_b32 v51, 0xffff0000, v71")
    def ld8(b): return [f"buffer_load_dwordx4 v[{b+4*u}:{b+3+4*u}], v62, s[32:35], {'s59' if u < 4 else 's92'} offen offset:{(u&3)*1024} sc1" for u in range(8)]
    def useP(b):
        for r in range(16): a(f"v_add_f32 v{108+r}, v{b+r}, v{b+16+r}")
    poll2("L_pP", ld8, 32, (76, 128), useP)
    stamp(8)
    for st in (8, 4):
        for r in range(st): a(f"v_add_f32 v{108+r}, v{108+r}, v{108+st+r}")
    a("v_permlane32_swap_b32 v108, v110"); a("v_permlane32_swap_b32 v109, v111")
    a("v_add_f32 v108, v108, v110"); a("v_add_f32 v109, v109, v111")
    a("v_mov_b32 v110, v108"); a("v_mov_b32 v111, v109")
    a("v_permlane16_swap_b32 v108, v110"); a("v_permlane16_swap_b32 v109, v111")
    a("v_add_f32 v108, v108, v110"); a("v_add_f32 v109, v109, v111")
    a("v_cvt_pk_bf16_f32 v108, v108, v109")
    a("v_and_b32 v109, 0xffff0000, v108"); a("v_lshlrev_b32 v108, 16, v108")
    a("v_add_f32 v108, v108, v50"); a("v_add_f32 v109, v109, v51")
    a("v_cvt_pk_bf16_f32 v108, v108, v109")
    a("s_mov_b32 exec_lo, 0xffff"); a("s_mov_b32 exec_hi, 0xffff")
    a("v_min_u32 v108, -2, v108")
    a("buffer_store_dword v108, v69, s[32:35], 0 offen sc1")
    if rskip == 2:
        a("s_mov_b64 exec, -1")
        for k in range(0 if pf0 >= NB else pfn, 6): pfload(k)
    stamp(9)
    a("s_branch L_fin")

    C("---- 16 output columns, 448 rows of W_down per wave")
    a("L_s4:")
    a("v_lshlrev_b32 v60, 5, v60"); a("v_lshl_add_u32 v60, v61, 3, v60")
    a(f"s_mul_i32 s58, s3, {448*32}"); a(f"s_add_u32 s58, s58, {L_W}"); a("v_add_u32 v60, s58, v60")
    C("h address v49 = H + ((s'>>1)*4 + (b>>1))*128 + (b&1)*64 + (s'&1)*32 + g*8 ; out address v50 = b*1024 + s'*32 + g*8")
    a("v_lshrrev_b32 v49, 1, v27"); a("v_lshlrev_b32 v49, 7, v49"); a("v_and_b32 v50, 1, v27"); a("v_lshl_add_u32 v49, v50, 6, v49")
    a("v_lshl_add_u32 v49, v74, 3, v49")
    a("s_lshr_b32 s58, s89, 1"); a("s_lshl_b32 s58, s58, 9"); a("s_and_b32 s92, s89, 1"); a("s_lshl_b32 s92, s92, 5"); a("s_add_u32 s58, s58, s92")
    a(f"s_add_u32 s58, s58, {WS_H}"); a("v_add_u32 v49, s58, v49")
    a("v_lshlrev_b32 v50, 10, v27"); a("v_lshl_add_u32 v50, v74, 3, v50"); a("s_lshl_b32 s58, s89, 5"); a("v_add_u32 v50, s58, v50")
    a(f"s_mul_i32 s59, s3, {7*1024}"); a(f"s_add_u32 s59, s59, {WS_G}"); a("s_add_u32 s92, s59, 4096")
    a("v_lshlrev_b32 v62, 4, v1")
    if not staged: a("s_waitcnt vmcnt(0)"); stamp(13)
    for u in range(7):
        if staged: a(f"s_waitcnt vmcnt({12 - 2*u})")
        if staged and u == 6: stamp(13)
        for hf in range(2):
            for sec in range(2): trread(128 + 8*u + 4*hf + 2*sec, "v60", (64*u + 8*hf + 4*sec) * 32)
        if u in (2, 5): a("s_waitcnt lgkmcnt(4)")
    a("s_waitcnt lgkmcnt(0)")
    def ldG(b): return ld8(b)[:7] + [f"buffer_load_dwordx2 v[{b+28}:{b+29}], v49, s[32:35], 0 offen sc1"]
    def useG(b):
        for u in range(7):
            for hf in range(2): mfma(108 + 4*hf, f"v[{128+8*u+4*hf}:{131+8*u+4*hf}]", f"v[{b+4*u}:{b+3+4*u}]", u == 0)
        for r in range(2):
            a(f"v_lshlrev_b32 v{116+2*r}, 16, v{b+28+r}"); a(f"v_and_b32 v{117+2*r}, 0xffff0000, v{b+28+r}")
    poll2("L_pG", ldG, 30, (76, 192), useG)
    stamp(10)
    for r in range(4): a(f"v_add_f32_dpp v{108+r}, v{112+r}, v{108+r} row_ror:8 row_mask:0xf bank_mask:0xf")
    a("s_mov_b32 exec_lo, 0x00ff00ff"); a("s_mov_b32 exec_hi, 0x00ff00ff")
    a(f"ds_write_b128 v26, v[108:111] offset:{L_TX}")
    a("s_waitcnt lgkmcnt(0)"); a("s_barrier")
    a("s_cmp_eq_u32 s3, 3"); a("s_cbranch_scc0 L_fin")
    for w in range(4): a(f"ds_read_b128 v[{128+4*w}:{131+4*w}], v63 offset:{L_TX+512*w}")
    a("s_waitcnt lgkmcnt(0)")
    for r in range(4):
        a(f"v_add_f32 v{128+r}, v{128+r}, v{132+r}"); a(f"v_add_f32 v{136+r}, v{136+r}, v{140+r}")
    for r in range(4): a(f"v_add_f32 v{128+r}, v{128+r}, v{136+r}")
    for r in range(2): a(f"v_cvt_pk_bf16_f32 v{132+r}, v{128+2*r}, v{129+2*r}")
    for r in range(2):
        a(f"v_lshlrev_b32 v{128+2*r}, 16, v{132+r}"); a(f"v_and_b32 v{129+2*r}, 0xffff0000, v{132+r}")
    for r in range(4): a(f"v_add_f32 v{128+r}, v{128+r}, v{116+r}")
    for r in range(2): a(f"v_cvt_pk_bf16_f32 v{132+r}, v{128+2*r}, v{129+2*r}")
    a("buffer_store_dwordx2 v[132:133], v50, s[36:39], 0 offen")
    stamp(11)
    a("L_fin:")
    if probe is not None:
        a(f"s_cmp_eq_u32 s2, {pwg}"); a("s_cbranch_scc0 L_end"); a("s_cmp_eq_u32 s3, 3"); a("s_cbranch_scc0 L_end")
        if probe == 0: a("s_mov_b32 s20, 0")
        a("s_add_u32 s20, s20, 10000")
        a("L_probe:")
        a("s_sleep 4"); a("s_memrealtime s[94:95]"); a("s_waitcnt lgkmcnt(0)"); a("s_sub_u32 s94, s94, s18")
        a("s_cmp_lt_u32 s94, s20"); a("s_cbranch_scc1 L_probe")
    if stamps:
        a("s_mov_b64 exec, -1")
        stamp(12)
        a("s_getreg_b32 s92, hwreg(HW_REG_XCC_ID)"); a("v_writelane_b32 v73, s92, 15")
        a("s_lshl_b32 s58, s2, 2"); a("s_add_u32 s58, s58, s3"); a("s_lshl_b32 s58, s58, 7"); a(f"s_add_u32 s58, s58, {WS_ST}")
        a("v_lshlrev_b32 v48, 2, v1"); a("s_mov_b32 exec_hi, 0")
        a("buffer_store_dword v73, v48, s[32:35], s58 offen")
        if "dbgout" in xp:
            a("s_cmp_eq_u32 s2, 229"); a("s_cbranch_scc0 L_end"); a("s_cmp_eq_u32 s3, 3"); a("s_cbranch_scc0 L_end")
            a("v_subrev_u32 v73, s18, v73"); a("s_mov_b64 exec, 0xffff")
            a("global_store_dword v48, v73, s[84:85] sc1")
    a("L_end:")
    a("s_endpgm")
    body = a.finish()
    head_ = HEADER + f"; @launch grid=(256,1,1) block=(256,1,1) lds={L_SIZE}\n" + '.amdgcn_target "amdgcn-amd-amdhsa--gfx950"\n.text\n' + \
        DOC + f".globl {NAME}\n.p2align 8\n.type {NAME},@function\n"
    tail = f""".section .rodata,"a"
.p2align 6
.amdhsa_kernel {NAME}
  .amdhsa_next_free_vgpr 392
  .amdhsa_next_free_sgpr 102
  .amdhsa_accum_offset 256
  .amdhsa_group_segment_fixed_size 0
  .amdhsa_kernarg_size 96
  .amdhsa_user_sgpr_count 2
  .amdhsa_user_sgpr_kernarg_segment_ptr 1
  .amdhsa_system_sgpr_workgroup_id_x 1
.end_amdhsa_kernel
"""
    return head_ + body + tail

if __name__ == "__main__":
    kw = eval("dict(%s)" % (sys.argv[2] if len(sys.argv) > 2 else ""))
    open(sys.argv[1], "w").write(gen(**kw))
```

```python
import sys, struct
sys.path.insert(0, __file__.rsplit('/', 1)[0])
from asmlib import Asm

NAME = "sequential_preLN__mha_block_cached__glu_gated_reglu__decode_kernel"
HEADER = open(__file__.rsplit('/', 1)[0] + '/header.txt').read()

def f32(x): return "0x%08x" % struct.unpack('<I', struct.pack('<f', x))[0]

WS_P, WS_H, WS_G, WS_ST, WS_SIZE = 0, 0x80000, 0x82000, 0x100000, 0x140000
L_QP, L_OP, L_ML, L_ST, L_TX, L_T2, L_CS, L_W, L_DUMP, L_SIZE = 0, 2048, 4096, 4160, 4608, 8192, 16384, 24576, 90112, 106496
DOC = r"""; ---------------------------------------------------------------------------------------------------------
; ---------------------------------------------------------------------------------------------------------
"""
RING = 128
NB = 32
SPIN = 200000

def gen(D=5, hi=1, pol="nt", wpol="", fpol="", early=(2, 7, 12, 17), n1=7, kq=2, nbar=2, nA=3, nB=3, D1=None,
        stag=0, cpf2=0, fin=10, touch=0, cspre=0, wend=32, wov=0, wod=0, initlow=0, prescale=1, slide=1, staged=1, vt=0, lasthi=0, mpf=7, pf0=32, xpf=1, pfn=6, pfo=(0, 1, 2, 3, 4, 5), rskip=0, pfw=0, rw=None, rlo=None, jump=0, shift=0, hmap=(0, 2, 3, 1, 4), ctl=1, slack=80, k0=1, late=0, cpf=23, rot=0, nw=2, nwl=1, eps=0, head=(60, 80), hiu=(4, 4), cal=3, stamps=0, xp=(), probe=None, pwg=130, vpol=None, pre=0, ahead=0, r2=0, slack2=40):
    a = Asm()
    vm = []
    def C(t): a("; " + t)
    def vwait(tag):
        n = len(vm) - 1 - vm.index(tag)
        a(f"s_waitcnt vmcnt({min(n, 63)})")
    def stamp(k):
        if probe == k:
            a("s_memrealtime s[94:95]"); a("s_waitcnt lgkmcnt(0)"); a("s_sub_u32 s20, s94, s18")
        if stamps == 2 and k not in (6, 12): return
        if stamps == 3 and k not in (3, 4, 6, 12): return
        if stamps:
            a("s_memrealtime s[94:95]"); a("s_waitcnt lgkmcnt(0)"); a(f"v_writelane_b32 v73, s94, {k}")
    def lapstamp(off):
        if stamps == 3:
            a("s_memrealtime s[94:95]"); a(f"s_add_u32 m0, s56, {off}"); a("s_waitcnt lgkmcnt(0)"); a("v_writelane_b32 v73, s94, m0")
    def allred(op, v, t):
        for n in (8, 4, 2, 1): a(f"{op}_dpp {v}, {v}, {v} row_ror:{n} row_mask:0xf bank_mask:0xf")
        for sw in ("v_permlane16_swap_b32", "v_permlane32_swap_b32"):
            a(f"v_mov_b32 {t}, {v}"); a(f"{sw} {v}, {t}"); a(f"{op} {v}, {v}, {t}")
    def bf16r(v):
        a(f"v_cvt_pk_bf16_f32 {v}, {v}, {v}"); a(f"v_and_b32 {v}, 0xffff0000, {v}")
    def srd(d, lo, hi_, size, add=None):
        if add is None:
            a(f"s_mov_b32 s{d}, s{lo}"); a(f"s_mov_b32 s{d+1}, s{hi_}")
        else:
            a(f"s_add_u32 s{d}, s{lo}, {add}"); a(f"s_addc_u32 s{d+1}, s{hi_}, 0")
        a(f"s_mov_b32 s{d+2}, {size}"); a(f"s_mov_b32 s{d+3}, 0x20000")
    cur = [pol]
    def ring(j): j %= NB; return f"v[{RING+4*j}:{RING+4*j+3}]"
    def sload(j):
        s, b = ("s[12:15]", "s55") if j >= NB else ("s[8:11]", "s54")
        j %= NB
        a(f"buffer_load_dwordx4 {ring(j)}, v{2+(j>>2)}, {s}, {b} offen offset:{(j&3)*1024} {cur[0]}")
    def masks(t, src, lane):
        for r in range(4):
            a(f"v_and_b32_dpp v{18+4*(t&1)+r}, {src}, v{14+r} row_newbcast:{lane} row_mask:0xf bank_mask:0xf")
    def mop(t): return f"v[{18+4*(t&1)}:{21+4*(t&1)}]"
    def mfma(d, x, y, first): a(f"v_mfma_f32_16x16x32_bf16 v[{d}:{d+3}], {x}, {y}, {'0' if first else 'v[%d:%d]' % (d, d+3)}")
    def bitrev(t): return ((t & 1) << 3) | ((t & 2) << 1) | ((t & 4) >> 1) | ((t & 8) >> 3)
    def check(regs, ok):
        r = list(regs)
        a(f"v_max3_u32 v48, v{r[0]}, v{r[1]}, v{r[2]}"); r = r[3:]
        while len(r) >= 2:
            a(f"v_max3_u32 v48, v48, v{r[0]}, v{r[1]}"); r = r[2:]
        if r: a(f"v_max_u32 v48, v48, v{r[0]}")
        a("v_cmp_eq_u32 vcc, -1, v48")
        a(f"s_cbranch_vccz {ok}")
    def poll2(label, loads, nreg, bases, use, pre=None):
        n = len(loads(bases[0]))
        a(f"s_mov_b32 s88, {SPIN}")
        for l in loads(bases[0]): a(l)
        if stag: a(f"s_sleep {stag}")
        if pre: pre()
        a(f"{label}:")
        for l in loads(bases[1]): a(l)
        a(f"s_waitcnt vmcnt({n})")
        check(range(bases[0], bases[0] + nreg), f"{label}_A")
        for l in loads(bases[0]): a(l)
        a(f"s_waitcnt vmcnt({n})")
        check(range(bases[1], bases[1] + nreg), f"{label}_B")
        a("s_sub_u32 s88, s88, 1")
        a(f"s_cbranch_scc0 {label}")
        a(f"{label}_B:")
        use(bases[1])
        a(f"s_branch {label}_done")
        a(f"{label}_A:")
        use(bases[0])
        a(f"{label}_done:")
    def trread(dst, addr, off): a(f"ds_read_b64_tr_b16 v[{dst}:{dst+1}], {addr} offset:{off}")

    a(f"{NAME}:")
    a("s_cmp_ge_u32 s2, 256"); a("s_cbranch_scc1 L_end")
    a("s_memrealtime s[18:19]")
    a("s_load_dwordx16 s[64:79], s[0:1], 0")
    a("s_load_dwordx8 s[80:87], s[0:1], 64")
    if cpf:
        C("pull the kernel's own code towards this die's L2, one KiB per wave")
        a("s_getpc_b64 s[60:61]"); a("s_and_b32 s60, s60, 0xffffff00")
        a("s_lshr_b32 s58, s2, 3"); a("s_lshl_b32 s58, s58, 8"); a("v_add_u32 v60, s58, v0"); a("v_lshlrev_b32 v60, 4, v60")
        a(f"v_cmp_gt_u32 vcc, {cpf*1024}, v60"); a("s_and_saveexec_b64 s[62:63], vcc"); a("s_cbranch_execz L_nocpf")
        a("global_load_dwordx4 v[76:79], v60, s[60:61]")
        a("L_nocpf:")
        a("s_mov_b64 exec, -1")
    C("s3 wave, s4 batch row, s5 head; v1 lane, v74 lane>>4 (g), v75 lane&15 (i)")
    a("v_lshrrev_b32 v1, 6, v0")
    a("v_readfirstlane_b32 s3, v1")
    a("v_and_b32 v1, 63, v0")
    a("s_lshr_b32 s4, s2, 5"); a("s_and_b32 s5, s2, 31")
    if hmap:
        C("head = bits 0..4 of the workgroup id, reordered: neighbours in memory are spread over the dies as the HBM likes it best")
        a("s_mov_b32 s5, 0")
        for k, pbit in enumerate(hmap):
            a(f"s_bfe_u32 s58, s2, {0x10000 + k:#x}"); a(f"s_lshl_b32 s58, s58, {pbit}"); a("s_or_b32 s5, s5, s58")
    a("v_lshrrev_b32 v74, 4, v1"); a("v_and_b32 v75, 15, v1")
    a("v_lshlrev_b32 v48, 4, v1")
    if rw is None: a("s_lshl_b32 s58, s3, 12")
    else: a(f"s_lshr_b32 s58, s2, {rw}"); a("s_add_u32 s58, s58, s3"); a("s_and_b32 s58, s58, 3"); a("s_lshl_b32 s58, s58, 12")
    a("v_add_u32 v2, s58, v48")
    if rlo is None:
        for k in range(1, 8): a(f"v_add_u32 v{2+k}, {k*16384}, v2")
    else:
        a(f"s_lshr_b32 s58, s2, {rlo}"); a("s_lshl_b32 s58, s58, 14"); a("v_add_u32 v2, s58, v2")
        for k in range(7, -1, -1):
            if k: a(f"v_add_u32 v{2+k}, {k*16384}, v2")
            a(f"v_and_b32 v{2+k}, 0x1ffff, v{2+k}")
    a("s_lshl_b32 s58, s3, 8"); a("v_lshlrev_b32 v49, 3, v75"); a("v_lshl_add_u32 v49, v74, 1, v49"); a("v_add_u32 v49, s58, v49")
    a("v_lshrrev_b32 v51, 1, v74")
    C("wq lane offset v58 = (128w+g)*8192 + i*16 ; wo lane offset v59 = g*1024 + w*256 + i*16")
    a("s_lshl_b32 s58, s3, 20"); a("v_lshlrev_b32 v58, 13, v74"); a("v_lshl_add_u32 v58, v75, 4, v58"); a("v_add_u32 v58, s58, v58")
    a("s_lshl_b32 s58, s3, 8"); a("v_lshlrev_b32 v59, 10, v74"); a("v_lshl_add_u32 v59, v75, 4, v59"); a("v_add_u32 v59, s58, v59")
    a("s_lshl_b32 s57, s4, 10"); a("s_lshl_b32 s58, s5, 8"); a("s_lshl_b32 s59, s4, 5"); a("s_add_u32 s59, s59, s5"); a("s_lshl_b32 s59, s59, 20")
    a("s_sub_u32 s92, 0x400000, s58")
    a("s_mov_b32 s54, 0")
    a("s_waitcnt lgkmcnt(0)")
    if stamps: a("v_mov_b32 v73, 0"); a("v_writelane_b32 v73, s18, 0")
    kiss = 0
    def kload():
        nonlocal kiss
        sload(kiss - kbase); vm.append(f"k{kiss}"); kiss += 1
    kbase = 0
    stamp(16)
    srd(8, 66, 67, 0x100000, "s59")
    for j in range(k0): kload()
    srd(28, 64, 65, 8192)
    a("buffer_load_dwordx4 v[52:55], v48, s[28:31], s57 offen"); vm.append("x")
    a("buffer_load_ushort v56, v49, s[28:31], s57 offen"); vm.append("xc0")
    a("buffer_load_ushort v57, v49, s[28:31], s57 offen offset:128"); vm.append("xc1")
    srd(20, 70, 71, "s92", "s58")
    wiss = 0
    def wqload():
        nonlocal wiss
        a(f"s_mov_b32 s58, {wiss*32768}")
        a(f"buffer_load_dwordx4 a[{4*wiss}:{4*wiss+3}], v58, s[20:23], s58 offen {wpol}"); vm.append(f"wq{wiss}"); wiss += 1
    for j in range(n1):
        if j: kload()
        for x in range(nw): wqload()
    stamp(17)
    a("s_add_u32 s16, s68, s59"); a("s_addc_u32 s17, s69, 0")
    a("s_mov_b32 s12, s8"); a("s_mov_b32 s13, s9"); a("s_mov_b32 s14, 0x100000"); a("s_mov_b32 s15, 0x20000")
    a("s_lshl_b32 s58, s5, 17"); srd(24, 72, 73, 0x20000, "s58")
    def setup_late():
        a("v_lshrrev_b32 v77, 1, v74"); a("v_lshlrev_b32 v78, 4, v1")
        srd(32, 86, 87, WS_SIZE); srd(36, 82, 83, 8192)
        srd(40, 76, 77, 512*3584); srd(44, 78, 79, 512*3584)
        C("role s7 / index s89: 1 gate+up tiles (wg<56), 2 reducer (64<=wg<128), 3 output slice (wg>=224), 0 none")
        a("s_and_b32 s58, s2, 7"); a("s_lshr_b32 s92, s2, 3")
        a("s_mul_i32 s89, s58, 7"); a("s_add_u32 s89, s89, s92")
        a("s_cmp_lt_u32 s2, 56"); a("s_cselect_b32 s7, 1, 0")
        a("s_lshl_b32 s58, s58, 2"); a("s_add_u32 s58, s58, s92"); a("s_sub_u32 s58, s58, 28")
        a("s_cmp_ge_u32 s2, 224"); a("s_cselect_b32 s89, s58, s89"); a("s_cselect_b32 s7, 3, s7")
        a("s_sub_u32 s58, s2, 64"); a("s_cmp_lt_u32 s58, 64"); a("s_cselect_b32 s89, s58, s89"); a("s_cselect_b32 s7, 2, s7")
        a("s_lshl_b32 s6, s3, 2"); a("s_add_u32 s6, s6, s7")
        C("P store offset v68 = ((4w + (i>>2))*4 + (b>>1))*8192 + (2h + (b&1))*128 + (i&3)*32 + g*16")
        a("v_lshrrev_b32 v68, 2, v75"); a("v_lshlrev_b32 v68, 15, v68"); a("v_lshl_add_u32 v68, v74, 4, v68")
        a("v_and_b32 v60, 3, v75"); a("v_lshl_add_u32 v68, v60, 5, v68")
        a("s_lshl_b32 s58, s3, 17"); a("s_lshr_b32 s92, s4, 1"); a("s_lshl_b32 s92, s92, 13"); a("s_add_u32 s58, s58, s92")
        a("s_lshl_b32 s92, s5, 8"); a("s_add_u32 s58, s58, s92")
        a("s_and_b32 s92, s4, 1"); a("s_lshl_b32 s92, s92, 7"); a("s_add_u32 s58, s58, s92"); a("v_add_u32 v68, s58, v68")
        C("H store offset v69 = H + rho*128 + i*8 + (g>>1)*4 ; x offset v76 = (2(rho&3) + (i>>3))*1024 + (rho>>2)*64 + (i&7)*8 + (g>>1)*4")
        a("v_lshlrev_b32 v69, 3, v75"); a("v_lshl_add_u32 v69, v77, 2, v69")
        a("v_lshrrev_b32 v76, 3, v75"); a("v_lshlrev_b32 v76, 10, v76"); a("v_and_b32 v60, 7, v75"); a("v_lshl_add_u32 v76, v60, 3, v76")
        a("v_lshl_add_u32 v76, v77, 2, v76")
        a("s_and_b32 s58, s89, 3"); a("s_lshl_b32 s58, s58, 11"); a("s_lshr_b32 s92, s89, 2"); a("s_lshl_b32 s92, s92, 6"); a("s_add_u32 s58, s58, s92")
        a("v_add_u32 v76, s58, v76")
        a("s_lshl_b32 s58, s89, 7"); a(f"s_add_u32 s58, s58, {WS_H}"); a("v_add_u32 v69, s58, v69")
        a("buffer_load_dword v71, v76, s[28:31], 0 offen"); vm.append("xr")
        C("G store offset v70 = G + (4*s89 + w)*128 + i*16 + g*8")
        a("v_lshlrev_b32 v70, 4, v75"); a("v_lshl_add_u32 v70, v74, 3, v70")
        a("s_lshl_b32 s58, s89, 2"); a("s_add_u32 s58, s58, s3"); a("s_lshl_b32 s58, s58, 7"); a(f"s_add_u32 s58, s58, {WS_G}"); a("v_add_u32 v70, s58, v70")
        C("wave 0 of the reducers marks every hand-off line empty (all ones): own P lines, own H line, four G lines")
        a("s_cmp_eq_u32 s6, 2"); a("s_cbranch_scc0 L_noclr")
        for r in range(4): a(f"v_mov_b32 v{60+r}, -1")
        a("s_lshl_b32 s58, s89, 13"); a("s_add_u32 s92, s58, 4096")
        for u in range(8): a(f"buffer_store_dwordx4 v[60:63], v78, s[32:35], {'s58' if u < 4 else 's92'} offen offset:{(u&3)*1024} sc1")
        a("s_lshl_b32 s58, s89, 9"); a(f"s_add_u32 s58, s58, {WS_G}"); a("s_mov_b32 exec_hi, 0")
        a("buffer_store_dwordx4 v[60:63], v78, s[32:35], s58 offen sc1")
        a("s_lshl_b32 s58, s89, 7"); a(f"s_add_u32 s58, s58, {WS_H}"); a("s_mov_b32 exec_lo, 0xff")
        a("buffer_store_dwordx4 v[60:63], v78, s[32:35], s58 offen sc1")
        a("s_mov_b64 exec, -1")
        a("L_noclr:")
    if not late:
        srd(32, 86, 87, WS_SIZE); srd(36, 82, 83, 8192)
        srd(40, 76, 77, 512*3584); srd(44, 78, 79, 512*3584)
        C("role s7 / index s89: 1 gate+up tiles (wg<56), 2 reducer (64<=wg<128), 3 output slice (wg>=224), 0 none")
        a("s_and_b32 s58, s2, 7"); a("s_lshr_b32 s92, s2, 3")
        a("s_mul_i32 s89, s58, 7"); a("s_add_u32 s89, s89, s92")
        a("s_cmp_lt_u32 s2, 56"); a("s_cselect_b32 s7, 1, 0")
        a("s_lshl_b32 s58, s58, 2"); a("s_add_u32 s58, s58, s92"); a("s_sub_u32 s58, s58, 28")
        a("s_cmp_ge_u32 s2, 224"); a("s_cselect_b32 s89, s58, s89"); a("s_cselect_b32 s7, 3, s7")
        a("s_sub_u32 s58, s2, 64"); a("s_cmp_lt_u32 s58, 64"); a("s_cselect_b32 s89, s58, s89"); a("s_cselect_b32 s7, 2, s7")
        a("s_lshl_b32 s6, s3, 2"); a("s_add_u32 s6, s6, s7")
        C("P store offset v68 = ((4w + (i>>2))*4 + (b>>1))*8192 + (2h + (b&1))*128 + (i&3)*32 + g*16")
        a("v_lshrrev_b32 v68, 2, v75"); a("v_lshlrev_b32 v68, 15, v68"); a("v_lshl_add_u32 v68, v74, 4, v68")
        a("v_and_b32 v60, 3, v75"); a("v_lshl_add_u32 v68, v60, 5, v68")
        a("s_lshl_b32 s58, s3, 17"); a("s_lshr_b32 s92, s4, 1"); a("s_lshl_b32 s92, s92, 13"); a("s_add_u32 s58, s58, s92")
        a("s_lshl_b32 s92, s5, 8"); a("s_add_u32 s58, s58, s92")
        a("s_and_b32 s92, s4, 1"); a("s_lshl_b32 s92, s92, 7"); a("s_add_u32 s58, s58, s92"); a("v_add_u32 v68, s58, v68")
        C("H store offset v69 = H + rho*128 + i*8 + (g>>1)*4 ; x offset v50 = (2(rho&3) + (i>>3))*1024 + (rho>>2)*64 + (i&7)*8 + (g>>1)*4")
        a("v_lshlrev_b32 v69, 3, v75"); a("v_lshl_add_u32 v69, v51, 2, v69")
        a("v_lshrrev_b32 v50, 3, v75"); a("v_lshlrev_b32 v50, 10, v50"); a("v_and_b32 v60, 7, v75"); a("v_lshl_add_u32 v50, v60, 3, v50")
        a("v_lshl_add_u32 v50, v51, 2, v50")
        a("s_and_b32 s58, s89, 3"); a("s_lshl_b32 s58, s58, 11"); a("s_lshr_b32 s92, s89, 2"); a("s_lshl_b32 s92, s92, 6"); a("s_add_u32 s58, s58, s92")
        a("v_add_u32 v50, s58, v50")
        a("s_lshl_b32 s58, s89, 7"); a(f"s_add_u32 s58, s58, {WS_H}"); a("v_add_u32 v69, s58, v69")
        a("buffer_load_dword v71, v50, s[28:31], 0 offen"); vm.append("xr")
        C("G store offset v70 = G + (4*s89 + w)*128 + i*16 + g*8")
        a("v_lshlrev_b32 v70, 4, v75"); a("v_lshl_add_u32 v70, v74, 3, v70")
        a("s_lshl_b32 s58, s89, 2"); a("s_add_u32 s58, s58, s3"); a("s_lshl_b32 s58, s58, 7"); a(f"s_add_u32 s58, s58, {WS_G}"); a("v_add_u32 v70, s58, v70")
        C("the reducers mark every hand-off line empty (all ones): own P lines, own H line, four G lines")
        a("s_cmp_eq_u32 s7, 2"); a("s_cbranch_scc0 L_noclr")
        for r in range(4): a(f"v_mov_b32 v{60+r}, -1")
        a("s_lshl_b32 s58, s89, 13"); a("s_lshl_b32 s92, s3, 11"); a("s_add_u32 s58, s58, s92")
        a("buffer_store_dwordx4 v[60:63], v48, s[32:35], s58 offen sc1")
        a("buffer_store_dwordx4 v[60:63], v48, s[32:35], s58 offen offset:1024 sc1")
        a("s_mov_b64 exec, 0x00ff00ff")
        a("buffer_store_dwordx2 v[60:61], v70, s[32:35], 0 offen sc1")
        a("s_cmp_eq_u32 s3, 0"); a("s_cbranch_scc0 L_noclr")
        a("s_mov_b32 exec_lo, 0xffff"); a("s_mov_b32 exec_hi, 0xffff")
        a("buffer_store_dword v60, v69, s[32:35], 0 offen sc1")
        a("L_noclr:")
        a("s_mov_b64 exec, -1")
    for j in range(nA): kload()
    stamp(1)
    a("s_mov_b32 s60, 0xcccccccc"); a("s_mov_b32 s61, 0xcccccccc"); a("s_mov_b32 s62, 0xaaaaaaaa"); a("s_mov_b32 s63, 0xaaaaaaaa")
    a(f"s_mov_b32 s90, {f32(128 ** -0.5)}"); a(f"s_mov_b32 s91, {f32(1.4426950408889634)}")
    C("selector masks v14..17: lane (g,m): m<8 and m>>1==r -> m&1 ? 0xffff0000 : 0xffff")
    a("v_and_b32 v60, 1, v75"); a("v_lshlrev_b32 v60, 4, v60"); a("v_mov_b32 v61, 0xffff"); a("v_lshlrev_b32 v60, v60, v61")
    a("v_lshrrev_b32 v61, 1, v75")
    for r in range(4):
        a(f"v_cmp_eq_u32 vcc, {r}, v61"); a(f"v_cndmask_b32 v{14+r}, 0, v60, vcc")
    C("---- LayerNorm of x[b]")
    vwait("x")
    stamp(18)
    for j in range(nB): kload()
    for k in range(4):
        a(f"v_lshlrev_b32 v{76+2*k}, 16, v{52+k}"); a(f"v_and_b32 v{77+2*k}, 0xffff0000, v{52+k}")
    a("v_add_f32 v84, v76, v77")
    for k in range(2, 8): a(f"v_add_f32 v84, v84, v{76+k}")
    allred("v_add_f32", "v84", "v85")
    a(f"v_mul_f32 v84, {f32(1/512)}, v84")
    for k in range(8): a(f"v_sub_f32 v{76+k}, v{76+k}, v84")
    a("v_mul_f32 v86, v76, v76")
    for k in range(1, 8): a(f"v_fmac_f32 v86, v{76+k}, v{76+k}")
    allred("v_add_f32", "v86", "v85")
    a(f"v_mul_f32 v86, {f32(1/512)}, v86")
    bf16r("v84"); bf16r("v86")
    a(f"v_add_f32 v86, {f32(1e-5)}, v86"); bf16r("v86")
    a("v_sqrt_f32 v86, v86"); bf16r("v86"); a("v_rcp_f32 v86, v86")
    vwait("xc1")
    for k in range(2):
        a(f"v_lshlrev_b32 v{56+k}, 16, v{56+k}"); a(f"v_sub_f32 v{56+k}, v{56+k}, v84"); bf16r(f"v{56+k}")
        a(f"v_mul_f32 v{56+k}, v{56+k}, v86"); a(f"v_cvt_pk_bf16_f32 v{66+k}, v{56+k}, v{56+k}")
    stamp(2)
    C("---- q = xn @ wq[:, head], 128 rows per wave")
    masks(0, "v66", 0)
    for t in range(32):
        vwait(f"wq{t}")
        if t in (0, 13): stamp(19 + (t > 0))
        mfma(28, mop(t), f"a[{4*t}:{4*t+3}]", t == 0)
        if wiss < 32: wqload()
        if int((t + 1) / kq) > int(t / kq) and kiss < NB: kload()
        if t < 31: masks(t + 1, "v66" if t + 1 < 16 else "v67", (t + 1) & 15)
    for j in range(nbar):
        if kiss < NB: kload()
    a("v_lshlrev_b32 v27, 5, v75"); a("v_lshl_add_u32 v26, v74, 4, v27"); a("s_lshl_b32 s58, s3, 9"); a("v_add_u32 v26, s58, v26")
    a("s_mov_b32 exec_hi, 0")
    a(f"ds_write_b128 v26, v[28:31] offset:{L_QP}")
    a("s_mov_b64 exec, -1")
    a("s_waitcnt lgkmcnt(0)"); a("s_barrier")
    for w in range(4):
        for hh in range(2): a(f"ds_read_b128 v[{76+8*w+4*hh}:{79+8*w+4*hh}], v27 offset:{L_QP+512*w+16*hh}")
    a("s_waitcnt lgkmcnt(0)")
    for k in range(8):
        a(f"v_add_f32 v{76+k}, v{76+k}, v{84+k}"); a(f"v_add_f32 v{92+k}, v{92+k}, v{100+k}")
    for k in range(8): a(f"v_add_f32 v{76+k}, v{76+k}, v{92+k}")
    for k in range(4): a(f"v_cvt_pk_bf16_f32 v{10+k}, v{76+2*k}, v{77+2*k}")
    a("v_lshlrev_b32 v27, 4, v75"); a("v_lshl_add_u32 v27, v74, 2, v27")
    a("v_mov_b32 v64, 0xff800000"); a("v_mov_b32 v65, 0")
    stamp(3)

    def kconsume(i):
        t = i & 15
        x = f"v{48 + (t & 1)}"
        base = RING + 4 * i
        a(f"v_dot2_f32_bf16 {x}, v{base}, v10, 0")
        for r in range(1, 4): a(f"v_dot2_f32_bf16 {x}, v{base+r}, v{10+r}, {x}")
        if t & 1:
            d = f"v{50 + ((t >> 1) & 1)}"
            a(f"v_add_f32_dpp {d}, v48, v48 row_ror:8 row_mask:0xf bank_mask:0x3")
            a(f"v_add_f32_dpp {d}, v49, v49 row_ror:8 row_mask:0xf bank_mask:0xc")
        if t & 3 == 3:
            d = f"v{52 + ((t >> 2) & 1)}"
            a(f"v_add_f32_dpp {d}, v50, v50 row_half_mirror row_mask:0xf bank_mask:0x5")
            a(f"v_add_f32_dpp {d}, v51, v51 row_half_mirror row_mask:0xf bank_mask:0xa")
        if t & 7 == 7:
            d = f"v{54 + ((t >> 3) & 1)}"
            a("v_add_f32_dpp v52, v52, v52 quad_perm:[2,3,0,1] row_mask:0xf bank_mask:0xf")
            a("v_add_f32_dpp v53, v53, v53 quad_perm:[2,3,0,1] row_mask:0xf bank_mask:0xf")
            a(f"v_cndmask_b32 {d}, v52, v53, s[60:61]")
        if t == 15:
            s = f"v{46 + (i >> 4)}"
            a("v_add_f32_dpp v54, v54, v54 quad_perm:[1,0,3,2] row_mask:0xf bank_mask:0xf")
            a("v_add_f32_dpp v55, v55, v55 quad_perm:[1,0,3,2] row_mask:0xf bank_mask:0xf")
            a(f"v_cndmask_b32 {s}, v54, v55, s[62:63]")
            bf16r(s); a(f"v_mul_f32 {s}, s90, {s}"); bf16r(s)
            a(f"v_max_f32 v64, v64, {s}")
    C("---- lap 0: the keys that arrived while q was formed")
    a(f"s_mov_b32 s55, {NB*4096}")
    left = NB + D - kiss
    early = list(early)
    while early and early[-1] >= NB - (left - len(early)): early.pop()
    sched = early + list(range(NB - (left - len(early)), NB))
    assert len(set(sched)) == left, (sched, left)
    for i in range(NB):
        vwait(f"k{i}")
        if i in sched:
            assert kiss - NB < i
            kload()
        kconsume(i)
    stamp(4)
    C("---- the next laps also bring in this head's rows of wo")
    wo = 0
    if wov: nwl = 0; wo = 32
    for lap in range(1, nwl + 1):
        a("s_mov_b32 s54, s55"); a(f"s_add_u32 s55, s55, {NB*4096}")
        for k in range(2 * lap): a(f"v_mov_b32 v{46-2*lap+k}, v{48-2*lap+k}")
        kbase = NB * lap
        if lap == 1:
            for j in range((D1 or D) - D): kload()
        for i in range(NB):
            vwait(f"k{NB*lap+i}")
            if kiss < (nwl + 1) * NB + D: kload()
            while wo < 32 and (i % nwl == 0 if wend == 32 else wo * wend < (i + 1) * 32) and (wend < 32 or wo * nwl <= NB * (lap - 1) + i):
                a(f"s_mov_b32 s58, {wo*4096}")
                a(f"buffer_load_dwordx4 a[{4*wo}:{4*wo+3}], v59, s[24:27], s58 offen {wpol}"); vm.append(f"wo{wo}"); wo += 1
            if mpf == 1 and lap == 1:
                if i == 0:
                    srd(20, 80, 81, 1792*1024)
                    a("s_lshl_b32 s96, s2, 2"); a("s_add_u32 s96, s96, s3"); a("s_lshl_b32 s96, s96, 11"); a("v_lshlrev_b32 v62, 4, v1")
                if i % 5 == 2 and i // 5 < 6:
                    k = i // 5
                    a(f"buffer_load_dwordx4 v[76:79], v62, s[{(40, 44, 20)[k >> 1]}:{(43, 47, 23)[k >> 1]}], s96 offen offset:{(k & 1) * 1024}"); vm.append(f"pf{k}")
            kconsume(i)
            if late and lap == 1 and i == 4: setup_late()
    assert wo == 32

    leads = ([D - 1] if ahead else []) + [D, D + hi]
    def decide(name, k):
        a("s_waitcnt lgkmcnt(0)")
        a("s_sub_u32 s58, s52, s48"); a("s_lshl_b32 s58, s58, 8"); a("s_sub_u32 s58, s58, s49"); a("s_add_u32 s49, s49, s57")
        if jump:
            a("s_sub_u32 s101, s58, s100"); a(f"s_cmp_gt_i32 s101, {jump*256}"); a(f"s_cselect_b32 s101, {shift*256 if shift else 's101'}, 0")
            a("s_add_u32 s49, s49, s101"); a("s_sub_u32 s58, s58, s101"); a("s_mov_b32 s100, s58")
        a("s_sub_u32 s19, s19, 1"); a("s_cmp_ge_i32 s19, 0"); a("s_cselect_b32 s58, 1, s58")
        a("s_cmp_gt_i32 s58, 0"); a(f"s_cbranch_scc1 {name}_{k}_{D+hi}")
        if ahead:
            a("s_cmp_lt_i32 s58, s93"); a(f"s_cbranch_scc1 {name}_{k}_{D-1}")
    def segment(name, k, DD, consume):
        tag = f"{name}_{k}_{DD}"; i0 = 16 * k
        a(f"{tag}:")
        for j in range(leads[0], DD):
            a(f"s_cmp_gt_u32 s51, {j}"); a(f"s_cbranch_scc1 {tag}_i{j}")
            sload(i0 + j)
            a(f"{tag}_i{j}:")
        nskip = leads[-1] - DD
        for i in range(i0, i0 + 16):
            a(f"s_waitcnt vmcnt({DD - 1})")
            skip = i - i0 < nskip
            if skip: a(f"s_cmp_gt_u32 s51, {DD + i - i0}"); a(f"s_cbranch_scc1 {tag}_s{i}")
            sload(i + DD)
            if skip: a(f"{tag}_s{i}:")
            if i - i0 == nskip: a(f"s_mov_b32 s51, {DD}")
            if i - i0 == 15: a("s_memrealtime s[52:53]")
            consume(i)
    def cal_events(base):
        lo, up = (nwl + 1, 8) if base == 0 else (8, 16)
        if lo <= cal < up:
            a("s_waitcnt lgkmcnt(0)"); a(f"s_cmp_eq_u32 s56, {cal-base}"); a("s_cselect_b32 s88, s52, s88")
            if jump: a(f"s_cmp_eq_u32 s56, {cal+1-base}"); a("s_cselect_b32 s92, s52, s92")
        if lo <= cal + 2 < up:
            a("s_lshl_b32 s58, s6, 4"); a("s_add_u32 s58, s58, s56")
            a(f"s_cmp_eq_u32 s58, {32+cal+2-base}"); a("s_cbranch_scc0 L_norep")
            a("s_waitcnt lgkmcnt(0)")
            a("s_sub_u32 s58, s52, s88")
            if jump:
                a("s_sub_u32 s88, s92, s88"); a("s_sub_u32 s92, s52, s92"); a("s_min_u32 s88, s88, s92"); a("s_lshl_b32 s88, s88, 1")
                a("s_add_u32 s92, s88, 50"); a("s_cmp_gt_u32 s58, s92"); a("s_cselect_b32 s58, s88, s58")
            a("s_min_u32 s58, s58, 0x7fff"); a("s_max_u32 s58, s58, 1"); a("s_pack_ll_b32_b16 s58, s52, s58")
            a("v_mov_b32 v61, s58"); a("s_lshl_b32 s58, s89, 2"); a("v_mov_b32 v60, s58"); a("s_mov_b64 exec, 1")
            a("global_store_dword v60, v61, s[84:85] sc1")
            a("s_mov_b64 exec, -1")
            a("L_norep:")
        if lo <= cal + 2 < up and pre:
            a("s_and_b32 s58, s7, 1"); a("s_lshl_b32 s58, s58, 4"); a("s_add_u32 s58, s58, s56")
            a(f"s_cmp_eq_u32 s58, {16+cal+2-base}"); a(f"s_cselect_b32 s19, {pre}, s19")
        x = "K" if base == 0 else "V"
        a("s_cmp_lg_u32 s50, 0"); a(f"s_cbranch_scc0 L_nocal{x}")
        if cal + 3 - base > max(lo - base, 0):
            a(f"s_cmp_ge_u32 s56, {cal+3-base}"); a(f"s_cbranch_scc0 L_nocal{x}")
        a("v_cmp_eq_u32 vcc, 0, v72"); a(f"s_cbranch_vccz L_cal{x}")
        a("v_lshlrev_b32 v60, 2, v1"); a("global_load_dword v72, v60, s[84:85] sc1")
        a(f"s_branch L_nocal{x}")
        a(f"L_cal{x}:")
        a("s_mov_b32 s50, 0")
        if ctl:
            a("s_waitcnt lgkmcnt(0)")
            a("s_mov_b32 s48, s52"); a("s_mov_b32 s100, 0x20000000")
            a("v_bfe_u32 v60, v72, 16, 15"); a("v_subrev_u32 v61, s52, v72"); a("v_bfe_i32 v61, v61, 0, 16")
            allred("v_add_u32", "v60", "v62"); allred("v_add_u32", "v61", "v62")
            a("v_readfirstlane_b32 s57, v60"); a("v_readfirstlane_b32 s49, v61")
            if eps > 0: a(f"s_lshr_b32 s58, s57, {eps}"); a("s_add_u32 s57, s57, s58")
            if eps < 0: a(f"s_lshr_b32 s58, s57, {-eps}"); a("s_sub_u32 s57, s57, s58")
            a(f"s_add_u32 s58, s56, {base-cal-2}"); a("s_lshl_b32 s58, s58, 1"); a("s_mul_i32 s58, s58, s57")
            a("s_lshl_b32 s49, s49, 2"); a("s_add_u32 s49, s49, s58")
            a(f"s_mov_b32 s58, {slack*256}")
            a("s_cmp_eq_u32 s7, 1"); a(f"s_cselect_b32 s58, {(slack-head[0])*256}, s58")
            a("s_cmp_eq_u32 s7, 3"); a(f"s_cselect_b32 s58, {(slack-head[1])*256}, s58")
            a("s_add_u32 s49, s49, s58")
            if ahead: a(f"s_mov_b32 s93, {-ahead*256}")
        a(f"L_nocal{x}:")
    def laploop(name, head_code, consume, fin=0):
        others = [x for x in leads if x != D]
        a(".p2align 3")
        a(f"{name}:")
        head_code()
        if wov and fin: a("s_cmp_eq_u32 s56, s96"); a(f"s_cbranch_scc1 {name}_wo")
        decide(name, 0)
        segment(name, 0, D, consume)
        a(f"{name}_mid:")
        if fin: a("s_cmp_eq_u32 s56, 7"); a(f"s_cbranch_scc1 {name}_f")
        decide(name, 1)
        segment(name, 1, D, consume)
        a(f"{name}_nxt:")
        a("s_add_u32 s56, s56, 1"); a("s_cmp_lt_u32 s56, 8"); a(f"s_cbranch_scc1 {name}")
        a(f"s_branch {name}_end")
        for x in others:
            segment(name, 0, x, consume); a(f"s_branch {name}_mid")
            segment(name, 1, x, consume); a(f"s_branch {name}_nxt")
        if wov and fin:
            DD = D + wod
            a(f"{name}_wo:")
            a("s_add_u32 s49, s49, s57"); a("s_add_u32 s49, s49, s57")
            for j in range(leads[0], DD):
                a(f"s_cmp_gt_u32 s51, {j}"); a(f"s_cbranch_scc1 {name}_wi{j}")
                sload(j)
                a(f"{name}_wi{j}:")
            nskip = leads[-1] - DD
            for i in range(NB):
                a(f"s_waitcnt vmcnt({DD - 1 + min(i, DD)})")
                skip = i < nskip
                if skip: a(f"s_cmp_gt_u32 s51, {DD + i}"); a(f"s_cbranch_scc1 {name}_ws{i}")
                sload(i + DD)
                if skip: a(f"{name}_ws{i}:")
                if i == nskip: a(f"s_mov_b32 s51, {DD}")
                a(f"s_mov_b32 s58, {i*4096}")
                a(f"buffer_load_dwordx4 a[{4*i}:{4*i+3}], v59, s[24:27], s58 offen {wpol}")
                if i == NB - 1: a("s_memrealtime s[52:53]")
                consume(i)
            a(f"s_branch {name}_nxt")
        if fin:
            a(f"{name}_f:")
            for j in range(leads[0], leads[-1]):
                a(f"s_cmp_gt_u32 s51, {j}"); a(f"s_cbranch_scc1 {name}_f{j}")
                sload(16 + j)
                a(f"{name}_f{j}:")
            nx = 16 + leads[-1]
            while nx < min(16 + fin, NB): sload(nx); nx += 1
            if prescale:
                C("every wave has published its maximum and sum: this wave's weight v60 = exp2(m_w - m) / L")
                a("v_mov_b32 v48, 0"); a("s_waitcnt lgkmcnt(0)"); a("s_barrier")
                a(f"ds_read_b128 v[76:79], v48 offset:{L_ML}"); a(f"ds_read_b128 v[80:83], v48 offset:{L_ML+16}")
                a("s_waitcnt lgkmcnt(0)")
                a("v_min_f32 v48, v76, v78"); a("v_min3_f32 v48, v48, v80, v82")
                for w in range(4): a(f"v_sub_f32 v{76+2*w}, v48, v{76+2*w}")
                a("v_sub_f32 v60, v48, v64")
                for w in range(4): a(f"v_exp_f32 v{76+2*w}, v{76+2*w}")
                a("v_exp_f32 v60, v60")
                a("v_mul_f32 v49, v76, v77")
                for w in range(1, 4): a(f"v_fmac_f32 v49, v{76+2*w}, v{77+2*w}")
                a("v_rcp_f32 v49, v49")
                a("v_mul_f32 v60, v60, v49")
                if slide: a("v_accvgpr_mov_b32 a128, a0"); a("v_accvgpr_mov_b32 a129, a1")
            npf = 0
            for i in range(16, NB):
                a(f"s_waitcnt vmcnt({nx - 1 - i + npf})")
                if nx < NB: sload(nx); nx += 1
                elif mpf >= 2 and i >= pf0:
                    for x in range(mpf - 1):
                        if npf < pfn:
                            k = npf
                            pfload(k); npf += 1
                consume(i)
        a(f"{name}_end:")
    if wov:
        a(f"s_mul_i32 s96, s5, {wov}"); a("s_lshr_b32 s96, s96, 5")
    C("s48 time base, s49 deadline (1/256 ticks), s50 reports seen, s51 depth in use, s[52:53] clock, s57 pace, s19 fixed deep segments")
    a(f"s_mov_b32 s56, {nwl+1}")
    a("s_memrealtime s[52:53]"); a(f"s_mov_b32 s51, {D}"); a("s_mov_b32 s50, 99"); a("s_mov_b32 s57, 0")
    a("s_mov_b32 s48, s18"); a("s_mov_b32 s49, 0x40000000"); a("s_mov_b32 s100, 0x20000000"); a("s_mov_b32 s92, 0"); a("s_mov_b32 s88, 0"); a(f"s_mov_b32 s93, {0 if initlow else 0x80000000}"); a("v_mov_b32 v72, 0")
    a("s_cmp_eq_u32 s7, 1"); a(f"s_cselect_b32 s19, {hiu[0]-4}, 0"); a("s_cmp_eq_u32 s7, 3"); a(f"s_cselect_b32 s19, {hiu[1]-4}, s19")
    def khead():
        lapstamp(16)
        a("s_mov_b32 s54, s55"); a(f"s_add_u32 s55, s55, {NB*4096}")
        a("s_cmp_eq_u32 s56, 7")
        a("s_cselect_b32 s12, s16, s12"); a("s_cselect_b32 s13, s17, s13"); a("s_cselect_b32 s55, 0, s55")
        for k in range(14): a(f"v_mov_b32 v{32+k}, v{34+k}")
        cal_events(0)
        if vt:
            a("s_lshl_b32 s58, s3, 4"); a("s_add_u32 s58, s58, s56")
            a(f"s_cmp_eq_u32 s58, {vt}"); a("s_cbranch_scc0 L_novt")
            a("v_mov_b32 v60, 0"); a("s_mov_b64 exec, 1")
            a("global_load_dword v76, v60, s[16:17] nt")
            a("s_mov_b64 exec, -1")
            a("L_novt:")
    laploop("L_k", khead, kconsume)
    stamp(5)
    C("---- maximum of this wave's scores, in log2 units, negated")
    allred("v_max_f32", "v64", "v48")
    a("v_mul_f32 v64, s91, v64"); a("v_sub_f32 v64, 0, v64")
    a("s_mov_b32 s8, s12"); a("s_mov_b32 s9, s13"); a("s_mov_b32 s56, 0")
    for r in range(4): a(f"v_mov_b32 v{28+r}, 0")
    def pfload(k):
        k = pfo[k]
        sr = f"s[{(40, 44, 20)[k >> 1]}:{(43, 47, 23)[k >> 1]}]"
        if xpf: a(f"buffer_load_dwordx4 a[132:135], {'v58' if k < 4 else 'v59'}, {sr}, s{(96 if k < 4 else 98) + (k & 1)} offen")
        else: a(f"buffer_load_dwordx4 a[132:135], v58, {sr}, s96 offen offset:{(k & 1) * 1024}")
    if mpf >= 2:
        C("every wave fetches a share of the FFN weights as its stream ends, so that their users find them in a cache")
        srd(20, 80, 81, 1792*1024)
        if xpf:
            a("s_lshr_b32 s98, s2, 3"); a("s_lshl_b32 s98, s98, 2"); a("s_add_u32 s98, s98, s3")
            a(f"s_mul_i32 s96, s98, {4*3584}"); a(f"s_add_u32 s97, s96, {2*3584}")
            a(f"s_mul_i32 s98, s98, {14*1024}"); a("s_add_u32 s99, s98, 8192")
            a("s_and_b32 s58, s2, 7"); a("s_mul_i32 s92, s58, 448"); a("s_and_b32 s92, s92, 0xff80"); a("s_lshl_b32 s58, s58, 7")
            a("v_lshrrev_b32 v58, 5, v1"); a("v_mul_u32_u24 v58, 3584, v58"); a("v_and_b32 v59, 31, v1"); a("v_lshl_add_u32 v58, v59, 4, v58"); a("v_add_u32 v58, s92, v58")
            a("v_lshrrev_b32 v59, 3, v1"); a("v_lshlrev_b32 v59, 10, v59"); a("v_and_b32 v48, 7, v1"); a("v_lshl_add_u32 v59, v48, 4, v59"); a("v_add_u32 v59, s58, v59")
        else:
            a("s_lshl_b32 s96, s2, 2"); a("s_add_u32 s96, s96, s3"); a("s_lshl_b32 s96, s96, 11"); a("v_lshlrev_b32 v58, 4, v1")
    def vhead():
        lapstamp(24)
        a("s_mov_b32 s54, s55"); a(f"s_add_u32 s55, s55, {NB*4096}")
        for k in range(2):
            a(f"v_fma_f32 v{56+k}, v{32+k}, s91, v64"); a(f"v_exp_f32 v{56+k}, v{56+k}")
            a(f"v_add_f32 v65, v65, v{56+k}"); a(f"v_cvt_pk_bf16_f32 v{66+k}, v{56+k}, v{56+k}")
        for k in range(14): a(f"v_mov_b32 v{32+k}, v{34+k}")
        masks(0, "v66", 0)
        cal_events(8)
        if lasthi:
            a(f"s_cmp_eq_u32 s56, {7 if lasthi == 1 else 6}"); a(f"s_cselect_b32 s19, {1 if lasthi == 1 else 3}, s19")
        if touch:
            C("first touch of the pages the last stages use, so that their translations are at hand (values unused)")
            a(f"s_cmp_eq_u32 s56, {touch}"); a("s_cbranch_scc0 L_notouch")
            a("v_mov_b32 v60, 0"); a("s_mov_b64 exec, 1")
            a(f"s_mov_b32 s58, {WS_G+0x7f00}")
            a("buffer_load_dword v76, v60, s[32:35], s58 offen")
            a("s_and_b32 s58, s7, 1"); a("s_cbranch_scc0 L_notouch1")
            a("buffer_load_dword v76, v60, s[36:39], 0 offen")
            a("buffer_load_dword v76, v60, s[40:43], 0 offen"); a("buffer_load_dword v76, v60, s[44:47], 0 offen")
            a("global_load_dword v76, v60, s[80:81]")
            a("L_notouch1:")
            a("s_mov_b64 exec, -1")
            a("L_notouch:")
        if cpf2:
            a(f"s_cmp_eq_u32 s56, {cpf2}"); a("s_cbranch_scc0 L_nocpf2")
            a("s_getpc_b64 s[60:61]")
            a("L_pc2:")
            a("s_add_u32 s60, s60, L_v_end-L_pc2"); a("s_addc_u32 s61, s61, 0"); a("s_and_b32 s60, s60, 0xffffff80")
            a("s_lshr_b32 s58, s2, 3"); a("s_lshl_b32 s58, s58, 8"); a("v_add_u32 v60, s58, v0"); a("v_lshlrev_b32 v60, 4, v60")
            a("v_cmp_gt_u32 vcc, L_end-L_v_end, v60"); a("s_and_saveexec_b64 s[62:63], vcc"); a("s_cbranch_execz L_nocpf3")
            a("global_load_dwordx4 v[76:79], v60, s[60:61]")
            a("L_nocpf3:")
            a("s_mov_b64 exec, -1")
            a("L_nocpf2:")
        a("s_cmp_eq_u32 s56, 7"); a("s_cbranch_scc0 L_nolast")
        allred("v_add_f32", "v65", "v48")
        a("s_lshl_b32 s58, s3, 3"); a("v_mov_b32 v48, s58"); a("s_mov_b64 exec, 1")
        a(f"ds_write_b64 v48, v[64:65] offset:{L_ML}")
        a("s_mov_b64 exec, -1")
        a("s_cmp_eq_u32 s50, 0"); a("s_cbranch_scc1 L_nolast")
        a(f"s_mov_b32 s88, {SPIN}"); a("v_lshlrev_b32 v60, 2, v1")
        a("L_cnt:")
        a("global_load_dword v72, v60, s[84:85] sc1"); a("s_waitcnt vmcnt(0)")
        a("v_cmp_eq_u32 vcc, 0, v72"); a("s_cbranch_vccz L_nolast")
        a("s_sleep 8"); a("s_sub_u32 s88, s88, 1"); a("s_cbranch_scc0 L_cnt")
        a("L_nolast:")
    def vconsume(i):
        mfma(28, mop(i), ring(i), False)
        if i < NB - 1: masks(i + 1, f"v{66 + ((i + 1) >> 4)}", bitrev((i + 1) & 15))
    if vpol is not None: cur[0] = vpol
    laploop("L_v", vhead, vconsume, fin)
    stamp(6)
    C("---- combine the four waves, project through wo, publish the partial row")
    if prescale:
        for r in range(4): a(f"v_mul_f32 v{28+r}, v{28+r}, v60")
        a("s_mov_b32 exec_hi, 0")
        a(f"ds_write_b128 v26, v[28:31] offset:{L_OP}")
        a("s_mov_b64 exec, -1")
        a("s_waitcnt lgkmcnt(0)"); a("s_barrier")
        for w in range(4): a(f"ds_read2st64_b32 v[{84+2*w}:{85+2*w}], v27 offset0:{L_OP//256+2*w} offset1:{L_OP//256+2*w+1}")
        a("s_waitcnt lgkmcnt(2)")
        for k in range(2): a(f"v_add_f32 v{84+k}, v{84+k}, v{86+k}")
        a("s_waitcnt lgkmcnt(0)")
        for k in range(2): a(f"v_add_f32 v{88+k}, v{88+k}, v{90+k}")
        for k in range(2): a(f"v_add_f32 v{56+k}, v{84+k}, v{88+k}")
        for k in range(2): a(f"v_cvt_pk_bf16_f32 v{66+k}, v{56+k}, v{56+k}")
    else:
        a("v_mov_b32 v48, 0")
        a("s_mov_b32 exec_hi, 0")
        a(f"ds_write_b128 v26, v[28:31] offset:{L_OP}")
        a("s_mov_b64 exec, -1")
        a("s_waitcnt lgkmcnt(0)"); a("s_barrier")
        a(f"ds_read_b128 v[76:79], v48 offset:{L_ML}"); a(f"ds_read_b128 v[80:83], v48 offset:{L_ML+16}")
        for w in range(4): a(f"ds_read2st64_b32 v[{84+2*w}:{85+2*w}], v27 offset0:{L_OP//256+2*w} offset1:{L_OP//256+2*w+1}")
        a("s_waitcnt lgkmcnt(4)")
        a("v_min_f32 v48, v76, v78"); a("v_min3_f32 v48, v48, v80, v82")
        for w in range(4): a(f"v_sub_f32 v{76+2*w}, v48, v{76+2*w}")
        for w in range(4): a(f"v_exp_f32 v{76+2*w}, v{76+2*w}")
        a("v_mul_f32 v49, v76, v77")
        for w in range(1, 4): a(f"v_fmac_f32 v49, v{76+2*w}, v{77+2*w}")
        a("v_rcp_f32 v49, v49")
        a("s_waitcnt lgkmcnt(0)")
        for k in range(2):
            a(f"v_mul_f32 v{56+k}, v76, v{84+k}")
            for w in range(1, 4): a(f"v_fmac_f32 v{56+k}, v{76+2*w}, v{84+2*w+k}")
        for k in range(2):
            a(f"v_mul_f32 v{56+k}, v{56+k}, v49"); a(f"v_cvt_pk_bf16_f32 v{66+k}, v{56+k}, v{56+k}")
    if slide:
        C("product t takes the upper half of row group t and the lower half of group t+1, so a selector pair serves two products")
        def sel(t):
            for r in range(2):
                a(f"v_and_b32_dpp v{128+2*t+r}, v{66 + ((t & 31) >> 4)}, v{14+2*(t&1)+r} row_newbcast:{t & 15} row_mask:0xf bank_mask:0xf")
        sel(0); sel(1); sel(2)
        for t in range(32):
            mfma(28 if t & 1 else 76, f"v[{128+2*t}:{131+2*t}]", f"a[{4*t+2}:{4*t+5}]", t < 2)
            if t + 3 <= 32: sel(t + 3)
        for r in range(4): a(f"v_permlane16_swap_b32 v{76+r}, v{76+r}")
        for r in range(4): a(f"v_add_f32 v{28+r}, v{28+r}, v{76+r}")
    else:
        masks(0, "v66", 0)
        for t in range(32):
            if t < 31: masks(t + 1, "v66" if t + 1 < 16 else "v67", (t + 1) & 15)
            mfma(28, mop(t), f"a[{4*t}:{4*t+3}]", t == 0)
    a("s_mov_b32 exec_hi, 0")
    for r in range(4): a(f"v_min_u32 v{28+r}, -2, v{28+r}")
    a("buffer_store_dwordx4 v[28:31], v68, s[32:35], 0 offen sc1")
    a("s_mov_b64 exec, -1")
    stamp(7)
    if rskip: a("s_cmp_eq_u32 s6, 2"); a("s_cbranch_scc1 L_s2")
    if pfw:
        a("s_and_b32 s58, s7, 1"); a("s_cbranch_scc1 L_nopfw"); a("s_cmp_eq_u32 s6, 2"); a("s_cbranch_scc1 L_nopfw")
        a("s_waitcnt vmcnt(0)")
        a("L_nopfw:")
    if mpf >= 2:
        for k in range(0 if pf0 >= NB else pfn, 6): pfload(k)
    if not rskip: a("s_cmp_eq_u32 s6, 2"); a("s_cbranch_scc1 L_s2")
    a("s_and_b32 s58, s7, 1"); a("s_cbranch_scc0 L_fin")
    C("---- this workgroup's FFN weights -> LDS: A via s[40:43], B via s[44:47]; s96/s97 source, s98/s99 LDS, s100/s101 steps")
    a("s_cmp_eq_u32 s7, 1"); a("s_cbranch_scc0 L_dmaD")
    a("v_lshrrev_b32 v62, 2, v1"); a("s_movk_i32 s58, 3584"); a("v_mul_u32_u24 v62, s58, v62")
    a("v_and_b32 v63, 3, v1"); a("v_lshl_add_u32 v62, v63, 4, v62")
    a("s_lshl_b32 s58, s89, 6"); a("v_add_u32 v62, s58, v62")
    a(f"s_mul_i32 s96, s3, {128*3584}"); a("s_mov_b32 s97, s96")
    a("s_lshl_b32 s98, s3, 13"); a(f"s_add_u32 s98, s98, {L_W}"); a("s_add_u32 s99, s98, 32768")
    a(f"s_mov_b32 s100, {16*3584}"); a("s_mov_b32 s101, 1024"); a("s_mov_b32 s93, 8")
    a("s_branch L_dma")
    a("L_dmaD:")
    a("v_lshrrev_b32 v62, 1, v1"); a("v_lshlrev_b32 v62, 10, v62"); a("v_and_b32 v63, 1, v1"); a("v_lshl_add_u32 v62, v63, 4, v62")
    a("s_lshl_b32 s58, s89, 5"); a("v_add_u32 v62, s58, v62")
    for d in (40, 44):
        a(f"s_mov_b32 s{d}, s80"); a(f"s_mov_b32 s{d+1}, s81"); a(f"s_mov_b32 s{d+2}, {1792*1024}")
    a(f"s_mul_i32 s96, s3, {448*1024}"); a("s_add_u32 s97, s96, 32768")
    a(f"s_mul_i32 s98, s3, {448*32}"); a(f"s_add_u32 s98, s98, {L_W}"); a("s_add_u32 s99, s98, 1024")
    a("s_mov_b32 s100, 65536"); a("s_mov_b32 s101, 2048"); a("s_mov_b32 s93, 7")
    a("L_dma:")
    a("s_mov_b32 m0, s98"); a("s_sub_u32 s93, s93, 1")
    a(f"buffer_load_dwordx4 v62, s[40:43], s96 offen {fpol} lds")
    a("s_mov_b32 m0, s99"); a("s_add_u32 s96, s96, s100")
    a(f"buffer_load_dwordx4 v62, s[44:47], s97 offen {fpol} lds")
    a("s_add_u32 s97, s97, s100"); a("s_add_u32 s98, s98, s101"); a("s_add_u32 s99, s99, s101")
    a("s_cmp_lg_u32 s93, 0"); a("s_cbranch_scc1 L_dma")
    C("exchange addresses v63 = g*128 + b*16, v26 = w*512 + v63 ; v60 = 16g + r', v61 = c' for the transposing reads")
    a("v_and_b32 v27, 7, v75"); a("v_lshlrev_b32 v63, 4, v27"); a("v_lshl_add_u32 v63, v74, 7, v63")
    a("s_lshl_b32 s58, s3, 9"); a("v_add_u32 v26, s58, v63")
    a("v_lshrrev_b32 v60, 2, v75"); a("v_lshl_add_u32 v60, v74, 4, v60"); a("v_and_b32 v61, 3, v1")
    a("s_cmp_eq_u32 s7, 3"); a("s_cbranch_scc1 L_s4")

    C("---- gate / up: four tiles of 8+8 columns, 128 rows of h per wave; LayerNorm is applied to the sums")
    a("v_lshlrev_b32 v60, 6, v60"); a("v_lshrrev_b32 v49, 1, v61"); a("v_lshl_add_u32 v60, v49, 15, v60")
    a("v_and_b32 v49, 1, v61"); a("v_lshl_add_u32 v60, v49, 3, v60")
    a("s_lshl_b32 s58, s3, 13"); a(f"s_add_u32 s58, s58, {L_W}"); a("v_add_u32 v60, s58, v60")
    for r in range(4): a(f"v_mov_b32 v{112+r}, 0x3f803f80")
    C("h fragment address v62 = (g>>1)*512 + (b>>1)*128 + (b&1)*64 + (g&1)*32 + half*16")
    a("v_lshrrev_b32 v62, 1, v74"); a("v_lshlrev_b32 v62, 9, v62"); a("v_bfe_u32 v49, v75, 1, 2"); a("v_lshl_add_u32 v62, v49, 7, v62")
    a("v_and_b32 v49, 1, v75"); a("v_lshl_add_u32 v62, v49, 6, v62"); a("v_and_b32 v49, 1, v74"); a("v_lshl_add_u32 v62, v49, 5, v62")
    a("v_lshrrev_b32 v49, 3, v75"); a("v_lshl_add_u32 v62, v49, 4, v62")
    a(f"s_mov_b32 s58, {L_DUMP-L_T2}"); a("v_mad_u32_u24 v26, v49, s58, v26")
    a("s_lshl_b32 s58, s3, 11"); a("v_add_u32 v63, s58, v63")
    a("v_lshrrev_b32 v49, 1, v74"); a("v_lshlrev_b32 v49, 2, v49"); a("v_lshlrev_b32 v61, 5, v27"); a("v_add_u32 v49, v49, v61")
    a("s_lshl_b32 s58, s3, 3"); a("v_add_u32 v49, s58, v49")
    a("s_lshl_b32 s59, s3, 11"); a(f"s_add_u32 s59, s59, {WS_H}")
    def colsum():
        a("s_waitcnt lgkmcnt(0)")
        for k in range(4):
            for t in range(4): mfma(224 + 4*t, f"v[{128+16*t+4*k}:{131+16*t+4*k}]", "v[112:115]", k == 0)
        for t in range(4): a(f"ds_write_b128 v26, v[{224+4*t}:{227+4*t}] offset:{L_CS+2048*t}")
    if staged:
        for u in range(2):
            a(f"s_waitcnt vmcnt({8 - 8*u})")
            if u: stamp(13)
            for t in range(4):
                for hf in range(2):
                    for sec in range(2): trread(128 + 16*t + 8*u + 4*hf + 2*sec, "v60", (64*u + 8*hf + 4*sec) * 64 + 16*t)
                if t == 2: a("s_waitcnt lgkmcnt(6)")
            if u == 0: a("s_waitcnt lgkmcnt(0)")
    else:
        a("s_waitcnt vmcnt(0)")
        stamp(13)
        for t in range(4):
            for u in range(2):
                for hf in range(2):
                    for sec in range(2): trread(128 + 16*t + 8*u + 4*hf + 2*sec, "v60", (64*u + 8*hf + 4*sec) * 64 + 16*t)
            if t: a("s_waitcnt lgkmcnt(6)")
        a("s_waitcnt lgkmcnt(0)")
        for k in range(4):
            for t in range(4): mfma(224 + 4*t, f"v[{128+16*t+4*k}:{131+16*t+4*k}]", "v[112:115]", k == 0)
        for t in range(4): a(f"ds_write_b128 v26, v[{224+4*t}:{227+4*t}] offset:{L_CS+2048*t}")
    if cspre:
        a("s_waitcnt lgkmcnt(0)"); a("s_barrier")
        for w in range(4): a(f"ds_read_b128 v[{224+4*w}:{227+4*w}], v63 offset:{L_CS+512*w}")
        a("s_waitcnt lgkmcnt(0)")
        for r in range(4): a(f"v_add_f32 v{224+r}, v{224+r}, v{228+r}"); a(f"v_add_f32 v{232+r}, v{232+r}, v{236+r}")
        for r in range(4): a(f"v_add_f32 v{108+r}, v{224+r}, v{232+r}")
    def ldH(b): return [f"buffer_load_dwordx4 v[{b+4*u}:{b+3+4*u}], v62, s[32:35], s59 offen offset:{u*1024} sc1" for u in range(2)]
    def useH(b):
        n = 0
        for u in range(2):
            for t in range(4):
                for hf in range(2):
                    mfma(192 + 8*t + 4*hf, f"v[{128+16*t+8*u+4*hf}:{131+16*t+8*u+4*hf}]", f"v[{b+4*u}:{b+3+4*u}]", u == 0)
                    if n < 8:
                        a(f"v_dot2_f32_bf16 v52, v{b+n}, v112, {'0' if n == 0 else 'v52'}")
                        a(f"v_dot2_f32_bf16 v53, v{b+n}, v{b+n}, {'0' if n == 0 else 'v53'}")
                    if n == 9:
                        for r in range(2): a(f"v_add_f32_dpp v{52+r}, v{52+r}, v{52+r} row_ror:8 row_mask:0xf bank_mask:0xf")
                    if n == 11: a("v_permlane32_swap_b32 v52, v53"); a("v_add_f32 v52, v52, v53"); a("v_mov_b32 v53, v52")
                    if n == 13: a("v_permlane16_swap_b32 v52, v53"); a("v_add_f32 v52, v52, v53"); a(f"ds_write_b32 v49, v52 offset:{L_ST}")
                    n += 1
    poll2("L_pH", ldH, 8, (76, 84), useH, colsum if staged else None)
    stamp(10)
    for t in range(4):
        for r in range(4): a(f"v_add_f32_dpp v{192+8*t+r}, v{196+8*t+r}, v{192+8*t+r} row_ror:8 row_mask:0xf bank_mask:0xf")
        a(f"ds_write_b128 v26, v[{192+8*t}:{195+8*t}] offset:{L_T2+2048*t}")
    a("s_waitcnt lgkmcnt(0)"); a("s_barrier")
    for k in range(2): a(f"ds_read_b128 v[{92+4*k}:{95+4*k}], v61 offset:{L_ST+16*k}")
    if not cspre:
        for w in range(4): a(f"ds_read_b128 v[{224+4*w}:{227+4*w}], v63 offset:{L_CS+512*w}")
    for w in range(4): a(f"ds_read_b128 v[{116+4*w}:{119+4*w}], v63 offset:{L_T2+512*w}")
    a(f"s_waitcnt lgkmcnt({4 if cspre else 8})")
    for k in range(2): a(f"v_add_f32 v{92+k}, v{92+k}, v{94+k}"); a(f"v_add_f32 v{96+k}, v{96+k}, v{98+k}")
    a("v_add_f32 v52, v92, v96"); a("v_add_f32 v53, v93, v97")
    a(f"v_mul_f32 v52, {f32(1/512)}, v52"); a(f"v_mul_f32 v53, {f32(1/512)}, v53")
    a("v_fma_f32 v53, -v52, v52, v53"); a("v_max_f32 v53, 0, v53")
    bf16r("v53"); bf16r("v52")
    a(f"v_add_f32 v53, {f32(1e-5)}, v53"); bf16r("v53")
    a("v_sqrt_f32 v53, v53")
    if not cspre:
        a("s_waitcnt lgkmcnt(4)")
        for r in range(4): a(f"v_add_f32 v{224+r}, v{224+r}, v{228+r}"); a(f"v_add_f32 v{232+r}, v{232+r}, v{236+r}")
        bf16r("v53"); a("v_rcp_f32 v53, v53")
        for r in range(4): a(f"v_add_f32 v{108+r}, v{224+r}, v{232+r}")
    a("s_waitcnt lgkmcnt(0)")
    for r in range(4): a(f"v_add_f32 v{116+r}, v{116+r}, v{120+r}"); a(f"v_add_f32 v{124+r}, v{124+r}, v{128+r}")
    if cspre: bf16r("v53"); a("v_rcp_f32 v53, v53")
    for r in range(4): a(f"v_add_f32 v{116+r}, v{116+r}, v{124+r}")
    for r in range(4): a(f"v_fma_f32 v{116+r}, -v52, v{108+r}, v{116+r}")
    for r in range(4): a(f"v_mul_f32 v{116+r}, v{116+r}, v53")
    for r in range(2): a(f"v_cvt_pk_bf16_f32 v{120+r}, v{116+2*r}, v{117+2*r}")
    for r in range(2): a(f"v_permlane32_swap_b32 v{120+r}, v{122+r}")
    for r in range(2):
        a(f"v_lshlrev_b32 v{116+2*r}, 16, v{120+r}"); a(f"v_and_b32 v{117+2*r}, 0xffff0000, v{120+r}")
        a(f"v_lshlrev_b32 v{124+2*r}, 16, v{122+r}"); a(f"v_and_b32 v{125+2*r}, 0xffff0000, v{122+r}")
    for r in range(4): a(f"v_max_f32 v{116+r}, 0, v{116+r}")
    for r in range(4): a(f"v_mul_f32 v{116+r}, v{116+r}, v{124+r}")
    for r in range(2): a(f"v_cvt_pk_bf16_f32 v{120+r}, v{116+2*r}, v{117+2*r}")
    a("s_mov_b64 exec, 0x00ff00ff")
    for r in range(2): a(f"v_min_u32 v{120+r}, -2, v{120+r}")
    a("buffer_store_dwordx2 v[120:121], v70, s[32:35], 0 offen sc1")
    stamp(11)
    a("s_branch L_fin")

    C("---- reducer: sum the 32 heads' partials of 2 rows x 32 columns, add x, publish h")
    a("L_s2:")
    a("v_lshlrev_b32 v62, 4, v1")
    a("s_lshl_b32 s59, s89, 13"); a("s_add_u32 s92, s59, 4096")
    a("v_lshlrev_b32 v50, 16, v71"); a("v_and_b32 v51, 0xffff0000, v71")
    def ld8(b): return [f"buffer_load_dwordx4 v[{b+4*u}:{b+3+4*u}], v62, s[32:35], {'s59' if u < 4 else 's92'} offen offset:{(u&3)*1024} sc1" for u in range(8)]
    def useP(b):
        for r in range(16): a(f"v_add_f32 v{108+r}, v{b+r}, v{b+16+r}")
    poll2("L_pP", ld8, 32, (76, 128), useP)
    stamp(8)
    for st in (8, 4):
        for r in range(st): a(f"v_add_f32 v{108+r}, v{108+r}, v{108+st+r}")
    a("v_permlane32_swap_b32 v108, v110"); a("v_permlane32_swap_b32 v109, v111")
    a("v_add_f32 v108, v108, v110"); a("v_add_f32 v109, v109, v111")
    a("v_mov_b32 v110, v108"); a("v_mov_b32 v111, v109")
    a("v_permlane16_swap_b32 v108, v110"); a("v_permlane16_swap_b32 v109, v111")
    a("v_add_f32 v108, v108, v110"); a("v_add_f32 v109, v109, v111")
    a("v_cvt_pk_bf16_f32 v108, v108, v109")
    a("v_and_b32 v109, 0xffff0000, v108"); a("v_lshlrev_b32 v108, 16, v108")
    a("v_add_f32 v108, v108, v50"); a("v_add_f32 v109, v109, v51")
    a("v_cvt_pk_bf16_f32 v108, v108, v109")
    a("s_mov_b32 exec_lo, 0xffff"); a("s_mov_b32 exec_hi, 0xffff")
    a("v_min_u32 v108, -2, v108")
    a("buffer_store_dword v108, v69, s[32:35], 0 offen sc1")
    if rskip == 2:
        a("s_mov_b64 exec, -1")
        for k in range(0 if pf0 >= NB else pfn, 6): pfload(k)
    stamp(9)
    a("s_branch L_fin")

    C("---- 16 output columns, 448 rows of W_down per wave")
    a("L_s4:")
    a("v_lshlrev_b32 v60, 5, v60"); a("v_lshl_add_u32 v60, v61, 3, v60")
    a(f"s_mul_i32 s58, s3, {448*32}"); a(f"s_add_u32 s58, s58, {L_W}"); a("v_add_u32 v60, s58, v60")
    C("h address v49 = H + ((s'>>1)*4 + (b>>1))*128 + (b&1)*64 + (s'&1)*32 + g*8 ; out address v50 = b*1024 + s'*32 + g*8")
    a("v_lshrrev_b32 v49, 1, v27"); a("v_lshlrev_b32 v49, 7, v49"); a("v_and_b32 v50, 1, v27"); a("v_lshl_add_u32 v49, v50, 6, v49")
    a("v_lshl_add_u32 v49, v74, 3, v49")
    a("s_lshr_b32 s58, s89, 1"); a("s_lshl_b32 s58, s58, 9"); a("s_and_b32 s92, s89, 1"); a("s_lshl_b32 s92, s92, 5"); a("s_add_u32 s58, s58, s92")
    a(f"s_add_u32 s58, s58, {WS_H}"); a("v_add_u32 v49, s58, v49")
    a("v_lshlrev_b32 v50, 10, v27"); a("v_lshl_add_u32 v50, v74, 3, v50"); a("s_lshl_b32 s58, s89, 5"); a("v_add_u32 v50, s58, v50")
    a(f"s_mul_i32 s59, s3, {7*1024}"); a(f"s_add_u32 s59, s59, {WS_G}"); a("s_add_u32 s92, s59, 4096")
    a("v_lshlrev_b32 v62, 4, v1")
    if not staged: a("s_waitcnt vmcnt(0)"); stamp(13)
    for u in range(7):
        if staged: a(f"s_waitcnt vmcnt({12 - 2*u})")
        if staged and u == 6: stamp(13)
        for hf in range(2):
            for sec in range(2): trread(128 + 8*u + 4*hf + 2*sec, "v60", (64*u + 8*hf + 4*sec) * 32)
        if u in (2, 5): a("s_waitcnt lgkmcnt(4)")
    a("s_waitcnt lgkmcnt(0)")
    def ldG(b): return ld8(b)[:7] + [f"buffer_load_dwordx2 v[{b+28}:{b+29}], v49, s[32:35], 0 offen sc1"]
    def useG(b):
        for u in range(7):
            for hf in range(2): mfma(108 + 4*hf, f"v[{128+8*u+4*hf}:{131+8*u+4*hf}]", f"v[{b+4*u}:{b+3+4*u}]", u == 0)
        for r in range(2):
            a(f"v_lshlrev_b32 v{116+2*r}, 16, v{b+28+r}"); a(f"v_and_b32 v{117+2*r}, 0xffff0000, v{b+28+r}")
    poll2("L_pG", ldG, 30, (76, 192), useG)
    stamp(10)
    for r in range(4): a(f"v_add_f32_dpp v{108+r}, v{112+r}, v{108+r} row_ror:8 row_mask:0xf bank_mask:0xf")
    a("s_mov_b32 exec_lo, 0x00ff00ff"); a("s_mov_b32 exec_hi, 0x00ff00ff")
    a(f"ds_write_b128 v26, v[108:111] offset:{L_TX}")
    a("s_waitcnt lgkmcnt(0)"); a("s_barrier")
    a("s_cmp_eq_u32 s3, 3"); a("s_cbranch_scc0 L_fin")
    for w in range(4): a(f"ds_read_b128 v[{128+4*w}:{131+4*w}], v63 offset:{L_TX+512*w}")
    a("s_waitcnt lgkmcnt(0)")
    for r in range(4):
        a(f"v_add_f32 v{128+r}, v{128+r}, v{132+r}"); a(f"v_add_f32 v{136+r}, v{136+r}, v{140+r}")
    for r in range(4): a(f"v_add_f32 v{128+r}, v{128+r}, v{136+r}")
    for r in range(2): a(f"v_cvt_pk_bf16_f32 v{132+r}, v{128+2*r}, v{129+2*r}")
    for r in range(2):
        a(f"v_lshlrev_b32 v{128+2*r}, 16, v{132+r}"); a(f"v_and_b32 v{129+2*r}, 0xffff0000, v{132+r}")
    for r in range(4): a(f"v_add_f32 v{128+r}, v{128+r}, v{116+r}")
    for r in range(2): a(f"v_cvt_pk_bf16_f32 v{132+r}, v{128+2*r}, v{129+2*r}")
    a("buffer_store_dwordx2 v[132:133], v50, s[36:39], 0 offen")
    stamp(11)
    a("L_fin:")
    if probe is not None:
        a(f"s_cmp_eq_u32 s2, {pwg}"); a("s_cbranch_scc0 L_end"); a("s_cmp_eq_u32 s3, 3"); a("s_cbranch_scc0 L_end")
        if probe == 0: a("s_mov_b32 s20, 0")
        a("s_add_u32 s20, s20, 10000")
        a("L_probe:")
        a("s_sleep 4"); a("s_memrealtime s[94:95]"); a("s_waitcnt lgkmcnt(0)"); a("s_sub_u32 s94, s94, s18")
        a("s_cmp_lt_u32 s94, s20"); a("s_cbranch_scc1 L_probe")
    if stamps:
        a("s_mov_b64 exec, -1")
        stamp(12)
        a("s_getreg_b32 s92, hwreg(HW_REG_XCC_ID)"); a("v_writelane_b32 v73, s92, 15")
        a("s_lshl_b32 s58, s2, 2"); a("s_add_u32 s58, s58, s3"); a("s_lshl_b32 s58, s58, 7"); a(f"s_add_u32 s58, s58, {WS_ST}")
        a("v_lshlrev_b32 v48, 2, v1"); a("s_mov_b32 exec_hi, 0")
        a("buffer_store_dword v73, v48, s[32:35], s58 offen")
        if "dbgout" in xp:
            a("s_cmp_eq_u32 s2, 229"); a("s_cbranch_scc0 L_end"); a("s_cmp_eq_u32 s3, 3"); a("s_cbranch_scc0 L_end")
            a("v_subrev_u32 v73, s18, v73"); a("s_mov_b64 exec, 0xffff")
            a("global_store_dword v48, v73, s[84:85] sc1")
    a("L_end:")
    a("s_endpgm")
    body = a.finish()
    head_ = HEADER + f"; @launch grid=(256,1,1) block=(256,1,1) lds={L_SIZE}\n" + '.amdgcn_target "amdgcn-amd-amdhsa--gfx950"\n.text\n' + \
        DOC + f".globl {NAME}\n.p2align 8\n.type {NAME},@function\n"
    tail = f""".section .rodata,"a"
.p2align 6
.amdhsa_kernel {NAME}
  .amdhsa_next_free_vgpr 392
  .amdhsa_next_free_sgpr 102
  .amdhsa_accum_offset 256
  .amdhsa_group_segment_fixed_size 0
  .amdhsa_kernarg_size 96
  .amdhsa_user_sgpr_count 2
  .amdhsa_user_sgpr_kernarg_segment_ptr 1
  .amdhsa_system_sgpr_workgroup_id_x 1
.end_amdhsa_kernel
"""
    return head_ + body + tail

if __name__ == "__main__":
    kw = eval("dict(%s)" % (sys.argv[2] if len(sys.argv) > 2 else ""))
    open(sys.argv[1], "w").write(gen(**kw))
```

```python
import sys, struct
sys.path.insert(0, __file__.rsplit('/', 1)[0])
from asmlib import Asm

NAME = "sequential_preLN__mha_block_cached__glu_gated_reglu__decode_kernel"
HEADER = open(__file__.rsplit('/', 1)[0] + '/header.txt').read()

def f32(x): return "0x%08x" % struct.unpack('<I', struct.pack('<f', x))[0]

WS_P, WS_H, WS_G, WS_ST, WS_SIZE = 0, 0x80000, 0x82000, 0x100000, 0x140000
L_QP, L_OP, L_ML, L_ST, L_TX, L_T2, L_CS, L_W, L_DUMP, L_SIZE = 0, 2048, 4096, 4160, 4608, 8192, 16384, 24576, 90112, 106496
DOC = r"""; ---------------------------------------------------------------------------------------------------------
; ---------------------------------------------------------------------------------------------------------
"""
RING = 128
NB = 32
SPIN = 200000

def gen(D=5, hi=1, pol="nt", wpol="", fpol="", early=(2, 7, 12, 17), n1=7, kq=2, nbar=2, nA=3, nB=3, D1=None,
        stag=0, cpf2=0, fin=10, touch=0, cspre=0, wend=32, wov=0, wod=0, initlow=0, prescale=1, slide=1, staged=1, vt=0, lasthi=0, mpf=7, pf0=32, xpf=1, pfn=6, pfo=(0, 1, 2, 3, 4, 5), rskip=0, pfw=0, rw=None, rlo=None, jump=120, shift=220, two=0, hmap=(0, 2, 3, 1, 4), ctl=1, slack=80, k0=1, late=0, cpf=23, rot=0, nw=2, nwl=1, eps=0, head=(60, 80), hiu=(4, 4), cal=3, stamps=0, xp=(), probe=None, pwg=130, vpol=None, pre=0, ahead=0, r2=0, slack2=40):
    a = Asm()
    vm = []
    def C(t): a("; " + t)
    def vwait(tag):
        n = len(vm) - 1 - vm.index(tag)
        a(f"s_waitcnt vmcnt({min(n, 63)})")
    def stamp(k):
        if probe == k:
            a("s_memrealtime s[94:95]"); a("s_waitcnt lgkmcnt(0)"); a("s_sub_u32 s20, s94, s18")
        if stamps == 2 and k not in (6, 12): return
        if stamps == 3 and k not in (3, 4, 6, 12): return
        if stamps:
            a("s_memrealtime s[94:95]"); a("s_waitcnt lgkmcnt(0)"); a(f"v_writelane_b32 v73, s94, {k}")
    def lapstamp(off):
        if stamps == 3:
            a("s_memrealtime s[94:95]"); a(f"s_add_u32 m0, s56, {off}"); a("s_waitcnt lgkmcnt(0)"); a("v_writelane_b32 v73, s94, m0")
    def allred(op, v, t):
        for n in (8, 4, 2, 1): a(f"{op}_dpp {v}, {v}, {v} row_ror:{n} row_mask:0xf bank_mask:0xf")
        for sw in ("v_permlane16_swap_b32", "v_permlane32_swap_b32"):
            a(f"v_mov_b32 {t}, {v}"); a(f"{sw} {v}, {t}"); a(f"{op} {v}, {v}, {t}")
    def bf16r(v):
        a(f"v_cvt_pk_bf16_f32 {v}, {v}, {v}"); a(f"v_and_b32 {v}, 0xffff0000, {v}")
    def srd(d, lo, hi_, size, add=None):
        if add is None:
            a(f"s_mov_b32 s{d}, s{lo}"); a(f"s_mov_b32 s{d+1}, s{hi_}")
        else:
            a(f"s_add_u32 s{d}, s{lo}, {add}"); a(f"s_addc_u32 s{d+1}, s{hi_}, 0")
        a(f"s_mov_b32 s{d+2}, {size}"); a(f"s_mov_b32 s{d+3}, 0x20000")
    cur = [pol]
    def ring(j): j %= NB; return f"v[{RING+4*j}:{RING+4*j+3}]"
    def sload(j):
        s, b = ("s[12:15]", "s55") if j >= NB else ("s[8:11]", "s54")
        j %= NB
        a(f"buffer_load_dwordx4 {ring(j)}, v{2+(j>>2)}, {s}, {b} offen offset:{(j&3)*1024} {cur[0]}")
    def masks(t, src, lane):
        for r in range(4):
            a(f"v_and_b32_dpp v{18+4*(t&1)+r}, {src}, v{14+r} row_newbcast:{lane} row_mask:0xf bank_mask:0xf")
    def mop(t): return f"v[{18+4*(t&1)}:{21+4*(t&1)}]"
    def mfma(d, x, y, first): a(f"v_mfma_f32_16x16x32_bf16 v[{d}:{d+3}], {x}, {y}, {'0' if first else 'v[%d:%d]' % (d, d+3)}")
    def bitrev(t): return ((t & 1) << 3) | ((t & 2) << 1) | ((t & 4) >> 1) | ((t & 8) >> 3)
    def check(regs, ok):
        r = list(regs)
        a(f"v_max3_u32 v48, v{r[0]}, v{r[1]}, v{r[2]}"); r = r[3:]
        while len(r) >= 2:
            a(f"v_max3_u32 v48, v48, v{r[0]}, v{r[1]}"); r = r[2:]
        if r: a(f"v_max_u32 v48, v48, v{r[0]}")
        a("v_cmp_eq_u32 vcc, -1, v48")
        a(f"s_cbranch_vccz {ok}")
    def poll2(label, loads, nreg, bases, use, pre=None):
        n = len(loads(bases[0]))
        a(f"s_mov_b32 s88, {SPIN}")
        for l in loads(bases[0]): a(l)
        if stag: a(f"s_sleep {stag}")
        if pre: pre()
        a(f"{label}:")
        for l in loads(bases[1]): a(l)
        a(f"s_waitcnt vmcnt({n})")
        check(range(bases[0], bases[0] + nreg), f"{label}_A")
        for l in loads(bases[0]): a(l)
        a(f"s_waitcnt vmcnt({n})")
        check(range(bases[1], bases[1] + nreg), f"{label}_B")
        a("s_sub_u32 s88, s88, 1")
        a(f"s_cbranch_scc0 {label}")
        a(f"{label}_B:")
        use(bases[1])
        a(f"s_branch {label}_done")
        a(f"{label}_A:")
        use(bases[0])
        a(f"{label}_done:")
    def trread(dst, addr, off): a(f"ds_read_b64_tr_b16 v[{dst}:{dst+1}], {addr} offset:{off}")

    a(f"{NAME}:")
    a("s_cmp_ge_u32 s2, 256"); a("s_cbranch_scc1 L_end")
    a("s_memrealtime s[18:19]")
    a("s_load_dwordx16 s[64:79], s[0:1], 0")
    a("s_load_dwordx8 s[80:87], s[0:1], 64")
    if cpf:
        C("pull the kernel's own code towards this die's L2, one KiB per wave")
        a("s_getpc_b64 s[60:61]"); a("s_and_b32 s60, s60, 0xffffff00")
        a("s_lshr_b32 s58, s2, 3"); a("s_lshl_b32 s58, s58, 8"); a("v_add_u32 v60, s58, v0"); a("v_lshlrev_b32 v60, 4, v60")
        a(f"v_cmp_gt_u32 vcc, {cpf*1024}, v60"); a("s_and_saveexec_b64 s[62:63], vcc"); a("s_cbranch_execz L_nocpf")
        a("global_load_dwordx4 v[76:79], v60, s[60:61]")
        a("L_nocpf:")
        a("s_mov_b64 exec, -1")
    C("s3 wave, s4 batch row, s5 head; v1 lane, v74 lane>>4 (g), v75 lane&15 (i)")
    a("v_lshrrev_b32 v1, 6, v0")
    a("v_readfirstlane_b32 s3, v1")
    a("v_and_b32 v1, 63, v0")
    a("s_lshr_b32 s4, s2, 5"); a("s_and_b32 s5, s2, 31")
    if hmap:
        C("head = bits 0..4 of the workgroup id, reordered: neighbours in memory are spread over the dies as the HBM likes it best")
        a("s_mov_b32 s5, 0")
        for k, pbit in enumerate(hmap):
            a(f"s_bfe_u32 s58, s2, {0x10000 + k:#x}"); a(f"s_lshl_b32 s58, s58, {pbit}"); a("s_or_b32 s5, s5, s58")
    a("v_lshrrev_b32 v74, 4, v1"); a("v_and_b32 v75, 15, v1")
    a("v_lshlrev_b32 v48, 4, v1")
    if rw is None: a("s_lshl_b32 s58, s3, 12")
    else: a(f"s_lshr_b32 s58, s2, {rw}"); a("s_add_u32 s58, s58, s3"); a("s_and_b32 s58, s58, 3"); a("s_lshl_b32 s58, s58, 12")
    a("v_add_u32 v2, s58, v48")
    if rlo is None:
        for k in range(1, 8): a(f"v_add_u32 v{2+k}, {k*16384}, v2")
    else:
        a(f"s_lshr_b32 s58, s2, {rlo}"); a("s_lshl_b32 s58, s58, 14"); a("v_add_u32 v2, s58, v2")
        for k in range(7, -1, -1):
            if k: a(f"v_add_u32 v{2+k}, {k*16384}, v2")
            a(f"v_and_b32 v{2+k}, 0x1ffff, v{2+k}")
    a("s_lshl_b32 s58, s3, 8"); a("v_lshlrev_b32 v49, 3, v75"); a("v_lshl_add_u32 v49, v74, 1, v49"); a("v_add_u32 v49, s58, v49")
    a("v_lshrrev_b32 v51, 1, v74")
    C("wq lane offset v58 = (128w+g)*8192 + i*16 ; wo lane offset v59 = g*1024 + w*256 + i*16")
    a("s_lshl_b32 s58, s3, 20"); a("v_lshlrev_b32 v58, 13, v74"); a("v_lshl_add_u32 v58, v75, 4, v58"); a("v_add_u32 v58, s58, v58")
    a("s_lshl_b32 s58, s3, 8"); a("v_lshlrev_b32 v59, 10, v74"); a("v_lshl_add_u32 v59, v75, 4, v59"); a("v_add_u32 v59, s58, v59")
    a("s_lshl_b32 s57, s4, 10"); a("s_lshl_b32 s58, s5, 8"); a("s_lshl_b32 s59, s4, 5"); a("s_add_u32 s59, s59, s5"); a("s_lshl_b32 s59, s59, 20")
    a("s_sub_u32 s92, 0x400000, s58")
    a("s_mov_b32 s54, 0")
    a("s_waitcnt lgkmcnt(0)")
    if stamps: a("v_mov_b32 v73, 0"); a("v_writelane_b32 v73, s18, 0")
    kiss = 0
    def kload():
        nonlocal kiss
        sload(kiss - kbase); vm.append(f"k{kiss}"); kiss += 1
    kbase = 0
    stamp(16)
    srd(8, 66, 67, 0x100000, "s59")
    for j in range(k0): kload()
    srd(28, 64, 65, 8192)
    a("buffer_load_dwordx4 v[52:55], v48, s[28:31], s57 offen"); vm.append("x")
    a("buffer_load_ushort v56, v49, s[28:31], s57 offen"); vm.append("xc0")
    a("buffer_load_ushort v57, v49, s[28:31], s57 offen offset:128"); vm.append("xc1")
    srd(20, 70, 71, "s92", "s58")
    wiss = 0
    def wqload():
        nonlocal wiss
        a(f"s_mov_b32 s58, {wiss*32768}")
        a(f"buffer_load_dwordx4 a[{4*wiss}:{4*wiss+3}], v58, s[20:23], s58 offen {wpol}"); vm.append(f"wq{wiss}"); wiss += 1
    for j in range(n1):
        if j: kload()
        for x in range(nw): wqload()
    stamp(17)
    a("s_add_u32 s16, s68, s59"); a("s_addc_u32 s17, s69, 0")
    a("s_mov_b32 s12, s8"); a("s_mov_b32 s13, s9"); a("s_mov_b32 s14, 0x100000"); a("s_mov_b32 s15, 0x20000")
    a("s_lshl_b32 s58, s5, 17"); srd(24, 72, 73, 0x20000, "s58")
    def setup_late():
        a("v_lshrrev_b32 v77, 1, v74"); a("v_lshlrev_b32 v78, 4, v1")
        srd(32, 86, 87, WS_SIZE); srd(36, 82, 83, 8192)
        srd(40, 76, 77, 512*3584); srd(44, 78, 79, 512*3584)
        C("role s7 / index s89: 1 gate+up tiles (wg<56), 2 reducer (64<=wg<128), 3 output slice (wg>=224), 0 none")
        a("s_and_b32 s58, s2, 7"); a("s_lshr_b32 s92, s2, 3")
        a("s_mul_i32 s89, s58, 7"); a("s_add_u32 s89, s89, s92")
        a("s_cmp_lt_u32 s2, 56"); a("s_cselect_b32 s7, 1, 0")
        a("s_lshl_b32 s58, s58, 2"); a("s_add_u32 s58, s58, s92"); a("s_sub_u32 s58, s58, 28")
        a("s_cmp_ge_u32 s2, 224"); a("s_cselect_b32 s89, s58, s89"); a("s_cselect_b32 s7, 3, s7")
        a("s_sub_u32 s58, s2, 64"); a("s_cmp_lt_u32 s58, 64"); a("s_cselect_b32 s89, s58, s89"); a("s_cselect_b32 s7, 2, s7")
        a("s_lshl_b32 s6, s3, 2"); a("s_add_u32 s6, s6, s7")
        C("P store offset v68 = ((4w + (i>>2))*4 + (b>>1))*8192 + (2h + (b&1))*128 + (i&3)*32 + g*16")
        a("v_lshrrev_b32 v68, 2, v75"); a("v_lshlrev_b32 v68, 15, v68"); a("v_lshl_add_u32 v68, v74, 4, v68")
        a("v_and_b32 v60, 3, v75"); a("v_lshl_add_u32 v68, v60, 5, v68")
        a("s_lshl_b32 s58, s3, 17"); a("s_lshr_b32 s92, s4, 1"); a("s_lshl_b32 s92, s92, 13"); a("s_add_u32 s58, s58, s92")
        a("s_lshl_b32 s92, s5, 8"); a("s_add_u32 s58, s58, s92")
        a("s_and_b32 s92, s4, 1"); a("s_lshl_b32 s92, s92, 7"); a("s_add_u32 s58, s58, s92"); a("v_add_u32 v68, s58, v68")
        C("H store offset v69 = H + rho*128 + i*8 + (g>>1)*4 ; x offset v76 = (2(rho&3) + (i>>3))*1024 + (rho>>2)*64 + (i&7)*8 + (g>>1)*4")
        a("v_lshlrev_b32 v69, 3, v75"); a("v_lshl_add_u32 v69, v77, 2, v69")
        a("v_lshrrev_b32 v76, 3, v75"); a("v_lshlrev_b32 v76, 10, v76"); a("v_and_b32 v60, 7, v75"); a("v_lshl_add_u32 v76, v60, 3, v76")
        a("v_lshl_add_u32 v76, v77, 2, v76")
        a("s_and_b32 s58, s89, 3"); a("s_lshl_b32 s58, s58, 11"); a("s_lshr_b32 s92, s89, 2"); a("s_lshl_b32 s92, s92, 6"); a("s_add_u32 s58, s58, s92")
        a("v_add_u32 v76, s58, v76")
        a("s_lshl_b32 s58, s89, 7"); a(f"s_add_u32 s58, s58, {WS_H}"); a("v_add_u32 v69, s58, v69")
        a("buffer_load_dword v71, v76, s[28:31], 0 offen"); vm.append("xr")
        C("G store offset v70 = G + (4*s89 + w)*128 + i*16 + g*8")
        a("v_lshlrev_b32 v70, 4, v75"); a("v_lshl_add_u32 v70, v74, 3, v70")
        a("s_lshl_b32 s58, s89, 2"); a("s_add_u32 s58, s58, s3"); a("s_lshl_b32 s58, s58, 7"); a(f"s_add_u32 s58, s58, {WS_G}"); a("v_add_u32 v70, s58, v70")
        C("wave 0 of the reducers marks every hand-off line empty (all ones): own P lines, own H line, four G lines")
        a("s_cmp_eq_u32 s6, 2"); a("s_cbranch_scc0 L_noclr")
        for r in range(4): a(f"v_mov_b32 v{60+r}, -1")
        a("s_lshl_b32 s58, s89, 13"); a("s_add_u32 s92, s58, 4096")
        for u in range(8): a(f"buffer_store_dwordx4 v[60:63], v78, s[32:35], {'s58' if u < 4 else 's92'} offen offset:{(u&3)*1024} sc1")
        a("s_lshl_b32 s58, s89, 9"); a(f"s_add_u32 s58, s58, {WS_G}"); a("s_mov_b32 exec_hi, 0")
        a("buffer_store_dwordx4 v[60:63], v78, s[32:35], s58 offen sc1")
        a("s_lshl_b32 s58, s89, 7"); a(f"s_add_u32 s58, s58, {WS_H}"); a("s_mov_b32 exec_lo, 0xff")
        a("buffer_store_dwordx4 v[60:63], v78, s[32:35], s58 offen sc1")
        a("s_mov_b64 exec, -1")
        a("L_noclr:")
    if not late:
        srd(32, 86, 87, WS_SIZE); srd(36, 82, 83, 8192)
        srd(40, 76, 77, 512*3584); srd(44, 78, 79, 512*3584)
        C("role s7 / index s89: 1 gate+up tiles (wg<56), 2 reducer (64<=wg<128), 3 output slice (wg>=224), 0 none")
        a("s_and_b32 s58, s2, 7"); a("s_lshr_b32 s92, s2, 3")
        a("s_mul_i32 s89, s58, 7"); a("s_add_u32 s89, s89, s92")
        a("s_cmp_lt_u32 s2, 56"); a("s_cselect_b32 s7, 1, 0")
        a("s_lshl_b32 s58, s58, 2"); a("s_add_u32 s58, s58, s92"); a("s_sub_u32 s58, s58, 28")
        a("s_cmp_ge_u32 s2, 224"); a("s_cselect_b32 s89, s58, s89"); a("s_cselect_b32 s7, 3, s7")
        a("s_sub_u32 s58, s2, 64"); a("s_cmp_lt_u32 s58, 64"); a("s_cselect_b32 s89, s58, s89"); a("s_cselect_b32 s7, 2, s7")
        a("s_lshl_b32 s6, s3, 2"); a("s_add_u32 s6, s6, s7")
        C("P store offset v68 = ((4w + (i>>2))*4 + (b>>1))*8192 + (2h + (b&1))*128 + (i&3)*32 + g*16")
        a("v_lshrrev_b32 v68, 2, v75"); a("v_lshlrev_b32 v68, 15, v68"); a("v_lshl_add_u32 v68, v74, 4, v68")
        a("v_and_b32 v60, 3, v75"); a("v_lshl_add_u32 v68, v60, 5, v68")
        a("s_lshl_b32 s58, s3, 17"); a("s_lshr_b32 s92, s4, 1"); a("s_lshl_b32 s92, s92, 13"); a("s_add_u32 s58, s58, s92")
        a("s_lshl_b32 s92, s5, 8"); a("s_add_u32 s58, s58, s92")
        a("s_and_b32 s92, s4, 1"); a("s_lshl_b32 s92, s92, 7"); a("s_add_u32 s58, s58, s92"); a("v_add_u32 v68, s58, v68")
        C("H store offset v69 = H + rho*128 + i*8 + (g>>1)*4 ; x offset v50 = (2(rho&3) + (i>>3))*1024 + (rho>>2)*64 + (i&7)*8 + (g>>1)*4")
        a("v_lshlrev_b32 v69, 3, v75"); a("v_lshl_add_u32 v69, v51, 2, v69")
        a("v_lshrrev_b32 v50, 3, v75"); a("v_lshlrev_b32 v50, 10, v50"); a("v_and_b32 v60, 7, v75"); a("v_lshl_add_u32 v50, v60, 3, v50")
        a("v_lshl_add_u32 v50, v51, 2, v50")
        a("s_and_b32 s58, s89, 3"); a("s_lshl_b32 s58, s58, 11"); a("s_lshr_b32 s92, s89, 2"); a("s_lshl_b32 s92, s92, 6"); a("s_add_u32 s58, s58, s92")
        a("v_add_u32 v50, s58, v50")
        a("s_lshl_b32 s58, s89, 7"); a(f"s_add_u32 s58, s58, {WS_H}"); a("v_add_u32 v69, s58, v69")
        a("buffer_load_dword v71, v50, s[28:31], 0 offen"); vm.append("xr")
        C("G store offset v70 = G + (4*s89 + w)*128 + i*16 + g*8")
        a("v_lshlrev_b32 v70, 4, v75"); a("v_lshl_add_u32 v70, v74, 3, v70")
        a("s_lshl_b32 s58, s89, 2"); a("s_add_u32 s58, s58, s3"); a("s_lshl_b32 s58, s58, 7"); a(f"s_add_u32 s58, s58, {WS_G}"); a("v_add_u32 v70, s58, v70")
        C("the reducers mark every hand-off line empty (all ones): own P lines, own H line, four G lines")
        a("s_cmp_eq_u32 s7, 2"); a("s_cbranch_scc0 L_noclr")
        for r in range(4): a(f"v_mov_b32 v{60+r}, -1")
        a("s_lshl_b32 s58, s89, 13"); a("s_lshl_b32 s92, s3, 11"); a("s_add_u32 s58, s58, s92")
        a("buffer_store_dwordx4 v[60:63], v48, s[32:35], s58 offen sc1")
        a("buffer_store_dwordx4 v[60:63], v48, s[32:35], s58 offen offset:1024 sc1")
        a("s_mov_b64 exec, 0x00ff00ff")
        a("buffer_store_dwordx2 v[60:61], v70, s[32:35], 0 offen sc1")
        a("s_cmp_eq_u32 s3, 0"); a("s_cbranch_scc0 L_noclr")
        a("s_mov_b32 exec_lo, 0xffff"); a("s_mov_b32 exec_hi, 0xffff")
        a("buffer_store_dword v60, v69, s[32:35], 0 offen sc1")
        a("L_noclr:")
        a("s_mov_b64 exec, -1")
    for j in range(nA): kload()
    stamp(1)
    a("s_mov_b32 s60, 0xcccccccc"); a("s_mov_b32 s61, 0xcccccccc"); a("s_mov_b32 s62, 0xaaaaaaaa"); a("s_mov_b32 s63, 0xaaaaaaaa")
    a(f"s_mov_b32 s90, {f32(128 ** -0.5)}"); a(f"s_mov_b32 s91, {f32(1.4426950408889634)}")
    C("selector masks v14..17: lane (g,m): m<8 and m>>1==r -> m&1 ? 0xffff0000 : 0xffff")
    a("v_and_b32 v60, 1, v75"); a("v_lshlrev_b32 v60, 4, v60"); a("v_mov_b32 v61, 0xffff"); a("v_lshlrev_b32 v60, v60, v61")
    a("v_lshrrev_b32 v61, 1, v75")
    for r in range(4):
        a(f"v_cmp_eq_u32 vcc, {r}, v61"); a(f"v_cndmask_b32 v{14+r}, 0, v60, vcc")
    C("---- LayerNorm of x[b]")
    vwait("x")
    stamp(18)
    for j in range(nB): kload()
    for k in range(4):
        a(f"v_lshlrev_b32 v{76+2*k}, 16, v{52+k}"); a(f"v_and_b32 v{77+2*k}, 0xffff0000, v{52+k}")
    a("v_add_f32 v84, v76, v77")
    for k in range(2, 8): a(f"v_add_f32 v84, v84, v{76+k}")
    allred("v_add_f32", "v84", "v85")
    a(f"v_mul_f32 v84, {f32(1/512)}, v84")
    for k in range(8): a(f"v_sub_f32 v{76+k}, v{76+k}, v84")
    a("v_mul_f32 v86, v76, v76")
    for k in range(1, 8): a(f"v_fmac_f32 v86, v{76+k}, v{76+k}")
    allred("v_add_f32", "v86", "v85")
    a(f"v_mul_f32 v86, {f32(1/512)}, v86")
    bf16r("v84"); bf16r("v86")
    a(f"v_add_f32 v86, {f32(1e-5)}, v86"); bf16r("v86")
    a("v_sqrt_f32 v86, v86"); bf16r("v86"); a("v_rcp_f32 v86, v86")
    vwait("xc1")
    for k in range(2):
        a(f"v_lshlrev_b32 v{56+k}, 16, v{56+k}"); a(f"v_sub_f32 v{56+k}, v{56+k}, v84"); bf16r(f"v{56+k}")
        a(f"v_mul_f32 v{56+k}, v{56+k}, v86"); a(f"v_cvt_pk_bf16_f32 v{66+k}, v{56+k}, v{56+k}")
    stamp(2)
    C("---- q = xn @ wq[:, head], 128 rows per wave")
    masks(0, "v66", 0)
    for t in range(32):
        vwait(f"wq{t}")
        if t in (0, 13): stamp(19 + (t > 0))
        mfma(28, mop(t), f"a[{4*t}:{4*t+3}]", t == 0)
        if wiss < 32: wqload()
        if int((t + 1) / kq) > int(t / kq) and kiss < NB: kload()
        if t < 31: masks(t + 1, "v66" if t + 1 < 16 else "v67", (t + 1) & 15)
    for j in range(nbar):
        if kiss < NB: kload()
    a("v_lshlrev_b32 v27, 5, v75"); a("v_lshl_add_u32 v26, v74, 4, v27"); a("s_lshl_b32 s58, s3, 9"); a("v_add_u32 v26, s58, v26")
    a("s_mov_b32 exec_hi, 0")
    a(f"ds_write_b128 v26, v[28:31] offset:{L_QP}")
    a("s_mov_b64 exec, -1")
    a("s_waitcnt lgkmcnt(0)"); a("s_barrier")
    for w in range(4):
        for hh in range(2): a(f"ds_read_b128 v[{76+8*w+4*hh}:{79+8*w+4*hh}], v27 offset:{L_QP+512*w+16*hh}")
    a("s_waitcnt lgkmcnt(0)")
    for k in range(8):
        a(f"v_add_f32 v{76+k}, v{76+k}, v{84+k}"); a(f"v_add_f32 v{92+k}, v{92+k}, v{100+k}")
    for k in range(8): a(f"v_add_f32 v{76+k}, v{76+k}, v{92+k}")
    for k in range(4): a(f"v_cvt_pk_bf16_f32 v{10+k}, v{76+2*k}, v{77+2*k}")
    a("v_lshlrev_b32 v27, 4, v75"); a("v_lshl_add_u32 v27, v74, 2, v27")
    a("v_mov_b32 v64, 0xff800000"); a("v_mov_b32 v65, 0")
    stamp(3)

    def kconsume(i):
        t = i & 15
        x = f"v{48 + (t & 1)}"
        base = RING + 4 * i
        a(f"v_dot2_f32_bf16 {x}, v{base}, v10, 0")
        for r in range(1, 4): a(f"v_dot2_f32_bf16 {x}, v{base+r}, v{10+r}, {x}")
        if t & 1:
            d = f"v{50 + ((t >> 1) & 1)}"
            a(f"v_add_f32_dpp {d}, v48, v48 row_ror:8 row_mask:0xf bank_mask:0x3")
            a(f"v_add_f32_dpp {d}, v49, v49 row_ror:8 row_mask:0xf bank_mask:0xc")
        if t & 3 == 3:
            d = f"v{52 + ((t >> 2) & 1)}"
            a(f"v_add_f32_dpp {d}, v50, v50 row_half_mirror row_mask:0xf bank_mask:0x5")
            a(f"v_add_f32_dpp {d}, v51, v51 row_half_mirror row_mask:0xf bank_mask:0xa")
        if t & 7 == 7:
            d = f"v{54 + ((t >> 3) & 1)}"
            a("v_add_f32_dpp v52, v52, v52 quad_perm:[2,3,0,1] row_mask:0xf bank_mask:0xf")
            a("v_add_f32_dpp v53, v53, v53 quad_perm:[2,3,0,1] row_mask:0xf bank_mask:0xf")
            a(f"v_cndmask_b32 {d}, v52, v53, s[60:61]")
        if t == 15:
            s = f"v{46 + (i >> 4)}"
            a("v_add_f32_dpp v54, v54, v54 quad_perm:[1,0,3,2] row_mask:0xf bank_mask:0xf")
            a("v_add_f32_dpp v55, v55, v55 quad_perm:[1,0,3,2] row_mask:0xf bank_mask:0xf")
            a(f"v_cndmask_b32 {s}, v54, v55, s[62:63]")
            bf16r(s); a(f"v_mul_f32 {s}, s90, {s}"); bf16r(s)
            a(f"v_max_f32 v64, v64, {s}")
    C("---- lap 0: the keys that arrived while q was formed")
    a(f"s_mov_b32 s55, {NB*4096}")
    left = NB + D - kiss
    early = list(early)
    while early and early[-1] >= NB - (left - len(early)): early.pop()
    sched = early + list(range(NB - (left - len(early)), NB))
    assert len(set(sched)) == left, (sched, left)
    for i in range(NB):
        vwait(f"k{i}")
        if i in sched:
            assert kiss - NB < i
            kload()
        kconsume(i)
    stamp(4)
    C("---- the next laps also bring in this head's rows of wo")
    wo = 0
    if wov: nwl = 0; wo = 32
    for lap in range(1, nwl + 1):
        a("s_mov_b32 s54, s55"); a(f"s_add_u32 s55, s55, {NB*4096}")
        for k in range(2 * lap): a(f"v_mov_b32 v{46-2*lap+k}, v{48-2*lap+k}")
        kbase = NB * lap
        if lap == 1:
            for j in range((D1 or D) - D): kload()
        for i in range(NB):
            vwait(f"k{NB*lap+i}")
            if kiss < (nwl + 1) * NB + D: kload()
            while wo < 32 and (i % nwl == 0 if wend == 32 else wo * wend < (i + 1) * 32) and (wend < 32 or wo * nwl <= NB * (lap - 1) + i):
                a(f"s_mov_b32 s58, {wo*4096}")
                a(f"buffer_load_dwordx4 a[{4*wo}:{4*wo+3}], v59, s[24:27], s58 offen {wpol}"); vm.append(f"wo{wo}"); wo += 1
            if mpf == 1 and lap == 1:
                if i == 0:
                    srd(20, 80, 81, 1792*1024)
                    a("s_lshl_b32 s96, s2, 2"); a("s_add_u32 s96, s96, s3"); a("s_lshl_b32 s96, s96, 11"); a("v_lshlrev_b32 v62, 4, v1")
                if i % 5 == 2 and i // 5 < 6:
                    k = i // 5
                    a(f"buffer_load_dwordx4 v[76:79], v62, s[{(40, 44, 20)[k >> 1]}:{(43, 47, 23)[k >> 1]}], s96 offen offset:{(k & 1) * 1024}"); vm.append(f"pf{k}")
            kconsume(i)
            if late and lap == 1 and i == 4: setup_late()
    assert wo == 32

    leads = ([D - 1] if ahead else []) + [D, D + hi]
    def decide(name, k):
        a("s_waitcnt lgkmcnt(0)")
        a("s_sub_u32 s58, s52, s48"); a("s_lshl_b32 s58, s58, 8"); a("s_sub_u32 s58, s58, s49"); a("s_add_u32 s49, s49, s57")
        if two:
            a("s_sub_u32 s101, s58, s24"); a("s_mov_b32 s24, s100")
            a(f"s_cmp_gt_i32 s101, {jump*256}"); a(f"s_cselect_b32 s101, {shift*256}, 0"); a("s_cselect_b32 s24, 0x20000000, s24")
            a("s_add_u32 s49, s49, s101"); a("s_add_u32 s25, s25, s101"); a("s_sub_u32 s58, s58, s101"); a("s_mov_b32 s100, s58")
            a("s_cmp_lg_u32 s50, 0"); a("s_cselect_b32 s58, -1, s58")
        elif jump:
            a("s_sub_u32 s101, s58, s100"); a(f"s_cmp_gt_i32 s101, {jump*256}"); a(f"s_cselect_b32 s101, {shift*256 if shift else 's101'}, 0")
            a("s_add_u32 s49, s49, s101"); a("s_sub_u32 s58, s58, s101"); a("s_mov_b32 s100, s58")
        a("s_sub_u32 s19, s19, 1"); a("s_cmp_ge_i32 s19, 0"); a("s_cselect_b32 s58, 1, s58")
        a("s_cmp_gt_i32 s58, 0"); a(f"s_cbranch_scc1 {name}_{k}_{D+hi}")
        if ahead:
            a("s_cmp_lt_i32 s58, s93"); a(f"s_cbranch_scc1 {name}_{k}_{D-1}")
    def segment(name, k, DD, consume):
        tag = f"{name}_{k}_{DD}"; i0 = 16 * k
        a(f"{tag}:")
        for j in range(leads[0], DD):
            a(f"s_cmp_gt_u32 s51, {j}"); a(f"s_cbranch_scc1 {tag}_i{j}")
            sload(i0 + j)
            a(f"{tag}_i{j}:")
        nskip = leads[-1] - DD
        for i in range(i0, i0 + 16):
            a(f"s_waitcnt vmcnt({DD - 1})")
            skip = i - i0 < nskip
            if skip: a(f"s_cmp_gt_u32 s51, {DD + i - i0}"); a(f"s_cbranch_scc1 {tag}_s{i}")
            sload(i + DD)
            if skip: a(f"{tag}_s{i}:")
            if i - i0 == nskip: a(f"s_mov_b32 s51, {DD}")
            if i - i0 == 15: a("s_memrealtime s[52:53]")
            consume(i)
    def cal_events(base):
        lo, up = (nwl + 1, 8) if base == 0 else (8, 16)
        if lo <= cal < up:
            a("s_waitcnt lgkmcnt(0)"); a(f"s_cmp_eq_u32 s56, {cal-base}"); a("s_cselect_b32 s88, s52, s88")
            if jump: a(f"s_cmp_eq_u32 s56, {cal+1-base}"); a("s_cselect_b32 s92, s52, s92")
        if lo <= cal + 2 < up and two:
            a(f"s_cmp_eq_u32 s56, {cal+2-base}"); a("s_cbranch_scc0 L_noown")
            a("s_mov_b32 s48, s52"); a("s_mov_b32 s49, 0"); a("s_sub_u32 s57, s52, s88"); a("s_lshl_b32 s57, s57, 6")
            a("s_mov_b32 s25, 0"); a("s_mov_b32 s24, 0x20000000"); a("s_mov_b32 s100, 0x20000000")
            a("L_noown:")
        if lo <= cal + 2 < up:
            a("s_lshl_b32 s58, s6, 4"); a("s_add_u32 s58, s58, s56")
            a(f"s_cmp_eq_u32 s58, {32+cal+2-base}"); a("s_cbranch_scc0 L_norep")
            a("s_waitcnt lgkmcnt(0)")
            a("s_sub_u32 s58, s52, s88")
            if jump:
                a("s_sub_u32 s88, s92, s88"); a("s_sub_u32 s92, s52, s92"); a("s_min_u32 s88, s88, s92"); a("s_lshl_b32 s88, s88, 1")
                a("s_add_u32 s92, s88, 50"); a("s_cmp_gt_u32 s58, s92"); a("s_cselect_b32 s58, s88, s58")
            a("s_min_u32 s58, s58, 0x7fff"); a("s_max_u32 s58, s58, 1"); a("s_pack_ll_b32_b16 s58, s52, s58")
            a("v_mov_b32 v61, s58"); a("s_lshl_b32 s58, s89, 2"); a("v_mov_b32 v60, s58"); a("s_mov_b64 exec, 1")
            a("global_store_dword v60, v61, s[84:85] sc1")
            a("s_mov_b64 exec, -1")
            a("L_norep:")
        if lo <= cal + 2 < up and pre:
            a("s_and_b32 s58, s7, 1"); a("s_lshl_b32 s58, s58, 4"); a("s_add_u32 s58, s58, s56")
            a(f"s_cmp_eq_u32 s58, {16+cal+2-base}"); a(f"s_cselect_b32 s19, {pre}, s19")
        x = "K" if base == 0 else "V"
        a("s_cmp_lg_u32 s50, 0"); a(f"s_cbranch_scc0 L_nocal{x}")
        if cal + 3 - base > max(lo - base, 0):
            a(f"s_cmp_ge_u32 s56, {cal+3-base}"); a(f"s_cbranch_scc0 L_nocal{x}")
        a("v_cmp_eq_u32 vcc, 0, v72"); a(f"s_cbranch_vccz L_cal{x}")
        a("v_lshlrev_b32 v60, 2, v1"); a("global_load_dword v72, v60, s[84:85] sc1")
        a(f"s_branch L_nocal{x}")
        a(f"L_cal{x}:")
        a("s_mov_b32 s50, 0")
        if ctl:
            a("s_waitcnt lgkmcnt(0)")
            if two: a("s_sub_u32 s59, s52, s48"); a("s_lshl_b32 s59, s59, 8"); a("s_sub_u32 s59, s59, s49")
            else: a("s_mov_b32 s100, 0x20000000")
            a("s_mov_b32 s48, s52")
            a("v_bfe_u32 v60, v72, 16, 15"); a("v_subrev_u32 v61, s52, v72"); a("v_bfe_i32 v61, v61, 0, 16")
            allred("v_add_u32", "v60", "v62"); allred("v_add_u32", "v61", "v62")
            a("v_readfirstlane_b32 s57, v60"); a("v_readfirstlane_b32 s49, v61")
            if eps > 0: a(f"s_lshr_b32 s58, s57, {eps}"); a("s_add_u32 s57, s57, s58")
            if eps < 0: a(f"s_lshr_b32 s58, s57, {-eps}"); a("s_sub_u32 s57, s57, s58")
            a(f"s_add_u32 s58, s56, {base-cal-2}"); a("s_lshl_b32 s58, s58, 1"); a("s_mul_i32 s58, s58, s57")
            a("s_lshl_b32 s49, s49, 2"); a("s_add_u32 s49, s49, s58")
            a(f"s_mov_b32 s58, {slack*256}")
            a("s_cmp_eq_u32 s7, 1"); a(f"s_cselect_b32 s58, {(slack-head[0])*256}, s58")
            a("s_cmp_eq_u32 s7, 3"); a(f"s_cselect_b32 s58, {(slack-head[1])*256}, s58")
            a("s_add_u32 s49, s49, s58")
            if two:
                a("s_add_u32 s49, s49, s25")
                a("s_add_u32 s59, s59, s49"); a("s_sub_u32 s24, s24, s59"); a("s_sub_u32 s100, s100, s59")
            if ahead: a(f"s_mov_b32 s93, {-ahead*256}")
        a(f"L_nocal{x}:")
    def laploop(name, head_code, consume, fin=0):
        others = [x for x in leads if x != D]
        a(".p2align 3")
        a(f"{name}:")
        head_code()
        if wov and fin: a("s_cmp_eq_u32 s56, s96"); a(f"s_cbranch_scc1 {name}_wo")
        decide(name, 0)
        segment(name, 0, D, consume)
        a(f"{name}_mid:")
        if fin: a("s_cmp_eq_u32 s56, 7"); a(f"s_cbranch_scc1 {name}_f")
        decide(name, 1)
        segment(name, 1, D, consume)
        a(f"{name}_nxt:")
        a("s_add_u32 s56, s56, 1"); a("s_cmp_lt_u32 s56, 8"); a(f"s_cbranch_scc1 {name}")
        a(f"s_branch {name}_end")
        for x in others:
            segment(name, 0, x, consume); a(f"s_branch {name}_mid")
            segment(name, 1, x, consume); a(f"s_branch {name}_nxt")
        if wov and fin:
            DD = D + wod
            a(f"{name}_wo:")
            a("s_add_u32 s49, s49, s57"); a("s_add_u32 s49, s49, s57")
            for j in range(leads[0], DD):
                a(f"s_cmp_gt_u32 s51, {j}"); a(f"s_cbranch_scc1 {name}_wi{j}")
                sload(j)
                a(f"{name}_wi{j}:")
            nskip = leads[-1] - DD
            for i in range(NB):
                a(f"s_waitcnt vmcnt({DD - 1 + min(i, DD)})")
                skip = i < nskip
                if skip: a(f"s_cmp_gt_u32 s51, {DD + i}"); a(f"s_cbranch_scc1 {name}_ws{i}")
                sload(i + DD)
                if skip: a(f"{name}_ws{i}:")
                if i == nskip: a(f"s_mov_b32 s51, {DD}")
                a(f"s_mov_b32 s58, {i*4096}")
                a(f"buffer_load_dwordx4 a[{4*i}:{4*i+3}], v59, s[24:27], s58 offen {wpol}")
                if i == NB - 1: a("s_memrealtime s[52:53]")
                consume(i)
            a(f"s_branch {name}_nxt")
        if fin:
            a(f"{name}_f:")
            for j in range(leads[0], leads[-1]):
                a(f"s_cmp_gt_u32 s51, {j}"); a(f"s_cbranch_scc1 {name}_f{j}")
                sload(16 + j)
                a(f"{name}_f{j}:")
            nx = 16 + leads[-1]
            while nx < min(16 + fin, NB): sload(nx); nx += 1
            if prescale:
                C("every wave has published its maximum and sum: this wave's weight v60 = exp2(m_w - m) / L")
                a("v_mov_b32 v48, 0"); a("s_waitcnt lgkmcnt(0)"); a("s_barrier")
                a(f"ds_read_b128 v[76:79], v48 offset:{L_ML}"); a(f"ds_read_b128 v[80:83], v48 offset:{L_ML+16}")
                a("s_waitcnt lgkmcnt(0)")
                a("v_min_f32 v48, v76, v78"); a("v_min3_f32 v48, v48, v80, v82")
                for w in range(4): a(f"v_sub_f32 v{76+2*w}, v48, v{76+2*w}")
                a("v_sub_f32 v60, v48, v64")
                for w in range(4): a(f"v_exp_f32 v{76+2*w}, v{76+2*w}")
                a("v_exp_f32 v60, v60")
                a("v_mul_f32 v49, v76, v77")
                for w in range(1, 4): a(f"v_fmac_f32 v49, v{76+2*w}, v{77+2*w}")
                a("v_rcp_f32 v49, v49")
                a("v_mul_f32 v60, v60, v49")
                if slide: a("v_accvgpr_mov_b32 a128, a0"); a("v_accvgpr_mov_b32 a129, a1")
            npf = 0
            for i in range(16, NB):
                a(f"s_waitcnt vmcnt({nx - 1 - i + npf})")
                if nx < NB: sload(nx); nx += 1
                elif mpf >= 2 and i >= pf0:
                    for x in range(mpf - 1):
                        if npf < pfn:
                            k = npf
                            pfload(k); npf += 1
                consume(i)
        a(f"{name}_end:")
    if wov:
        a(f"s_mul_i32 s96, s5, {wov}"); a("s_lshr_b32 s96, s96, 5")
    C("s48 time base, s49 deadline (1/256 ticks), s50 reports seen, s51 depth in use, s[52:53] clock, s57 pace, s19 fixed deep segments")
    a(f"s_mov_b32 s56, {nwl+1}")
    a("s_memrealtime s[52:53]"); a(f"s_mov_b32 s51, {D}"); a("s_mov_b32 s50, 99"); a("s_mov_b32 s57, 0")
    a("s_mov_b32 s48, s18"); a("s_mov_b32 s49, 0x40000000"); a("s_mov_b32 s100, 0x20000000"); a("s_mov_b32 s92, 0"); a("s_mov_b32 s24, 0x20000000"); a("s_mov_b32 s25, 0"); a("s_mov_b32 s88, 0"); a(f"s_mov_b32 s93, {0 if initlow else 0x80000000}"); a("v_mov_b32 v72, 0")
    a("s_cmp_eq_u32 s7, 1"); a(f"s_cselect_b32 s19, {hiu[0]-4}, 0"); a("s_cmp_eq_u32 s7, 3"); a(f"s_cselect_b32 s19, {hiu[1]-4}, s19")
    def khead():
        lapstamp(16)
        a("s_mov_b32 s54, s55"); a(f"s_add_u32 s55, s55, {NB*4096}")
        a("s_cmp_eq_u32 s56, 7")
        a("s_cselect_b32 s12, s16, s12"); a("s_cselect_b32 s13, s17, s13"); a("s_cselect_b32 s55, 0, s55")
        for k in range(14): a(f"v_mov_b32 v{32+k}, v{34+k}")
        cal_events(0)
        if vt:
            a("s_lshl_b32 s58, s3, 4"); a("s_add_u32 s58, s58, s56")
            a(f"s_cmp_eq_u32 s58, {vt}"); a("s_cbranch_scc0 L_novt")
            a("v_mov_b32 v60, 0"); a("s_mov_b64 exec, 1")
            a("global_load_dword v76, v60, s[16:17] nt")
            a("s_mov_b64 exec, -1")
            a("L_novt:")
    laploop("L_k", khead, kconsume)
    stamp(5)
    C("---- maximum of this wave's scores, in log2 units, negated")
    allred("v_max_f32", "v64", "v48")
    a("v_mul_f32 v64, s91, v64"); a("v_sub_f32 v64, 0, v64")
    a("s_mov_b32 s8, s12"); a("s_mov_b32 s9, s13"); a("s_mov_b32 s56, 0")
    for r in range(4): a(f"v_mov_b32 v{28+r}, 0")
    def pfload(k):
        k = pfo[k]
        sr = f"s[{(40, 44, 20)[k >> 1]}:{(43, 47, 23)[k >> 1]}]"
        if xpf: a(f"buffer_load_dwordx4 a[132:135], {'v58' if k < 4 else 'v59'}, {sr}, s{(96 if k < 4 else 98) + (k & 1)} offen")
        else: a(f"buffer_load_dwordx4 a[132:135], v58, {sr}, s96 offen offset:{(k & 1) * 1024}")
    if mpf >= 2:
        C("every wave fetches a share of the FFN weights as its stream ends, so that their users find them in a cache")
        srd(20, 80, 81, 1792*1024)
        if xpf:
            a("s_lshr_b32 s98, s2, 3"); a("s_lshl_b32 s98, s98, 2"); a("s_add_u32 s98, s98, s3")
            a(f"s_mul_i32 s96, s98, {4*3584}"); a(f"s_add_u32 s97, s96, {2*3584}")
            a(f"s_mul_i32 s98, s98, {14*1024}"); a("s_add_u32 s99, s98, 8192")
            a("s_and_b32 s58, s2, 7"); a("s_mul_i32 s92, s58, 448"); a("s_and_b32 s92, s92, 0xff80"); a("s_lshl_b32 s58, s58, 7")
            a("v_lshrrev_b32 v58, 5, v1"); a("v_mul_u32_u24 v58, 3584, v58"); a("v_and_b32 v59, 31, v1"); a("v_lshl_add_u32 v58, v59, 4, v58"); a("v_add_u32 v58, s92, v58")
            a("v_lshrrev_b32 v59, 3, v1"); a("v_lshlrev_b32 v59, 10, v59"); a("v_and_b32 v48, 7, v1"); a("v_lshl_add_u32 v59, v48, 4, v59"); a("v_add_u32 v59, s58, v59")
        else:
            a("s_lshl_b32 s96, s2, 2"); a("s_add_u32 s96, s96, s3"); a("s_lshl_b32 s96, s96, 11"); a("v_lshlrev_b32 v58, 4, v1")
    def vhead():
        lapstamp(24)
        a("s_mov_b32 s54, s55"); a(f"s_add_u32 s55, s55, {NB*4096}")
        for k in range(2):
            a(f"v_fma_f32 v{56+k}, v{32+k}, s91, v64"); a(f"v_exp_f32 v{56+k}, v{56+k}")
            a(f"v_add_f32 v65, v65, v{56+k}"); a(f"v_cvt_pk_bf16_f32 v{66+k}, v{56+k}, v{56+k}")
        for k in range(14): a(f"v_mov_b32 v{32+k}, v{34+k}")
        masks(0, "v66", 0)
        cal_events(8)
        if lasthi:
            a(f"s_cmp_eq_u32 s56, {7 if lasthi == 1 else 6}"); a(f"s_cselect_b32 s19, {1 if lasthi == 1 else 3}, s19")
        if touch:
            C("first touch of the pages the last stages use, so that their translations are at hand (values unused)")
            a(f"s_cmp_eq_u32 s56, {touch}"); a("s_cbranch_scc0 L_notouch")
            a("v_mov_b32 v60, 0"); a("s_mov_b64 exec, 1")
            a(f"s_mov_b32 s58, {WS_G+0x7f00}")
            a("buffer_load_dword v76, v60, s[32:35], s58 offen")
            a("s_and_b32 s58, s7, 1"); a("s_cbranch_scc0 L_notouch1")
            a("buffer_load_dword v76, v60, s[36:39], 0 offen")
            a("buffer_load_dword v76, v60, s[40:43], 0 offen"); a("buffer_load_dword v76, v60, s[44:47], 0 offen")
            a("global_load_dword v76, v60, s[80:81]")
            a("L_notouch1:")
            a("s_mov_b64 exec, -1")
            a("L_notouch:")
        if cpf2:
            a(f"s_cmp_eq_u32 s56, {cpf2}"); a("s_cbranch_scc0 L_nocpf2")
            a("s_getpc_b64 s[60:61]")
            a("L_pc2:")
            a("s_add_u32 s60, s60, L_v_end-L_pc2"); a("s_addc_u32 s61, s61, 0"); a("s_and_b32 s60, s60, 0xffffff80")
            a("s_lshr_b32 s58, s2, 3"); a("s_lshl_b32 s58, s58, 8"); a("v_add_u32 v60, s58, v0"); a("v_lshlrev_b32 v60, 4, v60")
            a("v_cmp_gt_u32 vcc, L_end-L_v_end, v60"); a("s_and_saveexec_b64 s[62:63], vcc"); a("s_cbranch_execz L_nocpf3")
            a("global_load_dwordx4 v[76:79], v60, s[60:61]")
            a("L_nocpf3:")
            a("s_mov_b64 exec, -1")
            a("L_nocpf2:")
        a("s_cmp_eq_u32 s56, 7"); a("s_cbranch_scc0 L_nolast")
        allred("v_add_f32", "v65", "v48")
        a("s_lshl_b32 s58, s3, 3"); a("v_mov_b32 v48, s58"); a("s_mov_b64 exec, 1")
        a(f"ds_write_b64 v48, v[64:65] offset:{L_ML}")
        a("s_mov_b64 exec, -1")
        a("s_cmp_eq_u32 s50, 0"); a("s_cbranch_scc1 L_nolast")
        a(f"s_mov_b32 s88, {SPIN}"); a("v_lshlrev_b32 v60, 2, v1")
        a("L_cnt:")
        a("global_load_dword v72, v60, s[84:85] sc1"); a("s_waitcnt vmcnt(0)")
        a("v_cmp_eq_u32 vcc, 0, v72"); a("s_cbranch_vccz L_nolast")
        a("s_sleep 8"); a("s_sub_u32 s88, s88, 1"); a("s_cbranch_scc0 L_cnt")
        a("L_nolast:")
    def vconsume(i):
        mfma(28, mop(i), ring(i), False)
        if i < NB - 1: masks(i + 1, f"v{66 + ((i + 1) >> 4)}", bitrev((i + 1) & 15))
    if vpol is not None: cur[0] = vpol
    laploop("L_v", vhead, vconsume, fin)
    stamp(6)
    C("---- combine the four waves, project through wo, publish the partial row")
    if prescale:
        for r in range(4): a(f"v_mul_f32 v{28+r}, v{28+r}, v60")
        a("s_mov_b32 exec_hi, 0")
        a(f"ds_write_b128 v26, v[28:31] offset:{L_OP}")
        a("s_mov_b64 exec, -1")
        a("s_waitcnt lgkmcnt(0)"); a("s_barrier")
        for w in range(4): a(f"ds_read2st64_b32 v[{84+2*w}:{85+2*w}], v27 offset0:{L_OP//256+2*w} offset1:{L_OP//256+2*w+1}")
        a("s_waitcnt lgkmcnt(2)")
        for k in range(2): a(f"v_add_f32 v{84+k}, v{84+k}, v{86+k}")
        a("s_waitcnt lgkmcnt(0)")
        for k in range(2): a(f"v_add_f32 v{88+k}, v{88+k}, v{90+k}")
        for k in range(2): a(f"v_add_f32 v{56+k}, v{84+k}, v{88+k}")
        for k in range(2): a(f"v_cvt_pk_bf16_f32 v{66+k}, v{56+k}, v{56+k}")
    else:
        a("v_mov_b32 v48, 0")
        a("s_mov_b32 exec_hi, 0")
        a(f"ds_write_b128 v26, v[28:31] offset:{L_OP}")
        a("s_mov_b64 exec, -1")
        a("s_waitcnt lgkmcnt(0)"); a("s_barrier")
        a(f"ds_read_b128 v[76:79], v48 offset:{L_ML}"); a(f"ds_read_b128 v[80:83], v48 offset:{L_ML+16}")
        for w in range(4): a(f"ds_read2st64_b32 v[{84+2*w}:{85+2*w}], v27 offset0:{L_OP//256+2*w} offset1:{L_OP//256+2*w+1}")
        a("s_waitcnt lgkmcnt(4)")
        a("v_min_f32 v48, v76, v78"); a("v_min3_f32 v48, v48, v80, v82")
        for w in range(4): a(f"v_sub_f32 v{76+2*w}, v48, v{76+2*w}")
        for w in range(4): a(f"v_exp_f32 v{76+2*w}, v{76+2*w}")
        a("v_mul_f32 v49, v76, v77")
        for w in range(1, 4): a(f"v_fmac_f32 v49, v{76+2*w}, v{77+2*w}")
        a("v_rcp_f32 v49, v49")
        a("s_waitcnt lgkmcnt(0)")
        for k in range(2):
            a(f"v_mul_f32 v{56+k}, v76, v{84+k}")
            for w in range(1, 4): a(f"v_fmac_f32 v{56+k}, v{76+2*w}, v{84+2*w+k}")
        for k in range(2):
            a(f"v_mul_f32 v{56+k}, v{56+k}, v49"); a(f"v_cvt_pk_bf16_f32 v{66+k}, v{56+k}, v{56+k}")
    if slide:
        C("product t takes the upper half of row group t and the lower half of group t+1, so a selector pair serves two products")
        def sel(t):
            for r in range(2):
                a(f"v_and_b32_dpp v{128+2*t+r}, v{66 + ((t & 31) >> 4)}, v{14+2*(t&1)+r} row_newbcast:{t & 15} row_mask:0xf bank_mask:0xf")
        sel(0); sel(1); sel(2)
        for t in range(32):
            mfma(28 if t & 1 else 76, f"v[{128+2*t}:{131+2*t}]", f"a[{4*t+2}:{4*t+5}]", t < 2)
            if t + 3 <= 32: sel(t + 3)
        for r in range(4): a(f"v_permlane16_swap_b32 v{76+r}, v{76+r}")
        for r in range(4): a(f"v_add_f32 v{28+r}, v{28+r}, v{76+r}")
    else:
        masks(0, "v66", 0)
        for t in range(32):
            if t < 31: masks(t + 1, "v66" if t + 1 < 16 else "v67", (t + 1) & 15)
            mfma(28, mop(t), f"a[{4*t}:{4*t+3}]", t == 0)
    a("s_mov_b32 exec_hi, 0")
    for r in range(4): a(f"v_min_u32 v{28+r}, -2, v{28+r}")
    a("buffer_store_dwordx4 v[28:31], v68, s[32:35], 0 offen sc1")
    a("s_mov_b64 exec, -1")
    stamp(7)
    if rskip: a("s_cmp_eq_u32 s6, 2"); a("s_cbranch_scc1 L_s2")
    if pfw:
        a("s_and_b32 s58, s7, 1"); a("s_cbranch_scc1 L_nopfw"); a("s_cmp_eq_u32 s6, 2"); a("s_cbranch_scc1 L_nopfw")
        a("s_waitcnt vmcnt(0)")
        a("L_nopfw:")
    if mpf >= 2:
        for k in range(0 if pf0 >= NB else pfn, 6): pfload(k)
    if not rskip: a("s_cmp_eq_u32 s6, 2"); a("s_cbranch_scc1 L_s2")
    a("s_and_b32 s58, s7, 1"); a("s_cbranch_scc0 L_fin")
    C("---- this workgroup's FFN weights -> LDS: A via s[40:43], B via s[44:47]; s96/s97 source, s98/s99 LDS, s100/s101 steps")
    a("s_cmp_eq_u32 s7, 1"); a("s_cbranch_scc0 L_dmaD")
    a("v_lshrrev_b32 v62, 2, v1"); a("s_movk_i32 s58, 3584"); a("v_mul_u32_u24 v62, s58, v62")
    a("v_and_b32 v63, 3, v1"); a("v_lshl_add_u32 v62, v63, 4, v62")
    a("s_lshl_b32 s58, s89, 6"); a("v_add_u32 v62, s58, v62")
    a(f"s_mul_i32 s96, s3, {128*3584}"); a("s_mov_b32 s97, s96")
    a("s_lshl_b32 s98, s3, 13"); a(f"s_add_u32 s98, s98, {L_W}"); a("s_add_u32 s99, s98, 32768")
    a(f"s_mov_b32 s100, {16*3584}"); a("s_mov_b32 s101, 1024"); a("s_mov_b32 s93, 8")
    a("s_branch L_dma")
    a("L_dmaD:")
    a("v_lshrrev_b32 v62, 1, v1"); a("v_lshlrev_b32 v62, 10, v62"); a("v_and_b32 v63, 1, v1"); a("v_lshl_add_u32 v62, v63, 4, v62")
    a("s_lshl_b32 s58, s89, 5"); a("v_add_u32 v62, s58, v62")
    for d in (40, 44):
        a(f"s_mov_b32 s{d}, s80"); a(f"s_mov_b32 s{d+1}, s81"); a(f"s_mov_b32 s{d+2}, {1792*1024}")
    a(f"s_mul_i32 s96, s3, {448*1024}"); a("s_add_u32 s97, s96, 32768")
    a(f"s_mul_i32 s98, s3, {448*32}"); a(f"s_add_u32 s98, s98, {L_W}"); a("s_add_u32 s99, s98, 1024")
    a("s_mov_b32 s100, 65536"); a("s_mov_b32 s101, 2048"); a("s_mov_b32 s93, 7")
    a("L_dma:")
    a("s_mov_b32 m0, s98"); a("s_sub_u32 s93, s93, 1")
    a(f"buffer_load_dwordx4 v62, s[40:43], s96 offen {fpol} lds")
    a("s_mov_b32 m0, s99"); a("s_add_u32 s96, s96, s100")
    a(f"buffer_load_dwordx4 v62, s[44:47], s97 offen {fpol} lds")
    a("s_add_u32 s97, s97, s100"); a("s_add_u32 s98, s98, s101"); a("s_add_u32 s99, s99, s101")
    a("s_cmp_lg_u32 s93, 0"); a("s_cbranch_scc1 L_dma")
    C("exchange addresses v63 = g*128 + b*16, v26 = w*512 + v63 ; v60 = 16g + r', v61 = c' for the transposing reads")
    a("v_and_b32 v27, 7, v75"); a("v_lshlrev_b32 v63, 4, v27"); a("v_lshl_add_u32 v63, v74, 7, v63")
    a("s_lshl_b32 s58, s3, 9"); a("v_add_u32 v26, s58, v63")
    a("v_lshrrev_b32 v60, 2, v75"); a("v_lshl_add_u32 v60, v74, 4, v60"); a("v_and_b32 v61, 3, v1")
    a("s_cmp_eq_u32 s7, 3"); a("s_cbranch_scc1 L_s4")

    C("---- gate / up: four tiles of 8+8 columns, 128 rows of h per wave; LayerNorm is applied to the sums")
    a("v_lshlrev_b32 v60, 6, v60"); a("v_lshrrev_b32 v49, 1, v61"); a("v_lshl_add_u32 v60, v49, 15, v60")
    a("v_and_b32 v49, 1, v61"); a("v_lshl_add_u32 v60, v49, 3, v60")
    a("s_lshl_b32 s58, s3, 13"); a(f"s_add_u32 s58, s58, {L_W}"); a("v_add_u32 v60, s58, v60")
    for r in range(4): a(f"v_mov_b32 v{112+r}, 0x3f803f80")
    C("h fragment address v62 = (g>>1)*512 + (b>>1)*128 + (b&1)*64 + (g&1)*32 + half*16")
    a("v_lshrrev_b32 v62, 1, v74"); a("v_lshlrev_b32 v62, 9, v62"); a("v_bfe_u32 v49, v75, 1, 2"); a("v_lshl_add_u32 v62, v49, 7, v62")
    a("v_and_b32 v49, 1, v75"); a("v_lshl_add_u32 v62, v49, 6, v62"); a("v_and_b32 v49, 1, v74"); a("v_lshl_add_u32 v62, v49, 5, v62")
    a("v_lshrrev_b32 v49, 3, v75"); a("v_lshl_add_u32 v62, v49, 4, v62")
    a(f"s_mov_b32 s58, {L_DUMP-L_T2}"); a("v_mad_u32_u24 v26, v49, s58, v26")
    a("s_lshl_b32 s58, s3, 11"); a("v_add_u32 v63, s58, v63")
    a("v_lshrrev_b32 v49, 1, v74"); a("v_lshlrev_b32 v49, 2, v49"); a("v_lshlrev_b32 v61, 5, v27"); a("v_add_u32 v49, v49, v61")
    a("s_lshl_b32 s58, s3, 3"); a("v_add_u32 v49, s58, v49")
    a("s_lshl_b32 s59, s3, 11"); a(f"s_add_u32 s59, s59, {WS_H}")
    def colsum():
        a("s_waitcnt lgkmcnt(0)")
        for k in range(4):
            for t in range(4): mfma(224 + 4*t, f"v[{128+16*t+4*k}:{131+16*t+4*k}]", "v[112:115]", k == 0)
        for t in range(4): a(f"ds_write_b128 v26, v[{224+4*t}:{227+4*t}] offset:{L_CS+2048*t}")
    if staged:
        for u in range(2):
            a(f"s_waitcnt vmcnt({8 - 8*u})")
            if u: stamp(13)
            for t in range(4):
                for hf in range(2):
                    for sec in range(2): trread(128 + 16*t + 8*u + 4*hf + 2*sec, "v60", (64*u + 8*hf + 4*sec) * 64 + 16*t)
                if t == 2: a("s_waitcnt lgkmcnt(6)")
            if u == 0: a("s_waitcnt lgkmcnt(0)")
    else:
        a("s_waitcnt vmcnt(0)")
        stamp(13)
        for t in range(4):
            for u in range(2):
                for hf in range(2):
                    for sec in range(2): trread(128 + 16*t + 8*u + 4*hf + 2*sec, "v60", (64*u + 8*hf + 4*sec) * 64 + 16*t)
            if t: a("s_waitcnt lgkmcnt(6)")
        a("s_waitcnt lgkmcnt(0)")
        for k in range(4):
            for t in range(4): mfma(224 + 4*t, f"v[{128+16*t+4*k}:{131+16*t+4*k}]", "v[112:115]", k == 0)
        for t in range(4): a(f"ds_write_b128 v26, v[{224+4*t}:{227+4*t}] offset:{L_CS+2048*t}")
    if cspre:
        a("s_waitcnt lgkmcnt(0)"); a("s_barrier")
        for w in range(4): a(f"ds_read_b128 v[{224+4*w}:{227+4*w}], v63 offset:{L_CS+512*w}")
        a("s_waitcnt lgkmcnt(0)")
        for r in range(4): a(f"v_add_f32 v{224+r}, v{224+r}, v{228+r}"); a(f"v_add_f32 v{232+r}, v{232+r}, v{236+r}")
        for r in range(4): a(f"v_add_f32 v{108+r}, v{224+r}, v{232+r}")
    def ldH(b): return [f"buffer_load_dwordx4 v[{b+4*u}:{b+3+4*u}], v62, s[32:35], s59 offen offset:{u*1024} sc1" for u in range(2)]
    def useH(b):
        n = 0
        for u in range(2):
            for t in range(4):
                for hf in range(2):
                    mfma(192 + 8*t + 4*hf, f"v[{128+16*t+8*u+4*hf}:{131+16*t+8*u+4*hf}]", f"v[{b+4*u}:{b+3+4*u}]", u == 0)
                    if n < 8:
                        a(f"v_dot2_f32_bf16 v52, v{b+n}, v112, {'0' if n == 0 else 'v52'}")
                        a(f"v_dot2_f32_bf16 v53, v{b+n}, v{b+n}, {'0' if n == 0 else 'v53'}")
                    if n == 9:
                        for r in range(2): a(f"v_add_f32_dpp v{52+r}, v{52+r}, v{52+r} row_ror:8 row_mask:0xf bank_mask:0xf")
                    if n == 11: a("v_permlane32_swap_b32 v52, v53"); a("v_add_f32 v52, v52, v53"); a("v_mov_b32 v53, v52")
                    if n == 13: a("v_permlane16_swap_b32 v52, v53"); a("v_add_f32 v52, v52, v53"); a(f"ds_write_b32 v49, v52 offset:{L_ST}")
                    n += 1
    poll2("L_pH", ldH, 8, (76, 84), useH, colsum if staged else None)
    stamp(10)
    for t in range(4):
        for r in range(4): a(f"v_add_f32_dpp v{192+8*t+r}, v{196+8*t+r}, v{192+8*t+r} row_ror:8 row_mask:0xf bank_mask:0xf")
        a(f"ds_write_b128 v26, v[{192+8*t}:{195+8*t}] offset:{L_T2+2048*t}")
    a("s_waitcnt lgkmcnt(0)"); a("s_barrier")
    for k in range(2): a(f"ds_read_b128 v[{92+4*k}:{95+4*k}], v61 offset:{L_ST+16*k}")
    if not cspre:
        for w in range(4): a(f"ds_read_b128 v[{224+4*w}:{227+4*w}], v63 offset:{L_CS+512*w}")
    for w in range(4): a(f"ds_read_b128 v[{116+4*w}:{119+4*w}], v63 offset:{L_T2+512*w}")
    a(f"s_waitcnt lgkmcnt({4 if cspre else 8})")
    for k in range(2): a(f"v_add_f32 v{92+k}, v{92+k}, v{94+k}"); a(f"v_add_f32 v{96+k}, v{96+k}, v{98+k}")
    a("v_add_f32 v52, v92, v96"); a("v_add_f32 v53, v93, v97")
    a(f"v_mul_f32 v52, {f32(1/512)}, v52"); a(f"v_mul_f32 v53, {f32(1/512)}, v53")
    a("v_fma_f32 v53, -v52, v52, v53"); a("v_max_f32 v53, 0, v53")
    bf16r("v53"); bf16r("v52")
    a(f"v_add_f32 v53, {f32(1e-5)}, v53"); bf16r("v53")
    a("v_sqrt_f32 v53, v53")
    if not cspre:
        a("s_waitcnt lgkmcnt(4)")
        for r in range(4): a(f"v_add_f32 v{224+r}, v{224+r}, v{228+r}"); a(f"v_add_f32 v{232+r}, v{232+r}, v{236+r}")
        bf16r("v53"); a("v_rcp_f32 v53, v53")
        for r in range(4): a(f"v_add_f32 v{108+r}, v{224+r}, v{232+r}")
    a("s_waitcnt lgkmcnt(0)")
    for r in range(4): a(f"v_add_f32 v{116+r}, v{116+r}, v{120+r}"); a(f"v_add_f32 v{124+r}, v{124+r}, v{128+r}")
    if cspre: bf16r("v53"); a("v_rcp_f32 v53, v53")
    for r in range(4): a(f"v_add_f32 v{116+r}, v{116+r}, v{124+r}")
    for r in range(4): a(f"v_fma_f32 v{116+r}, -v52, v{108+r}, v{116+r}")
    for r in range(4): a(f"v_mul_f32 v{116+r}, v{116+r}, v53")
    for r in range(2): a(f"v_cvt_pk_bf16_f32 v{120+r}, v{116+2*r}, v{117+2*r}")
    for r in range(2): a(f"v_permlane32_swap_b32 v{120+r}, v{122+r}")
    for r in range(2):
        a(f"v_lshlrev_b32 v{116+2*r}, 16, v{120+r}"); a(f"v_and_b32 v{117+2*r}, 0xffff0000, v{120+r}")
        a(f"v_lshlrev_b32 v{124+2*r}, 16, v{122+r}"); a(f"v_and_b32 v{125+2*r}, 0xffff0000, v{122+r}")
    for r in range(4): a(f"v_max_f32 v{116+r}, 0, v{116+r}")
    for r in range(4): a(f"v_mul_f32 v{116+r}, v{116+r}, v{124+r}")
    for r in range(2): a(f"v_cvt_pk_bf16_f32 v{120+r}, v{116+2*r}, v{117+2*r}")
    a("s_mov_b64 exec, 0x00ff00ff")
    for r in range(2): a(f"v_min_u32 v{120+r}, -2, v{120+r}")
    a("buffer_store_dwordx2 v[120:121], v70, s[32:35], 0 offen sc1")
    stamp(11)
    a("s_branch L_fin")

    C("---- reducer: sum the 32 heads' partials of 2 rows x 32 columns, add x, publish h")
    a("L_s2:")
    a("v_lshlrev_b32 v62, 4, v1")
    a("s_lshl_b32 s59, s89, 13"); a("s_add_u32 s92, s59, 4096")
    a("v_lshlrev_b32 v50, 16, v71"); a("v_and_b32 v51, 0xffff0000, v71")
    def ld8(b): return [f"buffer_load_dwordx4 v[{b+4*u}:{b+3+4*u}], v62, s[32:35], {'s59' if u < 4 else 's92'} offen offset:{(u&3)*1024} sc1" for u in range(8)]
    def useP(b):
        for r in range(16): a(f"v_add_f32 v{108+r}, v{b+r}, v{b+16+r}")
    poll2("L_pP", ld8, 32, (76, 128), useP)
    stamp(8)
    for st in (8, 4):
        for r in range(st): a(f"v_add_f32 v{108+r}, v{108+r}, v{108+st+r}")
    a("v_permlane32_swap_b32 v108, v110"); a("v_permlane32_swap_b32 v109, v111")
    a("v_add_f32 v108, v108, v110"); a("v_add_f32 v109, v109, v111")
    a("v_mov_b32 v110, v108"); a("v_mov_b32 v111, v109")
    a("v_permlane16_swap_b32 v108, v110"); a("v_permlane16_swap_b32 v109, v111")
    a("v_add_f32 v108, v108, v110"); a("v_add_f32 v109, v109, v111")
    a("v_cvt_pk_bf16_f32 v108, v108, v109")
    a("v_and_b32 v109, 0xffff0000, v108"); a("v_lshlrev_b32 v108, 16, v108")
    a("v_add_f32 v108, v108, v50"); a("v_add_f32 v109, v109, v51")
    a("v_cvt_pk_bf16_f32 v108, v108, v109")
    a("s_mov_b32 exec_lo, 0xffff"); a("s_mov_b32 exec_hi, 0xffff")
    a("v_min_u32 v108, -2, v108")
    a("buffer_store_dword v108, v69, s[32:35], 0 offen sc1")
    if rskip == 2:
        a("s_mov_b64 exec, -1")
        for k in range(0 if pf0 >= NB else pfn, 6): pfload(k)
    stamp(9)
    a("s_branch L_fin")

    C("---- 16 output columns, 448 rows of W_down per wave")
    a("L_s4:")
    a("v_lshlrev_b32 v60, 5, v60"); a("v_lshl_add_u32 v60, v61, 3, v60")
    a(f"s_mul_i32 s58, s3, {448*32}"); a(f"s_add_u32 s58, s58, {L_W}"); a("v_add_u32 v60, s58, v60")
    C("h address v49 = H + ((s'>>1)*4 + (b>>1))*128 + (b&1)*64 + (s'&1)*32 + g*8 ; out address v50 = b*1024 + s'*32 + g*8")
    a("v_lshrrev_b32 v49, 1, v27"); a("v_lshlrev_b32 v49, 7, v49"); a("v_and_b32 v50, 1, v27"); a("v_lshl_add_u32 v49, v50, 6, v49")
    a("v_lshl_add_u32 v49, v74, 3, v49")
    a("s_lshr_b32 s58, s89, 1"); a("s_lshl_b32 s58, s58, 9"); a("s_and_b32 s92, s89, 1"); a("s_lshl_b32 s92, s92, 5"); a("s_add_u32 s58, s58, s92")
    a(f"s_add_u32 s58, s58, {WS_H}"); a("v_add_u32 v49, s58, v49")
    a("v_lshlrev_b32 v50, 10, v27"); a("v_lshl_add_u32 v50, v74, 3, v50"); a("s_lshl_b32 s58, s89, 5"); a("v_add_u32 v50, s58, v50")
    a(f"s_mul_i32 s59, s3, {7*1024}"); a(f"s_add_u32 s59, s59, {WS_G}"); a("s_add_u32 s92, s59, 4096")
    a("v_lshlrev_b32 v62, 4, v1")
    if not staged: a("s_waitcnt vmcnt(0)"); stamp(13)
    for u in range(7):
        if staged: a(f"s_waitcnt vmcnt({12 - 2*u})")
        if staged and u == 6: stamp(13)
        for hf in range(2):
            for sec in range(2): trread(128 + 8*u + 4*hf + 2*sec, "v60", (64*u + 8*hf + 4*sec) * 32)
        if u in (2, 5): a("s_waitcnt lgkmcnt(4)")
    a("s_waitcnt lgkmcnt(0)")
    def ldG(b): return ld8(b)[:7] + [f"buffer_load_dwordx2 v[{b+28}:{b+29}], v49, s[32:35], 0 offen sc1"]
    def useG(b):
        for u in range(7):
            for hf in range(2): mfma(108 + 4*hf, f"v[{128+8*u+4*hf}:{131+8*u+4*hf}]", f"v[{b+4*u}:{b+3+4*u}]", u == 0)
        for r in range(2):
            a(f"v_lshlrev_b32 v{116+2*r}, 16, v{b+28+r}"); a(f"v_and_b32 v{117+2*r}, 0xffff0000, v{b+28+r}")
    poll2("L_pG", ldG, 30, (76, 192), useG)
    stamp(10)
    for r in range(4): a(f"v_add_f32_dpp v{108+r}, v{112+r}, v{108+r} row_ror:8 row_mask:0xf bank_mask:0xf")
    a("s_mov_b32 exec_lo, 0x00ff00ff"); a("s_mov_b32 exec_hi, 0x00ff00ff")
    a(f"ds_write_b128 v26, v[108:111] offset:{L_TX}")
    a("s_waitcnt lgkmcnt(0)"); a("s_barrier")
    a("s_cmp_eq_u32 s3, 3"); a("s_cbranch_scc0 L_fin")
    for w in range(4): a(f"ds_read_b128 v[{128+4*w}:{131+4*w}], v63 offset:{L_TX+512*w}")
    a("s_waitcnt lgkmcnt(0)")
    for r in range(4):
        a(f"v_add_f32 v{128+r}, v{128+r}, v{132+r}"); a(f"v_add_f32 v{136+r}, v{136+r}, v{140+r}")
    for r in range(4): a(f"v_add_f32 v{128+r}, v{128+r}, v{136+r}")
    for r in range(2): a(f"v_cvt_pk_bf16_f32 v{132+r}, v{128+2*r}, v{129+2*r}")
    for r in range(2):
        a(f"v_lshlrev_b32 v{128+2*r}, 16, v{132+r}"); a(f"v_and_b32 v{129+2*r}, 0xffff0000, v{132+r}")
    for r in range(4): a(f"v_add_f32 v{128+r}, v{128+r}, v{116+r}")
    for r in range(2): a(f"v_cvt_pk_bf16_f32 v{132+r}, v{128+2*r}, v{129+2*r}")
    a("buffer_store_dwordx2 v[132:133], v50, s[36:39], 0 offen")
    stamp(11)
    a("L_fin:")
    if probe is not None:
        a(f"s_cmp_eq_u32 s2, {pwg}"); a("s_cbranch_scc0 L_end"); a("s_cmp_eq_u32 s3, 3"); a("s_cbranch_scc0 L_end")
        if probe == 0: a("s_mov_b32 s20, 0")
        a("s_add_u32 s20, s20, 10000")
        a("L_probe:")
        a("s_sleep 4"); a("s_memrealtime s[94:95]"); a("s_waitcnt lgkmcnt(0)"); a("s_sub_u32 s94, s94, s18")
        a("s_cmp_lt_u32 s94, s20"); a("s_cbranch_scc1 L_probe")
    if stamps:
        a("s_mov_b64 exec, -1")
        stamp(12)
        a("s_getreg_b32 s92, hwreg(HW_REG_XCC_ID)"); a("v_writelane_b32 v73, s92, 15")
        a("s_lshl_b32 s58, s2, 2"); a("s_add_u32 s58, s58, s3"); a("s_lshl_b32 s58, s58, 7"); a(f"s_add_u32 s58, s58, {WS_ST}")
        a("v_lshlrev_b32 v48, 2, v1"); a("s_mov_b32 exec_hi, 0")
        a("buffer_store_dword v73, v48, s[32:35], s58 offen")
        if "dbgout" in xp:
            a("s_cmp_eq_u32 s2, 229"); a("s_cbranch_scc0 L_end"); a("s_cmp_eq_u32 s3, 3"); a("s_cbranch_scc0 L_end")
            a("v_subrev_u32 v73, s18, v73"); a("s_mov_b64 exec, 0xffff")
            a("global_store_dword v48, v73, s[84:85] sc1")
    a("L_end:")
    a("s_endpgm")
    body = a.finish()
    head_ = HEADER + f"; @launch grid=(256,1,1) block=(256,1,1) lds={L_SIZE}\n" + '.amdgcn_target "amdgcn-amd-amdhsa--gfx950"\n.text\n' + \
        DOC + f".globl {NAME}\n.p2align 8\n.type {NAME},@function\n"
    tail = f""".section .rodata,"a"
.p2align 6
.amdhsa_kernel {NAME}
  .amdhsa_next_free_vgpr 392
  .amdhsa_next_free_sgpr 102
  .amdhsa_accum_offset 256
  .amdhsa_group_segment_fixed_size 0
  .amdhsa_kernarg_size 96
  .amdhsa_user_sgpr_count 2
  .amdhsa_user_sgpr_kernarg_segment_ptr 1
  .amdhsa_system_sgpr_workgroup_id_x 1
.end_amdhsa_kernel
"""
    return head_ + body + tail

if __name__ == "__main__":
    kw = eval("dict(%s)" % (sys.argv[2] if len(sys.argv) > 2 else ""))
    open(sys.argv[1], "w").write(gen(**kw))
```

```python
import sys, struct
sys.path.insert(0, __file__.rsplit('/', 1)[0])
from asmlib import Asm

NAME = "sequential_preLN__mha_block_cached__glu_gated_reglu__decode_kernel"
HEADER = open(__file__.rsplit('/', 1)[0] + '/header.txt').read()

def f32(x): return "0x%08x" % struct.unpack('<I', struct.pack('<f', x))[0]

WS_P, WS_H, WS_G, WS_ST, WS_SIZE = 0, 0x80000, 0x82000, 0x100000, 0x140000
L_QP, L_OP, L_ML, L_ST, L_TX, L_T2, L_CS, L_W, L_DUMP, L_SIZE = 0, 2048, 4096, 4160, 4608, 8192, 16384, 24576, 90112, 106496
DOC = r"""; ---------------------------------------------------------------------------------------------------------
; ---------------------------------------------------------------------------------------------------------
"""
RING = 128
NB = 32
SPIN = 200000

def gen(D=5, hi=1, pol="nt", wpol="", fpol="", early=(2, 7, 12, 17), n1=7, kq=2, nbar=2, nA=3, nB=3, D1=None,
        stag=0, cpf2=0, fin=10, touch=0, cspre=0, wend=32, wov=0, wod=0, initlow=0, prescale=1, slide=1, staged=1, vt=0, lasthi=0, mpf=7, pf0=32, xpf=1, pfn=6, pfo=(0, 1, 2, 3, 4, 5), rskip=0, pfw=0, rw=None, rlo=None, jump=120, shift=220, two=0, single="G", hmap=(0, 2, 3, 1, 4), ctl=1, slack=80, k0=1, late=0, cpf=23, rot=0, nw=2, nwl=1, eps=0, head=(60, 80), hiu=(4, 4), cal=3, stamps=0, xp=(), probe=None, pwg=130, vpol=None, pre=0, ahead=0, r2=0, slack2=40):
    a = Asm()
    vm = []
    def C(t): a("; " + t)
    def vwait(tag):
        n = len(vm) - 1 - vm.index(tag)
        a(f"s_waitcnt vmcnt({min(n, 63)})")
    def stamp(k):
        if probe == k:
            a("s_memrealtime s[94:95]"); a("s_waitcnt lgkmcnt(0)"); a("s_sub_u32 s20, s94, s18")
        if stamps == 2 and k not in (6, 12): return
        if stamps == 3 and k not in (3, 4, 6, 12): return
        if stamps:
            a("s_memrealtime s[94:95]"); a("s_waitcnt lgkmcnt(0)"); a(f"v_writelane_b32 v73, s94, {k}")
    def lapstamp(off):
        if stamps == 3:
            a("s_memrealtime s[94:95]"); a(f"s_add_u32 m0, s56, {off}"); a("s_waitcnt lgkmcnt(0)"); a("v_writelane_b32 v73, s94, m0")
    def allred(op, v, t):
        for n in (8, 4, 2, 1): a(f"{op}_dpp {v}, {v}, {v} row_ror:{n} row_mask:0xf bank_mask:0xf")
        for sw in ("v_permlane16_swap_b32", "v_permlane32_swap_b32"):
            a(f"v_mov_b32 {t}, {v}"); a(f"{sw} {v}, {t}"); a(f"{op} {v}, {v}, {t}")
    def bf16r(v):
        a(f"v_cvt_pk_bf16_f32 {v}, {v}, {v}"); a(f"v_and_b32 {v}, 0xffff0000, {v}")
    def srd(d, lo, hi_, size, add=None):
        if add is None:
            a(f"s_mov_b32 s{d}, s{lo}"); a(f"s_mov_b32 s{d+1}, s{hi_}")
        else:
            a(f"s_add_u32 s{d}, s{lo}, {add}"); a(f"s_addc_u32 s{d+1}, s{hi_}, 0")
        a(f"s_mov_b32 s{d+2}, {size}"); a(f"s_mov_b32 s{d+3}, 0x20000")
    cur = [pol]
    def ring(j): j %= NB; return f"v[{RING+4*j}:{RING+4*j+3}]"
    def sload(j):
        s, b = ("s[12:15]", "s55") if j >= NB else ("s[8:11]", "s54")
        j %= NB
        a(f"buffer_load_dwordx4 {ring(j)}, v{2+(j>>2)}, {s}, {b} offen offset:{(j&3)*1024} {cur[0]}")
    def masks(t, src, lane):
        for r in range(4):
            a(f"v_and_b32_dpp v{18+4*(t&1)+r}, {src}, v{14+r} row_newbcast:{lane} row_mask:0xf bank_mask:0xf")
    def mop(t): return f"v[{18+4*(t&1)}:{21+4*(t&1)}]"
    def mfma(d, x, y, first): a(f"v_mfma_f32_16x16x32_bf16 v[{d}:{d+3}], {x}, {y}, {'0' if first else 'v[%d:%d]' % (d, d+3)}")
    def bitrev(t): return ((t & 1) << 3) | ((t & 2) << 1) | ((t & 4) >> 1) | ((t & 8) >> 3)
    def check(regs, ok):
        r = list(regs)
        a(f"v_max3_u32 v48, v{r[0]}, v{r[1]}, v{r[2]}"); r = r[3:]
        while len(r) >= 2:
            a(f"v_max3_u32 v48, v48, v{r[0]}, v{r[1]}"); r = r[2:]
        if r: a(f"v_max_u32 v48, v48, v{r[0]}")
        a("v_cmp_eq_u32 vcc, -1, v48")
        a(f"s_cbranch_vccz {ok}")
    def poll2(label, loads, nreg, bases, use, pre=None):
        n = len(loads(bases[0]))
        if label[-1] in single:
            a(f"s_mov_b32 s88, {SPIN}")
            if pre:
                for l in loads(bases[0]): a(l)
                pre()
            a(f"{label}:")
            for l in loads(bases[0]): a(l)
            a("s_waitcnt vmcnt(0)")
            check(range(bases[0], bases[0] + nreg), f"{label}_A")
            a("s_sub_u32 s88, s88, 1")
            a(f"s_cbranch_scc0 {label}")
            a(f"{label}_A:")
            use(bases[0])
            return
        a(f"s_mov_b32 s88, {SPIN}")
        for l in loads(bases[0]): a(l)
        if stag: a(f"s_sleep {stag}")
        if pre: pre()
        a(f"{label}:")
        for l in loads(bases[1]): a(l)
        a(f"s_waitcnt vmcnt({n})")
        check(range(bases[0], bases[0] + nreg), f"{label}_A")
        for l in loads(bases[0]): a(l)
        a(f"s_waitcnt vmcnt({n})")
        check(range(bases[1], bases[1] + nreg), f"{label}_B")
        a("s_sub_u32 s88, s88, 1")
        a(f"s_cbranch_scc0 {label}")
        a(f"{label}_B:")
        use(bases[1])
        a(f"s_branch {label}_done")
        a(f"{label}_A:")
        use(bases[0])
        a(f"{label}_done:")
    def trread(dst, addr, off): a(f"ds_read_b64_tr_b16 v[{dst}:{dst+1}], {addr} offset:{off}")

    a(f"{NAME}:")
    a("s_cmp_ge_u32 s2, 256"); a("s_cbranch_scc1 L_end")
    a("s_memrealtime s[18:19]")
    a("s_load_dwordx16 s[64:79], s[0:1], 0")
    a("s_load_dwordx8 s[80:87], s[0:1], 64")
    if cpf:
        C("pull the kernel's own code towards this die's L2, one KiB per wave")
        a("s_getpc_b64 s[60:61]"); a("s_and_b32 s60, s60, 0xffffff00")
        a("s_lshr_b32 s58, s2, 3"); a("s_lshl_b32 s58, s58, 8"); a("v_add_u32 v60, s58, v0"); a("v_lshlrev_b32 v60, 4, v60")
        a(f"v_cmp_gt_u32 vcc, {cpf*1024}, v60"); a("s_and_saveexec_b64 s[62:63], vcc"); a("s_cbranch_execz L_nocpf")
        a("global_load_dwordx4 v[76:79], v60, s[60:61]")
        a("L_nocpf:")
        a("s_mov_b64 exec, -1")
    C("s3 wave, s4 batch row, s5 head; v1 lane, v74 lane>>4 (g), v75 lane&15 (i)")
    a("v_lshrrev_b32 v1, 6, v0")
    a("v_readfirstlane_b32 s3, v1")
    a("v_and_b32 v1, 63, v0")
    a("s_lshr_b32 s4, s2, 5"); a("s_and_b32 s5, s2, 31")
    if hmap:
        C("head = bits 0..4 of the workgroup id, reordered: neighbours in memory are spread over the dies as the HBM likes it best")
        a("s_mov_b32 s5, 0")
        for k, pbit in enumerate(hmap):
            a(f"s_bfe_u32 s58, s2, {0x10000 + k:#x}"); a(f"s_lshl_b32 s58, s58, {pbit}"); a("s_or_b32 s5, s5, s58")
    a("v_lshrrev_b32 v74, 4, v1"); a("v_and_b32 v75, 15, v1")
    a("v_lshlrev_b32 v48, 4, v1")
    if rw is None: a("s_lshl_b32 s58, s3, 12")
    else: a(f"s_lshr_b32 s58, s2, {rw}"); a("s_add_u32 s58, s58, s3"); a("s_and_b32 s58, s58, 3"); a("s_lshl_b32 s58, s58, 12")
    a("v_add_u32 v2, s58, v48")
    if rlo is None:
        for k in range(1, 8): a(f"v_add_u32 v{2+k}, {k*16384}, v2")
    else:
        a(f"s_lshr_b32 s58, s2, {rlo}"); a("s_lshl_b32 s58, s58, 14"); a("v_add_u32 v2, s58, v2")
        for k in range(7, -1, -1):
            if k: a(f"v_add_u32 v{2+k}, {k*16384}, v2")
            a(f"v_and_b32 v{2+k}, 0x1ffff, v{2+k}")
    a("s_lshl_b32 s58, s3, 8"); a("v_lshlrev_b32 v49, 3, v75"); a("v_lshl_add_u32 v49, v74, 1, v49"); a("v_add_u32 v49, s58, v49")
    a("v_lshrrev_b32 v51, 1, v74")
    C("wq lane offset v58 = (128w+g)*8192 + i*16 ; wo lane offset v59 = g*1024 + w*256 + i*16")
    a("s_lshl_b32 s58, s3, 20"); a("v_lshlrev_b32 v58, 13, v74"); a("v_lshl_add_u32 v58, v75, 4, v58"); a("v_add_u32 v58, s58, v58")
    a("s_lshl_b32 s58, s3, 8"); a("v_lshlrev_b32 v59, 10, v74"); a("v_lshl_add_u32 v59, v75, 4, v59"); a("v_add_u32 v59, s58, v59")
    a("s_lshl_b32 s57, s4, 10"); a("s_lshl_b32 s58, s5, 8"); a("s_lshl_b32 s59, s4, 5"); a("s_add_u32 s59, s59, s5"); a("s_lshl_b32 s59, s59, 20")
    a("s_sub_u32 s92, 0x400000, s58")
    a("s_mov_b32 s54, 0")
    a("s_waitcnt lgkmcnt(0)")
    if stamps: a("v_mov_b32 v73, 0"); a("v_writelane_b32 v73, s18, 0")
    kiss = 0
    def kload():
        nonlocal kiss
        sload(kiss - kbase); vm.append(f"k{kiss}"); kiss += 1
    kbase = 0
    stamp(16)
    srd(8, 66, 67, 0x100000, "s59")
    for j in range(k0): kload()
    srd(28, 64, 65, 8192)
    a("buffer_load_dwordx4 v[52:55], v48, s[28:31], s57 offen"); vm.append("x")
    a("buffer_load_ushort v56, v49, s[28:31], s57 offen"); vm.append("xc0")
    a("buffer_load_ushort v57, v49, s[28:31], s57 offen offset:128"); vm.append("xc1")
    srd(20, 70, 71, "s92", "s58")
    wiss = 0
    def wqload():
        nonlocal wiss
        a(f"s_mov_b32 s58, {wiss*32768}")
        a(f"buffer_load_dwordx4 a[{4*wiss}:{4*wiss+3}], v58, s[20:23], s58 offen {wpol}"); vm.append(f"wq{wiss}"); wiss += 1
    for j in range(n1):
        if j: kload()
        for x in range(nw): wqload()
    stamp(17)
    a("s_add_u32 s16, s68, s59"); a("s_addc_u32 s17, s69, 0")
    a("s_mov_b32 s12, s8"); a("s_mov_b32 s13, s9"); a("s_mov_b32 s14, 0x100000"); a("s_mov_b32 s15, 0x20000")
    a("s_lshl_b32 s58, s5, 17"); srd(24, 72, 73, 0x20000, "s58")
    def setup_late():
        a("v_lshrrev_b32 v77, 1, v74"); a("v_lshlrev_b32 v78, 4, v1")
        srd(32, 86, 87, WS_SIZE); srd(36, 82, 83, 8192)
        srd(40, 76, 77, 512*3584); srd(44, 78, 79, 512*3584)
        C("role s7 / index s89: 1 gate+up tiles (wg<56), 2 reducer (64<=wg<128), 3 output slice (wg>=224), 0 none")
        a("s_and_b32 s58, s2, 7"); a("s_lshr_b32 s92, s2, 3")
        a("s_mul_i32 s89, s58, 7"); a("s_add_u32 s89, s89, s92")
        a("s_cmp_lt_u32 s2, 56"); a("s_cselect_b32 s7, 1, 0")
        a("s_lshl_b32 s58, s58, 2"); a("s_add_u32 s58, s58, s92"); a("s_sub_u32 s58, s58, 28")
        a("s_cmp_ge_u32 s2, 224"); a("s_cselect_b32 s89, s58, s89"); a("s_cselect_b32 s7, 3, s7")
        a("s_sub_u32 s58, s2, 64"); a("s_cmp_lt_u32 s58, 64"); a("s_cselect_b32 s89, s58, s89"); a("s_cselect_b32 s7, 2, s7")
        a("s_lshl_b32 s6, s3, 2"); a("s_add_u32 s6, s6, s7")
        C("P store offset v68 = ((4w + (i>>2))*4 + (b>>1))*8192 + (2h + (b&1))*128 + (i&3)*32 + g*16")
        a("v_lshrrev_b32 v68, 2, v75"); a("v_lshlrev_b32 v68, 15, v68"); a("v_lshl_add_u32 v68, v74, 4, v68")
        a("v_and_b32 v60, 3, v75"); a("v_lshl_add_u32 v68, v60, 5, v68")
        a("s_lshl_b32 s58, s3, 17"); a("s_lshr_b32 s92, s4, 1"); a("s_lshl_b32 s92, s92, 13"); a("s_add_u32 s58, s58, s92")
        a("s_lshl_b32 s92, s5, 8"); a("s_add_u32 s58, s58, s92")
        a("s_and_b32 s92, s4, 1"); a("s_lshl_b32 s92, s92, 7"); a("s_add_u32 s58, s58, s92"); a("v_add_u32 v68, s58, v68")
        C("H store offset v69 = H + rho*128 + i*8 + (g>>1)*4 ; x offset v76 = (2(rho&3) + (i>>3))*1024 + (rho>>2)*64 + (i&7)*8 + (g>>1)*4")
        a("v_lshlrev_b32 v69, 3, v75"); a("v_lshl_add_u32 v69, v77, 2, v69")
        a("v_lshrrev_b32 v76, 3, v75"); a("v_lshlrev_b32 v76, 10, v76"); a("v_and_b32 v60, 7, v75"); a("v_lshl_add_u32 v76, v60, 3, v76")
        a("v_lshl_add_u32 v76, v77, 2, v76")
        a("s_and_b32 s58, s89, 3"); a("s_lshl_b32 s58, s58, 11"); a("s_lshr_b32 s92, s89, 2"); a("s_lshl_b32 s92, s92, 6"); a("s_add_u32 s58, s58, s92")
        a("v_add_u32 v76, s58, v76")
        a("s_lshl_b32 s58, s89, 7"); a(f"s_add_u32 s58, s58, {WS_H}"); a("v_add_u32 v69, s58, v69")
        a("buffer_load_dword v71, v76, s[28:31], 0 offen"); vm.append("xr")
        C("G store offset v70 = G + (4*s89 + w)*128 + i*16 + g*8")
        a("v_lshlrev_b32 v70, 4, v75"); a("v_lshl_add_u32 v70, v74, 3, v70")
        a("s_lshl_b32 s58, s89, 2"); a("s_add_u32 s58, s58, s3"); a("s_lshl_b32 s58, s58, 7"); a(f"s_add_u32 s58, s58, {WS_G}"); a("v_add_u32 v70, s58, v70")
        C("wave 0 of the reducers marks every hand-off line empty (all ones): own P lines, own H line, four G lines")
        a("s_cmp_eq_u32 s6, 2"); a("s_cbranch_scc0 L_noclr")
        for r in range(4): a(f"v_mov_b32 v{60+r}, -1")
        a("s_lshl_b32 s58, s89, 13"); a("s_add_u32 s92, s58, 4096")
        for u in range(8): a(f"buffer_store_dwordx4 v[60:63], v78, s[32:35], {'s58' if u < 4 else 's92'} offen offset:{(u&3)*1024} sc1")
        a("s_lshl_b32 s58, s89, 9"); a(f"s_add_u32 s58, s58, {WS_G}"); a("s_mov_b32 exec_hi, 0")
        a("buffer_store_dwordx4 v[60:63], v78, s[32:35], s58 offen sc1")
        a("s_lshl_b32 s58, s89, 7"); a(f"s_add_u32 s58, s58, {WS_H}"); a("s_mov_b32 exec_lo, 0xff")
        a("buffer_store_dwordx4 v[60:63], v78, s[32:35], s58 offen sc1")
        a("s_mov_b64 exec, -1")
        a("L_noclr:")
    if not late:
        srd(32, 86, 87, WS_SIZE); srd(36, 82, 83, 8192)
        srd(40, 76, 77, 512*3584); srd(44, 78, 79, 512*3584)
        C("role s7 / index s89: 1 gate+up tiles (wg<56), 2 reducer (64<=wg<128), 3 output slice (wg>=224), 0 none")
        a("s_and_b32 s58, s2, 7"); a("s_lshr_b32 s92, s2, 3")
        a("s_mul_i32 s89, s58, 7"); a("s_add_u32 s89, s89, s92")
        a("s_cmp_lt_u32 s2, 56"); a("s_cselect_b32 s7, 1, 0")
        a("s_lshl_b32 s58, s58, 2"); a("s_add_u32 s58, s58, s92"); a("s_sub_u32 s58, s58, 28")
        a("s_cmp_ge_u32 s2, 224"); a("s_cselect_b32 s89, s58, s89"); a("s_cselect_b32 s7, 3, s7")
        a("s_sub_u32 s58, s2, 64"); a("s_cmp_lt_u32 s58, 64"); a("s_cselect_b32 s89, s58, s89"); a("s_cselect_b32 s7, 2, s7")
        a("s_lshl_b32 s6, s3, 2"); a("s_add_u32 s6, s6, s7")
        C("P store offset v68 = ((4w + (i>>2))*4 + (b>>1))*8192 + (2h + (b&1))*128 + (i&3)*32 + g*16")
        a("v_lshrrev_b32 v68, 2, v75"); a("v_lshlrev_b32 v68, 15, v68"); a("v_lshl_add_u32 v68, v74, 4, v68")
        a("v_and_b32 v60, 3, v75"); a("v_lshl_add_u32 v68, v60, 5, v68")
        a("s_lshl_b32 s58, s3, 17"); a("s_lshr_b32 s92, s4, 1"); a("s_lshl_b32 s92, s92, 13"); a("s_add_u32 s58, s58, s92")
        a("s_lshl_b32 s92, s5, 8"); a("s_add_u32 s58, s58, s92")
        a("s_and_b32 s92, s4, 1"); a("s_lshl_b32 s92, s92, 7"); a("s_add_u32 s58, s58, s92"); a("v_add_u32 v68, s58, v68")
        C("H store offset v69 = H + rho*128 + i*8 + (g>>1)*4 ; x offset v50 = (2(rho&3) + (i>>3))*1024 + (rho>>2)*64 + (i&7)*8 + (g>>1)*4")
        a("v_lshlrev_b32 v69, 3, v75"); a("v_lshl_add_u32 v69, v51, 2, v69")
        a("v_lshrrev_b32 v50, 3, v75"); a("v_lshlrev_b32 v50, 10, v50"); a("v_and_b32 v60, 7, v75"); a("v_lshl_add_u32 v50, v60, 3, v50")
        a("v_lshl_add_u32 v50, v51, 2, v50")
        a("s_and_b32 s58, s89, 3"); a("s_lshl_b32 s58, s58, 11"); a("s_lshr_b32 s92, s89, 2"); a("s_lshl_b32 s92, s92, 6"); a("s_add_u32 s58, s58, s92")
        a("v_add_u32 v50, s58, v50")
        a("s_lshl_b32 s58, s89, 7"); a(f"s_add_u32 s58, s58, {WS_H}"); a("v_add_u32 v69, s58, v69")
        a("buffer_load_dword v71, v50, s[28:31], 0 offen"); vm.append("xr")
        C("G store offset v70 = G + (4*s89 + w)*128 + i*16 + g*8")
        a("v_lshlrev_b32 v70, 4, v75"); a("v_lshl_add_u32 v70, v74, 3, v70")
        a("s_lshl_b32 s58, s89, 2"); a("s_add_u32 s58, s58, s3"); a("s_lshl_b32 s58, s58, 7"); a(f"s_add_u32 s58, s58, {WS_G}"); a("v_add_u32 v70, s58, v70")
        C("the reducers mark every hand-off line empty (all ones): own P lines, own H line, four G lines")
        a("s_cmp_eq_u32 s7, 2"); a("s_cbranch_scc0 L_noclr")
        for r in range(4): a(f"v_mov_b32 v{60+r}, -1")
        a("s_lshl_b32 s58, s89, 13"); a("s_lshl_b32 s92, s3, 11"); a("s_add_u32 s58, s58, s92")
        a("buffer_store_dwordx4 v[60:63], v48, s[32:35], s58 offen sc1")
        a("buffer_store_dwordx4 v[60:63], v48, s[32:35], s58 offen offset:1024 sc1")
        a("s_mov_b64 exec, 0x00ff00ff")
        a("buffer_store_dwordx2 v[60:61], v70, s[32:35], 0 offen sc1")
        a("s_cmp_eq_u32 s3, 0"); a("s_cbranch_scc0 L_noclr")
        a("s_mov_b32 exec_lo, 0xffff"); a("s_mov_b32 exec_hi, 0xffff")
        a("buffer_store_dword v60, v69, s[32:35], 0 offen sc1")
        a("L_noclr:")
        a("s_mov_b64 exec, -1")
    for j in range(nA): kload()
    stamp(1)
    a("s_mov_b32 s60, 0xcccccccc"); a("s_mov_b32 s61, 0xcccccccc"); a("s_mov_b32 s62, 0xaaaaaaaa"); a("s_mov_b32 s63, 0xaaaaaaaa")
    a(f"s_mov_b32 s90, {f32(128 ** -0.5)}"); a(f"s_mov_b32 s91, {f32(1.4426950408889634)}")
    C("selector masks v14..17: lane (g,m): m<8 and m>>1==r -> m&1 ? 0xffff0000 : 0xffff")
    a("v_and_b32 v60, 1, v75"); a("v_lshlrev_b32 v60, 4, v60"); a("v_mov_b32 v61, 0xffff"); a("v_lshlrev_b32 v60, v60, v61")
    a("v_lshrrev_b32 v61, 1, v75")
    for r in range(4):
        a(f"v_cmp_eq_u32 vcc, {r}, v61"); a(f"v_cndmask_b32 v{14+r}, 0, v60, vcc")
    C("---- LayerNorm of x[b]")
    vwait("x")
    stamp(18)
    for j in range(nB): kload()
    for k in range(4):
        a(f"v_lshlrev_b32 v{76+2*k}, 16, v{52+k}"); a(f"v_and_b32 v{77+2*k}, 0xffff0000, v{52+k}")
    a("v_add_f32 v84, v76, v77")
    for k in range(2, 8): a(f"v_add_f32 v84, v84, v{76+k}")
    allred("v_add_f32", "v84", "v85")
    a(f"v_mul_f32 v84, {f32(1/512)}, v84")
    for k in range(8): a(f"v_sub_f32 v{76+k}, v{76+k}, v84")
    a("v_mul_f32 v86, v76, v76")
    for k in range(1, 8): a(f"v_fmac_f32 v86, v{76+k}, v{76+k}")
    allred("v_add_f32", "v86", "v85")
    a(f"v_mul_f32 v86, {f32(1/512)}, v86")
    bf16r("v84"); bf16r("v86")
    a(f"v_add_f32 v86, {f32(1e-5)}, v86"); bf16r("v86")
    a("v_sqrt_f32 v86, v86"); bf16r("v86"); a("v_rcp_f32 v86, v86")
    vwait("xc1")
    for k in range(2):
        a(f"v_lshlrev_b32 v{56+k}, 16, v{56+k}"); a(f"v_sub_f32 v{56+k}, v{56+k}, v84"); bf16r(f"v{56+k}")
        a(f"v_mul_f32 v{56+k}, v{56+k}, v86"); a(f"v_cvt_pk_bf16_f32 v{66+k}, v{56+k}, v{56+k}")
    stamp(2)
    C("---- q = xn @ wq[:, head], 128 rows per wave")
    masks(0, "v66", 0)
    for t in range(32):
        vwait(f"wq{t}")
        if t in (0, 13): stamp(19 + (t > 0))
        mfma(28, mop(t), f"a[{4*t}:{4*t+3}]", t == 0)
        if wiss < 32: wqload()
        if int((t + 1) / kq) > int(t / kq) and kiss < NB: kload()
        if t < 31: masks(t + 1, "v66" if t + 1 < 16 else "v67", (t + 1) & 15)
    for j in range(nbar):
        if kiss < NB: kload()
    a("v_lshlrev_b32 v27, 5, v75"); a("v_lshl_add_u32 v26, v74, 4, v27"); a("s_lshl_b32 s58, s3, 9"); a("v_add_u32 v26, s58, v26")
    a("s_mov_b32 exec_hi, 0")
    a(f"ds_write_b128 v26, v[28:31] offset:{L_QP}")
    a("s_mov_b64 exec, -1")
    a("s_waitcnt lgkmcnt(0)"); a("s_barrier")
    for w in range(4):
        for hh in range(2): a(f"ds_read_b128 v[{76+8*w+4*hh}:{79+8*w+4*hh}], v27 offset:{L_QP+512*w+16*hh}")
    a("s_waitcnt lgkmcnt(0)")
    for k in range(8):
        a(f"v_add_f32 v{76+k}, v{76+k}, v{84+k}"); a(f"v_add_f32 v{92+k}, v{92+k}, v{100+k}")
    for k in range(8): a(f"v_add_f32 v{76+k}, v{76+k}, v{92+k}")
    for k in range(4): a(f"v_cvt_pk_bf16_f32 v{10+k}, v{76+2*k}, v{77+2*k}")
    a("v_lshlrev_b32 v27, 4, v75"); a("v_lshl_add_u32 v27, v74, 2, v27")
    a("v_mov_b32 v64, 0xff800000"); a("v_mov_b32 v65, 0")
    stamp(3)

    def kconsume(i):
        t = i & 15
        x = f"v{48 + (t & 1)}"
        base = RING + 4 * i
        a(f"v_dot2_f32_bf16 {x}, v{base}, v10, 0")
        for r in range(1, 4): a(f"v_dot2_f32_bf16 {x}, v{base+r}, v{10+r}, {x}")
        if t & 1:
            d = f"v{50 + ((t >> 1) & 1)}"
            a(f"v_add_f32_dpp {d}, v48, v48 row_ror:8 row_mask:0xf bank_mask:0x3")
            a(f"v_add_f32_dpp {d}, v49, v49 row_ror:8 row_mask:0xf bank_mask:0xc")
        if t & 3 == 3:
            d = f"v{52 + ((t >> 2) & 1)}"
            a(f"v_add_f32_dpp {d}, v50, v50 row_half_mirror row_mask:0xf bank_mask:0x5")
            a(f"v_add_f32_dpp {d}, v51, v51 row_half_mirror row_mask:0xf bank_mask:0xa")
        if t & 7 == 7:
            d = f"v{54 + ((t >> 3) & 1)}"
            a("v_add_f32_dpp v52, v52, v52 quad_perm:[2,3,0,1] row_mask:0xf bank_mask:0xf")
            a("v_add_f32_dpp v53, v53, v53 quad_perm:[2,3,0,1] row_mask:0xf bank_mask:0xf")
            a(f"v_cndmask_b32 {d}, v52, v53, s[60:61]")
        if t == 15:
            s = f"v{46 + (i >> 4)}"
            a("v_add_f32_dpp v54, v54, v54 quad_perm:[1,0,3,2] row_mask:0xf bank_mask:0xf")
            a("v_add_f32_dpp v55, v55, v55 quad_perm:[1,0,3,2] row_mask:0xf bank_mask:0xf")
            a(f"v_cndmask_b32 {s}, v54, v55, s[62:63]")
            bf16r(s); a(f"v_mul_f32 {s}, s90, {s}"); bf16r(s)
            a(f"v_max_f32 v64, v64, {s}")
    C("---- lap 0: the keys that arrived while q was formed")
    a(f"s_mov_b32 s55, {NB*4096}")
    left = NB + D - kiss
    early = list(early)
    while early and early[-1] >= NB - (left - len(early)): early.pop()
    sched = early + list(range(NB - (left - len(early)), NB))
    assert len(set(sched)) == left, (sched, left)
    for i in range(NB):
        vwait(f"k{i}")
        if i in sched:
            assert kiss - NB < i
            kload()
        kconsume(i)
    stamp(4)
    C("---- the next laps also bring in this head's rows of wo")
    wo = 0
    if wov: nwl = 0; wo = 32
    for lap in range(1, nwl + 1):
        a("s_mov_b32 s54, s55"); a(f"s_add_u32 s55, s55, {NB*4096}")
        for k in range(2 * lap): a(f"v_mov_b32 v{46-2*lap+k}, v{48-2*lap+k}")
        kbase = NB * lap
        if lap == 1:
            for j in range((D1 or D) - D): kload()
        for i in range(NB):
            vwait(f"k{NB*lap+i}")
            if kiss < (nwl + 1) * NB + D: kload()
            while wo < 32 and (i % nwl == 0 if wend == 32 else wo * wend < (i + 1) * 32) and (wend < 32 or wo * nwl <= NB * (lap - 1) + i):
                a(f"s_mov_b32 s58, {wo*4096}")
                a(f"buffer_load_dwordx4 a[{4*wo}:{4*wo+3}], v59, s[24:27], s58 offen {wpol}"); vm.append(f"wo{wo}"); wo += 1
            if mpf == 1 and lap == 1:
                if i == 0:
                    srd(20, 80, 81, 1792*1024)
                    a("s_lshl_b32 s96, s2, 2"); a("s_add_u32 s96, s96, s3"); a("s_lshl_b32 s96, s96, 11"); a("v_lshlrev_b32 v62, 4, v1")
                if i % 5 == 2 and i // 5 < 6:
                    k = i // 5
                    a(f"buffer_load_dwordx4 v[76:79], v62, s[{(40, 44, 20)[k >> 1]}:{(43, 47, 23)[k >> 1]}], s96 offen offset:{(k & 1) * 1024}"); vm.append(f"pf{k}")
            kconsume(i)
            if late and lap == 1 and i == 4: setup_late()
    assert wo == 32

    leads = ([D - 1] if ahead else []) + [D, D + hi]
    def decide(name, k):
        a("s_waitcnt lgkmcnt(0)")
        a("s_sub_u32 s58, s52, s48"); a("s_lshl_b32 s58, s58, 8"); a("s_sub_u32 s58, s58, s49"); a("s_add_u32 s49, s49, s57")
        if two:
            a("s_sub_u32 s101, s58, s24"); a("s_mov_b32 s24, s100")
            a(f"s_cmp_gt_i32 s101, {jump*256}"); a(f"s_cselect_b32 s101, {shift*256}, 0"); a("s_cselect_b32 s24, 0x20000000, s24")
            a("s_add_u32 s49, s49, s101"); a("s_add_u32 s25, s25, s101"); a("s_sub_u32 s58, s58, s101"); a("s_mov_b32 s100, s58")
            a("s_cmp_lg_u32 s50, 0"); a("s_cselect_b32 s58, -1, s58")
        elif jump:
            C("behind the deadline -> one more load in flight; a sudden large loss is a stall of the whole chip and moves the deadline")
            a("s_sub_u32 s101, s58, s100"); a(f"s_cmp_gt_i32 s101, {jump*256}"); a(f"s_cselect_b32 s101, {shift*256 if shift else 's101'}, 0")
            a("s_add_u32 s49, s49, s101"); a("s_sub_u32 s58, s58, s101"); a("s_mov_b32 s100, s58")
        a("s_sub_u32 s19, s19, 1"); a("s_cmp_ge_i32 s19, 0"); a("s_cselect_b32 s58, 1, s58")
        a("s_cmp_gt_i32 s58, 0"); a(f"s_cbranch_scc1 {name}_{k}_{D+hi}")
        if ahead:
            a("s_cmp_lt_i32 s58, s93"); a(f"s_cbranch_scc1 {name}_{k}_{D-1}")
    def segment(name, k, DD, consume):
        tag = f"{name}_{k}_{DD}"; i0 = 16 * k
        a(f"{tag}:")
        for j in range(leads[0], DD):
            a(f"s_cmp_gt_u32 s51, {j}"); a(f"s_cbranch_scc1 {tag}_i{j}")
            sload(i0 + j)
            a(f"{tag}_i{j}:")
        nskip = leads[-1] - DD
        for i in range(i0, i0 + 16):
            a(f"s_waitcnt vmcnt({DD - 1})")
            skip = i - i0 < nskip
            if skip: a(f"s_cmp_gt_u32 s51, {DD + i - i0}"); a(f"s_cbranch_scc1 {tag}_s{i}")
            sload(i + DD)
            if skip: a(f"{tag}_s{i}:")
            if i - i0 == nskip: a(f"s_mov_b32 s51, {DD}")
            if i - i0 == 15: a("s_memrealtime s[52:53]")
            consume(i)
    def cal_events(base):
        lo, up = (nwl + 1, 8) if base == 0 else (8, 16)
        if lo <= cal < up:
            a("s_waitcnt lgkmcnt(0)"); a(f"s_cmp_eq_u32 s56, {cal-base}"); a("s_cselect_b32 s88, s52, s88")
            if jump: a(f"s_cmp_eq_u32 s56, {cal+1-base}"); a("s_cselect_b32 s92, s52, s92")
        if lo <= cal + 2 < up and two:
            a(f"s_cmp_eq_u32 s56, {cal+2-base}"); a("s_cbranch_scc0 L_noown")
            a("s_mov_b32 s48, s52"); a("s_mov_b32 s49, 0"); a("s_sub_u32 s57, s52, s88"); a("s_lshl_b32 s57, s57, 6")
            a("s_mov_b32 s25, 0"); a("s_mov_b32 s24, 0x20000000"); a("s_mov_b32 s100, 0x20000000")
            a("L_noown:")
        if lo <= cal + 2 < up:
            a("s_lshl_b32 s58, s6, 4"); a("s_add_u32 s58, s58, s56")
            a(f"s_cmp_eq_u32 s58, {32+cal+2-base}"); a("s_cbranch_scc0 L_norep")
            a("s_waitcnt lgkmcnt(0)")
            a("s_sub_u32 s58, s52, s88")
            if jump:
                a("s_sub_u32 s88, s92, s88"); a("s_sub_u32 s92, s52, s92"); a("s_min_u32 s88, s88, s92"); a("s_lshl_b32 s88, s88, 1")
                a("s_add_u32 s92, s88, 50"); a("s_cmp_gt_u32 s58, s92"); a("s_cselect_b32 s58, s88, s58")
            a("s_min_u32 s58, s58, 0x7fff"); a("s_max_u32 s58, s58, 1"); a("s_pack_ll_b32_b16 s58, s52, s58")
            a("v_mov_b32 v61, s58"); a("s_lshl_b32 s58, s89, 2"); a("v_mov_b32 v60, s58"); a("s_mov_b64 exec, 1")
            a("global_store_dword v60, v61, s[84:85] sc1")
            a("s_mov_b64 exec, -1")
            a("L_norep:")
        if lo <= cal + 2 < up and pre:
            a("s_and_b32 s58, s7, 1"); a("s_lshl_b32 s58, s58, 4"); a("s_add_u32 s58, s58, s56")
            a(f"s_cmp_eq_u32 s58, {16+cal+2-base}"); a(f"s_cselect_b32 s19, {pre}, s19")
        x = "K" if base == 0 else "V"
        a("s_cmp_lg_u32 s50, 0"); a(f"s_cbranch_scc0 L_nocal{x}")
        if cal + 3 - base > max(lo - base, 0):
            a(f"s_cmp_ge_u32 s56, {cal+3-base}"); a(f"s_cbranch_scc0 L_nocal{x}")
        a("v_cmp_eq_u32 vcc, 0, v72"); a(f"s_cbranch_vccz L_cal{x}")
        a("v_lshlrev_b32 v60, 2, v1"); a("global_load_dword v72, v60, s[84:85] sc1")
        a(f"s_branch L_nocal{x}")
        a(f"L_cal{x}:")
        a("s_mov_b32 s50, 0")
        if ctl:
            a("s_waitcnt lgkmcnt(0)")
            if two: a("s_sub_u32 s59, s52, s48"); a("s_lshl_b32 s59, s59, 8"); a("s_sub_u32 s59, s59, s49")
            else: a("s_mov_b32 s100, 0x20000000")
            a("s_mov_b32 s48, s52")
            a("v_bfe_u32 v60, v72, 16, 15"); a("v_subrev_u32 v61, s52, v72"); a("v_bfe_i32 v61, v61, 0, 16")
            allred("v_add_u32", "v60", "v62"); allred("v_add_u32", "v61", "v62")
            a("v_readfirstlane_b32 s57, v60"); a("v_readfirstlane_b32 s49, v61")
            if eps > 0: a(f"s_lshr_b32 s58, s57, {eps}"); a("s_add_u32 s57, s57, s58")
            if eps < 0: a(f"s_lshr_b32 s58, s57, {-eps}"); a("s_sub_u32 s57, s57, s58")
            a(f"s_add_u32 s58, s56, {base-cal-2}"); a("s_lshl_b32 s58, s58, 1"); a("s_mul_i32 s58, s58, s57")
            a("s_lshl_b32 s49, s49, 2"); a("s_add_u32 s49, s49, s58")
            a(f"s_mov_b32 s58, {slack*256}")
            a("s_cmp_eq_u32 s7, 1"); a(f"s_cselect_b32 s58, {(slack-head[0])*256}, s58")
            a("s_cmp_eq_u32 s7, 3"); a(f"s_cselect_b32 s58, {(slack-head[1])*256}, s58")
            a("s_add_u32 s49, s49, s58")
            if two:
                a("s_add_u32 s49, s49, s25")
                a("s_add_u32 s59, s59, s49"); a("s_sub_u32 s24, s24, s59"); a("s_sub_u32 s100, s100, s59")
            if ahead: a(f"s_mov_b32 s93, {-ahead*256}")
        a(f"L_nocal{x}:")
    def laploop(name, head_code, consume, fin=0):
        others = [x for x in leads if x != D]
        a(".p2align 3")
        a(f"{name}:")
        head_code()
        if wov and fin: a("s_cmp_eq_u32 s56, s96"); a(f"s_cbranch_scc1 {name}_wo")
        decide(name, 0)
        segment(name, 0, D, consume)
        a(f"{name}_mid:")
        if fin: a("s_cmp_eq_u32 s56, 7"); a(f"s_cbranch_scc1 {name}_f")
        decide(name, 1)
        segment(name, 1, D, consume)
        a(f"{name}_nxt:")
        a("s_add_u32 s56, s56, 1"); a("s_cmp_lt_u32 s56, 8"); a(f"s_cbranch_scc1 {name}")
        a(f"s_branch {name}_end")
        for x in others:
            segment(name, 0, x, consume); a(f"s_branch {name}_mid")
            segment(name, 1, x, consume); a(f"s_branch {name}_nxt")
        if wov and fin:
            DD = D + wod
            a(f"{name}_wo:")
            a("s_add_u32 s49, s49, s57"); a("s_add_u32 s49, s49, s57")
            for j in range(leads[0], DD):
                a(f"s_cmp_gt_u32 s51, {j}"); a(f"s_cbranch_scc1 {name}_wi{j}")
                sload(j)
                a(f"{name}_wi{j}:")
            nskip = leads[-1] - DD
            for i in range(NB):
                a(f"s_waitcnt vmcnt({DD - 1 + min(i, DD)})")
                skip = i < nskip
                if skip: a(f"s_cmp_gt_u32 s51, {DD + i}"); a(f"s_cbranch_scc1 {name}_ws{i}")
                sload(i + DD)
                if skip: a(f"{name}_ws{i}:")
                if i == nskip: a(f"s_mov_b32 s51, {DD}")
                a(f"s_mov_b32 s58, {i*4096}")
                a(f"buffer_load_dwordx4 a[{4*i}:{4*i+3}], v59, s[24:27], s58 offen {wpol}")
                if i == NB - 1: a("s_memrealtime s[52:53]")
                consume(i)
            a(f"s_branch {name}_nxt")
        if fin:
            a(f"{name}_f:")
            for j in range(leads[0], leads[-1]):
                a(f"s_cmp_gt_u32 s51, {j}"); a(f"s_cbranch_scc1 {name}_f{j}")
                sload(16 + j)
                a(f"{name}_f{j}:")
            nx = 16 + leads[-1]
            while nx < min(16 + fin, NB): sload(nx); nx += 1
            if prescale:
                C("every wave has published its maximum and sum: this wave's weight v60 = exp2(m_w - m) / L")
                a("v_mov_b32 v48, 0"); a("s_waitcnt lgkmcnt(0)"); a("s_barrier")
                a(f"ds_read_b128 v[76:79], v48 offset:{L_ML}"); a(f"ds_read_b128 v[80:83], v48 offset:{L_ML+16}")
                a("s_waitcnt lgkmcnt(0)")
                a("v_min_f32 v48, v76, v78"); a("v_min3_f32 v48, v48, v80, v82")
                for w in range(4): a(f"v_sub_f32 v{76+2*w}, v48, v{76+2*w}")
                a("v_sub_f32 v60, v48, v64")
                for w in range(4): a(f"v_exp_f32 v{76+2*w}, v{76+2*w}")
                a("v_exp_f32 v60, v60")
                a("v_mul_f32 v49, v76, v77")
                for w in range(1, 4): a(f"v_fmac_f32 v49, v{76+2*w}, v{77+2*w}")
                a("v_rcp_f32 v49, v49")
                a("v_mul_f32 v60, v60, v49")
                if slide: a("v_accvgpr_mov_b32 a128, a0"); a("v_accvgpr_mov_b32 a129, a1")
            npf = 0
            for i in range(16, NB):
                a(f"s_waitcnt vmcnt({nx - 1 - i + npf})")
                if nx < NB: sload(nx); nx += 1
                elif mpf >= 2 and i >= pf0:
                    for x in range(mpf - 1):
                        if npf < pfn:
                            k = npf
                            pfload(k); npf += 1
                consume(i)
        a(f"{name}_end:")
    if wov:
        a(f"s_mul_i32 s96, s5, {wov}"); a("s_lshr_b32 s96, s96, 5")
    C("s48 time base, s49 deadline (1/256 ticks), s50 reports seen, s51 depth in use, s[52:53] clock, s57 pace, s19 fixed deep segments")
    a(f"s_mov_b32 s56, {nwl+1}")
    a("s_memrealtime s[52:53]"); a(f"s_mov_b32 s51, {D}"); a("s_mov_b32 s50, 99"); a("s_mov_b32 s57, 0")
    a("s_mov_b32 s48, s18"); a("s_mov_b32 s49, 0x40000000"); a("s_mov_b32 s100, 0x20000000"); a("s_mov_b32 s92, 0"); a("s_mov_b32 s24, 0x20000000"); a("s_mov_b32 s25, 0"); a("s_mov_b32 s88, 0"); a(f"s_mov_b32 s93, {0 if initlow else 0x80000000}"); a("v_mov_b32 v72, 0")
    a("s_cmp_eq_u32 s7, 1"); a(f"s_cselect_b32 s19, {hiu[0]-4}, 0"); a("s_cmp_eq_u32 s7, 3"); a(f"s_cselect_b32 s19, {hiu[1]-4}, s19")
    def khead():
        lapstamp(16)
        a("s_mov_b32 s54, s55"); a(f"s_add_u32 s55, s55, {NB*4096}")
        a("s_cmp_eq_u32 s56, 7")
        a("s_cselect_b32 s12, s16, s12"); a("s_cselect_b32 s13, s17, s13"); a("s_cselect_b32 s55, 0, s55")
        for k in range(14): a(f"v_mov_b32 v{32+k}, v{34+k}")
        cal_events(0)
        if vt:
            a("s_lshl_b32 s58, s3, 4"); a("s_add_u32 s58, s58, s56")
            a(f"s_cmp_eq_u32 s58, {vt}"); a("s_cbranch_scc0 L_novt")
            a("v_mov_b32 v60, 0"); a("s_mov_b64 exec, 1")
            a("global_load_dword v76, v60, s[16:17] nt")
            a("s_mov_b64 exec, -1")
            a("L_novt:")
    laploop("L_k", khead, kconsume)
    stamp(5)
    C("---- maximum of this wave's scores, in log2 units, negated")
    allred("v_max_f32", "v64", "v48")
    a("v_mul_f32 v64, s91, v64"); a("v_sub_f32 v64, 0, v64")
    a("s_mov_b32 s8, s12"); a("s_mov_b32 s9, s13"); a("s_mov_b32 s56, 0")
    for r in range(4): a(f"v_mov_b32 v{28+r}, 0")
    def pfload(k):
        k = pfo[k]
        sr = f"s[{(40, 44, 20)[k >> 1]}:{(43, 47, 23)[k >> 1]}]"
        if xpf: a(f"buffer_load_dwordx4 a[132:135], {'v58' if k < 4 else 'v59'}, {sr}, s{(96 if k < 4 else 98) + (k & 1)} offen")
        else: a(f"buffer_load_dwordx4 a[132:135], v58, {sr}, s96 offen offset:{(k & 1) * 1024}")
    if mpf >= 2:
        C("every wave fetches a share of the FFN weights as its stream ends, so that their users find them in a cache")
        srd(20, 80, 81, 1792*1024)
        if xpf:
            a("s_lshr_b32 s98, s2, 3"); a("s_lshl_b32 s98, s98, 2"); a("s_add_u32 s98, s98, s3")
            a(f"s_mul_i32 s96, s98, {4*3584}"); a(f"s_add_u32 s97, s96, {2*3584}")
            a(f"s_mul_i32 s98, s98, {14*1024}"); a("s_add_u32 s99, s98, 8192")
            a("s_and_b32 s58, s2, 7"); a("s_mul_i32 s92, s58, 448"); a("s_and_b32 s92, s92, 0xff80"); a("s_lshl_b32 s58, s58, 7")
            a("v_lshrrev_b32 v58, 5, v1"); a("v_mul_u32_u24 v58, 3584, v58"); a("v_and_b32 v59, 31, v1"); a("v_lshl_add_u32 v58, v59, 4, v58"); a("v_add_u32 v58, s92, v58")
            a("v_lshrrev_b32 v59, 3, v1"); a("v_lshlrev_b32 v59, 10, v59"); a("v_and_b32 v48, 7, v1"); a("v_lshl_add_u32 v59, v48, 4, v59"); a("v_add_u32 v59, s58, v59")
        else:
            a("s_lshl_b32 s96, s2, 2"); a("s_add_u32 s96, s96, s3"); a("s_lshl_b32 s96, s96, 11"); a("v_lshlrev_b32 v58, 4, v1")
    def vhead():
        lapstamp(24)
        a("s_mov_b32 s54, s55"); a(f"s_add_u32 s55, s55, {NB*4096}")
        for k in range(2):
            a(f"v_fma_f32 v{56+k}, v{32+k}, s91, v64"); a(f"v_exp_f32 v{56+k}, v{56+k}")
            a(f"v_add_f32 v65, v65, v{56+k}"); a(f"v_cvt_pk_bf16_f32 v{66+k}, v{56+k}, v{56+k}")
        for k in range(14): a(f"v_mov_b32 v{32+k}, v{34+k}")
        masks(0, "v66", 0)
        cal_events(8)
        if lasthi:
            a(f"s_cmp_eq_u32 s56, {7 if lasthi == 1 else 6}"); a(f"s_cselect_b32 s19, {1 if lasthi == 1 else 3}, s19")
        if touch:
            C("first touch of the pages the last stages use, so that their translations are at hand (values unused)")
            a(f"s_cmp_eq_u32 s56, {touch}"); a("s_cbranch_scc0 L_notouch")
            a("v_mov_b32 v60, 0"); a("s_mov_b64 exec, 1")
            a(f"s_mov_b32 s58, {WS_G+0x7f00}")
            a("buffer_load_dword v76, v60, s[32:35], s58 offen")
            a("s_and_b32 s58, s7, 1"); a("s_cbranch_scc0 L_notouch1")
            a("buffer_load_dword v76, v60, s[36:39], 0 offen")
            a("buffer_load_dword v76, v60, s[40:43], 0 offen"); a("buffer_load_dword v76, v60, s[44:47], 0 offen")
            a("global_load_dword v76, v60, s[80:81]")
            a("L_notouch1:")
            a("s_mov_b64 exec, -1")
            a("L_notouch:")
        if cpf2:
            a(f"s_cmp_eq_u32 s56, {cpf2}"); a("s_cbranch_scc0 L_nocpf2")
            a("s_getpc_b64 s[60:61]")
            a("L_pc2:")
            a("s_add_u32 s60, s60, L_v_end-L_pc2"); a("s_addc_u32 s61, s61, 0"); a("s_and_b32 s60, s60, 0xffffff80")
            a("s_lshr_b32 s58, s2, 3"); a("s_lshl_b32 s58, s58, 8"); a("v_add_u32 v60, s58, v0"); a("v_lshlrev_b32 v60, 4, v60")
            a("v_cmp_gt_u32 vcc, L_end-L_v_end, v60"); a("s_and_saveexec_b64 s[62:63], vcc"); a("s_cbranch_execz L_nocpf3")
            a("global_load_dwordx4 v[76:79], v60, s[60:61]")
            a("L_nocpf3:")
            a("s_mov_b64 exec, -1")
            a("L_nocpf2:")
        a("s_cmp_eq_u32 s56, 7"); a("s_cbranch_scc0 L_nolast")
        allred("v_add_f32", "v65", "v48")
        a("s_lshl_b32 s58, s3, 3"); a("v_mov_b32 v48, s58"); a("s_mov_b64 exec, 1")
        a(f"ds_write_b64 v48, v[64:65] offset:{L_ML}")
        a("s_mov_b64 exec, -1")
        a("s_cmp_eq_u32 s50, 0"); a("s_cbranch_scc1 L_nolast")
        a(f"s_mov_b32 s88, {SPIN}"); a("v_lshlrev_b32 v60, 2, v1")
        a("L_cnt:")
        a("global_load_dword v72, v60, s[84:85] sc1"); a("s_waitcnt vmcnt(0)")
        a("v_cmp_eq_u32 vcc, 0, v72"); a("s_cbranch_vccz L_nolast")
        a("s_sleep 8"); a("s_sub_u32 s88, s88, 1"); a("s_cbranch_scc0 L_cnt")
        a("L_nolast:")
    def vconsume(i):
        mfma(28, mop(i), ring(i), False)
        if i < NB - 1: masks(i + 1, f"v{66 + ((i + 1) >> 4)}", bitrev((i + 1) & 15))
    if vpol is not None: cur[0] = vpol
    laploop("L_v", vhead, vconsume, fin)
    stamp(6)
    C("---- combine the four waves, project through wo, publish the partial row")
    if prescale:
        for r in range(4): a(f"v_mul_f32 v{28+r}, v{28+r}, v60")
        a("s_mov_b32 exec_hi, 0")
        a(f"ds_write_b128 v26, v[28:31] offset:{L_OP}")
        a("s_mov_b64 exec, -1")
        a("s_waitcnt lgkmcnt(0)"); a("s_barrier")
        for w in range(4): a(f"ds_read2st64_b32 v[{84+2*w}:{85+2*w}], v27 offset0:{L_OP//256+2*w} offset1:{L_OP//256+2*w+1}")
        a("s_waitcnt lgkmcnt(2)")
        for k in range(2): a(f"v_add_f32 v{84+k}, v{84+k}, v{86+k}")
        a("s_waitcnt lgkmcnt(0)")
        for k in range(2): a(f"v_add_f32 v{88+k}, v{88+k}, v{90+k}")
        for k in range(2): a(f"v_add_f32 v{56+k}, v{84+k}, v{88+k}")
        for k in range(2): a(f"v_cvt_pk_bf16_f32 v{66+k}, v{56+k}, v{56+k}")
    else:
        a("v_mov_b32 v48, 0")
        a("s_mov_b32 exec_hi, 0")
        a(f"ds_write_b128 v26, v[28:31] offset:{L_OP}")
        a("s_mov_b64 exec, -1")
        a("s_waitcnt lgkmcnt(0)"); a("s_barrier")
        a(f"ds_read_b128 v[76:79], v48 offset:{L_ML}"); a(f"ds_read_b128 v[80:83], v48 offset:{L_ML+16}")
        for w in range(4): a(f"ds_read2st64_b32 v[{84+2*w}:{85+2*w}], v27 offset0:{L_OP//256+2*w} offset1:{L_OP//256+2*w+1}")
        a("s_waitcnt lgkmcnt(4)")
        a("v_min_f32 v48, v76, v78"); a("v_min3_f32 v48, v48, v80, v82")
        for w in range(4): a(f"v_sub_f32 v{76+2*w}, v48, v{76+2*w}")
        for w in range(4): a(f"v_exp_f32 v{76+2*w}, v{76+2*w}")
        a("v_mul_f32 v49, v76, v77")
        for w in range(1, 4): a(f"v_fmac_f32 v49, v{76+2*w}, v{77+2*w}")
        a("v_rcp_f32 v49, v49")
        a("s_waitcnt lgkmcnt(0)")
        for k in range(2):
            a(f"v_mul_f32 v{56+k}, v76, v{84+k}")
            for w in range(1, 4): a(f"v_fmac_f32 v{56+k}, v{76+2*w}, v{84+2*w+k}")
        for k in range(2):
            a(f"v_mul_f32 v{56+k}, v{56+k}, v49"); a(f"v_cvt_pk_bf16_f32 v{66+k}, v{56+k}, v{56+k}")
    if slide:
        C("product t takes the upper half of row group t and the lower half of group t+1, so a selector pair serves two products")
        def sel(t):
            for r in range(2):
                a(f"v_and_b32_dpp v{128+2*t+r}, v{66 + ((t & 31) >> 4)}, v{14+2*(t&1)+r} row_newbcast:{t & 15} row_mask:0xf bank_mask:0xf")
        sel(0); sel(1); sel(2)
        for t in range(32):
            mfma(28 if t & 1 else 76, f"v[{128+2*t}:{131+2*t}]", f"a[{4*t+2}:{4*t+5}]", t < 2)
            if t + 3 <= 32: sel(t + 3)
        for r in range(4): a(f"v_permlane16_swap_b32 v{76+r}, v{76+r}")
        for r in range(4): a(f"v_add_f32 v{28+r}, v{28+r}, v{76+r}")
    else:
        masks(0, "v66", 0)
        for t in range(32):
            if t < 31: masks(t + 1, "v66" if t + 1 < 16 else "v67", (t + 1) & 15)
            mfma(28, mop(t), f"a[{4*t}:{4*t+3}]", t == 0)
    a("s_mov_b32 exec_hi, 0")
    for r in range(4): a(f"v_min_u32 v{28+r}, -2, v{28+r}")
    a("buffer_store_dwordx4 v[28:31], v68, s[32:35], 0 offen sc1")
    a("s_mov_b64 exec, -1")
    stamp(7)
    if rskip: a("s_cmp_eq_u32 s6, 2"); a("s_cbranch_scc1 L_s2")
    if pfw:
        a("s_and_b32 s58, s7, 1"); a("s_cbranch_scc1 L_nopfw"); a("s_cmp_eq_u32 s6, 2"); a("s_cbranch_scc1 L_nopfw")
        a("s_waitcnt vmcnt(0)")
        a("L_nopfw:")
    if mpf >= 2:
        for k in range(0 if pf0 >= NB else pfn, 6): pfload(k)
    if rskip == 3:
        C("waves 1..3 of a reducer also fetch the share of its wave 0")
        a("s_cmp_eq_u32 s7, 2"); a("s_cbranch_scc0 L_nored")
        a("s_mul_i32 s58, s3, 14336")
        for r in range(96, 100): a(f"s_sub_u32 s{r}, s{r}, s58")
        for w in range(1, 4):
            a(f"s_cmp_eq_u32 s3, {w}"); a(f"s_cbranch_scc0 L_red{w}")
            pfload(2 * w - 2); pfload(2 * w - 1)
            a(f"L_red{w}:")
        a("s_branch L_fin")
        a("L_nored:")
    if not rskip: a("s_cmp_eq_u32 s6, 2"); a("s_cbranch_scc1 L_s2")
    a("s_and_b32 s58, s7, 1"); a("s_cbranch_scc0 L_fin")
    C("---- this workgroup's FFN weights -> LDS: A via s[40:43], B via s[44:47]; s96/s97 source, s98/s99 LDS, s100/s101 steps")
    a("s_cmp_eq_u32 s7, 1"); a("s_cbranch_scc0 L_dmaD")
    a("v_lshrrev_b32 v62, 2, v1"); a("s_movk_i32 s58, 3584"); a("v_mul_u32_u24 v62, s58, v62")
    a("v_and_b32 v63, 3, v1"); a("v_lshl_add_u32 v62, v63, 4, v62")
    a("s_lshl_b32 s58, s89, 6"); a("v_add_u32 v62, s58, v62")
    a(f"s_mul_i32 s96, s3, {128*3584}"); a("s_mov_b32 s97, s96")
    a("s_lshl_b32 s98, s3, 13"); a(f"s_add_u32 s98, s98, {L_W}"); a("s_add_u32 s99, s98, 32768")
    a(f"s_mov_b32 s100, {16*3584}"); a("s_mov_b32 s101, 1024"); a("s_mov_b32 s93, 8")
    a("s_branch L_dma")
    a("L_dmaD:")
    a("v_lshrrev_b32 v62, 1, v1"); a("v_lshlrev_b32 v62, 10, v62"); a("v_and_b32 v63, 1, v1"); a("v_lshl_add_u32 v62, v63, 4, v62")
    a("s_lshl_b32 s58, s89, 5"); a("v_add_u32 v62, s58, v62")
    for d in (40, 44):
        a(f"s_mov_b32 s{d}, s80"); a(f"s_mov_b32 s{d+1}, s81"); a(f"s_mov_b32 s{d+2}, {1792*1024}")
    a(f"s_mul_i32 s96, s3, {448*1024}"); a("s_add_u32 s97, s96, 32768")
    a(f"s_mul_i32 s98, s3, {448*32}"); a(f"s_add_u32 s98, s98, {L_W}"); a("s_add_u32 s99, s98, 1024")
    a("s_mov_b32 s100, 65536"); a("s_mov_b32 s101, 2048"); a("s_mov_b32 s93, 7")
    a("L_dma:")
    a("s_mov_b32 m0, s98"); a("s_sub_u32 s93, s93, 1")
    a(f"buffer_load_dwordx4 v62, s[40:43], s96 offen {fpol} lds")
    a("s_mov_b32 m0, s99"); a("s_add_u32 s96, s96, s100")
    a(f"buffer_load_dwordx4 v62, s[44:47], s97 offen {fpol} lds")
    a("s_add_u32 s97, s97, s100"); a("s_add_u32 s98, s98, s101"); a("s_add_u32 s99, s99, s101")
    a("s_cmp_lg_u32 s93, 0"); a("s_cbranch_scc1 L_dma")
    C("exchange addresses v63 = g*128 + b*16, v26 = w*512 + v63 ; v60 = 16g + r', v61 = c' for the transposing reads")
    a("v_and_b32 v27, 7, v75"); a("v_lshlrev_b32 v63, 4, v27"); a("v_lshl_add_u32 v63, v74, 7, v63")
    a("s_lshl_b32 s58, s3, 9"); a("v_add_u32 v26, s58, v63")
    a("v_lshrrev_b32 v60, 2, v75"); a("v_lshl_add_u32 v60, v74, 4, v60"); a("v_and_b32 v61, 3, v1")
    a("s_cmp_eq_u32 s7, 3"); a("s_cbranch_scc1 L_s4")

    C("---- gate / up: four tiles of 8+8 columns, 128 rows of h per wave; LayerNorm is applied to the sums")
    a("v_lshlrev_b32 v60, 6, v60"); a("v_lshrrev_b32 v49, 1, v61"); a("v_lshl_add_u32 v60, v49, 15, v60")
    a("v_and_b32 v49, 1, v61"); a("v_lshl_add_u32 v60, v49, 3, v60")
    a("s_lshl_b32 s58, s3, 13"); a(f"s_add_u32 s58, s58, {L_W}"); a("v_add_u32 v60, s58, v60")
    for r in range(4): a(f"v_mov_b32 v{112+r}, 0x3f803f80")
    C("h fragment address v62 = (g>>1)*512 + (b>>1)*128 + (b&1)*64 + (g&1)*32 + half*16")
    a("v_lshrrev_b32 v62, 1, v74"); a("v_lshlrev_b32 v62, 9, v62"); a("v_bfe_u32 v49, v75, 1, 2"); a("v_lshl_add_u32 v62, v49, 7, v62")
    a("v_and_b32 v49, 1, v75"); a("v_lshl_add_u32 v62, v49, 6, v62"); a("v_and_b32 v49, 1, v74"); a("v_lshl_add_u32 v62, v49, 5, v62")
    a("v_lshrrev_b32 v49, 3, v75"); a("v_lshl_add_u32 v62, v49, 4, v62")
    a(f"s_mov_b32 s58, {L_DUMP-L_T2}"); a("v_mad_u32_u24 v26, v49, s58, v26")
    a("s_lshl_b32 s58, s3, 11"); a("v_add_u32 v63, s58, v63")
    a("v_lshrrev_b32 v49, 1, v74"); a("v_lshlrev_b32 v49, 2, v49"); a("v_lshlrev_b32 v61, 5, v27"); a("v_add_u32 v49, v49, v61")
    a("s_lshl_b32 s58, s3, 3"); a("v_add_u32 v49, s58, v49")
    a("s_lshl_b32 s59, s3, 11"); a(f"s_add_u32 s59, s59, {WS_H}")
    def colsum():
        a("s_waitcnt lgkmcnt(0)")
        for k in range(4):
            for t in range(4): mfma(224 + 4*t, f"v[{128+16*t+4*k}:{131+16*t+4*k}]", "v[112:115]", k == 0)
        for t in range(4): a(f"ds_write_b128 v26, v[{224+4*t}:{227+4*t}] offset:{L_CS+2048*t}")
    if staged:
        for u in range(2):
            a(f"s_waitcnt vmcnt({8 - 8*u})")
            if u: stamp(13)
            for t in range(4):
                for hf in range(2):
                    for sec in range(2): trread(128 + 16*t + 8*u + 4*hf + 2*sec, "v60", (64*u + 8*hf + 4*sec) * 64 + 16*t)
                if t == 2: a("s_waitcnt lgkmcnt(6)")
            if u == 0: a("s_waitcnt lgkmcnt(0)")
    else:
        a("s_waitcnt vmcnt(0)")
        stamp(13)
        for t in range(4):
            for u in range(2):
                for hf in range(2):
                    for sec in range(2): trread(128 + 16*t + 8*u + 4*hf + 2*sec, "v60", (64*u + 8*hf + 4*sec) * 64 + 16*t)
            if t: a("s_waitcnt lgkmcnt(6)")
        a("s_waitcnt lgkmcnt(0)")
        for k in range(4):
            for t in range(4): mfma(224 + 4*t, f"v[{128+16*t+4*k}:{131+16*t+4*k}]", "v[112:115]", k == 0)
        for t in range(4): a(f"ds_write_b128 v26, v[{224+4*t}:{227+4*t}] offset:{L_CS+2048*t}")
    if cspre:
        a("s_waitcnt lgkmcnt(0)"); a("s_barrier")
        for w in range(4): a(f"ds_read_b128 v[{224+4*w}:{227+4*w}], v63 offset:{L_CS+512*w}")
        a("s_waitcnt lgkmcnt(0)")
        for r in range(4): a(f"v_add_f32 v{224+r}, v{224+r}, v{228+r}"); a(f"v_add_f32 v{232+r}, v{232+r}, v{236+r}")
        for r in range(4): a(f"v_add_f32 v{108+r}, v{224+r}, v{232+r}")
    def ldH(b): return [f"buffer_load_dwordx4 v[{b+4*u}:{b+3+4*u}], v62, s[32:35], s59 offen offset:{u*1024} sc1" for u in range(2)]
    def useH(b):
        n = 0
        for u in range(2):
            for t in range(4):
                for hf in range(2):
                    mfma(192 + 8*t + 4*hf, f"v[{128+16*t+8*u+4*hf}:{131+16*t+8*u+4*hf}]", f"v[{b+4*u}:{b+3+4*u}]", u == 0)
                    if n < 8:
                        a(f"v_dot2_f32_bf16 v52, v{b+n}, v112, {'0' if n == 0 else 'v52'}")
                        a(f"v_dot2_f32_bf16 v53, v{b+n}, v{b+n}, {'0' if n == 0 else 'v53'}")
                    if n == 9:
                        for r in range(2): a(f"v_add_f32_dpp v{52+r}, v{52+r}, v{52+r} row_ror:8 row_mask:0xf bank_mask:0xf")
                    if n == 11: a("v_permlane32_swap_b32 v52, v53"); a("v_add_f32 v52, v52, v53"); a("v_mov_b32 v53, v52")
                    if n == 13: a("v_permlane16_swap_b32 v52, v53"); a("v_add_f32 v52, v52, v53"); a(f"ds_write_b32 v49, v52 offset:{L_ST}")
                    n += 1
    poll2("L_pH", ldH, 8, (76, 84), useH, colsum if staged else None)
    stamp(10)
    for t in range(4):
        for r in range(4): a(f"v_add_f32_dpp v{192+8*t+r}, v{196+8*t+r}, v{192+8*t+r} row_ror:8 row_mask:0xf bank_mask:0xf")
        a(f"ds_write_b128 v26, v[{192+8*t}:{195+8*t}] offset:{L_T2+2048*t}")
    a("s_waitcnt lgkmcnt(0)"); a("s_barrier")
    for k in range(2): a(f"ds_read_b128 v[{92+4*k}:{95+4*k}], v61 offset:{L_ST+16*k}")
    if not cspre:
        for w in range(4): a(f"ds_read_b128 v[{224+4*w}:{227+4*w}], v63 offset:{L_CS+512*w}")
    for w in range(4): a(f"ds_read_b128 v[{116+4*w}:{119+4*w}], v63 offset:{L_T2+512*w}")
    a(f"s_waitcnt lgkmcnt({4 if cspre else 8})")
    for k in range(2): a(f"v_add_f32 v{92+k}, v{92+k}, v{94+k}"); a(f"v_add_f32 v{96+k}, v{96+k}, v{98+k}")
    a("v_add_f32 v52, v92, v96"); a("v_add_f32 v53, v93, v97")
    a(f"v_mul_f32 v52, {f32(1/512)}, v52"); a(f"v_mul_f32 v53, {f32(1/512)}, v53")
    a("v_fma_f32 v53, -v52, v52, v53"); a("v_max_f32 v53, 0, v53")
    bf16r("v53"); bf16r("v52")
    a(f"v_add_f32 v53, {f32(1e-5)}, v53"); bf16r("v53")
    a("v_sqrt_f32 v53, v53")
    if not cspre:
        a("s_waitcnt lgkmcnt(4)")
        for r in range(4): a(f"v_add_f32 v{224+r}, v{224+r}, v{228+r}"); a(f"v_add_f32 v{232+r}, v{232+r}, v{236+r}")
        bf16r("v53"); a("v_rcp_f32 v53, v53")
        for r in range(4): a(f"v_add_f32 v{108+r}, v{224+r}, v{232+r}")
    a("s_waitcnt lgkmcnt(0)")
    for r in range(4): a(f"v_add_f32 v{116+r}, v{116+r}, v{120+r}"); a(f"v_add_f32 v{124+r}, v{124+r}, v{128+r}")
    if cspre: bf16r("v53"); a("v_rcp_f32 v53, v53")
    for r in range(4): a(f"v_add_f32 v{116+r}, v{116+r}, v{124+r}")
    for r in range(4): a(f"v_fma_f32 v{116+r}, -v52, v{108+r}, v{116+r}")
    for r in range(4): a(f"v_mul_f32 v{116+r}, v{116+r}, v53")
    for r in range(2): a(f"v_cvt_pk_bf16_f32 v{120+r}, v{116+2*r}, v{117+2*r}")
    for r in range(2): a(f"v_permlane32_swap_b32 v{120+r}, v{122+r}")
    for r in range(2):
        a(f"v_lshlrev_b32 v{116+2*r}, 16, v{120+r}"); a(f"v_and_b32 v{117+2*r}, 0xffff0000, v{120+r}")
        a(f"v_lshlrev_b32 v{124+2*r}, 16, v{122+r}"); a(f"v_and_b32 v{125+2*r}, 0xffff0000, v{122+r}")
    for r in range(4): a(f"v_max_f32 v{116+r}, 0, v{116+r}")
    for r in range(4): a(f"v_mul_f32 v{116+r}, v{116+r}, v{124+r}")
    for r in range(2): a(f"v_cvt_pk_bf16_f32 v{120+r}, v{116+2*r}, v{117+2*r}")
    a("s_mov_b64 exec, 0x00ff00ff")
    for r in range(2): a(f"v_min_u32 v{120+r}, -2, v{120+r}")
    a("buffer_store_dwordx2 v[120:121], v70, s[32:35], 0 offen sc1")
    stamp(11)
    a("s_branch L_fin")

    C("---- reducer: sum the 32 heads' partials of 2 rows x 32 columns, add x, publish h")
    a("L_s2:")
    a("v_lshlrev_b32 v62, 4, v1")
    a("s_lshl_b32 s59, s89, 13"); a("s_add_u32 s92, s59, 4096")
    a("v_lshlrev_b32 v50, 16, v71"); a("v_and_b32 v51, 0xffff0000, v71")
    def ld8(b): return [f"buffer_load_dwordx4 v[{b+4*u}:{b+3+4*u}], v62, s[32:35], {'s59' if u < 4 else 's92'} offen offset:{(u&3)*1024} sc1" for u in range(8)]
    def useP(b):
        for r in range(16): a(f"v_add_f32 v{108+r}, v{b+r}, v{b+16+r}")
    poll2("L_pP", ld8, 32, (76, 128), useP)
    stamp(8)
    for st in (8, 4):
        for r in range(st): a(f"v_add_f32 v{108+r}, v{108+r}, v{108+st+r}")
    a("v_permlane32_swap_b32 v108, v110"); a("v_permlane32_swap_b32 v109, v111")
    a("v_add_f32 v108, v108, v110"); a("v_add_f32 v109, v109, v111")
    a("v_mov_b32 v110, v108"); a("v_mov_b32 v111, v109")
    a("v_permlane16_swap_b32 v108, v110"); a("v_permlane16_swap_b32 v109, v111")
    a("v_add_f32 v108, v108, v110"); a("v_add_f32 v109, v109, v111")
    a("v_cvt_pk_bf16_f32 v108, v108, v109")
    a("v_and_b32 v109, 0xffff0000, v108"); a("v_lshlrev_b32 v108, 16, v108")
    a("v_add_f32 v108, v108, v50"); a("v_add_f32 v109, v109, v51")
    a("v_cvt_pk_bf16_f32 v108, v108, v109")
    a("s_mov_b32 exec_lo, 0xffff"); a("s_mov_b32 exec_hi, 0xffff")
    a("v_min_u32 v108, -2, v108")
    a("buffer_store_dword v108, v69, s[32:35], 0 offen sc1")
    if rskip == 2:
        a("s_mov_b64 exec, -1")
        for k in range(0 if pf0 >= NB else pfn, 6): pfload(k)
    stamp(9)
    a("s_branch L_fin")

    C("---- 16 output columns, 448 rows of W_down per wave")
    a("L_s4:")
    a("v_lshlrev_b32 v60, 5, v60"); a("v_lshl_add_u32 v60, v61, 3, v60")
    a(f"s_mul_i32 s58, s3, {448*32}"); a(f"s_add_u32 s58, s58, {L_W}"); a("v_add_u32 v60, s58, v60")
    C("h address v49 = H + ((s'>>1)*4 + (b>>1))*128 + (b&1)*64 + (s'&1)*32 + g*8 ; out address v50 = b*1024 + s'*32 + g*8")
    a("v_lshrrev_b32 v49, 1, v27"); a("v_lshlrev_b32 v49, 7, v49"); a("v_and_b32 v50, 1, v27"); a("v_lshl_add_u32 v49, v50, 6, v49")
    a("v_lshl_add_u32 v49, v74, 3, v49")
    a("s_lshr_b32 s58, s89, 1"); a("s_lshl_b32 s58, s58, 9"); a("s_and_b32 s92, s89, 1"); a("s_lshl_b32 s92, s92, 5"); a("s_add_u32 s58, s58, s92")
    a(f"s_add_u32 s58, s58, {WS_H}"); a("v_add_u32 v49, s58, v49")
    a("v_lshlrev_b32 v50, 10, v27"); a("v_lshl_add_u32 v50, v74, 3, v50"); a("s_lshl_b32 s58, s89, 5"); a("v_add_u32 v50, s58, v50")
    a(f"s_mul_i32 s59, s3, {7*1024}"); a(f"s_add_u32 s59, s59, {WS_G}"); a("s_add_u32 s92, s59, 4096")
    a("v_lshlrev_b32 v62, 4, v1")
    if not staged: a("s_waitcnt vmcnt(0)"); stamp(13)
    for u in range(7):
        if staged: a(f"s_waitcnt vmcnt({12 - 2*u})")
        if staged and u == 6: stamp(13)
        for hf in range(2):
            for sec in range(2): trread(128 + 8*u + 4*hf + 2*sec, "v60", (64*u + 8*hf + 4*sec) * 32)
        if u in (2, 5): a("s_waitcnt lgkmcnt(4)")
    a("s_waitcnt lgkmcnt(0)")
    def ldG(b): return ld8(b)[:7] + [f"buffer_load_dwordx2 v[{b+28}:{b+29}], v49, s[32:35], 0 offen sc1"]
    def useG(b):
        for u in range(7):
            for hf in range(2): mfma(108 + 4*hf, f"v[{128+8*u+4*hf}:{131+8*u+4*hf}]", f"v[{b+4*u}:{b+3+4*u}]", u == 0)
        for r in range(2):
            a(f"v_lshlrev_b32 v{116+2*r}, 16, v{b+28+r}"); a(f"v_and_b32 v{117+2*r}, 0xffff0000, v{b+28+r}")
    poll2("L_pG", ldG, 30, (76, 192), useG)
    stamp(10)
    for r in range(4): a(f"v_add_f32_dpp v{108+r}, v{112+r}, v{108+r} row_ror:8 row_mask:0xf bank_mask:0xf")
    a("s_mov_b32 exec_lo, 0x00ff00ff"); a("s_mov_b32 exec_hi, 0x00ff00ff")
    a(f"ds_write_b128 v26, v[108:111] offset:{L_TX}")
    a("s_waitcnt lgkmcnt(0)"); a("s_barrier")
    a("s_cmp_eq_u32 s3, 3"); a("s_cbranch_scc0 L_fin")
    for w in range(4): a(f"ds_read_b128 v[{128+4*w}:{131+4*w}], v63 offset:{L_TX+512*w}")
    a("s_waitcnt lgkmcnt(0)")
    for r in range(4):
        a(f"v_add_f32 v{128+r}, v{128+r}, v{132+r}"); a(f"v_add_f32 v{136+r}, v{136+r}, v{140+r}")
    for r in range(4): a(f"v_add_f32 v{128+r}, v{128+r}, v{136+r}")
    for r in range(2): a(f"v_cvt_pk_bf16_f32 v{132+r}, v{128+2*r}, v{129+2*r}")
    for r in range(2):
        a(f"v_lshlrev_b32 v{128+2*r}, 16, v{132+r}"); a(f"v_and_b32 v{129+2*r}, 0xffff0000, v{132+r}")
    for r in range(4): a(f"v_add_f32 v{128+r}, v{128+r}, v{116+r}")
    for r in range(2): a(f"v_cvt_pk_bf16_f32 v{132+r}, v{128+2*r}, v{129+2*r}")
    a("buffer_store_dwordx2 v[132:133], v50, s[36:39], 0 offen")
    stamp(11)
    a("L_fin:")
    if probe is not None:
        a(f"s_cmp_eq_u32 s2, {pwg}"); a("s_cbranch_scc0 L_end"); a("s_cmp_eq_u32 s3, 3"); a("s_cbranch_scc0 L_end")
        if probe == 0: a("s_mov_b32 s20, 0")
        a("s_add_u32 s20, s20, 10000")
        a("L_probe:")
        a("s_sleep 4"); a("s_memrealtime s[94:95]"); a("s_waitcnt lgkmcnt(0)"); a("s_sub_u32 s94, s94, s18")
        a("s_cmp_lt_u32 s94, s20"); a("s_cbranch_scc1 L_probe")
    if stamps:
        a("s_mov_b64 exec, -1")
        stamp(12)
        a("s_getreg_b32 s92, hwreg(HW_REG_XCC_ID)"); a("v_writelane_b32 v73, s92, 15")
        a("s_lshl_b32 s58, s2, 2"); a("s_add_u32 s58, s58, s3"); a("s_lshl_b32 s58, s58, 7"); a(f"s_add_u32 s58, s58, {WS_ST}")
        a("v_lshlrev_b32 v48, 2, v1"); a("s_mov_b32 exec_hi, 0")
        a("buffer_store_dword v73, v48, s[32:35], s58 offen")
        if "dbgout" in xp:
            a("s_cmp_eq_u32 s2, 229"); a("s_cbranch_scc0 L_end"); a("s_cmp_eq_u32 s3, 3"); a("s_cbranch_scc0 L_end")
            a("v_subrev_u32 v73, s18, v73"); a("s_mov_b64 exec, 0xffff")
            a("global_store_dword v48, v73, s[84:85] sc1")
    a("L_end:")
    a("s_endpgm")
    body = a.finish()
    head_ = HEADER + f"; @launch grid=(256,1,1) block=(256,1,1) lds={L_SIZE}\n" + '.amdgcn_target "amdgcn-amd-amdhsa--gfx950"\n.text\n' + \
        DOC + f".globl {NAME}\n.p2align 8\n.type {NAME},@function\n"
    tail = f""".section .rodata,"a"
.p2align 6
.amdhsa_kernel {NAME}
  .amdhsa_next_free_vgpr 392
  .amdhsa_next_free_sgpr 102
  .amdhsa_accum_offset 256
  .amdhsa_group_segment_fixed_size 0
  .amdhsa_kernarg_size 96
  .amdhsa_user_sgpr_count 2
  .amdhsa_user_sgpr_kernarg_segment_ptr 1
  .amdhsa_system_sgpr_workgroup_id_x 1
.end_amdhsa_kernel
"""
    return head_ + body + tail

if __name__ == "__main__":
    kw = eval("dict(%s)" % (sys.argv[2] if len(sys.argv) > 2 else ""))
    open(sys.argv[1], "w").write(gen(**kw))
```
